```python
import torch

def _softmax(x, axis=-1):
    return torch.softmax(x, dim=axis)
def _gelu(x):
    return torch.nn.functional.gelu(x, approximate="tanh")
def _silu(x):
    return torch.nn.functional.silu(x)
def _sigmoid(x):
    return torch.sigmoid(x)
def _layernorm(x, axis=-1, eps=1e-5):
    m = x.mean(dim=axis, keepdim=True)
    v = x.var(dim=axis, keepdim=True, unbiased=False)
    return (x - m) / torch.sqrt(v + eps)
def _scatter_add(tgt, idx, src, axis=0):
    return tgt.clone().index_add_(axis, idx, src)
def _segment_sum(src, seg, n):
    out = torch.zeros((n,) + src.shape[1:], dtype=src.dtype)
    return out.index_add_(0, seg, src)
def _pad(x, pw):
    flat = tuple(v for pair in reversed(pw) for v in pair)
    return torch.nn.functional.pad(x, flat)

kernel_name = 'parallel_sum__ssm_conv_h3__geglu_ffn__prompt'

def setup_inputs():

    _w = (lambda a: (lambda t: t.to(torch.bfloat16) if t.is_floating_point() else t)(torch.as_tensor(a)))
    def _A_setup():
        B, S, D = 1, 2048, 512
        ks = 4
        return {
            "q": _w((lambda *s: torch.randn(*s, dtype=torch.bfloat16) * 0.05)(B, S, D)),
            "k": _w((lambda *s: torch.randn(*s, dtype=torch.bfloat16) * 0.8)(B, S, D)),
            "v": _w((lambda *s: torch.randn(*s, dtype=torch.bfloat16) * 0.8)(B, S, D)),
            "shift_k": _w((lambda *s: torch.randn(*s, dtype=torch.bfloat16) * 0.8)(D, ks) * 0.5),
            "ssm_k": _w((lambda *s: torch.randn(*s, dtype=torch.bfloat16) * 0.8)(D, S) * (1.0 / S ** 0.5)),
            "ssm_D": _w((lambda *s: torch.randn(*s, dtype=torch.bfloat16) * 0.8)(D)),
        }
    _A_in = _A_setup()

    def _B_setup():
        B, S, D, F = 1, 2048, 512, 1376
        return {
            "x": _w((lambda *s: torch.randn(*s, dtype=torch.bfloat16) * 0.05)(B, S, D)),
            "w_gate": _w((lambda *s: torch.randn(*s, dtype=torch.bfloat16) * 0.05)(D, F)),
            "w_up": _w((lambda *s: torch.randn(*s, dtype=torch.bfloat16) * 0.05)(D, F)),
            "w_down": _w((lambda *s: torch.randn(*s, dtype=torch.bfloat16) * 0.05)(F, D)),
        }
    _B_in = _B_setup()

    return {
        "A_q": _A_in["q"],
        "A_k": _A_in["k"],
        "A_v": _A_in["v"],
        "A_shift_k": _A_in["shift_k"],
        "A_ssm_k": _A_in["ssm_k"],
        "A_ssm_D": _A_in["ssm_D"],
        "B_x": _B_in["x"],
        "B_w_gate": _B_in["w_gate"],
        "B_w_up": _B_in["w_up"],
        "B_w_down": _B_in["w_down"],
    }

def reference(A_q, A_k, A_v, A_shift_k, A_ssm_k, A_ssm_D, B_x, B_w_gate, B_w_up, B_w_down):
    def _A_ref(q, k, v, shift_k, ssm_k, ssm_D):
        B, S, D = q.shape
        ks = shift_k.shape[-1]
        k_pad = _pad(k, ((0, 0), (ks - 1, 0), (0, 0)))
        k_shift = torch.zeros_like(k)
        for t in range(ks):
            k_shift = k_shift + k_pad[:, t:t + S, :] * shift_k[:, ks - 1 - t][None, None, :]
        kv = k_shift * v
        L = 2 * S
        kv_pad = _pad(kv, ((0, 0), (0, S), (0, 0)))
        kf_pad = _pad(ssm_k, ((0, 0), (0, S)))
        kv_f = (lambda x, axes=(-2,-1): torch.fft.rfft2(x.float(), dim=axes))(kv_pad[:, None, :, :], axes=(1, 2))
        kf_f = (lambda x, axes=(-2,-1): torch.fft.rfft2(x.float(), dim=axes))(kf_pad[:, None, :], axes=(1, 2))
        kf_f = (lambda x, *d: x.permute(*d))(kf_f, 1, 2, 0)
        y_f = kv_f * kf_f[None, :, :, :]
        y = (lambda x, s, axes=(-2,-1): torch.fft.irfft2(x, s=s, dim=axes).to(torch.bfloat16))(y_f, (1, L), axes=(1, 2))[:, 0, :S, :]
        y = y + kv * ssm_D[None, None, :]
        return q * y

    def _B_ref(x, w_gate, w_up, w_down):
        return (_gelu(x @ w_gate) * (x @ w_up)) @ w_down

    x = A_q
    xn = _layernorm(x, axis=-1)
    return x + _A_ref(xn, A_k, A_v, A_shift_k, A_ssm_k, A_ssm_D) + _B_ref(xn, B_w_gate, B_w_up, B_w_down)
```

```python
class Asm:
    def __init__(self):
        self.L = []
        self.nlabel = 0

    def __call__(self, s):
        for line in s.split("\n"):
            line = line.strip()
            if line:
                self.L.append(("" if line.endswith(":") else "    ") + line)

    def c(self, s):
        self.L.append("    ; " + s)

    def label(self, base="L"):
        self.nlabel += 1
        return f"{base}_{self.nlabel}"

    def text(self):
        return "\n".join(self.L) + "\n"


def v(a, n=1):
    return f"v{a}" if n == 1 else f"v[{a}:{a+n-1}]"


def s(a, n=1):
    return f"s{a}" if n == 1 else f"s[{a}:{a+n-1}]"


def f32bits(x):
    import struct
    return struct.unpack("<I", struct.pack("<f", x))[0]


def interleave(main, fill, start=0, every=1):
    out = []
    fill = list(fill)
    for i, m in enumerate(main):
        if fill and i >= start and (i - start) % every == 0:
            out.append(fill.pop(0))
        out.append(m)
    out.extend(fill)
    return out


def kernel_desc(name, vgpr=256, sgpr=102):
    acc = (vgpr + 3) // 4 * 4
    return f""".amdhsa_kernel {name}
  .amdhsa_next_free_vgpr {vgpr}
  .amdhsa_next_free_sgpr {sgpr}
  .amdhsa_accum_offset {acc}
  .amdhsa_group_segment_fixed_size 0
  .amdhsa_kernarg_size 104
  .amdhsa_user_sgpr_count 2
  .amdhsa_user_sgpr_kernarg_segment_ptr 1
  .amdhsa_system_sgpr_workgroup_id_x 1
.end_amdhsa_kernel
"""
```

```python
import math, sys
from asmlib import *

S, D, F = 2048, 512, 1376
NU = F // 16
WS_HF = 0
WS_KVR = 0x600000
WS_Y2 = 0x800000
WS_ST = 0xA00000
WS_CSP = 0xA10000
WS_SIZE = 0x1000000
R_X, R_WG, R_WU, R_WS, R_K, R_V, R_SK, R_WD, R_OUT, R_H, R_DBG = 4, 8, 12, 16, 20, 24, 28, 32, 36, 40, 44
S_WAVE, S_MI, S_NI, S_FB0, S_NBLK, S_T0, S_T1, S_T2, S_T3 = 48, 49, 50, 51, 52, 53, 54, 55, 56
S_IT, S_SLOT, S_KC, S_XO, S_WO, S_WO2, S_M0, S_WB, S_SH, S_UH = 57, 58, 59, 60, 61, 62, 63, 64, 65, 66
S_C = 68
S_EX = 76
SLOT = 40960
NSLOT = 3
L_KVT = 122880
KVT_STRIDE = 144
L_CS = 132096
L_ST = 133120
C1 = -2.0 * math.log2(math.e) * math.sqrt(2.0 / math.pi)
C2 = C1 * 0.044715


def srd(a, r, off, size):
    a(f"s_load_dwordx2 {s(r,2)}, s[0:1], {off}")
    a(f"s_mov_b32 {s(r+2)}, {size:#x}")
    a(f"s_mov_b32 {s(r+3)}, 0x20000")


def prologue(a, name, srds):
    a(f".globl {name}\n.p2align 8\n.type {name},@function\n{name}:")
    a(f"s_cmp_ge_u32 s2, 256\ns_cbranch_scc1 {name}_end")
    table = {R_X: (0, S*D*2), R_K: (8, S*D*2), R_V: (16, S*D*2), R_SK: (24, D*8), R_WG: (56, D*F*2),
             R_WU: (64, D*F*2), R_WD: (72, D*F*2), R_OUT: (80, S*D*2), R_WS: (96, WS_SIZE),
             R_H: (32, 4096), R_DBG: (88, 256)}
    for r in srds:
        srd(a, r, *table[r])
    a("v_lshrrev_b32 v1, 6, v0")
    a("v_and_b32 v0, 63, v0")
    a(f"v_readfirstlane_b32 {s(S_WAVE)}, v1")


def g1_ids(a):
    a.c("tile ids: x = wg&7, j = wg>>3, mi = 8*(x&1) + (j&7), ni = 4*(x>>1) + (j>>3)")
    a(f"s_and_b32 {s(S_T0)}, s2, 1\ns_lshl_b32 {s(S_T0)}, {s(S_T0)}, 3")
    a(f"s_bfe_u32 {s(S_T1)}, s2, 0x30003\ns_add_u32 {s(S_MI)}, {s(S_T0)}, {s(S_T1)}")
    a(f"s_bfe_u32 {s(S_T0)}, s2, 0x20001\ns_lshl_b32 {s(S_T0)}, {s(S_T0)}, 2")
    a(f"s_lshr_b32 {s(S_T2)}, s2, 6\ns_add_u32 {s(S_NI)}, {s(S_T0)}, {s(S_T2)}")
    a.c("first K chunk = (mi + 2*(ni&3)) & 7")
    a(f"s_lshl_b32 {s(S_T2)}, {s(S_T2)}, 1\ns_add_u32 {s(S_KC)}, {s(S_T1)}, {s(S_T2)}\ns_and_b32 {s(S_KC)}, {s(S_KC)}, 7")
    a.c("first 32-col block fb0 = 3*ni - (ni>>2) - (ni==15); nblk = 2 for ni in {3,7,11,14,15}")
    a(f"s_mul_i32 {s(S_FB0)}, {s(S_NI)}, 3\ns_lshr_b32 {s(S_T0)}, {s(S_NI)}, 2\ns_sub_u32 {s(S_FB0)}, {s(S_FB0)}, {s(S_T0)}")
    a(f"s_cmp_eq_u32 {s(S_NI)}, 15\ns_cselect_b32 {s(S_T0)}, 1, 0\ns_sub_u32 {s(S_FB0)}, {s(S_FB0)}, {s(S_T0)}")
    a(f"s_lshr_b32 {s(S_T0)}, 0xc888, {s(S_NI)}\ns_and_b32 {s(S_T0)}, {s(S_T0)}, 1\ns_sub_u32 {s(S_NBLK)}, 3, {s(S_T0)}")


V_XA0, V_XA1, V_W = 2, 3, 4
V_XC0, V_XC1, V_WC = 7, 8, 9
ACC, F0, F1, V_ONE, V_CSA = 16, 112, 152, 192, 196


def acc(u, mat, sb):
    return ACC + ((u * 2 + mat) * 4 + sb) * 4


def g1_reads(fr, step, units):
    out = []
    if 'x' in units:
        for sb in range(4):
            out.append(f"ds_read_b128 {v(fr+4*sb,4)}, {v(V_XC1 if step else V_XC0)} offset:{sb*2048}")
    for u in units:
        if u == 'x':
            continue
        for mat in range(2):
            r = fr + 16 + (u * 2 + mat) * 4
            for t in range(2):
                out.append(f"ds_read_b64_tr_b16 {v(r+2*t,2)}, {v(V_WC+u)} offset:{mat*12288+step*2048+t*256}")
    return out


def g1_mfmas(fr, units):
    out = []
    for u in units:
        for mat in range(2):
            for sb in range(4):
                c = acc(u, mat, sb)
                out.append(f"v_mfma_f32_16x16x32_bf16 {v(c,4)}, {v(fr+16+(u*2+mat)*4,4)}, {v(fr+4*sb,4)}, {v(c,4)}")
    return out


def g1_step(a, cur, nxt, nstep, tag):
    lab = a.label("g1_skip")
    a(f"s_cmp_eq_u32 {s(S_NBLK)}, 2\ns_cbranch_scc1 {lab}")
    for l in interleave(g1_mfmas(cur, [2]), g1_reads(nxt, nstep, [2]), 0, 2):
        a(l)
    a(f"{lab}:")
    for l in interleave(g1_mfmas(cur, [0, 1]), g1_reads(nxt, nstep, ['x', 0, 1]), 0, 1):
        a(l)


def g1_colsum(a, fr, step):
    for i in range(6):
        a(f"v_mfma_f32_16x16x32_bf16 {v(V_CSA+4*i,4)}, {v(fr+16+4*i,4)}, {v(V_ONE,4)}, 0")
    a.c("CSP offset = ((((ni*2+half)*8 + (mi&7))*2 + step)*768 + mat*384 + uu*64 + g*16")
    a(f"s_lshl_b32 {s(S_T0)}, {s(S_NI)}, 4\ns_add_u32 {s(S_T0)}, {s(S_T0)}, {s(S_MI)}")
    a(f"s_mul_i32 {s(S_T0)}, {s(S_T0)}, 1536\ns_add_u32 {s(S_T0)}, {s(S_T0)}, {WS_CSP + step*768:#x}")
    a(f"s_mul_i32 {s(S_T1)}, {s(S_UH)}, {s(S_NBLK)}\ns_lshl_b32 {s(S_T1)}, {s(S_T1)}, 6\ns_add_u32 {s(S_T0)}, {s(S_T0)}, {s(S_T1)}")
    a("v_and_b32 v1, 48, v0")
    a(f"s_mov_b32 {s(S_EX)}, 0x00010001\ns_mov_b32 {s(S_EX+1)}, 0x00010001\ns_mov_b64 exec, {s(S_EX,2)}")
    lab = a.label("cs_skip")
    for u in range(3):
        if u == 2:
            a(f"s_cmp_eq_u32 {s(S_NBLK)}, 2\ns_cbranch_scc1 {lab}")
        for mat in range(2):
            a(f"buffer_store_dwordx4 {v(V_CSA+4*(u*2+mat),4)}, v1, {s(R_WS,4)}, {s(S_T0)} offen offset:{mat*384+u*64} sc1")
    a(f"{lab}:")
    a("s_mov_b64 exec, -1")


def g1_compute(a):
    a(f"s_and_b32 {s(S_SH)}, {s(S_WAVE)}, 1\ns_lshr_b32 {s(S_UH)}, {s(S_WAVE)}, 1")
    a.c("x fragment address: (64*sh + s16)*128 + ((kg ^ ((s16>>1)&7))*16)")
    a("v_and_b32 v10, 15, v0\nv_lshrrev_b32 v11, 4, v0\nv_lshrrev_b32 v12, 1, v10\nv_xor_b32 v12, v12, v11\nv_lshlrev_b32 v12, 4, v12")
    a(f"v_lshl_add_u32 {v(V_XA0)}, v10, 7, v12\ns_lshl_b32 {s(S_T0)}, {s(S_SH)}, 13\nv_add_u32 {v(V_XA0)}, {s(S_T0)}, {v(V_XA0)}")
    a(f"v_xor_b32 {v(V_XA1)}, 64, {v(V_XA0)}")
    a.c("W fragment address: 16384 + blk*4096 + kg*512 + r*64 + ((h^(kg&1))*32) + c*8")
    a("v_lshlrev_b32 v12, 9, v11\nv_bfe_u32 v13, v0, 2, 2\nv_lshl_add_u32 v12, v13, 6, v12\nv_and_b32 v13, 3, v0\nv_lshl_add_u32 v12, v13, 3, v12")
    a("v_and_b32 v13, 1, v11\nv_lshl_add_u32 v12, v13, 5, v12")
    a(f"s_mul_i32 {s(S_T0)}, {s(S_UH)}, {s(S_NBLK)}")
    for u in range(3):
        a(f"s_add_u32 {s(S_T1)}, {s(S_T0)}, {u}\ns_and_b32 {s(S_T2)}, {s(S_T1)}, 1\ns_lshl_b32 {s(S_T2)}, {s(S_T2)}, 5")
        a(f"s_lshr_b32 {s(S_T1)}, {s(S_T1)}, 1\ns_lshl_b32 {s(S_T1)}, {s(S_T1)}, 12\ns_add_u32 {s(S_T1)}, {s(S_T1)}, 16384")
        a(f"v_xor_b32 {v(V_W+u)}, {s(S_T2)}, v12\nv_add_u32 {v(V_W+u)}, {s(S_T1)}, {v(V_W+u)}")
    for i in range(96):
        a(f"v_mov_b32 {v(ACC+i)}, 0")
    for i in range(4):
        a(f"v_mov_b32 {v(V_ONE+i)}, 0x3f803f80")
    for i in range(5):
        a(f"v_mov_b32 {v(V_XC0+i)}, {v(V_XA0+i)}")
    a(f"s_mov_b32 {s(S_IT)}, 0\ns_mov_b32 {s(S_SLOT)}, 0")
    a("s_waitcnt lgkmcnt(0)")
    a("s_barrier")
    for l in g1_reads(F0, 0, ['x', 0, 1, 2]):
        a(l)
    a("s_waitcnt lgkmcnt(0)")
    a("g1_loop:")
    l0, l1 = a.label("g1_ncs"), a.label("g1_ncs")
    a(f"s_add_u32 {s(S_T0)}, {s(S_IT)}, {s(S_SH)}\ns_cmp_lg_u32 {s(S_T0)}, 0\ns_cbranch_scc1 {l0}")
    g1_colsum(a, F0, 0)
    a(f"{l0}:")
    g1_step(a, F0, F1, 1, "a")
    a(f"s_add_u32 {s(S_SLOT)}, {s(S_SLOT)}, {SLOT}\ns_cmp_eq_u32 {s(S_SLOT)}, {NSLOT*SLOT}\ns_cselect_b32 {s(S_SLOT)}, 0, {s(S_SLOT)}")
    lw = a.label("g1_nw")
    a(f"s_cmp_lg_u32 {s(S_IT)}, 2\ns_cbranch_scc1 {lw}\ns_waitcnt vmcnt(0)\n{lw}:")
    a("s_waitcnt lgkmcnt(0)")
    a("s_barrier")
    for i in range(5):
        a(f"v_add_u32 {v(V_XC0+i)}, {s(S_SLOT)}, {v(V_XA0+i)}")
    a(f"s_xor_b32 {s(S_T0)}, {s(S_SH)}, 1\ns_add_u32 {s(S_T0)}, {s(S_IT)}, {s(S_T0)}\ns_cmp_lg_u32 {s(S_T0)}, 0\ns_cbranch_scc1 {l1}")
    g1_colsum(a, F1, 1)
    a(f"{l1}:")
    g1_step(a, F1, F0, 0, "b")
    a("s_waitcnt lgkmcnt(0)")
    a(f"s_add_u32 {s(S_IT)}, {s(S_IT)}, 1\ns_cmp_lt_u32 {s(S_IT)}, 8\ns_cbranch_scc1 g1_loop")
    a("s_barrier")
    g1_epilogue(a)


def g1_epilogue(a):
    VST, VCS, T = 112, 128, 152
    a.c("row constants (m,k1,k2,ir2) and column sums from LDS")
    a(f"v_and_b32 v10, 15, v0\nv_lshlrev_b32 v10, 4, v10\ns_lshl_b32 {s(S_T0)}, {s(S_SH)}, 10\ns_add_u32 {s(S_T0)}, {s(S_T0)}, {L_ST}\nv_add_u32 v10, {s(S_T0)}, v10")
    for sb in range(4):
        a(f"ds_read_b128 {v(VST+4*sb,4)}, v10 offset:{sb*256}")
    a(f"s_mul_i32 {s(S_T1)}, {s(S_UH)}, {s(S_NBLK)}\ns_lshl_b32 {s(S_T0)}, {s(S_T1)}, 6\ns_add_u32 {s(S_T0)}, {s(S_T0)}, {L_CS}")
    a(f"v_and_b32 v11, 48, v0\nv_add_u32 v11, {s(S_T0)}, v11")
    for u in range(3):
        for mat in range(2):
            a(f"ds_read_b128 {v(VCS+4*(u*2+mat),4)}, v11 offset:{mat*384+u*64}")
    a.c("HF offset = ((4*mi + 2*sh + pp)*86 + 2*fb0 + uu)*1024 + lane*16")
    a(f"s_lshl_b32 {s(S_T0)}, {s(S_MI)}, 1\ns_add_u32 {s(S_T0)}, {s(S_T0)}, {s(S_SH)}\ns_mul_i32 {s(S_T0)}, {s(S_T0)}, {2*NU}")
    a(f"s_lshl_b32 {s(S_T2)}, {s(S_FB0)}, 1\ns_add_u32 {s(S_T0)}, {s(S_T0)}, {s(S_T2)}\ns_add_u32 {s(S_T0)}, {s(S_T0)}, {s(S_T1)}\ns_lshl_b32 {s(S_T0)}, {s(S_T0)}, 10")
    a(f"s_add_u32 {s(S_T1)}, {s(S_T0)}, {NU*1024}")
    a("v_lshlrev_b32 v10, 4, v0")
    a("s_waitcnt lgkmcnt(0)")
    lab = a.label("ep_done")
    for u in range(3):
        if u == 2:
            a(f"s_cmp_eq_u32 {s(S_NBLK)}, 2\ns_cbranch_scc1 {lab}")
        for pp in range(2):
            o = T + 32 + 4 * pp
            pairs = [(2*pp + (q >> 1), q & 1, T + 8*q) for q in range(4)]
            def each(f):
                for sb, h, t in pairs:
                    g, up, st = acc(u, 0, sb) + 2*h, acc(u, 1, sb) + 2*h, VST + 4*sb
                    cg, cu = VCS + 4*(u*2) + 2*h, VCS + 4*(u*2+1) + 2*h
                    a(f(g, up, st, cg, cu, t))
            each(lambda g, up, st, cg, cu, t: f"v_pk_fma_f32 {v(g,2)}, {v(cg,2)}, {v(st,2)}, {v(g,2)} op_sel_hi:[1,0,1] neg_lo:[0,1,0] neg_hi:[0,1,0]")
            each(lambda g, up, st, cg, cu, t: f"v_pk_mul_f32 {v(t,2)}, {v(g,2)}, {v(g,2)}")
            each(lambda g, up, st, cg, cu, t: f"v_pk_fma_f32 {v(t,2)}, {v(t,2)}, {v(st+2,2)}, {v(st,2)} op_sel:[0,0,1] op_sel_hi:[1,0,1]")
            each(lambda g, up, st, cg, cu, t: f"v_pk_mul_f32 {v(t,2)}, {v(t,2)}, {v(g,2)}")
            each(lambda g, up, st, cg, cu, t: f"v_exp_f32 {v(t)}, {v(t)}\nv_exp_f32 {v(t+1)}, {v(t+1)}")
            each(lambda g, up, st, cg, cu, t: f"v_pk_fma_f32 {v(up,2)}, {v(cu,2)}, {v(st,2)}, {v(up,2)} op_sel_hi:[1,0,1] neg_lo:[0,1,0] neg_hi:[0,1,0]")
            each(lambda g, up, st, cg, cu, t: f"v_pk_fma_f32 {v(t,2)}, {v(t,2)}, {v(st+2,2)}, {v(st+2,2)} op_sel:[0,1,1] op_sel_hi:[1,1,1]")
            each(lambda g, up, st, cg, cu, t: f"v_rcp_f32 {v(t)}, {v(t)}\nv_rcp_f32 {v(t+1)}, {v(t+1)}")
            each(lambda g, up, st, cg, cu, t: f"v_pk_mul_f32 {v(g,2)}, {v(g,2)}, {v(up,2)}")
            each(lambda g, up, st, cg, cu, t: f"v_pk_mul_f32 {v(t,2)}, {v(t,2)}, {v(g,2)}")
            for q, (sb, h, t) in enumerate(pairs):
                a(f"v_cvt_pk_bf16_f32 {v(o+q)}, {v(t)}, {v(t+1)}")
            a(f"buffer_store_dwordx4 {v(o,4)}, v10, {s(R_WS,4)}, {s(S_T1 if pp else S_T0)} offen offset:{u*1024} sc1")
    a(f"{lab}:")


VB_X, VB_W = 2, 3


def g1_dma_chunk(a):
    a(f"s_lshl_b32 {s(S_T0)}, {s(S_KC)}, 7\ns_add_u32 {s(S_T0)}, {s(S_T0)}, {s(S_XO)}")
    a(f"s_mul_i32 {s(S_T1)}, {s(S_KC)}, {64*F*2}\ns_add_u32 {s(S_T2)}, {s(S_T1)}, {s(S_WO2)}\ns_add_u32 {s(S_T1)}, {s(S_T1)}, {s(S_WO)}")
    a(f"s_add_u32 {s(S_T3)}, {s(S_SLOT)}, {s(S_M0)}")
    for i in range(4):
        a(f"s_add_u32 m0, {s(S_T3)}, {i*4096}")
        if i:
            a(f"s_add_u32 {s(S_T0)}, {s(S_T0)}, 32768")
        else:
            a("s_nop 0")
        a(f"buffer_load_dwordx4 {v(VB_X)}, {s(R_X,4)}, {s(S_T0)} offen lds")
    for blk in range(3):
        for mat in range(2):
            a(f"s_add_u32 m0, {s(S_T3)}, {16384 + (mat*3+blk)*4096 - 64*blk}")
            a("s_nop 0")
            a(f"buffer_load_dwordx4 {v(VB_W)}, {s(R_WU if mat else R_WG,4)}, {s(S_T2 if blk == 2 else S_T1)} offen offset:{64*blk} lds")
    a(f"s_add_u32 {s(S_KC)}, {s(S_KC)}, 1\ns_and_b32 {s(S_KC)}, {s(S_KC)}, 7")
    a(f"s_add_u32 {s(S_SLOT)}, {s(S_SLOT)}, {SLOT}\ns_cmp_eq_u32 {s(S_SLOT)}, {NSLOT*SLOT}\ns_cselect_b32 {s(S_SLOT)}, 0, {s(S_SLOT)}")


def wave_sum2(a, x0, x1):
    for ctl in ("row_shr:1 row_mask:0xf bank_mask:0xf bound_ctrl:0", "row_shr:2 row_mask:0xf bank_mask:0xf bound_ctrl:0",
                "row_shr:4 row_mask:0xf bank_mask:0xf bound_ctrl:0", "row_shr:8 row_mask:0xf bank_mask:0xf bound_ctrl:0",
                "row_bcast:15 row_mask:0xa bank_mask:0xf", "row_bcast:31 row_mask:0xc bank_mask:0xf"):
        a("s_nop 0")
        a(f"v_add_f32_dpp {v(x0)}, {v(x0)}, {v(x0)} {ctl}")
        a(f"v_add_f32_dpp {v(x1)}, {v(x1)}, {v(x1)} {ctl}")


def round_bf16(a, r):
    a(f"v_cvt_pk_bf16_f32 {v(r)}, {v(r)}, {v(r)}\nv_lshlrev_b32 {v(r)}, 16, {v(r)}")


VS = 8
VKV = 16
VT = 40


def g1_stats_loads(a):
    a(f"s_lshl_b32 {s(S_T0)}, {s(S_MI)}, 4\ns_add_u32 {s(S_T0)}, {s(S_T0)}, {s(S_NI)}\ns_lshl_b32 {s(S_T0)}, {s(S_T0)}, 2\ns_add_u32 {s(S_T0)}, {s(S_T0)}, {s(S_WB)}\ns_lshl_b32 {s(S_T0)}, {s(S_T0)}, 11")
    a("v_lshlrev_b32 v4, 4, v0")
    a(f"buffer_load_dwordx4 {v(VS,4)}, v4, {s(R_X,4)}, {s(S_T0)} offen")
    a(f"buffer_load_dwordx4 {v(VS+4,4)}, v4, {s(R_X,4)}, {s(S_T0)} offen offset:1024")


def g1_stats(a):
    U = VT
    a(f"s_mov_b32 {s(S_C)}, 0xffff0000")
    for r in range(2):
        for i in range(4):
            a(f"v_lshlrev_b32 {v(U+8*r+2*i)}, 16, {v(VS+4*r+i)}\nv_and_b32 {v(U+8*r+2*i+1)}, {s(S_C)}, {v(VS+4*r+i)}")
    A0 = U + 16
    for r in range(2):
        a(f"v_pk_add_f32 {v(A0+4*r,2)}, {v(U+8*r,2)}, {v(U+8*r+2,2)}\nv_pk_add_f32 {v(A0+4*r+2,2)}, {v(U+8*r+4,2)}, {v(U+8*r+6,2)}")
    for r in range(2):
        a(f"v_pk_add_f32 {v(A0+4*r,2)}, {v(A0+4*r,2)}, {v(A0+4*r+2,2)}")
    for r in range(2):
        a(f"v_add_f32 {v(A0+4*r)}, {v(A0+4*r)}, {v(A0+4*r+1)}")
    a("s_nop 0")
    wave_sum2(a, A0, A0 + 4)
    a(f"v_mul_f32 {v(A0)}, {f32bits(1/512):#x}, {v(A0)}\nv_mul_f32 {v(A0+4)}, {f32bits(1/512):#x}, {v(A0+4)}")
    a("s_nop 0")
    a(f"v_readlane_b32 {s(S_C+2)}, {v(A0)}, 63\nv_readlane_b32 {s(S_C+4)}, {v(A0+4)}, 63")
    a("s_nop 1")
    for r in range(2):
        for i in range(8):
            a(f"v_subrev_f32 {v(U+8*r+i)}, {s(S_C+2+2*r)}, {v(U+8*r+i)}")
    for r in range(2):
        a(f"v_pk_mul_f32 {v(A0+4*r+2,2)}, {v(U+8*r,2)}, {v(U+8*r,2)}")
    for i in range(1, 4):
        for r in range(2):
            a(f"v_pk_fma_f32 {v(A0+4*r+2,2)}, {v(U+8*r+2*i,2)}, {v(U+8*r+2*i,2)}, {v(A0+4*r+2,2)}")
    for r in range(2):
        a(f"v_add_f32 {v(A0+4*r+2)}, {v(A0+4*r+2)}, {v(A0+4*r+3)}")
    a("s_nop 0")
    wave_sum2(a, A0 + 2, A0 + 6)
    a.c("lane 63 holds row 1, lane 62 takes row 0")
    a("s_nop 0")
    a(f"v_readlane_b32 {s(S_C+3)}, {v(A0+2)}, 63")
    a("s_nop 3")
    a(f"v_writelane_b32 {v(A0+6)}, {s(S_C+3)}, 62\nv_writelane_b32 {v(A0+4)}, {s(S_C+2)}, 62")
    M, K1, K2, I2 = A0 + 4, A0 + 5, A0 + 6, A0 + 7
    a(f"v_mul_f32 {v(K2)}, {f32bits(1/512):#x}, {v(K2)}")
    round_bf16(a, M)
    round_bf16(a, K2)
    a(f"v_add_f32 {v(K2)}, {f32bits(1e-5):#x}, {v(K2)}")
    round_bf16(a, K2)
    a(f"v_sqrt_f32 {v(K2)}, {v(K2)}\ns_nop 0")
    round_bf16(a, K2)
    a(f"v_rcp_f32 {v(K1)}, {v(K2)}\nv_mul_f32 {v(I2)}, {v(K2)}, {v(K2)}")
    a(f"v_mul_f32 {v(K2)}, {v(K1)}, {v(K1)}\nv_mul_f32 {v(K2)}, {v(K2)}, {v(K1)}")
    a(f"v_mul_f32 {v(K2)}, {f32bits(C2):#x}, {v(K2)}\nv_mul_f32 {v(K1)}, {f32bits(C1):#x}, {v(K1)}")
    a(f"s_lshl_b32 {s(S_T0)}, {s(S_MI)}, 4\ns_add_u32 {s(S_T0)}, {s(S_T0)}, {s(S_NI)}\ns_lshl_b32 {s(S_T0)}, {s(S_T0)}, 2\ns_add_u32 {s(S_T0)}, {s(S_T0)}, {s(S_WB)}\ns_lshl_b32 {s(S_T0)}, {s(S_T0)}, 5")
    a(f"s_add_u32 {s(S_T0)}, {s(S_T0)}, {WS_ST - 62*16:#x}")
    a(f"s_mov_b32 {s(S_EX)}, 0\ns_mov_b32 {s(S_EX+1)}, 0xc0000000\ns_mov_b64 exec, {s(S_EX,2)}")
    a(f"buffer_store_dwordx4 {v(M,4)}, v4, {s(R_WS,4)}, {s(S_T0)} offen sc1")
    a("s_mov_b64 exec, -1")


def kv_loads(a):
    a(f"s_lshr_b32 {s(S_T0)}, s2, 3\ns_lshl_b32 {s(S_T0)}, {s(S_T0)}, 2\ns_add_u32 {s(S_T0)}, {s(S_T0)}, {s(S_WB)}\ns_lshl_b32 {s(S_T0)}, {s(S_T0)}, 14")
    a(f"s_and_b32 {s(S_T1)}, s2, 7\ns_lshl_b32 {s(S_T2)}, {s(S_T1)}, 7\ns_add_u32 {s(S_T0)}, {s(S_T0)}, {s(S_T2)}")
    a("v_lshrrev_b32 v5, 5, v0\nv_lshlrev_b32 v5, 13, v5\nv_and_b32 v6, 31, v0\nv_lshl_add_u32 v5, v6, 2, v5")
    a(f"v_add_u32 v5, {s(S_T0)}, v5")
    a.c("halo rows: 3 rows above, out of range (zero) for the first rows of the sequence")
    a("v_subrev_u32 v7, 0xc00, v5\nv_cmp_gt_u32 vcc, 0xc00, v5\nv_mov_b32 v35, 0x7ff00000\ns_nop 1\nv_cndmask_b32 v7, v7, v35, vcc")
    a(f"s_mov_b32 {s(S_T2)}, 4096")
    for i in range(3):
        a(f"buffer_load_dword {v(VKV+i)}, v7, {s(R_K,4)}, 0 offen offset:{i*1024}")
    for i in range(8):
        a(f"buffer_load_dword {v(VKV+3+i)}, v5, {s(R_K,4)}, {s(S_T2) if i >= 4 else 0} offen offset:{(i%4)*1024}")
    for i in range(8):
        a(f"buffer_load_dword {v(VKV+11+i)}, v5, {s(R_V,4)}, {s(S_T2) if i >= 4 else 0} offen offset:{(i%4)*1024}")
    a(f"s_lshl_b32 {s(S_T1)}, {s(S_T1)}, 9\nv_lshlrev_b32 v6, 4, v6")
    a(f"buffer_load_dwordx4 {v(36,4)}, v6, {s(R_SK,4)}, {s(S_T1)} offen")


def kv_compute(a):
    KU, VU, W, O = 40, 62, 78, 86
    a(f"s_mov_b32 {s(S_C)}, 0xffff0000")
    for i in range(11):
        a(f"v_lshlrev_b32 {v(KU+2*i)}, 16, {v(VKV+i)}\nv_and_b32 {v(KU+2*i+1)}, {s(S_C)}, {v(VKV+i)}")
    for i in range(8):
        a(f"v_lshlrev_b32 {v(VU+2*i)}, 16, {v(VKV+11+i)}\nv_and_b32 {v(VU+2*i+1)}, {s(S_C)}, {v(VKV+11+i)}")
    for j in range(4):
        for ch in range(2):
            src = 36 + 2*ch + (j >> 1)
            if j & 1:
                a(f"v_and_b32 {v(W+2*j+ch)}, {s(S_C)}, {v(src)}")
            else:
                a(f"v_lshlrev_b32 {v(W+2*j+ch)}, 16, {v(src)}")
    T = 96
    for o in range(8):
        a(f"v_pk_mul_f32 {v(T+2*o,2)}, {v(KU+2*o,2)}, {v(W+6,2)}")
    for j in (2, 1, 0):
        for o in range(8):
            a(f"v_pk_fma_f32 {v(T+2*o,2)}, {v(KU+2*(o+3-j),2)}, {v(W+2*j,2)}, {v(T+2*o,2)}")
    for o in range(8):
        a(f"v_pk_mul_f32 {v(T+2*o,2)}, {v(T+2*o,2)}, {v(VU+2*o,2)}")
    for ch in range(2):
        for i in range(4):
            a(f"v_cvt_pk_bf16_f32 {v(O+4*ch+i)}, {v(T+2*(7-2*i)+ch)}, {v(T+2*(6-2*i)+ch)}")
    a.c("KVT[ch][reversed s chunk]: row = 2*(lane&31)+ch, chunk = 7 - (2wb + lane>>5)")
    a(f"v_and_b32 v6, 31, v0\nv_mul_u32_u24 v6, {2*KVT_STRIDE}, v6\nv_lshrrev_b32 v5, 5, v0\nv_lshlrev_b32 v5, 4, v5\nv_sub_u32 v6, v6, v5")
    a(f"s_lshl_b32 {s(S_T0)}, {s(S_WB)}, 5\ns_sub_u32 {s(S_T0)}, {L_KVT + 112}, {s(S_T0)}\nv_add_u32 v6, {s(S_T0)}, v6")
    a(f"ds_write_b128 v6, {v(O,4)}\nds_write_b128 v6, {v(O+4,4)} offset:{KVT_STRIDE}")


def kv_store(a):
    a(f"v_lshrrev_b32 v5, 3, v0\nv_and_b32 v6, 7, v0\nv_lshlrev_b32 v6, 4, v6\nv_mul_u32_u24 v7, {KVT_STRIDE}, v5\nv_add_u32 v7, v7, v6")
    a(f"s_mul_i32 {s(S_T0)}, {s(S_WB)}, {16*KVT_STRIDE}\ns_add_u32 {s(S_T0)}, {s(S_T0)}, {L_KVT}\nv_add_u32 v7, {s(S_T0)}, v7")
    a(f"ds_read_b128 {v(40,4)}, v7\nds_read_b128 {v(44,4)}, v7 offset:{8*KVT_STRIDE}")
    a("v_lshl_add_u32 v5, v5, 12, v6")
    a(f"s_and_b32 {s(S_T0)}, s2, 7\ns_lshl_b32 {s(S_T0)}, {s(S_T0)}, 2\ns_add_u32 {s(S_T0)}, {s(S_T0)}, {s(S_WB)}\ns_lshl_b32 {s(S_T0)}, {s(S_T0)}, 16")
    a(f"s_lshr_b32 {s(S_T1)}, s2, 3\ns_lshl_b32 {s(S_T1)}, {s(S_T1)}, 7\ns_sub_u32 {s(S_T0)}, {s(S_T0)}, {s(S_T1)}\ns_add_u32 {s(S_T0)}, {s(S_T0)}, {WS_KVR + 4096 - 128:#x}")
    a(f"s_add_u32 {s(S_T1)}, {s(S_T0)}, 32768")
    a("s_waitcnt lgkmcnt(0)")
    a(f"buffer_store_dwordx4 {v(40,4)}, v5, {s(R_WS,4)}, {s(S_T0)} offen sc1")
    a(f"buffer_store_dwordx4 {v(44,4)}, v5, {s(R_WS,4)}, {s(S_T1)} offen sc1")


def gather_loads(a):
    l1, l2 = a.label("ga"), a.label("ga")
    a(f"s_cmp_lg_u32 {s(S_WB)}, 0\ns_cbranch_scc1 {l1}")
    a(f"s_lshl_b32 {s(S_T0)}, {s(S_NI)}, 1\ns_lshr_b32 {s(S_T1)}, {s(S_MI)}, 3\ns_add_u32 {s(S_T0)}, {s(S_T0)}, {s(S_T1)}\ns_mul_i32 {s(S_T0)}, {s(S_T0)}, 12288\ns_add_u32 {s(S_T0)}, {s(S_T0)}, {WS_CSP:#x}")
    for i in range(16):
        if i and i % 4 == 0:
            a(f"s_add_u32 {s(S_T0)}, {s(S_T0)}, 3072")
        a(f"buffer_load_dwordx4 {v(48+4*i,4)}, v4, {s(R_WS,4)}, {s(S_T0)} offen offset:{(i%4)*768} sc1")
    a(f"s_branch {l2}")
    a(f"{l1}:")
    a(f"s_cmp_lg_u32 {s(S_WB)}, 1\ns_cbranch_scc1 {l2}")
    a(f"s_lshl_b32 {s(S_T0)}, {s(S_MI)}, 11\ns_add_u32 {s(S_T0)}, {s(S_T0)}, {WS_ST:#x}")
    a(f"buffer_load_dwordx4 {v(48,4)}, v4, {s(R_WS,4)}, {s(S_T0)} offen sc1")
    a(f"buffer_load_dwordx4 {v(52,4)}, v4, {s(R_WS,4)}, {s(S_T0)} offen offset:1024 sc1")
    a(f"{l2}:")


def gather_finish(a):
    l1, l2 = a.label("gf"), a.label("gf")
    a("s_waitcnt vmcnt(0)")
    a(f"s_cmp_lg_u32 {s(S_WB)}, 0\ns_cbranch_scc1 {l1}")
    n = 16
    while n > 1:
        n //= 2
        for i in range(n):
            for h in range(2):
                a(f"v_pk_add_f32 {v(48+4*i+2*h,2)}, {v(48+4*i+2*h,2)}, {v(48+4*(i+n)+2*h,2)}")
    a(f"v_add_u32 v5, {L_CS}, v4")
    a(f"ds_write_b128 v5, {v(48,4)}")
    a(f"s_branch {l2}")
    a(f"{l1}:")
    a(f"s_cmp_lg_u32 {s(S_WB)}, 1\ns_cbranch_scc1 {l2}")
    a(f"v_add_u32 v5, {L_ST}, v4")
    a(f"ds_write_b128 v5, {v(48,4)}\nds_write_b128 v5, {v(52,4)} offset:1024")
    a(f"{l2}:")
    a("s_waitcnt lgkmcnt(0)")


def g1_loader(a):
    a(f"s_sub_u32 {s(S_WB)}, {s(S_WAVE)}, 4")
    a.c("x DMA lane offset: (8wb + l>>3)*1024 + ((l&7) ^ ((4*(wb&1) + l>>4)&7))*16")
    a(f"s_and_b32 {s(S_T0)}, {s(S_WB)}, 1\ns_lshl_b32 {s(S_T0)}, {s(S_T0)}, 2")
    a(f"v_lshrrev_b32 v5, 4, v0\nv_add_u32 v5, {s(S_T0)}, v5\nv_and_b32 v6, 7, v0\nv_xor_b32 v5, v5, v6\nv_lshlrev_b32 v5, 4, v5")
    a(f"v_lshrrev_b32 v6, 3, v0\nv_lshl_add_u32 {v(VB_X)}, v6, 10, v5")
    a(f"s_lshl_b32 {s(S_XO)}, {s(S_MI)}, 17\ns_lshl_b32 {s(S_T0)}, {s(S_WB)}, 13\ns_add_u32 {s(S_XO)}, {s(S_XO)}, {s(S_T0)}")
    a.c("W DMA lane offset: (l>>2)*2752 + ((l&3) ^ (2*(l>>5)))*16")
    a(f"v_lshrrev_b32 v5, 5, v0\nv_lshlrev_b32 v5, 1, v5\nv_and_b32 v6, 3, v0\nv_xor_b32 v5, v5, v6\nv_lshlrev_b32 v5, 4, v5")
    a(f"v_lshrrev_b32 v6, 2, v0\nv_mul_u32_u24 v6, {F*2}, v6\nv_add_u32 {v(VB_W)}, v6, v5")
    a(f"s_mul_i32 {s(S_WO)}, {s(S_WB)}, {16*F*2}\ns_lshl_b32 {s(S_T0)}, {s(S_FB0)}, 6\ns_add_u32 {s(S_WO)}, {s(S_WO)}, {s(S_T0)}")
    a(f"s_cmp_eq_u32 {s(S_NBLK)}, 3\ns_cselect_b32 {s(S_WO2)}, {s(S_WO)}, 0x7f000000")
    a(f"s_lshl_b32 {s(S_M0)}, {s(S_WB)}, 10\ns_mov_b32 {s(S_SLOT)}, 0")
    a("s_waitcnt lgkmcnt(0)")
    g1_dma_chunk(a)
    g1_stats_loads(a)
    g1_dma_chunk(a)
    a("s_waitcnt vmcnt(12)\ns_barrier")
    g1_dma_chunk(a)
    kv_loads(a)
    a("s_waitcnt vmcnt(40)")
    g1_stats(a)
    a("s_waitcnt vmcnt(31)\ns_barrier")
    g1_dma_chunk(a)
    a("s_waitcnt vmcnt(31)\ns_barrier")
    g1_dma_chunk(a)
    a("s_waitcnt vmcnt(21)")
    kv_compute(a)
    a("s_waitcnt vmcnt(10) lgkmcnt(0)\ns_barrier")
    g1_dma_chunk(a)
    kv_store(a)
    a("s_waitcnt vmcnt(12)\ns_barrier")
    g1_dma_chunk(a)
    a("s_waitcnt vmcnt(10)\ns_barrier")
    g1_dma_chunk(a)
    a("s_waitcnt vmcnt(10)\ns_barrier")
    a("s_waitcnt vmcnt(0)")
    gather_loads(a)
    a("s_barrier")
    a("s_barrier")
    gather_finish(a)
    a("s_barrier")


def kernel_g1(a):
    prologue(a, "g1_kernel", [R_X, R_WG, R_WU, R_WS, R_K, R_V, R_SK])
    g1_ids(a)
    a(f"s_cmp_ge_u32 {s(S_WAVE)}, 4\ns_cbranch_scc1 g1_b")
    g1_compute(a)
    a("s_endpgm")
    a("g1_b:")
    g1_loader(a)
    a("g1_kernel_end:\ns_endpgm")


HEADER = open("parallel_sum__ssm_conv_h3__geglu_ffn__prompt.s.ref").read().split("; Override launch")[0]


def build(launches, kernels):
    a = Asm()
    for k in kernels:
        k(a)
    out = HEADER
    for name, lds in launches:
        out += f"; @launch kernel={name} grid=(256,1,1) block=(512,1,1) lds={lds}\n"
    out += '.amdgcn_target "amdgcn-amd-amdhsa--gfx950"\n.text\n' + a.text()
    out += '.section .rodata,"a"\n'
    for name in dict.fromkeys(n for n, _ in launches):
        out += ".p2align 6\n" + kernel_desc(name)
    return out


if __name__ == "__main__":
    open("t_g1.s", "w").write(build([("g1_kernel", 163840)] * 2, [kernel_g1]))
```

```python
from gen1 import *

S_MT, S_NT, S_HO, S_DO, S_RING, S_CNT = 49, 50, 51, 52, 58, 59
NR = 5
RING = NR * 4096
L_CONV = 4 * RING
HSTR = 4640
CH_STR = 4 * HSTR + 4224
L_XCH = L_CONV + 2 * CH_STR
L_CNT = L_XCH + 32768
L_YL = L_CONV
PSTR = 272
assert L_CNT + 64 <= 163840


def c2_ids(a):
    a(f"s_bfe_u32 {s(S_T0)}, s2, 0x20001\ns_lshl_b32 {s(S_T0)}, {s(S_T0)}, 3\ns_bfe_u32 {s(S_T1)}, s2, 0x30003\ns_add_u32 {s(S_MT)}, {s(S_T0)}, {s(S_T1)}")
    a(f"s_and_b32 {s(S_T0)}, s2, 1\ns_lshl_b32 {s(S_T0)}, {s(S_T0)}, 2\ns_lshr_b32 {s(S_T1)}, s2, 6\ns_add_u32 {s(S_NT)}, {s(S_T0)}, {s(S_T1)}")


G_ACC, G_WF, G_H = 16, 80, 112
G_L16, G_WD, G_TR = 2, 3, 4
NHB = 6
NSTEP = 11


def g2_loads(i):
    ops = []
    last = i == NSTEP - 1
    do = S_T2 if last else S_DO
    ho = S_T3 if last else S_HO
    pre = ""
    if last:
        pre = (f"s_cmp_eq_u32 {s(S_WAVE)}, 3\ns_cselect_b32 {s(S_T2)}, 0x7f000000, {s(S_DO)}\n"
               f"s_cselect_b32 {s(S_T3)}, 0x7f000000, {s(S_HO)}\n")
    for q in range(4):
        ops.append(pre + f"s_add_u32 m0, {s(S_RING)}, {(i % NR)*4096 + q*1024}\n"
                   f"s_add_u32 {s(S_T0)}, {s(do)}, {i*32768 + q*8192}\n"
                   f"buffer_load_dwordx4 {v(G_WD)}, {s(R_WD,4)}, {s(S_T0)} offen lds")
        pre = ""
    hb = G_H + (i % NHB) * 16
    for p in range(2):
        ops.append(f"s_add_u32 {s(S_T1)}, {s(ho)}, {i*2048 + p*NU*1024}\n"
                   f"buffer_load_dwordx4 {v(hb+8*p,4)}, {v(G_L16)}, {s(R_WS,4)}, {s(S_T1)} offen sc1")
        ops.append(f"buffer_load_dwordx4 {v(hb+8*p+4,4)}, {v(G_L16)}, {s(R_WS,4)}, {s(S_T1)} offen offset:1024 sc1")
    return ops


def g2_prep(a, i):
    wf = G_WF + (i & 1) * 16
    for db in range(4):
        for t in range(2):
            a(f"ds_read_b64_tr_b16 {v(wf+4*db+2*t,2)}, {v(G_TR+db)} offset:{(i % NR)*4096 + t*2048}")
    hb = G_H + (i % NHB) * 16
    for p in range(2):
        a(f"v_swap_b32 {v(hb+8*p+2)}, {v(hb+8*p+4)}\nv_swap_b32 {v(hb+8*p+3)}, {v(hb+8*p+5)}")


def g2_main(a):
    a(f"v_lshlrev_b32 {v(G_L16)}, 4, v0")
    a.c("Wd DMA lane offset: (l>>3)*1024 + ((l&7) ^ (((l>>4)&3)<<1))*16")
    a(f"v_lshrrev_b32 v8, 4, v0\nv_lshlrev_b32 v9, 1, v8\nv_and_b32 v10, 7, v0\nv_xor_b32 v9, v9, v10\nv_lshlrev_b32 v9, 4, v9\nv_lshrrev_b32 v10, 3, v0\nv_lshl_add_u32 {v(G_WD)}, v10, 10, v9")
    a(f"s_mul_i32 {s(S_RING)}, {s(S_WAVE)}, {RING}")
    a.c("tr address: ring + (l>>2)*128 + ((db ^ ((l>>3)&3))*32) + (l&3)*8")
    a(f"v_lshrrev_b32 v9, 2, v0\nv_lshlrev_b32 v9, 7, v9\nv_and_b32 v11, 3, v0\nv_lshl_add_u32 v9, v11, 3, v9\nv_add_u32 v9, {s(S_RING)}, v9\nv_and_b32 v10, 3, v10")
    for db in range(4):
        a(f"v_xor_b32 v11, {db}, v10\nv_lshl_add_u32 {v(G_TR+db)}, v11, 5, v9")
    a(f"s_mul_i32 {s(S_DO)}, {s(S_WAVE)}, {NSTEP*32768}\ns_lshl_b32 {s(S_T0)}, {s(S_NT)}, 7\ns_add_u32 {s(S_DO)}, {s(S_DO)}, {s(S_T0)}")
    a(f"s_mul_i32 {s(S_HO)}, {s(S_MT)}, {2*NU*1024}\ns_mul_i32 {s(S_T0)}, {s(S_WAVE)}, {NSTEP*2048}\ns_add_u32 {s(S_HO)}, {s(S_HO)}, {s(S_T0)}")
    a("s_waitcnt lgkmcnt(0)")
    for i in range(NR):
        for op in g2_loads(i):
            a(op)
    a("s_barrier")
    a(f"s_waitcnt vmcnt({8*(NR-1)})")
    g2_prep(a, 0)
    for i in range(NSTEP):
        issued = min(NSTEP, i + NR)
        a("s_waitcnt lgkmcnt(0)")
        if i + 1 < NSTEP:
            a(f"s_waitcnt vmcnt({8*(issued - (i+2))})")
            g2_prep(a, i + 1)
        wf, hb = G_WF + (i & 1) * 16, G_H + (i % NHB) * 16
        mf = []
        for db in range(4):
            for sb in range(4):
                c = G_ACC + (db * 4 + sb) * 4
                mf.append(f"v_mfma_f32_16x16x32_bf16 {v(c,4)}, {v(wf+4*db,4)}, {v(hb+4*sb,4)}, {v(c,4) if i else 0}")
        ld = g2_loads(i + NR) if i + NR < NSTEP else []
        for l in interleave(mf, ld, 1, 2):
            a(l)
    a.c("partial tile -> LDS [s][d] fp32, row stride 272")
    a(f"v_and_b32 v8, 15, v0\nv_mul_u32_u24 v8, {PSTR}, v8\nv_and_b32 v9, 48, v0\nv_add3_u32 v8, v8, v9, {s(S_RING)}")
    a("s_nop 4")
    for db in range(4):
        for sb in range(4):
            a(f"ds_write_b128 v8, {v(G_ACC+(db*4+sb)*4,4)} offset:{sb*16*PSTR + db*64}")
    a("s_waitcnt lgkmcnt(0)")
    a("s_barrier")


C_ACC, C_F0, C_F1 = 16, 48, 112
C_AA, C_BA, C_CNT, C_ONE = 2, 3, 4, 5


def bsync(a):
    lab = a.label("bs")
    a(f"s_add_u32 {s(S_CNT)}, {s(S_CNT)}, 4")
    a("s_waitcnt lgkmcnt(0)")
    a("s_mov_b64 exec, 1")
    a(f"ds_add_u32 {v(C_CNT)}, {v(C_ONE)}")
    a("s_mov_b64 exec, -1")
    a(f"{lab}:")
    a(f"ds_read_b32 v6, {v(C_CNT)}")
    a("s_waitcnt lgkmcnt(0)")
    a(f"v_readfirstlane_b32 {s(S_T0)}, v6")
    a("s_nop 0")
    a(f"s_cmp_lt_u32 {s(S_T0)}, {s(S_CNT)}\ns_cbranch_scc1 {lab}")


def conv_reads(fr, roff):
    out = []
    for p in range(8):
        out.append(f"ds_read_b128 {v(fr+4*p,4)}, {v(C_AA)} offset:{512*p + roff}")
        out.append(f"ds_read_b64 {v(fr+32+4*p,2)}, {v(C_BA)} offset:{512*(7-p) + roff}")
        out.append(f"ds_read_b64 {v(fr+32+4*p+2,2)}, {v(C_BA)} offset:{512*(7-p) + roff + 8}")
    return out


def conv_mfmas(fr, first):
    out = []
    seen = set()
    for tot in range(8):
        for p in range(tot + 1):
            q = tot - p
            c = C_ACC + 4 * tot
            out.append((max(p, q), f"v_mfma_f32_16x16x32_bf16 {v(c,4)}, {v(fr+4*p,4)}, {v(fr+32+4*q,4)}, ", c))
    out.sort(key=lambda t: t[0])
    res = []
    for _, txt, c in out:
        res.append(txt + ("0" if first and c not in seen else v(c, 4)))
        seen.add(c)
    return res


def conv_stage(a):
    a(f"s_lshr_b32 {s(S_T0)}, {s(S_WB)}, 1\ns_and_b32 {s(S_T1)}, {s(S_WB)}, 1")
    a(f"s_lshl_b32 {s(S_T2)}, s2, 1\ns_add_u32 {s(S_T2)}, {s(S_T2)}, {s(S_T0)}\ns_lshl_b32 {s(S_T2)}, {s(S_T2)}, 12")
    a(f"s_mul_i32 {s(S_RING)}, {s(S_T0)}, {CH_STR}\ns_add_u32 {s(S_RING)}, {s(S_RING)}, {L_CONV}")
    a(f"s_lshl_b32 {s(S_T1)}, {s(S_T1)}, 11")
    a(f"v_lshlrev_b32 v6, 4, v0\nv_add_u32 v7, {s(S_T1)}, v6\nv_subrev_u32 v8, 8, v7\nv_add_u32 v9, 1016, v7")
    a("s_waitcnt lgkmcnt(0)")
    a(f"s_add_u32 {s(R_H)}, {s(R_H)}, {s(S_T2)}\ns_addc_u32 {s(R_H+1)}, {s(R_H+1)}, 0")
    a(f"s_lshl_b32 {s(S_T3)}, s2, 2\ns_load_dword {s(S_C+6)}, {s(S_C,2)}, {s(S_T3)}")
    R = 48
    a(f"buffer_load_dwordx2 {v(R,2)}, v8, {s(R_H,4)}, 0 offen")
    a(f"buffer_load_dwordx4 {v(R+2,4)}, v7, {s(R_H,4)}, 0 offen")
    a(f"buffer_load_dwordx2 {v(R+6,2)}, v9, {s(R_H,4)}, 0 offen")
    a(f"buffer_load_dwordx4 {v(R+8,4)}, v7, {s(R_H,4)}, 0 offen offset:1024")
    a(f"s_add_u32 {s(S_T2)}, {s(S_T2)}, {WS_KVR:#x}")
    a(f"buffer_load_dwordx4 {v(R+12,4)}, v7, {s(R_WS,4)}, {s(S_T2)} offen sc1")
    a(f"buffer_load_dwordx4 {v(R+16,4)}, v7, {s(R_WS,4)}, {s(S_T2)} offen offset:1024 sc1")
    a.c("zero pads: 384 B in front of each h copy (two copies per wave), 128 B behind u")
    for i in range(4):
        a(f"v_mov_b32 {v(100+i)}, 0")
    a(f"s_and_b32 {s(S_T0)}, {s(S_WB)}, 1\ns_mul_i32 {s(S_T0)}, {s(S_T0)}, {2*HSTR}\ns_add_u32 {s(S_T0)}, {s(S_T0)}, {s(S_RING)}")
    a(f"v_add_u32 v10, {s(S_T0)}, v6\nv_add_u32 v11, {s(S_RING)}, v6\nv_add_u32 v7, {s(S_RING)}, v7")
    a("s_mov_b64 exec, 0xffffff")
    a(f"ds_write_b128 v10, {v(100,4)}\nds_write_b128 v10, {v(100,4)} offset:{HSTR}")
    a("s_mov_b64 exec, 0xff")
    a(f"ds_write_b128 v11, {v(100,4)} offset:{4*HSTR + 4096}")
    a("s_mov_b64 exec, -1")
    T = 72
    for h in range(2):
        r = R + 6 * h
        a(f"s_waitcnt vmcnt({4 - 2*h})")
        for i in range(4):
            a(f"v_alignbit_b32 {v(T+i)}, {v(r+2+i)}, {v(r+1+i)}, 16")
        for i in range(4):
            a(f"v_mov_b32 {v(T+4+i)}, {v(r+1+i)}")
        for i in range(4):
            a(f"v_alignbit_b32 {v(T+8+i)}, {v(r+1+i)}, {v(r+i)}, 16")
        a(f"ds_write_b128 v7, {v(r+2,4)} offset:{384 + 1024*h}")
        for p in range(1, 4):
            a(f"ds_write_b128 v7, {v(T+4*(p-1),4)} offset:{p*HSTR + 384 + 1024*h}")
        T += 12
    a("s_waitcnt vmcnt(0)")
    a(f"ds_write_b128 v7, {v(R+12,4)} offset:{4*HSTR}\nds_write_b128 v7, {v(R+16,4)} offset:{4*HSTR + 1024}")


def conv_main(a):
    a.c("A address: base + (3-(m&3))*HSTR + 128*(m>>2) + 16*kg + 256*rh ; B address: ubase + 120 - 8n + 16kg + 256*rh")
    a(f"s_and_b32 {s(S_T0)}, {s(S_WB)}, 1\ns_lshl_b32 {s(S_T0)}, {s(S_T0)}, 8\ns_add_u32 {s(S_T0)}, {s(S_T0)}, {s(S_RING)}")
    a(f"v_and_b32 v6, 3, v0\nv_sub_u32 v6, 3, v6\nv_mul_u32_u24 v6, {HSTR}, v6\nv_bfe_u32 v7, v0, 2, 2\nv_lshl_add_u32 v6, v7, 7, v6")
    a(f"v_and_b32 v7, 48, v0\nv_add3_u32 {v(C_AA)}, v6, v7, {s(S_T0)}")
    a(f"v_and_b32 v6, 15, v0\nv_lshlrev_b32 v6, 3, v6\nv_sub_u32 v6, v7, v6\ns_add_u32 {s(S_T0)}, {s(S_T0)}, {4*HSTR + 120}\nv_add_u32 {v(C_BA)}, {s(S_T0)}, v6")
    bsync(a)
    for l in conv_reads(C_F0, 0):
        a(l)
    for r in range(4):
        cur, nxt = (C_F0, C_F1) if r % 2 == 0 else (C_F1, C_F0)
        a("s_waitcnt lgkmcnt(0)")
        rd = conv_reads(nxt, 64 * (r + 1)) if r < 3 else []
        for l in interleave(conv_mfmas(cur, r == 0), rd, 0, 1):
            a(l)
    a.c("exchange partial tiles")
    a(f"s_lshl_b32 {s(S_T0)}, {s(S_WB)}, 13\ns_add_u32 {s(S_T0)}, {s(S_T0)}, {L_XCH}\nv_lshlrev_b32 v7, 4, v0\nv_add_u32 v8, {s(S_T0)}, v7")
    a(f"s_lshl_b32 {s(S_T0)}, {s(S_WB)}, 11\ns_add_u32 {s(S_T0)}, {s(S_T0)}, {L_XCH}\nv_add_u32 v9, {s(S_T0)}, v7")
    a("s_nop 2")
    for t in range(8):
        a(f"ds_write_b128 v8, {v(C_ACC+4*t,4)} offset:{t*1024}")
    a.c("u for the skip term: ubase_c + 2*(2044 - 256T - 4l), T = 2wb + t")
    a(f"s_lshl_b32 {s(S_T0)}, {s(S_WB)}, 10\ns_sub_u32 {s(S_T0)}, {L_CONV + 4*HSTR + 4088 - 512}, {s(S_T0)}\nv_lshlrev_b32 v10, 3, v0\nv_sub_u32 v10, {s(S_T0)}, v10")
    U = 112
    for t in range(2):
        for c in range(2):
            a(f"ds_read_b64 {v(U+4*t+2*c,2)}, v10 offset:{c*CH_STR + 512*(1-t)}")
    bsync(a)
    X = 48
    for t in range(2):
        for w in range(4):
            a(f"ds_read_b128 {v(X+16*t+4*w,4)}, v9 offset:{w*8192 + t*1024}")
    a(f"s_lshl_b32 {s(S_C+7)}, {s(S_C+6)}, 16\ns_and_b32 {s(S_C+6)}, {s(S_C+6)}, 0xffff0000\ns_mov_b32 {s(S_C)}, 0xffff0000")
    UU = 120
    for t in range(2):
        for c in range(2):
            u, o = U + 4*t + 2*c, UU + 8*t + 4*c
            a(f"v_and_b32 {v(o)}, {s(S_C)}, {v(u+1)}\nv_lshlrev_b32 {v(o+1)}, 16, {v(u+1)}\nv_and_b32 {v(o+2)}, {s(S_C)}, {v(u)}\nv_lshlrev_b32 {v(o+3)}, 16, {v(u)}")
    a(f"s_lshl_b32 {s(S_T0)}, s2, 13\ns_lshl_b32 {s(S_T1)}, {s(S_WB)}, 11\ns_add_u32 {s(S_T0)}, {s(S_T0)}, {s(S_T1)}\ns_add_u32 {s(S_T0)}, {s(S_T0)}, {WS_Y2:#x}")
    a("s_waitcnt lgkmcnt(0)")
    for t in range(2):
        for c in range(2):
            x0, o = X + 16*t + 8*c, UU + 8*t + 4*c
            for h in range(2):
                a(f"v_pk_add_f32 {v(x0+2*h,2)}, {v(x0+2*h,2)}, {v(x0+4+2*h,2)}")
            for j in range(4):
                a(f"v_fmac_f32 {v(x0+j)}, {s(S_C+7-c)}, {v(o+j)}")
        for j in range(4):
            a(f"v_cvt_pk_bf16_f32 {v(136+4*t+j)}, {v(X+16*t+j)}, {v(X+16*t+8+j)}")
        a(f"buffer_store_dwordx4 {v(136+4*t,4)}, v7, {s(R_WS,4)}, {s(S_T0)} offen offset:{t*1024} sc1")


def final_loads(a):
    a(f"s_lshl_b32 {s(S_T0)}, {s(S_MT)}, 2\ns_add_u32 {s(S_T0)}, {s(S_T0)}, {s(S_WB)}\ns_lshl_b32 {s(S_T1)}, {s(S_T0)}, 14\ns_lshl_b32 {s(S_T2)}, {s(S_NT)}, 7\ns_add_u32 {s(S_XO)}, {s(S_T1)}, {s(S_T2)}")
    a(f"s_add_u32 {s(S_WO)}, {s(S_XO)}, 8192")
    a(f"v_lshrrev_b32 v12, 3, v0\nv_and_b32 v13, 7, v0\nv_lshlrev_b32 v14, 4, v13\nv_lshl_add_u32 v14, v12, 10, v14\nv_lshlrev_b32 v15, 4, v12")
    a(f"buffer_load_dwordx4 {v(176,4)}, v14, {s(R_X,4)}, {s(S_XO)} offen")
    a(f"buffer_load_dwordx4 {v(180,4)}, v14, {s(R_X,4)}, {s(S_WO)} offen")
    a(f"s_lshl_b32 {s(S_T0)}, {s(S_T0)}, 8\ns_add_u32 {s(S_T0)}, {s(S_T0)}, {WS_ST:#x}")
    a(f"buffer_load_dwordx2 {v(184,2)}, v15, {s(R_WS,4)}, {s(S_T0)} offen sc1")
    a(f"buffer_load_dwordx2 {v(186,2)}, v15, {s(R_WS,4)}, {s(S_T0)} offen offset:128 sc1")


def final(a):
    a.c("Y2 tile: rows 32nt + 8wb + 4i + (l>>4), 256 B each at column mt*256")
    a(f"s_lshl_b32 {s(S_T0)}, {s(S_NT)}, 2\ns_add_u32 {s(S_T0)}, {s(S_T0)}, {s(S_WB)}\ns_lshl_b32 {s(S_T0)}, {s(S_T0)}, 16\ns_lshl_b32 {s(S_T1)}, {s(S_MT)}, 8\ns_add_u32 {s(S_T0)}, {s(S_T0)}, {s(S_T1)}\ns_add_u32 {s(S_T0)}, {s(S_T0)}, {WS_Y2:#x}")
    a(f"s_add_u32 {s(S_T1)}, {s(S_T0)}, 32768")
    a("v_lshrrev_b32 v8, 4, v0\nv_and_b32 v9, 15, v0\nv_lshlrev_b32 v10, 4, v9\nv_lshl_add_u32 v10, v8, 13, v10")
    a(f"buffer_load_dwordx4 {v(48,4)}, v10, {s(R_WS,4)}, {s(S_T0)} offen sc1")
    a(f"buffer_load_dwordx4 {v(52,4)}, v10, {s(R_WS,4)}, {s(S_T1)} offen sc1")
    a(f"s_lshl_b32 {s(S_T0)}, {s(S_WB)}, 1\ns_lshl_b32 {s(S_T1)}, {s(S_WB)}, 11\ns_add_u32 {s(S_T1)}, {s(S_T1)}, {L_YL}")
    a(f"v_xor_b32 v9, {s(S_T0)}, v9\nv_lshlrev_b32 v9, 4, v9\nv_lshl_add_u32 v9, v8, 8, v9\nv_add_u32 v9, {s(S_T1)}, v9\nv_xor_b32 v10, 16, v9")
    a.c("unpack x, form (x - m) * r while the tile is in flight")
    XU, XN = 56, 72
    a(f"s_mov_b32 {s(S_C)}, 0xffff0000")
    a("s_waitcnt vmcnt(2)")
    for t in range(2):
        for i in range(4):
            a(f"v_lshlrev_b32 {v(XU+8*t+2*i)}, 16, {v(176+4*t+i)}\nv_and_b32 {v(XU+8*t+2*i+1)}, {s(S_C)}, {v(176+4*t+i)}")
        a(f"v_mul_f32 {v(185+2*t)}, {f32bits(1.0/C1):#x}, {v(185+2*t)}")
    for t in range(2):
        for i in range(4):
            a(f"v_pk_add_f32 {v(XN+8*t+2*i,2)}, {v(XU+8*t+2*i,2)}, {v(184+2*t,2)} op_sel_hi:[1,0] neg_lo:[0,1] neg_hi:[0,1]")
        for i in range(4):
            a(f"v_mul_f32 {v(XN+8*t+2*i)}, {v(XN+8*t+2*i)}, {v(185+2*t)}\nv_mul_f32 {v(XN+8*t+2*i+1)}, {v(XN+8*t+2*i+1)}, {v(185+2*t)}")
    a("s_waitcnt vmcnt(0)")
    a(f"ds_write_b128 v9, {v(48,4)}\nds_write_b128 v10, {v(52,4)} offset:1024")
    a.c("read address: YL + 4c*256 + ((sl>>2) ^ c)*16 + (sl&3)*4, sl = 16wb + 8t + (l>>3)")
    a(f"s_lshl_b32 {s(S_T0)}, {s(S_WB)}, 2\nv_lshrrev_b32 v8, 5, v0\nv_add_u32 v8, {s(S_T0)}, v8\nv_xor_b32 v8, v8, v13\nv_lshlrev_b32 v8, 4, v8\nv_lshl_add_u32 v8, v13, 10, v8")
    a(f"v_and_b32 v9, 3, v12\nv_lshl_add_u32 v8, v9, 2, v8\nv_add_u32 v8, {L_YL}, v8\nv_xor_b32 v9, 32, v8")
    bsync(a)
    Y = 88
    for t in range(2):
        for e in range(4):
            a(f"ds_read_b32 {v(Y+4*t+e)}, {'v9' if t else 'v8'} offset:{e*256}")
    a(f"s_mul_i32 {s(S_T0)}, {s(S_WB)}, {16*PSTR}\nv_mul_u32_u24 v8, {PSTR}, v12\nv_lshl_add_u32 v8, v13, 5, v8\nv_add_u32 v8, {s(S_T0)}, v8")
    a(f"v_add_u32 v9, {2*RING}, v8")
    a("s_waitcnt lgkmcnt(0)")
    YU = 96
    for t in range(2):
        for e in range(4):
            a(f"v_lshlrev_b32 {v(YU+8*t+2*e)}, 16, {v(Y+4*t+e)}\nv_and_b32 {v(YU+8*t+2*e+1)}, {s(S_C)}, {v(Y+4*t+e)}")
    for t in range(2):
        for i in range(4):
            a(f"v_pk_fma_f32 {v(XU+8*t+2*i,2)}, {v(XN+8*t+2*i,2)}, {v(YU+8*t+2*i,2)}, {v(XU+8*t+2*i,2)}")
    a("s_barrier")
    P = 112
    for t in range(2):
        for w in range(4):
            for h in range(2):
                a(f"ds_read_b128 {v(P+32*t+8*w+4*h,4)}, {'v9' if w >= 2 else 'v8'} offset:{(w&1)*RING + t*8*PSTR + 16*h}")
    for t in range(2):
        a(f"s_waitcnt lgkmcnt({8*(1-t)})")
        p = P + 32 * t
        for i in range(4):
            a(f"v_pk_add_f32 {v(p+2*i,2)}, {v(p+2*i,2)}, {v(p+8+2*i,2)}")
        for i in range(4):
            a(f"v_pk_add_f32 {v(p+16+2*i,2)}, {v(p+16+2*i,2)}, {v(p+24+2*i,2)}")
        for i in range(4):
            a(f"v_pk_add_f32 {v(p+2*i,2)}, {v(p+2*i,2)}, {v(XU+8*t+2*i,2)}")
        for i in range(4):
            a(f"v_pk_add_f32 {v(p+2*i,2)}, {v(p+2*i,2)}, {v(p+16+2*i,2)}")
        for i in range(4):
            a(f"v_cvt_pk_bf16_f32 {v(48+4*t+i)}, {v(p+2*i)}, {v(p+2*i+1)}")
        a(f"buffer_store_dwordx4 {v(48+4*t,4)}, v14, {s(R_OUT,4)}, {s(S_WO if t else S_XO)} offen")


def kernel_c2(a):
    prologue(a, "c2_kernel", [R_X, R_WS, R_WD, R_OUT, R_H])
    a(f"s_load_dwordx2 {s(S_C,2)}, s[0:1], 40")
    c2_ids(a)
    a(f"s_cmp_ge_u32 {s(S_WAVE)}, 4\ns_cbranch_scc1 c2_b")
    g2_main(a)
    a("s_endpgm")
    a("c2_b:")
    a(f"s_sub_u32 {s(S_WB)}, {s(S_WAVE)}, 4\ns_mov_b32 {s(S_CNT)}, 0")
    a(f"v_mov_b32 {v(C_CNT)}, {L_CNT}\nv_mov_b32 v104, 0\nds_write_b32 {v(C_CNT)}, v104\nv_mov_b32 {v(C_ONE)}, 1")
    conv_stage(a)
    a("s_waitcnt lgkmcnt(0)\ns_barrier")
    final_loads(a)
    conv_main(a)
    final(a)
    a("c2_kernel_end:\ns_endpgm")


if __name__ == "__main__":
    txt = build([("g1_kernel", 163840)] * 2 + [("c2_kernel", 163840)] * 2, [kernel_g1, kernel_c2])
    open("t_s1.s", "w").write(txt)
```

```python
import math, os, sys
from asmlib import *

NAME = "parallel_sum__ssm_conv_h3__geglu_ffn__prompt"
KNAME = NAME + "_kernel"
S, D, F = 2048, 512, 1376
NU = F // 16
STAMPS = os.environ.get("STAMPS") == "1"
def opt(name, default):
    return int(os.environ.get(name, default))

WS_HF, WS_KVR, WS_Y2, WS_ST, WS_CSP = 0, 0x600000, 0x800000, 0xA00000, 0xA10000
WS_F1, WS_F2, WS_F3, WS_F4, WS_EP = 0xA80000, 0xA88000, 0xAA0000, 0xAC0000, 0xAE0000
WS_STAMP = 0xC00000
WS_SIZE = 0x1000000
NONCE_INC = 0x9E3779B1
OOB = 0x7f000000
R_X, R_WG, R_WU, R_WS, R_K, R_V, R_SK, R_WD, R_OUT, R_H = 4, 8, 12, 16, 20, 24, 28, 32, 36, 40
S_DP = 44
S_EX = 46
(S_WAVE, S_MI, S_NI, S_FB0, S_NBLK, S_T0, S_T1, S_T2, S_T3, S_IT, S_SLOT, S_KC, S_XO, S_WO, S_WO2, S_M0,
 S_WB, S_SH, S_UH, S_TI, S_MT, S_NT, S_NON, S_RING, S_CNT, S_HO, S_DO, S_SPIN) = range(48, 76)
S_C = 76
S_DK, S_HK, S_KEND = 3, S_RING, S_CNT
SLOT, NSLOT = 40960, 3
L_KVT, KVT_STR = 122880, 80
L_CS, L_ST, L_CNT = 133120, 134144, 138240
HSTR = 4640
CH_STR = 4 * HSTR + 4224
L_CONV = 81920
L_XCH = 81920
L_YL = 114688
NRW = 6
L_RING0 = 139264
L_CSS = 139264
assert L_KVT + 2 * 64 * KVT_STR <= L_CS and L_CONV + 2 * CH_STR <= L_CS and L_RING0 + 16384 <= 163840
C1 = -2.0 * math.log2(math.e) * math.sqrt(2.0 / math.pi)
C2 = C1 * 0.044715
SPIN_MAX = 1 << 16


def stamp(a, i):
    if STAMPS:
        a(f"s_memrealtime {s(80+2*i,2)}")


def lstamp(a, i):
    if STAMPS:
        lab = a.label("ls")
        a(f"s_cmp_ge_u32 {s(S_WB)}, 2\ns_cbranch_scc1 {lab}")
        stamp(a, i)
        a(f"{lab}:")


def stamp_flush(a):
    if not STAMPS:
        return
    a("s_waitcnt vmcnt(0) lgkmcnt(0)")
    stamp(a, 10)
    a("s_waitcnt lgkmcnt(0)")
    for i in range(11):
        a(f"v_writelane_b32 v1, {s(80+2*i)}, {i}")
    a(f"s_lshl_b32 s80, s2, 3\ns_add_u32 s80, s80, {s(S_WAVE)}\ns_lshl_b32 s80, s80, 6\ns_add_u32 s80, s80, {WS_STAMP:#x}")
    a("v_lshlrev_b32 v2, 2, v0\ns_mov_b64 exec, 0x7ff")
    a(f"buffer_store_dword v1, v2, {s(R_WS,4)}, s80 offen")


def prologue(a):
    a(f".globl {KNAME}\n.p2align 8\n.type {KNAME},@function\n{KNAME}:")
    a("s_cmp_ge_u32 s2, 256\ns_cbranch_scc1 L_end")
    table = [(R_X, 0, S*D*2), (R_WG, 56, D*F*2), (R_WU, 64, D*F*2), (R_WS, 96, WS_SIZE), (R_K, 8, S*D*2), (R_V, 16, S*D*2),
             (R_SK, 24, D*8), (R_WD, 72, D*F*2), (R_OUT, 80, S*D*2), (R_H, 32, S*D*2)]
    for r, off, size in table:
        a(f"s_load_dwordx2 {s(r,2)}, s[0:1], {off}")
    a(f"s_load_dwordx2 {s(S_DP,2)}, s[0:1], 40")
    if STAMPS:
        for i in range(1, 11):
            a(f"s_mov_b32 {s(80+2*i)}, 0")
    stamp(a, 0)
    a("v_lshrrev_b32 v1, 6, v0")
    a("v_and_b32 v0, 63, v0")
    a(f"v_readfirstlane_b32 {s(S_WAVE)}, v1")
    for r, off, size in table:
        a(f"s_mov_b32 {s(r+2)}, {size:#x}\ns_mov_b32 {s(r+3)}, 0x20000")
    a.c("x = wg&7, j = wg>>3; GEMM1 tile mi = 8*(x&1) + (j&7), ni = 4*(x>>1) + (j>>3); ti = 16*mi + ni")
    a(f"s_and_b32 {s(S_T0)}, s2, 1\ns_lshl_b32 {s(S_T0)}, {s(S_T0)}, 3")
    a(f"s_bfe_u32 {s(S_T1)}, s2, 0x30003\ns_add_u32 {s(S_MI)}, {s(S_T0)}, {s(S_T1)}")
    a(f"s_bfe_u32 {s(S_T0)}, s2, 0x20001\ns_lshl_b32 {s(S_T0)}, {s(S_T0)}, 2")
    a(f"s_lshr_b32 {s(S_T2)}, s2, 6\ns_add_u32 {s(S_NI)}, {s(S_T0)}, {s(S_T2)}")
    a(f"s_lshl_b32 {s(S_TI)}, {s(S_MI)}, 4\ns_add_u32 {s(S_TI)}, {s(S_TI)}, {s(S_NI)}")
    a.c("first 32-col block fb0 = 3*ni - (ni>>2) - (ni==15); nblk = 2 for ni in {3,7,11,14,15}")
    a(f"s_mul_i32 {s(S_FB0)}, {s(S_NI)}, 3\ns_lshr_b32 {s(S_T0)}, {s(S_NI)}, 2\ns_sub_u32 {s(S_FB0)}, {s(S_FB0)}, {s(S_T0)}")
    a(f"s_cmp_eq_u32 {s(S_NI)}, 15\ns_cselect_b32 {s(S_T0)}, 1, 0\ns_sub_u32 {s(S_FB0)}, {s(S_FB0)}, {s(S_T0)}")
    a(f"s_lshr_b32 {s(S_T0)}, 0xc888, {s(S_NI)}\ns_and_b32 {s(S_T0)}, {s(S_T0)}, 1\ns_sub_u32 {s(S_NBLK)}, 3, {s(S_T0)}")
    a.c("GEMM2 tile mt = 4*x + (j&3), nt = j>>2")
    a(f"s_and_b32 {s(S_T0)}, s2, 7\ns_lshl_b32 {s(S_T0)}, {s(S_T0)}, 2\ns_bfe_u32 {s(S_T1)}, s2, 0x20003\ns_add_u32 {s(S_MT)}, {s(S_T0)}, {s(S_T1)}")
    a(f"s_lshr_b32 {s(S_NT)}, s2, 5")
    a(f"s_and_b32 {s(S_WB)}, {s(S_WAVE)}, 3")
    a.c("GEMM1 DMA lane offsets. x: (l>>3)*1024 + ((l&7) ^ ((4*(w&1) + l>>4)&7))*16 ; W: (l>>2)*2752 + ((l&3) ^ (2*(l>>5)))*16")
    a(f"s_and_b32 {s(S_T0)}, {s(S_WAVE)}, 1\ns_lshl_b32 {s(S_T0)}, {s(S_T0)}, 2")
    a(f"v_lshrrev_b32 v5, 4, v0\nv_add_u32 v5, {s(S_T0)}, v5\nv_and_b32 v6, 7, v0\nv_xor_b32 v5, v5, v6\nv_lshlrev_b32 v5, 4, v5")
    a(f"v_lshrrev_b32 v6, 3, v0\nv_lshl_add_u32 {v(VB_X)}, v6, 10, v5")
    a(f"v_lshrrev_b32 v5, 5, v0\nv_lshlrev_b32 v5, 1, v5\nv_and_b32 v6, 3, v0\nv_xor_b32 v5, v5, v6\nv_lshlrev_b32 v5, 4, v5")
    a(f"v_lshrrev_b32 v6, 2, v0\nv_mul_u32_u24 v6, {F*2}, v6\nv_add_u32 {v(VB_W)}, v6, v5")
    a(f"s_lshl_b32 {s(S_XO)}, {s(S_MI)}, 17\ns_lshl_b32 {s(S_T0)}, {s(S_WB)}, 13\ns_add_u32 {s(S_XO)}, {s(S_XO)}, {s(S_T0)}")
    a(f"s_mul_i32 {s(S_WO)}, {s(S_WB)}, {16*F*2}\ns_lshl_b32 {s(S_T0)}, {s(S_FB0)}, 6\ns_add_u32 {s(S_WO)}, {s(S_WO)}, {s(S_T0)}")
    a(f"s_cmp_eq_u32 {s(S_NBLK)}, 3\ns_cselect_b32 {s(S_WO2)}, {s(S_WO)}, {OOB:#x}")
    a(f"s_lshl_b32 {s(S_M0)}, {s(S_WB)}, 10")


VB_X, VB_W = 14, 15


def poll(a, vaddr, vtmp):
    top, done = a.label("poll"), a.label("poll_ok")
    a(f"s_mov_b32 {s(S_SPIN)}, 0")
    a(f"{top}:")
    a(f"buffer_load_dword {v(vtmp)}, {v(vaddr)}, {s(R_WS,4)}, 0 offen sc1")
    a("s_waitcnt vmcnt(0)")
    a(f"v_cmp_ne_u32 vcc, {s(S_NON)}, {v(vtmp)}")
    a(f"s_cbranch_vccz {done}")
    a("s_sleep 1")
    a(f"s_add_u32 {s(S_SPIN)}, {s(S_SPIN)}, 1\ns_cmp_lt_u32 {s(S_SPIN)}, {SPIN_MAX}\ns_cbranch_scc1 {top}")
    a(f"{done}:")


def poll2_issue(a, vaddr, vt):
    a(f"buffer_load_dwordx2 {v(vt,2)}, {v(vaddr)}, {s(R_WS,4)}, 0 offen sc1")


def poll2_check(a, vaddr, vt):
    top, done = a.label("poll"), a.label("poll_ok")
    a(f"s_mov_b32 {s(S_SPIN)}, 0")
    a(f"{top}:")
    a(f"v_cmp_ne_u32 vcc, {s(S_NON)}, {v(vt)}\nv_cmp_ne_u32 {s(S_EX,2)}, {s(S_NON)}, {v(vt+1)}")
    a(f"s_nop 0\ns_or_b64 vcc, vcc, {s(S_EX,2)}")
    a(f"s_cbranch_scc0 {done}")
    a(f"s_add_u32 {s(S_SPIN)}, {s(S_SPIN)}, 1\ns_cmp_ge_u32 {s(S_SPIN)}, {SPIN_MAX}\ns_cbranch_scc1 {done}")
    a("s_sleep 1")
    poll2_issue(a, vaddr, vt)
    a(f"s_waitcnt vmcnt(0)\ns_branch {top}")
    a(f"{done}:")


class VQ:
    def __init__(self, a):
        self.a, self.q = a, []
    def add(self, tag, n):
        self.q += [tag] * n
    def count(self, *tags):
        last = max((i for i, x in enumerate(self.q) if x in tags), default=-1)
        n = len(self.q) - 1 - last
        assert n <= 63
        return n
    def wait(self, *tags):
        self.a(f"s_waitcnt vmcnt({self.count(*tags)})")


def flag_store(a, soff, vt0, vt1):
    a(f"v_mov_b32 {v(vt0)}, {s(S_NON)}\nv_mov_b32 {v(vt1)}, 0")
    a("s_mov_b64 exec, 1")
    a(f"buffer_store_dword {v(vt0)}, {v(vt1)}, {s(R_WS,4)}, {s(soff)} offen sc1")
    a("s_mov_b64 exec, -1")


def epoch_load(a, vt):
    a(f"v_mov_b32 {v(vt)}, {WS_EP:#x}")
    a(f"buffer_load_dword {v(vt)}, {v(vt)}, {s(R_WS,4)}, 0 offen sc1")


def epoch_take(a, vt):
    a(f"v_readfirstlane_b32 {s(S_NON)}, {v(vt)}")
    a("s_nop 0")
    a(f"s_add_u32 {s(S_NON)}, {s(S_NON)}, {NONCE_INC:#x}")


V_XA0, V_XA1, V_W = 2, 3, 4
V_XC0, V_XC1, V_WC = 7, 8, 9
ACC, F0, F1 = 16, 112, 152
G_ACC, G_WF, G_H = 16, 80, 112
G_L16, G_WD, G_TR, G_TR0, G_TR5, G_FL = 240, 241, 242, 246, 250, 254
NHB, NSTEP = 8, 11


def acc(u, mat, sb):
    return ACC + ((u * 2 + mat) * 4 + sb) * 4


def g1_reads(fr, step, units):
    out = []
    for u in units:
        if u == 'x':
            for sb in range(4):
                out.append(f"ds_read_b128 {v(fr+4*sb,4)}, {v(V_XC1 if step else V_XC0)} offset:{sb*2048}")
            continue
        for mat in range(2):
            r = fr + 16 + (u * 2 + mat) * 4
            for t in range(2):
                out.append(f"ds_read_b64_tr_b16 {v(r+2*t,2)}, {v(V_WC+u)} offset:{mat*12288+step*2048+t*256}")
    return out


def g1_mfmas(fr, units):
    out = []
    for u in units:
        for mat in range(2):
            for sb in range(4):
                c = acc(u, mat, sb)
                out.append(f"v_mfma_f32_16x16x32_bf16 {v(c,4)}, {v(fr+16+(u*2+mat)*4,4)}, {v(fr+4*sb,4)}, {v(c,4)}")
    return out


def g1_step(a, cur, nxt, nstep):
    for l in interleave(g1_mfmas(cur, [0, 1]), g1_reads(nxt, nstep, ['x', 0, 1, 2]), 0, 1):
        a(l)
    lab = a.label("g1_skip")
    a(f"s_cbranch_vccnz {lab}")
    for l in g1_mfmas(cur, [2]):
        a(l)
    a(f"{lab}:")


def dma_chunk0(a):
    for i in range(4):
        a(f"s_add_u32 m0, {s(S_M0)}, {i*4096}")
        a(f"s_add_u32 {s(S_XO)}, {s(S_XO)}, 32768" if i else "s_nop 0")
        a(f"buffer_load_dwordx4 {v(VB_X)}, {s(R_X,4)}, {s(S_XO)} offen lds")
    for blk in range(3):
        for mat in range(2):
            a(f"s_add_u32 m0, {s(S_M0)}, {16384 + (mat*3+blk)*4096 - 64*blk}")
            a("s_nop 0")
            a(f"buffer_load_dwordx4 {v(VB_W)}, {s(R_WU if mat else R_WG,4)}, {s(S_WO2 if blk == 2 else S_WO)} offen offset:{64*blk} lds")


def wd_setup(a, first):
    a.c("Wd DMA lane offset: (l>>3)*1024 + ((l&7) ^ (((l>>4)&3)<<1))*16")
    a(f"v_lshrrev_b32 v12, 4, v0\nv_lshlrev_b32 v13, 1, v12\nv_and_b32 v14, 7, v0\nv_xor_b32 v13, v13, v14\nv_lshlrev_b32 v13, 4, v13\nv_lshrrev_b32 v14, 3, v0\nv_lshl_add_u32 {v(G_WD)}, v14, 10, v13")
    a(f"s_lshl_b32 {s(S_KC)}, {s(S_WB)}, 12")
    if opt("ROT", 1):
        a(f"s_and_b32 {s(S_T0)}, {s(S_MT)}, 3\ns_mul_i32 {s(S_T0)}, {s(S_T0)}, 3\ns_mul_i32 {s(S_T1)}, {s(S_NT)}, 7\ns_add_u32 {s(S_T0)}, {s(S_T0)}, {s(S_T1)}")
        a(f"s_mul_i32 {s(S_T1)}, {s(S_T0)}, 187\ns_lshr_b32 {s(S_T1)}, {s(S_T1)}, 11\ns_mul_i32 {s(S_T1)}, {s(S_T1)}, 11\ns_sub_u32 {s(S_T0)}, {s(S_T0)}, {s(S_T1)}")
    else:
        a(f"s_mov_b32 {s(S_T0)}, 0")
    a(f"s_add_u32 {s(S_DK)}, {s(S_T0)}, {first}\ns_sub_u32 {s(S_T1)}, {s(S_DK)}, 11\ns_cmp_ge_u32 {s(S_DK)}, 11\ns_cselect_b32 {s(S_DK)}, {s(S_T1)}, {s(S_DK)}")
    a(f"s_mul_i32 {s(S_DO)}, {s(S_WB)}, {NSTEP*32768}\ns_lshl_b32 {s(S_T1)}, {s(S_NT)}, 7\ns_add_u32 {s(S_DO)}, {s(S_DO)}, {s(S_T1)}")


def g2_setup(a):
    a(f"v_lshlrev_b32 {v(G_L16)}, 4, v0")
    wd_setup(a, 3)
    a(f"s_mov_b32 {s(S_HK)}, {s(S_T0)}")
    a(f"s_cmp_eq_u32 {s(S_WAVE)}, 3\ns_cselect_b32 {s(S_KEND)}, 10, 99")
    a.c("tr address: w*4096 + (l>>2)*128 + ((db ^ ((l>>3)&3))*32) + (l&3)*8")
    a(f"v_lshrrev_b32 v13, 2, v0\nv_lshlrev_b32 v13, 7, v13\nv_and_b32 v15, 3, v0\nv_lshl_add_u32 v13, v15, 3, v13\nv_add_u32 v13, {s(S_KC)}, v13\nv_and_b32 v14, 3, v14")
    for db in range(4):
        a(f"v_xor_b32 v15, {db}, v14\nv_lshl_add_u32 {v(G_TR+db)}, v15, 5, v13\nv_add_u32 {v(G_TR0+db)}, {L_RING0}, {v(G_TR+db)}\nv_add_u32 {v(G_TR5+db)}, 0x10000, {v(G_TR+db)}")
    a(f"s_mul_i32 {s(S_HO)}, {s(S_MT)}, {2*NU*1024}\ns_mul_i32 {s(S_T0)}, {s(S_WAVE)}, {NSTEP*2048}\ns_add_u32 {s(S_HO)}, {s(S_HO)}, {s(S_T0)}")
    a.c("H flags this wave needs: F3[mt*32 + 8w + (l&7)]")
    a(f"s_lshl_b32 {s(S_T0)}, {s(S_MT)}, 2\ns_add_u32 {s(S_T0)}, {s(S_T0)}, {s(S_WAVE)}\ns_lshl_b32 {s(S_T0)}, {s(S_T0)}, 10\ns_add_u32 {s(S_T0)}, {s(S_T0)}, {WS_F3:#x}")
    a(f"v_and_b32 v12, 7, v0\nv_lshlrev_b32 v12, 7, v12\nv_add_u32 {v(G_FL)}, {s(S_T0)}, v12")


def g1_compute(a):
    a("s_waitcnt lgkmcnt(0)")
    dma_chunk0(a)
    epoch_load(a, 1)
    a(f"s_and_b32 {s(S_SH)}, {s(S_WAVE)}, 1\ns_lshr_b32 {s(S_UH)}, {s(S_WAVE)}, 1")
    a.c("x fragment address: (64*sh + s16)*128 + ((kg ^ ((s16>>1)&7))*16)")
    a("v_and_b32 v10, 15, v0\nv_lshrrev_b32 v11, 4, v0\nv_lshrrev_b32 v12, 1, v10\nv_xor_b32 v12, v12, v11\nv_lshlrev_b32 v12, 4, v12")
    a(f"v_lshl_add_u32 {v(V_XA0)}, v10, 7, v12\ns_lshl_b32 {s(S_T0)}, {s(S_SH)}, 13\nv_add_u32 {v(V_XA0)}, {s(S_T0)}, {v(V_XA0)}")
    a(f"v_xor_b32 {v(V_XA1)}, 64, {v(V_XA0)}")
    a.c("W fragment address: 16384 + blk*4096 + kg*512 + r*64 + ((h^(kg&1))*32) + c*8")
    a("v_lshlrev_b32 v12, 9, v11\nv_bfe_u32 v13, v0, 2, 2\nv_lshl_add_u32 v12, v13, 6, v12\nv_and_b32 v13, 3, v0\nv_lshl_add_u32 v12, v13, 3, v12")
    a("v_and_b32 v13, 1, v11\nv_lshl_add_u32 v12, v13, 5, v12")
    a(f"s_mul_i32 {s(S_T0)}, {s(S_UH)}, {s(S_NBLK)}")
    for u in range(3):
        a(f"s_add_u32 {s(S_T1)}, {s(S_T0)}, {u}\ns_and_b32 {s(S_T2)}, {s(S_T1)}, 1\ns_lshl_b32 {s(S_T2)}, {s(S_T2)}, 5")
        a(f"s_lshr_b32 {s(S_T1)}, {s(S_T1)}, 1\ns_lshl_b32 {s(S_T1)}, {s(S_T1)}, 12\ns_add_u32 {s(S_T1)}, {s(S_T1)}, 16384")
        a(f"v_xor_b32 {v(V_W+u)}, {s(S_T2)}, v12\nv_add_u32 {v(V_W+u)}, {s(S_T1)}, {v(V_W+u)}")
    g2_setup(a)
    for i in range(48):
        a(f"v_pk_mov_b32 {v(ACC+2*i,2)}, 0, 0")
    for i in range(5):
        a(f"v_mov_b32 {v(V_XC0+i)}, {v(V_XA0+i)}")
    a(f"s_mov_b32 {s(S_IT)}, 0\ns_mov_b32 {s(S_SLOT)}, 0")
    a.c("vcc != 0 marks a two-block tile")
    a(f"s_cmp_eq_u32 {s(S_NBLK)}, 2\ns_cselect_b64 vcc, -1, 0")
    stamp(a, 1)
    a("s_waitcnt vmcnt(0)")
    epoch_take(a, 1)
    a("s_barrier")
    stamp(a, 2)
    for l in g1_reads(F0, 0, ['x', 0, 1, 2]):
        a(l)
    a("s_waitcnt lgkmcnt(0)")
    a("g1_loop:")
    lb = a.label("g1_nb")
    a(f"s_add_u32 {s(S_SLOT)}, {s(S_SLOT)}, {SLOT}\ns_cmp_eq_u32 {s(S_SLOT)}, {NSLOT*SLOT}\ns_cselect_b32 {s(S_SLOT)}, 0, {s(S_SLOT)}")
    a(f"s_add_u32 {s(S_IT)}, {s(S_IT)}, 1")
    g1_step(a, F0, F1, 1)
    a(f"s_cmp_eq_u32 {s(S_IT)}, 8")
    a("s_waitcnt lgkmcnt(0)")
    a(f"s_cbranch_scc1 {lb}")
    a("s_barrier")
    a(f"{lb}:")
    for i in range(5):
        a(f"v_add_u32 {v(V_XC0+i)}, {s(S_SLOT)}, {v(V_XA0+i)}")
    g1_step(a, F1, F0, 0)
    a(f"s_cmp_lt_u32 {s(S_IT)}, 8")
    a("s_waitcnt lgkmcnt(0)")
    a("s_cbranch_scc1 g1_loop")
    stamp(a, 3)
    a("s_barrier")
    stamp(a, 4)


def wd_dma(i):
    sl = i % NRW
    ops = []
    for q in range(4):
        pre = f"s_lshl_b32 {s(S_T3)}, {s(S_DK)}, 15\ns_add_u32 {s(S_T3)}, {s(S_T3)}, {s(S_DO)}\n" if q == 0 else ""
        mid = "s_nop 0" if q == 0 else f"s_add_u32 {s(S_T3)}, {s(S_T3)}, 8192"
        post = f"\ns_add_u32 {s(S_DK)}, {s(S_DK)}, 1\ns_cmp_eq_u32 {s(S_DK)}, 11\ns_cselect_b32 {s(S_DK)}, 0, {s(S_DK)}" if q == 3 else ""
        ops.append(pre + f"s_add_u32 m0, {s(S_KC)}, {(L_RING0 if sl == 0 else (sl-1)*16384) + q*1024}\n{mid}\n"
                   f"buffer_load_dwordx4 {v(G_WD)}, {s(R_WD,4)}, {s(S_T3)} offen lds" + post)
    return ops


def h_loads(i):
    hb = G_H + (i % NHB) * 16
    pre = (f"s_lshl_b32 {s(S_T1)}, {s(S_HK)}, 11\ns_add_u32 {s(S_T1)}, {s(S_T1)}, {s(S_HO)}\n"
           f"s_cmp_eq_u32 {s(S_HK)}, {s(S_KEND)}\ns_cselect_b32 {s(S_T1)}, {OOB:#x}, {s(S_T1)}\n")
    post = f"\ns_add_u32 {s(S_HK)}, {s(S_HK)}, 1\ns_cmp_eq_u32 {s(S_HK)}, 11\ns_cselect_b32 {s(S_HK)}, 0, {s(S_HK)}"
    ld = lambda r, off: f"buffer_load_dwordx4 {v(r,4)}, {v(G_L16)}, {s(R_WS,4)}, {s(S_T1)} offen offset:{off} sc1"
    return [pre + ld(hb, 0), ld(hb+4, 1024), f"s_add_u32 {s(S_T1)}, {s(S_T1)}, {NU*1024}\n" + ld(hb+8, 0), ld(hb+12, 1024) + post]


def g1_epilogue(a):
    VST, VCS, T = 112, 144, 168
    a.c("row constants (m,m,k1,k1,k2,k2,ir2,ir2) and column sums from LDS")
    a(f"v_and_b32 v10, 15, v0\nv_lshlrev_b32 v10, 5, v10\ns_lshl_b32 {s(S_T0)}, {s(S_SH)}, 11\ns_add_u32 {s(S_T0)}, {s(S_T0)}, {L_ST}\nv_add_u32 v10, {s(S_T0)}, v10")
    a(f"s_mul_i32 {s(S_T1)}, {s(S_UH)}, {s(S_NBLK)}\ns_lshl_b32 {s(S_T0)}, {s(S_T1)}, 6\ns_add_u32 {s(S_T0)}, {s(S_T0)}, {L_CS}")
    a(f"v_and_b32 v11, 48, v0\nv_add_u32 v11, {s(S_T0)}, v11")
    for sb in range(4):
        for h in range(2):
            a(f"ds_read_b128 {v(VST+8*sb+4*h,4)}, v10 offset:{sb*512+16*h}")
    for u in range(3):
        for mat in range(2):
            a(f"ds_read_b128 {v(VCS+4*(u*2+mat),4)}, v11 offset:{mat*512+u*64}")
    a.c("HF offset = ((4*mi + 2*sh + pp)*86 + 2*fb0 + uu)*1024 + lane*16")
    a(f"s_lshl_b32 {s(S_T0)}, {s(S_MI)}, 1\ns_add_u32 {s(S_T0)}, {s(S_T0)}, {s(S_SH)}\ns_mul_i32 {s(S_T0)}, {s(S_T0)}, {2*NU}")
    a(f"s_lshl_b32 {s(S_T2)}, {s(S_FB0)}, 1\ns_add_u32 {s(S_T0)}, {s(S_T0)}, {s(S_T2)}\ns_add_u32 {s(S_T0)}, {s(S_T0)}, {s(S_T1)}\ns_lshl_b32 {s(S_T0)}, {s(S_T0)}, 10")
    a(f"s_add_u32 {s(S_T1)}, {s(S_T0)}, {NU*1024}")
    a(f"v_mov_b32 v12, {L_CNT}\nv_mov_b32 v13, 1")
    a("s_waitcnt lgkmcnt(0)")
    lab = a.label("ep_done")
    for u in range(3):
        if u == 2:
            a(f"s_cbranch_vccnz {lab}")
        for pp in range(2):
            o = T + 32 + 4 * pp
            pairs = [(2*pp + (q >> 1), q & 1, T + 8*q) for q in range(4)]
            def each(f):
                for sb, h, t in pairs:
                    g, up, st = acc(u, 0, sb) + 2*h, acc(u, 1, sb) + 2*h, VST + 8*sb
                    cg, cu = VCS + 4*(u*2) + 2*h, VCS + 4*(u*2+1) + 2*h
                    a(f(g, up, st, cg, cu, t))
            each(lambda g, up, st, cg, cu, t: f"v_pk_fma_f32 {v(g,2)}, {v(cg,2)}, {v(st,2)}, {v(g,2)} neg_lo:[0,1,0] neg_hi:[0,1,0]")
            each(lambda g, up, st, cg, cu, t: f"v_pk_mul_f32 {v(t,2)}, {v(g,2)}, {v(g,2)}")
            each(lambda g, up, st, cg, cu, t: f"v_pk_fma_f32 {v(t,2)}, {v(t,2)}, {v(st+4,2)}, {v(st+2,2)}")
            each(lambda g, up, st, cg, cu, t: f"v_pk_mul_f32 {v(t,2)}, {v(t,2)}, {v(g,2)}")
            each(lambda g, up, st, cg, cu, t: f"v_exp_f32 {v(t)}, {v(t)}\nv_exp_f32 {v(t+1)}, {v(t+1)}")
            each(lambda g, up, st, cg, cu, t: f"v_pk_fma_f32 {v(up,2)}, {v(cu,2)}, {v(st,2)}, {v(up,2)} neg_lo:[0,1,0] neg_hi:[0,1,0]")
            each(lambda g, up, st, cg, cu, t: f"v_pk_fma_f32 {v(t,2)}, {v(t,2)}, {v(st+6,2)}, {v(st+6,2)}")
            each(lambda g, up, st, cg, cu, t: f"v_rcp_f32 {v(t)}, {v(t)}\nv_rcp_f32 {v(t+1)}, {v(t+1)}")
            each(lambda g, up, st, cg, cu, t: f"v_pk_mul_f32 {v(g,2)}, {v(g,2)}, {v(up,2)}")
            each(lambda g, up, st, cg, cu, t: f"v_pk_mul_f32 {v(t,2)}, {v(t,2)}, {v(g,2)}")
            for q, (sb, h, t) in enumerate(pairs):
                a(f"v_cvt_pk_bf16_f32 {v(o+q)}, {v(t)}, {v(t+1)}")
            a(f"buffer_store_dwordx4 {v(o,4)}, {v(G_L16)}, {s(R_WS,4)}, {s(S_T1 if pp else S_T0)} offen offset:{u*1024} sc1")
    a(f"{lab}:")
    a.c("release the conv waves")
    a("s_mov_b64 exec, 1\nds_add_u32 v12, v13\ns_mov_b64 exec, -1")
    stamp(a, 5)
    a.c("publish: F3[(2mi + sh)*32 + ni*2 + uh]")
    a(f"s_lshl_b32 {s(S_T0)}, {s(S_MI)}, 1\ns_add_u32 {s(S_T0)}, {s(S_T0)}, {s(S_SH)}\ns_lshl_b32 {s(S_T0)}, {s(S_T0)}, 4\ns_add_u32 {s(S_T0)}, {s(S_T0)}, {s(S_NI)}")
    a(f"s_lshl_b32 {s(S_T0)}, {s(S_T0)}, 1\ns_add_u32 {s(S_T0)}, {s(S_T0)}, {s(S_UH)}\ns_lshl_b32 {s(S_T0)}, {s(S_T0)}, 7\ns_add_u32 {s(S_T0)}, {s(S_T0)}, {WS_F3:#x}")
    a("s_waitcnt vmcnt(0)")
    flag_store(a, S_T0, 10, 11)
    stamp(a, 6)
    for i in range(3, NRW):
        for op in wd_dma(i):
            a(op)


def g2_tr(i):
    wf = G_WF + (i & 1) * 16
    sl = i % NRW
    out = []
    for db in range(4):
        for t in range(2):
            if sl in (0, 5):
                out.append(f"ds_read_b64_tr_b16 {v(wf+4*db+2*t,2)}, {v((G_TR5 if sl else G_TR0)+db)} offset:{t*2048}")
            else:
                out.append(f"ds_read_b64_tr_b16 {v(wf+4*db+2*t,2)}, {v(G_TR+db)} offset:{(sl-1)*16384 + t*2048}")
    return out


def g2_swaps(i):
    hb = G_H + (i % NHB) * 16
    return [f"v_swap_b32 {v(hb+8*p+2+k)}, {v(hb+8*p+4+k)}" for p in range(2) for k in range(2)]


def g2_main(a):
    for l in g2_tr(0):
        a(l)
    poll(a, G_FL, 10)
    stamp(a, 7)
    q = VQ(a)
    for i in range(NHB):
        for op in h_loads(i):
            a(op)
        q.add(("h", i), 4)
    q.wait(("h", 0))
    for l in g2_swaps(0):
        a(l)
    for i in range(NSTEP):
        a("s_waitcnt lgkmcnt(0)")
        if i + 1 < NSTEP:
            q.wait(("h", i+1), ("w", i+1))
            for l in g2_tr(i + 1) + g2_swaps(i + 1):
                a(l)
        wf, hb = G_WF + (i & 1) * 16, G_H + (i % NHB) * 16
        mf = []
        for db in range(4):
            for sb in range(4):
                c = G_ACC + (db * 4 + sb) * 4
                mf.append(f"v_mfma_f32_16x16x32_bf16 {v(c,4)}, {v(wf+4*db,4)}, {v(hb+4*sb,4)}, {v(c,4) if i else 0}")
        ld = []
        if i + NRW < NSTEP:
            ld += wd_dma(i + NRW); q.add(("w", i + NRW), 4)
        if i >= 1 and i - 1 + NHB < NSTEP:
            ld += h_loads(i - 1 + NHB); q.add(("h", i - 1 + NHB), 4)
        for l in interleave(mf, ld, 1, 2):
            a(l)
    stamp(a, 8)
    a.c("partial tile -> own ring slots 1..4: sb*16384 + w*4096 + s16*256 + ((4db + g) ^ (s16&7))*16")
    a(f"v_and_b32 v8, 15, v0\nv_lshrrev_b32 v9, 4, v0\nv_and_b32 v10, 7, v0\nv_xor_b32 v9, v9, v10\nv_lshlrev_b32 v9, 4, v9\nv_lshl_add_u32 v8, v8, 8, v9\nv_add_u32 v8, {s(S_KC)}, v8\nv_xor_b32 v9, 64, v8")
    a("s_nop 0")
    for db in range(4):
        for sb in range(4):
            a(f"ds_write_b128 {'v9' if db & 1 else 'v8'}, {v(G_ACC+(db*4+sb)*4,4)} offset:{sb*16384 + (db>>1)*128}")
    a("s_waitcnt lgkmcnt(0)")
    stamp(a, 9)
    a("s_barrier")


def dma_chunk(a):
    a(f"s_add_u32 {s(S_WO)}, {s(S_WO)}, {32*F*2}\ns_add_u32 {s(S_WO2)}, {s(S_WO2)}, {32*F*2}\ns_add_u32 {s(S_XO)}, {s(S_XO)}, 128")
    a(f"s_add_u32 {s(S_SLOT)}, {s(S_SLOT)}, {SLOT}\ns_cmp_eq_u32 {s(S_SLOT)}, {NSLOT*SLOT}\ns_cselect_b32 {s(S_SLOT)}, 0, {s(S_SLOT)}")
    a(f"s_add_u32 {s(S_T3)}, {s(S_SLOT)}, {s(S_M0)}")
    a(f"s_mov_b32 {s(S_T0)}, {s(S_XO)}")
    for i in range(8):
        a(f"s_add_u32 m0, {s(S_T3)}, {i*2048}")
        a(f"s_add_u32 {s(S_T0)}, {s(S_T0)}, 16384" if i else "s_nop 0")
        a(f"buffer_load_dwordx4 {v(VB_X)}, {s(R_X,4)}, {s(S_T0)} offen lds")
    for k2 in range(2):
        if k2:
            a(f"s_add_u32 {s(S_WO)}, {s(S_WO)}, {32*F*2}\ns_add_u32 {s(S_WO2)}, {s(S_WO2)}, {32*F*2}")
        for blk in range(3):
            for mat in range(2):
                a(f"s_add_u32 m0, {s(S_T3)}, {16384 + (mat*3+blk)*4096 + k2*2048 - 64*blk}")
                a("s_nop 0")
                a(f"buffer_load_dwordx4 {v(VB_W)}, {s(R_WU if mat else R_WG,4)}, {s(S_WO2 if blk == 2 else S_WO)} offen offset:{64*blk} lds")


GG = 112


def loader(a):
    a(f"s_add_u32 {s(S_WO)}, {s(S_WO)}, {32*F*2}\ns_add_u32 {s(S_WO2)}, {s(S_WO2)}, {32*F*2}")
    a(f"s_mov_b32 {s(S_SLOT)}, 0\ns_mov_b32 {s(S_IT)}, 1")
    a.c("row-record flags: F1 pairs of tiles 16mi + (l&15)")
    a(f"s_lshl_b32 {s(S_T0)}, {s(S_MI)}, 11\ns_add_u32 {s(S_T0)}, {s(S_T0)}, {WS_F1:#x}\nv_and_b32 v8, 15, v0\nv_lshlrev_b32 v8, 7, v8\nv_add_u32 v8, {s(S_T0)}, v8")
    a("s_waitcnt lgkmcnt(0)")
    epoch_load(a, 1)
    a("ld_loop:")
    dma_chunk(a)
    a("s_waitcnt vmcnt(20)\ns_barrier")
    a(f"s_add_u32 {s(S_IT)}, {s(S_IT)}, 1\ns_cmp_lt_u32 {s(S_IT)}, 8\ns_cbranch_scc1 ld_loop")
    epoch_take(a, 1)
    poll2_issue(a, 8, 198)


def st_gather_issue(a):
    poll2_check(a, 8, 198)
    a(f"s_lshl_b32 {s(S_T0)}, {s(S_MI)}, 1\ns_add_u32 {s(S_T0)}, {s(S_T0)}, {s(S_WB)}\ns_lshl_b32 {s(S_T0)}, {s(S_T0)}, 11\ns_add_u32 {s(S_T0)}, {s(S_T0)}, {WS_ST:#x}")
    a(f"buffer_load_dwordx4 {v(GG,4)}, v4, {s(R_WS,4)}, {s(S_T0)} offen sc1")
    a(f"buffer_load_dwordx4 {v(GG+4,4)}, v4, {s(R_WS,4)}, {s(S_T0)} offen offset:1024 sc1")


def st_gather_finish(a):
    a(f"s_lshl_b32 {s(S_T0)}, {s(S_WB)}, 11\ns_add_u32 {s(S_T0)}, {s(S_T0)}, {L_ST}\nv_add_u32 v8, {s(S_T0)}, v4")
    a(f"ds_write_b128 v8, {v(GG,4)}\nds_write_b128 v8, {v(GG+4,4)} offset:1024")


VS, VKV, VSK = 144, 24, 64
ONE = 192


def round_bf16(a, r):
    a(f"v_cvt_pk_bf16_f32 {v(r)}, {v(r)}, {v(r)}\nv_lshlrev_b32 {v(r)}, 16, {v(r)}")


def stats_loads(a):
    a(f"s_lshl_b32 {s(S_T0)}, {s(S_TI)}, 1\ns_add_u32 {s(S_T0)}, {s(S_T0)}, {s(S_SH)}\ns_lshl_b32 {s(S_T0)}, {s(S_T0)}, 12")
    a("v_bfe_u32 v5, v0, 2, 2\nv_lshlrev_b32 v5, 10, v5\nv_and_b32 v6, 3, v0\nv_lshl_add_u32 v5, v6, 4, v5\nv_lshrrev_b32 v6, 4, v0\nv_lshl_add_u32 v5, v6, 6, v5")
    for r in range(4):
        a(f"buffer_load_dwordx4 {v(VS+4*r,4)}, v5, {s(R_X,4)}, {s(S_T0)} offen offset:{r*256}")


def stats(a):
    G, O, R = 72, 76, 80
    for r in range(4):
        a(f"v_mfma_f32_16x16x32_bf16 {v(G,4)}, {v(VS+4*r,4)}, {v(VS+4*r,4)}, {v(G,4) if r else 0}")
        a(f"v_mfma_f32_16x16x32_bf16 {v(O,4)}, {v(ONE,4)}, {v(VS+4*r,4)}, {v(O,4) if r else 0}")
    a.c("diagonal element of lane (n, g = n>>2) is register n&3")
    a(f"v_and_b32 v6, 3, v0\nv_cmp_eq_u32 vcc, 1, v6\nv_cmp_eq_u32 {s(S_EX,2)}, 2, v6\nv_cmp_eq_u32 {s(S_C+2,2)}, 3, v6")
    a(f"s_lshl_b32 {s(S_T0)}, {s(S_TI)}, 1\ns_add_u32 {s(S_T0)}, {s(S_T0)}, {s(S_SH)}\ns_lshl_b32 {s(S_T0)}, {s(S_T0)}, 7\ns_add_u32 {s(S_T0)}, {s(S_T0)}, {WS_ST:#x}")
    a("v_lshrrev_b32 v5, 4, v0\nv_lshlrev_b32 v5, 5, v5")
    a(f"v_cndmask_b32 {v(G)}, {v(G)}, {v(G+1)}, vcc\nv_cndmask_b32 {v(G)}, {v(G)}, {v(G+2)}, {s(S_EX,2)}\nv_cndmask_b32 {v(G)}, {v(G)}, {v(G+3)}, {s(S_C+2,2)}")
    for qp in ("[1,0,3,2]", "[2,3,0,1]"):
        a("s_nop 0")
        a(f"v_add_f32_dpp {v(O)}, {v(O)}, {v(O)} quad_perm:{qp} row_mask:0xf bank_mask:0xf")
        a(f"v_add_f32_dpp {v(G)}, {v(G)}, {v(G)} quad_perm:{qp} row_mask:0xf bank_mask:0xf")
    M, K1, K2, I2 = R, R + 2, R + 4, R + 6
    a(f"v_mul_f32 {v(M)}, {f32bits(1/512):#x}, {v(O)}\nv_mul_f32 {v(K2)}, {f32bits(1/512):#x}, {v(G)}")
    a(f"v_fma_f32 {v(K2)}, -{v(M)}, {v(M)}, {v(K2)}\nv_max_f32 {v(K2)}, 0, {v(K2)}")
    round_bf16(a, M)
    round_bf16(a, K2)
    a(f"v_add_f32 {v(K2)}, {f32bits(1e-5):#x}, {v(K2)}")
    round_bf16(a, K2)
    a(f"v_sqrt_f32 {v(K2)}, {v(K2)}\nv_mov_b32 {v(M+1)}, {v(M)}")
    round_bf16(a, K2)
    a(f"v_rcp_f32 {v(K1)}, {v(K2)}\nv_mul_f32 {v(I2)}, {v(K2)}, {v(K2)}")
    a(f"v_mul_f32 {v(K2)}, {v(K1)}, {v(K1)}\nv_mul_f32 {v(K2)}, {v(K2)}, {v(K1)}")
    a(f"v_mul_f32 {v(K2)}, {f32bits(C2):#x}, {v(K2)}\nv_mul_f32 {v(K1)}, {f32bits(C1):#x}, {v(K1)}")
    a(f"v_mov_b32 {v(I2+1)}, {v(I2)}\nv_mov_b32 {v(K2+1)}, {v(K2)}\nv_mov_b32 {v(K1+1)}, {v(K1)}")
    a.c("row g is complete in lane 20g")
    a(f"s_mov_b32 {s(S_EX)}, 0x00100001\ns_mov_b32 {s(S_EX+1)}, 0x10000100\ns_mov_b64 exec, {s(S_EX,2)}")
    a(f"buffer_store_dwordx4 {v(R,4)}, v5, {s(R_WS,4)}, {s(S_T0)} offen sc1")
    a(f"buffer_store_dwordx4 {v(R+4,4)}, v5, {s(R_WS,4)}, {s(S_T0)} offen offset:16 sc1")
    a("s_mov_b64 exec, -1")


def kv_loads(a):
    a(f"s_lshr_b32 {s(S_T0)}, {s(S_TI)}, 3\ns_lshl_b32 {s(S_T0)}, {s(S_T0)}, 1\ns_add_u32 {s(S_T0)}, {s(S_T0)}, {s(S_SH)}\ns_lshl_b32 {s(S_T0)}, {s(S_T0)}, 15")
    a(f"s_and_b32 {s(S_T1)}, {s(S_TI)}, 7\ns_lshl_b32 {s(S_T2)}, {s(S_T1)}, 7\ns_add_u32 {s(S_T0)}, {s(S_T0)}, {s(S_T2)}")
    a("v_lshrrev_b32 v5, 5, v0\nv_lshlrev_b32 v5, 13, v5\nv_and_b32 v6, 31, v0\nv_lshl_add_u32 v5, v6, 2, v5")
    a(f"v_add_u32 v69, {s(S_T0)}, v5")
    a.c("halo: the 3 rows above; out of range (zero) at the start of the sequence")
    a("v_subrev_u32 v7, 0xc00, v69\nv_cmp_gt_u32 vcc, 0xc00, v69\nv_mov_b32 v68, 0x7ff00000\ns_nop 1\nv_cndmask_b32 v7, v7, v68, vcc")
    a(f"s_lshl_b32 {s(S_T1)}, {s(S_T1)}, 9\nv_lshlrev_b32 v6, 4, v6")
    a(f"buffer_load_dwordx4 {v(VSK,4)}, v6, {s(R_SK,4)}, {s(S_T1)} offen")


def kv_loads2(a, ps):
    b = VKV + 19 * ps
    a(f"s_mov_b32 {s(S_T1)}, {ps*16384}\ns_mov_b32 {s(S_T2)}, {ps*16384 + 4096}\ns_mov_b32 {s(S_T3)}, {16384 - 3072}")
    for i in range(3):
        if ps == 0:
            a(f"buffer_load_dword {v(b+i)}, v7, {s(R_K,4)}, 0 offen offset:{i*1024}")
        else:
            a(f"buffer_load_dword {v(b+i)}, v69, {s(R_K,4)}, {s(S_T3)} offen offset:{i*1024}")
    for i in range(8):
        a(f"buffer_load_dword {v(b+3+i)}, v69, {s(R_K,4)}, {s(S_T2 if i >= 4 else S_T1)} offen offset:{(i%4)*1024}")
    for i in range(8):
        a(f"buffer_load_dword {v(b+11+i)}, v69, {s(R_V,4)}, {s(S_T2 if i >= 4 else S_T1)} offen offset:{(i%4)*1024}")


KU, VU, KW, KO, KT = 72, 94, 110, 120, 128


def kv_taps(a):
    for j in range(4):
        for ch in range(2):
            src = VSK + 2*ch + (j >> 1)
            a(f"v_and_b32 {v(KW+2*j+ch)}, {s(S_C)}, {v(src)}" if j & 1 else f"v_lshlrev_b32 {v(KW+2*j+ch)}, 16, {v(src)}")
    a.c("KVT row = 2*(l&31) + ch, 16-B piece = 3 - (2*pass + l>>5)")
    a(f"v_and_b32 v70, 31, v0\nv_mul_u32_u24 v70, {2*KVT_STR}, v70\nv_lshrrev_b32 v5, 5, v0\nv_lshlrev_b32 v5, 4, v5\nv_sub_u32 v70, v70, v5")
    a(f"s_mul_i32 {s(S_T0)}, {s(S_SH)}, {64*KVT_STR}\ns_add_u32 {s(S_T0)}, {s(S_T0)}, {L_KVT + 16}\nv_add_u32 v70, {s(S_T0)}, v70")


def kv_compute(ps):
    b = VKV + 19 * ps
    o = []
    for i in range(11):
        o += [f"v_lshlrev_b32 {v(KU+2*i)}, 16, {v(b+i)}", f"v_and_b32 {v(KU+2*i+1)}, {s(S_C)}, {v(b+i)}"]
    for e in range(16):
        o.append(f"v_mul_f32 {v(KT+e)}, {v(KU+e)}, {v(KW+6+(e&1))}")
    for j in (2, 1, 0):
        for e in range(16):
            o.append(f"v_fmac_f32 {v(KT+e)}, {v(KU+e+2*(3-j))}, {v(KW+2*j+(e&1))}")
    for i in range(8):
        o += [f"v_lshlrev_b32 {v(VU+2*i)}, 16, {v(b+11+i)}", f"v_and_b32 {v(VU+2*i+1)}, {s(S_C)}, {v(b+11+i)}"]
    for e in range(16):
        o.append(f"v_mul_f32 {v(KT+e)}, {v(KT+e)}, {v(VU+e)}")
    for ch in range(2):
        for i in range(4):
            o.append(f"v_cvt_pk_bf16_f32 {v(KO+4*ch+i)}, {v(KT+2*(7-2*i)+ch)}, {v(KT+2*(6-2*i)+ch)}")
    o += [f"ds_write_b128 v70, {v(KO,4)} offset:{32*(1-ps)}", f"ds_write_b128 v70, {v(KO+4,4)} offset:{32*(1-ps) + KVT_STR}"]
    return o


def kv_store(a):
    a(f"v_lshrrev_b32 v5, 2, v0\nv_and_b32 v6, 3, v0\nv_lshlrev_b32 v6, 4, v6\nv_mul_u32_u24 v7, {KVT_STR}, v5\nv_add_u32 v7, v7, v6")
    a(f"s_mul_i32 {s(S_T0)}, {s(S_SH)}, {64*KVT_STR}\ns_add_u32 {s(S_T0)}, {s(S_T0)}, {L_KVT}\nv_add_u32 v7, {s(S_T0)}, v7")
    a("s_waitcnt lgkmcnt(0)")
    for i in range(4):
        a(f"ds_read_b128 {v(24+4*i,4)}, v7 offset:{16*i*KVT_STR}")
    a("v_lshl_add_u32 v5, v5, 12, v6")
    a(f"s_and_b32 {s(S_T0)}, {s(S_TI)}, 7\ns_lshl_b32 {s(S_T0)}, {s(S_T0)}, 18")
    a(f"s_lshr_b32 {s(S_T1)}, {s(S_TI)}, 3\ns_lshl_b32 {s(S_T1)}, {s(S_T1)}, 1\ns_add_u32 {s(S_T1)}, {s(S_T1)}, {s(S_SH)}\ns_lshl_b32 {s(S_T1)}, {s(S_T1)}, 6")
    a(f"s_sub_u32 {s(S_T0)}, {s(S_T0)}, {s(S_T1)}\ns_add_u32 {s(S_T0)}, {s(S_T0)}, {WS_KVR + 4096 - 64:#x}")
    for i in range(4):
        a(f"s_waitcnt lgkmcnt({3-i})")
        a(f"buffer_store_dwordx4 {v(24+4*i,4)}, v5, {s(R_WS,4)}, {s(S_T0)} offen sc1")
        a(f"s_add_u32 {s(S_T0)}, {s(S_T0)}, 65536")


def cs_loads(a):
    lab = a.label("cs_g")
    a(f"s_cmp_eq_u32 {s(S_SH)}, 0\ns_cbranch_scc1 {lab}\ns_mov_b64 {s(R_WG,2)}, {s(R_WU,2)}\n{lab}:")
    a(f"s_mul_i32 {s(S_T0)}, {s(S_MI)}, {32*F*2}\ns_lshl_b32 {s(S_T1)}, {s(S_FB0)}, 6\ns_add_u32 {s(S_T0)}, {s(S_T0)}, {s(S_T1)}\ns_add_u32 {s(S_T1)}, {s(S_T0)}, {16*F*2}")
    a(f"s_mul_i32 {s(S_M0)}, {s(S_SH)}, 6144\ns_add_u32 {s(S_M0)}, {s(S_M0)}, {L_CSS}")
    for blk in range(3):
        for k2 in range(2):
            a(f"s_add_u32 m0, {s(S_M0)}, {blk*2048 + k2*1024 - 64*blk}\ns_nop 0")
            a(f"buffer_load_dwordx4 {v(VB_W)}, {s(R_WG,4)}, {s(S_T1 if k2 else S_T0)} offen offset:{64*blk} lds")


def colsum(a):
    W, O = 144, 168
    a("v_lshrrev_b32 v5, 4, v0\nv_lshlrev_b32 v6, 9, v5\nv_bfe_u32 v7, v0, 2, 2\nv_lshl_add_u32 v6, v7, 6, v6\nv_and_b32 v7, 3, v0\nv_lshl_add_u32 v6, v7, 3, v6")
    a(f"v_and_b32 v7, 1, v5\nv_lshl_add_u32 v6, v7, 5, v6\nv_add_u32 v6, {s(S_M0)}, v6\nv_xor_b32 v7, 32, v6")
    for u in range(6):
        for tt in range(2):
            a(f"ds_read_b64_tr_b16 {v(W+4*u+2*tt,2)}, {'v7' if u & 1 else 'v6'} offset:{(u>>1)*2048 + tt*256}")
    a.c("CSP offset = ((ni*2 + hw)*16 + mi)*384 + u*64 + g*16")
    a(f"s_lshl_b32 {s(S_T0)}, {s(S_NI)}, 1\ns_add_u32 {s(S_T0)}, {s(S_T0)}, {s(S_SH)}\ns_lshl_b32 {s(S_T0)}, {s(S_T0)}, 4\ns_add_u32 {s(S_T0)}, {s(S_T0)}, {s(S_MI)}")
    a(f"s_mul_i32 {s(S_T0)}, {s(S_T0)}, 384\ns_add_u32 {s(S_T0)}, {s(S_T0)}, {WS_CSP:#x}")
    a("v_and_b32 v5, 48, v0")
    a("s_waitcnt lgkmcnt(0)")
    for u in range(6):
        a(f"v_mfma_f32_16x16x32_bf16 {v(O+4*u,4)}, {v(W+4*u,4)}, {v(ONE,4)}, 0")
    a(f"s_mov_b32 {s(S_EX)}, 0x00010001\ns_mov_b32 {s(S_EX+1)}, 0x00010001\ns_nop 5\ns_mov_b64 exec, {s(S_EX,2)}")
    for u in range(6):
        a(f"buffer_store_dwordx4 {v(O+4*u,4)}, v5, {s(R_WS,4)}, {s(S_T0)} offen offset:{u*64} sc1")
    a("s_mov_b64 exec, -1")


def hflag(a, base):
    a(f"s_lshl_b32 {s(S_T0)}, {s(S_TI)}, 7\ns_lshl_b32 {s(S_T1)}, {s(S_SH)}, 2\ns_add_u32 {s(S_T0)}, {s(S_T0)}, {s(S_T1)}\ns_add_u32 {s(S_T0)}, {s(S_T0)}, {base:#x}")
    flag_store(a, S_T0, 196, 197)


CG = 144


def cs_gather_issue(a):
    a(f"s_lshl_b32 {s(S_T0)}, {s(S_NI)}, 1\ns_add_u32 {s(S_T0)}, {s(S_T0)}, {s(S_SH)}\ns_mul_i32 {s(S_T0)}, {s(S_T0)}, 6144\ns_add_u32 {s(S_T0)}, {s(S_T0)}, {WS_CSP:#x}")
    a("v_and_b32 v5, 31, v0\nv_lshlrev_b32 v5, 4, v5\nv_lshrrev_b32 v6, 5, v0\nv_mul_u32_u24 v6, 3072, v6\nv_add_u32 v6, v5, v6")
    for i in range(8):
        a(f"buffer_load_dwordx4 {v(CG+4*i,4)}, v6, {s(R_WS,4)}, {s(S_T0)} offen offset:{i*384} sc1")


def cs_gather_finish(a):
    n = 8
    while n > 1:
        n //= 2
        for i in range(4 * n):
            a(f"v_add_f32 {v(CG+i)}, {v(CG+i)}, {v(CG+4*n+i)}")
    for i in range(4):
        a(f"v_mov_b32 {v(CG+4+i)}, {v(CG+i)}")
    a(f"s_lshl_b32 {s(S_T0)}, {s(S_SH)}, 9\ns_add_u32 {s(S_T0)}, {s(S_T0)}, {L_CS}\nv_and_b32 v8, 31, v0\nv_lshlrev_b32 v8, 4, v8\nv_add_u32 v8, {s(S_T0)}, v8")
    for i in range(4):
        a(f"v_permlane32_swap_b32 {v(CG+i)}, {v(CG+4+i)}")
    a("s_nop 0")
    for i in range(4):
        a(f"v_add_f32 {v(CG+i)}, {v(CG+i)}, {v(CG+4+i)}")
    a(f"ds_write_b128 v8, {v(CG,4)}")


def helper(a):
    q = VQ(a)
    a(f"s_sub_u32 {s(S_SH)}, {s(S_WB)}, 2")
    a(f"s_mov_b32 {s(S_C)}, 0xffff0000")
    a(f"v_mov_b32 v5, {L_CNT}\nv_mov_b32 v6, 0\nds_write_b32 v5, v6")
    for i in range(4):
        a(f"v_mov_b32 {v(ONE+i)}, 0x3f803f80")
    a.c("column-sum flags: F1 pairs of tiles 16*(l&15) + ni")
    a(f"s_lshl_b32 {s(S_T0)}, {s(S_NI)}, 7\ns_add_u32 {s(S_T0)}, {s(S_T0)}, {WS_F1:#x}\nv_and_b32 v8, 15, v0\nv_lshlrev_b32 v8, 11, v8\nv_add_u32 v8, {s(S_T0)}, v8")
    a("s_waitcnt lgkmcnt(0)")
    epoch_load(a, 1); q.add("e", 1)
    if opt("HDELAY", 0):
        q.wait("e")
    stats_loads(a); q.add("s", 4)
    cs_loads(a); q.add("csd", 6)
    a("s_barrier")
    stamp(a, 1)
    kv_loads(a); q.add("sk", 1)
    kv_loads2(a, 0); q.add("kv0", 19)
    q.wait("e", "s")
    epoch_take(a, 1)
    stats(a); q.add("st", 2)
    a("s_barrier")
    stamp(a, 2)
    kv_loads2(a, 1); q.add("kv1", 19)
    q.wait("csd")
    colsum(a); q.add("st", 6)
    a("s_barrier")
    stamp(a, 3)
    w0, w1 = kv_compute(0), kv_compute(1)
    q.wait("kv0")
    kv_taps(a)
    for l in w0[:70]:
        a(l)
    a("s_barrier")
    stamp(a, 4)
    q.wait("st", "kv1")
    hflag(a, WS_F1); q.add("f", 1)
    for l in w0[70:] + w1[:26]:
        a(l)
    a("s_barrier")
    stamp(a, 5)
    a(f"s_lshl_b32 {s(S_T0)}, {s(S_TI)}, 1\ns_add_u32 {s(S_T0)}, {s(S_T0)}, {s(S_SH)}\ns_lshl_b32 {s(S_T0)}, {s(S_T0)}, 12\nv_lshlrev_b32 v5, 6, v0")
    a(f"buffer_load_dword v71, v5, {s(R_H,4)}, {s(S_T0)} offen"); q.add("pf", 1)
    for l in w1[26:112]:
        a(l)
    poll2_issue(a, 8, 198); q.add("p", 1)
    a("s_barrier")
    stamp(a, 6)
    for l in w1[112:]:
        a(l)
    kv_store(a); q.add("kvst", 4)
    q.wait("p")
    poll2_check(a, 8, 198)
    cs_gather_issue(a); q.add("g", 8)
    a("s_barrier")
    q.wait("kvst")
    hflag(a, WS_F2)


C_ACC, C_F0, C_F1 = 16, 48, 112
C_AA, C_BA, C_CNT, C_ONE = 2, 3, 5, 11


def bsync(a, n=4):
    lab = a.label("bs")
    a(f"s_add_u32 {s(S_CNT)}, {s(S_CNT)}, {n}")
    a("s_waitcnt lgkmcnt(0)")
    a("s_mov_b64 exec, 1")
    a(f"ds_add_u32 {v(C_CNT)}, {v(C_ONE)}")
    a("s_mov_b64 exec, -1")
    a(f"{lab}:")
    a(f"ds_read_b32 v6, {v(C_CNT)}")
    a("s_waitcnt lgkmcnt(0)")
    a(f"v_readfirstlane_b32 {s(S_T0)}, v6")
    a("s_nop 0")
    a(f"s_cmp_lt_u32 {s(S_T0)}, {s(S_CNT)}\ns_cbranch_scc1 {lab}")


def conv_reads(fr, roff):
    out = []
    for p in range(8):
        out.append(f"ds_read_b128 {v(fr+4*p,4)}, {v(C_AA)} offset:{512*p + roff}")
        out.append(f"ds_read_b64 {v(fr+32+4*p,2)}, {v(C_BA)} offset:{512*(7-p) + roff}")
        out.append(f"ds_read_b64 {v(fr+32+4*p+2,2)}, {v(C_BA)} offset:{512*(7-p) + roff + 8}")
    return out


def conv_mfmas(fr, first):
    out = []
    for tot in range(8):
        for p in range(tot + 1):
            q = tot - p
            out.append((max(p, q), f"v_mfma_f32_16x16x32_bf16 {v(C_ACC+4*tot,4)}, {v(fr+4*p,4)}, {v(fr+32+4*q,4)}, ", C_ACC + 4*tot))
    out.sort(key=lambda t: t[0])
    res, seen = [], set()
    for _, txt, c in out:
        res.append(txt + ("0" if first and c not in seen else v(c, 4)))
        seen.add(c)
    return res


HR = 48


def conv_h_loads(a):
    a(f"s_lshr_b32 {s(S_T0)}, {s(S_WB)}, 1\ns_and_b32 {s(S_T1)}, {s(S_WB)}, 1")
    a(f"s_lshl_b32 {s(S_HO)}, {s(S_TI)}, 1\ns_add_u32 {s(S_HO)}, {s(S_HO)}, {s(S_T0)}\ns_lshl_b32 {s(S_HO)}, {s(S_HO)}, 12")
    a(f"s_mul_i32 {s(S_RING)}, {s(S_T0)}, {CH_STR}\ns_add_u32 {s(S_RING)}, {s(S_RING)}, {L_CONV}")
    a(f"s_lshl_b32 {s(S_T1)}, {s(S_T1)}, 11")
    a(f"v_add_u32 v7, {s(S_T1)}, v4\nv_subrev_u32 v9, 8, v7\nv_add_u32 v10, 1016, v7")
    a(f"s_lshl_b32 {s(S_T3)}, {s(S_TI)}, 2\ns_load_dword {s(S_C+2)}, {s(S_DP,2)}, {s(S_T3)}")
    a(f"buffer_load_dwordx2 {v(HR,2)}, v9, {s(R_H,4)}, {s(S_HO)} offen")
    a(f"buffer_load_dwordx4 {v(HR+2,4)}, v7, {s(R_H,4)}, {s(S_HO)} offen")
    a(f"buffer_load_dwordx2 {v(HR+6,2)}, v10, {s(R_H,4)}, {s(S_HO)} offen")
    a(f"buffer_load_dwordx4 {v(HR+8,4)}, v7, {s(R_H,4)}, {s(S_HO)} offen offset:1024")


def conv_h_stage(a):
    a.c("zero pads: 384 B in front of each h copy (two copies per wave), 128 B behind u")
    for i in range(4):
        a(f"v_mov_b32 {v(100+i)}, 0")
    a(f"s_and_b32 {s(S_T0)}, {s(S_WB)}, 1\ns_mul_i32 {s(S_T0)}, {s(S_T0)}, {2*HSTR}\ns_add_u32 {s(S_T0)}, {s(S_T0)}, {s(S_RING)}")
    a(f"v_add_u32 v6, {s(S_T0)}, v4\nv_add_u32 v9, {s(S_RING)}, v4\nv_add_u32 v10, {s(S_RING)}, v7")
    a("s_mov_b64 exec, 0xffffff")
    a(f"ds_write_b128 v6, {v(100,4)}\nds_write_b128 v6, {v(100,4)} offset:{HSTR}")
    a("s_mov_b64 exec, 0xff")
    a(f"ds_write_b128 v9, {v(100,4)} offset:{4*HSTR + 4096}")
    a("s_mov_b64 exec, -1")
    T = 72
    for h in range(2):
        r = HR + 6 * h
        for i in range(4):
            a(f"v_alignbit_b32 {v(T+i)}, {v(r+2+i)}, {v(r+1+i)}, 16")
        for i in range(4):
            a(f"v_mov_b32 {v(T+4+i)}, {v(r+1+i)}")
        for i in range(4):
            a(f"v_alignbit_b32 {v(T+8+i)}, {v(r+1+i)}, {v(r+i)}, 16")
        a(f"ds_write_b128 v10, {v(r+2,4)} offset:{384 + 1024*h}")
        for p in range(1, 4):
            a(f"ds_write_b128 v10, {v(T+4*(p-1),4)} offset:{p*HSTR + 384 + 1024*h}")
        T += 12


def u_fetch(a):
    a.c("F2 pairs of the 16 row tiles behind this half of u: tiles 8*(31 - 16*(wb&1) - (l&15)) + (ti>>5)")
    a(f"s_lshr_b32 {s(S_T0)}, {s(S_TI)}, 5\ns_lshl_b32 {s(S_T0)}, {s(S_T0)}, 7\ns_and_b32 {s(S_T1)}, {s(S_WB)}, 1\ns_lshl_b32 {s(S_T1)}, {s(S_T1)}, 14")
    a(f"s_sub_u32 {s(S_T0)}, {s(S_T0)}, {s(S_T1)}\ns_add_u32 {s(S_T0)}, {s(S_T0)}, {WS_F2 + 16*1024:#x}")
    a(f"v_and_b32 v15, 15, v0\nv_lshlrev_b32 v15, 10, v15\nv_add_u32 v15, {s(S_T0)}, v15")
    poll2_issue(a, 15, 198)
    conv_h_stage(a)
    a("s_waitcnt vmcnt(0)")
    poll2_check(a, 15, 198)
    a(f"s_add_u32 {s(S_T2)}, {s(S_HO)}, {WS_KVR:#x}")
    a(f"buffer_load_dwordx4 {v(104,4)}, v7, {s(R_WS,4)}, {s(S_T2)} offen sc1")
    a(f"buffer_load_dwordx4 {v(108,4)}, v7, {s(R_WS,4)}, {s(S_T2)} offen offset:1024 sc1")
    final_loads(a)
    a("s_waitcnt vmcnt(2)")
    a(f"ds_write_b128 v10, {v(104,4)} offset:{4*HSTR}\nds_write_b128 v10, {v(108,4)} offset:{4*HSTR + 1024}")


def conv_main(a):
    for l in conv_reads(C_F0, 0):
        a(l)
    for r in range(4):
        cur, nxt = (C_F0, C_F1) if r % 2 == 0 else (C_F1, C_F0)
        a("s_waitcnt lgkmcnt(0)")
        if r < 3:
            rd = conv_reads(nxt, 64 * (r + 1))
        else:
            rd = [f"ds_read_b64 {v(48+4*t+2*c,2)}, v10 offset:{c*CH_STR + 512*(1-t)}" for t in range(2) for c in range(2)]
        for l in interleave(conv_mfmas(cur, r == 0), rd, 0, 1):
            a(l)
    lstamp(a, 5)
    bsync(a)
    for t in range(8):
        a(f"ds_write_b128 v8, {v(C_ACC+4*t,4)} offset:{t*1024}")
    U, UU, X = 48, 56, 112
    for t in range(2):
        for c in range(2):
            u, o = U + 4*t + 2*c, UU + 8*t + 4*c
            a(f"v_and_b32 {v(o)}, {s(S_C)}, {v(u+1)}\nv_lshlrev_b32 {v(o+1)}, 16, {v(u+1)}\nv_and_b32 {v(o+2)}, {s(S_C)}, {v(u)}\nv_lshlrev_b32 {v(o+3)}, 16, {v(u)}")
    a(f"s_lshl_b32 {s(S_C+3)}, {s(S_C+2)}, 16\ns_and_b32 {s(S_C+2)}, {s(S_C+2)}, 0xffff0000")
    for t in range(2):
        for c in range(2):
            for j in range(4):
                a(f"v_mul_f32 {v(UU+8*t+4*c+j)}, {s(S_C+3-c)}, {v(UU+8*t+4*c+j)}")
    bsync(a)
    for t in range(2):
        for w in range(4):
            a(f"ds_read_b128 {v(X+16*t+4*w,4)}, v9 offset:{w*8192 + t*1024}")
    a(f"s_lshl_b32 {s(S_T0)}, {s(S_TI)}, 13\ns_lshl_b32 {s(S_T1)}, {s(S_WB)}, 11\ns_add_u32 {s(S_T0)}, {s(S_T0)}, {s(S_T1)}\ns_add_u32 {s(S_T0)}, {s(S_T0)}, {WS_Y2:#x}")
    for t in range(2):
        a(f"s_waitcnt lgkmcnt({4*(1-t)})")
        for c in range(2):
            x0, o = X + 16*t + 8*c, UU + 8*t + 4*c
            for j in range(4):
                a(f"v_add_f32 {v(o+j)}, {v(o+j)}, {v(x0+j)}")
            for j in range(4):
                a(f"v_add_f32 {v(o+j)}, {v(o+j)}, {v(x0+4+j)}")
        for j in range(4):
            a(f"v_cvt_pk_bf16_f32 {v(144+4*t+j)}, {v(UU+8*t+j)}, {v(UU+8*t+4+j)}")
        a(f"buffer_store_dwordx4 {v(144+4*t,4)}, v4, {s(R_WS,4)}, {s(S_T0)} offen offset:{t*1024} sc1")


def conv_addr(a):
    a.c("A address: base + (3-(m&3))*HSTR + 128*(m>>2) + 16*kg + 256*rh ; B address: ubase + 120 - 8n + 16kg + 256*rh")
    a(f"s_and_b32 {s(S_T0)}, {s(S_WB)}, 1\ns_lshl_b32 {s(S_T0)}, {s(S_T0)}, 8\ns_add_u32 {s(S_T0)}, {s(S_T0)}, {s(S_RING)}")
    a(f"v_and_b32 v6, 3, v0\nv_sub_u32 v6, 3, v6\nv_mul_u32_u24 v6, {HSTR}, v6\nv_bfe_u32 v7, v0, 2, 2\nv_lshl_add_u32 v6, v7, 7, v6")
    a(f"v_and_b32 v7, 48, v0\nv_add3_u32 {v(C_AA)}, v6, v7, {s(S_T0)}")
    a(f"v_and_b32 v6, 15, v0\nv_lshlrev_b32 v6, 3, v6\nv_sub_u32 v6, v7, v6\ns_add_u32 {s(S_T0)}, {s(S_T0)}, {4*HSTR + 120}\nv_add_u32 {v(C_BA)}, {s(S_T0)}, v6")
    a(f"s_lshl_b32 {s(S_T0)}, {s(S_WB)}, 13\ns_add_u32 {s(S_T0)}, {s(S_T0)}, {L_XCH}\nv_add_u32 v8, {s(S_T0)}, v4")
    a(f"s_lshl_b32 {s(S_T0)}, {s(S_WB)}, 11\ns_add_u32 {s(S_T0)}, {s(S_T0)}, {L_XCH}\nv_add_u32 v9, {s(S_T0)}, v4")
    a.c("u for the skip term: ubase_c + 2*(2044 - 256T - 4l), T = 2wb + t")
    a(f"s_lshl_b32 {s(S_T0)}, {s(S_WB)}, 10\ns_sub_u32 {s(S_T0)}, {L_CONV + 4*HSTR + 4088 - 512}, {s(S_T0)}\nv_lshlrev_b32 v10, 3, v0\nv_sub_u32 v10, {s(S_T0)}, v10")
    a(f"v_mov_b32 {v(C_CNT)}, {L_CNT}\nv_mov_b32 {v(C_ONE)}, 1\ns_mov_b32 {s(S_CNT)}, 0\ns_mov_b32 {s(S_C)}, 0xffff0000")


def final_loads(a):
    a(f"s_lshl_b32 {s(S_T0)}, {s(S_MT)}, 2\ns_add_u32 {s(S_T0)}, {s(S_T0)}, {s(S_WB)}\ns_lshl_b32 {s(S_T1)}, {s(S_T0)}, 14\ns_lshl_b32 {s(S_T2)}, {s(S_NT)}, 7\ns_add_u32 {s(S_XO)}, {s(S_T1)}, {s(S_T2)}")
    a(f"s_add_u32 {s(S_WO)}, {s(S_XO)}, 8192")
    a("v_lshrrev_b32 v12, 3, v0\nv_and_b32 v13, 7, v0\nv_lshlrev_b32 v14, 4, v13\nv_lshl_add_u32 v14, v12, 10, v14\nv_lshlrev_b32 v15, 5, v12")
    a(f"buffer_load_dwordx4 {v(176,4)}, v14, {s(R_X,4)}, {s(S_XO)} offen")
    a(f"buffer_load_dwordx4 {v(180,4)}, v14, {s(R_X,4)}, {s(S_WO)} offen")


def final(a):
    a.c("publish F4[wb*256 + ti]; wait for F4[(mt>>3)*256 + 32nt + 8wb + (l&7)] and the row records' F1 words")
    a(f"s_lshl_b32 {s(S_T0)}, {s(S_WB)}, 8\ns_add_u32 {s(S_T0)}, {s(S_T0)}, {s(S_TI)}\ns_lshl_b32 {s(S_T0)}, {s(S_T0)}, 7\ns_add_u32 {s(S_T0)}, {s(S_T0)}, {WS_F4:#x}")
    a(f"s_lshr_b32 {s(S_T1)}, {s(S_MT)}, 3\ns_lshl_b32 {s(S_T1)}, {s(S_T1)}, 3\ns_add_u32 {s(S_T1)}, {s(S_T1)}, {s(S_NT)}\ns_lshl_b32 {s(S_T1)}, {s(S_T1)}, 2\ns_add_u32 {s(S_T1)}, {s(S_T1)}, {s(S_WB)}")
    a(f"s_lshl_b32 {s(S_T1)}, {s(S_T1)}, 10\ns_add_u32 {s(S_T1)}, {s(S_T1)}, {WS_F4:#x}")
    a(f"v_lshlrev_b32 v8, 7, v13\nv_add_u32 v8, {s(S_T1)}, v8")
    a(f"s_lshl_b32 {s(S_T1)}, {s(S_MT)}, 2\ns_add_u32 {s(S_T1)}, {s(S_T1)}, {s(S_WB)}\ns_lshl_b32 {s(S_T1)}, {s(S_T1)}, 8\ns_add_u32 {s(S_T1)}, {s(S_T1)}, {WS_F1:#x}")
    a(f"v_and_b32 v9, 1, v0\nv_lshlrev_b32 v9, 2, v9\nv_and_b32 v10, 2, v0\nv_lshl_add_u32 v9, v10, 6, v9\nv_add_u32 v9, {s(S_T1)}, v9")
    a("v_cmp_lt_u32 vcc, 31, v0\ns_nop 1\nv_cndmask_b32 v8, v8, v9, vcc")
    XU, XN = 56, 72
    a("s_waitcnt vmcnt(0)")
    flag_store(a, S_T0, 9, 10)
    stamp(a, 7)
    for t in range(2):
        for i in range(4):
            a(f"v_lshlrev_b32 {v(XU+8*t+2*i)}, 16, {v(176+4*t+i)}\nv_and_b32 {v(XU+8*t+2*i+1)}, {s(S_C)}, {v(176+4*t+i)}")
    poll(a, 8, 6)
    stamp(a, 8)
    a.c("Y2 tile: rows 32nt + 8wb + 4i + (l>>4), 256 B each at column mt*256")
    a(f"s_lshl_b32 {s(S_T0)}, {s(S_NT)}, 2\ns_add_u32 {s(S_T0)}, {s(S_T0)}, {s(S_WB)}\ns_lshl_b32 {s(S_T0)}, {s(S_T0)}, 16\ns_lshl_b32 {s(S_T1)}, {s(S_MT)}, 8\ns_add_u32 {s(S_T0)}, {s(S_T0)}, {s(S_T1)}\ns_add_u32 {s(S_T0)}, {s(S_T0)}, {WS_Y2:#x}")
    a(f"s_add_u32 {s(S_T1)}, {s(S_T0)}, 32768")
    a("v_lshrrev_b32 v8, 4, v0\nv_and_b32 v9, 15, v0\nv_lshlrev_b32 v10, 4, v9\nv_lshl_add_u32 v10, v8, 13, v10")
    a(f"buffer_load_dwordx4 {v(48,4)}, v10, {s(R_WS,4)}, {s(S_T0)} offen sc1")
    a(f"buffer_load_dwordx4 {v(52,4)}, v10, {s(R_WS,4)}, {s(S_T1)} offen sc1")
    a(f"s_lshl_b32 {s(S_T0)}, {s(S_MT)}, 2\ns_add_u32 {s(S_T0)}, {s(S_T0)}, {s(S_WB)}\ns_lshl_b32 {s(S_T0)}, {s(S_T0)}, 9\ns_add_u32 {s(S_T0)}, {s(S_T0)}, {WS_ST:#x}")
    a(f"buffer_load_dwordx4 {v(184,4)}, v15, {s(R_WS,4)}, {s(S_T0)} offen sc1")
    a(f"buffer_load_dwordx4 {v(188,4)}, v15, {s(R_WS,4)}, {s(S_T0)} offen offset:256 sc1")
    a(f"s_lshl_b32 {s(S_T0)}, {s(S_WB)}, 1\ns_lshl_b32 {s(S_T1)}, {s(S_WB)}, 11\ns_add_u32 {s(S_T1)}, {s(S_T1)}, {L_YL}")
    a(f"v_xor_b32 v9, {s(S_T0)}, v9\nv_lshlrev_b32 v9, 4, v9\nv_lshl_add_u32 v9, v8, 8, v9\nv_add_u32 v9, {s(S_T1)}, v9\nv_xor_b32 v10, 16, v9")
    a.c("read address: YL + 4c*256 + ((sl>>2) ^ c)*16 + (sl&3)*4, sl = 16wb + 8t + (l>>3)")
    a(f"s_lshl_b32 {s(S_T0)}, {s(S_WB)}, 2\nv_lshrrev_b32 v7, 5, v0\nv_add_u32 v7, {s(S_T0)}, v7\nv_xor_b32 v7, v7, v13\nv_lshlrev_b32 v7, 4, v7\nv_lshl_add_u32 v7, v13, 10, v7")
    a(f"v_and_b32 v8, 3, v12\nv_lshl_add_u32 v7, v8, 2, v7\nv_add_u32 v7, {L_YL}, v7\nv_xor_b32 v8, 32, v7")
    a.c("partials: wb*16384 + w*4096 + (8t + row)*256 + ((2c + h) ^ row)*16")
    a(f"s_lshl_b32 {s(S_T0)}, {s(S_WB)}, 14\nv_lshlrev_b32 v2, 1, v13\nv_xor_b32 v2, v2, v12\nv_lshlrev_b32 v2, 4, v2\nv_lshl_add_u32 v2, v12, 8, v2\nv_add_u32 v2, {s(S_T0)}, v2")
    a("v_xor_b32 v3, 16, v2")
    a("s_waitcnt vmcnt(2)")
    a(f"ds_write_b128 v9, {v(48,4)}\nds_write_b128 v10, {v(52,4)} offset:1024")
    a("s_waitcnt vmcnt(0)")
    for t in range(2):
        a(f"v_mul_f32 {v(186+4*t)}, {f32bits(1.0/C1):#x}, {v(186+4*t)}")
        for i in range(8):
            a(f"v_sub_f32 {v(XN+8*t+i)}, {v(XU+8*t+i)}, {v(184+4*t)}")
        for i in range(8):
            a(f"v_mul_f32 {v(XN+8*t+i)}, {v(XN+8*t+i)}, {v(186+4*t)}")
    bsync(a)
    Y, YU = 88, 96
    for t in range(2):
        for e in range(4):
            a(f"ds_read_b32 {v(Y+4*t+e)}, {'v8' if t else 'v7'} offset:{e*256}")
    a("s_waitcnt lgkmcnt(0)")
    for t in range(2):
        for e in range(4):
            a(f"v_lshlrev_b32 {v(YU+8*t+2*e)}, 16, {v(Y+4*t+e)}\nv_and_b32 {v(YU+8*t+2*e+1)}, {s(S_C)}, {v(Y+4*t+e)}")
    for i in range(16):
        a(f"v_fmac_f32 {v(XU+i)}, {v(XN+i)}, {v(YU+i)}")
    stamp(a, 9)
    if STAMPS:
        a("s_waitcnt lgkmcnt(0)")
    a("s_barrier")
    P = 112
    for t in range(2):
        for w in range(4):
            for h in range(2):
                a(f"ds_read_b128 {v(P+32*t+8*w+4*h,4)}, {'v3' if h else 'v2'} offset:{w*4096 + t*2048}")
    for t in range(2):
        a(f"s_waitcnt lgkmcnt({8*(1-t)})")
        p = P + 32 * t
        for i in range(4):
            a(f"v_pk_add_f32 {v(p+2*i,2)}, {v(p+2*i,2)}, {v(p+8+2*i,2)}")
        for i in range(4):
            a(f"v_pk_add_f32 {v(p+16+2*i,2)}, {v(p+16+2*i,2)}, {v(p+24+2*i,2)}")
        for i in range(4):
            a(f"v_pk_add_f32 {v(p+2*i,2)}, {v(p+2*i,2)}, {v(XU+8*t+2*i,2)}")
        for i in range(4):
            a(f"v_pk_add_f32 {v(p+2*i,2)}, {v(p+2*i,2)}, {v(p+16+2*i,2)}")
        for i in range(4):
            a(f"v_cvt_pk_bf16_f32 {v(48+4*t+i)}, {v(p+2*i)}, {v(p+2*i+1)}")
        a(f"buffer_store_dwordx4 {v(48+4*t,4)}, v14, {s(R_OUT,4)}, {s(S_WO if t else S_XO)} offen")


def epoch_flags_issue(a):
    a(f"v_lshlrev_b32 v6, 7, v0\ns_mov_b32 {s(S_T0)}, {WS_F1:#x}")
    for i in range(4):
        a(f"buffer_load_dword {v(2+i)}, v6, {s(R_WS,4)}, {s(S_T0)} offen sc1")
        a(f"s_add_u32 {s(S_T0)}, {s(S_T0)}, 8192")


def epoch_pre(a):
    done = a.label("ep_skip")
    a(f"s_lshl_b32 {s(S_T0)}, s2, 3\ns_add_u32 {s(S_T0)}, {s(S_T0)}, {s(S_WAVE)}\ns_cmp_lg_u32 {s(S_T0)}, 0\ns_cbranch_scc1 {done}")
    epoch_flags_issue(a)
    a(f"{done}:")


def epoch_advance(a):
    done, top, ok = a.label("ep_skip"), a.label("ep_top"), a.label("ep_ok")
    a(f"s_lshl_b32 {s(S_T0)}, s2, 3\ns_add_u32 {s(S_T0)}, {s(S_T0)}, {s(S_WAVE)}\ns_cmp_lg_u32 {s(S_T0)}, 0\ns_cbranch_scc1 {done}")
    a(f"s_mov_b32 {s(S_SPIN)}, 0")
    a(f"{top}:")
    for i in range(4):
        a(f"v_xor_b32 {v(2+i)}, {s(S_NON)}, {v(2+i)}")
    a("v_or_b32 v2, v2, v3\nv_or_b32 v4, v4, v5\nv_or_b32 v2, v2, v4\nv_cmp_ne_u32 vcc, 0, v2")
    a(f"s_cbranch_vccz {ok}")
    a(f"s_add_u32 {s(S_SPIN)}, {s(S_SPIN)}, 1\ns_cmp_ge_u32 {s(S_SPIN)}, {SPIN_MAX}\ns_cbranch_scc1 {ok}")
    epoch_flags_issue(a)
    a(f"s_waitcnt vmcnt(0)\ns_branch {top}")
    a(f"{ok}:")
    a(f"s_mov_b32 {s(S_T0)}, {WS_EP:#x}")
    flag_store(a, S_T0, 8, 9)
    a(f"{done}:")


def kernel(a):
    prologue(a)
    a(f"s_cmp_ge_u32 {s(S_WAVE)}, 4\ns_cbranch_scc1 L_b")
    g1_compute(a)
    g1_epilogue(a)
    epoch_pre(a)
    g2_main(a)
    epoch_advance(a)
    stamp_flush(a)
    a("s_endpgm")
    a("L_b:")
    a("v_lshlrev_b32 v4, 4, v0")
    a(f"s_cmp_ge_u32 {s(S_WB)}, 2\ns_cbranch_scc1 L_help")
    loader(a)
    a("s_branch L_bj")
    a("L_help:")
    helper(a)
    a("L_bj:")
    a.c("interval 7: chunk 7 is landing")
    wd_setup(a, 0)
    conv_h_loads(a)
    for op in wd_dma(0):
        a(op)
    a(f"s_cmp_ge_u32 {s(S_WB)}, 2\ns_cbranch_scc1 L_nw7\ns_waitcnt vmcnt(9)\nL_nw7:")
    lstamp(a, 1)
    a("s_barrier")
    lstamp(a, 2)
    a("s_waitcnt vmcnt(8)")
    a(f"s_cmp_ge_u32 {s(S_WB)}, 2\ns_cbranch_scc1 L_g1")
    st_gather_issue(a)
    for i in (1, 2):
        for op in wd_dma(i):
            a(op)
    a("s_waitcnt vmcnt(8)")
    st_gather_finish(a)
    a("s_branch L_g2")
    a("L_g1:")
    for i in (1, 2):
        for op in wd_dma(i):
            a(op)
    cs_gather_finish(a)
    a("L_g2:")
    a("s_waitcnt vmcnt(0) lgkmcnt(0)")
    lstamp(a, 3)
    a("s_barrier")
    u_fetch(a)
    conv_addr(a)
    bsync(a, 8)
    lstamp(a, 4)
    conv_main(a)
    lstamp(a, 6)
    final(a)
    stamp_flush(a)
    a("L_end:\ns_endpgm")


HEADER = open(f"cdna_kernels/{NAME}.s.ref").read().split("; Override launch")[0]


def build():
    a = Asm()
    kernel(a)
    out = HEADER + "; @launch grid=(256,1,1) block=(512,1,1) lds=163840\n"
    out += '.amdgcn_target "amdgcn-amd-amdhsa--gfx950"\n.text\n' + a.text()
    out += '.section .rodata,"a"\n.p2align 6\n' + kernel_desc(KNAME)
    return out


if __name__ == "__main__":
    open(sys.argv[1] if len(sys.argv) > 1 else "t_m.s", "w").write(build())
```

```python
import math, os, sys
from asmlib import *

NAME = "parallel_sum__ssm_conv_h3__geglu_ffn__prompt"
KNAME = NAME + "_kernel"
S, D, F = 2048, 512, 1376
NU = F // 16
STAMPS = os.environ.get("STAMPS") == "1"
def opt(name, default):
    return int(os.environ.get(name, default))

WS_HF, WS_KVR, WS_Y2, WS_ST, WS_CSP = 0, 0x600000, 0x800000, 0xA00000, 0xA10000
WS_F1, WS_F2, WS_F3, WS_F4, WS_EP = 0xA80000, 0xA88000, 0xAA0000, 0xAC0000, 0xAE0000
WS_STAMP = 0xC00000
WS_SIZE = 0x1000000
NONCE_INC = 0x9E3779B1
OOB = 0x7f000000
R_X, R_WG, R_WU, R_WS, R_K, R_V, R_SK, R_WD, R_OUT, R_H = 4, 8, 12, 16, 20, 24, 28, 32, 36, 40
S_DP = 44
S_EX = 46
(S_WAVE, S_MI, S_NI, S_FB0, S_NBLK, S_T0, S_T1, S_T2, S_T3, S_IT, S_SLOT, S_KC, S_XO, S_WO, S_WO2, S_M0,
 S_WB, S_SH, S_UH, S_TI, S_MT, S_NT, S_NON, S_RING, S_CNT, S_HO, S_DO, S_SPIN) = range(48, 76)
S_C = 76
S_DK, S_HK, S_KEND = 3, S_RING, S_CNT
SLOT, NSLOT = 40960, 3
L_KVT, KVT_STR = 122880, 80
L_CS, L_ST, L_CNT = 133120, 134144, 138240
HSTR = 4640
CH_STR = 4 * HSTR + 4224
L_CONV = 81920
L_XCH = 81920
L_YL = 114688
NRW = 6
L_RING0 = 139264
L_CSS = 139264
assert L_KVT + 2 * 64 * KVT_STR <= L_CS and L_CONV + 2 * CH_STR <= L_CS and L_RING0 + 16384 <= 163840
C1 = -2.0 * math.log2(math.e) * math.sqrt(2.0 / math.pi)
C2 = C1 * 0.044715
SPIN_MAX = 1 << 16


def stamp(a, i):
    if STAMPS:
        a(f"s_memrealtime {s(80+2*i,2)}")


def lstamp(a, i):
    if STAMPS and not opt("LDST", 0):
        lab = a.label("ls")
        a(f"s_cmp_ge_u32 {s(S_WB)}, 2\ns_cbranch_scc1 {lab}")
        stamp(a, i)
        a(f"{lab}:")


def stamp_flush(a):
    if not STAMPS:
        return
    a("s_waitcnt vmcnt(0) lgkmcnt(0)")
    stamp(a, 10)
    a("s_waitcnt lgkmcnt(0)")
    for i in range(11):
        a(f"v_writelane_b32 v1, {s(80+2*i)}, {i}")
    a(f"s_lshl_b32 s80, s2, 3\ns_add_u32 s80, s80, {s(S_WAVE)}\ns_lshl_b32 s80, s80, 6\ns_add_u32 s80, s80, {WS_STAMP:#x}")
    a("v_lshlrev_b32 v2, 2, v0\ns_mov_b64 exec, 0x7ff")
    a(f"buffer_store_dword v1, v2, {s(R_WS,4)}, s80 offen")
    if opt("DBGST", 0):
        lab = a.label("dbg")
        a(f"s_cmp_lg_u32 s80, {WS_STAMP + opt('DBGW', 0)*64 + 100*512:#x}\ns_cbranch_scc1 {lab}")
        a("s_load_dwordx2 s[84:85], s[0:1], 88\ns_mov_b32 s86, 256\ns_mov_b32 s87, 0x20000\nv_readlane_b32 s82, v1, 0\ns_waitcnt lgkmcnt(0)")
        a("v_subrev_u32 v1, s82, v1")
        a("buffer_store_dword v1, v2, s[84:87], 0 offen")
        a(f"{lab}:")


def prologue(a):
    a(f".globl {KNAME}\n.p2align 8\n.type {KNAME},@function\n{KNAME}:")
    a("s_cmp_ge_u32 s2, 256\ns_cbranch_scc1 L_end")
    table = [(R_X, 0, S*D*2), (R_WG, 56, D*F*2), (R_WU, 64, D*F*2), (R_WS, 96, WS_SIZE), (R_K, 8, S*D*2), (R_V, 16, S*D*2),
             (R_SK, 24, D*8), (R_WD, 72, D*F*2), (R_OUT, 80, S*D*2), (R_H, 32, S*D*2)]
    for r, off, size in table:
        a(f"s_load_dwordx2 {s(r,2)}, s[0:1], {off}")
    a(f"s_load_dwordx2 {s(S_DP,2)}, s[0:1], 40")
    if STAMPS:
        for i in range(1, 11):
            a(f"s_mov_b32 {s(80+2*i)}, 0")
    stamp(a, 0)
    a("v_lshrrev_b32 v1, 6, v0")
    a("v_and_b32 v0, 63, v0")
    a(f"v_readfirstlane_b32 {s(S_WAVE)}, v1")
    for r, off, size in table:
        a(f"s_mov_b32 {s(r+2)}, {size:#x}\ns_mov_b32 {s(r+3)}, 0x20000")
    a.c("x = wg&7, j = wg>>3; GEMM1 tile mi = 8*(x&1) + (j&7), ni = 4*(x>>1) + (j>>3); ti = 16*mi + ni")
    a(f"s_and_b32 {s(S_T0)}, s2, 1\ns_lshl_b32 {s(S_T0)}, {s(S_T0)}, 3")
    a(f"s_bfe_u32 {s(S_T1)}, s2, 0x30003\ns_add_u32 {s(S_MI)}, {s(S_T0)}, {s(S_T1)}")
    a(f"s_bfe_u32 {s(S_T0)}, s2, 0x20001\ns_lshl_b32 {s(S_T0)}, {s(S_T0)}, 2")
    a(f"s_lshr_b32 {s(S_T2)}, s2, 6\ns_add_u32 {s(S_NI)}, {s(S_T0)}, {s(S_T2)}")
    a(f"s_lshl_b32 {s(S_TI)}, {s(S_MI)}, 4\ns_add_u32 {s(S_TI)}, {s(S_TI)}, {s(S_NI)}")
    a.c("first 32-col block fb0 = 3*ni - (ni>>2) - (ni==15); nblk = 2 for ni in {3,7,11,14,15}")
    a(f"s_mul_i32 {s(S_FB0)}, {s(S_NI)}, 3\ns_lshr_b32 {s(S_T0)}, {s(S_NI)}, 2\ns_sub_u32 {s(S_FB0)}, {s(S_FB0)}, {s(S_T0)}")
    a(f"s_cmp_eq_u32 {s(S_NI)}, 15\ns_cselect_b32 {s(S_T0)}, 1, 0\ns_sub_u32 {s(S_FB0)}, {s(S_FB0)}, {s(S_T0)}")
    a(f"s_lshr_b32 {s(S_T0)}, 0xc888, {s(S_NI)}\ns_and_b32 {s(S_T0)}, {s(S_T0)}, 1\ns_sub_u32 {s(S_NBLK)}, 3, {s(S_T0)}")
    a.c("GEMM2 tile mt = 4*x + (j&3), nt = j>>2")
    a(f"s_and_b32 {s(S_T0)}, s2, 7\ns_lshl_b32 {s(S_T0)}, {s(S_T0)}, 2\ns_bfe_u32 {s(S_T1)}, s2, 0x20003\ns_add_u32 {s(S_MT)}, {s(S_T0)}, {s(S_T1)}")
    a(f"s_lshr_b32 {s(S_NT)}, s2, 5")
    a(f"s_and_b32 {s(S_WB)}, {s(S_WAVE)}, 3")
    a.c("GEMM1 DMA lane offsets. x: (l>>3)*1024 + ((l&7) ^ ((4*(w&1) + l>>4)&7))*16 ; W: (l>>2)*2752 + ((l&3) ^ (2*(l>>5)))*16")
    a(f"s_and_b32 {s(S_T0)}, {s(S_WAVE)}, 1\ns_lshl_b32 {s(S_T0)}, {s(S_T0)}, 2")
    a(f"v_lshrrev_b32 v5, 4, v0\nv_add_u32 v5, {s(S_T0)}, v5\nv_and_b32 v6, 7, v0\nv_xor_b32 v5, v5, v6\nv_lshlrev_b32 v5, 4, v5")
    a(f"v_lshrrev_b32 v6, 3, v0\nv_lshl_add_u32 {v(VB_X)}, v6, 10, v5")
    a(f"v_lshrrev_b32 v5, 5, v0\nv_lshlrev_b32 v5, 1, v5\nv_and_b32 v6, 3, v0\nv_xor_b32 v5, v5, v6\nv_lshlrev_b32 v5, 4, v5")
    a(f"v_lshrrev_b32 v6, 2, v0\nv_mul_u32_u24 v6, {F*2}, v6\nv_add_u32 {v(VB_W)}, v6, v5")
    a(f"s_lshl_b32 {s(S_XO)}, {s(S_MI)}, 17\ns_lshl_b32 {s(S_T0)}, {s(S_WB)}, 13\ns_add_u32 {s(S_XO)}, {s(S_XO)}, {s(S_T0)}")
    a(f"s_mul_i32 {s(S_WO)}, {s(S_WB)}, {16*F*2}\ns_lshl_b32 {s(S_T0)}, {s(S_FB0)}, 6\ns_add_u32 {s(S_WO)}, {s(S_WO)}, {s(S_T0)}")
    a(f"s_cmp_eq_u32 {s(S_NBLK)}, 3\ns_cselect_b32 {s(S_WO2)}, {s(S_WO)}, {OOB:#x}")
    a(f"s_lshl_b32 {s(S_M0)}, {s(S_WB)}, 10")


VB_X, VB_W = 14, 15


def poll(a, vaddr, vtmp):
    top, done = a.label("poll"), a.label("poll_ok")
    a(f"s_mov_b32 {s(S_SPIN)}, 0")
    a(f"{top}:")
    a(f"buffer_load_dword {v(vtmp)}, {v(vaddr)}, {s(R_WS,4)}, 0 offen sc1")
    a("s_waitcnt vmcnt(0)")
    a(f"v_cmp_ne_u32 vcc, {s(S_NON)}, {v(vtmp)}")
    a(f"s_cbranch_vccz {done}")
    a("s_sleep 1")
    a(f"s_add_u32 {s(S_SPIN)}, {s(S_SPIN)}, 1\ns_cmp_lt_u32 {s(S_SPIN)}, {SPIN_MAX}\ns_cbranch_scc1 {top}")
    a(f"{done}:")


def poll2_issue(a, vaddr, vt):
    a(f"buffer_load_dwordx2 {v(vt,2)}, {v(vaddr)}, {s(R_WS,4)}, 0 offen sc1")


def poll2_check(a, vaddr, vt):
    top, done = a.label("poll"), a.label("poll_ok")
    a(f"s_mov_b32 {s(S_SPIN)}, 0")
    a(f"{top}:")
    a(f"v_cmp_ne_u32 vcc, {s(S_NON)}, {v(vt)}\nv_cmp_ne_u32 {s(S_EX,2)}, {s(S_NON)}, {v(vt+1)}")
    a(f"s_nop 0\ns_or_b64 vcc, vcc, {s(S_EX,2)}")
    a(f"s_cbranch_scc0 {done}")
    a(f"s_add_u32 {s(S_SPIN)}, {s(S_SPIN)}, 1\ns_cmp_ge_u32 {s(S_SPIN)}, {SPIN_MAX}\ns_cbranch_scc1 {done}")
    a("s_sleep 1")
    poll2_issue(a, vaddr, vt)
    a(f"s_waitcnt vmcnt(0)\ns_branch {top}")
    a(f"{done}:")


class VQ:
    def __init__(self, a):
        self.a, self.q = a, []
    def add(self, tag, n):
        self.q += [tag] * n
    def count(self, *tags):
        last = max((i for i, x in enumerate(self.q) if x in tags), default=-1)
        n = len(self.q) - 1 - last
        assert n <= 63
        return n
    def wait(self, *tags):
        self.a(f"s_waitcnt vmcnt({self.count(*tags)})")


def flag_store(a, soff, vt0, vt1):
    a(f"v_mov_b32 {v(vt0)}, {s(S_NON)}\nv_mov_b32 {v(vt1)}, 0")
    a("s_mov_b64 exec, 1")
    a(f"buffer_store_dword {v(vt0)}, {v(vt1)}, {s(R_WS,4)}, {s(soff)} offen sc1")
    a("s_mov_b64 exec, -1")


def epoch_load(a, vt):
    a(f"v_mov_b32 {v(vt)}, {WS_EP:#x}")
    a(f"buffer_load_dword {v(vt)}, {v(vt)}, {s(R_WS,4)}, 0 offen sc1")


def epoch_take(a, vt):
    a(f"v_readfirstlane_b32 {s(S_NON)}, {v(vt)}")
    a("s_nop 0")
    a(f"s_add_u32 {s(S_NON)}, {s(S_NON)}, {NONCE_INC:#x}")


V_XA0, V_XA1, V_W = 2, 3, 4
V_XC0, V_XC1, V_WC = 7, 8, 9
ACC, F0, F1 = 16, 112, 152
G_ACC, G_WF, G_H = 16, 80, 160
G_L16, G_WD, G_TR, G_TR0, G_TR5, G_FL = 240, 241, 242, 246, 250, 254
NHB, NWF, NSTEP = 5, 5, 11


def acc(u, mat, sb):
    return ACC + ((u * 2 + mat) * 4 + sb) * 4


def g1_reads(fr, step, units):
    out = []
    for u in units:
        if u == 'x':
            for sb in range(4):
                out.append(f"ds_read_b128 {v(fr+4*sb,4)}, {v(V_XC1 if step else V_XC0)} offset:{sb*2048}")
            continue
        for mat in range(2):
            r = fr + 16 + (u * 2 + mat) * 4
            for t in range(2):
                out.append(f"ds_read_b64_tr_b16 {v(r+2*t,2)}, {v(V_WC+u)} offset:{mat*12288+step*2048+t*256}")
    return out


def g1_mfmas(fr, units):
    out = []
    for u in units:
        for mat in range(2):
            for sb in range(4):
                c = acc(u, mat, sb)
                out.append(f"v_mfma_f32_16x16x32_bf16 {v(c,4)}, {v(fr+16+(u*2+mat)*4,4)}, {v(fr+4*sb,4)}, {v(c,4)}")
    return out


def g1_step(a, cur, nxt, nstep):
    for l in interleave(g1_mfmas(cur, [0, 1]), g1_reads(nxt, nstep, ['x', 0, 1, 2]), 0, 1):
        a(l)
    lab = a.label("g1_skip")
    a(f"s_cbranch_vccnz {lab}")
    for l in g1_mfmas(cur, [2]):
        a(l)
    a(f"{lab}:")


def dma_chunk0(a):
    for i in range(4):
        a(f"s_add_u32 m0, {s(S_M0)}, {i*4096}")
        a(f"s_add_u32 {s(S_XO)}, {s(S_XO)}, 32768" if i else "s_nop 0")
        a(f"buffer_load_dwordx4 {v(VB_X)}, {s(R_X,4)}, {s(S_XO)} offen lds")
    for blk in range(3):
        for mat in range(2):
            a(f"s_add_u32 m0, {s(S_M0)}, {16384 + (mat*3+blk)*4096 - 64*blk}")
            a("s_nop 0")
            a(f"buffer_load_dwordx4 {v(VB_W)}, {s(R_WU if mat else R_WG,4)}, {s(S_WO2 if blk == 2 else S_WO)} offen offset:{64*blk} lds")


def pf_x_setup(a, vr, sr):
    a(f"s_and_b32 {s(sr)}, s2, 1\ns_lshl_b32 {s(sr)}, {s(sr)}, 20\ns_lshr_b32 {s(S_T1)}, s2, 3\ns_lshl_b32 {s(S_T1)}, {s(S_T1)}, 15\ns_add_u32 {s(sr)}, {s(sr)}, {s(S_T1)}")
    a(f"v_and_b32 {v(vr)}, 31, v0\nv_lshlrev_b32 {v(vr)}, 10, {v(vr)}\nv_lshrrev_b32 v5, 5, v0\nv_lshl_add_u32 {v(vr)}, v5, 7, {v(vr)}")


def pf_w_setup(a, vr, sr):
    a(f"s_bfe_u32 {s(sr)}, s2, 0x20001\ns_mul_i32 {s(sr)}, {s(sr)}, {11*64}\ns_lshr_b32 {s(S_T1)}, s2, 3\ns_mul_i32 {s(S_T1)}, {s(S_T1)}, {4*F*2}\ns_add_u32 {s(sr)}, {s(sr)}, {s(S_T1)}")
    a(f"v_bfe_u32 {v(vr)}, v0, 3, 2\nv_mul_u32_u24 {v(vr)}, {F*2}, {v(vr)}\nv_and_b32 v5, 7, v0\nv_lshlrev_b32 v5, 7, v5\nv_min_u32 v5, 0x2bc, v5\nv_add_u32 {v(vr)}, {v(vr)}, v5")


def pf_first(a):
    if not opt("PF", 1):
        a("s_waitcnt lgkmcnt(0)")
        return
    l1, l2, l3 = a.label("pf"), a.label("pf"), a.label("pf")
    a(f"s_cmp_lg_u32 {s(S_WAVE)}, 0\ns_cbranch_scc1 {l1}")
    pf_x_setup(a, 10, S_T0)
    a("s_waitcnt lgkmcnt(0)")
    a(f"buffer_load_dword v255, v10, {s(R_X,4)}, {s(S_T0)} offen")
    a(f"s_branch {l3}")
    a(f"{l1}:")
    pf_w_setup(a, 10, S_T0)
    a("s_waitcnt lgkmcnt(0)")
    a("s_mov_b64 exec, 0xffffffff")
    a(f"s_cmp_lg_u32 {s(S_WAVE)}, 1\ns_cbranch_scc1 {l2}")
    a(f"buffer_load_dword v255, v10, {s(R_WG,4)}, {s(S_T0)} offen")
    a(f"{l2}:")
    a(f"s_cmp_lg_u32 {s(S_WAVE)}, 2\ns_cbranch_scc1 {l3}")
    a(f"buffer_load_dword v255, v10, {s(R_WU,4)}, {s(S_T0)} offen")
    a(f"{l3}:")
    a("s_mov_b64 exec, -1")


def pf_pair(a, q, c):
    if not opt("PF", 1):
        return
    l1, l2 = a.label("pf"), a.label("pf")
    a(f"s_cmp_lg_u32 {s(S_SH)}, 0\ns_cbranch_scc1 {l1}")
    a(f"buffer_load_dword v71, v9, {s(R_X,4)}, {s(S_XO)} offen offset:{128*c}")
    a(f"s_branch {l2}")
    a(f"{l1}:")
    a(f"s_add_u32 {s(S_T0)}, {s(S_XO)}, {c*64*F*2}")
    a("s_mov_b64 exec, 0xffffffff")
    a(f"buffer_load_dword v71, v9, {s(R_WG,4)}, {s(S_T0)} offen")
    a(f"buffer_load_dword v71, v9, {s(R_WU,4)}, {s(S_T0)} offen")
    a("s_mov_b64 exec, -1")
    a(f"{l2}:")
    q.add("pf", 1)


def wd_setup(a, first):
    a.c("Wd DMA lane offset: (l>>3)*1024 + ((l&7) ^ (((l>>4)&3)<<1))*16")
    a(f"v_lshrrev_b32 v12, 4, v0\nv_lshlrev_b32 v13, 1, v12\nv_and_b32 v14, 7, v0\nv_xor_b32 v13, v13, v14\nv_lshlrev_b32 v13, 4, v13\nv_lshrrev_b32 v14, 3, v0\nv_lshl_add_u32 {v(G_WD)}, v14, 10, v13")
    a(f"s_lshl_b32 {s(S_KC)}, {s(S_WB)}, 12")
    if opt("ROT", 1):
        a(f"s_and_b32 {s(S_T0)}, {s(S_MT)}, 3\ns_mul_i32 {s(S_T0)}, {s(S_T0)}, 3\ns_mul_i32 {s(S_T1)}, {s(S_NT)}, 7\ns_add_u32 {s(S_T0)}, {s(S_T0)}, {s(S_T1)}")
        a(f"s_mul_i32 {s(S_T1)}, {s(S_T0)}, 187\ns_lshr_b32 {s(S_T1)}, {s(S_T1)}, 11\ns_mul_i32 {s(S_T1)}, {s(S_T1)}, 11\ns_sub_u32 {s(S_T0)}, {s(S_T0)}, {s(S_T1)}")
    else:
        a(f"s_mov_b32 {s(S_T0)}, 0")
    a(f"s_add_u32 {s(S_DK)}, {s(S_T0)}, {first}\ns_sub_u32 {s(S_T1)}, {s(S_DK)}, 11\ns_cmp_ge_u32 {s(S_DK)}, 11\ns_cselect_b32 {s(S_DK)}, {s(S_T1)}, {s(S_DK)}")
    a(f"s_mul_i32 {s(S_DO)}, {s(S_WB)}, {NSTEP*32768}\ns_lshl_b32 {s(S_T1)}, {s(S_NT)}, 7\ns_add_u32 {s(S_DO)}, {s(S_DO)}, {s(S_T1)}")


def g2_setup(a):
    a(f"v_lshlrev_b32 {v(G_L16)}, 4, v0")
    wd_setup(a, 6)
    a(f"s_mov_b32 {s(S_HK)}, {s(S_T0)}")
    a(f"s_cmp_eq_u32 {s(S_WAVE)}, 3\ns_cselect_b32 {s(S_KEND)}, 10, 99")
    a.c("tr address: w*4096 + (l>>2)*128 + ((db ^ ((l>>3)&3))*32) + (l&3)*8")
    a(f"v_lshrrev_b32 v13, 2, v0\nv_lshlrev_b32 v13, 7, v13\nv_and_b32 v15, 3, v0\nv_lshl_add_u32 v13, v15, 3, v13\nv_add_u32 v13, {s(S_KC)}, v13\nv_and_b32 v14, 3, v14")
    for db in range(4):
        a(f"v_xor_b32 v15, {db}, v14\nv_lshl_add_u32 {v(G_TR+db)}, v15, 5, v13\nv_add_u32 {v(G_TR0+db)}, {L_RING0}, {v(G_TR+db)}\nv_add_u32 {v(G_TR5+db)}, 0x10000, {v(G_TR+db)}")
    a(f"s_mul_i32 {s(S_HO)}, {s(S_MT)}, {2*NU*1024}\ns_mul_i32 {s(S_T0)}, {s(S_WAVE)}, {NSTEP*2048}\ns_add_u32 {s(S_HO)}, {s(S_HO)}, {s(S_T0)}")
    a.c("H flags this wave needs: F3[mt*32 + 8w + (l&7)]")
    a(f"s_lshl_b32 {s(S_T0)}, {s(S_MT)}, 2\ns_add_u32 {s(S_T0)}, {s(S_T0)}, {s(S_WAVE)}\ns_lshl_b32 {s(S_T0)}, {s(S_T0)}, 10\ns_add_u32 {s(S_T0)}, {s(S_T0)}, {WS_F3:#x}")
    a(f"v_and_b32 v12, 7, v0\nv_lshlrev_b32 v12, 7, v12\nv_add_u32 {v(G_FL)}, {s(S_T0)}, v12")


def g1_compute(a):
    pf_first(a)
    dma_chunk0(a)
    epoch_load(a, 1)
    a(f"s_and_b32 {s(S_SH)}, {s(S_WAVE)}, 1\ns_lshr_b32 {s(S_UH)}, {s(S_WAVE)}, 1")
    a.c("x fragment address: (64*sh + s16)*128 + ((kg ^ ((s16>>1)&7))*16)")
    a("v_and_b32 v10, 15, v0\nv_lshrrev_b32 v11, 4, v0\nv_lshrrev_b32 v12, 1, v10\nv_xor_b32 v12, v12, v11\nv_lshlrev_b32 v12, 4, v12")
    a(f"v_lshl_add_u32 {v(V_XA0)}, v10, 7, v12\ns_lshl_b32 {s(S_T0)}, {s(S_SH)}, 13\nv_add_u32 {v(V_XA0)}, {s(S_T0)}, {v(V_XA0)}")
    a(f"v_xor_b32 {v(V_XA1)}, 64, {v(V_XA0)}")
    a.c("W fragment address: 16384 + blk*4096 + kg*512 + r*64 + ((h^(kg&1))*32) + c*8")
    a("v_lshlrev_b32 v12, 9, v11\nv_bfe_u32 v13, v0, 2, 2\nv_lshl_add_u32 v12, v13, 6, v12\nv_and_b32 v13, 3, v0\nv_lshl_add_u32 v12, v13, 3, v12")
    a("v_and_b32 v13, 1, v11\nv_lshl_add_u32 v12, v13, 5, v12")
    a(f"s_mul_i32 {s(S_T0)}, {s(S_UH)}, {s(S_NBLK)}")
    for u in range(3):
        a(f"s_add_u32 {s(S_T1)}, {s(S_T0)}, {u}\ns_and_b32 {s(S_T2)}, {s(S_T1)}, 1\ns_lshl_b32 {s(S_T2)}, {s(S_T2)}, 5")
        a(f"s_lshr_b32 {s(S_T1)}, {s(S_T1)}, 1\ns_lshl_b32 {s(S_T1)}, {s(S_T1)}, 12\ns_add_u32 {s(S_T1)}, {s(S_T1)}, 16384")
        a(f"v_xor_b32 {v(V_W+u)}, {s(S_T2)}, v12\nv_add_u32 {v(V_W+u)}, {s(S_T1)}, {v(V_W+u)}")
    g2_setup(a)
    for i in range(48):
        a(f"v_pk_mov_b32 {v(ACC+2*i,2)}, 0, 0")
    for i in range(5):
        a(f"v_mov_b32 {v(V_XC0+i)}, {v(V_XA0+i)}")
    a(f"s_mov_b32 {s(S_IT)}, 0\ns_mov_b32 {s(S_SLOT)}, 0")
    a.c("vcc != 0 marks a two-block tile")
    a(f"s_cmp_eq_u32 {s(S_NBLK)}, 2\ns_cselect_b64 vcc, -1, 0")
    stamp(a, 1)
    a("s_waitcnt vmcnt(0)")
    epoch_take(a, 1)
    a("s_barrier")
    stamp(a, 2)
    for l in g1_reads(F0, 0, ['x', 0, 1, 2]):
        a(l)
    a("s_waitcnt lgkmcnt(0)")
    a("g1_loop:")
    lb = a.label("g1_nb")
    a(f"s_add_u32 {s(S_SLOT)}, {s(S_SLOT)}, {SLOT}\ns_cmp_eq_u32 {s(S_SLOT)}, {NSLOT*SLOT}\ns_cselect_b32 {s(S_SLOT)}, 0, {s(S_SLOT)}")
    a(f"s_add_u32 {s(S_IT)}, {s(S_IT)}, 1")
    g1_step(a, F0, F1, 1)
    a(f"s_cmp_eq_u32 {s(S_IT)}, 8")
    a("s_waitcnt lgkmcnt(0)")
    a(f"s_cbranch_scc1 {lb}")
    a("s_barrier")
    a(f"{lb}:")
    for i in range(5):
        a(f"v_add_u32 {v(V_XC0+i)}, {s(S_SLOT)}, {v(V_XA0+i)}")
    g1_step(a, F1, F0, 0)
    a(f"s_cmp_lt_u32 {s(S_IT)}, 8")
    a("s_waitcnt lgkmcnt(0)")
    a("s_cbranch_scc1 g1_loop")
    stamp(a, 3)
    a("s_barrier")
    stamp(a, 4)


def wd_dma(i):
    sl = i % NRW
    ops = []
    for q in range(4):
        pre = f"s_lshl_b32 {s(S_T3)}, {s(S_DK)}, 15\ns_add_u32 {s(S_T3)}, {s(S_T3)}, {s(S_DO)}\n" if q == 0 else ""
        mid = "s_nop 0" if q == 0 else f"s_add_u32 {s(S_T3)}, {s(S_T3)}, 8192"
        post = f"\ns_add_u32 {s(S_DK)}, {s(S_DK)}, 1\ns_cmp_eq_u32 {s(S_DK)}, 11\ns_cselect_b32 {s(S_DK)}, 0, {s(S_DK)}" if q == 3 else ""
        ops.append(pre + f"s_add_u32 m0, {s(S_KC)}, {(L_RING0 if sl == 0 else (sl-1)*16384) + q*1024}\n{mid}\n"
                   f"buffer_load_dwordx4 {v(G_WD)}, {s(R_WD,4)}, {s(S_T3)} offen lds" + post)
    return ops


def h_loads(i):
    hb = G_H + (i % NHB) * 16
    pre = (f"s_lshl_b32 {s(S_T1)}, {s(S_HK)}, 11\ns_add_u32 {s(S_T1)}, {s(S_T1)}, {s(S_HO)}\n"
           f"s_cmp_eq_u32 {s(S_HK)}, {s(S_KEND)}\ns_cselect_b32 {s(S_T1)}, {OOB:#x}, {s(S_T1)}\n")
    post = f"\ns_add_u32 {s(S_HK)}, {s(S_HK)}, 1\ns_cmp_eq_u32 {s(S_HK)}, 11\ns_cselect_b32 {s(S_HK)}, 0, {s(S_HK)}"
    ld = lambda r, off: f"buffer_load_dwordx4 {v(r,4)}, {v(G_L16)}, {s(R_WS,4)}, {s(S_T1)} offen offset:{off} sc1"
    return [pre + ld(hb, 0), ld(hb+4, 1024), f"s_add_u32 {s(S_T1)}, {s(S_T1)}, {NU*1024}\n" + ld(hb+8, 0), ld(hb+12, 1024) + post]


def g1_epilogue(a):
    VST, VCS, T = 112, 144, 168
    a.c("row constants (m,m,k1,k1,k2,k2,ir2,ir2) and column sums from LDS")
    a(f"v_and_b32 v10, 15, v0\nv_lshlrev_b32 v10, 5, v10\ns_lshl_b32 {s(S_T0)}, {s(S_SH)}, 11\ns_add_u32 {s(S_T0)}, {s(S_T0)}, {L_ST}\nv_add_u32 v10, {s(S_T0)}, v10")
    a(f"s_mul_i32 {s(S_T1)}, {s(S_UH)}, {s(S_NBLK)}\ns_lshl_b32 {s(S_T0)}, {s(S_T1)}, 6\ns_add_u32 {s(S_T0)}, {s(S_T0)}, {L_CS}")
    a(f"v_and_b32 v11, 48, v0\nv_add_u32 v11, {s(S_T0)}, v11")
    for sb in range(4):
        for h in range(2):
            a(f"ds_read_b128 {v(VST+8*sb+4*h,4)}, v10 offset:{sb*512+16*h}")
    for u in range(3):
        for mat in range(2):
            a(f"ds_read_b128 {v(VCS+4*(u*2+mat),4)}, v11 offset:{mat*512+u*64}")
    a.c("HF offset = ((4*mi + 2*sh + pp)*86 + 2*fb0 + uu)*1024 + lane*16")
    a(f"s_lshl_b32 {s(S_T0)}, {s(S_MI)}, 1\ns_add_u32 {s(S_T0)}, {s(S_T0)}, {s(S_SH)}\ns_mul_i32 {s(S_T0)}, {s(S_T0)}, {2*NU}")
    a(f"s_lshl_b32 {s(S_T2)}, {s(S_FB0)}, 1\ns_add_u32 {s(S_T0)}, {s(S_T0)}, {s(S_T2)}\ns_add_u32 {s(S_T0)}, {s(S_T0)}, {s(S_T1)}\ns_lshl_b32 {s(S_T0)}, {s(S_T0)}, 10")
    a(f"s_add_u32 {s(S_T1)}, {s(S_T0)}, {NU*1024}")
    a(f"v_mov_b32 v12, {L_CNT}\nv_mov_b32 v13, 1")
    a("s_waitcnt lgkmcnt(0)")
    lab = a.label("ep_done")
    for u in range(3):
        if u == 2:
            a(f"s_cbranch_vccnz {lab}")
        for pp in range(2):
            o = T + 32 + 4 * pp
            pairs = [(2*pp + (q >> 1), q & 1, T + 8*q) for q in range(4)]
            def each(f):
                for sb, h, t in pairs:
                    g, up, st = acc(u, 0, sb) + 2*h, acc(u, 1, sb) + 2*h, VST + 8*sb
                    cg, cu = VCS + 4*(u*2) + 2*h, VCS + 4*(u*2+1) + 2*h
                    a(f(g, up, st, cg, cu, t))
            each(lambda g, up, st, cg, cu, t: f"v_pk_fma_f32 {v(g,2)}, {v(cg,2)}, {v(st,2)}, {v(g,2)} neg_lo:[0,1,0] neg_hi:[0,1,0]")
            each(lambda g, up, st, cg, cu, t: f"v_pk_mul_f32 {v(t,2)}, {v(g,2)}, {v(g,2)}")
            each(lambda g, up, st, cg, cu, t: f"v_pk_fma_f32 {v(t,2)}, {v(t,2)}, {v(st+4,2)}, {v(st+2,2)}")
            each(lambda g, up, st, cg, cu, t: f"v_pk_mul_f32 {v(t,2)}, {v(t,2)}, {v(g,2)}")
            each(lambda g, up, st, cg, cu, t: f"v_exp_f32 {v(t)}, {v(t)}\nv_exp_f32 {v(t+1)}, {v(t+1)}")
            each(lambda g, up, st, cg, cu, t: f"v_pk_fma_f32 {v(up,2)}, {v(cu,2)}, {v(st,2)}, {v(up,2)} neg_lo:[0,1,0] neg_hi:[0,1,0]")
            each(lambda g, up, st, cg, cu, t: f"v_pk_fma_f32 {v(t,2)}, {v(t,2)}, {v(st+6,2)}, {v(st+6,2)}")
            each(lambda g, up, st, cg, cu, t: f"v_rcp_f32 {v(t)}, {v(t)}\nv_rcp_f32 {v(t+1)}, {v(t+1)}")
            each(lambda g, up, st, cg, cu, t: f"v_pk_mul_f32 {v(g,2)}, {v(g,2)}, {v(up,2)}")
            each(lambda g, up, st, cg, cu, t: f"v_pk_mul_f32 {v(t,2)}, {v(t,2)}, {v(g,2)}")
            for q, (sb, h, t) in enumerate(pairs):
                a(f"v_cvt_pk_bf16_f32 {v(o+q)}, {v(t)}, {v(t+1)}")
            a(f"buffer_store_dwordx4 {v(o,4)}, {v(G_L16)}, {s(R_WS,4)}, {s(S_T1 if pp else S_T0)} offen offset:{u*1024} sc1")
    a(f"{lab}:")
    a.c("release the conv waves")
    a("s_mov_b64 exec, 1\nds_add_u32 v12, v13\ns_mov_b64 exec, -1")
    stamp(a, 5)
    a.c("publish: F3[(2mi + sh)*32 + ni*2 + uh]")
    a(f"s_lshl_b32 {s(S_T0)}, {s(S_MI)}, 1\ns_add_u32 {s(S_T0)}, {s(S_T0)}, {s(S_SH)}\ns_lshl_b32 {s(S_T0)}, {s(S_T0)}, 4\ns_add_u32 {s(S_T0)}, {s(S_T0)}, {s(S_NI)}")
    a(f"s_lshl_b32 {s(S_T0)}, {s(S_T0)}, 1\ns_add_u32 {s(S_T0)}, {s(S_T0)}, {s(S_UH)}\ns_lshl_b32 {s(S_T0)}, {s(S_T0)}, 7\ns_add_u32 {s(S_T0)}, {s(S_T0)}, {WS_F3:#x}")
    a("s_waitcnt vmcnt(0)")
    flag_store(a, S_T0, 10, 11)
    stamp(a, 6)


def g2_tr(i):
    wf = G_WF + (i % NWF) * 16
    sl = i % NRW
    out = []
    for db in range(4):
        for t in range(2):
            if sl in (0, 5):
                out.append(f"ds_read_b64_tr_b16 {v(wf+4*db+2*t,2)}, {v((G_TR5 if sl else G_TR0)+db)} offset:{t*2048}")
            else:
                out.append(f"ds_read_b64_tr_b16 {v(wf+4*db+2*t,2)}, {v(G_TR+db)} offset:{(sl-1)*16384 + t*2048}")
    return out


def g2_swaps(i, p):
    hb = G_H + (i % NHB) * 16
    return [f"v_swap_b32 {v(hb+8*p+2+k)}, {v(hb+8*p+4+k)}" for k in range(2)]


def lds_wait(a, off, target):
    lab = a.label("lw")
    a(f"{lab}:")
    a(f"ds_read_b32 v13, v12 offset:{off}")
    a("s_waitcnt lgkmcnt(0)")
    a(f"v_readfirstlane_b32 {s(S_T0)}, v13")
    a("s_nop 0")
    a(f"s_cmp_lt_u32 {s(S_T0)}, {target}\ns_cbranch_scc1 {lab}")


def g2_main(a):
    a.c("Wd steps 0-5 were staged by waves 4-7; take 0-4 into registers and refill their slots with 6-10")
    lds_wait(a, 4, 4)
    for l in g2_tr(0):
        a(l)
    for i in range(NWF):
        if i + 1 < NWF:
            for l in g2_tr(i + 1):
                a(l)
        a(f"s_waitcnt lgkmcnt({8 if i + 1 < NWF else 0})")
        for op in wd_dma(i + NRW):
            a(op)
    poll(a, G_FL, 10)
    stamp(a, 7)
    q = VQ(a)
    def hq(i):
        q.add(("h", i, 0), 2); q.add(("h", i, 1), 2)
    for i in range(NHB - 1):
        for op in h_loads(i):
            a(op)
        hq(i)
    if opt("G2ST", 0): stamp(a, 1)
    q.wait(("h", 0, 0))
    if opt("G2ST", 0): stamp(a, 2)
    for l in g2_swaps(0, 0):
        a(l)
    a("s_nop 1")
    for i in range(NSTEP):
        if opt("G2ST", 0) and i in (2, 4, 6, 8):
            stamp(a, 2 + i // 2)
        wf, hb = G_WF + (i % NWF) * 16, G_H + (i % NHB) * 16
        ld = h_loads(i + NHB - 1) if i + NHB - 1 < NSTEP else []
        tr = g2_tr(i + 2) if NWF <= i + 2 < NSTEP else []
        n = 0
        for p in range(2):
            for db in range(4):
                for sb in (2*p, 2*p + 1):
                    c = G_ACC + (db * 4 + sb) * 4
                    a(f"v_mfma_f32_16x16x32_bf16 {v(c,4)}, {v(wf+4*db,4)}, {v(hb+4*sb,4)}, {v(c,4) if i else 0}")
                    n += 1
                    if n == 4:
                        q.wait(("h", i, 1))
                        for l in g2_swaps(i, 1):
                            a(l)
                    if n in (1, 5, 8, 11) and ld:
                        a(ld.pop(0))
                        q.add(("h", i + NHB - 1, 0 if len(ld) >= 2 else 1), 1)
                    if 5 <= n <= 12 and tr:
                        a(tr.pop(0))
                    if n == 13 and i + 1 < NSTEP:
                        q.wait(("h", i + 1, 0))
                        for l in g2_swaps(i + 1, 0):
                            a(l)
                        if i + 1 >= NWF:
                            a(f"s_waitcnt lgkmcnt({8 if i + 2 < NSTEP else 0})")
    stamp(a, 8)
    a.c("partial tile -> own ring slots 1..4: sb*16384 + w*4096 + s16*256 + ((4db + g) ^ (s16&7))*16")
    a(f"v_and_b32 v8, 15, v0\nv_lshrrev_b32 v9, 4, v0\nv_and_b32 v10, 7, v0\nv_xor_b32 v9, v9, v10\nv_lshlrev_b32 v9, 4, v9\nv_lshl_add_u32 v8, v8, 8, v9\nv_add_u32 v8, {s(S_KC)}, v8\nv_xor_b32 v9, 64, v8")
    a("s_nop 0")
    for db in range(4):
        for sb in range(4):
            a(f"ds_write_b128 {'v9' if db & 1 else 'v8'}, {v(G_ACC+(db*4+sb)*4,4)} offset:{sb*16384 + (db>>1)*128}")
    a("s_waitcnt lgkmcnt(0)")
    stamp(a, 9)
    a("s_barrier")


def dma_chunk(a):
    a(f"s_add_u32 {s(S_WO)}, {s(S_WO)}, {32*F*2}\ns_add_u32 {s(S_WO2)}, {s(S_WO2)}, {32*F*2}\ns_add_u32 {s(S_XO)}, {s(S_XO)}, 128")
    a(f"s_add_u32 {s(S_SLOT)}, {s(S_SLOT)}, {SLOT}\ns_cmp_eq_u32 {s(S_SLOT)}, {NSLOT*SLOT}\ns_cselect_b32 {s(S_SLOT)}, 0, {s(S_SLOT)}")
    a(f"s_add_u32 {s(S_T3)}, {s(S_SLOT)}, {s(S_M0)}")
    a(f"s_mov_b32 {s(S_T0)}, {s(S_XO)}")
    for i in range(8):
        a(f"s_add_u32 m0, {s(S_T3)}, {i*2048}")
        a(f"s_add_u32 {s(S_T0)}, {s(S_T0)}, 16384" if i else "s_nop 0")
        a(f"buffer_load_dwordx4 {v(VB_X)}, {s(R_X,4)}, {s(S_T0)} offen lds")
    for k2 in range(2):
        if k2:
            a(f"s_add_u32 {s(S_WO)}, {s(S_WO)}, {32*F*2}\ns_add_u32 {s(S_WO2)}, {s(S_WO2)}, {32*F*2}")
        for blk in range(3):
            for mat in range(2):
                a(f"s_add_u32 m0, {s(S_T3)}, {16384 + (mat*3+blk)*4096 + k2*2048 - 64*blk}")
                a("s_nop 0")
                a(f"buffer_load_dwordx4 {v(VB_W)}, {s(R_WU if mat else R_WG,4)}, {s(S_WO2 if blk == 2 else S_WO)} offen offset:{64*blk} lds")


GG = 112


def loader(a):
    a(f"s_add_u32 {s(S_WO)}, {s(S_WO)}, {32*F*2}\ns_add_u32 {s(S_WO2)}, {s(S_WO2)}, {32*F*2}")
    a(f"s_mov_b32 {s(S_SLOT)}, 0\ns_mov_b32 {s(S_IT)}, 1")
    a.c("row-record flags: F1 pairs of tiles 16mi + (l&15)")
    a(f"s_lshl_b32 {s(S_T0)}, {s(S_MI)}, 11\ns_add_u32 {s(S_T0)}, {s(S_T0)}, {WS_F1:#x}\nv_and_b32 v8, 15, v0\nv_lshlrev_b32 v8, 7, v8\nv_add_u32 v8, {s(S_T0)}, v8")
    a("s_waitcnt lgkmcnt(0)")
    epoch_load(a, 1)
    a("ld_loop:")
    def istamp(base):
        if STAMPS and opt("LDST", 0):
            for k, it in enumerate((2, 3, 5)):
                lab = a.label("is")
                a(f"s_cmp_lg_u32 {s(S_IT)}, {it}\ns_cbranch_scc1 {lab}")
                stamp(a, 1 + 2*k + base)
                a(f"{lab}:")
    dma_chunk(a)
    istamp(0)
    a("s_waitcnt vmcnt(20)")
    istamp(1)
    a("s_barrier")
    a(f"s_add_u32 {s(S_IT)}, {s(S_IT)}, 1\ns_cmp_lt_u32 {s(S_IT)}, 8\ns_cbranch_scc1 ld_loop")
    epoch_take(a, 1)
    poll2_issue(a, 8, 198)


def st_gather_issue(a):
    poll2_check(a, 8, 198)
    a(f"s_lshl_b32 {s(S_T0)}, {s(S_MI)}, 1\ns_add_u32 {s(S_T0)}, {s(S_T0)}, {s(S_WB)}\ns_lshl_b32 {s(S_T0)}, {s(S_T0)}, 11\ns_add_u32 {s(S_T0)}, {s(S_T0)}, {WS_ST:#x}")
    a(f"buffer_load_dwordx4 {v(GG,4)}, v4, {s(R_WS,4)}, {s(S_T0)} offen sc1")
    a(f"buffer_load_dwordx4 {v(GG+4,4)}, v4, {s(R_WS,4)}, {s(S_T0)} offen offset:1024 sc1")


def st_gather_finish(a):
    a(f"s_lshl_b32 {s(S_T0)}, {s(S_WB)}, 11\ns_add_u32 {s(S_T0)}, {s(S_T0)}, {L_ST}\nv_add_u32 v8, {s(S_T0)}, v4")
    a(f"ds_write_b128 v8, {v(GG,4)}\nds_write_b128 v8, {v(GG+4,4)} offset:1024")


VS, VKV, VSK = 144, 24, 64
ONE = 192


def round_bf16(a, r):
    a(f"v_cvt_pk_bf16_f32 {v(r)}, {v(r)}, {v(r)}\nv_lshlrev_b32 {v(r)}, 16, {v(r)}")


def stats_loads(a):
    a(f"s_lshl_b32 {s(S_T0)}, {s(S_TI)}, 1\ns_add_u32 {s(S_T0)}, {s(S_T0)}, {s(S_SH)}\ns_lshl_b32 {s(S_T0)}, {s(S_T0)}, 12")
    a("v_bfe_u32 v5, v0, 2, 2\nv_lshlrev_b32 v5, 10, v5\nv_and_b32 v6, 3, v0\nv_lshl_add_u32 v5, v6, 4, v5\nv_lshrrev_b32 v6, 4, v0\nv_lshl_add_u32 v5, v6, 6, v5")
    for r in range(4):
        a(f"buffer_load_dwordx4 {v(VS+4*r,4)}, v5, {s(R_X,4)}, {s(S_T0)} offen offset:{r*256}")


def stats(a):
    G, O, R = 72, 76, 80
    for r in range(4):
        a(f"v_mfma_f32_16x16x32_bf16 {v(G,4)}, {v(VS+4*r,4)}, {v(VS+4*r,4)}, {v(G,4) if r else 0}")
        a(f"v_mfma_f32_16x16x32_bf16 {v(O,4)}, {v(ONE,4)}, {v(VS+4*r,4)}, {v(O,4) if r else 0}")
    a.c("diagonal element of lane (n, g = n>>2) is register n&3")
    a(f"v_and_b32 v6, 3, v0\nv_cmp_eq_u32 vcc, 1, v6\nv_cmp_eq_u32 {s(S_EX,2)}, 2, v6\nv_cmp_eq_u32 {s(S_C+2,2)}, 3, v6")
    a(f"s_lshl_b32 {s(S_T0)}, {s(S_TI)}, 1\ns_add_u32 {s(S_T0)}, {s(S_T0)}, {s(S_SH)}\ns_lshl_b32 {s(S_T0)}, {s(S_T0)}, 7\ns_add_u32 {s(S_T0)}, {s(S_T0)}, {WS_ST:#x}")
    a("v_lshrrev_b32 v5, 4, v0\nv_lshlrev_b32 v5, 5, v5")
    a(f"v_cndmask_b32 {v(G)}, {v(G)}, {v(G+1)}, vcc\nv_cndmask_b32 {v(G)}, {v(G)}, {v(G+2)}, {s(S_EX,2)}\nv_cndmask_b32 {v(G)}, {v(G)}, {v(G+3)}, {s(S_C+2,2)}")
    for qp in ("[1,0,3,2]", "[2,3,0,1]"):
        a("s_nop 0")
        a(f"v_add_f32_dpp {v(O)}, {v(O)}, {v(O)} quad_perm:{qp} row_mask:0xf bank_mask:0xf")
        a(f"v_add_f32_dpp {v(G)}, {v(G)}, {v(G)} quad_perm:{qp} row_mask:0xf bank_mask:0xf")
    M, K1, K2, I2 = R, R + 2, R + 4, R + 6
    a(f"v_mul_f32 {v(M)}, {f32bits(1/512):#x}, {v(O)}\nv_mul_f32 {v(K2)}, {f32bits(1/512):#x}, {v(G)}")
    a(f"v_fma_f32 {v(K2)}, -{v(M)}, {v(M)}, {v(K2)}\nv_max_f32 {v(K2)}, 0, {v(K2)}")
    round_bf16(a, M)
    round_bf16(a, K2)
    a(f"v_add_f32 {v(K2)}, {f32bits(1e-5):#x}, {v(K2)}")
    round_bf16(a, K2)
    a(f"v_sqrt_f32 {v(K2)}, {v(K2)}\nv_mov_b32 {v(M+1)}, {v(M)}")
    round_bf16(a, K2)
    a(f"v_rcp_f32 {v(K1)}, {v(K2)}\nv_mul_f32 {v(I2)}, {v(K2)}, {v(K2)}")
    a(f"v_mul_f32 {v(K2)}, {v(K1)}, {v(K1)}\nv_mul_f32 {v(K2)}, {v(K2)}, {v(K1)}")
    a(f"v_mul_f32 {v(K2)}, {f32bits(C2):#x}, {v(K2)}\nv_mul_f32 {v(K1)}, {f32bits(C1):#x}, {v(K1)}")
    a(f"v_mov_b32 {v(I2+1)}, {v(I2)}\nv_mov_b32 {v(K2+1)}, {v(K2)}\nv_mov_b32 {v(K1+1)}, {v(K1)}")
    a.c("row g is complete in lane 20g")
    a(f"s_mov_b32 {s(S_EX)}, 0x00100001\ns_mov_b32 {s(S_EX+1)}, 0x10000100\ns_mov_b64 exec, {s(S_EX,2)}")
    a(f"buffer_store_dwordx4 {v(R,4)}, v5, {s(R_WS,4)}, {s(S_T0)} offen sc1")
    a(f"buffer_store_dwordx4 {v(R+4,4)}, v5, {s(R_WS,4)}, {s(S_T0)} offen offset:16 sc1")
    a("s_mov_b64 exec, -1")


def kv_loads(a):
    a(f"s_lshr_b32 {s(S_T0)}, {s(S_TI)}, 3\ns_lshl_b32 {s(S_T0)}, {s(S_T0)}, 1\ns_add_u32 {s(S_T0)}, {s(S_T0)}, {s(S_SH)}\ns_lshl_b32 {s(S_T0)}, {s(S_T0)}, 15")
    a(f"s_and_b32 {s(S_T1)}, {s(S_TI)}, 7\ns_lshl_b32 {s(S_T2)}, {s(S_T1)}, 7\ns_add_u32 {s(S_T0)}, {s(S_T0)}, {s(S_T2)}")
    a("v_lshrrev_b32 v5, 5, v0\nv_lshlrev_b32 v5, 13, v5\nv_and_b32 v6, 31, v0\nv_lshl_add_u32 v5, v6, 2, v5")
    a(f"v_add_u32 v69, {s(S_T0)}, v5")
    a.c("halo: the 3 rows above; out of range (zero) at the start of the sequence")
    a("v_subrev_u32 v7, 0xc00, v69\nv_cmp_gt_u32 vcc, 0xc00, v69\nv_mov_b32 v68, 0x7ff00000\ns_nop 1\nv_cndmask_b32 v7, v7, v68, vcc")
    a(f"s_lshl_b32 {s(S_T1)}, {s(S_T1)}, 9\nv_lshlrev_b32 v6, 4, v6")
    a(f"buffer_load_dwordx4 {v(VSK,4)}, v6, {s(R_SK,4)}, {s(S_T1)} offen")


def kv_loads2(a, ps):
    b = VKV + 19 * ps
    a(f"s_mov_b32 {s(S_T1)}, {ps*16384}\ns_mov_b32 {s(S_T2)}, {ps*16384 + 4096}\ns_mov_b32 {s(S_T3)}, {16384 - 3072}")
    for i in range(3):
        if ps == 0:
            a(f"buffer_load_dword {v(b+i)}, v7, {s(R_K,4)}, 0 offen offset:{i*1024}")
        else:
            a(f"buffer_load_dword {v(b+i)}, v69, {s(R_K,4)}, {s(S_T3)} offen offset:{i*1024}")
    for i in range(8):
        a(f"buffer_load_dword {v(b+3+i)}, v69, {s(R_K,4)}, {s(S_T2 if i >= 4 else S_T1)} offen offset:{(i%4)*1024}")
    for i in range(8):
        a(f"buffer_load_dword {v(b+11+i)}, v69, {s(R_V,4)}, {s(S_T2 if i >= 4 else S_T1)} offen offset:{(i%4)*1024}")


KU, VU, KW, KO, KT = 72, 94, 110, 120, 128


def kv_taps(a):
    for j in range(4):
        for ch in range(2):
            src = VSK + 2*ch + (j >> 1)
            a(f"v_and_b32 {v(KW+2*j+ch)}, {s(S_C)}, {v(src)}" if j & 1 else f"v_lshlrev_b32 {v(KW+2*j+ch)}, 16, {v(src)}")
    a.c("KVT row = 2*(l&31) + ch, 16-B piece = 3 - (2*pass + l>>5)")
    a(f"v_and_b32 v70, 31, v0\nv_mul_u32_u24 v70, {2*KVT_STR}, v70\nv_lshrrev_b32 v5, 5, v0\nv_lshlrev_b32 v5, 4, v5\nv_sub_u32 v70, v70, v5")
    a(f"s_mul_i32 {s(S_T0)}, {s(S_SH)}, {64*KVT_STR}\ns_add_u32 {s(S_T0)}, {s(S_T0)}, {L_KVT + 16}\nv_add_u32 v70, {s(S_T0)}, v70")


def kv_compute(ps):
    b = VKV + 19 * ps
    o = []
    for i in range(11):
        o += [f"v_lshlrev_b32 {v(KU+2*i)}, 16, {v(b+i)}", f"v_and_b32 {v(KU+2*i+1)}, {s(S_C)}, {v(b+i)}"]
    for e in range(16):
        o.append(f"v_mul_f32 {v(KT+e)}, {v(KU+e)}, {v(KW+6+(e&1))}")
    for j in (2, 1, 0):
        for e in range(16):
            o.append(f"v_fmac_f32 {v(KT+e)}, {v(KU+e+2*(3-j))}, {v(KW+2*j+(e&1))}")
    for i in range(8):
        o += [f"v_lshlrev_b32 {v(VU+2*i)}, 16, {v(b+11+i)}", f"v_and_b32 {v(VU+2*i+1)}, {s(S_C)}, {v(b+11+i)}"]
    for e in range(16):
        o.append(f"v_mul_f32 {v(KT+e)}, {v(KT+e)}, {v(VU+e)}")
    for ch in range(2):
        for i in range(4):
            o.append(f"v_cvt_pk_bf16_f32 {v(KO+4*ch+i)}, {v(KT+2*(7-2*i)+ch)}, {v(KT+2*(6-2*i)+ch)}")
    o += [f"ds_write_b128 v70, {v(KO,4)} offset:{32*(1-ps)}", f"ds_write_b128 v70, {v(KO+4,4)} offset:{32*(1-ps) + KVT_STR}"]
    return o


def kv_store(a):
    a(f"v_lshrrev_b32 v5, 2, v0\nv_and_b32 v6, 3, v0\nv_lshlrev_b32 v6, 4, v6\nv_mul_u32_u24 v7, {KVT_STR}, v5\nv_add_u32 v7, v7, v6")
    a(f"s_mul_i32 {s(S_T0)}, {s(S_SH)}, {64*KVT_STR}\ns_add_u32 {s(S_T0)}, {s(S_T0)}, {L_KVT}\nv_add_u32 v7, {s(S_T0)}, v7")
    a("s_waitcnt lgkmcnt(0)")
    for i in range(4):
        a(f"ds_read_b128 {v(24+4*i,4)}, v7 offset:{16*i*KVT_STR}")
    a("v_lshl_add_u32 v5, v5, 12, v6")
    a(f"s_and_b32 {s(S_T0)}, {s(S_TI)}, 7\ns_lshl_b32 {s(S_T0)}, {s(S_T0)}, 18")
    a(f"s_lshr_b32 {s(S_T1)}, {s(S_TI)}, 3\ns_lshl_b32 {s(S_T1)}, {s(S_T1)}, 1\ns_add_u32 {s(S_T1)}, {s(S_T1)}, {s(S_SH)}\ns_lshl_b32 {s(S_T1)}, {s(S_T1)}, 6")
    a(f"s_sub_u32 {s(S_T0)}, {s(S_T0)}, {s(S_T1)}\ns_add_u32 {s(S_T0)}, {s(S_T0)}, {WS_KVR + 4096 - 64:#x}")
    for i in range(4):
        a(f"s_waitcnt lgkmcnt({3-i})")
        a(f"buffer_store_dwordx4 {v(24+4*i,4)}, v5, {s(R_WS,4)}, {s(S_T0)} offen sc1")
        a(f"s_add_u32 {s(S_T0)}, {s(S_T0)}, 65536")


def cs_loads(a):
    a(f"s_mul_i32 {s(S_T0)}, {s(S_MI)}, {32*F*2}\ns_lshl_b32 {s(S_T1)}, {s(S_FB0)}, 6\ns_add_u32 {s(S_T0)}, {s(S_T0)}, {s(S_T1)}\ns_add_u32 {s(S_T1)}, {s(S_T0)}, {16*F*2}")
    a(f"s_mul_i32 {s(S_M0)}, {s(S_SH)}, 6144\ns_add_u32 {s(S_M0)}, {s(S_M0)}, {L_CSS}")
    l1, l2 = a.label("cs"), a.label("cs")
    a(f"s_cmp_lg_u32 {s(S_SH)}, 0\ns_cbranch_scc1 {l1}")
    for r in (R_WG, R_WU):
        for blk in range(3):
            for k2 in range(2):
                a(f"s_add_u32 m0, {s(S_M0)}, {blk*2048 + k2*1024 - 64*blk}\ns_nop 0")
                a(f"buffer_load_dwordx4 {v(VB_W)}, {s(r,4)}, {s(S_T1 if k2 else S_T0)} offen offset:{64*blk} lds")
        a(f"s_branch {l2}\n{l1}:" if r == R_WG else f"{l2}:")


def colsum(a):
    W, O = 144, 168
    a("v_lshrrev_b32 v5, 4, v0\nv_lshlrev_b32 v6, 9, v5\nv_bfe_u32 v7, v0, 2, 2\nv_lshl_add_u32 v6, v7, 6, v6\nv_and_b32 v7, 3, v0\nv_lshl_add_u32 v6, v7, 3, v6")
    a(f"v_and_b32 v7, 1, v5\nv_lshl_add_u32 v6, v7, 5, v6\nv_add_u32 v6, {s(S_M0)}, v6\nv_xor_b32 v7, 32, v6")
    for u in range(6):
        for tt in range(2):
            a(f"ds_read_b64_tr_b16 {v(W+4*u+2*tt,2)}, {'v7' if u & 1 else 'v6'} offset:{(u>>1)*2048 + tt*256}")
    a.c("CSP offset = ((ni*2 + hw)*16 + mi)*384 + u*64 + g*16")
    a(f"s_lshl_b32 {s(S_T0)}, {s(S_NI)}, 1\ns_add_u32 {s(S_T0)}, {s(S_T0)}, {s(S_SH)}\ns_lshl_b32 {s(S_T0)}, {s(S_T0)}, 4\ns_add_u32 {s(S_T0)}, {s(S_T0)}, {s(S_MI)}")
    a(f"s_mul_i32 {s(S_T0)}, {s(S_T0)}, 384\ns_add_u32 {s(S_T0)}, {s(S_T0)}, {WS_CSP:#x}")
    a("v_and_b32 v5, 48, v0")
    a("s_waitcnt lgkmcnt(0)")
    for u in range(6):
        a(f"v_mfma_f32_16x16x32_bf16 {v(O+4*u,4)}, {v(W+4*u,4)}, {v(ONE,4)}, 0")
    a(f"s_mov_b32 {s(S_EX)}, 0x00010001\ns_mov_b32 {s(S_EX+1)}, 0x00010001\ns_nop 5\ns_mov_b64 exec, {s(S_EX,2)}")
    for u in range(6):
        a(f"buffer_store_dwordx4 {v(O+4*u,4)}, v5, {s(R_WS,4)}, {s(S_T0)} offen offset:{u*64} sc1")
    a("s_mov_b64 exec, -1")


def hflag(a, base):
    a(f"s_lshl_b32 {s(S_T0)}, {s(S_TI)}, 7\ns_lshl_b32 {s(S_T1)}, {s(S_SH)}, 2\ns_add_u32 {s(S_T0)}, {s(S_T0)}, {s(S_T1)}\ns_add_u32 {s(S_T0)}, {s(S_T0)}, {base:#x}")
    flag_store(a, S_T0, 196, 197)


CG = 144


def cs_gather_issue(a):
    a(f"s_lshl_b32 {s(S_T0)}, {s(S_NI)}, 1\ns_add_u32 {s(S_T0)}, {s(S_T0)}, {s(S_SH)}\ns_mul_i32 {s(S_T0)}, {s(S_T0)}, 6144\ns_add_u32 {s(S_T0)}, {s(S_T0)}, {WS_CSP:#x}")
    a("v_and_b32 v5, 31, v0\nv_lshlrev_b32 v5, 4, v5\nv_lshrrev_b32 v6, 5, v0\nv_mul_u32_u24 v6, 3072, v6\nv_add_u32 v6, v5, v6")
    for i in range(8):
        a(f"buffer_load_dwordx4 {v(CG+4*i,4)}, v6, {s(R_WS,4)}, {s(S_T0)} offen offset:{i*384} sc1")


def cs_gather_finish(a):
    n = 8
    while n > 1:
        n //= 2
        for i in range(4 * n):
            a(f"v_add_f32 {v(CG+i)}, {v(CG+i)}, {v(CG+4*n+i)}")
    for i in range(4):
        a(f"v_mov_b32 {v(CG+4+i)}, {v(CG+i)}")
    a(f"s_lshl_b32 {s(S_T0)}, {s(S_SH)}, 9\ns_add_u32 {s(S_T0)}, {s(S_T0)}, {L_CS}\nv_and_b32 v8, 31, v0\nv_lshlrev_b32 v8, 4, v8\nv_add_u32 v8, {s(S_T0)}, v8")
    for i in range(4):
        a(f"v_permlane32_swap_b32 {v(CG+i)}, {v(CG+4+i)}")
    a("s_nop 0")
    for i in range(4):
        a(f"v_add_f32 {v(CG+i)}, {v(CG+i)}, {v(CG+4+i)}")
    a(f"ds_write_b128 v8, {v(CG,4)}")


def helper(a):
    q = VQ(a)
    a(f"s_sub_u32 {s(S_SH)}, {s(S_WB)}, 2")
    a(f"s_mov_b32 {s(S_C)}, 0xffff0000")
    a(f"v_mov_b32 v5, {L_CNT}\nv_mov_b32 v6, 0\nv_mov_b32 v7, 0\nds_write_b64 v5, v[6:7]")
    l1, l2 = a.label("pf"), a.label("pf")
    a(f"s_cmp_lg_u32 {s(S_SH)}, 0\ns_cbranch_scc1 {l1}")
    pf_x_setup(a, 9, S_XO)
    a(f"s_branch {l2}\n{l1}:")
    pf_w_setup(a, 9, S_XO)
    a(f"{l2}:")
    a("s_waitcnt lgkmcnt(0)")
    epoch_load(a, 1); q.add("e", 1)
    pf_pair(a, q, 2)
    for i in range(4):
        a(f"v_mov_b32 {v(ONE+i)}, 0x3f803f80")
    a.c("column-sum flags: F1 pairs of tiles 16*(l&15) + ni")
    a(f"s_lshl_b32 {s(S_T0)}, {s(S_NI)}, 7\ns_add_u32 {s(S_T0)}, {s(S_T0)}, {WS_F1:#x}\nv_and_b32 v8, 15, v0\nv_lshlrev_b32 v8, 11, v8\nv_add_u32 v8, {s(S_T0)}, v8")
    q.wait("e")
    pf_pair(a, q, 4)
    epoch_take(a, 1)
    a("s_barrier")
    stamp(a, 1)
    pf_pair(a, q, 6)
    stats_loads(a); q.add("s", 4)
    cs_loads(a); q.add("csd", 6)
    a("s_barrier")
    stamp(a, 2)
    kv_loads(a); q.add("sk", 1)
    kv_loads2(a, 0); q.add("kv0", 19)
    kv_loads2(a, 1); q.add("kv1", 19)
    a(f"s_lshl_b32 {s(S_T0)}, {s(S_TI)}, 13\nv_lshlrev_b32 v5, 7, v0")
    a(f"buffer_load_dword v71, v5, {s(R_H,4)}, {s(S_T0)} offen"); q.add("pf", 1)
    a("s_barrier")
    stamp(a, 3)
    q.wait("s", "csd")
    stats(a); q.add("st", 2)
    colsum(a); q.add("st", 6)
    a("s_barrier")
    stamp(a, 4)
    w = kv_compute(0) + kv_compute(1)
    q.wait("kv1")
    kv_taps(a)
    for l in w[:76]:
        a(l)
    a("s_barrier")
    stamp(a, 5)
    q.wait("st")
    hflag(a, WS_F1); q.add("f", 1)
    for l in w[76:166]:
        a(l)
    a("s_barrier")
    stamp(a, 6)
    for l in w[166:]:
        a(l)
    a("s_barrier")
    kv_store(a)
    poll2_issue(a, 8, 198)


C_ACC, C_F0, C_F1 = 16, 48, 112
C_AA, C_BA, C_CNT, C_ONE = 2, 3, 5, 11


def bsync(a, n=4):
    lab = a.label("bs")
    a(f"s_add_u32 {s(S_CNT)}, {s(S_CNT)}, {n}")
    a("s_waitcnt lgkmcnt(0)")
    a("s_mov_b64 exec, 1")
    a(f"ds_add_u32 {v(C_CNT)}, {v(C_ONE)}")
    a("s_mov_b64 exec, -1")
    a(f"{lab}:")
    a(f"ds_read_b32 v6, {v(C_CNT)}")
    a("s_waitcnt lgkmcnt(0)")
    a(f"v_readfirstlane_b32 {s(S_T0)}, v6")
    a("s_nop 0")
    a(f"s_cmp_lt_u32 {s(S_T0)}, {s(S_CNT)}\ns_cbranch_scc1 {lab}")


def conv_reads(fr, roff):
    out = []
    for p in range(8):
        out.append(f"ds_read_b128 {v(fr+4*p,4)}, {v(C_AA)} offset:{512*p + roff}")
        out.append(f"ds_read_b64 {v(fr+32+4*p,2)}, {v(C_BA)} offset:{512*(7-p) + roff}")
        out.append(f"ds_read_b64 {v(fr+32+4*p+2,2)}, {v(C_BA)} offset:{512*(7-p) + roff + 8}")
    return out


def conv_mfmas(fr, first):
    out = []
    for tot in range(8):
        for p in range(tot + 1):
            q = tot - p
            out.append((max(p, q), f"v_mfma_f32_16x16x32_bf16 {v(C_ACC+4*tot,4)}, {v(fr+4*p,4)}, {v(fr+32+4*q,4)}, ", C_ACC + 4*tot))
    out.sort(key=lambda t: t[0])
    res, seen = [], set()
    for _, txt, c in out:
        res.append(txt + ("0" if first and c not in seen else v(c, 4)))
        seen.add(c)
    return res


HR = 48


def conv_h_loads(a):
    a(f"s_lshr_b32 {s(S_T0)}, {s(S_WB)}, 1\ns_and_b32 {s(S_T1)}, {s(S_WB)}, 1")
    a(f"s_lshl_b32 {s(S_HO)}, {s(S_TI)}, 1\ns_add_u32 {s(S_HO)}, {s(S_HO)}, {s(S_T0)}\ns_lshl_b32 {s(S_HO)}, {s(S_HO)}, 12")
    a(f"s_mul_i32 {s(S_RING)}, {s(S_T0)}, {CH_STR}\ns_add_u32 {s(S_RING)}, {s(S_RING)}, {L_CONV}")
    a(f"s_lshl_b32 {s(S_T1)}, {s(S_T1)}, 11")
    a(f"v_add_u32 v7, {s(S_T1)}, v4\nv_subrev_u32 v9, 8, v7\nv_add_u32 v10, 1016, v7")
    a(f"s_lshl_b32 {s(S_T3)}, {s(S_TI)}, 2\ns_load_dword {s(S_C+2)}, {s(S_DP,2)}, {s(S_T3)}")
    a(f"buffer_load_dwordx2 {v(HR,2)}, v9, {s(R_H,4)}, {s(S_HO)} offen")
    a(f"buffer_load_dwordx4 {v(HR+2,4)}, v7, {s(R_H,4)}, {s(S_HO)} offen")
    a(f"buffer_load_dwordx2 {v(HR+6,2)}, v10, {s(R_H,4)}, {s(S_HO)} offen")
    a(f"buffer_load_dwordx4 {v(HR+8,4)}, v7, {s(R_H,4)}, {s(S_HO)} offen offset:1024")


def conv_h_stage(a):
    a.c("zero pads: 384 B in front of each h copy (two copies per wave), 128 B behind u")
    for i in range(4):
        a(f"v_mov_b32 {v(100+i)}, 0")
    a(f"s_and_b32 {s(S_T0)}, {s(S_WB)}, 1\ns_mul_i32 {s(S_T0)}, {s(S_T0)}, {2*HSTR}\ns_add_u32 {s(S_T0)}, {s(S_T0)}, {s(S_RING)}")
    a(f"v_add_u32 v6, {s(S_T0)}, v4\nv_add_u32 v9, {s(S_RING)}, v4\nv_add_u32 v10, {s(S_RING)}, v7")
    a("s_mov_b64 exec, 0xffffff")
    a(f"ds_write_b128 v6, {v(100,4)}\nds_write_b128 v6, {v(100,4)} offset:{HSTR}")
    a("s_mov_b64 exec, 0xff")
    a(f"ds_write_b128 v9, {v(100,4)} offset:{4*HSTR + 4096}")
    a("s_mov_b64 exec, -1")
    T = 72
    for h in range(2):
        r = HR + 6 * h
        for i in range(4):
            a(f"v_alignbit_b32 {v(T+i)}, {v(r+2+i)}, {v(r+1+i)}, 16")
        for i in range(4):
            a(f"v_mov_b32 {v(T+4+i)}, {v(r+1+i)}")
        for i in range(4):
            a(f"v_alignbit_b32 {v(T+8+i)}, {v(r+1+i)}, {v(r+i)}, 16")
        a(f"ds_write_b128 v10, {v(r+2,4)} offset:{384 + 1024*h}")
        for p in range(1, 4):
            a(f"ds_write_b128 v10, {v(T+4*(p-1),4)} offset:{p*HSTR + 384 + 1024*h}")
        T += 12


def u_poll_issue(a):
    a.c("F2 pairs of the 16 row tiles behind this half of u: tiles 8*(16*(1-(wb&1)) + (l&15)) + (ti>>5)")
    a(f"s_lshr_b32 {s(S_T0)}, {s(S_TI)}, 5\ns_lshl_b32 {s(S_T0)}, {s(S_T0)}, 7\ns_and_b32 {s(S_T1)}, {s(S_WB)}, 1\ns_lshl_b32 {s(S_T1)}, {s(S_T1)}, 14")
    a(f"s_sub_u32 {s(S_T0)}, {s(S_T0)}, {s(S_T1)}\ns_add_u32 {s(S_T0)}, {s(S_T0)}, {WS_F2 + 16*1024:#x}")
    a(f"v_and_b32 v15, 15, v0\nv_lshlrev_b32 v15, 10, v15\nv_add_u32 v15, {s(S_T0)}, v15")
    poll2_issue(a, 15, 198)


def u_fetch(a):
    poll2_check(a, 15, 198)
    a(f"s_add_u32 {s(S_T2)}, {s(S_HO)}, {WS_KVR:#x}")
    a(f"buffer_load_dwordx4 {v(104,4)}, v7, {s(R_WS,4)}, {s(S_T2)} offen sc1")
    a(f"buffer_load_dwordx4 {v(108,4)}, v7, {s(R_WS,4)}, {s(S_T2)} offen offset:1024 sc1")
    for i in (3, 4, 5):
        for op in wd_dma(i):
            a(op)
    final_loads(a)
    a("s_waitcnt vmcnt(14)")
    a(f"ds_write_b128 v10, {v(104,4)} offset:{4*HSTR}\nds_write_b128 v10, {v(108,4)} offset:{4*HSTR + 1024}")


def conv_main(a):
    for l in conv_reads(C_F0, 0):
        a(l)
    for r in range(4):
        cur, nxt = (C_F0, C_F1) if r % 2 == 0 else (C_F1, C_F0)
        a("s_waitcnt lgkmcnt(0)")
        if r < 3:
            rd = conv_reads(nxt, 64 * (r + 1))
        else:
            rd = [f"ds_read_b64 {v(48+4*t+2*c,2)}, v10 offset:{c*CH_STR + 512*(1-t)}" for t in range(2) for c in range(2)]
        for l in interleave(conv_mfmas(cur, r == 0), rd, 0, 1):
            a(l)
        if r == 0:
            a.c("the Wd steps this wave staged have landed: tell the compute waves")
            a("s_waitcnt vmcnt(2)")
            a(f"s_mov_b64 exec, 1\nds_add_u32 {v(C_CNT)}, {v(C_ONE)} offset:4\ns_mov_b64 exec, -1")
    lstamp(a, 5)
    bsync(a)
    for t in range(8):
        a(f"ds_write_b128 v8, {v(C_ACC+4*t,4)} offset:{t*1024}")
    U, UU, X = 48, 56, 112
    for t in range(2):
        for c in range(2):
            u, o = U + 4*t + 2*c, UU + 8*t + 4*c
            a(f"v_and_b32 {v(o)}, {s(S_C)}, {v(u+1)}\nv_lshlrev_b32 {v(o+1)}, 16, {v(u+1)}\nv_and_b32 {v(o+2)}, {s(S_C)}, {v(u)}\nv_lshlrev_b32 {v(o+3)}, 16, {v(u)}")
    a(f"s_lshl_b32 {s(S_C+3)}, {s(S_C+2)}, 16\ns_and_b32 {s(S_C+2)}, {s(S_C+2)}, 0xffff0000")
    for t in range(2):
        for c in range(2):
            for j in range(4):
                a(f"v_mul_f32 {v(UU+8*t+4*c+j)}, {s(S_C+3-c)}, {v(UU+8*t+4*c+j)}")
    bsync(a)
    for t in range(2):
        for w in range(4):
            a(f"ds_read_b128 {v(X+16*t+4*w,4)}, v9 offset:{w*8192 + t*1024}")
    a(f"s_lshl_b32 {s(S_T0)}, {s(S_TI)}, 13\ns_lshl_b32 {s(S_T1)}, {s(S_WB)}, 11\ns_add_u32 {s(S_T0)}, {s(S_T0)}, {s(S_T1)}\ns_add_u32 {s(S_T0)}, {s(S_T0)}, {WS_Y2:#x}")
    for t in range(2):
        a(f"s_waitcnt lgkmcnt({4*(1-t)})")
        for c in range(2):
            x0, o = X + 16*t + 8*c, UU + 8*t + 4*c
            for j in range(4):
                a(f"v_add_f32 {v(o+j)}, {v(o+j)}, {v(x0+j)}")
            for j in range(4):
                a(f"v_add_f32 {v(o+j)}, {v(o+j)}, {v(x0+4+j)}")
        for j in range(4):
            a(f"v_cvt_pk_bf16_f32 {v(144+4*t+j)}, {v(UU+8*t+j)}, {v(UU+8*t+4+j)}")
        a(f"buffer_store_dwordx4 {v(144+4*t,4)}, v4, {s(R_WS,4)}, {s(S_T0)} offen offset:{t*1024} sc1")


def conv_addr(a):
    a.c("A address: base + (3-(m&3))*HSTR + 128*(m>>2) + 16*kg + 256*rh ; B address: ubase + 120 - 8n + 16kg + 256*rh")
    a(f"s_and_b32 {s(S_T0)}, {s(S_WB)}, 1\ns_lshl_b32 {s(S_T0)}, {s(S_T0)}, 8\ns_add_u32 {s(S_T0)}, {s(S_T0)}, {s(S_RING)}")
    a(f"v_and_b32 v6, 3, v0\nv_sub_u32 v6, 3, v6\nv_mul_u32_u24 v6, {HSTR}, v6\nv_bfe_u32 v7, v0, 2, 2\nv_lshl_add_u32 v6, v7, 7, v6")
    a(f"v_and_b32 v7, 48, v0\nv_add3_u32 {v(C_AA)}, v6, v7, {s(S_T0)}")
    a(f"v_and_b32 v6, 15, v0\nv_lshlrev_b32 v6, 3, v6\nv_sub_u32 v6, v7, v6\ns_add_u32 {s(S_T0)}, {s(S_T0)}, {4*HSTR + 120}\nv_add_u32 {v(C_BA)}, {s(S_T0)}, v6")
    a(f"s_lshl_b32 {s(S_T0)}, {s(S_WB)}, 13\ns_add_u32 {s(S_T0)}, {s(S_T0)}, {L_XCH}\nv_add_u32 v8, {s(S_T0)}, v4")
    a(f"s_lshl_b32 {s(S_T0)}, {s(S_WB)}, 11\ns_add_u32 {s(S_T0)}, {s(S_T0)}, {L_XCH}\nv_add_u32 v9, {s(S_T0)}, v4")
    a.c("u for the skip term: ubase_c + 2*(2044 - 256T - 4l), T = 2wb + t")
    a(f"s_lshl_b32 {s(S_T0)}, {s(S_WB)}, 10\ns_sub_u32 {s(S_T0)}, {L_CONV + 4*HSTR + 4088 - 512}, {s(S_T0)}\nv_lshlrev_b32 v10, 3, v0\nv_sub_u32 v10, {s(S_T0)}, v10")
    a(f"v_mov_b32 {v(C_CNT)}, {L_CNT}\nv_mov_b32 {v(C_ONE)}, 1\ns_mov_b32 {s(S_CNT)}, 0\ns_mov_b32 {s(S_C)}, 0xffff0000")


def final_loads(a):
    a(f"s_lshl_b32 {s(S_T0)}, {s(S_MT)}, 2\ns_add_u32 {s(S_T0)}, {s(S_T0)}, {s(S_WB)}\ns_lshl_b32 {s(S_T1)}, {s(S_T0)}, 14\ns_lshl_b32 {s(S_T2)}, {s(S_NT)}, 7\ns_add_u32 {s(S_XO)}, {s(S_T1)}, {s(S_T2)}")
    a(f"s_add_u32 {s(S_WO)}, {s(S_XO)}, 8192")
    a("v_lshrrev_b32 v12, 3, v0\nv_and_b32 v13, 7, v0\nv_lshlrev_b32 v14, 4, v13\nv_lshl_add_u32 v14, v12, 10, v14\nv_lshlrev_b32 v15, 5, v12")
    a(f"buffer_load_dwordx4 {v(176,4)}, v14, {s(R_X,4)}, {s(S_XO)} offen")
    a(f"buffer_load_dwordx4 {v(180,4)}, v14, {s(R_X,4)}, {s(S_WO)} offen")


def final(a):
    a.c("publish F4[wb*256 + ti]; wait for F4[(mt>>3)*256 + 32nt + 8wb + (l&7)] and the row records' F1 words")
    a(f"s_lshl_b32 {s(S_T0)}, {s(S_WB)}, 8\ns_add_u32 {s(S_T0)}, {s(S_T0)}, {s(S_TI)}\ns_lshl_b32 {s(S_T0)}, {s(S_T0)}, 7\ns_add_u32 {s(S_T0)}, {s(S_T0)}, {WS_F4:#x}")
    a(f"s_lshr_b32 {s(S_T1)}, {s(S_MT)}, 3\ns_lshl_b32 {s(S_T1)}, {s(S_T1)}, 3\ns_add_u32 {s(S_T1)}, {s(S_T1)}, {s(S_NT)}\ns_lshl_b32 {s(S_T1)}, {s(S_T1)}, 2\ns_add_u32 {s(S_T1)}, {s(S_T1)}, {s(S_WB)}")
    a(f"s_lshl_b32 {s(S_T1)}, {s(S_T1)}, 10\ns_add_u32 {s(S_T1)}, {s(S_T1)}, {WS_F4:#x}")
    a(f"v_lshlrev_b32 v8, 7, v13\nv_add_u32 v8, {s(S_T1)}, v8")
    a(f"s_lshl_b32 {s(S_T1)}, {s(S_MT)}, 2\ns_add_u32 {s(S_T1)}, {s(S_T1)}, {s(S_WB)}\ns_lshl_b32 {s(S_T1)}, {s(S_T1)}, 8\ns_add_u32 {s(S_T1)}, {s(S_T1)}, {WS_F1:#x}")
    a(f"v_and_b32 v9, 1, v0\nv_lshlrev_b32 v9, 2, v9\nv_and_b32 v10, 2, v0\nv_lshl_add_u32 v9, v10, 6, v9\nv_add_u32 v9, {s(S_T1)}, v9")
    a("v_cmp_lt_u32 vcc, 31, v0\ns_nop 1\nv_cndmask_b32 v8, v8, v9, vcc")
    XU, XN = 56, 72
    a("s_waitcnt vmcnt(0)")
    flag_store(a, S_T0, 9, 10)
    if not opt('LDST', 0): stamp(a, 7)
    for t in range(2):
        for i in range(4):
            a(f"v_lshlrev_b32 {v(XU+8*t+2*i)}, 16, {v(176+4*t+i)}\nv_and_b32 {v(XU+8*t+2*i+1)}, {s(S_C)}, {v(176+4*t+i)}")
    poll(a, 8, 6)
    if not opt('LDST', 0): stamp(a, 8)
    a.c("Y2 tile: rows 32nt + 8wb + 4i + (l>>4), 256 B each at column mt*256")
    a(f"s_lshl_b32 {s(S_T0)}, {s(S_NT)}, 2\ns_add_u32 {s(S_T0)}, {s(S_T0)}, {s(S_WB)}\ns_lshl_b32 {s(S_T0)}, {s(S_T0)}, 16\ns_lshl_b32 {s(S_T1)}, {s(S_MT)}, 8\ns_add_u32 {s(S_T0)}, {s(S_T0)}, {s(S_T1)}\ns_add_u32 {s(S_T0)}, {s(S_T0)}, {WS_Y2:#x}")
    a(f"s_add_u32 {s(S_T1)}, {s(S_T0)}, 32768")
    a("v_lshrrev_b32 v8, 4, v0\nv_and_b32 v9, 15, v0\nv_lshlrev_b32 v10, 4, v9\nv_lshl_add_u32 v10, v8, 13, v10")
    a(f"buffer_load_dwordx4 {v(48,4)}, v10, {s(R_WS,4)}, {s(S_T0)} offen sc1")
    a(f"buffer_load_dwordx4 {v(52,4)}, v10, {s(R_WS,4)}, {s(S_T1)} offen sc1")
    a(f"s_lshl_b32 {s(S_T0)}, {s(S_MT)}, 2\ns_add_u32 {s(S_T0)}, {s(S_T0)}, {s(S_WB)}\ns_lshl_b32 {s(S_T0)}, {s(S_T0)}, 9\ns_add_u32 {s(S_T0)}, {s(S_T0)}, {WS_ST:#x}")
    a(f"buffer_load_dwordx4 {v(184,4)}, v15, {s(R_WS,4)}, {s(S_T0)} offen sc1")
    a(f"buffer_load_dwordx4 {v(188,4)}, v15, {s(R_WS,4)}, {s(S_T0)} offen offset:256 sc1")
    a(f"s_lshl_b32 {s(S_T0)}, {s(S_WB)}, 1\ns_lshl_b32 {s(S_T1)}, {s(S_WB)}, 11\ns_add_u32 {s(S_T1)}, {s(S_T1)}, {L_YL}")
    a(f"v_xor_b32 v9, {s(S_T0)}, v9\nv_lshlrev_b32 v9, 4, v9\nv_lshl_add_u32 v9, v8, 8, v9\nv_add_u32 v9, {s(S_T1)}, v9\nv_xor_b32 v10, 16, v9")
    a.c("read address: YL + 4c*256 + ((sl>>2) ^ c)*16 + (sl&3)*4, sl = 16wb + 8t + (l>>3)")
    a(f"s_lshl_b32 {s(S_T0)}, {s(S_WB)}, 2\nv_lshrrev_b32 v7, 5, v0\nv_add_u32 v7, {s(S_T0)}, v7\nv_xor_b32 v7, v7, v13\nv_lshlrev_b32 v7, 4, v7\nv_lshl_add_u32 v7, v13, 10, v7")
    a(f"v_and_b32 v8, 3, v12\nv_lshl_add_u32 v7, v8, 2, v7\nv_add_u32 v7, {L_YL}, v7\nv_xor_b32 v8, 32, v7")
    a.c("partials: wb*16384 + w*4096 + (8t + row)*256 + ((2c + h) ^ row)*16")
    a(f"s_lshl_b32 {s(S_T0)}, {s(S_WB)}, 14\nv_lshlrev_b32 v2, 1, v13\nv_xor_b32 v2, v2, v12\nv_lshlrev_b32 v2, 4, v2\nv_lshl_add_u32 v2, v12, 8, v2\nv_add_u32 v2, {s(S_T0)}, v2")
    a("v_xor_b32 v3, 16, v2")
    a("s_waitcnt vmcnt(2)")
    a(f"ds_write_b128 v9, {v(48,4)}\nds_write_b128 v10, {v(52,4)} offset:1024")
    a("s_waitcnt vmcnt(0)")
    for t in range(2):
        a(f"v_mul_f32 {v(186+4*t)}, {f32bits(1.0/C1):#x}, {v(186+4*t)}")
        for i in range(8):
            a(f"v_sub_f32 {v(XN+8*t+i)}, {v(XU+8*t+i)}, {v(184+4*t)}")
        for i in range(8):
            a(f"v_mul_f32 {v(XN+8*t+i)}, {v(XN+8*t+i)}, {v(186+4*t)}")
    bsync(a)
    Y, YU = 88, 96
    for t in range(2):
        for e in range(4):
            a(f"ds_read_b32 {v(Y+4*t+e)}, {'v8' if t else 'v7'} offset:{e*256}")
    a("s_waitcnt lgkmcnt(0)")
    for t in range(2):
        for e in range(4):
            a(f"v_lshlrev_b32 {v(YU+8*t+2*e)}, 16, {v(Y+4*t+e)}\nv_and_b32 {v(YU+8*t+2*e+1)}, {s(S_C)}, {v(Y+4*t+e)}")
    for i in range(16):
        a(f"v_fmac_f32 {v(XU+i)}, {v(XN+i)}, {v(YU+i)}")
    if not opt('LDST', 0): stamp(a, 9)
    if STAMPS:
        a("s_waitcnt lgkmcnt(0)")
    a("s_barrier")
    P = 112
    for t in range(2):
        for w in range(4):
            for h in range(2):
                a(f"ds_read_b128 {v(P+32*t+8*w+4*h,4)}, {'v3' if h else 'v2'} offset:{w*4096 + t*2048}")
    for t in range(2):
        a(f"s_waitcnt lgkmcnt({8*(1-t)})")
        p = P + 32 * t
        for i in range(4):
            a(f"v_pk_add_f32 {v(p+2*i,2)}, {v(p+2*i,2)}, {v(p+8+2*i,2)}")
        for i in range(4):
            a(f"v_pk_add_f32 {v(p+16+2*i,2)}, {v(p+16+2*i,2)}, {v(p+24+2*i,2)}")
        for i in range(4):
            a(f"v_pk_add_f32 {v(p+2*i,2)}, {v(p+2*i,2)}, {v(XU+8*t+2*i,2)}")
        for i in range(4):
            a(f"v_pk_add_f32 {v(p+2*i,2)}, {v(p+2*i,2)}, {v(p+16+2*i,2)}")
        for i in range(4):
            a(f"v_cvt_pk_bf16_f32 {v(48+4*t+i)}, {v(p+2*i)}, {v(p+2*i+1)}")
        a(f"buffer_store_dwordx4 {v(48+4*t,4)}, v14, {s(R_OUT,4)}, {s(S_WO if t else S_XO)} offen")


def epoch_flags_issue(a):
    a(f"v_lshlrev_b32 v6, 7, v0\ns_mov_b32 {s(S_T0)}, {WS_F1:#x}")
    for i in range(4):
        a(f"buffer_load_dword {v(2+i)}, v6, {s(R_WS,4)}, {s(S_T0)} offen sc1")
        a(f"s_add_u32 {s(S_T0)}, {s(S_T0)}, 8192")


def epoch_pre(a):
    done = a.label("ep_skip")
    a(f"s_lshl_b32 {s(S_T0)}, s2, 3\ns_add_u32 {s(S_T0)}, {s(S_T0)}, {s(S_WAVE)}\ns_cmp_lg_u32 {s(S_T0)}, 0\ns_cbranch_scc1 {done}")
    epoch_flags_issue(a)
    a(f"{done}:")


def epoch_advance(a):
    done, top, ok = a.label("ep_skip"), a.label("ep_top"), a.label("ep_ok")
    a(f"s_lshl_b32 {s(S_T0)}, s2, 3\ns_add_u32 {s(S_T0)}, {s(S_T0)}, {s(S_WAVE)}\ns_cmp_lg_u32 {s(S_T0)}, 0\ns_cbranch_scc1 {done}")
    a(f"s_mov_b32 {s(S_SPIN)}, 0")
    a(f"{top}:")
    for i in range(4):
        a(f"v_xor_b32 {v(2+i)}, {s(S_NON)}, {v(2+i)}")
    a("v_or_b32 v2, v2, v3\nv_or_b32 v4, v4, v5\nv_or_b32 v2, v2, v4\nv_cmp_ne_u32 vcc, 0, v2")
    a(f"s_cbranch_vccz {ok}")
    a(f"s_add_u32 {s(S_SPIN)}, {s(S_SPIN)}, 1\ns_cmp_ge_u32 {s(S_SPIN)}, {SPIN_MAX}\ns_cbranch_scc1 {ok}")
    epoch_flags_issue(a)
    a(f"s_waitcnt vmcnt(0)\ns_branch {top}")
    a(f"{ok}:")
    a(f"s_mov_b32 {s(S_T0)}, {WS_EP:#x}")
    flag_store(a, S_T0, 8, 9)
    a(f"{done}:")


def kernel(a):
    prologue(a)
    a(f"s_cmp_ge_u32 {s(S_WAVE)}, 4\ns_cbranch_scc1 L_b")
    g1_compute(a)
    g1_epilogue(a)
    epoch_pre(a)
    g2_main(a)
    epoch_advance(a)
    stamp_flush(a)
    a("s_endpgm")
    a("L_b:")
    a("v_lshlrev_b32 v4, 4, v0")
    a(f"s_cmp_ge_u32 {s(S_WB)}, 2\ns_cbranch_scc1 L_help")
    loader(a)
    a("s_branch L_bj")
    a("L_help:")
    helper(a)
    a("L_bj:")
    a.c("interval 7: chunk 7 is landing")
    wd_setup(a, 0)
    conv_h_loads(a)
    a(f"s_cmp_ge_u32 {s(S_WB)}, 2\ns_cbranch_scc1 L_nw7\ns_waitcnt vmcnt(5)\nL_nw7:")
    lstamp(a, 1)
    a("s_barrier")
    lstamp(a, 2)
    a("s_waitcnt vmcnt(4)")
    a(f"s_cmp_ge_u32 {s(S_WB)}, 2\ns_cbranch_scc1 L_g1")
    st_gather_issue(a)
    a("s_branch L_g2")
    a("L_g1:")
    hflag(a, WS_F2)
    poll2_check(a, 8, 198)
    cs_gather_issue(a)
    a("L_g2:")
    for i in (0, 1, 2):
        for op in wd_dma(i):
            a(op)
    a("s_waitcnt vmcnt(12)")
    a(f"s_cmp_ge_u32 {s(S_WB)}, 2\ns_cbranch_scc1 L_g3")
    st_gather_finish(a)
    a("s_branch L_g4")
    a("L_g3:")
    cs_gather_finish(a)
    a("L_g4:")
    u_poll_issue(a)
    a("s_waitcnt lgkmcnt(0)")
    lstamp(a, 3)
    a("s_barrier")
    conv_h_stage(a)
    a("s_waitcnt vmcnt(0)")
    u_fetch(a)
    conv_addr(a)
    bsync(a, 8)
    lstamp(a, 4)
    conv_main(a)
    lstamp(a, 6)
    final(a)
    stamp_flush(a)
    a("L_end:\ns_endpgm")


HEADER = open(f"cdna_kernels/{NAME}.s.ref").read().split("; Override launch")[0]


def build():
    a = Asm()
    kernel(a)
    out = HEADER + "; @launch grid=(256,1,1) block=(512,1,1) lds=163840\n"
    out += '.amdgcn_target "amdgcn-amd-amdhsa--gfx950"\n.text\n' + a.text()
    out += '.section .rodata,"a"\n.p2align 6\n' + kernel_desc(KNAME)
    return out


if __name__ == "__main__":
    open(sys.argv[1] if len(sys.argv) > 1 else "t_m.s", "w").write(build())
```

```python
import math, os, sys
from asmlib import *

NAME = "parallel_sum__ssm_conv_h3__geglu_ffn__prompt"
KNAME = NAME + "_kernel"
S, D, F = 2048, 512, 1376
NU = F // 16
STAMPS = os.environ.get("STAMPS") == "1"
def opt(name, default):
    return int(os.environ.get(name, default))

WS_HF, WS_KVR, WS_Y2, WS_ST, WS_CSP = 0, 0x600000, 0x800000, 0xA00000, 0xA10000
WS_F1, WS_F2, WS_F3, WS_F4, WS_EP = 0xA80000, 0xA88000, 0xAA0000, 0xAC0000, 0xAE0000
WS_STAMP = 0xC00000
WS_YG = 0x1000000
YSTR = 16384 + 256
WS_SIZE = 0x1500000
NONCE_INC = 0x9E3779B1
OOB = 0x7f000000
R_X, R_WG, R_WU, R_WS, R_K, R_V, R_SK, R_WD, R_OUT, R_H = 4, 8, 12, 16, 20, 24, 28, 32, 36, 40
S_DP = 44
S_EX = 46
(S_WAVE, S_MI, S_NI, S_FB0, S_NBLK, S_T0, S_T1, S_T2, S_T3, S_IT, S_SLOT, S_KC, S_XO, S_WO, S_WO2, S_M0,
 S_WB, S_SH, S_UH, S_TI, S_MT, S_NT, S_NON, S_RING, S_CNT, S_HO, S_DO, S_SPIN) = range(48, 76)
S_C = 76
S_DK, S_HK, S_KEND = 3, S_RING, S_CNT
SLOT, NSLOT = 40960, 3
L_KVT, KVT_STR = 122880, 80
L_CS, L_ST, L_CNT = 135680, 136704, 138752
HSTR = 4640
CH_STR = 4 * HSTR + 4224
L_CONV = 81920
L_XCH = 81920
L_YL = 114688
NRW = 7
L_RA0 = 127488
S_RA, S_RB = 101, S_M0
L_CSS = 139264
assert L_KVT + 2 * 64 * KVT_STR <= L_CS and L_CONV + 2 * CH_STR <= L_RA0 and L_RA0 + 8192 <= L_CS and L_CNT + 256 <= L_CSS
W_CNT, W_GATH, W_HP, W_FREE, W_FULL, W_NON, W_C0, W_ISS, W_WD, W_HI = 0, 8, 12, 16, 32, 40, 48, 64, 80, 96
S_DUM = 100
C1 = -2.0 * math.log2(math.e) * math.sqrt(2.0 / math.pi)
C2 = C1 * 0.044715
SPIN_MAX = 1 << 16
LSPIN_MAX = 1 << 22


def stamp(a, i):
    if STAMPS:
        a(f"{'s_memtime' if opt('CLK', 0) else 's_memrealtime'} {s(78+2*i,2)}")


def lstamp(a, i):
    if STAMPS and not opt("LDST", 0):
        lab = a.label("ls")
        a(f"s_cmp_ge_u32 {s(S_WB)}, 2\ns_cbranch_scc1 {lab}")
        stamp(a, i)
        a(f"{lab}:")


ITST = STAMPS and opt("ITST", 0)


def it_issue(a):
    if ITST:
        a("s_memrealtime s[96:97]")


def it_take(a, add):
    if ITST:
        a(f"s_add_u32 m0, {s(S_IT)}, {add}\ns_nop 0\nv_writelane_b32 v255, s96, m0")


def stamp_flush(a):
    if not STAMPS:
        return
    if ITST:
        a(f"s_lshl_b32 s96, s2, 3\ns_add_u32 s96, s96, {s(S_WAVE)}\ns_lshl_b32 s96, s96, 8\ns_add_u32 s96, s96, {WS_STAMP + 0x100000:#x}")
        a(f"v_lshlrev_b32 v2, 2, v0\nbuffer_store_dword v255, v2, {s(R_WS,4)}, s96 offen\ns_mov_b32 s96, 0")
    a("s_waitcnt vmcnt(0) lgkmcnt(0)")
    stamp(a, 10)
    a("s_waitcnt lgkmcnt(0)")
    for i in range(11):
        a(f"v_writelane_b32 v1, {s(78+2*i)}, {i}")
    a(f"s_lshl_b32 s78, s2, 3\ns_add_u32 s78, s78, {s(S_WAVE)}\ns_lshl_b32 s78, s78, 6\ns_add_u32 s78, s78, {WS_STAMP:#x}")
    a("v_lshlrev_b32 v2, 2, v0\ns_mov_b64 exec, 0x7ff")
    a(f"buffer_store_dword v1, v2, {s(R_WS,4)}, s78 offen")
    if opt("DBGST", 0):
        lab = a.label("dbg")
        a(f"s_cmp_lg_u32 s78, {WS_STAMP + opt('DBGW', 0)*64 + 100*512:#x}\ns_cbranch_scc1 {lab}")
        a("s_load_dwordx2 s[84:85], s[0:1], 88\ns_mov_b32 s86, 256\ns_mov_b32 s87, 0x20000\nv_readlane_b32 s82, v1, 0\ns_waitcnt lgkmcnt(0)")
        a("v_subrev_u32 v1, s82, v1")
        a("buffer_store_dword v1, v2, s[84:87], 0 offen")
        a(f"{lab}:")


def prologue(a):
    a(f".globl {KNAME}\n.p2align 8\n.type {KNAME},@function\n{KNAME}:")
    a("s_cmp_ge_u32 s2, 256\ns_cbranch_scc1 L_end")
    table = [(R_X, 0, S*D*2), (R_WG, 56, D*F*2), (R_WU, 64, D*F*2), (R_WS, 96, WS_SIZE), (R_K, 8, S*D*2), (R_V, 16, S*D*2),
             (R_SK, 24, D*8), (R_WD, 72, D*F*2), (R_OUT, 80, S*D*2), (R_H, 32, S*D*2)]
    for r, off, size in table:
        a(f"s_load_dwordx2 {s(r,2)}, s[0:1], {off}")
    a(f"s_load_dwordx2 {s(S_DP,2)}, s[0:1], 40")
    if STAMPS:
        for i in range(1, 11):
            a(f"s_mov_b32 {s(78+2*i)}, 0")
    stamp(a, 0)
    if ITST:
        a("v_mov_b32 v255, 0")
    a("v_lshrrev_b32 v1, 6, v0")
    a("v_and_b32 v0, 63, v0")
    a.c("LDS hand-off words start at zero")
    a(f"v_mov_b32 v20, 0\nv_lshlrev_b32 v5, 2, v0\nv_add_u32 v5, {L_CNT}, v5\nds_write_b32 v5, v20")
    a(f"v_readfirstlane_b32 {s(S_WAVE)}, v1")
    for r, off, size in table:
        a(f"s_mov_b32 {s(r+2)}, {size:#x}\ns_mov_b32 {s(r+3)}, 0x20000")
    a.c("x = wg&7, j = wg>>3; GEMM1 tile mi = 8*(x&1) + (j&7), ni = 4*(x>>1) + (j>>3); ti = 16*mi + ni")
    a(f"s_and_b32 {s(S_T0)}, s2, 1\ns_lshl_b32 {s(S_T0)}, {s(S_T0)}, 3")
    a(f"s_bfe_u32 {s(S_T1)}, s2, 0x30003\ns_add_u32 {s(S_MI)}, {s(S_T0)}, {s(S_T1)}")
    a(f"s_bfe_u32 {s(S_T0)}, s2, 0x20001\ns_lshl_b32 {s(S_T0)}, {s(S_T0)}, 2")
    a(f"s_lshr_b32 {s(S_T2)}, s2, 6\ns_add_u32 {s(S_NI)}, {s(S_T0)}, {s(S_T2)}")
    a(f"s_lshl_b32 {s(S_TI)}, {s(S_MI)}, 4\ns_add_u32 {s(S_TI)}, {s(S_TI)}, {s(S_NI)}")
    a.c("first 32-col block fb0 = 3*ni - (ni>>2) - (ni==15); nblk = 2 for ni in {3,7,11,14,15}")
    a(f"s_mul_i32 {s(S_FB0)}, {s(S_NI)}, 3\ns_lshr_b32 {s(S_T0)}, {s(S_NI)}, 2\ns_sub_u32 {s(S_FB0)}, {s(S_FB0)}, {s(S_T0)}")
    a(f"s_cmp_eq_u32 {s(S_NI)}, 15\ns_cselect_b32 {s(S_T0)}, 1, 0\ns_sub_u32 {s(S_FB0)}, {s(S_FB0)}, {s(S_T0)}")
    a(f"s_lshr_b32 {s(S_T0)}, 0xc888, {s(S_NI)}\ns_and_b32 {s(S_T0)}, {s(S_T0)}, 1\ns_sub_u32 {s(S_NBLK)}, 3, {s(S_T0)}")
    a.c("GEMM2 tile mt = 4*x + (j&3), nt = j>>2")
    a(f"s_and_b32 {s(S_T0)}, s2, 7\ns_lshl_b32 {s(S_T0)}, {s(S_T0)}, 2\ns_bfe_u32 {s(S_T1)}, s2, 0x20003\ns_add_u32 {s(S_MT)}, {s(S_T0)}, {s(S_T1)}")
    a(f"s_lshr_b32 {s(S_NT)}, s2, 5")
    a(f"s_and_b32 {s(S_WB)}, {s(S_WAVE)}, 3")
    a.c("GEMM1 DMA lane offsets. x: (l>>3)*1024 + ((l&7) ^ ((4*(w&1) + l>>4)&7))*16 ; W: (l>>2)*2752 + ((l&3) ^ (2*(l>>5)))*16")
    a(f"s_and_b32 {s(S_T0)}, {s(S_WAVE)}, 1\ns_lshl_b32 {s(S_T0)}, {s(S_T0)}, 2")
    a(f"v_lshrrev_b32 v5, 4, v0\nv_add_u32 v5, {s(S_T0)}, v5\nv_and_b32 v6, 7, v0\nv_xor_b32 v5, v5, v6\nv_lshlrev_b32 v5, 4, v5")
    a(f"v_lshrrev_b32 v6, 3, v0\nv_lshl_add_u32 {v(VB_X)}, v6, 10, v5")
    a(f"v_lshrrev_b32 v5, 5, v0\nv_lshlrev_b32 v5, 1, v5\nv_and_b32 v6, 3, v0\nv_xor_b32 v5, v5, v6\nv_lshlrev_b32 v5, 4, v5")
    a(f"v_lshrrev_b32 v6, 2, v0\nv_mul_u32_u24 v6, {F*2}, v6\nv_add_u32 {v(VB_W)}, v6, v5")
    a(f"s_lshl_b32 {s(S_XO)}, {s(S_MI)}, 17\ns_lshl_b32 {s(S_T0)}, {s(S_WB)}, 13\ns_add_u32 {s(S_XO)}, {s(S_XO)}, {s(S_T0)}")
    a(f"s_mul_i32 {s(S_WO)}, {s(S_WB)}, {16*F*2}\ns_lshl_b32 {s(S_T0)}, {s(S_FB0)}, 6\ns_add_u32 {s(S_WO)}, {s(S_WO)}, {s(S_T0)}")
    a(f"s_cmp_eq_u32 {s(S_NBLK)}, 3\ns_cselect_b32 {s(S_WO2)}, {s(S_WO)}, {OOB:#x}")
    a.c("K-chunk order starts at (mi + 2*ni) & 7")
    if opt("ROT1", 0):
        a(f"s_lshl_b32 {s(S_UH)}, {s(S_NI)}, 1\ns_add_u32 {s(S_UH)}, {s(S_UH)}, {s(S_MI)}\ns_and_b32 {s(S_UH)}, {s(S_UH)}, 7")
    else:
        a(f"s_mov_b32 {s(S_UH)}, 0")
    a(f"s_lshl_b32 {s(S_M0)}, {s(S_WB)}, 10\ns_mov_b32 {s(S_SPIN)}, 0")
    a("s_waitcnt lgkmcnt(0)")
    a("s_barrier")


VB_X, VB_W = 14, 15
C_CNT, C_ONE = 252, 253


def poll(a, vaddr, vtmp):
    top, done = a.label("poll"), a.label("poll_ok")
    a(f"s_mov_b32 {s(S_SPIN)}, 0")
    a(f"{top}:")
    a(f"buffer_load_dword {v(vtmp)}, {v(vaddr)}, {s(R_WS,4)}, 0 offen sc1")
    a("s_waitcnt vmcnt(0)")
    a(f"v_cmp_ne_u32 vcc, {s(S_NON)}, {v(vtmp)}")
    a(f"s_cbranch_vccz {done}")
    a("s_sleep 1")
    a(f"s_add_u32 {s(S_SPIN)}, {s(S_SPIN)}, 1\ns_cmp_lt_u32 {s(S_SPIN)}, {SPIN_MAX}\ns_cbranch_scc1 {top}")
    a(f"{done}:")


def poll2_issue(a, vaddr, vt):
    a(f"buffer_load_dwordx2 {v(vt,2)}, {v(vaddr)}, {s(R_WS,4)}, 0 offen sc1")


def poll2_check(a, vaddr, vt):
    top, done = a.label("poll"), a.label("poll_ok")
    a(f"s_mov_b32 {s(S_SPIN)}, 0")
    a(f"{top}:")
    a(f"v_cmp_ne_u32 vcc, {s(S_NON)}, {v(vt)}\nv_cmp_ne_u32 {s(S_EX,2)}, {s(S_NON)}, {v(vt+1)}")
    a(f"s_nop 0\ns_or_b64 vcc, vcc, {s(S_EX,2)}")
    a(f"s_cbranch_scc0 {done}")
    a(f"s_add_u32 {s(S_SPIN)}, {s(S_SPIN)}, 1\ns_cmp_ge_u32 {s(S_SPIN)}, {SPIN_MAX}\ns_cbranch_scc1 {done}")
    a("s_sleep 1")
    poll2_issue(a, vaddr, vt)
    a(f"s_waitcnt vmcnt(0)\ns_branch {top}")
    a(f"{done}:")


class VQ:
    def __init__(self, a):
        self.a, self.q = a, []
    def add(self, tag, n):
        self.q += [tag] * n
    def count(self, *tags):
        last = max((i for i, x in enumerate(self.q) if x in tags), default=-1)
        n = len(self.q) - 1 - last
        assert n <= 63
        return n
    def wait(self, *tags):
        self.a(f"s_waitcnt vmcnt({self.count(*tags)})")


def flag_store(a, soff, vt0, vt1):
    a(f"v_mov_b32 {v(vt0)}, {s(S_NON)}\nv_mov_b32 {v(vt1)}, 0")
    a("s_mov_b64 exec, 1")
    a(f"buffer_store_dword {v(vt0)}, {v(vt1)}, {s(R_WS,4)}, {s(soff)} offen sc1")
    a("s_mov_b64 exec, -1")


def epoch_load(a, vt):
    a(f"v_mov_b32 {v(vt)}, {WS_EP:#x}")
    a(f"buffer_load_dword {v(vt)}, {v(vt)}, {s(R_WS,4)}, 0 offen sc1")


def epoch_take(a, vt):
    a(f"v_readfirstlane_b32 {s(S_NON)}, {v(vt)}")
    a("s_nop 0")
    a(f"s_add_u32 {s(S_NON)}, {s(S_NON)}, {NONCE_INC:#x}")


V_XA0, V_XA1, V_W = 2, 3, 4
V_XC0, V_XC1, V_WC = 7, 8, 9
ACC, F0, F1 = 16, 112, 152
G_ACC, G_WF, G_H = 176, 16, 80
G_L16, G_WD, G_TR, G_TR0, G_TR5, G_FL = 240, 241, 242, 246, 250, 254
NHB, NWF, NSTEP = 6, 4, 11


def acc(u, mat, sb):
    return ACC + ((u * 2 + mat) * 4 + sb) * 4


def g1_reads(fr, step, units):
    out = []
    for u in units:
        if u == 'x':
            for sb in range(4):
                out.append(f"ds_read_b128 {v(fr+4*sb,4)}, {v(V_XC1 if step else V_XC0)} offset:{sb*2048}")
            continue
        for mat in range(2):
            r = fr + 16 + (u * 2 + mat) * 4
            for t in range(2):
                out.append(f"ds_read_b64_tr_b16 {v(r+2*t,2)}, {v(V_WC+u)} offset:{mat*12288+step*2048+t*256}")
    return out


def g1_mfmas(fr, units):
    out = []
    for u in units:
        for mat in range(2):
            for sb in range(4):
                c = acc(u, mat, sb)
                out.append(f"v_mfma_f32_16x16x32_bf16 {v(c,4)}, {v(fr+16+(u*2+mat)*4,4)}, {v(fr+4*sb,4)}, {v(c,4)}")
    return out


V_LW, V_FC, V_FL = 12, 13, 192


def g1_step_a(a):
    rd = g1_reads(F1, 1, ['x', 0, 1, 2])
    for l in interleave(g1_mfmas(F0, [0, 1]), rd, 0, 1):
        a(l)
    a(f"ds_write_b32 {v(V_FL+2)}, {v(V_FC)}")
    a(f"ds_read_b32 {v(V_FL)}, {v(V_FL+1)} offset:{W_FULL}")
    lab = a.label("g1_skip")
    a(f"s_cbranch_vccnz {lab}")
    for l in g1_mfmas(F0, [2]):
        a(l)
    a(f"{lab}:")


def g1_step_b(a):
    mf = g1_mfmas(F1, [0, 1])
    rd = g1_reads(F0, 0, ['x', 0, 1, 2])
    ok, slow = a.label("g1_ok"), a.label("g1_slow")
    a(mf[0])
    a(f"v_add_u32 {v(V_XC0)}, {s(S_SLOT)}, {v(V_XA0)}")
    a(mf[1])
    a(f"v_readfirstlane_b32 {s(S_T0)}, {v(V_FL)}")
    a(f"v_add_u32 {v(V_WC)}, {s(S_SLOT)}, {v(V_W)}")
    a(mf[2])
    a(f"s_cmp_ge_u32 {s(S_T0)}, {s(S_T2)}\ns_cbranch_scc1 {ok}")
    lds_min_wait(a, V_FL+1, W_FULL, 1, s(S_T2), V_FL)
    if ITST:
        it_issue(a)
        a("s_waitcnt lgkmcnt(0)")
        it_take(a, 32)
    a(f"{ok}:")
    extra = [f"v_add_u32 {v(V_WC+1)}, {s(S_SLOT)}, {v(V_W+1)}", f"v_add_u32 {v(V_WC+2)}, {s(S_SLOT)}, {v(V_W+2)}",
             f"v_add_u32 {v(V_XC1)}, {s(S_SLOT)}, {v(V_XA1)}", f"v_add_u32 {v(V_FC)}, 1, {v(V_FC)}", f"v_xor_b32 {v(V_FL+1)}, 4, {v(V_FL+1)}"]
    for i, m in enumerate(mf[3:]):
        a(rd.pop(0))
        if i < 3:
            a(rd.pop(0))
        if extra:
            a(extra.pop(0))
        a(m)
    assert not rd
    lab = a.label("g1_skip")
    a(f"s_cbranch_vccnz {lab}")
    for l in g1_mfmas(F1, [2]):
        a(l)
    a(f"{lab}:")


def dma_chunk0(a):
    a(f"s_lshl_b32 {s(S_T0)}, {s(S_UH)}, 7\ns_add_u32 {s(S_XO)}, {s(S_XO)}, {s(S_T0)}")
    a(f"s_mul_i32 {s(S_T0)}, {s(S_UH)}, {64*F*2}\ns_add_u32 {s(S_WO)}, {s(S_WO)}, {s(S_T0)}\ns_add_u32 {s(S_WO2)}, {s(S_WO2)}, {s(S_T0)}")
    for i in range(4):
        a(f"s_add_u32 m0, {s(S_M0)}, {i*4096}")
        a(f"s_add_u32 {s(S_XO)}, {s(S_XO)}, 32768" if i else "s_nop 0")
        a(f"buffer_load_dwordx4 {v(VB_X)}, {s(R_X,4)}, {s(S_XO)} offen lds")
    for blk in range(3):
        for mat in range(2):
            a(f"s_add_u32 m0, {s(S_M0)}, {16384 + (mat*3+blk)*4096 - 64*blk}")
            a("s_nop 0")
            a(f"buffer_load_dwordx4 {v(VB_W)}, {s(R_WU if mat else R_WG,4)}, {s(S_WO2 if blk == 2 else S_WO)} offen offset:{64*blk} lds")


def spf(a, srd, sbase, offs):
    for o in offs:
        a(f"s_buffer_load_dword {s(S_DUM)}, {s(srd,4)}, {s(sbase)} offset:{o:#x}")


def lds_min_wait(a, vaddr, off, n, target, vt, nap=None):
    lab = a.label("lw")
    a(f"{lab}:")
    a(f"ds_read_b{32*n} {v(vt,n)}, {v(vaddr)} offset:{off}")
    a("s_waitcnt lgkmcnt(0)")
    if n == 4:
        a(f"v_min3_u32 {v(vt)}, {v(vt)}, {v(vt+1)}, {v(vt+2)}\nv_min_u32 {v(vt)}, {v(vt)}, {v(vt+3)}")
    elif n == 2:
        a(f"v_min_u32 {v(vt)}, {v(vt)}, {v(vt+1)}")
    a("s_nop 0")
    a(f"v_readfirstlane_b32 {s(S_T0)}, {v(vt)}")
    a("s_nop 0")
    done = a.label("lw_ok")
    a(f"s_cmp_ge_u32 {s(S_T0)}, {target}\ns_cbranch_scc1 {done}")
    if nap is None:
        nap = opt("NAP", 1) if vaddr == C_CNT else 0
    if nap:
        a(f"s_sleep {nap}")
    a(f"s_add_u32 {s(S_SPIN)}, {s(S_SPIN)}, 1\ns_cmp_lt_u32 {s(S_SPIN)}, {LSPIN_MAX}\ns_cbranch_scc1 {lab}")
    a(f"{done}:")


def lds_inc(a, vaddr, vone, off):
    a(f"s_mov_b64 exec, 1\nds_add_u32 {v(vaddr)}, {v(vone)} offset:{off}\ns_mov_b64 exec, -1")


def wd_setup(a, first):
    a.c("Wd DMA lane offset: (l>>3)*1024 + ((l&7) ^ (((l>>4)&3)<<1))*16")
    a(f"v_lshrrev_b32 v12, 4, v0\nv_lshlrev_b32 v13, 1, v12\nv_and_b32 v14, 7, v0\nv_xor_b32 v13, v13, v14\nv_lshlrev_b32 v13, 4, v13\nv_lshrrev_b32 v14, 3, v0\nv_lshl_add_u32 {v(G_WD)}, v14, 10, v13")
    a(f"s_lshl_b32 {s(S_KC)}, {s(S_WB)}, 12")
    a(f"s_lshl_b32 {s(S_RA)}, {s(S_WB)}, 13\ns_add_u32 {s(S_RB)}, {s(S_RA)}, {131072 + 16384}\ns_add_u32 {s(S_RA)}, {s(S_RA)}, 131072\ns_cmp_eq_u32 {s(S_WB)}, 0\ns_cselect_b32 {s(S_RA)}, {L_RA0}, {s(S_RA)}")
    if opt("ROT", 1):
        a(f"s_and_b32 {s(S_T0)}, {s(S_MT)}, 3\ns_mul_i32 {s(S_T0)}, {s(S_T0)}, 3\ns_mul_i32 {s(S_T1)}, {s(S_NT)}, 7\ns_add_u32 {s(S_T0)}, {s(S_T0)}, {s(S_T1)}")
        a(f"s_mul_i32 {s(S_T1)}, {s(S_T0)}, 187\ns_lshr_b32 {s(S_T1)}, {s(S_T1)}, 11\ns_mul_i32 {s(S_T1)}, {s(S_T1)}, 11\ns_sub_u32 {s(S_T0)}, {s(S_T0)}, {s(S_T1)}")
    else:
        a(f"s_mov_b32 {s(S_T0)}, 0")
    a(f"s_add_u32 {s(S_DK)}, {s(S_T0)}, {first}\ns_sub_u32 {s(S_T1)}, {s(S_DK)}, 11\ns_cmp_ge_u32 {s(S_DK)}, 11\ns_cselect_b32 {s(S_DK)}, {s(S_T1)}, {s(S_DK)}")
    a(f"s_mul_i32 {s(S_DO)}, {s(S_WB)}, {NSTEP*32768}\ns_lshl_b32 {s(S_T1)}, {s(S_NT)}, 7\ns_add_u32 {s(S_DO)}, {s(S_DO)}, {s(S_T1)}")


def g2_setup(a):
    a(f"v_lshlrev_b32 {v(G_L16)}, 4, v0")
    wd_setup(a, NRW)
    a(f"s_mov_b32 {s(S_HK)}, {s(S_T0)}")
    a(f"s_cmp_eq_u32 {s(S_WAVE)}, 3\ns_cselect_b32 {s(S_KEND)}, 10, 99")
    a.c("tr address: w*4096 + (l>>2)*128 + ((db ^ ((l>>3)&3))*32) + (l&3)*8")
    a(f"v_lshrrev_b32 v13, 2, v0\nv_lshlrev_b32 v13, 7, v13\nv_and_b32 v15, 3, v0\nv_lshl_add_u32 v13, v15, 3, v13\nv_add_u32 v13, {s(S_KC)}, v13\nv_and_b32 v14, 3, v14")
    a(f"s_sub_u32 {s(S_T1)}, {s(S_RA)}, {s(S_KC)}")
    for db in range(4):
        a(f"v_xor_b32 v15, {db}, v14\nv_lshl_add_u32 {v(G_TR+db)}, v15, 5, v13\nv_add_u32 {v(G_TR0+db)}, {s(S_T1)}, {v(G_TR+db)}\nv_add_u32 {v(G_TR5+db)}, 0x10000, {v(G_TR+db)}")
    a(f"s_mul_i32 {s(S_HO)}, {s(S_MT)}, {2*NU*1024}\ns_mul_i32 {s(S_T0)}, {s(S_WAVE)}, {NSTEP*2048}\ns_add_u32 {s(S_HO)}, {s(S_HO)}, {s(S_T0)}")
    a.c("H flags this wave needs: F3[mt*32 + 8w + (l&7)]")
    a(f"s_lshl_b32 {s(S_T0)}, {s(S_MT)}, 2\ns_add_u32 {s(S_T0)}, {s(S_T0)}, {s(S_WAVE)}\ns_lshl_b32 {s(S_T0)}, {s(S_T0)}, 10\ns_add_u32 {s(S_T0)}, {s(S_T0)}, {WS_F3:#x}")
    a(f"v_and_b32 v12, 7, v0\nv_lshlrev_b32 v12, 7, v12\nv_add_u32 {v(G_FL)}, {s(S_T0)}, v12")


def g1_compute(a):
    a(f"s_setprio {opt('PRA', 3)}")
    if opt("TOUCH", 0):
        l1, l2 = a.label("tc"), a.label("tc")
        a(f"s_cmp_ge_u32 {s(S_WAVE)}, 2\ns_cbranch_scc1 {l1}")
        a(f"s_lshl_b32 {s(S_T2)}, {s(S_WAVE)}, 8\ns_add_u32 {s(R_K)}, {s(R_X)}, {s(S_T2)}\ns_addc_u32 {s(R_K+1)}, {s(R_X+1)}, 0\ns_mov_b32 {s(R_K+2)}, {S*D*2 - 256:#x}")
        RX0 = R_X
        globals()["R_X"] = R_K
        touch_x(a, (0, 4) if opt("TOUCH", 0) == 2 else (0,), 1)
        globals()["R_X"] = RX0
        a(f"s_branch {l2}\n{l1}:")
        a(f"s_cmp_eq_u32 {s(S_WAVE)}, 2\ns_cselect_b64 {s(R_K,2)}, {s(R_WG,2)}, {s(R_WU,2)}\ns_mov_b32 {s(R_K+2)}, {D*F*2:#x}")
        touch_w(a, 0, (R_K,), 1)
        a(f"{l2}:")
    dma_chunk0(a)
    if opt("SPF", 0):
        a.c("warm the lines the column sums need: rows 32mi + 16*(w&1).. of gate (w<2) or up")
        a(f"s_cmp_lt_u32 {s(S_WAVE)}, 2\ns_cselect_b64 {s(R_K,2)}, {s(R_WG,2)}, {s(R_WU,2)}\ns_mov_b32 {s(R_K+2)}, {D*F*2:#x}")
        a(f"s_lshl_b32 {s(S_T0)}, {s(S_MI)}, 1\ns_and_b32 {s(S_T1)}, {s(S_WAVE)}, 1\ns_add_u32 {s(S_T0)}, {s(S_T0)}, {s(S_T1)}\ns_mul_i32 {s(S_XO)}, {s(S_T0)}, {16*F*2}")
        a(f"s_lshl_b32 {s(S_T1)}, {s(S_FB0)}, 6\ns_add_u32 {s(S_XO)}, {s(S_XO)}, {s(S_T1)}")
        spf(a, R_K, S_XO, [r*F*2 + h*128 for r in range(7) for h in range(2)])
    a(f"s_and_b32 {s(S_SH)}, {s(S_WAVE)}, 1\ns_lshr_b32 {s(S_UH)}, {s(S_WAVE)}, 1")
    a.c("x fragment address: (64*sh + s16)*128 + ((kg ^ ((s16>>1)&7))*16)")
    a("v_and_b32 v10, 15, v0\nv_lshrrev_b32 v11, 4, v0\nv_lshrrev_b32 v12, 1, v10\nv_xor_b32 v12, v12, v11\nv_lshlrev_b32 v12, 4, v12")
    a(f"v_lshl_add_u32 {v(V_XA0)}, v10, 7, v12\ns_lshl_b32 {s(S_T0)}, {s(S_SH)}, 13\nv_add_u32 {v(V_XA0)}, {s(S_T0)}, {v(V_XA0)}")
    a(f"v_xor_b32 {v(V_XA1)}, 64, {v(V_XA0)}")
    a.c("W fragment address: 16384 + blk*4096 + kg*512 + r*64 + ((h^(kg&1))*32) + c*8")
    a("v_lshlrev_b32 v12, 9, v11\nv_bfe_u32 v13, v0, 2, 2\nv_lshl_add_u32 v12, v13, 6, v12\nv_and_b32 v13, 3, v0\nv_lshl_add_u32 v12, v13, 3, v12")
    a("v_and_b32 v13, 1, v11\nv_lshl_add_u32 v12, v13, 5, v12")
    a(f"s_mul_i32 {s(S_T0)}, {s(S_UH)}, {s(S_NBLK)}")
    for u in range(3):
        a(f"s_add_u32 {s(S_T1)}, {s(S_T0)}, {u}\ns_and_b32 {s(S_T2)}, {s(S_T1)}, 1\ns_lshl_b32 {s(S_T2)}, {s(S_T2)}, 5")
        a(f"s_lshr_b32 {s(S_T1)}, {s(S_T1)}, 1\ns_lshl_b32 {s(S_T1)}, {s(S_T1)}, 12\ns_add_u32 {s(S_T1)}, {s(S_T1)}, 16384")
        a(f"v_xor_b32 {v(V_W+u)}, {s(S_T2)}, v12\nv_add_u32 {v(V_W+u)}, {s(S_T1)}, {v(V_W+u)}")
    g2_setup(a)
    for i in range(48):
        a(f"v_pk_mov_b32 {v(ACC+2*i,2)}, 0, 0")
    for i in range(5):
        a(f"v_mov_b32 {v(V_XC0+i)}, {v(V_XA0+i)}")
    a(f"s_mov_b32 {s(S_IT)}, 0\ns_mov_b32 {s(S_SLOT)}, 0")
    a(f"v_mov_b32 {v(V_LW)}, {L_CNT}\nv_mov_b32 {v(V_FL+1)}, {L_CNT}\nv_mov_b32 {v(V_FC)}, 1\ns_lshl_b32 {s(S_T0)}, {s(S_WAVE)}, 2\ns_add_u32 {s(S_T0)}, {s(S_T0)}, {L_CNT + W_FREE}\nv_mov_b32 {v(V_FL+2)}, {s(S_T0)}")
    a.c("vcc != 0 marks a two-block tile")
    a(f"s_cmp_eq_u32 {s(S_NBLK)}, 2\ns_cselect_b64 vcc, -1, 0")
    if opt("SPF", 0):
        spf(a, R_K, S_XO, [r*F*2 + h*128 for r in range(7, 16) for h in range(2)])
    stamp(a, 1)
    a("s_waitcnt vmcnt(0)")
    a(f"ds_write_b32 {v(V_FL+2)}, {v(V_FC)} offset:{W_C0 - W_FREE}")
    lds_min_wait(a, V_LW, W_C0, 4, 1, 196)
    stamp(a, 2)
    for l in g1_reads(F0, 0, ['x', 0, 1, 2]):
        a(l)
    a("s_waitcnt lgkmcnt(0)")
    a("g1_loop:")
    a(f"s_add_u32 {s(S_SLOT)}, {s(S_SLOT)}, {SLOT}\ns_cmp_eq_u32 {s(S_SLOT)}, {NSLOT*SLOT}\ns_cselect_b32 {s(S_SLOT)}, 0, {s(S_SLOT)}")
    a(f"s_add_u32 {s(S_IT)}, {s(S_IT)}, 1\ns_and_b32 {s(S_T2)}, {s(S_IT)}, 7")
    g1_step_a(a)
    it_issue(a)
    a("s_waitcnt lgkmcnt(0)")
    it_take(a, 0)
    g1_step_b(a)
    it_issue(a)
    a("s_waitcnt lgkmcnt(0)")
    it_take(a, 16)
    a(f"s_cmp_lt_u32 {s(S_IT)}, 8")
    a("s_cbranch_scc1 g1_loop")
    stamp(a, 3)
    lds_min_wait(a, V_LW, W_GATH, 1, 2, V_FL)
    stamp(a, 4)


def wd_dma(i, rings=1):
    sl = i % NRW
    ops = []
    n = 4 * rings
    for q in range(n):
        pre = f"s_lshl_b32 {s(S_T3)}, {s(S_DK)}, 15\ns_add_u32 {s(S_T3)}, {s(S_T3)}, {s(S_DO)}\n" if q == 0 else ""
        inc = 8192 if q != 4 else 2*NSTEP*32768 - 3*8192
        mid = "s_nop 0" if q == 0 else f"s_add_u32 {s(S_T3)}, {s(S_T3)}, {inc}"
        post = f"\ns_add_u32 {s(S_DK)}, {s(S_DK)}, 1\ns_cmp_eq_u32 {s(S_DK)}, 11\ns_cselect_b32 {s(S_DK)}, 0, {s(S_DK)}" if q == n - 1 else ""
        m0 = f"{s(S_RB if q >> 2 else S_RA)}, {sl*4096 + (q&3)*1024}" if sl < 2 else f"{s(S_KC)}, {(sl-2)*16384 + (q&3)*1024 + (q>>2)*8192}"
        ops.append(pre + f"s_add_u32 m0, {m0}\n{mid}\n"
                   f"buffer_load_dwordx4 {v(G_WD)}, {s(R_WD,4)}, {s(S_T3)} offen lds" + post)
    return ops


def h_loads(i):
    hb = G_H + (i % NHB) * 16
    pre = (f"s_lshl_b32 {s(S_T1)}, {s(S_HK)}, 11\ns_add_u32 {s(S_T1)}, {s(S_T1)}, {s(S_HO)}\n"
           f"s_cmp_eq_u32 {s(S_HK)}, {s(S_KEND)}\ns_cselect_b32 {s(S_T1)}, {OOB:#x}, {s(S_T1)}\n")
    post = f"\ns_add_u32 {s(S_HK)}, {s(S_HK)}, 1\ns_cmp_eq_u32 {s(S_HK)}, 11\ns_cselect_b32 {s(S_HK)}, 0, {s(S_HK)}"
    ld = lambda r, off: f"buffer_load_dwordx4 {v(r,4)}, {v(G_L16)}, {s(R_WS,4)}, {s(S_T1)} offen offset:{off} sc1"
    return [pre + ld(hb, 0), ld(hb+4, 1024), f"s_add_u32 {s(S_T1)}, {s(S_T1)}, {NU*1024}\n" + ld(hb+8, 0), ld(hb+12, 1024) + post]


def g1_epilogue(a):
    VST, VCS, T = 112, 144, 168
    S_H0, S_H1 = S_XO, S_WO
    a.c("row constants (m,k1,k2,d2) and column sums from LDS")
    a(f"v_and_b32 v10, 15, v0\nv_lshlrev_b32 v10, 4, v10\ns_lshl_b32 {s(S_T0)}, {s(S_SH)}, 10\ns_add_u32 {s(S_T0)}, {s(S_T0)}, {L_ST}\nv_add_u32 v10, {s(S_T0)}, v10")
    a(f"s_mul_i32 {s(S_T1)}, {s(S_UH)}, {s(S_NBLK)}\ns_lshl_b32 {s(S_T0)}, {s(S_T1)}, 6\ns_add_u32 {s(S_T0)}, {s(S_T0)}, {L_CS}")
    a(f"v_and_b32 v11, 48, v0\nv_add_u32 v11, {s(S_T0)}, v11")
    for sb in range(4):
        a(f"ds_read_b128 {v(T+4*sb,4)}, v10 offset:{sb*256}")
    for u in range(3):
        for mat in range(2):
            a(f"ds_read_b128 {v(VCS+4*(u*2+mat),4)}, v11 offset:{mat*512+u*64}")
    a(f"ds_read_b32 v1, {v(V_LW)} offset:{W_NON}")
    a.c("HF offset = ((4*mi + 2*sh + pp)*86 + 2*fb0 + uu)*1024 + lane*16")
    a(f"s_lshl_b32 {s(S_T0)}, {s(S_MI)}, 1\ns_add_u32 {s(S_T0)}, {s(S_T0)}, {s(S_SH)}\ns_mul_i32 {s(S_T0)}, {s(S_T0)}, {2*NU}")
    a(f"s_lshl_b32 {s(S_T2)}, {s(S_FB0)}, 1\ns_add_u32 {s(S_T0)}, {s(S_T0)}, {s(S_T2)}\ns_add_u32 {s(S_T0)}, {s(S_T0)}, {s(S_T1)}\ns_lshl_b32 {s(S_H0)}, {s(S_T0)}, 10")
    a(f"s_add_u32 {s(S_H1)}, {s(S_H0)}, {NU*1024}")
    a(f"v_mov_b32 v13, 1\ns_lshl_b32 {s(S_T0)}, {s(S_SH)}, 2\nv_add_u32 v15, {s(S_T0)}, {v(V_LW)}")
    a("s_waitcnt lgkmcnt(7)")
    for i in range(16):
        a(f"v_pk_mov_b32 {v(VST+2*i,2)}, {v(T+(i&~1),2)}, {v(T+(i&~1),2)} op_sel:[{i&1},{i&1}]" if opt("PKMOV", 0) else f"v_mov_b32 {v(VST+2*i)}, {v(T+i)}\nv_mov_b32 {v(VST+2*i+1)}, {v(T+i)}")
    a("s_waitcnt lgkmcnt(0)")
    a(f"v_readfirstlane_b32 {s(S_NON)}, v1")
    lab, lab2 = a.label("ep_two"), a.label("ep_done")

    def group(u, pp):
        out = []
        o = T + 32 + 4 * pp
        pairs = [(2*pp + (q >> 1), q & 1, T + 8*q) for q in range(4)]
        def each(f):
            for sb, h, t in pairs:
                g, up, st = acc(u, 0, sb) + 2*h, acc(u, 1, sb) + 2*h, VST + 8*sb
                cg, cu = VCS + 4*(u*2) + 2*h, VCS + 4*(u*2+1) + 2*h
                out.append(f(g, up, st, cg, cu, t))
        each(lambda g, up, st, cg, cu, t: f"v_pk_fma_f32 {v(g,2)}, {v(cg,2)}, {v(st,2)}, {v(g,2)} neg_lo:[0,1,0] neg_hi:[0,1,0]")
        each(lambda g, up, st, cg, cu, t: f"v_pk_mul_f32 {v(t,2)}, {v(g,2)}, {v(g,2)}")
        each(lambda g, up, st, cg, cu, t: f"v_pk_fma_f32 {v(t,2)}, {v(t,2)}, {v(st+4,2)}, {v(st+2,2)}")
        each(lambda g, up, st, cg, cu, t: f"v_pk_mul_f32 {v(t,2)}, {v(t,2)}, {v(g,2)}")
        each(lambda g, up, st, cg, cu, t: f"v_exp_f32 {v(t)}, {v(t)}\nv_exp_f32 {v(t+1)}, {v(t+1)}")
        each(lambda g, up, st, cg, cu, t: f"v_pk_fma_f32 {v(up,2)}, {v(cu,2)}, {v(st,2)}, {v(up,2)} neg_lo:[0,1,0] neg_hi:[0,1,0]")
        each(lambda g, up, st, cg, cu, t: f"v_pk_fma_f32 {v(t,2)}, {v(t,2)}, {v(st+6,2)}, {v(st+6,2)}")
        each(lambda g, up, st, cg, cu, t: f"v_rcp_f32 {v(t)}, {v(t)}\nv_rcp_f32 {v(t+1)}, {v(t+1)}")
        each(lambda g, up, st, cg, cu, t: f"v_pk_mul_f32 {v(g,2)}, {v(g,2)}, {v(up,2)}")
        each(lambda g, up, st, cg, cu, t: f"v_pk_mul_f32 {v(t,2)}, {v(t,2)}, {v(g,2)}")
        for q, (sb, h, t) in enumerate(pairs):
            out.append(f"v_cvt_pk_bf16_f32 {v(o+q)}, {v(t)}, {v(t+1)}")
        out.append(f"buffer_store_dwordx4 {v(o,4)}, {v(G_L16)}, {s(R_WS,4)}, {s(S_H1 if pp else S_H0)} offen offset:{u*1024} sc1")
        return out

    def stage_flag(n):
        ok = a.label("wd_ok")
        a(f"s_waitcnt lgkmcnt(0)\nv_readfirstlane_b32 {s(S_T0)}, v14\ns_nop 0\ns_cmp_ge_u32 {s(S_T0)}, {n}\ns_cbranch_scc1 {ok}")
        lds_min_wait(a, 15, W_WD, 1, n, 14)
        a(f"{ok}:")

    rd_flag = f"ds_read_b32 v14, v15 offset:{W_WD}"
    a.c("as a unit's accumulators retire they take two Wd steps; the freed ring slots are refilled")
    for l in group(0, 0) + [rd_flag] + group(0, 1):
        a(l)
    stage_flag(1)
    for l in interleave(group(1, 0), g2_tr(0) + g2_tr(1), 0, 2):
        a(l)
    a(rd_flag)
    for l in group(1, 1):
        a(l)
    a(f"s_cbranch_vccnz {lab}")
    for l in group(2, 0) + [rd_flag] + group(2, 1):
        a(l)
    a(f"{lab}:")
    a.c("release the conv waves")
    if not opt("CEARLY", 0):
        a("s_mov_b64 exec, 1\nds_add_u32 v12, v13\ns_mov_b64 exec, -1")
    stamp(a, 5)
    a.c("publish: F3[(2mi + sh)*32 + ni*2 + uh]")
    a(f"s_lshl_b32 {s(S_T0)}, {s(S_MI)}, 1\ns_add_u32 {s(S_T0)}, {s(S_T0)}, {s(S_SH)}\ns_lshl_b32 {s(S_T0)}, {s(S_T0)}, 4\ns_add_u32 {s(S_T0)}, {s(S_T0)}, {s(S_NI)}")
    a(f"s_lshl_b32 {s(S_T0)}, {s(S_T0)}, 1\ns_add_u32 {s(S_T0)}, {s(S_T0)}, {s(S_UH)}\ns_lshl_b32 {s(S_T0)}, {s(S_T0)}, 7\ns_add_u32 {s(S_T2)}, {s(S_T0)}, {WS_F3:#x}")
    a("s_waitcnt lgkmcnt(0)")
    for l in wd_dma(7) + wd_dma(8):
        a(l)
    a("s_waitcnt vmcnt(8)")
    flag_store(a, S_T2, 10, 11)
    stamp(a, 6)
    stage_flag(2)
    for l in g2_tr(2) + g2_tr(3):
        a(l)
    a("s_waitcnt lgkmcnt(0)")
    for l in wd_dma(9) + wd_dma(10):
        a(l)


def g2_tr(i):
    wf = G_WF + (i % NWF) * 16
    sl = i % NRW
    base, off = (G_TR0, sl*4096) if sl < 2 else (G_TR5, 0) if sl == 6 else (G_TR, (sl-2)*16384)
    return [f"ds_read_b64_tr_b16 {v(wf+4*db+2*t,2)}, {v(base+db)} offset:{off + t*2048}" for db in range(4) for t in range(2)]


def g2_swaps(i, p):
    hb = G_H + (i % NHB) * 16
    return [f"v_swap_b32 {v(hb+8*p+2+k)}, {v(hb+8*p+4+k)}" for k in range(2)]


def g2_main(a):
    a(f"s_setprio {opt('PRG', 2)}")
    poll(a, G_FL, 10)
    stamp(a, 7)
    q = VQ(a)
    def hq(i):
        q.add(("h", i, 0), 2); q.add(("h", i, 1), 2)
    for i in range(NHB - 1):
        for op in h_loads(i):
            a(op)
        hq(i)
    lds_min_wait(a, 15, W_WD, 1, 3, 14)
    if opt("G2ST", 0): stamp(a, 1)
    q.wait(("h", 0, 0))
    if opt("G2ST", 0): stamp(a, 2)
    for l in g2_swaps(0, 0):
        a(l)
    a("s_nop 1")
    for i in range(NSTEP):
        if opt("G2ST", 0) and i in (2, 4, 6, 8):
            stamp(a, 2 + i // 2)
        if i == opt("HIS", 3):
            lds_inc(a, V_LW, 13, W_HI)
        wf, hb = G_WF + (i % NWF) * 16, G_H + (i % NHB) * 16
        ld = h_loads(i + NHB - 1) if i + NHB - 1 < NSTEP else []
        tr = g2_tr(i + 2) if NWF <= i + 2 < NSTEP else []
        n = 0
        for p in range(2):
            for db in range(4):
                for sb in (2*p, 2*p + 1):
                    c = G_ACC + (db * 4 + sb) * 4
                    a(f"v_mfma_f32_16x16x32_bf16 {v(c,4)}, {v(wf+4*db,4)}, {v(hb+4*sb,4)}, {v(c,4) if i else 0}")
                    n += 1
                    if n == 4:
                        q.wait(("h", i, 1))
                        for l in g2_swaps(i, 1):
                            a(l)
                    if n in (1, 5, 8, 11) and ld:
                        a(ld.pop(0))
                        q.add(("h", i + NHB - 1, 0 if len(ld) >= 2 else 1), 1)
                    if 5 <= n <= 12 and tr:
                        a(tr.pop(0))
                    if n == 13 and i + 1 < NSTEP:
                        q.wait(("h", i + 1, 0))
                        for l in g2_swaps(i + 1, 0):
                            a(l)
                        if i + 1 >= NWF:
                            a(f"s_waitcnt lgkmcnt({8 if i + 2 < NSTEP else 0})")
    stamp(a, 8)
    a.c("partial tile -> own ring slots 1..4: sb*16384 + w*4096 + s16*256 + ((4db + g) ^ (s16&7))*16")
    a(f"v_and_b32 v8, 15, v0\nv_lshrrev_b32 v9, 4, v0\nv_and_b32 v10, 7, v0\nv_xor_b32 v9, v9, v10\nv_lshlrev_b32 v9, 4, v9\nv_lshl_add_u32 v8, v8, 8, v9\nv_add_u32 v8, {s(S_KC)}, v8\nv_xor_b32 v9, 64, v8")
    a("s_nop 0")
    for db in range(4):
        for sb in range(4):
            a(f"ds_write_b128 {'v9' if db & 1 else 'v8'}, {v(G_ACC+(db*4+sb)*4,4)} offset:{sb*16384 + (db>>1)*128}")
    a("s_waitcnt lgkmcnt(0)")
    stamp(a, 9)
    a("s_barrier")


VB_X2 = 18


def dma_chunk(a):
    a(f"s_add_u32 {s(S_T1)}, {s(S_UH)}, {s(S_IT)}\ns_and_b32 {s(S_T1)}, {s(S_T1)}, 7")
    a(f"s_lshl_b32 {s(S_T0)}, {s(S_T1)}, 7\ns_add_u32 {s(S_T0)}, {s(S_T0)}, {s(S_XO)}")
    a(f"s_mul_i32 {s(S_T1)}, {s(S_T1)}, {64*F*2}\ns_add_u32 {s(S_HO)}, {s(S_WO)}, {s(S_T1)}\ns_add_u32 {s(S_DO)}, {s(S_WO2)}, {s(S_T1)}")
    for i in range(16):
        a(f"s_add_u32 m0, {s(S_SLOT)}, {i*1024}")
        a(f"s_add_u32 {s(S_T0)}, {s(S_T0)}, 8192" if i else "s_nop 0")
        a(f"buffer_load_dwordx4 {v(VB_X2 if i & 1 else VB_X)}, {s(R_X,4)}, {s(S_T0)} offen lds")
    for k4 in range(4):
        if k4:
            a(f"s_add_u32 {s(S_HO)}, {s(S_HO)}, {16*F*2}\ns_add_u32 {s(S_DO)}, {s(S_DO)}, {16*F*2}")
        for blk in range(3):
            for mat in range(2):
                a(f"s_add_u32 m0, {s(S_SLOT)}, {16384 + (mat*3+blk)*4096 + k4*1024 - 64*blk}")
                a("s_nop 0")
                a(f"buffer_load_dwordx4 {v(VB_W)}, {s(R_WU if mat else R_WG,4)}, {s(S_DO if blk == 2 else S_HO)} offen offset:{64*blk} lds")


GG = 112


def loader(a):
    a(f"s_setprio {opt('PRL', 2)}")
    a.c("loader w streams chunks 1+w, 3+w, ..")
    a(f"s_lshl_b32 {s(S_XO)}, {s(S_MI)}, 17\ns_lshl_b32 {s(S_WO)}, {s(S_FB0)}, 6")
    a(f"s_cmp_eq_u32 {s(S_NBLK)}, 3\ns_cselect_b32 {s(S_WO2)}, {s(S_WO)}, {OOB:#x}")
    a(f"s_lshl_b32 {s(S_T0)}, {s(S_WB)}, 6\nv_xor_b32 {v(VB_X)}, {s(S_T0)}, {v(VB_X)}\nv_xor_b32 {v(VB_X2)}, 64, {v(VB_X)}")
    a(f"s_add_u32 {s(S_IT)}, {s(S_WB)}, 1\ns_mul_i32 {s(S_SLOT)}, {s(S_IT)}, {SLOT}\ns_mov_b32 {s(S_SH)}, {s(S_WB)}")
    a(f"s_lshl_b32 {s(S_T0)}, {s(S_WB)}, 2\ns_add_u32 {s(S_T0)}, {s(S_T0)}, {L_CNT + W_FULL}\nv_mov_b32 v10, {s(S_T0)}")
    lds_min_wait(a, C_CNT, W_ISS, 1, s(S_WB), 20)
    a("ld_loop:")
    dma_chunk(a)
    a(f"v_mov_b32 v16, {s(S_IT)}")
    a(f"s_mov_b64 exec, 1\nds_max_u32 {v(C_CNT)}, v16 offset:{W_ISS}\ns_mov_b64 exec, -1")
    if ITST:
        it_issue(a)
        a("s_waitcnt lgkmcnt(0)")
        it_take(a, 0)
    a(f"s_sub_u32 {s(S_SLOT)}, {s(S_SLOT)}, {SLOT}\ns_cselect_b32 {s(S_SLOT)}, {2*SLOT}, {s(S_SLOT)}")
    a(f"s_cmp_ge_u32 {s(S_IT)}, 6\ns_cbranch_scc1 ld_done")
    a("s_waitcnt vmcnt(0)")
    a("ds_write_b32 v10, v16")
    if ITST:
        it_issue(a)
        a("s_waitcnt lgkmcnt(0)")
        it_take(a, 16)
    lds_min_wait(a, C_CNT, W_FREE, 4, s(S_IT), 20)
    if ITST:
        it_issue(a)
        a("s_waitcnt lgkmcnt(0)")
        it_take(a, 48)
    a(f"s_add_u32 {s(S_IT)}, {s(S_IT)}, 2")
    a("s_branch ld_loop")
    a("ld_done:")
    lstamp(a, 1)
    wd_setup(a, 0)
    a(f"s_lshl_b32 {s(S_T0)}, {s(S_WB)}, 2\nv_add_u32 v11, {s(S_T0)}, {v(C_CNT)}\nv_mov_b32 v17, 2")
    lab = a.label("ld_last")
    if opt("WDWAIT7", 1):
        a(f"s_cmp_eq_u32 {s(S_IT)}, 7\ns_cbranch_scc1 {lab}")
        a("s_waitcnt vmcnt(0)")
        a("ds_write_b32 v10, v16")
        lds_min_wait(a, C_CNT, W_ISS, 1, 7, 20)
        a(f"{lab}:")
    lds_min_wait(a, C_CNT, W_HP, 1, 2, 20)
    for op in wd_dma(0, 2):
        a(op)
    a("s_waitcnt vmcnt(8)")
    a("ds_write_b32 v10, v16")
    for op in wd_dma(1, 2):
        a(op)
    lstamp(a, 2)
    lds_min_wait(a, C_CNT, W_FREE, 4, 7, 20)
    for i in (2, 3):
        for op in wd_dma(i, 2):
            a(op)
    a("s_waitcnt vmcnt(16)")
    a(f"ds_write_b32 v11, {v(C_ONE)} offset:{W_WD}")
    lstamp(a, 3)
    lds_min_wait(a, C_CNT, W_FREE, 4, 8, 20)
    TH = opt("WDTH", 8)
    n = 0
    for i in (4, 5, 6):
        for op in wd_dma(i, 2):
            a(op)
            n += 1
            if n % 4 == 0 and (TH or n == 8):
                a(f"s_waitcnt vmcnt({min(TH, n) if TH else 8})")
            if n == 8:
                a(f"ds_write_b32 v11, v17 offset:{W_WD}")
    a(f"ds_read_b32 v1, {v(C_CNT)} offset:{W_NON}")
    final_loads(a)
    a("s_waitcnt lgkmcnt(0)")
    a(f"v_readfirstlane_b32 {s(S_NON)}, v1")


VS, VKV, VSK = 144, 24, 64
ONE = 192


def round_bf16(a, r):
    a(f"v_cvt_pk_bf16_f32 {v(r)}, {v(r)}, {v(r)}\nv_lshlrev_b32 {v(r)}, 16, {v(r)}")


def stats_loads(a):
    a(f"s_lshl_b32 {s(S_T0)}, {s(S_TI)}, 1\ns_add_u32 {s(S_T0)}, {s(S_T0)}, {s(S_SH)}\ns_lshl_b32 {s(S_T0)}, {s(S_T0)}, 12")
    a("v_bfe_u32 v5, v0, 2, 2\nv_lshlrev_b32 v5, 10, v5\nv_and_b32 v6, 3, v0\nv_lshl_add_u32 v5, v6, 4, v5\nv_lshrrev_b32 v6, 4, v0\nv_lshl_add_u32 v5, v6, 6, v5")
    for r in range(4):
        a(f"buffer_load_dwordx4 {v(VS+4*r,4)}, v5, {s(R_X,4)}, {s(S_T0)} offen offset:{r*256}")


def stats(a):
    G, O, R = 72, 76, 80
    for r in range(4):
        a(f"v_mfma_f32_16x16x32_bf16 {v(G,4)}, {v(VS+4*r,4)}, {v(VS+4*r,4)}, {v(G,4) if r else 0}")
        a(f"v_mfma_f32_16x16x32_bf16 {v(O,4)}, {v(ONE,4)}, {v(VS+4*r,4)}, {v(O,4) if r else 0}")
    a.c("diagonal element of lane (n, g = n>>2) is register n&3")
    a(f"v_and_b32 v6, 3, v0\nv_cmp_eq_u32 vcc, 1, v6\nv_cmp_eq_u32 {s(S_EX,2)}, 2, v6\nv_cmp_eq_u32 {s(S_XO,2)}, 3, v6")
    a(f"s_lshl_b32 {s(S_T0)}, {s(S_TI)}, 1\ns_add_u32 {s(S_T0)}, {s(S_T0)}, {s(S_SH)}\ns_lshl_b32 {s(S_T0)}, {s(S_T0)}, 6\ns_add_u32 {s(S_T0)}, {s(S_T0)}, {WS_ST:#x}")
    a("v_and_b32 v5, 48, v0\ns_nop 0")
    a(f"v_cndmask_b32 {v(G)}, {v(G)}, {v(G+1)}, vcc\nv_cndmask_b32 {v(G)}, {v(G)}, {v(G+2)}, {s(S_EX,2)}\nv_cndmask_b32 {v(G)}, {v(G)}, {v(G+3)}, {s(S_XO,2)}")
    for qp in ("[1,0,3,2]", "[2,3,0,1]"):
        a("s_nop 0")
        a(f"v_add_f32_dpp {v(O)}, {v(O)}, {v(O)} quad_perm:{qp} row_mask:0xf bank_mask:0xf")
        a(f"v_add_f32_dpp {v(G)}, {v(G)}, {v(G)} quad_perm:{qp} row_mask:0xf bank_mask:0xf")
    M, K1, K2, I2 = R, R + 1, R + 2, R + 3
    a(f"v_mul_f32 {v(M)}, {f32bits(1/512):#x}, {v(O)}\nv_mul_f32 {v(K2)}, {f32bits(1/512):#x}, {v(G)}")
    a(f"v_fma_f32 {v(K2)}, -{v(M)}, {v(M)}, {v(K2)}\nv_max_f32 {v(K2)}, 0, {v(K2)}")
    round_bf16(a, M)
    round_bf16(a, K2)
    a(f"v_add_f32 {v(K2)}, {f32bits(1e-5):#x}, {v(K2)}")
    round_bf16(a, K2)
    a(f"v_sqrt_f32 {v(K2)}, {v(K2)}\ns_nop 0")
    round_bf16(a, K2)
    a(f"v_rcp_f32 {v(K1)}, {v(K2)}\nv_mul_f32 {v(I2)}, {v(K2)}, {v(K2)}")
    a(f"v_mul_f32 {v(K2)}, {v(K1)}, {v(K1)}\nv_mul_f32 {v(K2)}, {v(K2)}, {v(K1)}")
    a(f"v_mul_f32 {v(K2)}, {f32bits(C2):#x}, {v(K2)}\nv_mul_f32 {v(K1)}, {f32bits(C1):#x}, {v(K1)}")
    a.c("row g is complete in lane 20g")
    a(f"s_mov_b32 {s(S_EX)}, 0x00100001\ns_mov_b32 {s(S_EX+1)}, 0x10000100\ns_mov_b64 exec, {s(S_EX,2)}")
    a(f"buffer_store_dwordx4 {v(R,4)}, v5, {s(R_WS,4)}, {s(S_T0)} offen sc1")
    a("s_mov_b64 exec, -1")


L_VST = 155648
NT = "nt " if opt("NT", 1) else ""
NTT = " nt" if opt("NTT", 0) else ""


def kv_dma(a):
    a("v_lshrrev_b32 v5, 3, v0\nv_lshlrev_b32 v5, 10, v5\nv_and_b32 v6, 7, v0\nv_lshl_add_u32 v5, v6, 4, v5")
    a(f"v_add_u32 v69, {s(S_DO)}, v5")
    a.c("rows above the start of the sequence are out of range and read as zero")
    a("v_subrev_u32 v7, 0xc00, v69\nv_cmp_gt_u32 vcc, 0xc00, v69\nv_mov_b32 v68, 0x7ff00000\ns_nop 1\nv_cndmask_b32 v7, v7, v68, vcc")
    a(f"s_mul_i32 {s(S_T0)}, {s(S_SH)}, {64*KVT_STR}\ns_add_u32 {s(S_T0)}, {s(S_T0)}, {L_KVT}")
    a(f"s_lshl_b32 {s(S_T2)}, {s(S_SH)}, 12\ns_add_u32 {s(S_T2)}, {s(S_T2)}, {L_VST}")
    for i in range(5):
        a(f"s_add_u32 m0, {s(S_T0)}, {1024*i}\ns_mov_b32 {s(S_T1)}, {max(8192*i - 3072, 0)}")
        a(f"buffer_load_dwordx4 {'v69' if i else 'v7'}, {s(R_K,4)}, {s(S_T1)} offen {NT}lds")
    for i in range(4):
        a(f"s_add_u32 m0, {s(S_T2)}, {1024*i}\ns_mov_b32 {s(S_T1)}, {8192*i}")
        a(f"buffer_load_dwordx4 v69, {s(R_V,4)}, {s(S_T1)} offen {NT}lds")
    a("v_and_b32 v6, 31, v0\nv_lshrrev_b32 v5, 5, v0\nv_lshlrev_b32 v5, 10, v5\nv_lshl_add_u32 v5, v6, 2, v5")
    a(f"v_add_u32 v68, {s(S_T0)}, v5\nv_add_u32 v69, {s(S_T2)}, v5")
    a(f"s_and_b32 {s(S_T1)}, {s(S_TI)}, 7\ns_lshl_b32 {s(S_T1)}, {s(S_T1)}, 9\nv_lshlrev_b32 v6, 4, v6")
    a(f"buffer_load_dwordx4 {v(VSK,4)}, v6, {s(R_SK,4)}, {s(S_T1)} offen")


def kv_reads(a):
    for ps in range(2):
        b = VKV + 19 * ps
        for i in range(11):
            a(f"ds_read_b32 {v(b+i)}, v68 offset:{ps*2048 + i*128}")
        for i in range(8):
            a(f"ds_read_b32 {v(b+11+i)}, v69 offset:{ps*2048 + i*128}")


def touch_x(a, p, vd):
    a(f"s_lshl_b32 {s(S_T0)}, {s(S_MI)}, 2\ns_and_b32 {s(S_T1)}, {s(S_NI)}, 3\ns_add_u32 {s(S_T0)}, {s(S_T0)}, {s(S_T1)}\ns_lshl_b32 {s(S_T0)}, {s(S_T0)}, 15")
    a("v_and_b32 v5, 31, v0\nv_lshrrev_b32 v6, 5, v0\nv_lshlrev_b32 v6, 7, v6\nv_lshl_add_u32 v5, v5, 10, v6")
    for q in p:
        a(f"buffer_load_dword {v(vd)}, v5, {s(R_X,4)}, {s(S_T0)} offen offset:{128*q}{NTT}")


def touch_w(a, p, srds, vd):
    a(f"s_and_b32 {s(S_T0)}, {s(S_MI)}, 7\ns_add_u32 {s(S_T0)}, {s(S_T0)}, {8*p}\ns_mul_i32 {s(S_T0)}, {s(S_T0)}, {8*F*2}\ns_lshl_b32 {s(S_T1)}, {s(S_FB0)}, 6\ns_add_u32 {s(S_T0)}, {s(S_T0)}, {s(S_T1)}")
    a(f"s_add_u32 {s(S_T1)}, {s(S_NBLK)}, 4")
    a(f"v_lshrrev_b32 v5, 4, v0\nv_bfe_u32 v6, v0, 1, 3\nv_lshl_add_u32 v5, v5, 6, v6\nv_mul_u32_u24 v5, {F*2}, v5\nv_and_b32 v6, 1, v0\nv_lshl_add_u32 v5, v6, {s(S_T1)}, v5")
    for r in srds:
        a(f"buffer_load_dword {v(vd)}, v5, {s(r,4)}, {s(S_T0)} offen{NTT}")
        if opt("TOUCH", 0) == 2:
            a(f"s_add_u32 {s(S_T0)}, {s(S_T0)}, {256*F*2}")
            a(f"buffer_load_dword {v(vd)}, v5, {s(r,4)}, {s(S_T0)} offen{NTT}")


KU, VU, KW, KO, KT = 72, 94, 110, 120, 128


def kv_taps(a):
    for j in range(4):
        for ch in range(2):
            src = VSK + 2*ch + (j >> 1)
            a(f"v_and_b32 {v(KW+2*j+ch)}, {s(S_C)}, {v(src)}" if j & 1 else f"v_lshlrev_b32 {v(KW+2*j+ch)}, 16, {v(src)}")
    a.c("KVT row = 2*(l&31) + ch, 16-B piece = 3 - (2*pass + l>>5)")
    a(f"v_and_b32 v70, 31, v0\nv_mul_u32_u24 v70, {2*KVT_STR}, v70\nv_lshrrev_b32 v5, 5, v0\nv_lshlrev_b32 v5, 4, v5\nv_sub_u32 v70, v70, v5")
    a(f"s_mul_i32 {s(S_T0)}, {s(S_SH)}, {64*KVT_STR}\ns_add_u32 {s(S_T0)}, {s(S_T0)}, {L_KVT + 16}\nv_add_u32 v70, {s(S_T0)}, v70")


def kv_compute(ps):
    b = VKV + 19 * ps
    o = []
    for i in range(11):
        o += [f"v_lshlrev_b32 {v(KU+2*i)}, 16, {v(b+i)}", f"v_and_b32 {v(KU+2*i+1)}, {s(S_C)}, {v(b+i)}"]
    for e in range(16):
        o.append(f"v_mul_f32 {v(KT+e)}, {v(KU+e)}, {v(KW+6+(e&1))}")
    for j in (2, 1, 0):
        for e in range(16):
            o.append(f"v_fmac_f32 {v(KT+e)}, {v(KU+e+2*(3-j))}, {v(KW+2*j+(e&1))}")
    for i in range(8):
        o += [f"v_lshlrev_b32 {v(VU+2*i)}, 16, {v(b+11+i)}", f"v_and_b32 {v(VU+2*i+1)}, {s(S_C)}, {v(b+11+i)}"]
    for e in range(16):
        o.append(f"v_mul_f32 {v(KT+e)}, {v(KT+e)}, {v(VU+e)}")
    for ch in range(2):
        for i in range(4):
            o.append(f"v_cvt_pk_bf16_f32 {v(KO+4*ch+i)}, {v(KT+2*(7-2*i)+ch)}, {v(KT+2*(6-2*i)+ch)}")
    o += [f"ds_write_b128 v70, {v(KO,4)} offset:{32*(1-ps)}", f"ds_write_b128 v70, {v(KO+4,4)} offset:{32*(1-ps) + KVT_STR}"]
    return o


def kv_store(a):
    a(f"v_lshrrev_b32 v5, 2, v0\nv_and_b32 v6, 3, v0\nv_lshlrev_b32 v6, 4, v6\nv_mul_u32_u24 v7, {KVT_STR}, v5\nv_add_u32 v7, v7, v6")
    a(f"s_mul_i32 {s(S_T0)}, {s(S_SH)}, {64*KVT_STR}\ns_add_u32 {s(S_T0)}, {s(S_T0)}, {L_KVT}\nv_add_u32 v7, {s(S_T0)}, v7")
    a("s_waitcnt lgkmcnt(0)")
    for i in range(4):
        a(f"ds_read_b128 {v(24+4*i,4)}, v7 offset:{16*i*KVT_STR}")
    a("v_lshl_add_u32 v5, v5, 12, v6")
    a(f"s_and_b32 {s(S_T0)}, {s(S_TI)}, 7\ns_lshl_b32 {s(S_T0)}, {s(S_T0)}, 18")
    a(f"s_lshr_b32 {s(S_T1)}, {s(S_TI)}, 3\ns_lshl_b32 {s(S_T1)}, {s(S_T1)}, 1\ns_add_u32 {s(S_T1)}, {s(S_T1)}, {s(S_SH)}\ns_lshl_b32 {s(S_T1)}, {s(S_T1)}, 6")
    a(f"s_sub_u32 {s(S_T0)}, {s(S_T0)}, {s(S_T1)}\ns_add_u32 {s(S_T0)}, {s(S_T0)}, {WS_KVR + 4096 - 64:#x}")
    for i in range(4):
        a(f"s_waitcnt lgkmcnt({3-i})")
        a(f"buffer_store_dwordx4 {v(24+4*i,4)}, v5, {s(R_WS,4)}, {s(S_T0)} offen sc1")
        a(f"s_add_u32 {s(S_T0)}, {s(S_T0)}, 65536")


def cs_loads(a):
    a(f"s_mul_i32 {s(S_T0)}, {s(S_MI)}, {32*F*2}\ns_lshl_b32 {s(S_T1)}, {s(S_FB0)}, 6\ns_add_u32 {s(S_T0)}, {s(S_T0)}, {s(S_T1)}\ns_add_u32 {s(S_T1)}, {s(S_T0)}, {16*F*2}")
    a(f"s_mul_i32 {s(S_M0)}, {s(S_SH)}, 6144\ns_add_u32 {s(S_M0)}, {s(S_M0)}, {L_CSS}")
    l1, l2 = a.label("cs"), a.label("cs")
    a(f"s_cmp_lg_u32 {s(S_SH)}, 0\ns_cbranch_scc1 {l1}")
    for r in (R_WG, R_WU):
        for blk in range(3):
            for k2 in range(2):
                a(f"s_add_u32 m0, {s(S_M0)}, {blk*2048 + k2*1024 - 64*blk}\ns_nop 0")
                a(f"buffer_load_dwordx4 {v(VB_W)}, {s(r,4)}, {s(S_T1 if k2 else S_T0)} offen offset:{64*blk} lds")
        a(f"s_branch {l2}\n{l1}:" if r == R_WG else f"{l2}:")


def colsum(a):
    W, O = 144, 168
    a("v_lshrrev_b32 v5, 4, v0\nv_lshlrev_b32 v6, 9, v5\nv_bfe_u32 v7, v0, 2, 2\nv_lshl_add_u32 v6, v7, 6, v6\nv_and_b32 v7, 3, v0\nv_lshl_add_u32 v6, v7, 3, v6")
    a(f"v_and_b32 v7, 1, v5\nv_lshl_add_u32 v6, v7, 5, v6\nv_add_u32 v6, {s(S_M0)}, v6\nv_xor_b32 v7, 32, v6")
    for u in range(6):
        for tt in range(2):
            a(f"ds_read_b64_tr_b16 {v(W+4*u+2*tt,2)}, {'v7' if u & 1 else 'v6'} offset:{(u>>1)*2048 + tt*256}")
    a.c("CSP offset = ((ni*2 + hw)*16 + mi)*384 + u*64 + g*16")
    a(f"s_lshl_b32 {s(S_T0)}, {s(S_NI)}, 1\ns_add_u32 {s(S_T0)}, {s(S_T0)}, {s(S_SH)}\ns_lshl_b32 {s(S_T0)}, {s(S_T0)}, 4\ns_add_u32 {s(S_T0)}, {s(S_T0)}, {s(S_MI)}")
    a(f"s_mul_i32 {s(S_T0)}, {s(S_T0)}, 384\ns_add_u32 {s(S_T0)}, {s(S_T0)}, {WS_CSP:#x}")
    a("v_and_b32 v5, 48, v0")
    a("s_waitcnt lgkmcnt(0)")
    for u in range(6):
        a(f"v_mfma_f32_16x16x32_bf16 {v(O+4*u,4)}, {v(W+4*u,4)}, {v(ONE,4)}, 0")
    a(f"s_mov_b32 {s(S_EX)}, 0x00010001\ns_mov_b32 {s(S_EX+1)}, 0x00010001\ns_nop 5\ns_mov_b64 exec, {s(S_EX,2)}")
    for u in range(6):
        a(f"buffer_store_dwordx4 {v(O+4*u,4)}, v5, {s(R_WS,4)}, {s(S_T0)} offen offset:{u*64} sc1")
    a("s_mov_b64 exec, -1")


def hflag(a, base):
    a(f"s_lshl_b32 {s(S_T0)}, {s(S_TI)}, 7\ns_lshl_b32 {s(S_T1)}, {s(S_SH)}, 2\ns_add_u32 {s(S_T0)}, {s(S_T0)}, {s(S_T1)}\ns_add_u32 {s(S_T0)}, {s(S_T0)}, {base:#x}")
    flag_store(a, S_T0, 196, 197)


CG = 144


def cs_gather_issue(a):
    a(f"s_lshl_b32 {s(S_T0)}, {s(S_NI)}, 1\ns_add_u32 {s(S_T0)}, {s(S_T0)}, {s(S_SH)}\ns_mul_i32 {s(S_T0)}, {s(S_T0)}, 6144\ns_add_u32 {s(S_T0)}, {s(S_T0)}, {WS_CSP:#x}")
    a("v_and_b32 v5, 31, v0\nv_lshlrev_b32 v5, 4, v5\nv_lshrrev_b32 v6, 5, v0\nv_mul_u32_u24 v6, 3072, v6\nv_add_u32 v6, v5, v6")
    for i in range(8):
        a(f"buffer_load_dwordx4 {v(CG+4*i,4)}, v6, {s(R_WS,4)}, {s(S_T0)} offen offset:{i*384} sc1")


def cs_gather_finish(a):
    n = 8
    while n > 1:
        n //= 2
        for i in range(4 * n):
            a(f"v_add_f32 {v(CG+i)}, {v(CG+i)}, {v(CG+4*n+i)}")
    for i in range(4):
        a(f"v_mov_b32 {v(CG+4+i)}, {v(CG+i)}")
    a(f"s_lshl_b32 {s(S_T0)}, {s(S_SH)}, 9\ns_add_u32 {s(S_T0)}, {s(S_T0)}, {L_CS}\nv_and_b32 v8, 31, v0\nv_lshlrev_b32 v8, 4, v8\nv_add_u32 v8, {s(S_T0)}, v8")
    for i in range(4):
        a(f"v_permlane32_swap_b32 {v(CG+i)}, {v(CG+4+i)}")
    a("s_nop 0")
    for i in range(4):
        a(f"v_add_f32 {v(CG+i)}, {v(CG+i)}, {v(CG+4+i)}")
    a(f"ds_write_b128 v8, {v(CG,4)}")


def helper(a):
    q = VQ(a)
    a(f"s_sub_u32 {s(S_SH)}, {s(S_WB)}, 2")
    a(f"s_lshl_b32 {s(S_HO)}, {s(S_TI)}, 1\ns_add_u32 {s(S_HO)}, {s(S_HO)}, {s(S_SH)}\ns_lshl_b32 {s(S_HO)}, {s(S_HO)}, 12")
    a.c("k/v tile base: rows 32*(2*(ti>>3) + hw).., channels 64*(ti&7)")
    a(f"s_lshr_b32 {s(S_T0)}, {s(S_TI)}, 3\ns_lshl_b32 {s(S_T0)}, {s(S_T0)}, 1\ns_add_u32 {s(S_T0)}, {s(S_T0)}, {s(S_SH)}\ns_lshl_b32 {s(S_T0)}, {s(S_T0)}, 15")
    a(f"s_and_b32 {s(S_T1)}, {s(S_TI)}, 7\ns_lshl_b32 {s(S_T2)}, {s(S_T1)}, 7\ns_add_u32 {s(S_DO)}, {s(S_T0)}, {s(S_T2)}")
    a(f"s_mul_i32 {s(S_KC)}, {s(S_TI)}, {43*128}\ns_mul_i32 {s(S_T1)}, {s(S_SH)}, {22*128}\ns_add_u32 {s(S_KC)}, {s(S_KC)}, {s(S_T1)}")
    def sc():
        stats_loads(a); q.add("s", 4)
        cs_loads(a); q.add("csd", 6)
    SKV = opt("SKV", 0)
    KVAT = opt("KVAT", 0) or SKV
    def wdt():
        a.c("first touch of Wd lines 43*ti + 22*hw + lane")
        a("v_lshlrev_b32 v11, 7, v0\ns_mov_b64 exec, 0x3fffff")
        a(f"buffer_load_dword v71, v11, {s(R_WD,4)}, {s(S_KC)} offen"); q.add("wd", 1)
        a("s_mov_b64 exec, -1")
    def cold():
        kv_dma(a); q.add("kv", 10)
        if not SKV:
            wdt()
        if SKV != 1:
            conv_h_loads(a); q.add("h", 4)
    epoch_load(a, 1); q.add("e", 1)
    sc()
    if SKV:
        wdt()
        a(f"s_sub_i32 {s(S_KC)}, {s(S_DO)}, 3072\ns_max_i32 {s(S_KC)}, {s(S_KC)}, 0")
        spf(a, R_K, S_KC, [1024*i for i in range(35)])
    if not KVAT:
        cold()
    for i in range(4):
        a(f"v_mov_b32 {v(ONE+i)}, 0x3f803f80")
    a.c("F1 pairs: lanes 0-31 tiles 16mi + (l&15) (row records), lanes 32-63 tiles 16*(l&15) + ni (column sums)")
    a(f"s_lshl_b32 {s(S_T0)}, {s(S_MI)}, 11\nv_and_b32 v9, 15, v0\nv_lshlrev_b32 v8, 7, v9\nv_add_u32 v8, {s(S_T0)}, v8")
    a(f"s_lshl_b32 {s(S_T0)}, {s(S_NI)}, 7\nv_lshlrev_b32 v9, 11, v9\nv_add_u32 v9, {s(S_T0)}, v9\nv_cmp_lt_u32 vcc, 31, v0")
    a(f"s_nop 1\nv_cndmask_b32 v8, v8, v9, vcc\nv_add_u32 v8, {WS_F1:#x}, v8")
    q.wait("e", "s")
    stamp(a, 1)
    epoch_take(a, 1)
    a(f"v_mov_b32 v20, {s(S_NON)}\nds_write_b32 {v(C_CNT)}, v20 offset:{W_NON}")
    stats(a); q.add("st", 1)
    q.wait("csd")
    colsum(a); q.add("st", 6)
    stamp(a, 2)
    if SKV:
        spf(a, R_V, S_DO, [1024*i for i in range(14)])
        q.wait("st")
        hflag(a, WS_F1); q.add("f", 1)
        stamp(a, 3)
        spf(a, R_V, S_DO, [1024*i for i in range(14, 32)])
        a(f"s_and_b32 {s(S_T1)}, {s(S_TI)}, 7\ns_lshl_b32 {s(S_T1)}, {s(S_T1)}, 9")
        spf(a, R_SK, S_T1, [128*i for i in range(4)])
        if SKV == 2:
            spf(a, R_H, S_HO, [128*i for i in range(32)])
        a("s_waitcnt lgkmcnt(0)")
        cold()
    elif KVAT:
        a(f"s_lshr_b32 {s(S_T3)}, s2, 3\ns_and_b32 {s(S_T3)}, {s(S_T3)}, {opt('KVM', 0)}\ns_add_u32 {s(S_T3)}, {s(S_T3)}, {KVAT}")
        lds_min_wait(a, C_CNT, W_ISS, 1, s(S_T3), 20)
        cold()
        q.wait("st")
        hflag(a, WS_F1); q.add("f", 1)
        stamp(a, 3)
    q.wait("kv")
    kv_reads(a)
    kv_taps(a)
    a("s_waitcnt lgkmcnt(0)")
    for l in kv_compute(0):
        a(l)
    if not KVAT:
        q.wait("st")
        hflag(a, WS_F1); q.add("f", 1)
        stamp(a, 3)
    for l in kv_compute(1):
        a(l)
    kv_store(a); q.add("kvst", 4)
    lds_inc(a, C_CNT, C_ONE, W_HP)
    q.wait("kvst")
    hflag(a, WS_F2); q.add("f", 1)
    stamp(a, 4)
    if SKV == 1:
        spf(a, R_H, S_HO, [128*i for i in range(32)])
    lds_min_wait(a, C_CNT, W_ISS, 1, opt("GAT", 7), 20)
    if SKV == 1:
        conv_h_loads(a)
    poll2_issue(a, 8, 198)
    a.c("F2 pairs of tiles 8*(l&31) + (ti>>5)")
    a(f"s_lshr_b32 {s(S_T0)}, {s(S_TI)}, 5\ns_lshl_b32 {s(S_T0)}, {s(S_T0)}, 7\ns_add_u32 {s(S_T0)}, {s(S_T0)}, {WS_F2:#x}")
    a(f"v_and_b32 v16, 31, v0\nv_lshlrev_b32 v16, 10, v16\nv_add_u32 v16, {s(S_T0)}, v16")
    poll2_issue(a, 16, 18)
    a("s_waitcnt vmcnt(1)")
    poll2_check(a, 8, 198)
    a(f"s_lshl_b32 {s(S_T0)}, {s(S_MI)}, 1\ns_add_u32 {s(S_T0)}, {s(S_T0)}, {s(S_SH)}\ns_lshl_b32 {s(S_T0)}, {s(S_T0)}, 10\ns_add_u32 {s(S_T0)}, {s(S_T0)}, {WS_ST:#x}")
    a(f"buffer_load_dwordx4 {v(GG,4)}, v4, {s(R_WS,4)}, {s(S_T0)} offen sc1")
    cs_gather_issue(a)
    a(f"s_lshl_b32 {s(S_T0)}, {s(S_SH)}, 10\ns_add_u32 {s(S_T0)}, {s(S_T0)}, {L_ST}\nv_add_u32 v9, {s(S_T0)}, v4")
    late, join = a.label("u_late"), a.label("u_join")
    def u_loads():
        a(f"s_add_u32 {s(S_T2)}, {s(S_HO)}, {WS_KVR:#x}")
        for i in range(4):
            a(f"buffer_load_dwordx4 {v(128+4*i,4)}, v4, {s(R_WS,4)}, {s(S_T2)} offen offset:{1024*i} sc1")
    def gather_done():
        a(f"ds_write_b128 v9, {v(GG,4)}")
        cs_gather_finish(a)
        lds_inc(a, C_CNT, C_ONE, W_GATH)
        stamp(a, 5)
    a("s_waitcnt vmcnt(9)")
    a(f"v_cmp_ne_u32 vcc, {s(S_NON)}, v18\nv_cmp_ne_u32 {s(S_EX,2)}, {s(S_NON)}, v19\ns_nop 0\ns_or_b64 vcc, vcc, {s(S_EX,2)}\ns_cbranch_scc1 {late}")
    u_loads()
    a("s_waitcnt vmcnt(4)")
    gather_done()
    a(f"s_branch {join}\n{late}:")
    a("s_waitcnt vmcnt(0)")
    gather_done()
    poll2_check(a, 16, 18)
    u_loads()
    a(f"{join}:")
    final_loads(a)
    lds_min_wait(a, C_CNT, W_FREE, 4, 6, 20)
    a.c("the other helper must be done with its transpose scratch before the conv region is written")
    lds_min_wait(a, C_CNT, W_HP, 1, 2, 20)
    conv_h_stage(a)
    a("s_waitcnt vmcnt(2)")
    for i in range(4):
        a(f"ds_write_b128 v10, {v(128+4*i,4)} offset:{4*HSTR + 1024*i}")
    stamp(a, 6)


C_ACC, C_F0, C_F1 = 16, 48, 112
C_AA, C_BA = 2, 3


def bsync_post(a, n=4):
    a(f"s_add_u32 {s(S_CNT)}, {s(S_CNT)}, {n}")
    a("s_mov_b64 exec, 1")
    a(f"ds_add_u32 {v(C_CNT)}, {v(C_ONE)}")
    a("s_mov_b64 exec, -1")


def bsync_wait(a):
    lds_min_wait(a, C_CNT, W_CNT, 1, s(S_CNT), 6)


def bsync(a, n=4):
    bsync_post(a, n)
    bsync_wait(a)


def conv_reads(fr, roff):
    out = []
    for p in range(8):
        out.append(f"ds_read_b128 {v(fr+4*p,4)}, {v(C_AA)} offset:{512*p + roff}")
        out.append(f"ds_read_b64 {v(fr+32+4*p,2)}, {v(C_BA)} offset:{512*(7-p) + roff}")
        out.append(f"ds_read_b64 {v(fr+32+4*p+2,2)}, {v(C_BA)} offset:{512*(7-p) + roff + 8}")
    return out


def conv_mfmas(fr, first):
    out = []
    for tot in range(8):
        for p in range(tot + 1):
            q = tot - p
            out.append((max(p, q), f"v_mfma_f32_16x16x32_bf16 {v(C_ACC+4*tot,4)}, {v(fr+4*p,4)}, {v(fr+32+4*q,4)}, ", C_ACC + 4*tot))
    out.sort(key=lambda t: t[0])
    res, seen = [], set()
    for _, txt, c in out:
        res.append(txt + ("0" if first and c not in seen else v(c, 4)))
        seen.add(c)
    return res


HR = 200


def conv_h_loads(a):
    a(f"s_mul_i32 {s(S_RING)}, {s(S_SH)}, {CH_STR}\ns_add_u32 {s(S_RING)}, {s(S_RING)}, {L_CONV}")
    for h in range(4):
        a(f"buffer_load_dwordx4 {v(HR+6*h+2,4)}, v4, {s(R_H,4)}, {s(S_HO)} offen offset:{1024*h} {NT}")


def conv_h_stage(a):
    a.c("zero pads: 384 B in front of each h copy, 128 B behind u")
    for i in range(4):
        a(f"v_mov_b32 {v(20+i)}, 0")
    a(f"v_add_u32 v10, {s(S_RING)}, v4")
    a("s_mov_b64 exec, 0xffffff")
    for p in range(4):
        a(f"ds_write_b128 v10, {v(20,4)} offset:{p*HSTR}")
    a("s_mov_b64 exec, 0xff")
    a(f"ds_write_b128 v10, {v(20,4)} offset:{4*HSTR + 4096}")
    a("s_mov_b64 exec, -1")
    T = 72
    a.c("the two dwords in front of each lane's piece come from the lane below")
    for h in range(4):
        r = HR + 6 * h
        for i in range(2):
            a(f"v_mov_b32_dpp {v(r+i)}, {v(r-2+i)} wave_ror:1 row_mask:0xf bank_mask:0xf" if h else f"v_mov_b32 {v(r+i)}, 0")
    for h in range(4):
        r = HR + 6 * h
        for i in range(2):
            a(f"v_mov_b32_dpp {v(r+i)}, {v(r+4+i)} wave_shr:1 row_mask:0xf bank_mask:0xf")
    for h in range(4):
        r = HR + 6 * h
        for i in range(4):
            a(f"v_alignbit_b32 {v(T+i)}, {v(r+2+i)}, {v(r+1+i)}, 16")
        for i in range(4):
            a(f"v_mov_b32 {v(T+4+i)}, {v(r+1+i)}")
        for i in range(4):
            a(f"v_alignbit_b32 {v(T+8+i)}, {v(r+1+i)}, {v(r+i)}, 16")
        a(f"ds_write_b128 v10, {v(r+2,4)} offset:{384 + 1024*h}")
        for p in range(1, 4):
            a(f"ds_write_b128 v10, {v(T+4*(p-1),4)} offset:{p*HSTR + 384 + 1024*h}")
        T += 12


def conv_mid(a):
    a("s_waitcnt vmcnt(0)")
    a(f"ds_write_b32 v11, v251 offset:{W_WD}")
    poll2_check(a, 5, 198)
    a(f"s_lshl_b32 {s(S_T0)}, {s(S_MT)}, 2\ns_add_u32 {s(S_T0)}, {s(S_T0)}, {s(S_WB)}\ns_lshl_b32 {s(S_T0)}, {s(S_T0)}, 8\ns_add_u32 {s(S_T0)}, {s(S_T0)}, {WS_ST:#x}")
    a(f"buffer_load_dwordx4 {v(184,4)}, v15, {s(R_WS,4)}, {s(S_T0)} offen sc1")
    a(f"buffer_load_dwordx4 {v(188,4)}, v15, {s(R_WS,4)}, {s(S_T0)} offen offset:128 sc1")


def conv_main(a):
    U, UU, X, O = 48, 56, 112, 144
    for l in conv_reads(C_F0, 0):
        a(l)
    for r in range(4):
        cur, nxt = (C_F0, C_F1) if r % 2 == 0 else (C_F1, C_F0)
        a("s_waitcnt lgkmcnt(0)")
        if r < 3:
            rd = conv_reads(nxt, 64 * (r + 1))
        else:
            rd = [f"ds_read_b32 {v(U+2*b+c)}, v10 offset:{c*CH_STR + 256*(3-b)}" for b in range(4) for c in range(2)]
        for l in interleave(conv_mfmas(cur, r == 0), rd, 0, 1):
            a(l)
        if r == opt("WDR", 0):
            conv_mid(a)
    lstamp(a, 5)
    a(f"s_setprio {opt('PRX', opt('PRC', 3))}")
    bsync(a)
    for t in range(8):
        a(f"ds_write_b128 v8, {v(C_ACC+4*t,4)} offset:{t*1024}")
    bsync_post(a)
    a.c("skip term D*u at rows 512wb + 128b + 2l, +1")
    a(f"s_lshl_b32 s100, {s(S_C+1)}, 16\ns_and_b32 {s(S_C+1)}, {s(S_C+1)}, 0xffff0000")
    for b in range(4):
        for c in range(2):
            u, o = U + 2*b + c, UU + 4*b + 2*c
            a(f"v_and_b32 {v(o)}, {s(S_C)}, {v(u)}\nv_lshlrev_b32 {v(o+1)}, 16, {v(u)}")
    for b in range(4):
        for c in range(2):
            for j in range(2):
                a(f"v_mul_f32 {v(UU+4*b+2*c+j)}, {s(S_C+1) if c else 's100'}, {v(UU+4*b+2*c+j)}")
        a(f"v_mov_b32 {v(O+4*b+1)}, {s(S_NON)}\nv_mov_b32 {v(O+4*b+3)}, {s(S_NON)}")
    bsync_wait(a)
    for b in range(4):
        for w in range(4):
            a(f"ds_read_b64 {v(X+8*b+2*w,2)}, v9 offset:{w*8192 + b*512}")
    a("s_waitcnt vmcnt(0)")
    for b in range(4):
        a(f"s_waitcnt lgkmcnt({4*(3-b)})")
        for c in range(2):
            for j in range(2):
                o, x0 = UU + 4*b + 2*c + j, X + 8*b + 4*c + j
                a(f"v_add_f32 {v(o)}, {v(o)}, {v(x0)}")
        for c in range(2):
            for j in range(2):
                o, x0 = UU + 4*b + 2*c + j, X + 8*b + 4*c + j
                a(f"v_add_f32 {v(o)}, {v(o)}, {v(x0+2)}")
        for j in range(2):
            a(f"v_cvt_pk_bf16_f32 {v(O+4*b+2*j)}, {v(UU+4*b+j)}, {v(UU+4*b+2+j)}")
        a(f"buffer_store_dwordx4 {v(O+4*b,4)}, v4, {s(R_WS,4)}, {s(S_HO)} offen offset:{1024*b} sc1")
    a.c("the flag only says where to look: the granules carry their own tags")
    if opt("YACK", 0):
        a("s_waitcnt vmcnt(0)")
    flag_store(a, S_DO, 8, 9)


def conv_addr(a):
    a(f"s_lshr_b32 {s(S_T0)}, {s(S_WB)}, 1\ns_mul_i32 {s(S_RING)}, {s(S_T0)}, {CH_STR}\ns_add_u32 {s(S_RING)}, {s(S_RING)}, {L_CONV}")
    a(f"s_lshl_b32 {s(S_T3)}, {s(S_TI)}, 2\ns_load_dword {s(S_C+1)}, {s(S_DP,2)}, {s(S_T3)}")
    a.c("A address: base + (3-(m&3))*HSTR + 128*(m>>2) + 16*kg + 256*rh ; B address: ubase + 120 - 8n + 16kg + 256*rh")
    a(f"s_and_b32 {s(S_T0)}, {s(S_WB)}, 1\ns_lshl_b32 {s(S_T0)}, {s(S_T0)}, 8\ns_add_u32 {s(S_T0)}, {s(S_T0)}, {s(S_RING)}")
    a(f"v_and_b32 v6, 3, v0\nv_sub_u32 v6, 3, v6\nv_mul_u32_u24 v6, {HSTR}, v6\nv_bfe_u32 v7, v0, 2, 2\nv_lshl_add_u32 v6, v7, 7, v6")
    a(f"v_and_b32 v7, 48, v0\nv_add3_u32 {v(C_AA)}, v6, v7, {s(S_T0)}")
    a(f"v_and_b32 v6, 15, v0\nv_lshlrev_b32 v6, 3, v6\nv_sub_u32 v6, v7, v6\ns_add_u32 {s(S_T0)}, {s(S_T0)}, {4*HSTR + 120}\nv_add_u32 {v(C_BA)}, {s(S_T0)}, v6")
    a(f"s_lshl_b32 {s(S_T0)}, {s(S_WB)}, 13\ns_add_u32 {s(S_T0)}, {s(S_T0)}, {L_XCH}\nv_add_u32 v8, {s(S_T0)}, v4")
    a(f"s_lshl_b32 {s(S_T0)}, {s(S_WB)}, 11\ns_add_u32 {s(S_T0)}, {s(S_T0)}, {L_XCH}\nv_lshlrev_b32 v9, 3, v0\nv_add_u32 v9, {s(S_T0)}, v9")
    a.c("u for the skip term: ubase_c + 2*(2046 - 512wb - 128b - 2l)")
    a(f"s_lshl_b32 {s(S_T0)}, {s(S_WB)}, 10\ns_sub_u32 {s(S_T0)}, {L_CONV + 4*HSTR + 4092 - 768}, {s(S_T0)}\nv_lshlrev_b32 v10, 2, v0\nv_sub_u32 v10, {s(S_T0)}, v10")
    a.c("y granules: YG[ti][row*8]; flag F4[wb*256 + ti]")
    a(f"s_mul_i32 {s(S_T0)}, {s(S_TI)}, {YSTR}\ns_lshl_b32 {s(S_T1)}, {s(S_WB)}, 12\ns_add_u32 {s(S_T0)}, {s(S_T0)}, {s(S_T1)}\ns_add_u32 {s(S_HO)}, {s(S_T0)}, {WS_YG:#x}")
    a(f"s_lshl_b32 {s(S_T0)}, {s(S_WB)}, 8\ns_add_u32 {s(S_T0)}, {s(S_T0)}, {s(S_TI)}\ns_lshl_b32 {s(S_T0)}, {s(S_T0)}, 7\ns_add_u32 {s(S_DO)}, {s(S_T0)}, {WS_F4:#x}")
    a(f"s_mov_b32 {s(S_CNT)}, 0\ns_lshl_b32 {s(S_T0)}, {s(S_WB)}, 2\nv_add_u32 v11, {s(S_T0)}, {v(C_CNT)}\nv_mov_b32 v251, 3")
    a.c("F1 pairs of the two tiles that hold this wave's output rows")
    a(f"s_lshl_b32 {s(S_T1)}, {s(S_MT)}, 2\ns_add_u32 {s(S_T1)}, {s(S_T1)}, {s(S_WB)}\ns_lshl_b32 {s(S_T1)}, {s(S_T1)}, 8\ns_add_u32 {s(S_T1)}, {s(S_T1)}, {WS_F1:#x}")
    a(f"v_and_b32 v5, 1, v0\nv_lshlrev_b32 v5, 7, v5\nv_add_u32 v5, {s(S_T1)}, v5")
    poll2_issue(a, 5, 198)


def final_loads(a):
    a(f"s_lshl_b32 {s(S_T0)}, {s(S_MT)}, 2\ns_add_u32 {s(S_T0)}, {s(S_T0)}, {s(S_WB)}\ns_lshl_b32 {s(S_T1)}, {s(S_T0)}, 14\ns_lshl_b32 {s(S_T2)}, {s(S_NT)}, 7\ns_add_u32 {s(S_XO)}, {s(S_T1)}, {s(S_T2)}")
    a(f"s_add_u32 {s(S_WO)}, {s(S_XO)}, 8192")
    a("v_lshrrev_b32 v12, 3, v0\nv_and_b32 v13, 7, v0\nv_lshlrev_b32 v14, 4, v13\nv_lshl_add_u32 v14, v12, 10, v14\nv_lshlrev_b32 v15, 4, v12")
    a(f"buffer_load_dwordx4 {v(176,4)}, v14, {s(R_X,4)}, {s(S_XO)} offen")
    a(f"buffer_load_dwordx4 {v(180,4)}, v14, {s(R_X,4)}, {s(S_WO)} offen")


def final(a):
    XU, XN, YU, YL = 16, 72, 96, 160
    a.c("flags F4[(mt>>3)*256 + 32nt + 8wb + (l&7)]; granules of pairs 32nt + 8wb + 2i + (l>>5), rows 64mt + 2*(l&31) ..")
    a(f"s_lshl_b32 {s(S_T0)}, {s(S_NT)}, 2\ns_add_u32 {s(S_T0)}, {s(S_T0)}, {s(S_WB)}\ns_lshr_b32 {s(S_T1)}, {s(S_MT)}, 3\ns_lshl_b32 {s(S_T1)}, {s(S_T1)}, 5\ns_add_u32 {s(S_T1)}, {s(S_T1)}, {s(S_T0)}")
    a(f"s_lshl_b32 {s(S_T1)}, {s(S_T1)}, 10\ns_add_u32 {s(S_T1)}, {s(S_T1)}, {WS_F4:#x}\nv_lshlrev_b32 v5, 7, v13\nv_add_u32 v5, {s(S_T1)}, v5")
    a(f"s_mul_i32 {s(S_T0)}, {s(S_T0)}, {8*YSTR}\ns_lshl_b32 {s(S_T1)}, {s(S_MT)}, 9\ns_add_u32 {s(S_T0)}, {s(S_T0)}, {s(S_T1)}\ns_add_u32 {s(S_HO)}, {s(S_T0)}, {WS_YG:#x}")
    a(f"v_lshrrev_b32 v10, 5, v0\nv_mul_u32_u24 v8, {YSTR - 512}, v10\nv_add_u32 v8, v8, v4")

    def y_loads():
        a(f"s_mov_b32 {s(S_T1)}, {s(S_HO)}")
        for i in range(4):
            a(f"buffer_load_dwordx4 {v(YL+4*i,4)}, v8, {s(R_WS,4)}, {s(S_T1)} offen sc1")
            if i < 3:
                a(f"s_add_u32 {s(S_T1)}, {s(S_T1)}, {2*YSTR}")
    for t in range(2):
        for i in range(4):
            a(f"v_lshlrev_b32 {v(XU+8*t+2*i)}, 16, {v(176+4*t+i)}\nv_and_b32 {v(XU+8*t+2*i+1)}, {s(S_C)}, {v(176+4*t+i)}")
    for i in range(16):
        a(f"v_mov_b32 {v(YU+i)}, 0")
    a.c("transpose scratch [wb'][c*272 + e*64 + row*4]")
    a(f"s_mul_i32 {s(S_T0)}, {s(S_WB)}, 544\ns_add_u32 {s(S_T0)}, {s(S_T0)}, {L_YL}")
    a(f"v_and_b32 v9, 3, v12\nv_mul_u32_u24 v9, 2176, v9\nv_lshl_add_u32 v9, v10, 6, v9\nv_lshl_add_u32 v9, v13, 3, v9\nv_add_u32 v9, {s(S_T0)}, v9")
    a(f"s_mul_i32 {s(S_T0)}, {s(S_WB)}, 2176\ns_add_u32 {s(S_T0)}, {s(S_T0)}, {L_YL}")
    a(f"v_mul_u32_u24 v7, 272, v13\nv_lshl_add_u32 v7, v12, 2, v7\nv_add_u32 v7, {s(S_T0)}, v7")
    a.c("partials: wb*16384 + w*4096 + (8t + row)*256 + ((2c + h) ^ row)*16")
    a(f"s_lshl_b32 {s(S_T0)}, {s(S_WB)}, 14\nv_lshlrev_b32 v2, 1, v13\nv_xor_b32 v2, v2, v12\nv_lshlrev_b32 v2, 4, v2\nv_lshl_add_u32 v2, v12, 8, v2\nv_add_u32 v2, {s(S_T0)}, v2")
    a("v_xor_b32 v3, 16, v2")
    for t in range(2):
        a(f"v_mul_f32 {v(185+4*t)}, {f32bits(1.0/C1):#x}, {v(185+4*t)}")
        for i in range(8):
            a(f"v_sub_f32 {v(XN+8*t+i)}, {v(XU+8*t+i)}, {v(184+4*t)}")
        for i in range(8):
            a(f"v_mul_f32 {v(XN+8*t+i)}, {v(XN+8*t+i)}, {v(185+4*t)}")
    if not opt('LDST', 0): stamp(a, 7)
    a(f"s_setprio {opt('PRP', 0)}")
    a.c("stay off the memory path until the GEMM2 waves have issued their loads")
    lds_min_wait(a, C_CNT, W_HI, 1, 4, 6, nap=2)
    a(f"s_setprio {opt('PRF', 3)}")
    if not opt('LDST', 0): stamp(a, 8)
    top, done = a.label("yp"), a.label("yp_ok")
    a(f"s_mov_b32 {s(S_IT)}, 0")
    if opt("YFLAG", 1):
        poll(a, 5, 6)
    a(f"{top}:")
    y_loads()
    a("s_waitcnt vmcnt(0)")
    for i in range(4):
        a(f"v_xor_b32 {v(48+i)}, {s(S_NON)}, {v(YL+4*i+1)}\nv_xor_b32 {v(52+i)}, {s(S_NON)}, {v(YL+4*i+3)}\nv_mov_b32 {v(YL+4*i+1)}, {v(YL+4*i+2)}")
    a("v_or3_b32 v48, v48, v49, v50\nv_or3_b32 v51, v51, v52, v53\nv_or3_b32 v48, v48, v54, v55\nv_or_b32 v48, v48, v51\nv_cmp_ne_u32 vcc, 0, v48")
    a(f"s_cbranch_vccz {done}")
    poll(a, 5, 6)
    a(f"s_add_u32 {s(S_IT)}, {s(S_IT)}, {s(S_SPIN)}\ns_add_u32 {s(S_IT)}, {s(S_IT)}, 1\ns_cmp_lt_u32 {s(S_IT)}, {SPIN_MAX}\ns_cbranch_scc1 {top}")
    a(f"{done}:")
    for i in range(4):
        a(f"ds_write_b64 v9, {v(YL+4*i,2)} offset:{272*(i>>1) + 128*(i&1)}")
    bsync(a)
    for t in range(2):
        for e in range(8):
            a(f"ds_read_u16_d16_hi {v(YU+8*t+e)}, v7 offset:{64*(e>>1) + 32*t + 2*(e&1)}")
    for t in range(2):
        a(f"s_waitcnt lgkmcnt({8*(1-t)})")
        for i in range(8):
            a(f"v_fmac_f32 {v(XU+8*t+i)}, {v(XN+8*t+i)}, {v(YU+8*t+i)}")
    if not opt('LDST', 0): stamp(a, 9)
    if STAMPS:
        a("s_waitcnt lgkmcnt(0)")
    a("s_barrier")
    P = 112
    for t in range(2):
        for w in range(4):
            for h in range(2):
                a(f"ds_read_b128 {v(P+32*t+8*w+4*h,4)}, {'v3' if h else 'v2'} offset:{w*4096 + t*2048}")
    for t in range(2):
        a(f"s_waitcnt lgkmcnt({8*(1-t)})")
        p = P + 32 * t
        for i in range(4):
            a(f"v_pk_add_f32 {v(p+2*i,2)}, {v(p+2*i,2)}, {v(p+8+2*i,2)}")
        for i in range(4):
            a(f"v_pk_add_f32 {v(p+16+2*i,2)}, {v(p+16+2*i,2)}, {v(p+24+2*i,2)}")
        for i in range(4):
            a(f"v_pk_add_f32 {v(p+2*i,2)}, {v(p+2*i,2)}, {v(XU+8*t+2*i,2)}")
        for i in range(4):
            a(f"v_pk_add_f32 {v(p+2*i,2)}, {v(p+2*i,2)}, {v(p+16+2*i,2)}")
        for i in range(4):
            a(f"v_cvt_pk_bf16_f32 {v(48+4*t+i)}, {v(p+2*i)}, {v(p+2*i+1)}")
        a(f"buffer_store_dwordx4 {v(48+4*t,4)}, v14, {s(R_OUT,4)}, {s(S_WO if t else S_XO)} offen")


def epoch_flags_issue(a):
    a(f"v_lshlrev_b32 v6, 7, v0\ns_mov_b32 {s(S_T0)}, {WS_F1:#x}")
    for i in range(4):
        a(f"buffer_load_dword {v(2+i)}, v6, {s(R_WS,4)}, {s(S_T0)} offen sc1")
        a(f"s_add_u32 {s(S_T0)}, {s(S_T0)}, 8192")


def epoch_pre(a):
    done = a.label("ep_skip")
    a(f"s_lshl_b32 {s(S_T0)}, s2, 3\ns_add_u32 {s(S_T0)}, {s(S_T0)}, {s(S_WAVE)}\ns_cmp_lg_u32 {s(S_T0)}, 0\ns_cbranch_scc1 {done}")
    epoch_flags_issue(a)
    a(f"{done}:")


def epoch_advance(a):
    done, top, ok = a.label("ep_skip"), a.label("ep_top"), a.label("ep_ok")
    a(f"s_lshl_b32 {s(S_T0)}, s2, 3\ns_add_u32 {s(S_T0)}, {s(S_T0)}, {s(S_WAVE)}\ns_cmp_lg_u32 {s(S_T0)}, 0\ns_cbranch_scc1 {done}")
    a(f"s_mov_b32 {s(S_SPIN)}, 0")
    a(f"{top}:")
    for i in range(4):
        a(f"v_xor_b32 {v(2+i)}, {s(S_NON)}, {v(2+i)}")
    a("v_or_b32 v2, v2, v3\nv_or_b32 v4, v4, v5\nv_or_b32 v2, v2, v4\nv_cmp_ne_u32 vcc, 0, v2")
    a(f"s_cbranch_vccz {ok}")
    a(f"s_add_u32 {s(S_SPIN)}, {s(S_SPIN)}, 1\ns_cmp_ge_u32 {s(S_SPIN)}, {SPIN_MAX}\ns_cbranch_scc1 {ok}")
    epoch_flags_issue(a)
    a(f"s_waitcnt vmcnt(0)\ns_branch {top}")
    a(f"{ok}:")
    a(f"s_mov_b32 {s(S_T0)}, {WS_EP:#x}")
    flag_store(a, S_T0, 8, 9)
    a(f"{done}:")


def kernel(a):
    prologue(a)
    a(f"s_cmp_ge_u32 {s(S_WAVE)}, 4\ns_cbranch_scc1 L_b")
    g1_compute(a)
    g1_epilogue(a)
    epoch_pre(a)
    g2_main(a)
    epoch_advance(a)
    stamp_flush(a)
    a("s_endpgm")
    a("L_b:")
    a(f"v_lshlrev_b32 v4, 4, v0\nv_mov_b32 {v(C_CNT)}, {L_CNT}\nv_mov_b32 {v(C_ONE)}, 1\ns_mov_b32 {s(S_C)}, 0xffff0000")
    a(f"s_cmp_ge_u32 {s(S_WB)}, 2\ns_cbranch_scc1 L_help")
    loader(a)
    a("s_branch L_bj")
    a("L_help:")
    helper(a)
    a("L_bj:")
    conv_addr(a)
    bsync(a, 4 if opt("CEARLY", 0) else 8)
    a(f"s_setprio {opt('PRC', 3)}")
    lstamp(a, 4)
    conv_main(a)
    lstamp(a, 6)
    final(a)
    stamp_flush(a)
    a("L_end:\ns_endpgm")


HEADER = open(f"cdna_kernels/{NAME}.s.ref").read().split("; Override launch")[0]


def build():
    a = Asm()
    kernel(a)
    out = HEADER + "; @launch grid=(256,1,1) block=(512,1,1) lds=163840\n"
    out += '.amdgcn_target "amdgcn-amd-amdhsa--gfx950"\n.text\n' + a.text()
    out += '.section .rodata,"a"\n.p2align 6\n' + kernel_desc(KNAME)
    return out


if __name__ == "__main__":
    open(sys.argv[1] if len(sys.argv) > 1 else "t_m.s", "w").write(build())
```

```python
import math, os, sys
from asmlib import *

NAME = "parallel_sum__ssm_conv_h3__geglu_ffn__prompt"
KNAME = NAME + "_kernel"
S, D, F = 2048, 512, 1376
NU = F // 16
STAMPS = os.environ.get("STAMPS") == "1"
def opt(name, default):
    return int(os.environ.get(name, default))

WS_HF, WS_KVR, WS_Y2, WS_ST, WS_CSP = 0, 0x600000, 0x800000, 0xA00000, 0xA10000
WS_F1, WS_F2, WS_F3, WS_F4, WS_EP = 0xA80000, 0xA88000, 0xAA0000, 0xAC0000, 0xAE0000
WS_STAMP = 0xC00000
WS_YG = 0x1000000
YSTR = 16384 + 256
WS_SIZE = 0x1500000
NONCE_INC = 0x9E3779B1
OOB = 0x7f000000
R_X, R_WG, R_WU, R_WS, R_K, R_V, R_SK, R_WD, R_OUT, R_H = 4, 8, 12, 16, 20, 24, 28, 32, 36, 40
S_DP = 44
S_EX = 46
(S_WAVE, S_MI, S_NI, S_FB0, S_NBLK, S_T0, S_T1, S_T2, S_T3, S_IT, S_SLOT, S_KC, S_XO, S_WO, S_WO2, S_M0,
 S_WB, S_SH, S_UH, S_TI, S_MT, S_NT, S_NON, S_RING, S_CNT, S_HO, S_DO, S_SPIN) = range(48, 76)
S_C = 76
S_DK, S_HK, S_KEND = 3, S_RING, S_CNT
SLOT, NSLOT = 40960, 3
L_KVT, KVT_STR = 122880, 80
L_CS, L_ST, L_CNT = 135680, 136704, 138752
HSTR = 4640
CH_STR = 4 * HSTR + 4224
L_CONV = 81920
L_XCH = 81920
L_YL = 114688
NRW = 7
KVL = opt("KVL", 0)
CFX, CFW, CFS, CFD = (os.environ.get(k, "") for k in ("CFX", "CFW", "CFS", "CFD"))
SLOTMAP = [2, 3, 4, 5, 6, 0, 1] if KVL else list(range(7))
L_RA0 = 127488
S_RA, S_RB = 101, S_M0
L_CSS = 139264
assert L_KVT + 2 * 64 * KVT_STR <= L_CS and L_CONV + 2 * CH_STR <= L_RA0 and L_RA0 + 8192 <= L_CS and L_CNT + 256 <= L_CSS
W_CNT, W_GATH, W_HP, W_FREE, W_FULL, W_NON, W_C0, W_ISS, W_WD, W_HI, W_WE = 0, 8, 12, 16, 32, 40, 48, 64, 80, 96, 112
S_DUM = 100
C1 = -2.0 * math.log2(math.e) * math.sqrt(2.0 / math.pi)
C2 = C1 * 0.044715
SPIN_MAX = 1 << 16
LSPIN_MAX = 1 << 22


def stamp(a, i):
    if STAMPS:
        a(f"{'s_memtime' if opt('CLK', 0) else 's_memrealtime'} {s(78+2*i,2)}")


def lstamp(a, i):
    if STAMPS and not opt("LDST", 0):
        lab = a.label("ls")
        a(f"s_cmp_ge_u32 {s(S_WB)}, 2\ns_cbranch_scc1 {lab}")
        stamp(a, i)
        a(f"{lab}:")


ITST = STAMPS and opt("ITST", 0)


def it_issue(a):
    if ITST:
        a("s_memrealtime s[96:97]")


def it_take(a, add):
    if ITST:
        a(f"s_add_u32 m0, {s(S_IT)}, {add}\ns_nop 0\nv_writelane_b32 v255, s96, m0")


def stamp_flush(a):
    if not STAMPS:
        return
    if ITST:
        a(f"s_lshl_b32 s96, s2, 3\ns_add_u32 s96, s96, {s(S_WAVE)}\ns_lshl_b32 s96, s96, 8\ns_add_u32 s96, s96, {WS_STAMP + 0x100000:#x}")
        a(f"v_lshlrev_b32 v2, 2, v0\nbuffer_store_dword v255, v2, {s(R_WS,4)}, s96 offen\ns_mov_b32 s96, 0")
    a("s_waitcnt vmcnt(0) lgkmcnt(0)")
    stamp(a, 10)
    a("s_waitcnt lgkmcnt(0)")
    for i in range(11):
        a(f"v_writelane_b32 v1, {s(78+2*i)}, {i}")
    a(f"s_lshl_b32 s78, s2, 3\ns_add_u32 s78, s78, {s(S_WAVE)}\ns_lshl_b32 s78, s78, 6\ns_add_u32 s78, s78, {WS_STAMP:#x}")
    a("v_lshlrev_b32 v2, 2, v0\ns_mov_b64 exec, 0x7ff")
    a(f"buffer_store_dword v1, v2, {s(R_WS,4)}, s78 offen")
    if opt("DBGST", 0):
        lab = a.label("dbg")
        a(f"s_cmp_lg_u32 s78, {WS_STAMP + opt('DBGW', 0)*64 + 100*512:#x}\ns_cbranch_scc1 {lab}")
        a("s_load_dwordx2 s[84:85], s[0:1], 88\ns_mov_b32 s86, 256\ns_mov_b32 s87, 0x20000\nv_readlane_b32 s82, v1, 0\ns_waitcnt lgkmcnt(0)")
        a("v_subrev_u32 v1, s82, v1")
        a("buffer_store_dword v1, v2, s[84:87], 0 offen")
        a(f"{lab}:")


TABLE = [(R_X, 0, S*D*2), (R_WG, 56, D*F*2), (R_WU, 64, D*F*2), (R_WS, 96, WS_SIZE), (R_K, 8, S*D*2), (R_V, 16, S*D*2),
         (R_SK, 24, D*8), (R_WD, 72, D*F*2), (R_OUT, 80, S*D*2), (R_H, 32, S*D*2)]


def entry(a):
    a(f".globl {KNAME}\n.p2align 8\n.type {KNAME},@function\n{KNAME}:")
    a("s_cmp_ge_u32 s2, 256\ns_cbranch_scc1 L_end")
    if opt("CPF", 0):
        n = opt("CPF", 0)
        a.c("pull this workgroup's share of the code into L2 ahead of the instruction fetch")
        a(f"s_getpc_b64 {s(S_EX,2)}\nL_pc:")
        a(f"s_lshr_b32 s3, s2, 3\nv_lshlrev_b32 v2, 5, v0\nv_add_u32 v2, s3, v2\nv_lshlrev_b32 v2, 7, v2\nv_mov_b32 v3, {s(S_EX+1)}")
        a(f"v_cmp_gt_u32 vcc, L_end-L_pc, v2\ns_and_saveexec_b64 {s(S_DP,2)}, vcc\ns_cbranch_execz L_nopf")
        a(f"v_add_co_u32 v2, vcc, {s(S_EX)}, v2\nv_addc_co_u32 v3, vcc, 0, v3, vcc")
        a("global_load_dword v212, v[2:3], off")
        a("L_nopf:\ns_mov_b64 exec, -1")
    a("v_lshrrev_b32 v1, 6, v0")
    a(f"s_load_dwordx2 {s(R_X,2)}, s[0:1], 0\ns_load_dwordx2 {s(R_WS,2)}, s[0:1], 96")
    stamp(a, 0)
    a(f"v_readfirstlane_b32 {s(S_WAVE)}, v1")
    a("v_and_b32 v0, 63, v0")
    a(f"s_cmp_ge_u32 {s(S_WAVE)}, 6\ns_cbranch_scc1 L_help")
    a(f"s_cmp_ge_u32 {s(S_WAVE)}, 4\ns_cbranch_scc1 L_load")


def prologue(a, bar=True, part=3):
    first = (R_X, R_WG, R_WU)
    if part & 1:
        for r, off, size in TABLE:
            if r in first[1:]:
                a(f"s_load_dwordx2 {s(r,2)}, s[0:1], {off}")
    if part & 2:
        for r, off, size in TABLE:
            if r not in first + (R_WS,):
                a(f"s_load_dwordx2 {s(r,2)}, s[0:1], {off}")
        a(f"s_load_dwordx2 {s(S_DP,2)}, s[0:1], 40")
        if STAMPS:
            for i in range(1, 11):
                a(f"s_mov_b32 {s(78+2*i)}, 0")
        if ITST:
            a("v_mov_b32 v255, 0")
    if part & 1 and not bar:
        a.c("LDS hand-off words start at zero")
        a(f"v_mov_b32 v20, 0\nv_lshlrev_b32 v5, 2, v0\nv_add_u32 v5, {L_CNT}, v5\nds_write_b32 v5, v20")
    for r, off, size in TABLE:
        if part & (1 if r in first else 2):
            a(f"s_mov_b32 {s(r+2)}, {size:#x}\ns_mov_b32 {s(r+3)}, 0x20000")
    if part & 1:
        a.c("x = wg&7, j = wg>>3; GEMM1 tile mi = 8*(x&1) + (j&7), ni = 4*(x>>1) + (j>>3); ti = 16*mi + ni")
        a(f"s_and_b32 {s(S_T0)}, s2, 1\ns_lshl_b32 {s(S_T0)}, {s(S_T0)}, 3")
        a(f"s_bfe_u32 {s(S_T1)}, s2, 0x30003\ns_add_u32 {s(S_MI)}, {s(S_T0)}, {s(S_T1)}")
        a(f"s_bfe_u32 {s(S_T0)}, s2, 0x20001\ns_lshl_b32 {s(S_T0)}, {s(S_T0)}, 2")
        a(f"s_lshr_b32 {s(S_T2)}, s2, 6\ns_add_u32 {s(S_NI)}, {s(S_T0)}, {s(S_T2)}")
        a.c("first 32-col block fb0 = 3*ni - (ni>>2) - (ni==15); nblk = 2 for ni in {3,7,11,14,15}")
        a(f"s_mul_i32 {s(S_FB0)}, {s(S_NI)}, 3\ns_lshr_b32 {s(S_T0)}, {s(S_NI)}, 2\ns_sub_u32 {s(S_FB0)}, {s(S_FB0)}, {s(S_T0)}")
        a(f"s_cmp_eq_u32 {s(S_NI)}, 15\ns_subb_u32 {s(S_FB0)}, {s(S_FB0)}, 0")
        a(f"s_bitcmp1_b32 0xc888, {s(S_NI)}\ns_cselect_b32 {s(S_NBLK)}, 2, 3")
        a(f"s_and_b32 {s(S_WB)}, {s(S_WAVE)}, 3")
        a.c("GEMM1 DMA lane offsets. x: (l>>3)*1024 + ((l&7) ^ ((4*(w&1) + l>>4)&7))*16 ; W: (l>>2)*2752 + ((l&3) ^ (2*(l>>5)))*16")
        a(f"s_and_b32 {s(S_T0)}, {s(S_WAVE)}, 1\ns_lshl_b32 {s(S_T0)}, {s(S_T0)}, 2")
        a(f"v_lshrrev_b32 v5, 4, v0\nv_add_u32 v5, {s(S_T0)}, v5\nv_and_b32 v6, 7, v0\nv_xor_b32 v5, v5, v6\nv_lshlrev_b32 v5, 4, v5")
        a(f"v_lshrrev_b32 v6, 3, v0\nv_lshl_add_u32 {v(VB_X)}, v6, 10, v5")
        a(f"v_lshrrev_b32 v5, 5, v0\nv_lshlrev_b32 v5, 1, v5\nv_and_b32 v6, 3, v0\nv_xor_b32 v5, v5, v6\nv_lshlrev_b32 v5, 4, v5")
        a(f"v_lshrrev_b32 v6, 2, v0\nv_mul_u32_u24 v6, {F*2}, v6\nv_add_u32 {v(VB_W)}, v6, v5")
        if not bar:
            a(f"s_lshl_b32 {s(S_XO)}, {s(S_MI)}, 17\ns_lshl_b32 {s(S_T0)}, {s(S_WB)}, 13\ns_add_u32 {s(S_XO)}, {s(S_XO)}, {s(S_T0)}")
            a(f"s_mul_i32 {s(S_WO)}, {s(S_WB)}, {16*F*2}\ns_lshl_b32 {s(S_T0)}, {s(S_FB0)}, 6\ns_add_u32 {s(S_WO)}, {s(S_WO)}, {s(S_T0)}")
            a(f"s_cmp_eq_u32 {s(S_NBLK)}, 3\ns_cselect_b32 {s(S_WO2)}, {s(S_WO)}, {OOB:#x}")
            a(f"s_lshl_b32 {s(S_M0)}, {s(S_WB)}, 10")
    if part & 2:
        a(f"s_lshl_b32 {s(S_TI)}, {s(S_MI)}, 4\ns_add_u32 {s(S_TI)}, {s(S_TI)}, {s(S_NI)}")
        a.c("GEMM2 tile mt = 4*x + (j&3), nt = j>>2")
        a(f"s_and_b32 {s(S_T0)}, s2, 7\ns_lshl_b32 {s(S_T0)}, {s(S_T0)}, 2\ns_bfe_u32 {s(S_T1)}, s2, 0x20003\ns_add_u32 {s(S_MT)}, {s(S_T0)}, {s(S_T1)}")
        a(f"s_lshr_b32 {s(S_NT)}, s2, 5\ns_mov_b32 {s(S_SPIN)}, 0")
    if bar:
        a(f"s_mov_b32 {s(S_UH)}, 0\nv_lshlrev_b32 v4, 4, v0\nv_mov_b32 {v(C_CNT)}, {L_CNT}\nv_mov_b32 {v(C_ONE)}, 1\ns_mov_b32 {s(S_C)}, 0xffff0000")
    if part & 1:
        a("s_waitcnt lgkmcnt(0)")
    if bar:
        a("s_barrier")


VB_X, VB_W = 14, 15
C_CNT, C_ONE = 252, 253


def poll(a, vaddr, vtmp):
    top, done = a.label("poll"), a.label("poll_ok")
    a(f"s_mov_b32 {s(S_SPIN)}, 0")
    a(f"{top}:")
    a(f"buffer_load_dword {v(vtmp)}, {v(vaddr)}, {s(R_WS,4)}, 0 offen sc1")
    a("s_waitcnt vmcnt(0)")
    a(f"v_cmp_ne_u32 vcc, {s(S_NON)}, {v(vtmp)}")
    a(f"s_cbranch_vccz {done}")
    a("s_sleep 1")
    a(f"s_add_u32 {s(S_SPIN)}, {s(S_SPIN)}, 1\ns_cmp_lt_u32 {s(S_SPIN)}, {SPIN_MAX}\ns_cbranch_scc1 {top}")
    a(f"{done}:")


def poll2_issue(a, vaddr, vt):
    a(f"buffer_load_dwordx2 {v(vt,2)}, {v(vaddr)}, {s(R_WS,4)}, 0 offen sc1")


def poll2_check(a, vaddr, vt):
    top, done = a.label("poll"), a.label("poll_ok")
    a(f"s_mov_b32 {s(S_SPIN)}, 0")
    a(f"{top}:")
    a(f"v_cmp_ne_u32 vcc, {s(S_NON)}, {v(vt)}\nv_cmp_ne_u32 {s(S_EX,2)}, {s(S_NON)}, {v(vt+1)}")
    a(f"s_nop 0\ns_or_b64 vcc, vcc, {s(S_EX,2)}")
    a(f"s_cbranch_scc0 {done}")
    a(f"s_add_u32 {s(S_SPIN)}, {s(S_SPIN)}, 1\ns_cmp_ge_u32 {s(S_SPIN)}, {SPIN_MAX}\ns_cbranch_scc1 {done}")
    a("s_sleep 1")
    poll2_issue(a, vaddr, vt)
    a(f"s_waitcnt vmcnt(0)\ns_branch {top}")
    a(f"{done}:")


class VQ:
    def __init__(self, a):
        self.a, self.q = a, []
    def add(self, tag, n):
        self.q += [tag] * n
    def count(self, *tags):
        last = max((i for i, x in enumerate(self.q) if x in tags), default=-1)
        n = len(self.q) - 1 - last
        assert n <= 63
        return n
    def wait(self, *tags):
        self.a(f"s_waitcnt vmcnt({self.count(*tags)})")


def flag_store(a, soff, vt0, vt1):
    a(f"v_mov_b32 {v(vt0)}, {s(S_NON)}\nv_mov_b32 {v(vt1)}, 0")
    a("s_mov_b64 exec, 1")
    a(f"buffer_store_dword {v(vt0)}, {v(vt1)}, {s(R_WS,4)}, {s(soff)} offen sc1")
    a("s_mov_b64 exec, -1")


def epoch_load(a, vt):
    a(f"v_mov_b32 {v(vt)}, {WS_EP:#x}")
    a(f"buffer_load_dword {v(vt)}, {v(vt)}, {s(R_WS,4)}, 0 offen sc1")


def epoch_take(a, vt):
    a(f"v_readfirstlane_b32 {s(S_NON)}, {v(vt)}")
    a("s_nop 0")
    a(f"s_add_u32 {s(S_NON)}, {s(S_NON)}, {NONCE_INC:#x}")


V_XA0, V_XA1, V_W = 2, 3, 4
V_XC0, V_XC1, V_WC = 7, 8, 9
ACC, F0, F1 = 16, 112, 152
G_ACC, G_WF, G_H = 176, 16, 80
G_L16, G_WD, G_TR, G_TR0, G_TR5, G_FL = 240, 241, 242, 246, 250, 254
NHB, NWF, NSTEP = 6, 4, 11
G_HT = 255


def acc(u, mat, sb):
    return ACC + ((u * 2 + mat) * 4 + sb) * 4


def g1_reads(fr, step, units):
    out = []
    for u in units:
        if u == 'x':
            for sb in range(4):
                out.append(f"ds_read_b128 {v(fr+4*sb,4)}, {v(V_XC1 if step else V_XC0)} offset:{sb*2048}")
            continue
        for mat in range(2):
            r = fr + 16 + (u * 2 + mat) * 4
            for t in range(2):
                out.append(f"ds_read_b64_tr_b16 {v(r+2*t,2)}, {v(V_WC+u)} offset:{mat*12288+step*2048+t*256}")
    return out


def g1_mfmas(fr, units):
    out = []
    for u in units:
        for mat in range(2):
            for sb in range(4):
                c = acc(u, mat, sb)
                out.append(f"v_mfma_f32_16x16x32_bf16 {v(c,4)}, {v(fr+16+(u*2+mat)*4,4)}, {v(fr+4*sb,4)}, {v(c,4)}")
    return out


V_LW, V_FC, V_FL = 12, 13, 192


def g1_step_a(a):
    rd = g1_reads(F1, 1, ['x', 0, 1, 2])
    for i, m in enumerate(g1_mfmas(F0, [0, 1])):
        if i == 0:
            a("s_waitcnt lgkmcnt(8)")
        if i == 8:
            a("s_waitcnt lgkmcnt(12)")
            a(f"ds_read_b32 {v(V_FL)}, {v(V_FL+1)} offset:{W_FULL}")
        a(rd[i])
        a(m)
    a(f"ds_write_b32 {v(V_FL+2)}, {v(V_FC)}")
    lab = a.label("g1_skip")
    a(f"s_cbranch_vccnz {lab}")
    a("s_waitcnt lgkmcnt(15)")
    for l in g1_mfmas(F0, [2]):
        a(l)
    a(f"{lab}:")


def g1_step_b(a):
    mf = g1_mfmas(F1, [0, 1])
    rd = g1_reads(F0, 0, ['x', 0, 1, 2])
    slow, lab, lab2 = a.label("g1_slow"), a.label("g1_skip"), a.label("g1_skip")
    a("s_waitcnt lgkmcnt(9)")
    a(mf[0])
    a(f"v_add_u32 {v(V_XC0)}, {s(S_SLOT)}, {v(V_XA0)}")
    a(mf[1])
    a(f"v_readfirstlane_b32 {s(S_T0)}, {v(V_FL)}")
    a(f"v_add_u32 {v(V_WC)}, {s(S_SLOT)}, {v(V_W)}")
    a(mf[2])
    extra = [f"v_add_u32 {v(V_WC+1)}, {s(S_SLOT)}, {v(V_W+1)}", f"v_add_u32 {v(V_WC+2)}, {s(S_SLOT)}, {v(V_W+2)}",
             f"v_add_u32 {v(V_XC1)}, {s(S_SLOT)}, {v(V_XA1)}", f"v_add_u32 {v(V_FC)}, 1, {v(V_FC)}"]
    flip = f"v_xor_b32 {v(V_FL+1)}, 4, {v(V_FL+1)}"
    a(f"s_cmp_lt_u32 {s(S_T0)}, {s(S_T2)}\ns_cbranch_scc1 {slow}")
    r, e = list(rd), extra + [flip]
    for i, m in enumerate(mf[3:]):
        if i == 5:
            a("s_waitcnt lgkmcnt(13)")
        a(r.pop(0))
        if i < 3:
            a(r.pop(0))
        if e:
            a(e.pop(0))
        a(m)
    assert not r
    a(f"s_cbranch_vccnz {lab}")
    a("s_waitcnt lgkmcnt(15)")
    for l in g1_mfmas(F1, [2]):
        a(l)
    a(f"{lab}:")
    if ITST:
        it_issue(a)
        a("s_waitcnt lgkmcnt(0)")
        it_take(a, 16)
    a(f"s_cmp_lt_u32 {s(S_IT)}, 8")
    a("s_cbranch_scc1 g1_loop")
    a("s_branch g1_done")
    a.c("next chunk not in yet: finish this one first")
    a(f"{slow}:")
    a("s_waitcnt lgkmcnt(0)")
    for l in interleave(mf[3:], extra, 0, 1):
        a(l)
    a(f"s_cbranch_vccnz {lab2}")
    for l in g1_mfmas(F1, [2]):
        a(l)
    a(f"{lab2}:")
    lds_min_wait(a, V_FL+1, W_FULL, 1, s(S_T2), V_FL)
    if ITST:
        it_issue(a)
        a("s_waitcnt lgkmcnt(0)")
        it_take(a, 32)
    for l in rd:
        a(l)
    a(flip)
    a("s_branch g1_loop")
    a("g1_done:")


def dma_chunk0(a):
    for i in range(4):
        a(f"s_add_u32 m0, {s(S_M0)}, {i*4096}")
        a(f"s_add_u32 {s(S_XO)}, {s(S_XO)}, 32768" if i else "s_nop 0")
        a(f"buffer_load_dwordx4 {v(VB_X)}, {s(R_X,4)}, {s(S_XO)} offen {CFX} lds")
    for blk in range(3):
        for mat in range(2):
            a(f"s_add_u32 m0, {s(S_M0)}, {16384 + (mat*3+blk)*4096 - 64*blk}")
            a("s_nop 0")
            a(f"buffer_load_dwordx4 {v(VB_W)}, {s(R_WU if mat else R_WG,4)}, {s(S_WO2 if blk == 2 else S_WO)} offen offset:{64*blk} {CFW} lds")


def spf(a, srd, sbase, offs):
    for o in offs:
        a(f"s_buffer_load_dword {s(S_DUM)}, {s(srd,4)}, {s(sbase)} offset:{o:#x}")


def lds_min_wait(a, vaddr, off, n, target, vt, nap=None):
    lab = a.label("lw")
    a(f"{lab}:")
    a(f"ds_read_b{32*n} {v(vt,n)}, {v(vaddr)} offset:{off}")
    a("s_waitcnt lgkmcnt(0)")
    if n == 4:
        a(f"v_min3_u32 {v(vt)}, {v(vt)}, {v(vt+1)}, {v(vt+2)}\nv_min_u32 {v(vt)}, {v(vt)}, {v(vt+3)}")
    elif n == 2:
        a(f"v_min_u32 {v(vt)}, {v(vt)}, {v(vt+1)}")
    a("s_nop 0")
    a(f"v_readfirstlane_b32 {s(S_T0)}, {v(vt)}")
    a("s_nop 0")
    done = a.label("lw_ok")
    a(f"s_cmp_ge_u32 {s(S_T0)}, {target}\ns_cbranch_scc1 {done}")
    if nap is None:
        nap = opt("NAP", 1) if vaddr == C_CNT else 0
    if nap:
        a(f"s_sleep {nap}")
    a(f"s_add_u32 {s(S_SPIN)}, {s(S_SPIN)}, 1\ns_cmp_lt_u32 {s(S_SPIN)}, {LSPIN_MAX}\ns_cbranch_scc1 {lab}")
    a(f"{done}:")


def lds_inc(a, vaddr, vone, off):
    a(f"s_mov_b64 exec, 1\nds_add_u32 {v(vaddr)}, {v(vone)} offset:{off}\ns_mov_b64 exec, -1")


WDE = opt("WDE", 0)


def wd_setup(a, first, S_WB=S_WB):
    a.c("Wd DMA lane offset: (l>>3)*1024 + ((l&7) ^ (((l>>4)&3)<<1))*16")
    a(f"v_lshrrev_b32 v12, 4, v0\nv_lshlrev_b32 v13, 1, v12\nv_and_b32 v14, 7, v0\nv_xor_b32 v13, v13, v14\nv_lshlrev_b32 v13, 4, v13\nv_lshrrev_b32 v14, 3, v0\nv_lshl_add_u32 {v(G_WD)}, v14, 10, v13")
    a(f"s_lshl_b32 {s(S_KC)}, {s(S_WB)}, 12")
    a(f"s_lshl_b32 {s(S_RA)}, {s(S_WB)}, 13\ns_add_u32 {s(S_RB)}, {s(S_RA)}, {131072 + 16384}\ns_add_u32 {s(S_RA)}, {s(S_RA)}, 131072\ns_cmp_eq_u32 {s(S_WB)}, 0\ns_cselect_b32 {s(S_RA)}, {L_RA0}, {s(S_RA)}")
    if opt("ROT", 1):
        a(f"s_and_b32 {s(S_T0)}, {s(S_MT)}, 3\ns_mul_i32 {s(S_T0)}, {s(S_T0)}, 3\ns_mul_i32 {s(S_T1)}, {s(S_NT)}, 7\ns_add_u32 {s(S_T0)}, {s(S_T0)}, {s(S_T1)}")
        a(f"s_mul_i32 {s(S_T1)}, {s(S_T0)}, 187\ns_lshr_b32 {s(S_T1)}, {s(S_T1)}, 11\ns_mul_i32 {s(S_T1)}, {s(S_T1)}, 11\ns_sub_u32 {s(S_T0)}, {s(S_T0)}, {s(S_T1)}")
    else:
        a(f"s_mov_b32 {s(S_T0)}, 0")
    a(f"s_add_u32 {s(S_DK)}, {s(S_T0)}, {first}\ns_sub_u32 {s(S_T1)}, {s(S_DK)}, 11\ns_cmp_ge_u32 {s(S_DK)}, 11\ns_cselect_b32 {s(S_DK)}, {s(S_T1)}, {s(S_DK)}")
    a(f"s_mul_i32 {s(S_DO)}, {s(S_WB)}, {NSTEP*32768}\ns_lshl_b32 {s(S_T1)}, {s(S_NT)}, 7\ns_add_u32 {s(S_DO)}, {s(S_DO)}, {s(S_T1)}")


def g2_setup(a):
    a(f"v_lshlrev_b32 {v(G_L16)}, 4, v0")
    wd_setup(a, NRW)
    a(f"s_mov_b32 {s(S_HK)}, {s(S_T0)}")
    a(f"s_cmp_eq_u32 {s(S_WAVE)}, 3\ns_cselect_b32 {s(S_KEND)}, 10, 99")
    a.c("tr address: w*4096 + (l>>2)*128 + ((db ^ ((l>>3)&3))*32) + (l&3)*8")
    a(f"v_lshrrev_b32 v13, 2, v0\nv_lshlrev_b32 v13, 7, v13\nv_and_b32 v15, 3, v0\nv_lshl_add_u32 v13, v15, 3, v13\nv_add_u32 v13, {s(S_KC)}, v13\nv_and_b32 v14, 3, v14")
    a(f"s_sub_u32 {s(S_T1)}, {s(S_RA)}, {s(S_KC)}")
    for db in range(4):
        a(f"v_xor_b32 v15, {db}, v14\nv_lshl_add_u32 {v(G_TR+db)}, v15, 5, v13\nv_add_u32 {v(G_TR0+db)}, {s(S_T1)}, {v(G_TR+db)}\nv_add_u32 {v(G_TR5+db)}, 0x10000, {v(G_TR+db)}")
    a(f"s_mul_i32 {s(S_HO)}, {s(S_MT)}, {2*NU*1024}\ns_mul_i32 {s(S_T0)}, {s(S_WAVE)}, {NSTEP*2048}\ns_add_u32 {s(S_HO)}, {s(S_HO)}, {s(S_T0)}")
    a.c("H flags this wave needs: F3[mt*32 + 8w + (l&7)]")
    a(f"s_lshl_b32 {s(S_T0)}, {s(S_MT)}, 2\ns_add_u32 {s(S_T0)}, {s(S_T0)}, {s(S_WAVE)}\ns_lshl_b32 {s(S_T0)}, {s(S_T0)}, 10\ns_add_u32 {s(S_T0)}, {s(S_T0)}, {WS_F3:#x}")
    if not opt("HT", 0):
        a(f"v_and_b32 v12, 7, v0\nv_lshlrev_b32 v12, 7, v12\nv_add_u32 {v(G_FL)}, {s(S_T0)}, v12")
        return
    a.c("lane (U = l>>1, p = l&1) watches the producer of unit U and pulls line nt of that unit into L2")
    a(f"s_cmp_eq_u32 {s(S_WAVE)}, 3\ns_cselect_b32 {s(S_T1)}, 2, 3\ns_cselect_b32 {s(S_T2)}, 19, 21")
    a(f"v_lshrrev_b32 v12, 1, v0\nv_min_u32 v12, {s(S_T2)}, v12\nv_mul_u32_u24 v13, 0x56, v12\nv_lshrrev_b32 v13, 8, v13")
    a(f"v_and_b32 v15, 1, v0\nv_mul_u32_u24 v15, {NU}, v15\nv_add_u32 v15, v15, v12\nv_lshlrev_b32 v15, 10, v15\ns_lshl_b32 {s(S_T2)}, {s(S_NT)}, 7\nv_add_u32 {v(G_HT)}, {s(S_T2)}, v15")
    a(f"v_lshrrev_b32 v12, 1, v12\nv_subrev_u32 v12, {s(S_T1)}, v12")
    a(f"v_max_i32 v12, v12, v13\nv_lshlrev_b32 v12, 7, v12\nv_add_u32 {v(G_FL)}, {s(S_T0)}, v12")


def g1_compute(a):
    a(f"s_setprio {opt('PRA', 3)}")
    if opt("TOUCH", 0):
        l1, l2 = a.label("tc"), a.label("tc")
        a(f"s_cmp_ge_u32 {s(S_WAVE)}, 2\ns_cbranch_scc1 {l1}")
        a(f"s_lshl_b32 {s(S_T2)}, {s(S_WAVE)}, 8\ns_add_u32 {s(R_K)}, {s(R_X)}, {s(S_T2)}\ns_addc_u32 {s(R_K+1)}, {s(R_X+1)}, 0\ns_mov_b32 {s(R_K+2)}, {S*D*2 - 256:#x}")
        RX0 = R_X
        globals()["R_X"] = R_K
        touch_x(a, (0, 4) if opt("TOUCH", 0) == 2 else (0,), 1)
        globals()["R_X"] = RX0
        a(f"s_branch {l2}\n{l1}:")
        a(f"s_cmp_eq_u32 {s(S_WAVE)}, 2\ns_cselect_b64 {s(R_K,2)}, {s(R_WG,2)}, {s(R_WU,2)}\ns_mov_b32 {s(R_K+2)}, {D*F*2:#x}")
        touch_w(a, 0, (R_K,), 1)
        a(f"{l2}:")
    dma_chunk0(a)
    a("s_barrier")
    prologue(a, False, 2)
    if opt("SPF", 0):
        a.c("warm the lines the column sums need: rows 32mi + 16*(w&1).. of gate (w<2) or up")
        a(f"s_cmp_lt_u32 {s(S_WAVE)}, 2\ns_cselect_b64 {s(R_K,2)}, {s(R_WG,2)}, {s(R_WU,2)}\ns_mov_b32 {s(R_K+2)}, {D*F*2:#x}")
        a(f"s_lshl_b32 {s(S_T0)}, {s(S_MI)}, 1\ns_and_b32 {s(S_T1)}, {s(S_WAVE)}, 1\ns_add_u32 {s(S_T0)}, {s(S_T0)}, {s(S_T1)}\ns_mul_i32 {s(S_XO)}, {s(S_T0)}, {16*F*2}")
        a(f"s_lshl_b32 {s(S_T1)}, {s(S_FB0)}, 6\ns_add_u32 {s(S_XO)}, {s(S_XO)}, {s(S_T1)}")
        spf(a, R_K, S_XO, [r*F*2 + h*128 for r in range(7) for h in range(2)])
    a(f"s_and_b32 {s(S_SH)}, {s(S_WAVE)}, 1\ns_lshr_b32 {s(S_UH)}, {s(S_WAVE)}, 1")
    a.c("x fragment address: (64*sh + s16)*128 + ((kg ^ ((s16>>1)&7))*16)")
    a("v_and_b32 v10, 15, v0\nv_lshrrev_b32 v11, 4, v0\nv_lshrrev_b32 v12, 1, v10\nv_xor_b32 v12, v12, v11\nv_lshlrev_b32 v12, 4, v12")
    a(f"v_lshl_add_u32 {v(V_XA0)}, v10, 7, v12\ns_lshl_b32 {s(S_T0)}, {s(S_SH)}, 13\nv_add_u32 {v(V_XA0)}, {s(S_T0)}, {v(V_XA0)}")
    a(f"v_xor_b32 {v(V_XA1)}, 64, {v(V_XA0)}")
    a.c("W fragment address: 16384 + blk*4096 + kg*512 + r*64 + ((h^(kg&1))*32) + c*8")
    a("v_lshlrev_b32 v12, 9, v11\nv_bfe_u32 v13, v0, 2, 2\nv_lshl_add_u32 v12, v13, 6, v12\nv_and_b32 v13, 3, v0\nv_lshl_add_u32 v12, v13, 3, v12")
    a("v_and_b32 v13, 1, v11\nv_lshl_add_u32 v12, v13, 5, v12")
    a(f"s_mul_i32 {s(S_T0)}, {s(S_UH)}, {s(S_NBLK)}")
    for u in range(3):
        a(f"s_add_u32 {s(S_T1)}, {s(S_T0)}, {u}\ns_and_b32 {s(S_T2)}, {s(S_T1)}, 1\ns_lshl_b32 {s(S_T2)}, {s(S_T2)}, 5")
        a(f"s_lshr_b32 {s(S_T1)}, {s(S_T1)}, 1\ns_lshl_b32 {s(S_T1)}, {s(S_T1)}, 12\ns_add_u32 {s(S_T1)}, {s(S_T1)}, 16384")
        a(f"v_xor_b32 {v(V_W+u)}, {s(S_T2)}, v12\nv_add_u32 {v(V_W+u)}, {s(S_T1)}, {v(V_W+u)}")
    g2_setup(a)
    ep_setup(a)
    for i in range(48):
        a(f"v_pk_mov_b32 {v(ACC+2*i,2)}, 0, 0")
    for i in range(5):
        a(f"v_mov_b32 {v(V_XC0+i)}, {v(V_XA0+i)}")
    a(f"s_mov_b32 {s(S_IT)}, 0\ns_mov_b32 {s(S_SLOT)}, 0")
    a(f"v_mov_b32 {v(V_LW)}, {L_CNT}\nv_mov_b32 {v(V_FL+1)}, {L_CNT}\nv_mov_b32 {v(V_FC)}, 1\ns_lshl_b32 {s(S_T0)}, {s(S_WAVE)}, 2\ns_add_u32 {s(S_T0)}, {s(S_T0)}, {L_CNT + W_FREE}\nv_mov_b32 {v(V_FL+2)}, {s(S_T0)}")
    a.c("vcc != 0 marks a two-block tile")
    a(f"s_cmp_eq_u32 {s(S_NBLK)}, 2\ns_cselect_b64 vcc, -1, 0")
    if opt("SPF", 0):
        spf(a, R_K, S_XO, [r*F*2 + h*128 for r in range(7, 16) for h in range(2)])
    stamp(a, 1)
    a("s_waitcnt vmcnt(0)")
    a(f"ds_write_b32 {v(V_FL+2)}, {v(V_FC)} offset:{W_C0 - W_FREE}")
    lds_min_wait(a, V_LW, W_C0, 4, 1, 196)
    stamp(a, 2)
    for l in g1_reads(F0, 0, ['x', 0, 1, 2]):
        a(l)
    a("s_waitcnt lgkmcnt(0)")
    a("g1_loop:")
    a(f"s_add_u32 {s(S_SLOT)}, {s(S_SLOT)}, {SLOT}\ns_cmp_eq_u32 {s(S_SLOT)}, {NSLOT*SLOT}\ns_cselect_b32 {s(S_SLOT)}, 0, {s(S_SLOT)}")
    a(f"s_add_u32 {s(S_IT)}, {s(S_IT)}, 1\ns_and_b32 {s(S_T2)}, {s(S_IT)}, 7")
    g1_step_a(a)
    if ITST:
        it_issue(a)
        a("s_waitcnt lgkmcnt(0)")
        it_take(a, 0)
    g1_step_b(a)
    stamp(a, 3)


def wd_dma(i, rings=1):
    sl = SLOTMAP[i % NRW]
    ops = []
    n = 4 * rings
    for q in range(n):
        pre = f"s_lshl_b32 {s(S_T3)}, {s(S_DK)}, 15\ns_add_u32 {s(S_T3)}, {s(S_T3)}, {s(S_DO)}\n" if q == 0 else ""
        inc = 8192 if q != 4 else 2*NSTEP*32768 - 3*8192
        mid = "s_nop 0" if q == 0 else f"s_add_u32 {s(S_T3)}, {s(S_T3)}, {inc}"
        post = f"\ns_add_u32 {s(S_DK)}, {s(S_DK)}, 1\ns_cmp_eq_u32 {s(S_DK)}, 11\ns_cselect_b32 {s(S_DK)}, 0, {s(S_DK)}" if q == n - 1 else ""
        m0 = f"{s(S_RB if q >> 2 else S_RA)}, {sl*4096 + (q&3)*1024}" if sl < 2 else f"{s(S_KC)}, {(sl-2)*16384 + (q&3)*1024 + (q>>2)*8192}"
        ops.append(pre + f"s_add_u32 m0, {m0}\n{mid}\n"
                   f"buffer_load_dwordx4 {v(G_WD)}, {s(R_WD,4)}, {s(S_T3)} offen {CFD} lds" + post)
    return ops


def h_loads(i):
    hb = G_H + (i % NHB) * 16
    pre = (f"s_lshl_b32 {s(S_T1)}, {s(S_HK)}, 11\ns_add_u32 {s(S_T1)}, {s(S_T1)}, {s(S_HO)}\n"
           f"s_cmp_eq_u32 {s(S_HK)}, {s(S_KEND)}\ns_cselect_b32 {s(S_T1)}, {OOB:#x}, {s(S_T1)}\n")
    post = f"\ns_add_u32 {s(S_HK)}, {s(S_HK)}, 1\ns_cmp_eq_u32 {s(S_HK)}, 11\ns_cselect_b32 {s(S_HK)}, 0, {s(S_HK)}"
    ld = lambda r, off: f"buffer_load_dwordx4 {v(r,4)}, {v(G_L16)}, {s(R_WS,4)}, {s(S_T1)} offen offset:{off} sc1"
    return [pre + ld(hb, 0), ld(hb+4, 1024), f"s_add_u32 {s(S_T1)}, {s(S_T1)}, {NU*1024}\n" + ld(hb+8, 0), ld(hb+12, 1024) + post]


S_H0, S_H1 = S_XO, S_WO
E_A, E_ST = 208, 144


def ep_setup(a):
    a.c("epilogue addresses: row constants, column sums; HF offset = ((4*mi + 2*sh + pp)*86 + 2*fb0 + uu)*1024 + lane*16")
    a(f"v_and_b32 v10, 15, v0\nv_lshlrev_b32 v10, 4, v10\ns_lshl_b32 {s(S_T0)}, {s(S_SH)}, 10\ns_add_u32 {s(S_T0)}, {s(S_T0)}, {L_ST}\nv_add_u32 {v(E_A)}, {s(S_T0)}, v10")
    a(f"s_mul_i32 {s(S_T1)}, {s(S_UH)}, {s(S_NBLK)}\ns_lshl_b32 {s(S_T0)}, {s(S_T1)}, 6\ns_add_u32 {s(S_T0)}, {s(S_T0)}, {L_CS}")
    a(f"v_and_b32 v11, 48, v0\nv_add_u32 {v(E_A+1)}, {s(S_T0)}, v11")
    a(f"s_lshl_b32 {s(S_T0)}, {s(S_MI)}, 1\ns_add_u32 {s(S_T0)}, {s(S_T0)}, {s(S_SH)}\ns_mul_i32 {s(S_T0)}, {s(S_T0)}, {2*NU}")
    a(f"s_lshl_b32 {s(S_T2)}, {s(S_FB0)}, 1\ns_add_u32 {s(S_T0)}, {s(S_T0)}, {s(S_T2)}\ns_add_u32 {s(S_T0)}, {s(S_T0)}, {s(S_T1)}\ns_lshl_b32 {s(S_H0)}, {s(S_T0)}, 10")
    a(f"s_add_u32 {s(S_H1)}, {s(S_H0)}, {NU*1024}")
    a(f"s_lshl_b32 {s(S_T0)}, {s(S_SH)}, 2\ns_add_u32 {s(S_T0)}, {s(S_T0)}, {L_CNT}\nv_mov_b32 v15, {s(S_T0)}")


def g1_epilogue(a):
    VST, VCS, T = 112, 216, 168
    top, ok = a.label("ga"), a.label("ga_ok")
    a(f"{top}:")
    a(f"ds_read_b32 v14, {v(V_LW)} offset:{W_GATH}")
    for sb in range(4):
        a(f"ds_read_b128 {v(E_ST+4*sb,4)}, {v(E_A)} offset:{sb*256}")
    for u in range(3):
        for mat in range(2):
            a(f"ds_read_b128 {v(VCS+4*(u*2+mat),4)}, {v(E_A+1)} offset:{mat*512+u*64}")
    a(f"ds_read_b32 v1, {v(V_LW)} offset:{W_NON}")
    a(f"v_mov_b32 v13, 1\ns_waitcnt lgkmcnt(7)\nv_readfirstlane_b32 {s(S_T0)}, v14")
    for i in range(4):
        a(f"v_mov_b32 {v(VST+2*i)}, {v(E_ST+i)}\nv_mov_b32 {v(VST+2*i+1)}, {v(E_ST+i)}")
    a(f"s_cmp_ge_u32 {s(S_T0)}, 2\ns_cbranch_scc1 {ok}")
    a(f"s_add_u32 {s(S_SPIN)}, {s(S_SPIN)}, 1\ns_cmp_lt_u32 {s(S_SPIN)}, {LSPIN_MAX}\ns_cbranch_scc1 {top}")
    a(f"{ok}:")
    stamp(a, 4)
    for i in range(4, 16):
        a(f"v_mov_b32 {v(VST+2*i)}, {v(E_ST+i)}\nv_mov_b32 {v(VST+2*i+1)}, {v(E_ST+i)}")
    a("s_waitcnt lgkmcnt(0)")
    a(f"v_readfirstlane_b32 {s(S_NON)}, v1")
    lab, lab2 = a.label("ep_two"), a.label("ep_done")
    if opt("EPST", 0): stamp(a, 3)

    def group(u, pp):
        out = []
        o = T + 32 + 4 * pp
        pairs = [(2*pp + (q >> 1), q & 1, T + 8*q) for q in range(4)]
        def each(f):
            for sb, h, t in pairs:
                g, up, st = acc(u, 0, sb) + 2*h, acc(u, 1, sb) + 2*h, VST + 8*sb
                cg, cu = VCS + 4*(u*2) + 2*h, VCS + 4*(u*2+1) + 2*h
                out.append(f(g, up, st, cg, cu, t))
        each(lambda g, up, st, cg, cu, t: f"v_pk_fma_f32 {v(g,2)}, {v(cg,2)}, {v(st,2)}, {v(g,2)} neg_lo:[0,1,0] neg_hi:[0,1,0]")
        each(lambda g, up, st, cg, cu, t: f"v_pk_mul_f32 {v(t,2)}, {v(g,2)}, {v(g,2)}")
        each(lambda g, up, st, cg, cu, t: f"v_pk_fma_f32 {v(t,2)}, {v(t,2)}, {v(st+4,2)}, {v(st+2,2)}")
        each(lambda g, up, st, cg, cu, t: f"v_pk_mul_f32 {v(t,2)}, {v(t,2)}, {v(g,2)}")
        each(lambda g, up, st, cg, cu, t: f"v_exp_f32 {v(t)}, {v(t)}\nv_exp_f32 {v(t+1)}, {v(t+1)}")
        each(lambda g, up, st, cg, cu, t: f"v_pk_fma_f32 {v(up,2)}, {v(cu,2)}, {v(st,2)}, {v(up,2)} neg_lo:[0,1,0] neg_hi:[0,1,0]")
        each(lambda g, up, st, cg, cu, t: f"v_pk_fma_f32 {v(t,2)}, {v(t,2)}, {v(st+6,2)}, {v(st+6,2)}")
        each(lambda g, up, st, cg, cu, t: f"v_rcp_f32 {v(t)}, {v(t)}\nv_rcp_f32 {v(t+1)}, {v(t+1)}")
        each(lambda g, up, st, cg, cu, t: f"v_pk_mul_f32 {v(g,2)}, {v(g,2)}, {v(up,2)}")
        each(lambda g, up, st, cg, cu, t: f"v_pk_mul_f32 {v(t,2)}, {v(t,2)}, {v(g,2)}")
        for q, (sb, h, t) in enumerate(pairs):
            out.append(f"v_cvt_pk_bf16_f32 {v(o+q)}, {v(t)}, {v(t+1)}")
        if not opt("NOST", 0):
            out.append(f"buffer_store_dwordx4 {v(o,4)}, {v(G_L16)}, {s(R_WS,4)}, {s(S_H1 if pp else S_H0)} offen offset:{u*1024} {'sc1' if not opt('PLST', 0) else ''}")
        return out

    def stage_flag(n, W_WD=W_WD):
        ok = a.label("wd_ok")
        a(f"s_waitcnt lgkmcnt(0)\nv_readfirstlane_b32 {s(S_T0)}, v14\ns_nop 0\ns_cmp_ge_u32 {s(S_T0)}, {n}\ns_cbranch_scc1 {ok}")
        lds_min_wait(a, 15, W_WD, 1, n, 14)
        a(f"{ok}:")

    rd_flag = f"ds_read_b32 v14, v15 offset:{W_WD}"
    a.c("as a unit's accumulators retire they take two Wd steps; the freed ring slots are refilled")
    for l in group(0, 0) + [f"ds_read_b32 v14, v15 offset:{W_WE if WDE else W_WD}"] + group(0, 1):
        a(l)
    if opt("EPST", 0): stamp(a, 1)
    if not opt("NOTR", 0):
        stage_flag(1, W_WE if WDE else W_WD)
    if opt("EPST", 0): stamp(a, 2)
    for l in interleave(group(1, 0), [] if opt("NOTR", 0) else g2_tr(0) + g2_tr(1), 0, 2):
        a(l)
    a(rd_flag)
    for l in group(1, 1):
        a(l)
    a(f"s_cbranch_vccnz {lab}")
    for l in group(2, 0) + [rd_flag] + group(2, 1):
        a(l)
    a(f"{lab}:")
    a.c("release the conv waves")
    if not opt("CEARLY", 0):
        a("s_mov_b64 exec, 1\nds_add_u32 v12, v13\ns_mov_b64 exec, -1")
    stamp(a, 5)
    a.c("publish: F3[(2mi + sh)*32 + ni*2 + uh]")
    a(f"s_lshl_b32 {s(S_T0)}, {s(S_MI)}, 1\ns_add_u32 {s(S_T0)}, {s(S_T0)}, {s(S_SH)}\ns_lshl_b32 {s(S_T0)}, {s(S_T0)}, 4\ns_add_u32 {s(S_T0)}, {s(S_T0)}, {s(S_NI)}")
    a(f"s_lshl_b32 {s(S_T0)}, {s(S_T0)}, 1\ns_add_u32 {s(S_T0)}, {s(S_T0)}, {s(S_UH)}\ns_lshl_b32 {s(S_T0)}, {s(S_T0)}, 7\ns_add_u32 {s(S_T2)}, {s(S_T0)}, {WS_F3:#x}")
    a("s_waitcnt lgkmcnt(0)")
    for l in wd_dma(7) + wd_dma(8):
        a(l)
    a("s_waitcnt vmcnt(8)")
    flag_store(a, S_T2, 10, 11)
    stamp(a, 6)
    stage_flag(2)
    for l in g2_tr(2) + g2_tr(3):
        a(l)
    a("s_waitcnt lgkmcnt(0)")
    for l in wd_dma(9) + wd_dma(10):
        a(l)


def g2_tr(i):
    wf = G_WF + (i % NWF) * 16
    sl = SLOTMAP[i % NRW]
    base, off = (G_TR0, sl*4096) if sl < 2 else (G_TR5, 0) if sl == 6 else (G_TR, (sl-2)*16384)
    return [f"ds_read_b64_tr_b16 {v(wf+4*db+2*t,2)}, {v(base+db)} offset:{off + t*2048}" for db in range(4) for t in range(2)]


def g2_swaps(i, p):
    hb = G_H + (i % NHB) * 16
    return [f"v_swap_b32 {v(hb+8*p+2+k)}, {v(hb+8*p+4+k)}" for k in range(2)]


def g2_main(a):
    a(f"s_setprio {opt('PRG', 2)}")
    if opt("HT", 0):
        top, done = a.label("hp"), a.label("hp_ok")
        a(f"s_mov_b32 {s(S_SPIN)}, 0\ns_mov_b32 {s(S_EX)}, -1\ns_mov_b32 {s(S_EX+1)}, 0xfff")
        a(f"{top}:")
        a(f"buffer_load_dword v10, {v(G_FL)}, {s(R_WS,4)}, 0 offen sc1")
        a("s_waitcnt vmcnt(0)")
        a(f"v_cmp_ne_u32 vcc, {s(S_NON)}, v10")
        a(f"s_cbranch_vccz {done}")
        a(f"s_andn2_b64 exec, {s(S_EX,2)}, vcc\ns_and_b64 {s(S_EX,2)}, {s(S_EX,2)}, vcc")
        skip = a.label("hp_s")
        a(f"s_cbranch_execz {skip}")
        a(f"buffer_load_dword v11, {v(G_HT)}, {s(R_WS,4)}, {s(S_HO)} offen sc1")
        a(f"{skip}:")
        a("s_mov_b64 exec, -1\ns_sleep 1")
        a(f"s_add_u32 {s(S_SPIN)}, {s(S_SPIN)}, 1\ns_cmp_lt_u32 {s(S_SPIN)}, {SPIN_MAX}\ns_cbranch_scc1 {top}")
        a(f"{done}:")
    else:
        poll(a, G_FL, 10)
    stamp(a, 7)
    q = VQ(a)
    def hq(i):
        q.add(("h", i, 0), 2); q.add(("h", i, 1), 2)
    for i in range(NHB - 1):
        for op in h_loads(i):
            a(op)
        hq(i)
    lds_min_wait(a, 15, W_WD, 1, 3, 14)
    if opt("G2ST", 0): stamp(a, 1)
    q.wait(("h", 0, 0))
    if opt("G2ST", 0): stamp(a, 2)
    for l in g2_swaps(0, 0):
        a(l)
    a("s_nop 1")
    for i in range(NSTEP):
        if opt("G2ST", 0) and i in (2, 4, 6, 8):
            stamp(a, 2 + i // 2)
        if i == opt("HIS", 3):
            lds_inc(a, V_LW, 13, W_HI)
        wf, hb = G_WF + (i % NWF) * 16, G_H + (i % NHB) * 16
        ld = h_loads(i + NHB - 1) if i + NHB - 1 < NSTEP else []
        tr = g2_tr(i + 2) if NWF <= i + 2 < NSTEP else []
        n = 0
        for p in range(2):
            for db in range(4):
                for sb in (2*p, 2*p + 1):
                    c = G_ACC + (db * 4 + sb) * 4
                    a(f"v_mfma_f32_16x16x32_bf16 {v(c,4)}, {v(wf+4*db,4)}, {v(hb+4*sb,4)}, {v(c,4) if i else 0}")
                    n += 1
                    if n == 4:
                        q.wait(("h", i, 1))
                        for l in g2_swaps(i, 1):
                            a(l)
                    if n in (1, 5, 8, 11) and ld:
                        a(ld.pop(0))
                        q.add(("h", i + NHB - 1, 0 if len(ld) >= 2 else 1), 1)
                    if 5 <= n <= 12 and tr:
                        a(tr.pop(0))
                    if n == 13 and i + 1 < NSTEP:
                        q.wait(("h", i + 1, 0))
                        for l in g2_swaps(i + 1, 0):
                            a(l)
                        if i + 1 >= NWF:
                            a(f"s_waitcnt lgkmcnt({8 if i + 2 < NSTEP else 0})")
    stamp(a, 8)
    a.c("partial tile -> own ring slots 1..4: sb*16384 + w*4096 + s16*256 + ((4db + g) ^ (s16&7))*16")
    a(f"v_and_b32 v8, 15, v0\nv_lshrrev_b32 v9, 4, v0\nv_and_b32 v10, 7, v0\nv_xor_b32 v9, v9, v10\nv_lshlrev_b32 v9, 4, v9\nv_lshl_add_u32 v8, v8, 8, v9\nv_add_u32 v8, {s(S_KC)}, v8\nv_xor_b32 v9, 64, v8")
    a("s_nop 0")
    for db in range(4):
        for sb in range(4):
            a(f"ds_write_b128 {'v9' if db & 1 else 'v8'}, {v(G_ACC+(db*4+sb)*4,4)} offset:{sb*16384 + (db>>1)*128}")
    a("s_waitcnt lgkmcnt(0)")
    stamp(a, 9)
    a("s_barrier")


VB_X2 = 18


def dma_chunk(a):
    a(f"s_add_u32 {s(S_T1)}, {s(S_UH)}, {s(S_IT)}\ns_and_b32 {s(S_T1)}, {s(S_T1)}, 7")
    a(f"s_lshl_b32 {s(S_T0)}, {s(S_T1)}, 7\ns_add_u32 {s(S_T0)}, {s(S_T0)}, {s(S_XO)}")
    a(f"s_mul_i32 {s(S_T1)}, {s(S_T1)}, {64*F*2}\ns_add_u32 {s(S_HO)}, {s(S_WO)}, {s(S_T1)}\ns_add_u32 {s(S_DO)}, {s(S_WO2)}, {s(S_T1)}")
    for i in range(16):
        a(f"s_add_u32 m0, {s(S_SLOT)}, {i*1024}")
        a(f"s_add_u32 {s(S_T0)}, {s(S_T0)}, 8192" if i else "s_nop 0")
        a(f"buffer_load_dwordx4 {v(VB_X2 if i & 1 else VB_X)}, {s(R_X,4)}, {s(S_T0)} offen {CFX} lds")
    for k4 in range(4):
        if k4:
            a(f"s_add_u32 {s(S_HO)}, {s(S_HO)}, {16*F*2}\ns_add_u32 {s(S_DO)}, {s(S_DO)}, {16*F*2}")
        for blk in range(3):
            for mat in range(2):
                a(f"s_add_u32 m0, {s(S_SLOT)}, {16384 + (mat*3+blk)*4096 + k4*1024 - 64*blk}")
                a("s_nop 0")
                a(f"buffer_load_dwordx4 {v(VB_W)}, {s(R_WU if mat else R_WG,4)}, {s(S_DO if blk == 2 else S_HO)} offen offset:{64*blk} {CFW} lds")


GG = 224


def loader(a):
    a(f"s_setprio {opt('PRL', 2)}")
    a.c("loader w streams chunks 1+w, 3+w, ..")
    a(f"s_lshl_b32 {s(S_XO)}, {s(S_MI)}, 17\ns_lshl_b32 {s(S_WO)}, {s(S_FB0)}, 6")
    a(f"s_cmp_eq_u32 {s(S_NBLK)}, 3\ns_cselect_b32 {s(S_WO2)}, {s(S_WO)}, {OOB:#x}")
    a(f"s_lshl_b32 {s(S_T0)}, {s(S_WB)}, 6\nv_xor_b32 {v(VB_X)}, {s(S_T0)}, {v(VB_X)}\nv_xor_b32 {v(VB_X2)}, 64, {v(VB_X)}")
    a(f"s_add_u32 {s(S_IT)}, {s(S_WB)}, 1\ns_mul_i32 {s(S_SLOT)}, {s(S_IT)}, {SLOT}\ns_mov_b32 {s(S_SH)}, {s(S_WB)}")
    a(f"s_lshl_b32 {s(S_T0)}, {s(S_WB)}, 2\ns_add_u32 {s(S_T0)}, {s(S_T0)}, {L_CNT + W_FULL}\nv_mov_b32 v10, {s(S_T0)}")
    lds_min_wait(a, C_CNT, W_ISS, 1, s(S_WB), 20)
    a("ld_loop:")
    dma_chunk(a)
    a(f"v_mov_b32 v16, {s(S_IT)}")
    a(f"s_mov_b64 exec, 1\nds_max_u32 {v(C_CNT)}, v16 offset:{W_ISS}\ns_mov_b64 exec, -1")
    if ITST:
        it_issue(a)
        a("s_waitcnt lgkmcnt(0)")
        it_take(a, 0)
    a(f"s_sub_u32 {s(S_SLOT)}, {s(S_SLOT)}, {SLOT}\ns_cselect_b32 {s(S_SLOT)}, {2*SLOT}, {s(S_SLOT)}")
    a(f"s_cmp_ge_u32 {s(S_IT)}, 6\ns_cbranch_scc1 ld_done")
    a("s_waitcnt vmcnt(0)")
    a("ds_write_b32 v10, v16")
    if ITST:
        it_issue(a)
        a("s_waitcnt lgkmcnt(0)")
        it_take(a, 16)
    lds_min_wait(a, C_CNT, W_FREE, 4, s(S_IT), 20)
    if ITST:
        it_issue(a)
        a("s_waitcnt lgkmcnt(0)")
        it_take(a, 48)
    a(f"s_add_u32 {s(S_IT)}, {s(S_IT)}, 2")
    a("s_branch ld_loop")
    a("ld_done:")
    lstamp(a, 1)
    wd_setup(a, 2 if WDE else 0)
    a(f"s_lshl_b32 {s(S_T0)}, {s(S_WB)}, 2\nv_add_u32 v11, {s(S_T0)}, {v(C_CNT)}\nv_mov_b32 v17, 2")
    a("s_waitcnt vmcnt(0)")
    a("ds_write_b32 v10, v16")
    if KVL:
        return loader_late(a)
    lds_min_wait(a, C_CNT, W_ISS, 1, 7, 20)
    lds_min_wait(a, C_CNT, W_HP, 1, 2, 20)
    if not WDE:
        for op in wd_dma(0, 2) + wd_dma(1, 2):
            a(op)
    lstamp(a, 2)
    lds_min_wait(a, C_CNT, W_FREE, 4, 7, 20)
    for i in (2, 3):
        for op in wd_dma(i, 2):
            a(op)
    a("s_waitcnt vmcnt(16)")
    a(f"ds_write_b32 v11, {v(C_ONE)} offset:{W_WD}")
    lstamp(a, 3)
    lds_min_wait(a, C_CNT, W_FREE, 4, 8, 20)
    TH = opt("WDTH", 0)
    n = 0
    for i in (4, 5, 6):
        for op in wd_dma(i, 2):
            if not opt("NOWD", 0):
                a(op)
            n += 1
            if n % 4 == 0 and (TH or n == 8):
                a(f"s_waitcnt vmcnt({min(TH, n) if TH else 8})")
            if n == 8:
                a(f"ds_write_b32 v11, v17 offset:{W_WD}")
    a(f"ds_read_b32 v1, {v(C_CNT)} offset:{W_NON}")
    final_loads(a)
    a("s_waitcnt lgkmcnt(0)")
    a(f"v_readfirstlane_b32 {s(S_NON)}, v1")


def loader_late(a):
    lds_min_wait(a, C_CNT, W_FREE, 4, 7, 20)
    for op in wd_dma(0, 2) + wd_dma(1, 2):
        a(op)
    lstamp(a, 2)
    lds_min_wait(a, C_CNT, W_FREE, 4, 8, 20)
    for op in wd_dma(2, 2):
        a(op)
    a("s_waitcnt vmcnt(8)")
    a(f"ds_write_b32 v11, {v(C_ONE)} offset:{W_WD}")
    for op in wd_dma(3, 2) + wd_dma(4, 2):
        a(op)
    a("s_waitcnt vmcnt(8)")
    a(f"ds_write_b32 v11, v17 offset:{W_WD}")
    lstamp(a, 3)
    lds_min_wait(a, C_CNT, W_HP, 1, 2, 20)
    for op in wd_dma(5, 2) + wd_dma(6, 2):
        a(op)
    a(f"ds_read_b32 v1, {v(C_CNT)} offset:{W_NON}")
    final_loads(a)
    a("v_mov_b32 v17, 3\ns_waitcnt vmcnt(2) lgkmcnt(0)")
    a(f"ds_write_b32 v11, v17 offset:{W_WD}")
    a(f"v_readfirstlane_b32 {s(S_NON)}, v1")


VS, VKV, VSK = 144, 24, 64
ONE = 192


def round_bf16(a, r):
    a(f"v_cvt_pk_bf16_f32 {v(r)}, {v(r)}, {v(r)}\nv_lshlrev_b32 {v(r)}, 16, {v(r)}")


def stats_loads(a):
    a(f"s_lshl_b32 {s(S_T0)}, {s(S_TI)}, 1\ns_add_u32 {s(S_T0)}, {s(S_T0)}, {s(S_SH)}\ns_lshl_b32 {s(S_T0)}, {s(S_T0)}, 12")
    a("v_bfe_u32 v5, v0, 2, 2\nv_lshlrev_b32 v5, 10, v5\nv_and_b32 v6, 3, v0\nv_lshl_add_u32 v5, v6, 4, v5\nv_lshrrev_b32 v6, 4, v0\nv_lshl_add_u32 v5, v6, 6, v5")
    for r in range(4):
        a(f"buffer_load_dwordx4 {v(VS+4*r,4)}, v5, {s(R_X,4)}, {s(S_T0)} offen offset:{r*256} {CFS}")


def stats(a):
    G, O, R = 72, 76, 80
    for r in range(4):
        a(f"v_mfma_f32_16x16x32_bf16 {v(G,4)}, {v(VS+4*r,4)}, {v(VS+4*r,4)}, {v(G,4) if r else 0}")
        a(f"v_mfma_f32_16x16x32_bf16 {v(O,4)}, {v(ONE,4)}, {v(VS+4*r,4)}, {v(O,4) if r else 0}")
    a.c("diagonal element of lane (n, g = n>>2) is register n&3")
    a(f"v_and_b32 v6, 3, v0\nv_cmp_eq_u32 vcc, 1, v6\nv_cmp_eq_u32 {s(S_EX,2)}, 2, v6\nv_cmp_eq_u32 {s(S_XO,2)}, 3, v6")
    a(f"s_lshl_b32 {s(S_T0)}, {s(S_TI)}, 1\ns_add_u32 {s(S_T0)}, {s(S_T0)}, {s(S_SH)}\ns_lshl_b32 {s(S_T0)}, {s(S_T0)}, 6\ns_add_u32 {s(S_T0)}, {s(S_T0)}, {WS_ST:#x}")
    a("v_and_b32 v5, 48, v0\ns_nop 0")
    a(f"v_cndmask_b32 {v(G)}, {v(G)}, {v(G+1)}, vcc\nv_cndmask_b32 {v(G)}, {v(G)}, {v(G+2)}, {s(S_EX,2)}\nv_cndmask_b32 {v(G)}, {v(G)}, {v(G+3)}, {s(S_XO,2)}")
    for qp in ("[1,0,3,2]", "[2,3,0,1]"):
        a("s_nop 0")
        a(f"v_add_f32_dpp {v(O)}, {v(O)}, {v(O)} quad_perm:{qp} row_mask:0xf bank_mask:0xf")
        a(f"v_add_f32_dpp {v(G)}, {v(G)}, {v(G)} quad_perm:{qp} row_mask:0xf bank_mask:0xf")
    M, K1, K2, I2 = R, R + 1, R + 2, R + 3
    a(f"v_mul_f32 {v(M)}, {f32bits(1/512):#x}, {v(O)}\nv_mul_f32 {v(K2)}, {f32bits(1/512):#x}, {v(G)}")
    a(f"v_fma_f32 {v(K2)}, -{v(M)}, {v(M)}, {v(K2)}\nv_max_f32 {v(K2)}, 0, {v(K2)}")
    round_bf16(a, M)
    round_bf16(a, K2)
    a(f"v_add_f32 {v(K2)}, {f32bits(1e-5):#x}, {v(K2)}")
    round_bf16(a, K2)
    a(f"v_sqrt_f32 {v(K2)}, {v(K2)}\ns_nop 0")
    round_bf16(a, K2)
    a(f"v_rcp_f32 {v(K1)}, {v(K2)}\nv_mul_f32 {v(I2)}, {v(K2)}, {v(K2)}")
    a(f"v_mul_f32 {v(K2)}, {v(K1)}, {v(K1)}\nv_mul_f32 {v(K2)}, {v(K2)}, {v(K1)}")
    a(f"v_mul_f32 {v(K2)}, {f32bits(C2):#x}, {v(K2)}\nv_mul_f32 {v(K1)}, {f32bits(C1):#x}, {v(K1)}")
    a.c("row g is complete in lane 20g")
    a(f"s_mov_b32 {s(S_EX)}, 0x00100001\ns_mov_b32 {s(S_EX+1)}, 0x10000100\ns_mov_b64 exec, {s(S_EX,2)}")
    a(f"buffer_store_dwordx4 {v(R,4)}, v5, {s(R_WS,4)}, {s(S_T0)} offen sc1")
    a("s_mov_b64 exec, -1")


L_VST = 155648
NT = os.environ.get("CFK", "nt") + " " if opt("NT", 1) else ""
NTT = " nt" if opt("NTT", 0) else ""


def kv_dma(a):
    a("v_lshrrev_b32 v5, 3, v0\nv_lshlrev_b32 v5, 10, v5\nv_and_b32 v6, 7, v0\nv_lshl_add_u32 v5, v6, 4, v5")
    a(f"v_add_u32 v69, {s(S_DO)}, v5")
    a.c("rows above the start of the sequence are out of range and read as zero")
    a("v_subrev_u32 v7, 0xc00, v69\nv_cmp_gt_u32 vcc, 0xc00, v69\nv_mov_b32 v68, 0x7ff00000\ns_nop 1\nv_cndmask_b32 v7, v7, v68, vcc")
    a(f"s_mul_i32 {s(S_T0)}, {s(S_SH)}, {64*KVT_STR}\ns_add_u32 {s(S_T0)}, {s(S_T0)}, {L_KVT}")
    a(f"s_lshl_b32 {s(S_T2)}, {s(S_SH)}, 12\ns_add_u32 {s(S_T2)}, {s(S_T2)}, {L_VST}")
    for i in range(5):
        a(f"s_add_u32 m0, {s(S_T0)}, {1024*i}\ns_mov_b32 {s(S_T1)}, {max(8192*i - 3072, 0)}")
        a(f"buffer_load_dwordx4 {'v69' if i else 'v7'}, {s(R_K,4)}, {s(S_T1)} offen {NT}lds")
    for i in range(4):
        a(f"s_add_u32 m0, {s(S_T2)}, {1024*i}\ns_mov_b32 {s(S_T1)}, {8192*i}")
        a(f"buffer_load_dwordx4 v69, {s(R_V,4)}, {s(S_T1)} offen {NT}lds")
    a("v_and_b32 v6, 31, v0\nv_lshrrev_b32 v5, 5, v0\nv_lshlrev_b32 v5, 10, v5\nv_lshl_add_u32 v5, v6, 2, v5")
    a(f"v_add_u32 v68, {s(S_T0)}, v5\nv_add_u32 v69, {s(S_T2)}, v5")
    a(f"s_and_b32 {s(S_T1)}, {s(S_TI)}, 7\ns_lshl_b32 {s(S_T1)}, {s(S_T1)}, 9\nv_lshlrev_b32 v6, 4, v6")
    a(f"buffer_load_dwordx4 {v(VSK,4)}, v6, {s(R_SK,4)}, {s(S_T1)} offen")


def kv_reads(a):
    for ps in range(2):
        b = VKV + 19 * ps
        for i in range(11):
            a(f"ds_read_b32 {v(b+i)}, v68 offset:{ps*2048 + i*128}")
        for i in range(8):
            a(f"ds_read_b32 {v(b+11+i)}, v69 offset:{ps*2048 + i*128}")


def touch_x(a, p, vd):
    a(f"s_lshl_b32 {s(S_T0)}, {s(S_MI)}, 2\ns_and_b32 {s(S_T1)}, {s(S_NI)}, 3\ns_add_u32 {s(S_T0)}, {s(S_T0)}, {s(S_T1)}\ns_lshl_b32 {s(S_T0)}, {s(S_T0)}, 15")
    a("v_and_b32 v5, 31, v0\nv_lshrrev_b32 v6, 5, v0\nv_lshlrev_b32 v6, 7, v6\nv_lshl_add_u32 v5, v5, 10, v6")
    for q in p:
        a(f"buffer_load_dword {v(vd)}, v5, {s(R_X,4)}, {s(S_T0)} offen offset:{128*q}{NTT}")


def touch_w(a, p, srds, vd):
    a(f"s_and_b32 {s(S_T0)}, {s(S_MI)}, 7\ns_add_u32 {s(S_T0)}, {s(S_T0)}, {8*p}\ns_mul_i32 {s(S_T0)}, {s(S_T0)}, {8*F*2}\ns_lshl_b32 {s(S_T1)}, {s(S_FB0)}, 6\ns_add_u32 {s(S_T0)}, {s(S_T0)}, {s(S_T1)}")
    a(f"s_add_u32 {s(S_T1)}, {s(S_NBLK)}, 4")
    a(f"v_lshrrev_b32 v5, 4, v0\nv_bfe_u32 v6, v0, 1, 3\nv_lshl_add_u32 v5, v5, 6, v6\nv_mul_u32_u24 v5, {F*2}, v5\nv_and_b32 v6, 1, v0\nv_lshl_add_u32 v5, v6, {s(S_T1)}, v5")
    for r in srds:
        a(f"buffer_load_dword {v(vd)}, v5, {s(r,4)}, {s(S_T0)} offen{NTT}")
        if opt("TOUCH", 0) == 2:
            a(f"s_add_u32 {s(S_T0)}, {s(S_T0)}, {256*F*2}")
            a(f"buffer_load_dword {v(vd)}, v5, {s(r,4)}, {s(S_T0)} offen{NTT}")


KU, VU, KW, KO, KT = 72, 94, 110, 120, 128


def kv_taps(a):
    for j in range(4):
        for ch in range(2):
            src = VSK + 2*ch + (j >> 1)
            a(f"v_and_b32 {v(KW+2*j+ch)}, {s(S_C)}, {v(src)}" if j & 1 else f"v_lshlrev_b32 {v(KW+2*j+ch)}, 16, {v(src)}")
    a.c("KVT row = 2*(l&31) + ch, 16-B piece = 3 - (2*pass + l>>5)")
    a(f"v_and_b32 v70, 31, v0\nv_mul_u32_u24 v70, {2*KVT_STR}, v70\nv_lshrrev_b32 v5, 5, v0\nv_lshlrev_b32 v5, 4, v5\nv_sub_u32 v70, v70, v5")
    a(f"s_mul_i32 {s(S_T0)}, {s(S_SH)}, {64*KVT_STR}\ns_add_u32 {s(S_T0)}, {s(S_T0)}, {L_KVT + 16}\nv_add_u32 v70, {s(S_T0)}, v70")


def kv_compute(ps):
    b = VKV + 19 * ps
    o = []
    for i in range(11):
        o += [f"v_lshlrev_b32 {v(KU+2*i)}, 16, {v(b+i)}", f"v_and_b32 {v(KU+2*i+1)}, {s(S_C)}, {v(b+i)}"]
    for e in range(16):
        o.append(f"v_mul_f32 {v(KT+e)}, {v(KU+e)}, {v(KW+6+(e&1))}")
    for j in (2, 1, 0):
        for e in range(16):
            o.append(f"v_fmac_f32 {v(KT+e)}, {v(KU+e+2*(3-j))}, {v(KW+2*j+(e&1))}")
    for i in range(8):
        o += [f"v_lshlrev_b32 {v(VU+2*i)}, 16, {v(b+11+i)}", f"v_and_b32 {v(VU+2*i+1)}, {s(S_C)}, {v(b+11+i)}"]
    for e in range(16):
        o.append(f"v_mul_f32 {v(KT+e)}, {v(KT+e)}, {v(VU+e)}")
    for ch in range(2):
        for i in range(4):
            o.append(f"v_cvt_pk_bf16_f32 {v(KO+4*ch+i)}, {v(KT+2*(7-2*i)+ch)}, {v(KT+2*(6-2*i)+ch)}")
    o += [f"ds_write_b128 v70, {v(KO,4)} offset:{32*(1-ps)}", f"ds_write_b128 v70, {v(KO+4,4)} offset:{32*(1-ps) + KVT_STR}"]
    return o


def kv_store(a):
    a(f"v_lshrrev_b32 v5, 2, v0\nv_and_b32 v6, 3, v0\nv_lshlrev_b32 v6, 4, v6\nv_mul_u32_u24 v7, {KVT_STR}, v5\nv_add_u32 v7, v7, v6")
    a(f"s_mul_i32 {s(S_T0)}, {s(S_SH)}, {64*KVT_STR}\ns_add_u32 {s(S_T0)}, {s(S_T0)}, {L_KVT}\nv_add_u32 v7, {s(S_T0)}, v7")
    a("s_waitcnt lgkmcnt(0)")
    for i in range(4):
        a(f"ds_read_b128 {v(24+4*i,4)}, v7 offset:{16*i*KVT_STR}")
    a("v_lshl_add_u32 v5, v5, 12, v6")
    a(f"s_and_b32 {s(S_T0)}, {s(S_TI)}, 7\ns_lshl_b32 {s(S_T0)}, {s(S_T0)}, 18")
    a(f"s_lshr_b32 {s(S_T1)}, {s(S_TI)}, 3\ns_lshl_b32 {s(S_T1)}, {s(S_T1)}, 1\ns_add_u32 {s(S_T1)}, {s(S_T1)}, {s(S_SH)}\ns_lshl_b32 {s(S_T1)}, {s(S_T1)}, 6")
    a(f"s_sub_u32 {s(S_T0)}, {s(S_T0)}, {s(S_T1)}\ns_add_u32 {s(S_T0)}, {s(S_T0)}, {WS_KVR + 4096 - 64:#x}")
    for i in range(4):
        a(f"s_waitcnt lgkmcnt({3-i})")
        a(f"buffer_store_dwordx4 {v(24+4*i,4)}, v5, {s(R_WS,4)}, {s(S_T0)} offen sc1")
        a(f"s_add_u32 {s(S_T0)}, {s(S_T0)}, 65536")


def cs_loads(a):
    a(f"s_mul_i32 {s(S_T0)}, {s(S_MI)}, {32*F*2}\ns_lshl_b32 {s(S_T1)}, {s(S_FB0)}, 6\ns_add_u32 {s(S_T0)}, {s(S_T0)}, {s(S_T1)}\ns_add_u32 {s(S_T1)}, {s(S_T0)}, {16*F*2}")
    a(f"s_mul_i32 {s(S_M0)}, {s(S_SH)}, 6144\ns_add_u32 {s(S_M0)}, {s(S_M0)}, {L_CSS}")
    l1, l2 = a.label("cs"), a.label("cs")
    a(f"s_cmp_lg_u32 {s(S_SH)}, 0\ns_cbranch_scc1 {l1}")
    for r in (R_WG, R_WU):
        for blk in range(3):
            for k2 in range(2):
                a(f"s_add_u32 m0, {s(S_M0)}, {blk*2048 + k2*1024 - 64*blk}\ns_nop 0")
                a(f"buffer_load_dwordx4 {v(VB_W)}, {s(r,4)}, {s(S_T1 if k2 else S_T0)} offen offset:{64*blk} {CFS} lds")
        a(f"s_branch {l2}\n{l1}:" if r == R_WG else f"{l2}:")


def colsum(a):
    W, O = 144, 168
    a("v_lshrrev_b32 v5, 4, v0\nv_lshlrev_b32 v6, 9, v5\nv_bfe_u32 v7, v0, 2, 2\nv_lshl_add_u32 v6, v7, 6, v6\nv_and_b32 v7, 3, v0\nv_lshl_add_u32 v6, v7, 3, v6")
    a(f"v_and_b32 v7, 1, v5\nv_lshl_add_u32 v6, v7, 5, v6\nv_add_u32 v6, {s(S_M0)}, v6\nv_xor_b32 v7, 32, v6")
    for u in range(6):
        for tt in range(2):
            a(f"ds_read_b64_tr_b16 {v(W+4*u+2*tt,2)}, {'v7' if u & 1 else 'v6'} offset:{(u>>1)*2048 + tt*256}")
    a.c("CSP offset = ((ni*2 + hw)*16 + mi)*384 + u*64 + g*16")
    a(f"s_lshl_b32 {s(S_T0)}, {s(S_NI)}, 1\ns_add_u32 {s(S_T0)}, {s(S_T0)}, {s(S_SH)}\ns_lshl_b32 {s(S_T0)}, {s(S_T0)}, 4\ns_add_u32 {s(S_T0)}, {s(S_T0)}, {s(S_MI)}")
    a(f"s_mul_i32 {s(S_T0)}, {s(S_T0)}, 384\ns_add_u32 {s(S_T0)}, {s(S_T0)}, {WS_CSP:#x}")
    a("v_and_b32 v5, 48, v0")
    a("s_waitcnt lgkmcnt(0)")
    for u in range(6):
        a(f"v_mfma_f32_16x16x32_bf16 {v(O+4*u,4)}, {v(W+4*u,4)}, {v(ONE,4)}, 0")
    a(f"s_mov_b32 {s(S_EX)}, 0x00010001\ns_mov_b32 {s(S_EX+1)}, 0x00010001\ns_nop 5\ns_mov_b64 exec, {s(S_EX,2)}")
    for u in range(6):
        a(f"buffer_store_dwordx4 {v(O+4*u,4)}, v5, {s(R_WS,4)}, {s(S_T0)} offen offset:{u*64} sc1")
    a("s_mov_b64 exec, -1")


def hflag(a, base):
    a(f"s_lshl_b32 {s(S_T0)}, {s(S_TI)}, 7\ns_lshl_b32 {s(S_T1)}, {s(S_SH)}, 2\ns_add_u32 {s(S_T0)}, {s(S_T0)}, {s(S_T1)}\ns_add_u32 {s(S_T0)}, {s(S_T0)}, {base:#x}")
    flag_store(a, S_T0, 196, 197)


CG = 144


def cs_gather_issue(a):
    a(f"s_lshl_b32 {s(S_T0)}, {s(S_NI)}, 1\ns_add_u32 {s(S_T0)}, {s(S_T0)}, {s(S_SH)}\ns_mul_i32 {s(S_T0)}, {s(S_T0)}, 6144\ns_add_u32 {s(S_T0)}, {s(S_T0)}, {WS_CSP:#x}")
    a("v_and_b32 v5, 31, v0\nv_lshlrev_b32 v5, 4, v5\nv_lshrrev_b32 v6, 5, v0\nv_mul_u32_u24 v6, 3072, v6\nv_add_u32 v6, v5, v6")
    for i in range(8):
        a(f"buffer_load_dwordx4 {v(CG+4*i,4)}, v6, {s(R_WS,4)}, {s(S_T0)} offen offset:{i*384} sc1")


def cs_gather_finish(a):
    n = 8
    while n > 1:
        n //= 2
        for i in range(4 * n):
            a(f"v_add_f32 {v(CG+i)}, {v(CG+i)}, {v(CG+4*n+i)}")
    for i in range(4):
        a(f"v_mov_b32 {v(CG+4+i)}, {v(CG+i)}")
    a(f"s_lshl_b32 {s(S_T0)}, {s(S_SH)}, 9\ns_add_u32 {s(S_T0)}, {s(S_T0)}, {L_CS}\nv_and_b32 v8, 31, v0\nv_lshlrev_b32 v8, 4, v8\nv_add_u32 v8, {s(S_T0)}, v8")
    for i in range(4):
        a(f"v_permlane32_swap_b32 {v(CG+i)}, {v(CG+4+i)}")
    a("s_nop 0")
    for i in range(4):
        a(f"v_add_f32 {v(CG+i)}, {v(CG+i)}, {v(CG+4+i)}")
    a(f"ds_write_b128 v8, {v(CG,4)}")


def helper(a):
    q = VQ(a)
    a(f"s_sub_u32 {s(S_SH)}, {s(S_WB)}, 2")
    a(f"s_lshl_b32 {s(S_HO)}, {s(S_TI)}, 1\ns_add_u32 {s(S_HO)}, {s(S_HO)}, {s(S_SH)}\ns_lshl_b32 {s(S_HO)}, {s(S_HO)}, 12")
    a.c("k/v tile base: rows 32*(2*(ti>>3) + hw).., channels 64*(ti&7)")
    a(f"s_lshr_b32 {s(S_T0)}, {s(S_TI)}, 3\ns_lshl_b32 {s(S_T0)}, {s(S_T0)}, 1\ns_add_u32 {s(S_T0)}, {s(S_T0)}, {s(S_SH)}\ns_lshl_b32 {s(S_T0)}, {s(S_T0)}, 15")
    a(f"s_and_b32 {s(S_T1)}, {s(S_TI)}, 7\ns_lshl_b32 {s(S_T2)}, {s(S_T1)}, 7\ns_add_u32 {s(S_DO)}, {s(S_T0)}, {s(S_T2)}")
    a(f"s_mul_i32 {s(S_KC)}, {s(S_TI)}, {43*128}\ns_mul_i32 {s(S_T1)}, {s(S_SH)}, {22*128}\ns_add_u32 {s(S_KC)}, {s(S_KC)}, {s(S_T1)}")
    def sc():
        stats_loads(a); q.add("s", 4)
        cs_loads(a); q.add("csd", 6)
    SKV = opt("SKV", 0)
    KVAT = opt("KVAT", 0) or SKV or KVL
    def wdt():
        a.c("first touch of Wd lines 43*ti + 22*hw + lane")
        a("v_lshlrev_b32 v11, 7, v0\ns_mov_b64 exec, 0x3fffff")
        a(f"buffer_load_dword v71, v11, {s(R_WD,4)}, {s(S_KC)} offen"); q.add("wd", 1)
        a("s_mov_b64 exec, -1")
    def cold():
        kv_dma(a); q.add("kv", 10)
        if not SKV and not PT and not opt("HW7", 0) and not KVL:
            wdt()
        if SKV != 1 and not opt("HW7", 0):
            conv_h_loads(a); q.add("h", 4)
    PT = opt("PT", 0)
    def ptouch():
        l1, l2 = a.label("pt"), a.label("pt")
        a(f"s_and_b32 {s(S_T0)}, {s(S_NI)}, 3\ns_cmp_lg_u32 {s(S_T0)}, 3\ns_cbranch_scc1 {l2}")
        a("v_lshrrev_b32 v5, 2, v0\nv_and_b32 v6, 3, v0\nv_lshlrev_b32 v6, 7, v6\nv_lshl_add_u32 v5, v5, 10, v6\nv_lshlrev_b32 v6, 7, v0")
        a(f"s_lshr_b32 {s(S_T0)}, {s(S_TI)}, 3\ns_lshl_b32 {s(S_T0)}, {s(S_T0)}, 16\ns_and_b32 {s(S_T1)}, {s(S_TI)}, 4\ns_lshl_b32 {s(S_T1)}, {s(S_T1)}, 7\ns_add_u32 {s(S_T0)}, {s(S_T0)}, {s(S_T1)}")
        a(f"s_cmp_lg_u32 {s(S_SH)}, 0\ns_cbranch_scc1 {l1}")
        for i in range(4):
            a(f"buffer_load_dword v71, v5, {s(R_K,4)}, {s(S_T0)} offen\ns_add_u32 {s(S_T0)}, {s(S_T0)}, 16384")
        a(f"s_sub_i32 {s(S_T0)}, {s(S_T0)}, {65536 + 3072}\ns_max_i32 {s(S_T0)}, {s(S_T0)}, 0\ns_mov_b64 exec, 0xfff")
        a(f"buffer_load_dword v71, v5, {s(R_K,4)}, {s(S_T0)} offen\ns_mov_b64 exec, -1")
        a(f"s_lshr_b32 {s(S_T0)}, {s(S_TI)}, 2\ns_mul_i32 {s(S_T0)}, {s(S_T0)}, {172*128}")
        for i in range(3):
            a(f"buffer_load_dword v71, v6, {s(R_WD,4)}, {s(S_T0)} offen\ns_add_u32 {s(S_T0)}, {s(S_T0)}, {8192 if i == 0 else 44*128}")
        a(f"s_branch {l2}\n{l1}:")
        for i in range(4):
            a(f"buffer_load_dword v71, v5, {s(R_V,4)}, {s(S_T0)} offen\ns_add_u32 {s(S_T0)}, {s(S_T0)}, 16384")
        a(f"s_lshr_b32 {s(S_T0)}, {s(S_TI)}, 2\ns_lshl_b32 {s(S_T0)}, {s(S_T0)}, 15")
        for i in range(4):
            a(f"buffer_load_dword v71, v6, {s(R_H,4)}, {s(S_T0)} offen\ns_add_u32 {s(S_T0)}, {s(S_T0)}, 8192")
        a(f"{l2}:")
    if PT == 1:
        ptouch()
    LATE = opt("LATE", 0)
    if LATE:
        lds_min_wait(a, C_CNT, W_ISS, 1, LATE, 20)
        l1, l2 = a.label("tc"), a.label("tc")
        a(f"s_cmp_lg_u32 {s(S_SH)}, 0\ns_cbranch_scc1 {l1}")
        touch_x(a, (4, 6), 71)
        a(f"s_branch {l2}\n{l1}:")
        touch_w(a, 4, (R_WG, R_WU), 71)
        a(f"{l2}:")
    epoch_load(a, 1); q.add("e", 1)
    sc()
    if KVL:
        wdt()
    if SKV:
        wdt()
        a(f"s_sub_i32 {s(S_KC)}, {s(S_DO)}, 3072\ns_max_i32 {s(S_KC)}, {s(S_KC)}, 0")
        spf(a, R_K, S_KC, [1024*i for i in range(35)])
    if not KVAT:
        cold()
    for i in range(4):
        a(f"v_mov_b32 {v(ONE+i)}, 0x3f803f80")
    a.c("F1 pairs: lanes 0-31 tiles 16mi + (l&15) (row records), lanes 32-63 tiles 16*(l&15) + ni (column sums)")
    a(f"s_lshl_b32 {s(S_T0)}, {s(S_MI)}, 11\nv_and_b32 v9, 15, v0\nv_lshlrev_b32 v8, 7, v9\nv_add_u32 v8, {s(S_T0)}, v8")
    a(f"s_lshl_b32 {s(S_T0)}, {s(S_NI)}, 7\nv_lshlrev_b32 v9, 11, v9\nv_add_u32 v9, {s(S_T0)}, v9\nv_cmp_lt_u32 vcc, 31, v0")
    a(f"s_nop 1\nv_cndmask_b32 v8, v8, v9, vcc\nv_add_u32 v8, {WS_F1:#x}, v8")
    q.wait("e", "s")
    stamp(a, 1)
    epoch_take(a, 1)
    a(f"v_mov_b32 v20, {s(S_NON)}\nds_write_b32 {v(C_CNT)}, v20 offset:{W_NON}")
    stats(a); q.add("st", 1)
    q.wait("csd")
    if PT == 2:
        ptouch()
    colsum(a); q.add("st", 6)
    stamp(a, 2)
    if KVL:
        q.wait("st")
        hflag(a, WS_F1)
        stamp(a, 3)
        lds_min_wait(a, C_CNT, W_ISS, 1, KVL - 1, 20)
        poll2_issue(a, 8, 198)
        a(f"s_lshr_b32 {s(S_T0)}, {s(S_TI)}, 5\ns_lshl_b32 {s(S_T0)}, {s(S_T0)}, 7\ns_add_u32 {s(S_T0)}, {s(S_T0)}, {WS_F2:#x}")
        a(f"v_and_b32 v16, 31, v0\nv_lshlrev_b32 v16, 10, v16\nv_add_u32 v16, {s(S_T0)}, v16")
        a("s_waitcnt vmcnt(0)")
        poll2_check(a, 8, 198)
        lds_min_wait(a, C_CNT, W_ISS, 1, KVL, 20)
        a(f"s_lshl_b32 {s(S_T0)}, {s(S_MI)}, 1\ns_add_u32 {s(S_T0)}, {s(S_T0)}, {s(S_SH)}\ns_lshl_b32 {s(S_T0)}, {s(S_T0)}, 10\ns_add_u32 {s(S_T0)}, {s(S_T0)}, {WS_ST:#x}")
        a(f"buffer_load_dwordx4 {v(GG,4)}, v4, {s(R_WS,4)}, {s(S_T0)} offen sc1")
        cs_gather_issue(a)
        a(f"s_lshl_b32 {s(S_T0)}, {s(S_SH)}, 10\ns_add_u32 {s(S_T0)}, {s(S_T0)}, {L_ST}\nv_add_u32 v9, {s(S_T0)}, v4")
        cold()
        a("s_waitcnt vmcnt(14)")
        a(f"ds_write_b128 v9, {v(GG,4)}")
        cs_gather_finish(a)
        lds_inc(a, C_CNT, C_ONE, W_GATH)
        stamp(a, 5)
        a(f"s_setprio {opt('PRK', 0)}")
        a("s_waitcnt vmcnt(4)")
        kv_reads(a)
        kv_taps(a)
        a("s_waitcnt lgkmcnt(0)")
        for l in kv_compute(0) + kv_compute(1):
            a(l)
        kv_store(a)
        lds_inc(a, C_CNT, C_ONE, W_HP)
        a("s_waitcnt vmcnt(4)")
        conv_h_shift(a, 40)
        a("s_waitcnt vmcnt(0)")
        hflag(a, WS_F2)
        stamp(a, 4)
        final_loads(a)
        lds_min_wait(a, C_CNT, W_FREE, 4, 6, 20)
        lds_min_wait(a, C_CNT, W_HP, 1, 2, 20)
        conv_h_stage(a, 40)
        poll2_issue(a, 16, 18)
        a("s_waitcnt vmcnt(0)")
        poll2_check(a, 16, 18)
        a(f"s_add_u32 {s(S_T2)}, {s(S_HO)}, {WS_KVR:#x}")
        for i in range(4):
            a(f"buffer_load_dwordx4 {v(128+4*i,4)}, v4, {s(R_WS,4)}, {s(S_T2)} offen offset:{1024*i} sc1")
        for i in range(4):
            a(f"s_waitcnt vmcnt({3-i})")
            a(f"ds_write_b128 v10, {v(128+4*i,4)} offset:{4*HSTR + 1024*i}")
        stamp(a, 6)
        return
    if SKV:
        spf(a, R_V, S_DO, [1024*i for i in range(14)])
        q.wait("st")
        hflag(a, WS_F1); q.add("f", 1)
        stamp(a, 3)
        spf(a, R_V, S_DO, [1024*i for i in range(14, 32)])
        a(f"s_and_b32 {s(S_T1)}, {s(S_TI)}, 7\ns_lshl_b32 {s(S_T1)}, {s(S_T1)}, 9")
        spf(a, R_SK, S_T1, [128*i for i in range(4)])
        if SKV == 2:
            spf(a, R_H, S_HO, [128*i for i in range(32)])
        a("s_waitcnt lgkmcnt(0)")
        cold()
    elif KVAT:
        a(f"s_lshr_b32 {s(S_T3)}, s2, 3\ns_and_b32 {s(S_T3)}, {s(S_T3)}, {opt('KVM', 0)}\ns_add_u32 {s(S_T3)}, {s(S_T3)}, {KVAT}")
        if PT:
            q.wait("st")
            hflag(a, WS_F1); q.add("f", 1)
            stamp(a, 3)
            a(f"s_and_b32 {s(S_T0)}, {s(S_NI)}, 3\ns_cmp_eq_u32 {s(S_T0)}, 3\ns_cselect_b32 {s(S_T3)}, 0, {s(S_T3)}")
        lds_min_wait(a, C_CNT, W_ISS, 1, s(S_T3), 20)
        cold()
        if not PT:
            q.wait("st")
            hflag(a, WS_F1); q.add("f", 1)
            stamp(a, 3)
    q.wait("kv")
    kv_reads(a)
    kv_taps(a)
    a("s_waitcnt lgkmcnt(0)")
    for l in kv_compute(0):
        a(l)
    if not KVAT:
        q.wait("st")
        hflag(a, WS_F1); q.add("f", 1)
        stamp(a, 3)
    for l in kv_compute(1):
        a(l)
    kv_store(a); q.add("kvst", 4)
    lds_inc(a, C_CNT, C_ONE, W_HP)
    q.wait("kvst")
    hflag(a, WS_F2); q.add("f", 1)
    stamp(a, 4)
    if opt("HW7", 0):
        lds_min_wait(a, C_CNT, W_ISS, 1, opt("HW7", 0), 20)
        wdt()
        conv_h_loads(a)
    else:
        conv_h_shift(a)
    if SKV == 1:
        spf(a, R_H, S_HO, [128*i for i in range(32)])
    if WDE:
        wd_setup(a, 0, S_SH)
        a(f"s_lshl_b32 {s(S_T0)}, {s(S_SH)}, 2\nv_add_u32 v11, {s(S_T0)}, {v(C_CNT)}")
        lds_min_wait(a, C_CNT, W_HP, 1, 2, 20)
        lds_min_wait(a, C_CNT, W_ISS, 1, WDE, 20)
        for op in wd_dma(0, 2) + wd_dma(1, 2):
            a(op)
    lds_min_wait(a, C_CNT, W_ISS, 1, opt("GATP", 6), 20)
    poll2_issue(a, 8, 198)
    a.c("F2 pairs of tiles 8*(l&31) + (ti>>5)")
    a(f"s_lshr_b32 {s(S_T0)}, {s(S_TI)}, 5\ns_lshl_b32 {s(S_T0)}, {s(S_T0)}, 7\ns_add_u32 {s(S_T0)}, {s(S_T0)}, {WS_F2:#x}")
    a(f"v_and_b32 v16, 31, v0\nv_lshlrev_b32 v16, 10, v16\nv_add_u32 v16, {s(S_T0)}, v16")
    a("s_waitcnt vmcnt(0)")
    if WDE:
        a(f"ds_write_b32 v11, {v(C_ONE)} offset:{W_WE}")
    poll2_check(a, 8, 198)
    lds_min_wait(a, C_CNT, W_ISS, 1, opt("GAT", 7), 20)
    poll2_issue(a, 16, 18)
    a(f"s_lshl_b32 {s(S_T0)}, {s(S_MI)}, 1\ns_add_u32 {s(S_T0)}, {s(S_T0)}, {s(S_SH)}\ns_lshl_b32 {s(S_T0)}, {s(S_T0)}, 10\ns_add_u32 {s(S_T0)}, {s(S_T0)}, {WS_ST:#x}")
    a(f"buffer_load_dwordx4 {v(GG,4)}, v4, {s(R_WS,4)}, {s(S_T0)} offen sc1")
    cs_gather_issue(a)
    a(f"s_lshl_b32 {s(S_T0)}, {s(S_SH)}, 10\ns_add_u32 {s(S_T0)}, {s(S_T0)}, {L_ST}\nv_add_u32 v9, {s(S_T0)}, v4")
    late, join = a.label("u_late"), a.label("u_join")
    def u_loads():
        a(f"s_add_u32 {s(S_T2)}, {s(S_HO)}, {WS_KVR:#x}")
        for i in range(4):
            a(f"buffer_load_dwordx4 {v(128+4*i,4)}, v4, {s(R_WS,4)}, {s(S_T2)} offen offset:{1024*i} sc1")
    def gather_done():
        a(f"ds_write_b128 v9, {v(GG,4)}")
        cs_gather_finish(a)
        lds_inc(a, C_CNT, C_ONE, W_GATH)
        stamp(a, 5)
    a("s_waitcnt vmcnt(9)")
    a(f"v_cmp_ne_u32 vcc, {s(S_NON)}, v18\nv_cmp_ne_u32 {s(S_EX,2)}, {s(S_NON)}, v19\ns_nop 0\ns_or_b64 vcc, vcc, {s(S_EX,2)}\ns_cbranch_scc1 {late}")
    u_loads()
    a("s_waitcnt vmcnt(4)")
    gather_done()
    a(f"s_branch {join}\n{late}:")
    a("s_waitcnt vmcnt(0)")
    gather_done()
    poll2_check(a, 16, 18)
    u_loads()
    a(f"{join}:")
    final_loads(a)
    lds_min_wait(a, C_CNT, W_FREE, 4, 6, 20)
    a.c("the other helper must be done with its transpose scratch before the conv region is written")
    lds_min_wait(a, C_CNT, W_HP, 1, 2, 20)
    if opt("HW7", 0):
        conv_h_shift(a)
    conv_h_stage(a)
    a("s_waitcnt vmcnt(2)")
    for i in range(4):
        a(f"ds_write_b128 v10, {v(128+4*i,4)} offset:{4*HSTR + 1024*i}")
    stamp(a, 6)


C_ACC, C_F0, C_F1 = 16, 48, 112
C_AA, C_BA = 2, 3


def bsync_post(a, n=4):
    a(f"s_add_u32 {s(S_CNT)}, {s(S_CNT)}, {n}")
    a("s_mov_b64 exec, 1")
    a(f"ds_add_u32 {v(C_CNT)}, {v(C_ONE)}")
    a("s_mov_b64 exec, -1")


def bsync_wait(a, nap=None):
    lds_min_wait(a, C_CNT, W_CNT, 1, s(S_CNT), 6, nap=opt("BNAP", 1) if nap is None else nap)


def bsync(a, n=4):
    bsync_post(a, n)
    bsync_wait(a)


def conv_reads(fr, roff):
    out = []
    for p in range(8):
        out.append(f"ds_read_b128 {v(fr+4*p,4)}, {v(C_AA)} offset:{512*p + roff}")
        out.append(f"ds_read_b64 {v(fr+32+4*p,2)}, {v(C_BA)} offset:{512*(7-p) + roff}")
        out.append(f"ds_read_b64 {v(fr+32+4*p+2,2)}, {v(C_BA)} offset:{512*(7-p) + roff + 8}")
    return out


def conv_mfmas(fr, first):
    out = []
    for tot in range(8):
        for p in range(tot + 1):
            q = tot - p
            out.append((max(p, q), f"v_mfma_f32_16x16x32_bf16 {v(C_ACC+4*tot,4)}, {v(fr+4*p,4)}, {v(fr+32+4*q,4)}, ", C_ACC + 4*tot))
    out.sort(key=lambda t: t[0])
    res, seen = [], set()
    for _, txt, c in out:
        res.append(txt + ("0" if first and c not in seen else v(c, 4)))
        seen.add(c)
    return res


HR = 200


def conv_h_loads(a):
    a(f"s_mul_i32 {s(S_RING)}, {s(S_SH)}, {CH_STR}\ns_add_u32 {s(S_RING)}, {s(S_RING)}, {L_CONV}")
    for h in range(4):
        a(f"buffer_load_dwordx4 {v(HR+6*h+2,4)}, v4, {s(R_H,4)}, {s(S_HO)} offen offset:{1024*h} {NT}")


def conv_h_shift(a, z=24):
    for i in range(4):
        a(f"v_mov_b32 {v(z+i)}, 0")
    a(f"v_add_u32 v10, {s(S_RING)}, v4")
    T = 72
    a.c("the two dwords in front of each lane's piece come from the lane below")
    for h in range(4):
        r = HR + 6 * h
        for i in range(2):
            a(f"v_mov_b32_dpp {v(r+i)}, {v(r-2+i)} wave_ror:1 row_mask:0xf bank_mask:0xf" if h else f"v_mov_b32 {v(r+i)}, 0")
    for h in range(4):
        r = HR + 6 * h
        for i in range(2):
            a(f"v_mov_b32_dpp {v(r+i)}, {v(r+4+i)} wave_shr:1 row_mask:0xf bank_mask:0xf")
    for h in range(4):
        r = HR + 6 * h
        for i in range(4):
            a(f"v_alignbit_b32 {v(T+i)}, {v(r+2+i)}, {v(r+1+i)}, 16")
        for i in range(4):
            a(f"v_mov_b32 {v(T+4+i)}, {v(r+1+i)}")
        for i in range(4):
            a(f"v_alignbit_b32 {v(T+8+i)}, {v(r+1+i)}, {v(r+i)}, 16")
        T += 12


def conv_h_stage(a, z=24):
    a.c("zero pads: 384 B in front of each h copy, 128 B behind u")
    a("s_mov_b64 exec, 0xffffff")
    for p in range(4):
        a(f"ds_write_b128 v10, {v(z,4)} offset:{p*HSTR}")
    a("s_mov_b64 exec, 0xff")
    a(f"ds_write_b128 v10, {v(z,4)} offset:{4*HSTR + 4096}")
    a("s_mov_b64 exec, -1")
    for h in range(4):
        a(f"ds_write_b128 v10, {v(HR+6*h+2,4)} offset:{384 + 1024*h}")
        for p in range(1, 4):
            a(f"ds_write_b128 v10, {v(72+12*h+4*(p-1),4)} offset:{p*HSTR + 384 + 1024*h}")


def conv_mid(a):
    a("s_waitcnt vmcnt(0)")
    a(f"ds_write_b32 v11, v251 offset:{W_WD}")
    poll2_check(a, 5, 198)
    a(f"s_lshl_b32 {s(S_T0)}, {s(S_MT)}, 2\ns_add_u32 {s(S_T0)}, {s(S_T0)}, {s(S_WB)}\ns_lshl_b32 {s(S_T0)}, {s(S_T0)}, 8\ns_add_u32 {s(S_T0)}, {s(S_T0)}, {WS_ST:#x}")
    a(f"buffer_load_dwordx4 {v(184,4)}, v15, {s(R_WS,4)}, {s(S_T0)} offen sc1")
    a(f"buffer_load_dwordx4 {v(188,4)}, v15, {s(R_WS,4)}, {s(S_T0)} offen offset:128 sc1")


def conv_main(a):
    U, UU, X, O = 48, 56, 112, 144
    for l in conv_reads(C_F0, 0):
        a(l)
    for r in range(4):
        cur, nxt = (C_F0, C_F1) if r % 2 == 0 else (C_F1, C_F0)
        a("s_waitcnt lgkmcnt(0)")
        if r < 3:
            rd = conv_reads(nxt, 64 * (r + 1))
        else:
            rd = [f"ds_read_b32 {v(U+2*b+c)}, v10 offset:{c*CH_STR + 256*(3-b)}" for b in range(4) for c in range(2)]
        for l in interleave(conv_mfmas(cur, r == 0), rd, 0, 1):
            a(l)
        if r == opt("WDR", 0):
            conv_mid(a)
    lstamp(a, 5)
    a(f"s_setprio {opt('PRX', opt('PRC', 3))}")
    bsync(a)
    if opt("XST", 0): lstamp(a, 1)
    for t in range(8):
        a(f"ds_write_b128 v8, {v(C_ACC+4*t,4)} offset:{t*1024}")
    bsync_post(a)
    a.c("skip term D*u at rows 512wb + 128b + 2l, +1")
    a(f"s_lshl_b32 s100, {s(S_C+1)}, 16\ns_and_b32 {s(S_C+1)}, {s(S_C+1)}, 0xffff0000")
    for b in range(4):
        for c in range(2):
            u, o = U + 2*b + c, UU + 4*b + 2*c
            a(f"v_and_b32 {v(o)}, {s(S_C)}, {v(u)}\nv_lshlrev_b32 {v(o+1)}, 16, {v(u)}")
    for b in range(4):
        for c in range(2):
            for j in range(2):
                a(f"v_mul_f32 {v(UU+4*b+2*c+j)}, {s(S_C+1) if c else 's100'}, {v(UU+4*b+2*c+j)}")
        a(f"v_mov_b32 {v(O+4*b+1)}, {s(S_NON)}\nv_mov_b32 {v(O+4*b+3)}, {s(S_NON)}")
    bsync_wait(a)
    if opt("XST", 0): lstamp(a, 2)
    for b in range(4):
        for w in range(4):
            a(f"ds_read_b64 {v(X+8*b+2*w,2)}, v9 offset:{w*8192 + b*512}")
    a("s_waitcnt vmcnt(0)")
    for b in range(4):
        a(f"s_waitcnt lgkmcnt({4*(3-b)})")
        for c in range(2):
            for j in range(2):
                o, x0 = UU + 4*b + 2*c + j, X + 8*b + 4*c + j
                a(f"v_add_f32 {v(o)}, {v(o)}, {v(x0)}")
        for c in range(2):
            for j in range(2):
                o, x0 = UU + 4*b + 2*c + j, X + 8*b + 4*c + j
                a(f"v_add_f32 {v(o)}, {v(o)}, {v(x0+2)}")
        for j in range(2):
            a(f"v_cvt_pk_bf16_f32 {v(O+4*b+2*j)}, {v(UU+4*b+j)}, {v(UU+4*b+2+j)}")
        if opt("XST", 0) and b == 0: lstamp(a, 3)
        a(f"buffer_store_dwordx4 {v(O+4*b,4)}, v4, {s(R_WS,4)}, {s(S_HO)} offen offset:{1024*b} sc1")
    a.c("the flag only says where to look: the granules carry their own tags")
    if opt("YACK", 0):
        a("s_waitcnt vmcnt(0)")
    flag_store(a, S_DO, 8, 9)


def conv_addr(a):
    a(f"s_lshr_b32 {s(S_T0)}, {s(S_WB)}, 1\ns_mul_i32 {s(S_RING)}, {s(S_T0)}, {CH_STR}\ns_add_u32 {s(S_RING)}, {s(S_RING)}, {L_CONV}")
    a(f"s_lshl_b32 {s(S_T3)}, {s(S_TI)}, 2\ns_load_dword {s(S_C+1)}, {s(S_DP,2)}, {s(S_T3)}")
    a.c("A address: base + (3-(m&3))*HSTR + 128*(m>>2) + 16*kg + 256*rh ; B address: ubase + 120 - 8n + 16kg + 256*rh")
    a(f"s_and_b32 {s(S_T0)}, {s(S_WB)}, 1\ns_lshl_b32 {s(S_T0)}, {s(S_T0)}, 8\ns_add_u32 {s(S_T0)}, {s(S_T0)}, {s(S_RING)}")
    a(f"v_and_b32 v6, 3, v0\nv_sub_u32 v6, 3, v6\nv_mul_u32_u24 v6, {HSTR}, v6\nv_bfe_u32 v7, v0, 2, 2\nv_lshl_add_u32 v6, v7, 7, v6")
    a(f"v_and_b32 v7, 48, v0\nv_add3_u32 {v(C_AA)}, v6, v7, {s(S_T0)}")
    a(f"v_and_b32 v6, 15, v0\nv_lshlrev_b32 v6, 3, v6\nv_sub_u32 v6, v7, v6\ns_add_u32 {s(S_T0)}, {s(S_T0)}, {4*HSTR + 120}\nv_add_u32 {v(C_BA)}, {s(S_T0)}, v6")
    a(f"s_lshl_b32 {s(S_T0)}, {s(S_WB)}, 13\ns_add_u32 {s(S_T0)}, {s(S_T0)}, {L_XCH}\nv_add_u32 v8, {s(S_T0)}, v4")
    a(f"s_lshl_b32 {s(S_T0)}, {s(S_WB)}, 11\ns_add_u32 {s(S_T0)}, {s(S_T0)}, {L_XCH}\nv_lshlrev_b32 v9, 3, v0\nv_add_u32 v9, {s(S_T0)}, v9")
    a.c("u for the skip term: ubase_c + 2*(2046 - 512wb - 128b - 2l)")
    a(f"s_lshl_b32 {s(S_T0)}, {s(S_WB)}, 10\ns_sub_u32 {s(S_T0)}, {L_CONV + 4*HSTR + 4092 - 768}, {s(S_T0)}\nv_lshlrev_b32 v10, 2, v0\nv_sub_u32 v10, {s(S_T0)}, v10")
    a.c("y granules: YG[ti][row*8]; flag F4[wb*256 + ti]")
    a(f"s_mul_i32 {s(S_T0)}, {s(S_TI)}, {YSTR}\ns_lshl_b32 {s(S_T1)}, {s(S_WB)}, 12\ns_add_u32 {s(S_T0)}, {s(S_T0)}, {s(S_T1)}\ns_add_u32 {s(S_HO)}, {s(S_T0)}, {WS_YG:#x}")
    a(f"s_lshl_b32 {s(S_T0)}, {s(S_WB)}, 8\ns_add_u32 {s(S_T0)}, {s(S_T0)}, {s(S_TI)}\ns_lshl_b32 {s(S_T0)}, {s(S_T0)}, 7\ns_add_u32 {s(S_DO)}, {s(S_T0)}, {WS_F4:#x}")
    a(f"s_mov_b32 {s(S_CNT)}, 0\ns_lshl_b32 {s(S_T0)}, {s(S_WB)}, 2\nv_add_u32 v11, {s(S_T0)}, {v(C_CNT)}\nv_mov_b32 v251, 3")
    a.c("F1 pairs of the two tiles that hold this wave's output rows")
    a(f"s_lshl_b32 {s(S_T1)}, {s(S_MT)}, 2\ns_add_u32 {s(S_T1)}, {s(S_T1)}, {s(S_WB)}\ns_lshl_b32 {s(S_T1)}, {s(S_T1)}, 8\ns_add_u32 {s(S_T1)}, {s(S_T1)}, {WS_F1:#x}")
    a(f"v_and_b32 v5, 1, v0\nv_lshlrev_b32 v5, 7, v5\nv_add_u32 v5, {s(S_T1)}, v5")
    poll2_issue(a, 5, 198)


def final_loads(a):
    a(f"s_lshl_b32 {s(S_T0)}, {s(S_MT)}, 2\ns_add_u32 {s(S_T0)}, {s(S_T0)}, {s(S_WB)}\ns_lshl_b32 {s(S_T1)}, {s(S_T0)}, 14\ns_lshl_b32 {s(S_T2)}, {s(S_NT)}, 7\ns_add_u32 {s(S_XO)}, {s(S_T1)}, {s(S_T2)}")
    a(f"s_add_u32 {s(S_WO)}, {s(S_XO)}, 8192")
    a("v_lshrrev_b32 v12, 3, v0\nv_and_b32 v13, 7, v0\nv_lshlrev_b32 v14, 4, v13\nv_lshl_add_u32 v14, v12, 10, v14\nv_lshlrev_b32 v15, 4, v12")
    a(f"buffer_load_dwordx4 {v(176,4)}, v14, {s(R_X,4)}, {s(S_XO)} offen")
    a(f"buffer_load_dwordx4 {v(180,4)}, v14, {s(R_X,4)}, {s(S_WO)} offen")


def final(a):
    XU, XN, YU, YL = 16, 72, 96, 160
    a.c("flags F4[(mt>>3)*256 + 32nt + 8wb + (l&7)]; granules of pairs 32nt + 8wb + 2i + (l>>5), rows 64mt + 2*(l&31) ..")
    a(f"s_lshl_b32 {s(S_T0)}, {s(S_NT)}, 2\ns_add_u32 {s(S_T0)}, {s(S_T0)}, {s(S_WB)}\ns_lshr_b32 {s(S_T1)}, {s(S_MT)}, 3\ns_lshl_b32 {s(S_T1)}, {s(S_T1)}, 5\ns_add_u32 {s(S_T1)}, {s(S_T1)}, {s(S_T0)}")
    a(f"s_lshl_b32 {s(S_T1)}, {s(S_T1)}, 10\ns_add_u32 {s(S_T1)}, {s(S_T1)}, {WS_F4:#x}\nv_lshlrev_b32 v5, 7, v13\nv_add_u32 v5, {s(S_T1)}, v5")
    a(f"s_mul_i32 {s(S_T0)}, {s(S_T0)}, {8*YSTR}\ns_lshl_b32 {s(S_T1)}, {s(S_MT)}, 9\ns_add_u32 {s(S_T0)}, {s(S_T0)}, {s(S_T1)}\ns_add_u32 {s(S_HO)}, {s(S_T0)}, {WS_YG:#x}")
    a(f"v_lshrrev_b32 v10, 5, v0\nv_mul_u32_u24 v8, {YSTR - 512}, v10\nv_add_u32 v8, v8, v4")

    def y_loads():
        a(f"s_mov_b32 {s(S_T1)}, {s(S_HO)}")
        for i in range(4):
            a(f"buffer_load_dwordx4 {v(YL+4*i,4)}, v8, {s(R_WS,4)}, {s(S_T1)} offen sc1")
            if i < 3:
                a(f"s_add_u32 {s(S_T1)}, {s(S_T1)}, {2*YSTR}")
    for t in range(2):
        for i in range(4):
            a(f"v_lshlrev_b32 {v(XU+8*t+2*i)}, 16, {v(176+4*t+i)}\nv_and_b32 {v(XU+8*t+2*i+1)}, {s(S_C)}, {v(176+4*t+i)}")
    for i in range(16):
        a(f"v_mov_b32 {v(YU+i)}, 0")
    a.c("transpose scratch [wb'][c*272 + e*64 + row*4]")
    a(f"s_mul_i32 {s(S_T0)}, {s(S_WB)}, 544\ns_add_u32 {s(S_T0)}, {s(S_T0)}, {L_YL}")
    a(f"v_and_b32 v9, 3, v12\nv_mul_u32_u24 v9, 2176, v9\nv_lshl_add_u32 v9, v10, 6, v9\nv_lshl_add_u32 v9, v13, 3, v9\nv_add_u32 v9, {s(S_T0)}, v9")
    a(f"s_mul_i32 {s(S_T0)}, {s(S_WB)}, 2176\ns_add_u32 {s(S_T0)}, {s(S_T0)}, {L_YL}")
    a(f"v_mul_u32_u24 v7, 272, v13\nv_lshl_add_u32 v7, v12, 2, v7\nv_add_u32 v7, {s(S_T0)}, v7")
    a.c("partials: wb*16384 + w*4096 + (8t + row)*256 + ((2c + h) ^ row)*16")
    a(f"s_lshl_b32 {s(S_T0)}, {s(S_WB)}, 14\nv_lshlrev_b32 v2, 1, v13\nv_xor_b32 v2, v2, v12\nv_lshlrev_b32 v2, 4, v2\nv_lshl_add_u32 v2, v12, 8, v2\nv_add_u32 v2, {s(S_T0)}, v2")
    a("v_xor_b32 v3, 16, v2")
    for t in range(2):
        a(f"v_mul_f32 {v(185+4*t)}, {f32bits(1.0/C1):#x}, {v(185+4*t)}")
        for i in range(8):
            a(f"v_sub_f32 {v(XN+8*t+i)}, {v(XU+8*t+i)}, {v(184+4*t)}")
        for i in range(8):
            a(f"v_mul_f32 {v(XN+8*t+i)}, {v(XN+8*t+i)}, {v(185+4*t)}")
    if not opt('LDST', 0): stamp(a, 7)
    a(f"s_setprio {opt('PRP', 0)}")
    a.c("stay off the memory path until the GEMM2 waves have issued their loads")
    lds_min_wait(a, C_CNT, W_HI, 1, 4, 6, nap=2)
    a(f"s_setprio {opt('PRF', 3)}")
    if not opt('LDST', 0): stamp(a, 8)
    top, done = a.label("yp"), a.label("yp_ok")
    a(f"s_mov_b32 {s(S_IT)}, 0")
    if opt("YFLAG", 1):
        poll(a, 5, 6)
    a(f"{top}:")
    y_loads()
    a("s_waitcnt vmcnt(0)")
    for i in range(4):
        a(f"v_xor_b32 {v(48+i)}, {s(S_NON)}, {v(YL+4*i+1)}\nv_xor_b32 {v(52+i)}, {s(S_NON)}, {v(YL+4*i+3)}\nv_mov_b32 {v(YL+4*i+1)}, {v(YL+4*i+2)}")
    a("v_or3_b32 v48, v48, v49, v50\nv_or3_b32 v51, v51, v52, v53\nv_or3_b32 v48, v48, v54, v55\nv_or_b32 v48, v48, v51\nv_cmp_ne_u32 vcc, 0, v48")
    a(f"s_cbranch_vccz {done}")
    poll(a, 5, 6)
    a(f"s_add_u32 {s(S_IT)}, {s(S_IT)}, {s(S_SPIN)}\ns_add_u32 {s(S_IT)}, {s(S_IT)}, 1\ns_cmp_lt_u32 {s(S_IT)}, {SPIN_MAX}\ns_cbranch_scc1 {top}")
    a(f"{done}:")
    for i in range(4):
        a(f"ds_write_b64 v9, {v(YL+4*i,2)} offset:{272*(i>>1) + 128*(i&1)}")
    bsync(a)
    for t in range(2):
        for e in range(8):
            a(f"ds_read_u16_d16_hi {v(YU+8*t+e)}, v7 offset:{64*(e>>1) + 32*t + 2*(e&1)}")
    for t in range(2):
        a(f"s_waitcnt lgkmcnt({8*(1-t)})")
        for i in range(8):
            a(f"v_fmac_f32 {v(XU+8*t+i)}, {v(XN+8*t+i)}, {v(YU+8*t+i)}")
    if not opt('LDST', 0): stamp(a, 9)
    if STAMPS:
        a("s_waitcnt lgkmcnt(0)")
    a("s_barrier")
    P = 112
    for t in range(2):
        for w in range(4):
            for h in range(2):
                a(f"ds_read_b128 {v(P+32*t+8*w+4*h,4)}, {'v3' if h else 'v2'} offset:{w*4096 + t*2048}")
    for t in range(2):
        a(f"s_waitcnt lgkmcnt({8*(1-t)})")
        p = P + 32 * t
        for i in range(4):
            a(f"v_pk_add_f32 {v(p+2*i,2)}, {v(p+2*i,2)}, {v(p+8+2*i,2)}")
        for i in range(4):
            a(f"v_pk_add_f32 {v(p+16+2*i,2)}, {v(p+16+2*i,2)}, {v(p+24+2*i,2)}")
        for i in range(4):
            a(f"v_pk_add_f32 {v(p+2*i,2)}, {v(p+2*i,2)}, {v(XU+8*t+2*i,2)}")
        for i in range(4):
            a(f"v_pk_add_f32 {v(p+2*i,2)}, {v(p+2*i,2)}, {v(p+16+2*i,2)}")
        for i in range(4):
            a(f"v_cvt_pk_bf16_f32 {v(48+4*t+i)}, {v(p+2*i)}, {v(p+2*i+1)}")
        a(f"buffer_store_dwordx4 {v(48+4*t,4)}, v14, {s(R_OUT,4)}, {s(S_WO if t else S_XO)} offen")


def epoch_flags_issue(a):
    a(f"v_lshlrev_b32 v6, 7, v0\ns_mov_b32 {s(S_T0)}, {WS_F1:#x}")
    for i in range(4):
        a(f"buffer_load_dword {v(2+i)}, v6, {s(R_WS,4)}, {s(S_T0)} offen sc1")
        a(f"s_add_u32 {s(S_T0)}, {s(S_T0)}, 8192")


def epoch_pre(a):
    done = a.label("ep_skip")
    a(f"s_lshl_b32 {s(S_T0)}, s2, 3\ns_add_u32 {s(S_T0)}, {s(S_T0)}, {s(S_WAVE)}\ns_cmp_lg_u32 {s(S_T0)}, 0\ns_cbranch_scc1 {done}")
    epoch_flags_issue(a)
    a(f"{done}:")


def epoch_advance(a):
    done, top, ok = a.label("ep_skip"), a.label("ep_top"), a.label("ep_ok")
    a(f"s_lshl_b32 {s(S_T0)}, s2, 3\ns_add_u32 {s(S_T0)}, {s(S_T0)}, {s(S_WAVE)}\ns_cmp_lg_u32 {s(S_T0)}, 0\ns_cbranch_scc1 {done}")
    a(f"s_mov_b32 {s(S_SPIN)}, 0")
    a(f"{top}:")
    for i in range(4):
        a(f"v_xor_b32 {v(2+i)}, {s(S_NON)}, {v(2+i)}")
    a("v_or_b32 v2, v2, v3\nv_or_b32 v4, v4, v5\nv_or_b32 v2, v2, v4\nv_cmp_ne_u32 vcc, 0, v2")
    a(f"s_cbranch_vccz {ok}")
    a(f"s_add_u32 {s(S_SPIN)}, {s(S_SPIN)}, 1\ns_cmp_ge_u32 {s(S_SPIN)}, {SPIN_MAX}\ns_cbranch_scc1 {ok}")
    epoch_flags_issue(a)
    a(f"s_waitcnt vmcnt(0)\ns_branch {top}")
    a(f"{ok}:")
    a(f"s_mov_b32 {s(S_T0)}, {WS_EP:#x}")
    flag_store(a, S_T0, 8, 9)
    a(f"{done}:")


def kernel(a):
    entry(a)
    prologue(a, False, 1)
    g1_compute(a)
    g1_epilogue(a)
    epoch_pre(a)
    g2_main(a)
    epoch_advance(a)
    stamp_flush(a)
    a("s_endpgm")
    a(".p2align 6\nL_load:")
    prologue(a)
    loader(a)
    a("s_branch L_bj")
    a(".p2align 6\nL_help:")
    prologue(a)
    helper(a)
    a("L_bj:")
    if opt("BST", 0): lstamp(a, 1)
    conv_addr(a)
    if opt("BST", 0): lstamp(a, 2)
    bsync(a, 4 if opt("CEARLY", 0) else 8)
    a(f"s_setprio {opt('PRC', 3)}")
    lstamp(a, 4)
    conv_main(a)
    lstamp(a, 6)
    final(a)
    stamp_flush(a)
    a("L_end:\ns_endpgm")


HEADER = open(f"cdna_kernels/{NAME}.s.ref").read().split("; Override launch")[0]


def build():
    a = Asm()
    kernel(a)
    out = HEADER + "; @launch grid=(256,1,1) block=(512,1,1) lds=163840\n"
    out += '.amdgcn_target "amdgcn-amd-amdhsa--gfx950"\n.text\n' + a.text()
    out += '.section .rodata,"a"\n.p2align 6\n' + kernel_desc(KNAME)
    return out


if __name__ == "__main__":
    open(sys.argv[1] if len(sys.argv) > 1 else "t_m.s", "w").write(build())
```

```python
import math, os, sys
from asmlib import *

NAME = "parallel_sum__ssm_conv_h3__geglu_ffn__prompt"
KNAME = NAME + "_kernel"
S, D, F = 2048, 512, 1376
NU = F // 16
STAMPS = os.environ.get("STAMPS") == "1"
def opt(name, default):
    return int(os.environ.get(name, default))

WS_HF, WS_KVR, WS_Y2, WS_ST, WS_CSP = 0, 0x600000, 0x800000, 0xA00000, 0xA10000
WS_F1, WS_F2, WS_F3, WS_F4, WS_EP = 0xA80000, 0xA88000, 0xAA0000, 0xAC0000, 0xAE0000
WS_STAMP = 0xC00000
WS_YG = 0x1000000
YSTR = 16384 + 256
WS_SIZE = 0x1500000
NONCE_INC = 0x9E3779B1
OOB = 0x7f000000
R_X, R_WG, R_WU, R_WS, R_K, R_V, R_SK, R_WD, R_OUT, R_H = 4, 8, 12, 16, 20, 24, 28, 32, 36, 40
S_DP = 44
S_EX = 46
(S_WAVE, S_MI, S_NI, S_FB0, S_NBLK, S_T0, S_T1, S_T2, S_T3, S_IT, S_SLOT, S_KC, S_XO, S_WO, S_WO2, S_M0,
 S_WB, S_SH, S_UH, S_TI, S_MT, S_NT, S_NON, S_RING, S_CNT, S_HO, S_DO, S_SPIN) = range(48, 76)
S_C = 76
S_DK, S_HK, S_KEND = 3, S_RING, S_CNT
SLOT, NSLOT = 40960, 3
L_KVT, KVT_STR = 122880, 80
L_CS, L_ST, L_CNT = 135680, 136704, 138752
HSTR = 4640
CH_STR = 4 * HSTR + 4224
L_CONV = 81920
L_XCH = 81920
L_YL = 114688
NRW = 7
L_RA0 = 127488
S_RA, S_RB = 101, S_M0
L_CSS = 139264
assert L_KVT + 2 * 64 * KVT_STR <= L_CS and L_CONV + 2 * CH_STR <= L_RA0 and L_RA0 + 8192 <= L_CS and L_CNT + 256 <= L_CSS
W_CNT, W_GATH, W_HP, W_FREE, W_FULL, W_NON, W_C0, W_ISS, W_WD, W_HI = 0, 8, 12, 16, 32, 40, 48, 64, 80, 96
S_DUM = 100
C1 = -2.0 * math.log2(math.e) * math.sqrt(2.0 / math.pi)
C2 = C1 * 0.044715
SPIN_MAX = 1 << 16
LSPIN_MAX = 1 << 22


def stamp(a, i):
    if STAMPS:
        a(f"{'s_memtime' if opt('CLK', 0) else 's_memrealtime'} {s(78+2*i,2)}")


def lstamp(a, i):
    if STAMPS and not opt("LDST", 0):
        lab = a.label("ls")
        a(f"s_cmp_ge_u32 {s(S_WB)}, 2\ns_cbranch_scc1 {lab}")
        stamp(a, i)
        a(f"{lab}:")


ITST = STAMPS and opt("ITST", 0)


def it_issue(a):
    if ITST:
        a("s_memrealtime s[96:97]")


def it_take(a, add):
    if ITST:
        a(f"s_add_u32 m0, {s(S_IT)}, {add}\ns_nop 0\nv_writelane_b32 v255, s96, m0")


def stamp_flush(a):
    if not STAMPS:
        return
    if ITST:
        a(f"s_lshl_b32 s96, s2, 3\ns_add_u32 s96, s96, {s(S_WAVE)}\ns_lshl_b32 s96, s96, 8\ns_add_u32 s96, s96, {WS_STAMP + 0x100000:#x}")
        a(f"v_lshlrev_b32 v2, 2, v0\nbuffer_store_dword v255, v2, {s(R_WS,4)}, s96 offen\ns_mov_b32 s96, 0")
    a("s_waitcnt vmcnt(0) lgkmcnt(0)")
    stamp(a, 10)
    a("s_waitcnt lgkmcnt(0)")
    for i in range(11):
        a(f"v_writelane_b32 v1, {s(78+2*i)}, {i}")
    a(f"s_lshl_b32 s78, s2, 3\ns_add_u32 s78, s78, {s(S_WAVE)}\ns_lshl_b32 s78, s78, 6\ns_add_u32 s78, s78, {WS_STAMP:#x}")
    a("v_lshlrev_b32 v2, 2, v0\ns_mov_b64 exec, 0x7ff")
    a(f"buffer_store_dword v1, v2, {s(R_WS,4)}, s78 offen")
    if opt("DBGST", 0):
        lab = a.label("dbg")
        a(f"s_cmp_lg_u32 s78, {WS_STAMP + opt('DBGW', 0)*64 + 100*512:#x}\ns_cbranch_scc1 {lab}")
        a("s_load_dwordx2 s[84:85], s[0:1], 88\ns_mov_b32 s86, 256\ns_mov_b32 s87, 0x20000\nv_readlane_b32 s82, v1, 0\ns_waitcnt lgkmcnt(0)")
        a("v_subrev_u32 v1, s82, v1")
        a("buffer_store_dword v1, v2, s[84:87], 0 offen")
        a(f"{lab}:")


TABLE = [(R_X, 0, S*D*2), (R_WG, 56, D*F*2), (R_WU, 64, D*F*2), (R_WS, 96, WS_SIZE), (R_K, 8, S*D*2), (R_V, 16, S*D*2),
         (R_SK, 24, D*8), (R_WD, 72, D*F*2), (R_OUT, 80, S*D*2), (R_H, 32, S*D*2)]


def entry(a):
    a(f".globl {KNAME}\n.p2align 8\n.type {KNAME},@function\n{KNAME}:")
    a("s_cmp_ge_u32 s2, 256\ns_cbranch_scc1 L_end")
    if opt("CPF", 0):
        n = opt("CPF", 0)
        a.c("pull this workgroup's share of the code into L2 ahead of the instruction fetch")
        a(f"s_getpc_b64 {s(S_EX,2)}\nL_pc:")
        a(f"s_lshr_b32 s3, s2, 3\nv_lshlrev_b32 v2, 5, v0\nv_add_u32 v2, s3, v2\nv_lshlrev_b32 v2, 7, v2\nv_mov_b32 v3, {s(S_EX+1)}")
        a(f"v_cmp_gt_u32 vcc, L_end-L_pc, v2\ns_and_saveexec_b64 {s(S_DP,2)}, vcc\ns_cbranch_execz L_nopf")
        a(f"v_add_co_u32 v2, vcc, {s(S_EX)}, v2\nv_addc_co_u32 v3, vcc, 0, v3, vcc")
        a("global_load_dword v212, v[2:3], off")
        a("L_nopf:\ns_mov_b64 exec, -1")
    a("v_lshrrev_b32 v1, 6, v0")
    a(f"s_load_dwordx2 {s(R_X,2)}, s[0:1], 0\ns_load_dwordx2 {s(R_WS,2)}, s[0:1], 96")
    stamp(a, 0)
    a(f"v_readfirstlane_b32 {s(S_WAVE)}, v1")
    a("v_and_b32 v0, 63, v0")
    a(f"s_cmp_ge_u32 {s(S_WAVE)}, 6\ns_cbranch_scc1 L_help")
    a(f"s_cmp_ge_u32 {s(S_WAVE)}, 4\ns_cbranch_scc1 L_load")


def prologue(a, bar=True, part=3):
    first = (R_X, R_WG, R_WU)
    if part & 1:
        for r, off, size in TABLE:
            if r in first[1:]:
                a(f"s_load_dwordx2 {s(r,2)}, s[0:1], {off}")
    if part & 2:
        for r, off, size in TABLE:
            if r not in first + (R_WS,):
                a(f"s_load_dwordx2 {s(r,2)}, s[0:1], {off}")
        a(f"s_load_dwordx2 {s(S_DP,2)}, s[0:1], 40")
        if STAMPS:
            for i in range(1, 11):
                a(f"s_mov_b32 {s(78+2*i)}, 0")
        if ITST:
            a("v_mov_b32 v255, 0")
    if part & 1 and not bar:
        a.c("LDS hand-off words start at zero")
        a(f"v_mov_b32 v20, 0\nv_lshlrev_b32 v5, 2, v0\nv_add_u32 v5, {L_CNT}, v5\nds_write_b32 v5, v20")
    for r, off, size in TABLE:
        if part & (1 if r in first else 2):
            a(f"s_mov_b32 {s(r+2)}, {size:#x}\ns_mov_b32 {s(r+3)}, 0x20000")
    if part & 1:
        a.c("x = wg&7, j = wg>>3; GEMM1 tile mi = 8*(x&1) + (j&7), ni = 4*(x>>1) + (j>>3); ti = 16*mi + ni")
        a(f"s_and_b32 {s(S_T0)}, s2, 1\ns_lshl_b32 {s(S_T0)}, {s(S_T0)}, 3")
        a(f"s_bfe_u32 {s(S_T1)}, s2, 0x30003\ns_add_u32 {s(S_MI)}, {s(S_T0)}, {s(S_T1)}")
        a(f"s_bfe_u32 {s(S_T0)}, s2, 0x20001\ns_lshl_b32 {s(S_T0)}, {s(S_T0)}, 2")
        a(f"s_lshr_b32 {s(S_T2)}, s2, 6\ns_add_u32 {s(S_NI)}, {s(S_T0)}, {s(S_T2)}")
        a.c("first 32-col block fb0 = 3*ni - (ni>>2) - (ni==15); nblk = 2 for ni in {3,7,11,14,15}")
        a(f"s_mul_i32 {s(S_FB0)}, {s(S_NI)}, 3\ns_lshr_b32 {s(S_T0)}, {s(S_NI)}, 2\ns_sub_u32 {s(S_FB0)}, {s(S_FB0)}, {s(S_T0)}")
        a(f"s_cmp_eq_u32 {s(S_NI)}, 15\ns_subb_u32 {s(S_FB0)}, {s(S_FB0)}, 0")
        a(f"s_bitcmp1_b32 0xc888, {s(S_NI)}\ns_cselect_b32 {s(S_NBLK)}, 2, 3")
        a(f"s_and_b32 {s(S_WB)}, {s(S_WAVE)}, 3")
        a.c("GEMM1 DMA lane offsets. x: (l>>3)*1024 + ((l&7) ^ ((4*(w&1) + l>>4)&7))*16 ; W: (l>>2)*2752 + ((l&3) ^ (2*(l>>5)))*16")
        a(f"s_and_b32 {s(S_T0)}, {s(S_WAVE)}, 1\ns_lshl_b32 {s(S_T0)}, {s(S_T0)}, 2")
        a(f"v_lshrrev_b32 v5, 4, v0\nv_add_u32 v5, {s(S_T0)}, v5\nv_and_b32 v6, 7, v0\nv_xor_b32 v5, v5, v6\nv_lshlrev_b32 v5, 4, v5")
        a(f"v_lshrrev_b32 v6, 3, v0\nv_lshl_add_u32 {v(VB_X)}, v6, 10, v5")
        a(f"v_lshrrev_b32 v5, 5, v0\nv_lshlrev_b32 v5, 1, v5\nv_and_b32 v6, 3, v0\nv_xor_b32 v5, v5, v6\nv_lshlrev_b32 v5, 4, v5")
        a(f"v_lshrrev_b32 v6, 2, v0\nv_mul_u32_u24 v6, {F*2}, v6\nv_add_u32 {v(VB_W)}, v6, v5")
        if not bar:
            a(f"s_lshl_b32 {s(S_XO)}, {s(S_MI)}, 17\ns_lshl_b32 {s(S_T0)}, {s(S_WB)}, 13\ns_add_u32 {s(S_XO)}, {s(S_XO)}, {s(S_T0)}")
            a(f"s_mul_i32 {s(S_WO)}, {s(S_WB)}, {16*F*2}\ns_lshl_b32 {s(S_T0)}, {s(S_FB0)}, 6\ns_add_u32 {s(S_WO)}, {s(S_WO)}, {s(S_T0)}")
            a(f"s_cmp_eq_u32 {s(S_NBLK)}, 3\ns_cselect_b32 {s(S_WO2)}, {s(S_WO)}, {OOB:#x}")
            a(f"s_lshl_b32 {s(S_M0)}, {s(S_WB)}, 10")
    if part & 2:
        a(f"s_lshl_b32 {s(S_TI)}, {s(S_MI)}, 4\ns_add_u32 {s(S_TI)}, {s(S_TI)}, {s(S_NI)}")
        a.c("GEMM2 tile mt = 4*x + (j&3), nt = j>>2")
        a(f"s_and_b32 {s(S_T0)}, s2, 7\ns_lshl_b32 {s(S_T0)}, {s(S_T0)}, 2\ns_bfe_u32 {s(S_T1)}, s2, 0x20003\ns_add_u32 {s(S_MT)}, {s(S_T0)}, {s(S_T1)}")
        a(f"s_lshr_b32 {s(S_NT)}, s2, 5\ns_mov_b32 {s(S_SPIN)}, 0")
    if bar:
        a(f"s_mov_b32 {s(S_UH)}, 0\nv_lshlrev_b32 v4, 4, v0\nv_mov_b32 {v(C_CNT)}, {L_CNT}\nv_mov_b32 {v(C_ONE)}, 1\ns_mov_b32 {s(S_C)}, 0xffff0000")
    if part & 1:
        a("s_waitcnt lgkmcnt(0)")
    if bar:
        a("s_barrier")


VB_X, VB_W = 14, 15
C_CNT, C_ONE = 252, 253


def poll(a, vaddr, vtmp):
    top, done = a.label("poll"), a.label("poll_ok")
    a(f"s_mov_b32 {s(S_SPIN)}, 0")
    a(f"{top}:")
    a(f"buffer_load_dword {v(vtmp)}, {v(vaddr)}, {s(R_WS,4)}, 0 offen sc1")
    a("s_waitcnt vmcnt(0)")
    a(f"v_cmp_ne_u32 vcc, {s(S_NON)}, {v(vtmp)}")
    a(f"s_cbranch_vccz {done}")
    a("s_sleep 1")
    a(f"s_add_u32 {s(S_SPIN)}, {s(S_SPIN)}, 1\ns_cmp_lt_u32 {s(S_SPIN)}, {SPIN_MAX}\ns_cbranch_scc1 {top}")
    a(f"{done}:")


def poll2_issue(a, vaddr, vt):
    a(f"buffer_load_dwordx2 {v(vt,2)}, {v(vaddr)}, {s(R_WS,4)}, 0 offen sc1")


def poll2_check(a, vaddr, vt):
    top, done = a.label("poll"), a.label("poll_ok")
    a(f"s_mov_b32 {s(S_SPIN)}, 0")
    a(f"{top}:")
    a(f"v_cmp_ne_u32 vcc, {s(S_NON)}, {v(vt)}\nv_cmp_ne_u32 {s(S_EX,2)}, {s(S_NON)}, {v(vt+1)}")
    a(f"s_nop 0\ns_or_b64 vcc, vcc, {s(S_EX,2)}")
    a(f"s_cbranch_scc0 {done}")
    a(f"s_add_u32 {s(S_SPIN)}, {s(S_SPIN)}, 1\ns_cmp_ge_u32 {s(S_SPIN)}, {SPIN_MAX}\ns_cbranch_scc1 {done}")
    a("s_sleep 1")
    poll2_issue(a, vaddr, vt)
    a(f"s_waitcnt vmcnt(0)\ns_branch {top}")
    a(f"{done}:")


class VQ:
    def __init__(self, a):
        self.a, self.q = a, []
    def add(self, tag, n):
        self.q += [tag] * n
    def count(self, *tags):
        last = max((i for i, x in enumerate(self.q) if x in tags), default=-1)
        n = len(self.q) - 1 - last
        assert n <= 63
        return n
    def wait(self, *tags):
        self.a(f"s_waitcnt vmcnt({self.count(*tags)})")


def flag_store(a, soff, vt0, vt1):
    a(f"v_mov_b32 {v(vt0)}, {s(S_NON)}\nv_mov_b32 {v(vt1)}, 0")
    a("s_mov_b64 exec, 1")
    a(f"buffer_store_dword {v(vt0)}, {v(vt1)}, {s(R_WS,4)}, {s(soff)} offen sc1")
    a("s_mov_b64 exec, -1")


def epoch_load(a, vt):
    a(f"v_mov_b32 {v(vt)}, {WS_EP:#x}")
    a(f"buffer_load_dword {v(vt)}, {v(vt)}, {s(R_WS,4)}, 0 offen sc1")


def epoch_take(a, vt):
    a(f"v_readfirstlane_b32 {s(S_NON)}, {v(vt)}")
    a("s_nop 0")
    a(f"s_add_u32 {s(S_NON)}, {s(S_NON)}, {NONCE_INC:#x}")


V_XA0, V_XA1, V_W = 2, 3, 4
V_XC0, V_XC1, V_WC = 7, 8, 9
ACC, F0, F1 = 16, 112, 152
G_ACC, G_WF, G_H = 176, 16, 80
G_L16, G_WD, G_TR, G_TR0, G_TR5, G_FL = 240, 241, 242, 246, 250, 254
NHB, NWF, NSTEP = 6, 4, 11


def acc(u, mat, sb):
    return ACC + ((u * 2 + mat) * 4 + sb) * 4


def g1_reads(fr, step, units):
    out = []
    for u in units:
        if u == 'x':
            for sb in range(4):
                out.append(f"ds_read_b128 {v(fr+4*sb,4)}, {v(V_XC1 if step else V_XC0)} offset:{sb*2048}")
            continue
        for mat in range(2):
            r = fr + 16 + (u * 2 + mat) * 4
            for t in range(2):
                out.append(f"ds_read_b64_tr_b16 {v(r+2*t,2)}, {v(V_WC+u)} offset:{mat*12288+step*2048+t*256}")
    return out


def g1_mfmas(fr, units):
    out = []
    for u in units:
        for mat in range(2):
            for sb in range(4):
                c = acc(u, mat, sb)
                out.append(f"v_mfma_f32_16x16x32_bf16 {v(c,4)}, {v(fr+16+(u*2+mat)*4,4)}, {v(fr+4*sb,4)}, {v(c,4)}")
    return out


V_LW, V_FC, V_FL = 12, 13, 192


def g1_step_a(a):
    rd = g1_reads(F1, 1, ['x', 0, 1, 2])
    for l in interleave(g1_mfmas(F0, [0, 1]), rd, 0, 1):
        a(l)
    a(f"ds_write_b32 {v(V_FL+2)}, {v(V_FC)}")
    a(f"ds_read_b32 {v(V_FL)}, {v(V_FL+1)} offset:{W_FULL}")
    lab = a.label("g1_skip")
    a(f"s_cbranch_vccnz {lab}")
    for l in g1_mfmas(F0, [2]):
        a(l)
    a(f"{lab}:")


def g1_step_b(a):
    mf = g1_mfmas(F1, [0, 1])
    rd = g1_reads(F0, 0, ['x', 0, 1, 2])
    ok, slow = a.label("g1_ok"), a.label("g1_slow")
    a(mf[0])
    a(f"v_add_u32 {v(V_XC0)}, {s(S_SLOT)}, {v(V_XA0)}")
    a(mf[1])
    a(f"v_readfirstlane_b32 {s(S_T0)}, {v(V_FL)}")
    a(f"v_add_u32 {v(V_WC)}, {s(S_SLOT)}, {v(V_W)}")
    a(mf[2])
    a(f"s_cmp_ge_u32 {s(S_T0)}, {s(S_T2)}\ns_cbranch_scc1 {ok}")
    lds_min_wait(a, V_FL+1, W_FULL, 1, s(S_T2), V_FL)
    if ITST:
        it_issue(a)
        a("s_waitcnt lgkmcnt(0)")
        it_take(a, 32)
    a(f"{ok}:")
    extra = [f"v_add_u32 {v(V_WC+1)}, {s(S_SLOT)}, {v(V_W+1)}", f"v_add_u32 {v(V_WC+2)}, {s(S_SLOT)}, {v(V_W+2)}",
             f"v_add_u32 {v(V_XC1)}, {s(S_SLOT)}, {v(V_XA1)}", f"v_add_u32 {v(V_FC)}, 1, {v(V_FC)}", f"v_xor_b32 {v(V_FL+1)}, 4, {v(V_FL+1)}"]
    for i, m in enumerate(mf[3:]):
        a(rd.pop(0))
        if i < 3:
            a(rd.pop(0))
        if extra:
            a(extra.pop(0))
        a(m)
    assert not rd
    lab = a.label("g1_skip")
    a(f"s_cbranch_vccnz {lab}")
    for l in g1_mfmas(F1, [2]):
        a(l)
    a(f"{lab}:")


def dma_chunk0(a):
    for i in range(4):
        a(f"s_add_u32 m0, {s(S_M0)}, {i*4096}")
        a(f"s_add_u32 {s(S_XO)}, {s(S_XO)}, 32768" if i else "s_nop 0")
        a(f"buffer_load_dwordx4 {v(VB_X)}, {s(R_X,4)}, {s(S_XO)} offen lds")
    for blk in range(3):
        for mat in range(2):
            a(f"s_add_u32 m0, {s(S_M0)}, {16384 + (mat*3+blk)*4096 - 64*blk}")
            a("s_nop 0")
            a(f"buffer_load_dwordx4 {v(VB_W)}, {s(R_WU if mat else R_WG,4)}, {s(S_WO2 if blk == 2 else S_WO)} offen offset:{64*blk} lds")


def spf(a, srd, sbase, offs):
    for o in offs:
        a(f"s_buffer_load_dword {s(S_DUM)}, {s(srd,4)}, {s(sbase)} offset:{o:#x}")


def lds_min_wait(a, vaddr, off, n, target, vt, nap=None):
    lab = a.label("lw")
    a(f"{lab}:")
    a(f"ds_read_b{32*n} {v(vt,n)}, {v(vaddr)} offset:{off}")
    a("s_waitcnt lgkmcnt(0)")
    if n == 4:
        a(f"v_min3_u32 {v(vt)}, {v(vt)}, {v(vt+1)}, {v(vt+2)}\nv_min_u32 {v(vt)}, {v(vt)}, {v(vt+3)}")
    elif n == 2:
        a(f"v_min_u32 {v(vt)}, {v(vt)}, {v(vt+1)}")
    a("s_nop 0")
    a(f"v_readfirstlane_b32 {s(S_T0)}, {v(vt)}")
    a("s_nop 0")
    done = a.label("lw_ok")
    a(f"s_cmp_ge_u32 {s(S_T0)}, {target}\ns_cbranch_scc1 {done}")
    if nap is None:
        nap = opt("NAP", 1) if vaddr == C_CNT else 0
    if nap:
        a(f"s_sleep {nap}")
    a(f"s_add_u32 {s(S_SPIN)}, {s(S_SPIN)}, 1\ns_cmp_lt_u32 {s(S_SPIN)}, {LSPIN_MAX}\ns_cbranch_scc1 {lab}")
    a(f"{done}:")


def lds_inc(a, vaddr, vone, off):
    a(f"s_mov_b64 exec, 1\nds_add_u32 {v(vaddr)}, {v(vone)} offset:{off}\ns_mov_b64 exec, -1")


def wd_setup(a, first):
    a.c("Wd DMA lane offset: (l>>3)*1024 + ((l&7) ^ (((l>>4)&3)<<1))*16")
    a(f"v_lshrrev_b32 v12, 4, v0\nv_lshlrev_b32 v13, 1, v12\nv_and_b32 v14, 7, v0\nv_xor_b32 v13, v13, v14\nv_lshlrev_b32 v13, 4, v13\nv_lshrrev_b32 v14, 3, v0\nv_lshl_add_u32 {v(G_WD)}, v14, 10, v13")
    a(f"s_lshl_b32 {s(S_KC)}, {s(S_WB)}, 12")
    a(f"s_lshl_b32 {s(S_RA)}, {s(S_WB)}, 13\ns_add_u32 {s(S_RB)}, {s(S_RA)}, {131072 + 16384}\ns_add_u32 {s(S_RA)}, {s(S_RA)}, 131072\ns_cmp_eq_u32 {s(S_WB)}, 0\ns_cselect_b32 {s(S_RA)}, {L_RA0}, {s(S_RA)}")
    if opt("ROT", 1):
        a(f"s_and_b32 {s(S_T0)}, {s(S_MT)}, 3\ns_mul_i32 {s(S_T0)}, {s(S_T0)}, 3\ns_mul_i32 {s(S_T1)}, {s(S_NT)}, 7\ns_add_u32 {s(S_T0)}, {s(S_T0)}, {s(S_T1)}")
        a(f"s_mul_i32 {s(S_T1)}, {s(S_T0)}, 187\ns_lshr_b32 {s(S_T1)}, {s(S_T1)}, 11\ns_mul_i32 {s(S_T1)}, {s(S_T1)}, 11\ns_sub_u32 {s(S_T0)}, {s(S_T0)}, {s(S_T1)}")
    else:
        a(f"s_mov_b32 {s(S_T0)}, 0")
    a(f"s_add_u32 {s(S_DK)}, {s(S_T0)}, {first}\ns_sub_u32 {s(S_T1)}, {s(S_DK)}, 11\ns_cmp_ge_u32 {s(S_DK)}, 11\ns_cselect_b32 {s(S_DK)}, {s(S_T1)}, {s(S_DK)}")
    a(f"s_mul_i32 {s(S_DO)}, {s(S_WB)}, {NSTEP*32768}\ns_lshl_b32 {s(S_T1)}, {s(S_NT)}, 7\ns_add_u32 {s(S_DO)}, {s(S_DO)}, {s(S_T1)}")


def g2_setup(a):
    a(f"v_lshlrev_b32 {v(G_L16)}, 4, v0")
    wd_setup(a, NRW)
    a(f"s_mov_b32 {s(S_HK)}, {s(S_T0)}")
    a(f"s_cmp_eq_u32 {s(S_WAVE)}, 3\ns_cselect_b32 {s(S_KEND)}, 10, 99")
    a.c("tr address: w*4096 + (l>>2)*128 + ((db ^ ((l>>3)&3))*32) + (l&3)*8")
    a(f"v_lshrrev_b32 v13, 2, v0\nv_lshlrev_b32 v13, 7, v13\nv_and_b32 v15, 3, v0\nv_lshl_add_u32 v13, v15, 3, v13\nv_add_u32 v13, {s(S_KC)}, v13\nv_and_b32 v14, 3, v14")
    a(f"s_sub_u32 {s(S_T1)}, {s(S_RA)}, {s(S_KC)}")
    for db in range(4):
        a(f"v_xor_b32 v15, {db}, v14\nv_lshl_add_u32 {v(G_TR+db)}, v15, 5, v13\nv_add_u32 {v(G_TR0+db)}, {s(S_T1)}, {v(G_TR+db)}\nv_add_u32 {v(G_TR5+db)}, 0x10000, {v(G_TR+db)}")
    a(f"s_mul_i32 {s(S_HO)}, {s(S_MT)}, {2*NU*1024}\ns_mul_i32 {s(S_T0)}, {s(S_WAVE)}, {NSTEP*2048}\ns_add_u32 {s(S_HO)}, {s(S_HO)}, {s(S_T0)}")
    a.c("H flags this wave needs: F3[mt*32 + 8w + (l&7)]")
    a(f"s_lshl_b32 {s(S_T0)}, {s(S_MT)}, 2\ns_add_u32 {s(S_T0)}, {s(S_T0)}, {s(S_WAVE)}\ns_lshl_b32 {s(S_T0)}, {s(S_T0)}, 10\ns_add_u32 {s(S_T0)}, {s(S_T0)}, {WS_F3:#x}")
    a(f"v_and_b32 v12, 7, v0\nv_lshlrev_b32 v12, 7, v12\nv_add_u32 {v(G_FL)}, {s(S_T0)}, v12")


def g1_compute(a):
    a(f"s_setprio {opt('PRA', 3)}")
    if opt("TOUCH", 0):
        l1, l2 = a.label("tc"), a.label("tc")
        a(f"s_cmp_ge_u32 {s(S_WAVE)}, 2\ns_cbranch_scc1 {l1}")
        a(f"s_lshl_b32 {s(S_T2)}, {s(S_WAVE)}, 8\ns_add_u32 {s(R_K)}, {s(R_X)}, {s(S_T2)}\ns_addc_u32 {s(R_K+1)}, {s(R_X+1)}, 0\ns_mov_b32 {s(R_K+2)}, {S*D*2 - 256:#x}")
        RX0 = R_X
        globals()["R_X"] = R_K
        touch_x(a, (0, 4) if opt("TOUCH", 0) == 2 else (0,), 1)
        globals()["R_X"] = RX0
        a(f"s_branch {l2}\n{l1}:")
        a(f"s_cmp_eq_u32 {s(S_WAVE)}, 2\ns_cselect_b64 {s(R_K,2)}, {s(R_WG,2)}, {s(R_WU,2)}\ns_mov_b32 {s(R_K+2)}, {D*F*2:#x}")
        touch_w(a, 0, (R_K,), 1)
        a(f"{l2}:")
    dma_chunk0(a)
    a("s_barrier")
    prologue(a, False, 2)
    if opt("SPF", 0):
        a.c("warm the lines the column sums need: rows 32mi + 16*(w&1).. of gate (w<2) or up")
        a(f"s_cmp_lt_u32 {s(S_WAVE)}, 2\ns_cselect_b64 {s(R_K,2)}, {s(R_WG,2)}, {s(R_WU,2)}\ns_mov_b32 {s(R_K+2)}, {D*F*2:#x}")
        a(f"s_lshl_b32 {s(S_T0)}, {s(S_MI)}, 1\ns_and_b32 {s(S_T1)}, {s(S_WAVE)}, 1\ns_add_u32 {s(S_T0)}, {s(S_T0)}, {s(S_T1)}\ns_mul_i32 {s(S_XO)}, {s(S_T0)}, {16*F*2}")
        a(f"s_lshl_b32 {s(S_T1)}, {s(S_FB0)}, 6\ns_add_u32 {s(S_XO)}, {s(S_XO)}, {s(S_T1)}")
        spf(a, R_K, S_XO, [r*F*2 + h*128 for r in range(7) for h in range(2)])
    a(f"s_and_b32 {s(S_SH)}, {s(S_WAVE)}, 1\ns_lshr_b32 {s(S_UH)}, {s(S_WAVE)}, 1")
    a.c("x fragment address: (64*sh + s16)*128 + ((kg ^ ((s16>>1)&7))*16)")
    a("v_and_b32 v10, 15, v0\nv_lshrrev_b32 v11, 4, v0\nv_lshrrev_b32 v12, 1, v10\nv_xor_b32 v12, v12, v11\nv_lshlrev_b32 v12, 4, v12")
    a(f"v_lshl_add_u32 {v(V_XA0)}, v10, 7, v12\ns_lshl_b32 {s(S_T0)}, {s(S_SH)}, 13\nv_add_u32 {v(V_XA0)}, {s(S_T0)}, {v(V_XA0)}")
    a(f"v_xor_b32 {v(V_XA1)}, 64, {v(V_XA0)}")
    a.c("W fragment address: 16384 + blk*4096 + kg*512 + r*64 + ((h^(kg&1))*32) + c*8")
    a("v_lshlrev_b32 v12, 9, v11\nv_bfe_u32 v13, v0, 2, 2\nv_lshl_add_u32 v12, v13, 6, v12\nv_and_b32 v13, 3, v0\nv_lshl_add_u32 v12, v13, 3, v12")
    a("v_and_b32 v13, 1, v11\nv_lshl_add_u32 v12, v13, 5, v12")
    a(f"s_mul_i32 {s(S_T0)}, {s(S_UH)}, {s(S_NBLK)}")
    for u in range(3):
        a(f"s_add_u32 {s(S_T1)}, {s(S_T0)}, {u}\ns_and_b32 {s(S_T2)}, {s(S_T1)}, 1\ns_lshl_b32 {s(S_T2)}, {s(S_T2)}, 5")
        a(f"s_lshr_b32 {s(S_T1)}, {s(S_T1)}, 1\ns_lshl_b32 {s(S_T1)}, {s(S_T1)}, 12\ns_add_u32 {s(S_T1)}, {s(S_T1)}, 16384")
        a(f"v_xor_b32 {v(V_W+u)}, {s(S_T2)}, v12\nv_add_u32 {v(V_W+u)}, {s(S_T1)}, {v(V_W+u)}")
    g2_setup(a)
    for i in range(48):
        a(f"v_pk_mov_b32 {v(ACC+2*i,2)}, 0, 0")
    for i in range(5):
        a(f"v_mov_b32 {v(V_XC0+i)}, {v(V_XA0+i)}")
    a(f"s_mov_b32 {s(S_IT)}, 0\ns_mov_b32 {s(S_SLOT)}, 0")
    a(f"v_mov_b32 {v(V_LW)}, {L_CNT}\nv_mov_b32 {v(V_FL+1)}, {L_CNT}\nv_mov_b32 {v(V_FC)}, 1\ns_lshl_b32 {s(S_T0)}, {s(S_WAVE)}, 2\ns_add_u32 {s(S_T0)}, {s(S_T0)}, {L_CNT + W_FREE}\nv_mov_b32 {v(V_FL+2)}, {s(S_T0)}")
    a.c("vcc != 0 marks a two-block tile")
    a(f"s_cmp_eq_u32 {s(S_NBLK)}, 2\ns_cselect_b64 vcc, -1, 0")
    if opt("SPF", 0):
        spf(a, R_K, S_XO, [r*F*2 + h*128 for r in range(7, 16) for h in range(2)])
    stamp(a, 1)
    a("s_waitcnt vmcnt(0)")
    a(f"ds_write_b32 {v(V_FL+2)}, {v(V_FC)} offset:{W_C0 - W_FREE}")
    lds_min_wait(a, V_LW, W_C0, 4, 1, 196)
    stamp(a, 2)
    for l in g1_reads(F0, 0, ['x', 0, 1, 2]):
        a(l)
    a("s_waitcnt lgkmcnt(0)")
    a("g1_loop:")
    a(f"s_add_u32 {s(S_SLOT)}, {s(S_SLOT)}, {SLOT}\ns_cmp_eq_u32 {s(S_SLOT)}, {NSLOT*SLOT}\ns_cselect_b32 {s(S_SLOT)}, 0, {s(S_SLOT)}")
    a(f"s_add_u32 {s(S_IT)}, {s(S_IT)}, 1\ns_and_b32 {s(S_T2)}, {s(S_IT)}, 7")
    g1_step_a(a)
    it_issue(a)
    a("s_waitcnt lgkmcnt(0)")
    it_take(a, 0)
    g1_step_b(a)
    it_issue(a)
    a("s_waitcnt lgkmcnt(0)")
    it_take(a, 16)
    a(f"s_cmp_lt_u32 {s(S_IT)}, 8")
    a("s_cbranch_scc1 g1_loop")
    stamp(a, 3)
    lds_min_wait(a, V_LW, W_GATH, 1, 2, V_FL)
    stamp(a, 4)


def wd_dma(i, rings=1):
    sl = i % NRW
    ops = []
    n = 4 * rings
    for q in range(n):
        pre = f"s_lshl_b32 {s(S_T3)}, {s(S_DK)}, 15\ns_add_u32 {s(S_T3)}, {s(S_T3)}, {s(S_DO)}\n" if q == 0 else ""
        inc = 8192 if q != 4 else 2*NSTEP*32768 - 3*8192
        mid = "s_nop 0" if q == 0 else f"s_add_u32 {s(S_T3)}, {s(S_T3)}, {inc}"
        post = f"\ns_add_u32 {s(S_DK)}, {s(S_DK)}, 1\ns_cmp_eq_u32 {s(S_DK)}, 11\ns_cselect_b32 {s(S_DK)}, 0, {s(S_DK)}" if q == n - 1 else ""
        m0 = f"{s(S_RB if q >> 2 else S_RA)}, {sl*4096 + (q&3)*1024}" if sl < 2 else f"{s(S_KC)}, {(sl-2)*16384 + (q&3)*1024 + (q>>2)*8192}"
        ops.append(pre + f"s_add_u32 m0, {m0}\n{mid}\n"
                   f"buffer_load_dwordx4 {v(G_WD)}, {s(R_WD,4)}, {s(S_T3)} offen lds" + post)
    return ops


def h_loads(i):
    hb = G_H + (i % NHB) * 16
    pre = (f"s_lshl_b32 {s(S_T1)}, {s(S_HK)}, 11\ns_add_u32 {s(S_T1)}, {s(S_T1)}, {s(S_HO)}\n"
           f"s_cmp_eq_u32 {s(S_HK)}, {s(S_KEND)}\ns_cselect_b32 {s(S_T1)}, {OOB:#x}, {s(S_T1)}\n")
    post = f"\ns_add_u32 {s(S_HK)}, {s(S_HK)}, 1\ns_cmp_eq_u32 {s(S_HK)}, 11\ns_cselect_b32 {s(S_HK)}, 0, {s(S_HK)}"
    ld = lambda r, off: f"buffer_load_dwordx4 {v(r,4)}, {v(G_L16)}, {s(R_WS,4)}, {s(S_T1)} offen offset:{off} sc1"
    return [pre + ld(hb, 0), ld(hb+4, 1024), f"s_add_u32 {s(S_T1)}, {s(S_T1)}, {NU*1024}\n" + ld(hb+8, 0), ld(hb+12, 1024) + post]


def g1_epilogue(a):
    VST, VCS, T = 112, 144, 168
    S_H0, S_H1 = S_XO, S_WO
    a.c("row constants (m,k1,k2,d2) and column sums from LDS")
    a(f"v_and_b32 v10, 15, v0\nv_lshlrev_b32 v10, 4, v10\ns_lshl_b32 {s(S_T0)}, {s(S_SH)}, 10\ns_add_u32 {s(S_T0)}, {s(S_T0)}, {L_ST}\nv_add_u32 v10, {s(S_T0)}, v10")
    a(f"s_mul_i32 {s(S_T1)}, {s(S_UH)}, {s(S_NBLK)}\ns_lshl_b32 {s(S_T0)}, {s(S_T1)}, 6\ns_add_u32 {s(S_T0)}, {s(S_T0)}, {L_CS}")
    a(f"v_and_b32 v11, 48, v0\nv_add_u32 v11, {s(S_T0)}, v11")
    for sb in range(4):
        a(f"ds_read_b128 {v(T+4*sb,4)}, v10 offset:{sb*256}")
    for u in range(3):
        for mat in range(2):
            a(f"ds_read_b128 {v(VCS+4*(u*2+mat),4)}, v11 offset:{mat*512+u*64}")
    a(f"ds_read_b32 v1, {v(V_LW)} offset:{W_NON}")
    a.c("HF offset = ((4*mi + 2*sh + pp)*86 + 2*fb0 + uu)*1024 + lane*16")
    a(f"s_lshl_b32 {s(S_T0)}, {s(S_MI)}, 1\ns_add_u32 {s(S_T0)}, {s(S_T0)}, {s(S_SH)}\ns_mul_i32 {s(S_T0)}, {s(S_T0)}, {2*NU}")
    a(f"s_lshl_b32 {s(S_T2)}, {s(S_FB0)}, 1\ns_add_u32 {s(S_T0)}, {s(S_T0)}, {s(S_T2)}\ns_add_u32 {s(S_T0)}, {s(S_T0)}, {s(S_T1)}\ns_lshl_b32 {s(S_H0)}, {s(S_T0)}, 10")
    a(f"s_add_u32 {s(S_H1)}, {s(S_H0)}, {NU*1024}")
    a(f"v_mov_b32 v13, 1\ns_lshl_b32 {s(S_T0)}, {s(S_SH)}, 2\nv_add_u32 v15, {s(S_T0)}, {v(V_LW)}")
    a("s_waitcnt lgkmcnt(7)")
    for i in range(16):
        a(f"v_pk_mov_b32 {v(VST+2*i,2)}, {v(T+(i&~1),2)}, {v(T+(i&~1),2)} op_sel:[{i&1},{i&1}]" if opt("PKMOV", 0) else f"v_mov_b32 {v(VST+2*i)}, {v(T+i)}\nv_mov_b32 {v(VST+2*i+1)}, {v(T+i)}")
    a("s_waitcnt lgkmcnt(0)")
    a(f"v_readfirstlane_b32 {s(S_NON)}, v1")
    lab, lab2 = a.label("ep_two"), a.label("ep_done")

    def group(u, pp):
        out = []
        o = T + 32 + 4 * pp
        pairs = [(2*pp + (q >> 1), q & 1, T + 8*q) for q in range(4)]
        def each(f):
            for sb, h, t in pairs:
                g, up, st = acc(u, 0, sb) + 2*h, acc(u, 1, sb) + 2*h, VST + 8*sb
                cg, cu = VCS + 4*(u*2) + 2*h, VCS + 4*(u*2+1) + 2*h
                out.append(f(g, up, st, cg, cu, t))
        each(lambda g, up, st, cg, cu, t: f"v_pk_fma_f32 {v(g,2)}, {v(cg,2)}, {v(st,2)}, {v(g,2)} neg_lo:[0,1,0] neg_hi:[0,1,0]")
        each(lambda g, up, st, cg, cu, t: f"v_pk_mul_f32 {v(t,2)}, {v(g,2)}, {v(g,2)}")
        each(lambda g, up, st, cg, cu, t: f"v_pk_fma_f32 {v(t,2)}, {v(t,2)}, {v(st+4,2)}, {v(st+2,2)}")
        each(lambda g, up, st, cg, cu, t: f"v_pk_mul_f32 {v(t,2)}, {v(t,2)}, {v(g,2)}")
        each(lambda g, up, st, cg, cu, t: f"v_exp_f32 {v(t)}, {v(t)}\nv_exp_f32 {v(t+1)}, {v(t+1)}")
        each(lambda g, up, st, cg, cu, t: f"v_pk_fma_f32 {v(up,2)}, {v(cu,2)}, {v(st,2)}, {v(up,2)} neg_lo:[0,1,0] neg_hi:[0,1,0]")
        each(lambda g, up, st, cg, cu, t: f"v_pk_fma_f32 {v(t,2)}, {v(t,2)}, {v(st+6,2)}, {v(st+6,2)}")
        each(lambda g, up, st, cg, cu, t: f"v_rcp_f32 {v(t)}, {v(t)}\nv_rcp_f32 {v(t+1)}, {v(t+1)}")
        each(lambda g, up, st, cg, cu, t: f"v_pk_mul_f32 {v(g,2)}, {v(g,2)}, {v(up,2)}")
        each(lambda g, up, st, cg, cu, t: f"v_pk_mul_f32 {v(t,2)}, {v(t,2)}, {v(g,2)}")
        for q, (sb, h, t) in enumerate(pairs):
            out.append(f"v_cvt_pk_bf16_f32 {v(o+q)}, {v(t)}, {v(t+1)}")
        out.append(f"buffer_store_dwordx4 {v(o,4)}, {v(G_L16)}, {s(R_WS,4)}, {s(S_H1 if pp else S_H0)} offen offset:{u*1024} sc1")
        return out

    def stage_flag(n):
        ok = a.label("wd_ok")
        a(f"s_waitcnt lgkmcnt(0)\nv_readfirstlane_b32 {s(S_T0)}, v14\ns_nop 0\ns_cmp_ge_u32 {s(S_T0)}, {n}\ns_cbranch_scc1 {ok}")
        lds_min_wait(a, 15, W_WD, 1, n, 14)
        a(f"{ok}:")

    rd_flag = f"ds_read_b32 v14, v15 offset:{W_WD}"
    a.c("as a unit's accumulators retire they take two Wd steps; the freed ring slots are refilled")
    for l in group(0, 0) + [rd_flag] + group(0, 1):
        a(l)
    stage_flag(1)
    for l in interleave(group(1, 0), g2_tr(0) + g2_tr(1), 0, 2):
        a(l)
    a(rd_flag)
    for l in group(1, 1):
        a(l)
    a(f"s_cbranch_vccnz {lab}")
    for l in group(2, 0) + [rd_flag] + group(2, 1):
        a(l)
    a(f"{lab}:")
    a.c("release the conv waves")
    if not opt("CEARLY", 0):
        a("s_mov_b64 exec, 1\nds_add_u32 v12, v13\ns_mov_b64 exec, -1")
    stamp(a, 5)
    a.c("publish: F3[(2mi + sh)*32 + ni*2 + uh]")
    a(f"s_lshl_b32 {s(S_T0)}, {s(S_MI)}, 1\ns_add_u32 {s(S_T0)}, {s(S_T0)}, {s(S_SH)}\ns_lshl_b32 {s(S_T0)}, {s(S_T0)}, 4\ns_add_u32 {s(S_T0)}, {s(S_T0)}, {s(S_NI)}")
    a(f"s_lshl_b32 {s(S_T0)}, {s(S_T0)}, 1\ns_add_u32 {s(S_T0)}, {s(S_T0)}, {s(S_UH)}\ns_lshl_b32 {s(S_T0)}, {s(S_T0)}, 7\ns_add_u32 {s(S_T2)}, {s(S_T0)}, {WS_F3:#x}")
    a("s_waitcnt lgkmcnt(0)")
    for l in wd_dma(7) + wd_dma(8):
        a(l)
    a("s_waitcnt vmcnt(8)")
    flag_store(a, S_T2, 10, 11)
    stamp(a, 6)
    stage_flag(2)
    for l in g2_tr(2) + g2_tr(3):
        a(l)
    a("s_waitcnt lgkmcnt(0)")
    for l in wd_dma(9) + wd_dma(10):
        a(l)


def g2_tr(i):
    wf = G_WF + (i % NWF) * 16
    sl = i % NRW
    base, off = (G_TR0, sl*4096) if sl < 2 else (G_TR5, 0) if sl == 6 else (G_TR, (sl-2)*16384)
    return [f"ds_read_b64_tr_b16 {v(wf+4*db+2*t,2)}, {v(base+db)} offset:{off + t*2048}" for db in range(4) for t in range(2)]


def g2_swaps(i, p):
    hb = G_H + (i % NHB) * 16
    return [f"v_swap_b32 {v(hb+8*p+2+k)}, {v(hb+8*p+4+k)}" for k in range(2)]


def g2_main(a):
    a(f"s_setprio {opt('PRG', 2)}")
    poll(a, G_FL, 10)
    stamp(a, 7)
    q = VQ(a)
    def hq(i):
        q.add(("h", i, 0), 2); q.add(("h", i, 1), 2)
    for i in range(NHB - 1):
        for op in h_loads(i):
            a(op)
        hq(i)
    lds_min_wait(a, 15, W_WD, 1, 3, 14)
    if opt("G2ST", 0): stamp(a, 1)
    q.wait(("h", 0, 0))
    if opt("G2ST", 0): stamp(a, 2)
    for l in g2_swaps(0, 0):
        a(l)
    a("s_nop 1")
    for i in range(NSTEP):
        if opt("G2ST", 0) and i in (2, 4, 6, 8):
            stamp(a, 2 + i // 2)
        if i == opt("HIS", 3):
            lds_inc(a, V_LW, 13, W_HI)
        wf, hb = G_WF + (i % NWF) * 16, G_H + (i % NHB) * 16
        ld = h_loads(i + NHB - 1) if i + NHB - 1 < NSTEP else []
        tr = g2_tr(i + 2) if NWF <= i + 2 < NSTEP else []
        n = 0
        for p in range(2):
            for db in range(4):
                for sb in (2*p, 2*p + 1):
                    c = G_ACC + (db * 4 + sb) * 4
                    a(f"v_mfma_f32_16x16x32_bf16 {v(c,4)}, {v(wf+4*db,4)}, {v(hb+4*sb,4)}, {v(c,4) if i else 0}")
                    n += 1
                    if n == 4:
                        q.wait(("h", i, 1))
                        for l in g2_swaps(i, 1):
                            a(l)
                    if n in (1, 5, 8, 11) and ld:
                        a(ld.pop(0))
                        q.add(("h", i + NHB - 1, 0 if len(ld) >= 2 else 1), 1)
                    if 5 <= n <= 12 and tr:
                        a(tr.pop(0))
                    if n == 13 and i + 1 < NSTEP:
                        q.wait(("h", i + 1, 0))
                        for l in g2_swaps(i + 1, 0):
                            a(l)
                        if i + 1 >= NWF:
                            a(f"s_waitcnt lgkmcnt({8 if i + 2 < NSTEP else 0})")
    stamp(a, 8)
    a.c("partial tile -> own ring slots 1..4: sb*16384 + w*4096 + s16*256 + ((4db + g) ^ (s16&7))*16")
    a(f"v_and_b32 v8, 15, v0\nv_lshrrev_b32 v9, 4, v0\nv_and_b32 v10, 7, v0\nv_xor_b32 v9, v9, v10\nv_lshlrev_b32 v9, 4, v9\nv_lshl_add_u32 v8, v8, 8, v9\nv_add_u32 v8, {s(S_KC)}, v8\nv_xor_b32 v9, 64, v8")
    a("s_nop 0")
    for db in range(4):
        for sb in range(4):
            a(f"ds_write_b128 {'v9' if db & 1 else 'v8'}, {v(G_ACC+(db*4+sb)*4,4)} offset:{sb*16384 + (db>>1)*128}")
    a("s_waitcnt lgkmcnt(0)")
    stamp(a, 9)
    a("s_barrier")


VB_X2 = 18


def dma_chunk(a):
    a(f"s_add_u32 {s(S_T1)}, {s(S_UH)}, {s(S_IT)}\ns_and_b32 {s(S_T1)}, {s(S_T1)}, 7")
    a(f"s_lshl_b32 {s(S_T0)}, {s(S_T1)}, 7\ns_add_u32 {s(S_T0)}, {s(S_T0)}, {s(S_XO)}")
    a(f"s_mul_i32 {s(S_T1)}, {s(S_T1)}, {64*F*2}\ns_add_u32 {s(S_HO)}, {s(S_WO)}, {s(S_T1)}\ns_add_u32 {s(S_DO)}, {s(S_WO2)}, {s(S_T1)}")
    for i in range(16):
        a(f"s_add_u32 m0, {s(S_SLOT)}, {i*1024}")
        a(f"s_add_u32 {s(S_T0)}, {s(S_T0)}, 8192" if i else "s_nop 0")
        a(f"buffer_load_dwordx4 {v(VB_X2 if i & 1 else VB_X)}, {s(R_X,4)}, {s(S_T0)} offen lds")
    for k4 in range(4):
        if k4:
            a(f"s_add_u32 {s(S_HO)}, {s(S_HO)}, {16*F*2}\ns_add_u32 {s(S_DO)}, {s(S_DO)}, {16*F*2}")
        for blk in range(3):
            for mat in range(2):
                a(f"s_add_u32 m0, {s(S_SLOT)}, {16384 + (mat*3+blk)*4096 + k4*1024 - 64*blk}")
                a("s_nop 0")
                a(f"buffer_load_dwordx4 {v(VB_W)}, {s(R_WU if mat else R_WG,4)}, {s(S_DO if blk == 2 else S_HO)} offen offset:{64*blk} lds")


GG = 112


def loader(a):
    a(f"s_setprio {opt('PRL', 2)}")
    a.c("loader w streams chunks 1+w, 3+w, ..")
    a(f"s_lshl_b32 {s(S_XO)}, {s(S_MI)}, 17\ns_lshl_b32 {s(S_WO)}, {s(S_FB0)}, 6")
    a(f"s_cmp_eq_u32 {s(S_NBLK)}, 3\ns_cselect_b32 {s(S_WO2)}, {s(S_WO)}, {OOB:#x}")
    a(f"s_lshl_b32 {s(S_T0)}, {s(S_WB)}, 6\nv_xor_b32 {v(VB_X)}, {s(S_T0)}, {v(VB_X)}\nv_xor_b32 {v(VB_X2)}, 64, {v(VB_X)}")
    a(f"s_add_u32 {s(S_IT)}, {s(S_WB)}, 1\ns_mul_i32 {s(S_SLOT)}, {s(S_IT)}, {SLOT}\ns_mov_b32 {s(S_SH)}, {s(S_WB)}")
    a(f"s_lshl_b32 {s(S_T0)}, {s(S_WB)}, 2\ns_add_u32 {s(S_T0)}, {s(S_T0)}, {L_CNT + W_FULL}\nv_mov_b32 v10, {s(S_T0)}")
    lds_min_wait(a, C_CNT, W_ISS, 1, s(S_WB), 20)
    a("ld_loop:")
    dma_chunk(a)
    a(f"v_mov_b32 v16, {s(S_IT)}")
    a(f"s_mov_b64 exec, 1\nds_max_u32 {v(C_CNT)}, v16 offset:{W_ISS}\ns_mov_b64 exec, -1")
    if ITST:
        it_issue(a)
        a("s_waitcnt lgkmcnt(0)")
        it_take(a, 0)
    a(f"s_sub_u32 {s(S_SLOT)}, {s(S_SLOT)}, {SLOT}\ns_cselect_b32 {s(S_SLOT)}, {2*SLOT}, {s(S_SLOT)}")
    a(f"s_cmp_ge_u32 {s(S_IT)}, 6\ns_cbranch_scc1 ld_done")
    a("s_waitcnt vmcnt(0)")
    a("ds_write_b32 v10, v16")
    if ITST:
        it_issue(a)
        a("s_waitcnt lgkmcnt(0)")
        it_take(a, 16)
    lds_min_wait(a, C_CNT, W_FREE, 4, s(S_IT), 20)
    if ITST:
        it_issue(a)
        a("s_waitcnt lgkmcnt(0)")
        it_take(a, 48)
    a(f"s_add_u32 {s(S_IT)}, {s(S_IT)}, 2")
    a("s_branch ld_loop")
    a("ld_done:")
    lstamp(a, 1)
    wd_setup(a, 0)
    a(f"s_lshl_b32 {s(S_T0)}, {s(S_WB)}, 2\nv_add_u32 v11, {s(S_T0)}, {v(C_CNT)}\nv_mov_b32 v17, 2")
    lab = a.label("ld_last")
    if opt("WDWAIT7", 1):
        a(f"s_cmp_eq_u32 {s(S_IT)}, 7\ns_cbranch_scc1 {lab}")
        a("s_waitcnt vmcnt(0)")
        a("ds_write_b32 v10, v16")
        lds_min_wait(a, C_CNT, W_ISS, 1, 7, 20)
        a(f"{lab}:")
    lds_min_wait(a, C_CNT, W_HP, 1, 2, 20)
    for op in wd_dma(0, 2):
        a(op)
    a("s_waitcnt vmcnt(8)")
    a("ds_write_b32 v10, v16")
    for op in wd_dma(1, 2):
        a(op)
    lstamp(a, 2)
    lds_min_wait(a, C_CNT, W_FREE, 4, 7, 20)
    for i in (2, 3):
        for op in wd_dma(i, 2):
            a(op)
    a("s_waitcnt vmcnt(16)")
    a(f"ds_write_b32 v11, {v(C_ONE)} offset:{W_WD}")
    lstamp(a, 3)
    lds_min_wait(a, C_CNT, W_FREE, 4, 8, 20)
    TH = opt("WDTH", 8)
    n = 0
    for i in (4, 5, 6):
        for op in wd_dma(i, 2):
            a(op)
            n += 1
            if n % 4 == 0 and (TH or n == 8):
                a(f"s_waitcnt vmcnt({min(TH, n) if TH else 8})")
            if n == 8:
                a(f"ds_write_b32 v11, v17 offset:{W_WD}")
    a(f"ds_read_b32 v1, {v(C_CNT)} offset:{W_NON}")
    final_loads(a)
    a("s_waitcnt lgkmcnt(0)")
    a(f"v_readfirstlane_b32 {s(S_NON)}, v1")


VS, VKV, VSK = 144, 24, 64
ONE = 192


def round_bf16(a, r):
    a(f"v_cvt_pk_bf16_f32 {v(r)}, {v(r)}, {v(r)}\nv_lshlrev_b32 {v(r)}, 16, {v(r)}")


def stats_loads(a):
    a(f"s_lshl_b32 {s(S_T0)}, {s(S_TI)}, 1\ns_add_u32 {s(S_T0)}, {s(S_T0)}, {s(S_SH)}\ns_lshl_b32 {s(S_T0)}, {s(S_T0)}, 12")
    a("v_bfe_u32 v5, v0, 2, 2\nv_lshlrev_b32 v5, 10, v5\nv_and_b32 v6, 3, v0\nv_lshl_add_u32 v5, v6, 4, v5\nv_lshrrev_b32 v6, 4, v0\nv_lshl_add_u32 v5, v6, 6, v5")
    for r in range(4):
        a(f"buffer_load_dwordx4 {v(VS+4*r,4)}, v5, {s(R_X,4)}, {s(S_T0)} offen offset:{r*256}")


def stats(a):
    G, O, R = 72, 76, 80
    for r in range(4):
        a(f"v_mfma_f32_16x16x32_bf16 {v(G,4)}, {v(VS+4*r,4)}, {v(VS+4*r,4)}, {v(G,4) if r else 0}")
        a(f"v_mfma_f32_16x16x32_bf16 {v(O,4)}, {v(ONE,4)}, {v(VS+4*r,4)}, {v(O,4) if r else 0}")
    a.c("diagonal element of lane (n, g = n>>2) is register n&3")
    a(f"v_and_b32 v6, 3, v0\nv_cmp_eq_u32 vcc, 1, v6\nv_cmp_eq_u32 {s(S_EX,2)}, 2, v6\nv_cmp_eq_u32 {s(S_XO,2)}, 3, v6")
    a(f"s_lshl_b32 {s(S_T0)}, {s(S_TI)}, 1\ns_add_u32 {s(S_T0)}, {s(S_T0)}, {s(S_SH)}\ns_lshl_b32 {s(S_T0)}, {s(S_T0)}, 6\ns_add_u32 {s(S_T0)}, {s(S_T0)}, {WS_ST:#x}")
    a("v_and_b32 v5, 48, v0\ns_nop 0")
    a(f"v_cndmask_b32 {v(G)}, {v(G)}, {v(G+1)}, vcc\nv_cndmask_b32 {v(G)}, {v(G)}, {v(G+2)}, {s(S_EX,2)}\nv_cndmask_b32 {v(G)}, {v(G)}, {v(G+3)}, {s(S_XO,2)}")
    for qp in ("[1,0,3,2]", "[2,3,0,1]"):
        a("s_nop 0")
        a(f"v_add_f32_dpp {v(O)}, {v(O)}, {v(O)} quad_perm:{qp} row_mask:0xf bank_mask:0xf")
        a(f"v_add_f32_dpp {v(G)}, {v(G)}, {v(G)} quad_perm:{qp} row_mask:0xf bank_mask:0xf")
    M, K1, K2, I2 = R, R + 1, R + 2, R + 3
    a(f"v_mul_f32 {v(M)}, {f32bits(1/512):#x}, {v(O)}\nv_mul_f32 {v(K2)}, {f32bits(1/512):#x}, {v(G)}")
    a(f"v_fma_f32 {v(K2)}, -{v(M)}, {v(M)}, {v(K2)}\nv_max_f32 {v(K2)}, 0, {v(K2)}")
    round_bf16(a, M)
    round_bf16(a, K2)
    a(f"v_add_f32 {v(K2)}, {f32bits(1e-5):#x}, {v(K2)}")
    round_bf16(a, K2)
    a(f"v_sqrt_f32 {v(K2)}, {v(K2)}\ns_nop 0")
    round_bf16(a, K2)
    a(f"v_rcp_f32 {v(K1)}, {v(K2)}\nv_mul_f32 {v(I2)}, {v(K2)}, {v(K2)}")
    a(f"v_mul_f32 {v(K2)}, {v(K1)}, {v(K1)}\nv_mul_f32 {v(K2)}, {v(K2)}, {v(K1)}")
    a(f"v_mul_f32 {v(K2)}, {f32bits(C2):#x}, {v(K2)}\nv_mul_f32 {v(K1)}, {f32bits(C1):#x}, {v(K1)}")
    a.c("row g is complete in lane 20g")
    a(f"s_mov_b32 {s(S_EX)}, 0x00100001\ns_mov_b32 {s(S_EX+1)}, 0x10000100\ns_mov_b64 exec, {s(S_EX,2)}")
    a(f"buffer_store_dwordx4 {v(R,4)}, v5, {s(R_WS,4)}, {s(S_T0)} offen sc1")
    a("s_mov_b64 exec, -1")


L_VST = 155648
NT = "nt " if opt("NT", 1) else ""
NTT = " nt" if opt("NTT", 0) else ""


def kv_dma(a):
    a("v_lshrrev_b32 v5, 3, v0\nv_lshlrev_b32 v5, 10, v5\nv_and_b32 v6, 7, v0\nv_lshl_add_u32 v5, v6, 4, v5")
    a(f"v_add_u32 v69, {s(S_DO)}, v5")
    a.c("rows above the start of the sequence are out of range and read as zero")
    a("v_subrev_u32 v7, 0xc00, v69\nv_cmp_gt_u32 vcc, 0xc00, v69\nv_mov_b32 v68, 0x7ff00000\ns_nop 1\nv_cndmask_b32 v7, v7, v68, vcc")
    a(f"s_mul_i32 {s(S_T0)}, {s(S_SH)}, {64*KVT_STR}\ns_add_u32 {s(S_T0)}, {s(S_T0)}, {L_KVT}")
    a(f"s_lshl_b32 {s(S_T2)}, {s(S_SH)}, 12\ns_add_u32 {s(S_T2)}, {s(S_T2)}, {L_VST}")
    for i in range(5):
        a(f"s_add_u32 m0, {s(S_T0)}, {1024*i}\ns_mov_b32 {s(S_T1)}, {max(8192*i - 3072, 0)}")
        a(f"buffer_load_dwordx4 {'v69' if i else 'v7'}, {s(R_K,4)}, {s(S_T1)} offen {NT}lds")
    for i in range(4):
        a(f"s_add_u32 m0, {s(S_T2)}, {1024*i}\ns_mov_b32 {s(S_T1)}, {8192*i}")
        a(f"buffer_load_dwordx4 v69, {s(R_V,4)}, {s(S_T1)} offen {NT}lds")
    a("v_and_b32 v6, 31, v0\nv_lshrrev_b32 v5, 5, v0\nv_lshlrev_b32 v5, 10, v5\nv_lshl_add_u32 v5, v6, 2, v5")
    a(f"v_add_u32 v68, {s(S_T0)}, v5\nv_add_u32 v69, {s(S_T2)}, v5")
    a(f"s_and_b32 {s(S_T1)}, {s(S_TI)}, 7\ns_lshl_b32 {s(S_T1)}, {s(S_T1)}, 9\nv_lshlrev_b32 v6, 4, v6")
    a(f"buffer_load_dwordx4 {v(VSK,4)}, v6, {s(R_SK,4)}, {s(S_T1)} offen")


def kv_reads(a):
    for ps in range(2):
        b = VKV + 19 * ps
        for i in range(11):
            a(f"ds_read_b32 {v(b+i)}, v68 offset:{ps*2048 + i*128}")
        for i in range(8):
            a(f"ds_read_b32 {v(b+11+i)}, v69 offset:{ps*2048 + i*128}")


def touch_x(a, p, vd):
    a(f"s_lshl_b32 {s(S_T0)}, {s(S_MI)}, 2\ns_and_b32 {s(S_T1)}, {s(S_NI)}, 3\ns_add_u32 {s(S_T0)}, {s(S_T0)}, {s(S_T1)}\ns_lshl_b32 {s(S_T0)}, {s(S_T0)}, 15")
    a("v_and_b32 v5, 31, v0\nv_lshrrev_b32 v6, 5, v0\nv_lshlrev_b32 v6, 7, v6\nv_lshl_add_u32 v5, v5, 10, v6")
    for q in p:
        a(f"buffer_load_dword {v(vd)}, v5, {s(R_X,4)}, {s(S_T0)} offen offset:{128*q}{NTT}")


def touch_w(a, p, srds, vd):
    a(f"s_and_b32 {s(S_T0)}, {s(S_MI)}, 7\ns_add_u32 {s(S_T0)}, {s(S_T0)}, {8*p}\ns_mul_i32 {s(S_T0)}, {s(S_T0)}, {8*F*2}\ns_lshl_b32 {s(S_T1)}, {s(S_FB0)}, 6\ns_add_u32 {s(S_T0)}, {s(S_T0)}, {s(S_T1)}")
    a(f"s_add_u32 {s(S_T1)}, {s(S_NBLK)}, 4")
    a(f"v_lshrrev_b32 v5, 4, v0\nv_bfe_u32 v6, v0, 1, 3\nv_lshl_add_u32 v5, v5, 6, v6\nv_mul_u32_u24 v5, {F*2}, v5\nv_and_b32 v6, 1, v0\nv_lshl_add_u32 v5, v6, {s(S_T1)}, v5")
    for r in srds:
        a(f"buffer_load_dword {v(vd)}, v5, {s(r,4)}, {s(S_T0)} offen{NTT}")
        if opt("TOUCH", 0) == 2:
            a(f"s_add_u32 {s(S_T0)}, {s(S_T0)}, {256*F*2}")
            a(f"buffer_load_dword {v(vd)}, v5, {s(r,4)}, {s(S_T0)} offen{NTT}")


KU, VU, KW, KO, KT = 72, 94, 110, 120, 128


def kv_taps(a):
    for j in range(4):
        for ch in range(2):
            src = VSK + 2*ch + (j >> 1)
            a(f"v_and_b32 {v(KW+2*j+ch)}, {s(S_C)}, {v(src)}" if j & 1 else f"v_lshlrev_b32 {v(KW+2*j+ch)}, 16, {v(src)}")
    a.c("KVT row = 2*(l&31) + ch, 16-B piece = 3 - (2*pass + l>>5)")
    a(f"v_and_b32 v70, 31, v0\nv_mul_u32_u24 v70, {2*KVT_STR}, v70\nv_lshrrev_b32 v5, 5, v0\nv_lshlrev_b32 v5, 4, v5\nv_sub_u32 v70, v70, v5")
    a(f"s_mul_i32 {s(S_T0)}, {s(S_SH)}, {64*KVT_STR}\ns_add_u32 {s(S_T0)}, {s(S_T0)}, {L_KVT + 16}\nv_add_u32 v70, {s(S_T0)}, v70")


def kv_compute(ps):
    b = VKV + 19 * ps
    o = []
    for i in range(11):
        o += [f"v_lshlrev_b32 {v(KU+2*i)}, 16, {v(b+i)}", f"v_and_b32 {v(KU+2*i+1)}, {s(S_C)}, {v(b+i)}"]
    for e in range(16):
        o.append(f"v_mul_f32 {v(KT+e)}, {v(KU+e)}, {v(KW+6+(e&1))}")
    for j in (2, 1, 0):
        for e in range(16):
            o.append(f"v_fmac_f32 {v(KT+e)}, {v(KU+e+2*(3-j))}, {v(KW+2*j+(e&1))}")
    for i in range(8):
        o += [f"v_lshlrev_b32 {v(VU+2*i)}, 16, {v(b+11+i)}", f"v_and_b32 {v(VU+2*i+1)}, {s(S_C)}, {v(b+11+i)}"]
    for e in range(16):
        o.append(f"v_mul_f32 {v(KT+e)}, {v(KT+e)}, {v(VU+e)}")
    for ch in range(2):
        for i in range(4):
            o.append(f"v_cvt_pk_bf16_f32 {v(KO+4*ch+i)}, {v(KT+2*(7-2*i)+ch)}, {v(KT+2*(6-2*i)+ch)}")
    o += [f"ds_write_b128 v70, {v(KO,4)} offset:{32*(1-ps)}", f"ds_write_b128 v70, {v(KO+4,4)} offset:{32*(1-ps) + KVT_STR}"]
    return o


def kv_store(a):
    a(f"v_lshrrev_b32 v5, 2, v0\nv_and_b32 v6, 3, v0\nv_lshlrev_b32 v6, 4, v6\nv_mul_u32_u24 v7, {KVT_STR}, v5\nv_add_u32 v7, v7, v6")
    a(f"s_mul_i32 {s(S_T0)}, {s(S_SH)}, {64*KVT_STR}\ns_add_u32 {s(S_T0)}, {s(S_T0)}, {L_KVT}\nv_add_u32 v7, {s(S_T0)}, v7")
    a("s_waitcnt lgkmcnt(0)")
    for i in range(4):
        a(f"ds_read_b128 {v(24+4*i,4)}, v7 offset:{16*i*KVT_STR}")
    a("v_lshl_add_u32 v5, v5, 12, v6")
    a(f"s_and_b32 {s(S_T0)}, {s(S_TI)}, 7\ns_lshl_b32 {s(S_T0)}, {s(S_T0)}, 18")
    a(f"s_lshr_b32 {s(S_T1)}, {s(S_TI)}, 3\ns_lshl_b32 {s(S_T1)}, {s(S_T1)}, 1\ns_add_u32 {s(S_T1)}, {s(S_T1)}, {s(S_SH)}\ns_lshl_b32 {s(S_T1)}, {s(S_T1)}, 6")
    a(f"s_sub_u32 {s(S_T0)}, {s(S_T0)}, {s(S_T1)}\ns_add_u32 {s(S_T0)}, {s(S_T0)}, {WS_KVR + 4096 - 64:#x}")
    for i in range(4):
        a(f"s_waitcnt lgkmcnt({3-i})")
        a(f"buffer_store_dwordx4 {v(24+4*i,4)}, v5, {s(R_WS,4)}, {s(S_T0)} offen sc1")
        a(f"s_add_u32 {s(S_T0)}, {s(S_T0)}, 65536")


def cs_loads(a):
    a(f"s_mul_i32 {s(S_T0)}, {s(S_MI)}, {32*F*2}\ns_lshl_b32 {s(S_T1)}, {s(S_FB0)}, 6\ns_add_u32 {s(S_T0)}, {s(S_T0)}, {s(S_T1)}\ns_add_u32 {s(S_T1)}, {s(S_T0)}, {16*F*2}")
    a(f"s_mul_i32 {s(S_M0)}, {s(S_SH)}, 6144\ns_add_u32 {s(S_M0)}, {s(S_M0)}, {L_CSS}")
    l1, l2 = a.label("cs"), a.label("cs")
    a(f"s_cmp_lg_u32 {s(S_SH)}, 0\ns_cbranch_scc1 {l1}")
    for r in (R_WG, R_WU):
        for blk in range(3):
            for k2 in range(2):
                a(f"s_add_u32 m0, {s(S_M0)}, {blk*2048 + k2*1024 - 64*blk}\ns_nop 0")
                a(f"buffer_load_dwordx4 {v(VB_W)}, {s(r,4)}, {s(S_T1 if k2 else S_T0)} offen offset:{64*blk} lds")
        a(f"s_branch {l2}\n{l1}:" if r == R_WG else f"{l2}:")


def colsum(a):
    W, O = 144, 168
    a("v_lshrrev_b32 v5, 4, v0\nv_lshlrev_b32 v6, 9, v5\nv_bfe_u32 v7, v0, 2, 2\nv_lshl_add_u32 v6, v7, 6, v6\nv_and_b32 v7, 3, v0\nv_lshl_add_u32 v6, v7, 3, v6")
    a(f"v_and_b32 v7, 1, v5\nv_lshl_add_u32 v6, v7, 5, v6\nv_add_u32 v6, {s(S_M0)}, v6\nv_xor_b32 v7, 32, v6")
    for u in range(6):
        for tt in range(2):
            a(f"ds_read_b64_tr_b16 {v(W+4*u+2*tt,2)}, {'v7' if u & 1 else 'v6'} offset:{(u>>1)*2048 + tt*256}")
    a.c("CSP offset = ((ni*2 + hw)*16 + mi)*384 + u*64 + g*16")
    a(f"s_lshl_b32 {s(S_T0)}, {s(S_NI)}, 1\ns_add_u32 {s(S_T0)}, {s(S_T0)}, {s(S_SH)}\ns_lshl_b32 {s(S_T0)}, {s(S_T0)}, 4\ns_add_u32 {s(S_T0)}, {s(S_T0)}, {s(S_MI)}")
    a(f"s_mul_i32 {s(S_T0)}, {s(S_T0)}, 384\ns_add_u32 {s(S_T0)}, {s(S_T0)}, {WS_CSP:#x}")
    a("v_and_b32 v5, 48, v0")
    a("s_waitcnt lgkmcnt(0)")
    for u in range(6):
        a(f"v_mfma_f32_16x16x32_bf16 {v(O+4*u,4)}, {v(W+4*u,4)}, {v(ONE,4)}, 0")
    a(f"s_mov_b32 {s(S_EX)}, 0x00010001\ns_mov_b32 {s(S_EX+1)}, 0x00010001\ns_nop 5\ns_mov_b64 exec, {s(S_EX,2)}")
    for u in range(6):
        a(f"buffer_store_dwordx4 {v(O+4*u,4)}, v5, {s(R_WS,4)}, {s(S_T0)} offen offset:{u*64} sc1")
    a("s_mov_b64 exec, -1")


def hflag(a, base):
    a(f"s_lshl_b32 {s(S_T0)}, {s(S_TI)}, 7\ns_lshl_b32 {s(S_T1)}, {s(S_SH)}, 2\ns_add_u32 {s(S_T0)}, {s(S_T0)}, {s(S_T1)}\ns_add_u32 {s(S_T0)}, {s(S_T0)}, {base:#x}")
    flag_store(a, S_T0, 196, 197)


CG = 144


def cs_gather_issue(a):
    a(f"s_lshl_b32 {s(S_T0)}, {s(S_NI)}, 1\ns_add_u32 {s(S_T0)}, {s(S_T0)}, {s(S_SH)}\ns_mul_i32 {s(S_T0)}, {s(S_T0)}, 6144\ns_add_u32 {s(S_T0)}, {s(S_T0)}, {WS_CSP:#x}")
    a("v_and_b32 v5, 31, v0\nv_lshlrev_b32 v5, 4, v5\nv_lshrrev_b32 v6, 5, v0\nv_mul_u32_u24 v6, 3072, v6\nv_add_u32 v6, v5, v6")
    for i in range(8):
        a(f"buffer_load_dwordx4 {v(CG+4*i,4)}, v6, {s(R_WS,4)}, {s(S_T0)} offen offset:{i*384} sc1")


def cs_gather_finish(a):
    n = 8
    while n > 1:
        n //= 2
        for i in range(4 * n):
            a(f"v_add_f32 {v(CG+i)}, {v(CG+i)}, {v(CG+4*n+i)}")
    for i in range(4):
        a(f"v_mov_b32 {v(CG+4+i)}, {v(CG+i)}")
    a(f"s_lshl_b32 {s(S_T0)}, {s(S_SH)}, 9\ns_add_u32 {s(S_T0)}, {s(S_T0)}, {L_CS}\nv_and_b32 v8, 31, v0\nv_lshlrev_b32 v8, 4, v8\nv_add_u32 v8, {s(S_T0)}, v8")
    for i in range(4):
        a(f"v_permlane32_swap_b32 {v(CG+i)}, {v(CG+4+i)}")
    a("s_nop 0")
    for i in range(4):
        a(f"v_add_f32 {v(CG+i)}, {v(CG+i)}, {v(CG+4+i)}")
    a(f"ds_write_b128 v8, {v(CG,4)}")


def helper(a):
    q = VQ(a)
    a(f"s_sub_u32 {s(S_SH)}, {s(S_WB)}, 2")
    a(f"s_lshl_b32 {s(S_HO)}, {s(S_TI)}, 1\ns_add_u32 {s(S_HO)}, {s(S_HO)}, {s(S_SH)}\ns_lshl_b32 {s(S_HO)}, {s(S_HO)}, 12")
    a.c("k/v tile base: rows 32*(2*(ti>>3) + hw).., channels 64*(ti&7)")
    a(f"s_lshr_b32 {s(S_T0)}, {s(S_TI)}, 3\ns_lshl_b32 {s(S_T0)}, {s(S_T0)}, 1\ns_add_u32 {s(S_T0)}, {s(S_T0)}, {s(S_SH)}\ns_lshl_b32 {s(S_T0)}, {s(S_T0)}, 15")
    a(f"s_and_b32 {s(S_T1)}, {s(S_TI)}, 7\ns_lshl_b32 {s(S_T2)}, {s(S_T1)}, 7\ns_add_u32 {s(S_DO)}, {s(S_T0)}, {s(S_T2)}")
    a(f"s_mul_i32 {s(S_KC)}, {s(S_TI)}, {43*128}\ns_mul_i32 {s(S_T1)}, {s(S_SH)}, {22*128}\ns_add_u32 {s(S_KC)}, {s(S_KC)}, {s(S_T1)}")
    def sc():
        stats_loads(a); q.add("s", 4)
        cs_loads(a); q.add("csd", 6)
    SKV = opt("SKV", 0)
    KVAT = opt("KVAT", 0) or SKV
    def wdt():
        a.c("first touch of Wd lines 43*ti + 22*hw + lane")
        a("v_lshlrev_b32 v11, 7, v0\ns_mov_b64 exec, 0x3fffff")
        a(f"buffer_load_dword v71, v11, {s(R_WD,4)}, {s(S_KC)} offen"); q.add("wd", 1)
        a("s_mov_b64 exec, -1")
    def cold():
        kv_dma(a); q.add("kv", 10)
        if not SKV:
            wdt()
        if SKV != 1:
            conv_h_loads(a); q.add("h", 4)
    epoch_load(a, 1); q.add("e", 1)
    sc()
    if SKV:
        wdt()
        a(f"s_sub_i32 {s(S_KC)}, {s(S_DO)}, 3072\ns_max_i32 {s(S_KC)}, {s(S_KC)}, 0")
        spf(a, R_K, S_KC, [1024*i for i in range(35)])
    if not KVAT:
        cold()
    for i in range(4):
        a(f"v_mov_b32 {v(ONE+i)}, 0x3f803f80")
    a.c("F1 pairs: lanes 0-31 tiles 16mi + (l&15) (row records), lanes 32-63 tiles 16*(l&15) + ni (column sums)")
    a(f"s_lshl_b32 {s(S_T0)}, {s(S_MI)}, 11\nv_and_b32 v9, 15, v0\nv_lshlrev_b32 v8, 7, v9\nv_add_u32 v8, {s(S_T0)}, v8")
    a(f"s_lshl_b32 {s(S_T0)}, {s(S_NI)}, 7\nv_lshlrev_b32 v9, 11, v9\nv_add_u32 v9, {s(S_T0)}, v9\nv_cmp_lt_u32 vcc, 31, v0")
    a(f"s_nop 1\nv_cndmask_b32 v8, v8, v9, vcc\nv_add_u32 v8, {WS_F1:#x}, v8")
    q.wait("e", "s")
    stamp(a, 1)
    epoch_take(a, 1)
    a(f"v_mov_b32 v20, {s(S_NON)}\nds_write_b32 {v(C_CNT)}, v20 offset:{W_NON}")
    stats(a); q.add("st", 1)
    q.wait("csd")
    colsum(a); q.add("st", 6)
    stamp(a, 2)
    if SKV:
        spf(a, R_V, S_DO, [1024*i for i in range(14)])
        q.wait("st")
        hflag(a, WS_F1); q.add("f", 1)
        stamp(a, 3)
        spf(a, R_V, S_DO, [1024*i for i in range(14, 32)])
        a(f"s_and_b32 {s(S_T1)}, {s(S_TI)}, 7\ns_lshl_b32 {s(S_T1)}, {s(S_T1)}, 9")
        spf(a, R_SK, S_T1, [128*i for i in range(4)])
        if SKV == 2:
            spf(a, R_H, S_HO, [128*i for i in range(32)])
        a("s_waitcnt lgkmcnt(0)")
        cold()
    elif KVAT:
        a(f"s_lshr_b32 {s(S_T3)}, s2, 3\ns_and_b32 {s(S_T3)}, {s(S_T3)}, {opt('KVM', 0)}\ns_add_u32 {s(S_T3)}, {s(S_T3)}, {KVAT}")
        lds_min_wait(a, C_CNT, W_ISS, 1, s(S_T3), 20)
        cold()
        q.wait("st")
        hflag(a, WS_F1); q.add("f", 1)
        stamp(a, 3)
    q.wait("kv")
    kv_reads(a)
    kv_taps(a)
    a("s_waitcnt lgkmcnt(0)")
    for l in kv_compute(0):
        a(l)
    if not KVAT:
        q.wait("st")
        hflag(a, WS_F1); q.add("f", 1)
        stamp(a, 3)
    for l in kv_compute(1):
        a(l)
    kv_store(a); q.add("kvst", 4)
    lds_inc(a, C_CNT, C_ONE, W_HP)
    q.wait("kvst")
    hflag(a, WS_F2); q.add("f", 1)
    stamp(a, 4)
    if SKV == 1:
        spf(a, R_H, S_HO, [128*i for i in range(32)])
    lds_min_wait(a, C_CNT, W_ISS, 1, opt("GAT", 7), 20)
    if SKV == 1:
        conv_h_loads(a)
    poll2_issue(a, 8, 198)
    a.c("F2 pairs of tiles 8*(l&31) + (ti>>5)")
    a(f"s_lshr_b32 {s(S_T0)}, {s(S_TI)}, 5\ns_lshl_b32 {s(S_T0)}, {s(S_T0)}, 7\ns_add_u32 {s(S_T0)}, {s(S_T0)}, {WS_F2:#x}")
    a(f"v_and_b32 v16, 31, v0\nv_lshlrev_b32 v16, 10, v16\nv_add_u32 v16, {s(S_T0)}, v16")
    poll2_issue(a, 16, 18)
    a("s_waitcnt vmcnt(1)")
    poll2_check(a, 8, 198)
    a(f"s_lshl_b32 {s(S_T0)}, {s(S_MI)}, 1\ns_add_u32 {s(S_T0)}, {s(S_T0)}, {s(S_SH)}\ns_lshl_b32 {s(S_T0)}, {s(S_T0)}, 10\ns_add_u32 {s(S_T0)}, {s(S_T0)}, {WS_ST:#x}")
    a(f"buffer_load_dwordx4 {v(GG,4)}, v4, {s(R_WS,4)}, {s(S_T0)} offen sc1")
    cs_gather_issue(a)
    a(f"s_lshl_b32 {s(S_T0)}, {s(S_SH)}, 10\ns_add_u32 {s(S_T0)}, {s(S_T0)}, {L_ST}\nv_add_u32 v9, {s(S_T0)}, v4")
    late, join = a.label("u_late"), a.label("u_join")
    def u_loads():
        a(f"s_add_u32 {s(S_T2)}, {s(S_HO)}, {WS_KVR:#x}")
        for i in range(4):
            a(f"buffer_load_dwordx4 {v(128+4*i,4)}, v4, {s(R_WS,4)}, {s(S_T2)} offen offset:{1024*i} sc1")
    def gather_done():
        a(f"ds_write_b128 v9, {v(GG,4)}")
        cs_gather_finish(a)
        lds_inc(a, C_CNT, C_ONE, W_GATH)
        stamp(a, 5)
    a("s_waitcnt vmcnt(9)")
    a(f"v_cmp_ne_u32 vcc, {s(S_NON)}, v18\nv_cmp_ne_u32 {s(S_EX,2)}, {s(S_NON)}, v19\ns_nop 0\ns_or_b64 vcc, vcc, {s(S_EX,2)}\ns_cbranch_scc1 {late}")
    u_loads()
    a("s_waitcnt vmcnt(4)")
    gather_done()
    a(f"s_branch {join}\n{late}:")
    a("s_waitcnt vmcnt(0)")
    gather_done()
    poll2_check(a, 16, 18)
    u_loads()
    a(f"{join}:")
    final_loads(a)
    lds_min_wait(a, C_CNT, W_FREE, 4, 6, 20)
    a.c("the other helper must be done with its transpose scratch before the conv region is written")
    lds_min_wait(a, C_CNT, W_HP, 1, 2, 20)
    conv_h_stage(a)
    a("s_waitcnt vmcnt(2)")
    for i in range(4):
        a(f"ds_write_b128 v10, {v(128+4*i,4)} offset:{4*HSTR + 1024*i}")
    stamp(a, 6)


C_ACC, C_F0, C_F1 = 16, 48, 112
C_AA, C_BA = 2, 3


def bsync_post(a, n=4):
    a(f"s_add_u32 {s(S_CNT)}, {s(S_CNT)}, {n}")
    a("s_mov_b64 exec, 1")
    a(f"ds_add_u32 {v(C_CNT)}, {v(C_ONE)}")
    a("s_mov_b64 exec, -1")


def bsync_wait(a):
    lds_min_wait(a, C_CNT, W_CNT, 1, s(S_CNT), 6)


def bsync(a, n=4):
    bsync_post(a, n)
    bsync_wait(a)


def conv_reads(fr, roff):
    out = []
    for p in range(8):
        out.append(f"ds_read_b128 {v(fr+4*p,4)}, {v(C_AA)} offset:{512*p + roff}")
        out.append(f"ds_read_b64 {v(fr+32+4*p,2)}, {v(C_BA)} offset:{512*(7-p) + roff}")
        out.append(f"ds_read_b64 {v(fr+32+4*p+2,2)}, {v(C_BA)} offset:{512*(7-p) + roff + 8}")
    return out


def conv_mfmas(fr, first):
    out = []
    for tot in range(8):
        for p in range(tot + 1):
            q = tot - p
            out.append((max(p, q), f"v_mfma_f32_16x16x32_bf16 {v(C_ACC+4*tot,4)}, {v(fr+4*p,4)}, {v(fr+32+4*q,4)}, ", C_ACC + 4*tot))
    out.sort(key=lambda t: t[0])
    res, seen = [], set()
    for _, txt, c in out:
        res.append(txt + ("0" if first and c not in seen else v(c, 4)))
        seen.add(c)
    return res


HR = 200


def conv_h_loads(a):
    a(f"s_mul_i32 {s(S_RING)}, {s(S_SH)}, {CH_STR}\ns_add_u32 {s(S_RING)}, {s(S_RING)}, {L_CONV}")
    for h in range(4):
        a(f"buffer_load_dwordx4 {v(HR+6*h+2,4)}, v4, {s(R_H,4)}, {s(S_HO)} offen offset:{1024*h} {NT}")


def conv_h_stage(a):
    a.c("zero pads: 384 B in front of each h copy, 128 B behind u")
    for i in range(4):
        a(f"v_mov_b32 {v(20+i)}, 0")
    a(f"v_add_u32 v10, {s(S_RING)}, v4")
    a("s_mov_b64 exec, 0xffffff")
    for p in range(4):
        a(f"ds_write_b128 v10, {v(20,4)} offset:{p*HSTR}")
    a("s_mov_b64 exec, 0xff")
    a(f"ds_write_b128 v10, {v(20,4)} offset:{4*HSTR + 4096}")
    a("s_mov_b64 exec, -1")
    T = 72
    a.c("the two dwords in front of each lane's piece come from the lane below")
    for h in range(4):
        r = HR + 6 * h
        for i in range(2):
            a(f"v_mov_b32_dpp {v(r+i)}, {v(r-2+i)} wave_ror:1 row_mask:0xf bank_mask:0xf" if h else f"v_mov_b32 {v(r+i)}, 0")
    for h in range(4):
        r = HR + 6 * h
        for i in range(2):
            a(f"v_mov_b32_dpp {v(r+i)}, {v(r+4+i)} wave_shr:1 row_mask:0xf bank_mask:0xf")
    for h in range(4):
        r = HR + 6 * h
        for i in range(4):
            a(f"v_alignbit_b32 {v(T+i)}, {v(r+2+i)}, {v(r+1+i)}, 16")
        for i in range(4):
            a(f"v_mov_b32 {v(T+4+i)}, {v(r+1+i)}")
        for i in range(4):
            a(f"v_alignbit_b32 {v(T+8+i)}, {v(r+1+i)}, {v(r+i)}, 16")
        a(f"ds_write_b128 v10, {v(r+2,4)} offset:{384 + 1024*h}")
        for p in range(1, 4):
            a(f"ds_write_b128 v10, {v(T+4*(p-1),4)} offset:{p*HSTR + 384 + 1024*h}")
        T += 12


def conv_mid(a):
    a("s_waitcnt vmcnt(0)")
    a(f"ds_write_b32 v11, v251 offset:{W_WD}")
    poll2_check(a, 5, 198)
    a(f"s_lshl_b32 {s(S_T0)}, {s(S_MT)}, 2\ns_add_u32 {s(S_T0)}, {s(S_T0)}, {s(S_WB)}\ns_lshl_b32 {s(S_T0)}, {s(S_T0)}, 8\ns_add_u32 {s(S_T0)}, {s(S_T0)}, {WS_ST:#x}")
    a(f"buffer_load_dwordx4 {v(184,4)}, v15, {s(R_WS,4)}, {s(S_T0)} offen sc1")
    a(f"buffer_load_dwordx4 {v(188,4)}, v15, {s(R_WS,4)}, {s(S_T0)} offen offset:128 sc1")


def conv_main(a):
    U, UU, X, O = 48, 56, 112, 144
    for l in conv_reads(C_F0, 0):
        a(l)
    for r in range(4):
        cur, nxt = (C_F0, C_F1) if r % 2 == 0 else (C_F1, C_F0)
        a("s_waitcnt lgkmcnt(0)")
        if r < 3:
            rd = conv_reads(nxt, 64 * (r + 1))
        else:
            rd = [f"ds_read_b32 {v(U+2*b+c)}, v10 offset:{c*CH_STR + 256*(3-b)}" for b in range(4) for c in range(2)]
        for l in interleave(conv_mfmas(cur, r == 0), rd, 0, 1):
            a(l)
        if r == opt("WDR", 0):
            conv_mid(a)
    lstamp(a, 5)
    a(f"s_setprio {opt('PRX', opt('PRC', 3))}")
    bsync(a)
    for t in range(8):
        a(f"ds_write_b128 v8, {v(C_ACC+4*t,4)} offset:{t*1024}")
    bsync_post(a)
    a.c("skip term D*u at rows 512wb + 128b + 2l, +1")
    a(f"s_lshl_b32 s100, {s(S_C+1)}, 16\ns_and_b32 {s(S_C+1)}, {s(S_C+1)}, 0xffff0000")
    for b in range(4):
        for c in range(2):
            u, o = U + 2*b + c, UU + 4*b + 2*c
            a(f"v_and_b32 {v(o)}, {s(S_C)}, {v(u)}\nv_lshlrev_b32 {v(o+1)}, 16, {v(u)}")
    for b in range(4):
        for c in range(2):
            for j in range(2):
                a(f"v_mul_f32 {v(UU+4*b+2*c+j)}, {s(S_C+1) if c else 's100'}, {v(UU+4*b+2*c+j)}")
        a(f"v_mov_b32 {v(O+4*b+1)}, {s(S_NON)}\nv_mov_b32 {v(O+4*b+3)}, {s(S_NON)}")
    bsync_wait(a)
    for b in range(4):
        for w in range(4):
            a(f"ds_read_b64 {v(X+8*b+2*w,2)}, v9 offset:{w*8192 + b*512}")
    a("s_waitcnt vmcnt(0)")
    for b in range(4):
        a(f"s_waitcnt lgkmcnt({4*(3-b)})")
        for c in range(2):
            for j in range(2):
                o, x0 = UU + 4*b + 2*c + j, X + 8*b + 4*c + j
                a(f"v_add_f32 {v(o)}, {v(o)}, {v(x0)}")
        for c in range(2):
            for j in range(2):
                o, x0 = UU + 4*b + 2*c + j, X + 8*b + 4*c + j
                a(f"v_add_f32 {v(o)}, {v(o)}, {v(x0+2)}")
        for j in range(2):
            a(f"v_cvt_pk_bf16_f32 {v(O+4*b+2*j)}, {v(UU+4*b+j)}, {v(UU+4*b+2+j)}")
        a(f"buffer_store_dwordx4 {v(O+4*b,4)}, v4, {s(R_WS,4)}, {s(S_HO)} offen offset:{1024*b} sc1")
    a.c("the flag only says where to look: the granules carry their own tags")
    if opt("YACK", 0):
        a("s_waitcnt vmcnt(0)")
    flag_store(a, S_DO, 8, 9)


def conv_addr(a):
    a(f"s_lshr_b32 {s(S_T0)}, {s(S_WB)}, 1\ns_mul_i32 {s(S_RING)}, {s(S_T0)}, {CH_STR}\ns_add_u32 {s(S_RING)}, {s(S_RING)}, {L_CONV}")
    a(f"s_lshl_b32 {s(S_T3)}, {s(S_TI)}, 2\ns_load_dword {s(S_C+1)}, {s(S_DP,2)}, {s(S_T3)}")
    a.c("A address: base + (3-(m&3))*HSTR + 128*(m>>2) + 16*kg + 256*rh ; B address: ubase + 120 - 8n + 16kg + 256*rh")
    a(f"s_and_b32 {s(S_T0)}, {s(S_WB)}, 1\ns_lshl_b32 {s(S_T0)}, {s(S_T0)}, 8\ns_add_u32 {s(S_T0)}, {s(S_T0)}, {s(S_RING)}")
    a(f"v_and_b32 v6, 3, v0\nv_sub_u32 v6, 3, v6\nv_mul_u32_u24 v6, {HSTR}, v6\nv_bfe_u32 v7, v0, 2, 2\nv_lshl_add_u32 v6, v7, 7, v6")
    a(f"v_and_b32 v7, 48, v0\nv_add3_u32 {v(C_AA)}, v6, v7, {s(S_T0)}")
    a(f"v_and_b32 v6, 15, v0\nv_lshlrev_b32 v6, 3, v6\nv_sub_u32 v6, v7, v6\ns_add_u32 {s(S_T0)}, {s(S_T0)}, {4*HSTR + 120}\nv_add_u32 {v(C_BA)}, {s(S_T0)}, v6")
    a(f"s_lshl_b32 {s(S_T0)}, {s(S_WB)}, 13\ns_add_u32 {s(S_T0)}, {s(S_T0)}, {L_XCH}\nv_add_u32 v8, {s(S_T0)}, v4")
    a(f"s_lshl_b32 {s(S_T0)}, {s(S_WB)}, 11\ns_add_u32 {s(S_T0)}, {s(S_T0)}, {L_XCH}\nv_lshlrev_b32 v9, 3, v0\nv_add_u32 v9, {s(S_T0)}, v9")
    a.c("u for the skip term: ubase_c + 2*(2046 - 512wb - 128b - 2l)")
    a(f"s_lshl_b32 {s(S_T0)}, {s(S_WB)}, 10\ns_sub_u32 {s(S_T0)}, {L_CONV + 4*HSTR + 4092 - 768}, {s(S_T0)}\nv_lshlrev_b32 v10, 2, v0\nv_sub_u32 v10, {s(S_T0)}, v10")
    a.c("y granules: YG[ti][row*8]; flag F4[wb*256 + ti]")
    a(f"s_mul_i32 {s(S_T0)}, {s(S_TI)}, {YSTR}\ns_lshl_b32 {s(S_T1)}, {s(S_WB)}, 12\ns_add_u32 {s(S_T0)}, {s(S_T0)}, {s(S_T1)}\ns_add_u32 {s(S_HO)}, {s(S_T0)}, {WS_YG:#x}")
    a(f"s_lshl_b32 {s(S_T0)}, {s(S_WB)}, 8\ns_add_u32 {s(S_T0)}, {s(S_T0)}, {s(S_TI)}\ns_lshl_b32 {s(S_T0)}, {s(S_T0)}, 7\ns_add_u32 {s(S_DO)}, {s(S_T0)}, {WS_F4:#x}")
    a(f"s_mov_b32 {s(S_CNT)}, 0\ns_lshl_b32 {s(S_T0)}, {s(S_WB)}, 2\nv_add_u32 v11, {s(S_T0)}, {v(C_CNT)}\nv_mov_b32 v251, 3")
    a.c("F1 pairs of the two tiles that hold this wave's output rows")
    a(f"s_lshl_b32 {s(S_T1)}, {s(S_MT)}, 2\ns_add_u32 {s(S_T1)}, {s(S_T1)}, {s(S_WB)}\ns_lshl_b32 {s(S_T1)}, {s(S_T1)}, 8\ns_add_u32 {s(S_T1)}, {s(S_T1)}, {WS_F1:#x}")
    a(f"v_and_b32 v5, 1, v0\nv_lshlrev_b32 v5, 7, v5\nv_add_u32 v5, {s(S_T1)}, v5")
    poll2_issue(a, 5, 198)


def final_loads(a):
    a(f"s_lshl_b32 {s(S_T0)}, {s(S_MT)}, 2\ns_add_u32 {s(S_T0)}, {s(S_T0)}, {s(S_WB)}\ns_lshl_b32 {s(S_T1)}, {s(S_T0)}, 14\ns_lshl_b32 {s(S_T2)}, {s(S_NT)}, 7\ns_add_u32 {s(S_XO)}, {s(S_T1)}, {s(S_T2)}")
    a(f"s_add_u32 {s(S_WO)}, {s(S_XO)}, 8192")
    a("v_lshrrev_b32 v12, 3, v0\nv_and_b32 v13, 7, v0\nv_lshlrev_b32 v14, 4, v13\nv_lshl_add_u32 v14, v12, 10, v14\nv_lshlrev_b32 v15, 4, v12")
    a(f"buffer_load_dwordx4 {v(176,4)}, v14, {s(R_X,4)}, {s(S_XO)} offen")
    a(f"buffer_load_dwordx4 {v(180,4)}, v14, {s(R_X,4)}, {s(S_WO)} offen")


def final(a):
    XU, XN, YU, YL = 16, 72, 96, 160
    a.c("flags F4[(mt>>3)*256 + 32nt + 8wb + (l&7)]; granules of pairs 32nt + 8wb + 2i + (l>>5), rows 64mt + 2*(l&31) ..")
    a(f"s_lshl_b32 {s(S_T0)}, {s(S_NT)}, 2\ns_add_u32 {s(S_T0)}, {s(S_T0)}, {s(S_WB)}\ns_lshr_b32 {s(S_T1)}, {s(S_MT)}, 3\ns_lshl_b32 {s(S_T1)}, {s(S_T1)}, 5\ns_add_u32 {s(S_T1)}, {s(S_T1)}, {s(S_T0)}")
    a(f"s_lshl_b32 {s(S_T1)}, {s(S_T1)}, 10\ns_add_u32 {s(S_T1)}, {s(S_T1)}, {WS_F4:#x}\nv_lshlrev_b32 v5, 7, v13\nv_add_u32 v5, {s(S_T1)}, v5")
    a(f"s_mul_i32 {s(S_T0)}, {s(S_T0)}, {8*YSTR}\ns_lshl_b32 {s(S_T1)}, {s(S_MT)}, 9\ns_add_u32 {s(S_T0)}, {s(S_T0)}, {s(S_T1)}\ns_add_u32 {s(S_HO)}, {s(S_T0)}, {WS_YG:#x}")
    a(f"v_lshrrev_b32 v10, 5, v0\nv_mul_u32_u24 v8, {YSTR - 512}, v10\nv_add_u32 v8, v8, v4")

    def y_loads():
        a(f"s_mov_b32 {s(S_T1)}, {s(S_HO)}")
        for i in range(4):
            a(f"buffer_load_dwordx4 {v(YL+4*i,4)}, v8, {s(R_WS,4)}, {s(S_T1)} offen sc1")
            if i < 3:
                a(f"s_add_u32 {s(S_T1)}, {s(S_T1)}, {2*YSTR}")
    for t in range(2):
        for i in range(4):
            a(f"v_lshlrev_b32 {v(XU+8*t+2*i)}, 16, {v(176+4*t+i)}\nv_and_b32 {v(XU+8*t+2*i+1)}, {s(S_C)}, {v(176+4*t+i)}")
    for i in range(16):
        a(f"v_mov_b32 {v(YU+i)}, 0")
    a.c("transpose scratch [wb'][c*272 + e*64 + row*4]")
    a(f"s_mul_i32 {s(S_T0)}, {s(S_WB)}, 544\ns_add_u32 {s(S_T0)}, {s(S_T0)}, {L_YL}")
    a(f"v_and_b32 v9, 3, v12\nv_mul_u32_u24 v9, 2176, v9\nv_lshl_add_u32 v9, v10, 6, v9\nv_lshl_add_u32 v9, v13, 3, v9\nv_add_u32 v9, {s(S_T0)}, v9")
    a(f"s_mul_i32 {s(S_T0)}, {s(S_WB)}, 2176\ns_add_u32 {s(S_T0)}, {s(S_T0)}, {L_YL}")
    a(f"v_mul_u32_u24 v7, 272, v13\nv_lshl_add_u32 v7, v12, 2, v7\nv_add_u32 v7, {s(S_T0)}, v7")
    a.c("partials: wb*16384 + w*4096 + (8t + row)*256 + ((2c + h) ^ row)*16")
    a(f"s_lshl_b32 {s(S_T0)}, {s(S_WB)}, 14\nv_lshlrev_b32 v2, 1, v13\nv_xor_b32 v2, v2, v12\nv_lshlrev_b32 v2, 4, v2\nv_lshl_add_u32 v2, v12, 8, v2\nv_add_u32 v2, {s(S_T0)}, v2")
    a("v_xor_b32 v3, 16, v2")
    for t in range(2):
        a(f"v_mul_f32 {v(185+4*t)}, {f32bits(1.0/C1):#x}, {v(185+4*t)}")
        for i in range(8):
            a(f"v_sub_f32 {v(XN+8*t+i)}, {v(XU+8*t+i)}, {v(184+4*t)}")
        for i in range(8):
            a(f"v_mul_f32 {v(XN+8*t+i)}, {v(XN+8*t+i)}, {v(185+4*t)}")
    if not opt('LDST', 0): stamp(a, 7)
    a(f"s_setprio {opt('PRP', 0)}")
    a.c("stay off the memory path until the GEMM2 waves have issued their loads")
    lds_min_wait(a, C_CNT, W_HI, 1, 4, 6, nap=2)
    a(f"s_setprio {opt('PRF', 3)}")
    if not opt('LDST', 0): stamp(a, 8)
    top, done = a.label("yp"), a.label("yp_ok")
    a(f"s_mov_b32 {s(S_IT)}, 0")
    if opt("YFLAG", 1):
        poll(a, 5, 6)
    a(f"{top}:")
    y_loads()
    a("s_waitcnt vmcnt(0)")
    for i in range(4):
        a(f"v_xor_b32 {v(48+i)}, {s(S_NON)}, {v(YL+4*i+1)}\nv_xor_b32 {v(52+i)}, {s(S_NON)}, {v(YL+4*i+3)}\nv_mov_b32 {v(YL+4*i+1)}, {v(YL+4*i+2)}")
    a("v_or3_b32 v48, v48, v49, v50\nv_or3_b32 v51, v51, v52, v53\nv_or3_b32 v48, v48, v54, v55\nv_or_b32 v48, v48, v51\nv_cmp_ne_u32 vcc, 0, v48")
    a(f"s_cbranch_vccz {done}")
    poll(a, 5, 6)
    a(f"s_add_u32 {s(S_IT)}, {s(S_IT)}, {s(S_SPIN)}\ns_add_u32 {s(S_IT)}, {s(S_IT)}, 1\ns_cmp_lt_u32 {s(S_IT)}, {SPIN_MAX}\ns_cbranch_scc1 {top}")
    a(f"{done}:")
    for i in range(4):
        a(f"ds_write_b64 v9, {v(YL+4*i,2)} offset:{272*(i>>1) + 128*(i&1)}")
    bsync(a)
    for t in range(2):
        for e in range(8):
            a(f"ds_read_u16_d16_hi {v(YU+8*t+e)}, v7 offset:{64*(e>>1) + 32*t + 2*(e&1)}")
    for t in range(2):
        a(f"s_waitcnt lgkmcnt({8*(1-t)})")
        for i in range(8):
            a(f"v_fmac_f32 {v(XU+8*t+i)}, {v(XN+8*t+i)}, {v(YU+8*t+i)}")
    if not opt('LDST', 0): stamp(a, 9)
    if STAMPS:
        a("s_waitcnt lgkmcnt(0)")
    a("s_barrier")
    P = 112
    for t in range(2):
        for w in range(4):
            for h in range(2):
                a(f"ds_read_b128 {v(P+32*t+8*w+4*h,4)}, {'v3' if h else 'v2'} offset:{w*4096 + t*2048}")
    for t in range(2):
        a(f"s_waitcnt lgkmcnt({8*(1-t)})")
        p = P + 32 * t
        for i in range(4):
            a(f"v_pk_add_f32 {v(p+2*i,2)}, {v(p+2*i,2)}, {v(p+8+2*i,2)}")
        for i in range(4):
            a(f"v_pk_add_f32 {v(p+16+2*i,2)}, {v(p+16+2*i,2)}, {v(p+24+2*i,2)}")
        for i in range(4):
            a(f"v_pk_add_f32 {v(p+2*i,2)}, {v(p+2*i,2)}, {v(XU+8*t+2*i,2)}")
        for i in range(4):
            a(f"v_pk_add_f32 {v(p+2*i,2)}, {v(p+2*i,2)}, {v(p+16+2*i,2)}")
        for i in range(4):
            a(f"v_cvt_pk_bf16_f32 {v(48+4*t+i)}, {v(p+2*i)}, {v(p+2*i+1)}")
        a(f"buffer_store_dwordx4 {v(48+4*t,4)}, v14, {s(R_OUT,4)}, {s(S_WO if t else S_XO)} offen")


def epoch_flags_issue(a):
    a(f"v_lshlrev_b32 v6, 7, v0\ns_mov_b32 {s(S_T0)}, {WS_F1:#x}")
    for i in range(4):
        a(f"buffer_load_dword {v(2+i)}, v6, {s(R_WS,4)}, {s(S_T0)} offen sc1")
        a(f"s_add_u32 {s(S_T0)}, {s(S_T0)}, 8192")


def epoch_pre(a):
    done = a.label("ep_skip")
    a(f"s_lshl_b32 {s(S_T0)}, s2, 3\ns_add_u32 {s(S_T0)}, {s(S_T0)}, {s(S_WAVE)}\ns_cmp_lg_u32 {s(S_T0)}, 0\ns_cbranch_scc1 {done}")
    epoch_flags_issue(a)
    a(f"{done}:")


def epoch_advance(a):
    done, top, ok = a.label("ep_skip"), a.label("ep_top"), a.label("ep_ok")
    a(f"s_lshl_b32 {s(S_T0)}, s2, 3\ns_add_u32 {s(S_T0)}, {s(S_T0)}, {s(S_WAVE)}\ns_cmp_lg_u32 {s(S_T0)}, 0\ns_cbranch_scc1 {done}")
    a(f"s_mov_b32 {s(S_SPIN)}, 0")
    a(f"{top}:")
    for i in range(4):
        a(f"v_xor_b32 {v(2+i)}, {s(S_NON)}, {v(2+i)}")
    a("v_or_b32 v2, v2, v3\nv_or_b32 v4, v4, v5\nv_or_b32 v2, v2, v4\nv_cmp_ne_u32 vcc, 0, v2")
    a(f"s_cbranch_vccz {ok}")
    a(f"s_add_u32 {s(S_SPIN)}, {s(S_SPIN)}, 1\ns_cmp_ge_u32 {s(S_SPIN)}, {SPIN_MAX}\ns_cbranch_scc1 {ok}")
    epoch_flags_issue(a)
    a(f"s_waitcnt vmcnt(0)\ns_branch {top}")
    a(f"{ok}:")
    a(f"s_mov_b32 {s(S_T0)}, {WS_EP:#x}")
    flag_store(a, S_T0, 8, 9)
    a(f"{done}:")


def kernel(a):
    entry(a)
    prologue(a, False, 1)
    g1_compute(a)
    g1_epilogue(a)
    epoch_pre(a)
    g2_main(a)
    epoch_advance(a)
    stamp_flush(a)
    a("s_endpgm")
    a(".p2align 6\nL_load:")
    prologue(a)
    loader(a)
    a("s_branch L_bj")
    a(".p2align 6\nL_help:")
    prologue(a)
    helper(a)
    a("L_bj:")
    conv_addr(a)
    bsync(a, 4 if opt("CEARLY", 0) else 8)
    a(f"s_setprio {opt('PRC', 3)}")
    lstamp(a, 4)
    conv_main(a)
    lstamp(a, 6)
    final(a)
    stamp_flush(a)
    a("L_end:\ns_endpgm")


HEADER = open(f"cdna_kernels/{NAME}.s.ref").read().split("; Override launch")[0]


def build():
    a = Asm()
    kernel(a)
    out = HEADER + "; @launch grid=(256,1,1) block=(512,1,1) lds=163840\n"
    out += '.amdgcn_target "amdgcn-amd-amdhsa--gfx950"\n.text\n' + a.text()
    out += '.section .rodata,"a"\n.p2align 6\n' + kernel_desc(KNAME)
    return out


if __name__ == "__main__":
    open(sys.argv[1] if len(sys.argv) > 1 else "t_m.s", "w").write(build())
```

```python
import math, os, sys
from asmlib import *

NAME = "parallel_sum__ssm_conv_h3__geglu_ffn__prompt"
KNAME = NAME + "_kernel"
S, D, F = 2048, 512, 1376
NU = F // 16
STAMPS = os.environ.get("STAMPS") == "1"
def opt(name, default):
    return int(os.environ.get(name, default))

WS_HF, WS_KVR, WS_Y2, WS_ST, WS_CSP = 0, 0x600000, 0x800000, 0xA00000, 0xA10000
WS_F1, WS_F2, WS_F3, WS_F4, WS_EP = 0xA80000, 0xA88000, 0xAA0000, 0xAC0000, 0xAE0000
WS_STAMP = 0xC00000
WS_YG = 0x1000000
YSTR = 16384 + 256
WS_SIZE = 0x1500000
NONCE_INC = 0x9E3779B1
OOB = 0x7f000000
R_X, R_WG, R_WU, R_WS, R_K, R_V, R_SK, R_WD, R_OUT, R_H = 4, 8, 12, 16, 20, 24, 28, 32, 36, 40
S_DP = 44
S_EX = 46
(S_WAVE, S_MI, S_NI, S_FB0, S_NBLK, S_T0, S_T1, S_T2, S_T3, S_IT, S_SLOT, S_KC, S_XO, S_WO, S_WO2, S_M0,
 S_WB, S_SH, S_UH, S_TI, S_MT, S_NT, S_NON, S_RING, S_CNT, S_HO, S_DO, S_SPIN) = range(48, 76)
S_C = 76
S_DK, S_HK, S_KEND = 3, S_RING, S_CNT
SLOT, NSLOT = 40960, 3
L_KVT, KVT_STR = 122880, 80
L_CS, L_ST, L_CNT = 135680, 136704, 138752
HSTR = 4640
CH_STR = 4 * HSTR + 4224
L_CONV = 81920
L_XCH = 81920
L_YL = 114688
NRW = 7
KVL = opt("KVL", 0)
CFX, CFW, CFS, CFD = (os.environ.get(k, "") for k in ("CFX", "CFW", "CFS", "CFD"))
SLOTMAP = [2, 3, 4, 5, 6, 0, 1] if KVL else list(range(7))
L_RA0 = 127488
S_RA, S_RB = 101, S_M0
L_CSS = 139264
assert L_KVT + 2 * 64 * KVT_STR <= L_CS and L_CONV + 2 * CH_STR <= L_RA0 and L_RA0 + 8192 <= L_CS and L_CNT + 256 <= L_CSS
W_CNT, W_GATH, W_HP, W_FREE, W_FULL, W_NON, W_C0, W_ISS, W_WD, W_HI, W_WE = 0, 8, 12, 16, 32, 40, 48, 64, 80, 96, 112
S_DUM = 100
C1 = -2.0 * math.log2(math.e) * math.sqrt(2.0 / math.pi)
C2 = C1 * 0.044715
SPIN_MAX = 1 << 16
LSPIN_MAX = 1 << 22


def stamp(a, i):
    if STAMPS:
        a(f"{'s_memtime' if opt('CLK', 0) else 's_memrealtime'} {s(78+2*i,2)}")


def lstamp(a, i):
    if STAMPS and not opt("LDST", 0):
        lab = a.label("ls")
        a(f"s_cmp_ge_u32 {s(S_WB)}, 2\ns_cbranch_scc1 {lab}")
        stamp(a, i)
        a(f"{lab}:")


ITST = STAMPS and opt("ITST", 0)


def it_issue(a):
    if ITST:
        a("s_memrealtime s[96:97]")


def it_take(a, add):
    if ITST:
        a(f"s_add_u32 m0, {s(S_IT)}, {add}\ns_nop 0\nv_writelane_b32 v255, s96, m0")


def stamp_flush(a):
    if not STAMPS:
        return
    if ITST:
        a(f"s_lshl_b32 s96, s2, 3\ns_add_u32 s96, s96, {s(S_WAVE)}\ns_lshl_b32 s96, s96, 8\ns_add_u32 s96, s96, {WS_STAMP + 0x100000:#x}")
        a(f"v_lshlrev_b32 v2, 2, v0\nbuffer_store_dword v255, v2, {s(R_WS,4)}, s96 offen\ns_mov_b32 s96, 0")
    a("s_waitcnt vmcnt(0) lgkmcnt(0)")
    stamp(a, 10)
    a("s_waitcnt lgkmcnt(0)")
    for i in range(11):
        a(f"v_writelane_b32 v1, {s(78+2*i)}, {i}")
    a(f"s_lshl_b32 s78, s2, 3\ns_add_u32 s78, s78, {s(S_WAVE)}\ns_lshl_b32 s78, s78, 6\ns_add_u32 s78, s78, {WS_STAMP:#x}")
    a("v_lshlrev_b32 v2, 2, v0\ns_mov_b64 exec, 0x7ff")
    a(f"buffer_store_dword v1, v2, {s(R_WS,4)}, s78 offen")
    if opt("DBGST", 0):
        lab = a.label("dbg")
        a(f"s_cmp_lg_u32 s78, {WS_STAMP + opt('DBGW', 0)*64 + 100*512:#x}\ns_cbranch_scc1 {lab}")
        a("s_load_dwordx2 s[84:85], s[0:1], 88\ns_mov_b32 s86, 256\ns_mov_b32 s87, 0x20000\nv_readlane_b32 s82, v1, 0\ns_waitcnt lgkmcnt(0)")
        a("v_subrev_u32 v1, s82, v1")
        a("buffer_store_dword v1, v2, s[84:87], 0 offen")
        a(f"{lab}:")


TABLE = [(R_X, 0, S*D*2), (R_WG, 56, D*F*2), (R_WU, 64, D*F*2), (R_WS, 96, WS_SIZE), (R_K, 8, S*D*2), (R_V, 16, S*D*2),
         (R_SK, 24, D*8), (R_WD, 72, D*F*2), (R_OUT, 80, S*D*2), (R_H, 32, S*D*2)]


def entry(a):
    a(f".globl {KNAME}\n.p2align 8\n.type {KNAME},@function\n{KNAME}:")
    a("s_cmp_ge_u32 s2, 256\ns_cbranch_scc1 L_end")
    if opt("CPF", 0):
        n = opt("CPF", 0)
        a.c("pull this workgroup's share of the code into L2 ahead of the instruction fetch")
        a(f"s_getpc_b64 {s(S_EX,2)}\nL_pc:")
        a(f"s_lshr_b32 s3, s2, 3\nv_lshlrev_b32 v2, 5, v0\nv_add_u32 v2, s3, v2\nv_lshlrev_b32 v2, 7, v2\nv_mov_b32 v3, {s(S_EX+1)}")
        a(f"v_cmp_gt_u32 vcc, L_end-L_pc, v2\ns_and_saveexec_b64 {s(S_DP,2)}, vcc\ns_cbranch_execz L_nopf")
        a(f"v_add_co_u32 v2, vcc, {s(S_EX)}, v2\nv_addc_co_u32 v3, vcc, 0, v3, vcc")
        a("global_load_dword v212, v[2:3], off")
        a("L_nopf:\ns_mov_b64 exec, -1")
    a("v_lshrrev_b32 v1, 6, v0")
    a(f"s_load_dwordx2 {s(R_X,2)}, s[0:1], 0\ns_load_dwordx2 {s(R_WS,2)}, s[0:1], 96")
    stamp(a, 0)
    a(f"v_readfirstlane_b32 {s(S_WAVE)}, v1")
    a("v_and_b32 v0, 63, v0")
    a(f"s_cmp_ge_u32 {s(S_WAVE)}, 6\ns_cbranch_scc1 L_help")
    a(f"s_cmp_ge_u32 {s(S_WAVE)}, 4\ns_cbranch_scc1 L_load")


def prologue(a, bar=True, part=3):
    first = (R_X, R_WG, R_WU)
    if part & 1:
        for r, off, size in TABLE:
            if r in first[1:]:
                a(f"s_load_dwordx2 {s(r,2)}, s[0:1], {off}")
    if part & 2:
        for r, off, size in TABLE:
            if r not in first + (R_WS,):
                a(f"s_load_dwordx2 {s(r,2)}, s[0:1], {off}")
        a(f"s_load_dwordx2 {s(S_DP,2)}, s[0:1], 40")
        if STAMPS:
            for i in range(1, 11):
                a(f"s_mov_b32 {s(78+2*i)}, 0")
        if ITST:
            a("v_mov_b32 v255, 0")
    if part & 1 and not bar:
        a.c("LDS hand-off words start at zero")
        a(f"v_mov_b32 v20, 0\nv_lshlrev_b32 v5, 2, v0\nv_add_u32 v5, {L_CNT}, v5\nds_write_b32 v5, v20")
    for r, off, size in TABLE:
        if part & (1 if r in first else 2):
            a(f"s_mov_b32 {s(r+2)}, {size:#x}\ns_mov_b32 {s(r+3)}, 0x20000")
    if part & 1:
        a.c("x = wg&7, j = wg>>3; GEMM1 tile mi = 8*(x&1) + (j&7), ni = 4*(x>>1) + (j>>3); ti = 16*mi + ni")
        a(f"s_and_b32 {s(S_T0)}, s2, 1\ns_lshl_b32 {s(S_T0)}, {s(S_T0)}, 3")
        a(f"s_bfe_u32 {s(S_T1)}, s2, 0x30003\ns_add_u32 {s(S_MI)}, {s(S_T0)}, {s(S_T1)}")
        a(f"s_bfe_u32 {s(S_T0)}, s2, 0x20001\ns_lshl_b32 {s(S_T0)}, {s(S_T0)}, 2")
        a(f"s_lshr_b32 {s(S_T2)}, s2, 6\ns_add_u32 {s(S_NI)}, {s(S_T0)}, {s(S_T2)}")
        a.c("first 32-col block fb0 = 3*ni - (ni>>2) - (ni==15); nblk = 2 for ni in {3,7,11,14,15}")
        a(f"s_mul_i32 {s(S_FB0)}, {s(S_NI)}, 3\ns_lshr_b32 {s(S_T0)}, {s(S_NI)}, 2\ns_sub_u32 {s(S_FB0)}, {s(S_FB0)}, {s(S_T0)}")
        a(f"s_cmp_eq_u32 {s(S_NI)}, 15\ns_subb_u32 {s(S_FB0)}, {s(S_FB0)}, 0")
        a(f"s_bitcmp1_b32 0xc888, {s(S_NI)}\ns_cselect_b32 {s(S_NBLK)}, 2, 3")
        a(f"s_and_b32 {s(S_WB)}, {s(S_WAVE)}, 3")
        a.c("GEMM1 DMA lane offsets. x: (l>>3)*1024 + ((l&7) ^ ((4*(w&1) + l>>4)&7))*16 ; W: (l>>2)*2752 + ((l&3) ^ (2*(l>>5)))*16")
        a(f"s_and_b32 {s(S_T0)}, {s(S_WAVE)}, 1\ns_lshl_b32 {s(S_T0)}, {s(S_T0)}, 2")
        a(f"v_lshrrev_b32 v5, 4, v0\nv_add_u32 v5, {s(S_T0)}, v5\nv_and_b32 v6, 7, v0\nv_xor_b32 v5, v5, v6\nv_lshlrev_b32 v5, 4, v5")
        a(f"v_lshrrev_b32 v6, 3, v0\nv_lshl_add_u32 {v(VB_X)}, v6, 10, v5")
        a(f"v_lshrrev_b32 v5, 5, v0\nv_lshlrev_b32 v5, 1, v5\nv_and_b32 v6, 3, v0\nv_xor_b32 v5, v5, v6\nv_lshlrev_b32 v5, 4, v5")
        a(f"v_lshrrev_b32 v6, 2, v0\nv_mul_u32_u24 v6, {F*2}, v6\nv_add_u32 {v(VB_W)}, v6, v5")
        if not bar:
            a(f"s_lshl_b32 {s(S_XO)}, {s(S_MI)}, 17\ns_lshl_b32 {s(S_T0)}, {s(S_WB)}, 13\ns_add_u32 {s(S_XO)}, {s(S_XO)}, {s(S_T0)}")
            a(f"s_mul_i32 {s(S_WO)}, {s(S_WB)}, {16*F*2}\ns_lshl_b32 {s(S_T0)}, {s(S_FB0)}, 6\ns_add_u32 {s(S_WO)}, {s(S_WO)}, {s(S_T0)}")
            a(f"s_cmp_eq_u32 {s(S_NBLK)}, 3\ns_cselect_b32 {s(S_WO2)}, {s(S_WO)}, {OOB:#x}")
            a(f"s_lshl_b32 {s(S_M0)}, {s(S_WB)}, 10")
    if part & 2:
        a(f"s_lshl_b32 {s(S_TI)}, {s(S_MI)}, 4\ns_add_u32 {s(S_TI)}, {s(S_TI)}, {s(S_NI)}")
        a.c("GEMM2 tile mt = 4*x + (j&3), nt = j>>2")
        a(f"s_and_b32 {s(S_T0)}, s2, 7\ns_lshl_b32 {s(S_T0)}, {s(S_T0)}, 2\ns_bfe_u32 {s(S_T1)}, s2, 0x20003\ns_add_u32 {s(S_MT)}, {s(S_T0)}, {s(S_T1)}")
        a(f"s_lshr_b32 {s(S_NT)}, s2, 5\ns_mov_b32 {s(S_SPIN)}, 0")
    if bar:
        a(f"s_mov_b32 {s(S_UH)}, 0\nv_lshlrev_b32 v4, 4, v0\nv_mov_b32 {v(C_CNT)}, {L_CNT}\nv_mov_b32 {v(C_ONE)}, 1\ns_mov_b32 {s(S_C)}, 0xffff0000")
    if part & 1:
        a("s_waitcnt lgkmcnt(0)")
    if bar:
        a("s_barrier")


VB_X, VB_W = 14, 15
C_CNT, C_ONE = 252, 253


def poll(a, vaddr, vtmp):
    top, done = a.label("poll"), a.label("poll_ok")
    a(f"s_mov_b32 {s(S_SPIN)}, 0")
    a(f"{top}:")
    a(f"buffer_load_dword {v(vtmp)}, {v(vaddr)}, {s(R_WS,4)}, 0 offen sc1")
    a("s_waitcnt vmcnt(0)")
    a(f"v_cmp_ne_u32 vcc, {s(S_NON)}, {v(vtmp)}")
    a(f"s_cbranch_vccz {done}")
    a(f"s_sleep {opt('PSG' if vaddr == G_FL else 'PSY', 1)}")
    a(f"s_add_u32 {s(S_SPIN)}, {s(S_SPIN)}, 1\ns_cmp_lt_u32 {s(S_SPIN)}, {SPIN_MAX}\ns_cbranch_scc1 {top}")
    a(f"{done}:")


def poll2_issue(a, vaddr, vt):
    a(f"buffer_load_dwordx2 {v(vt,2)}, {v(vaddr)}, {s(R_WS,4)}, 0 offen sc1")


def poll2_check(a, vaddr, vt):
    top, done = a.label("poll"), a.label("poll_ok")
    a(f"s_mov_b32 {s(S_SPIN)}, 0")
    a(f"{top}:")
    a(f"v_cmp_ne_u32 vcc, {s(S_NON)}, {v(vt)}\nv_cmp_ne_u32 {s(S_EX,2)}, {s(S_NON)}, {v(vt+1)}")
    a(f"s_nop 0\ns_or_b64 vcc, vcc, {s(S_EX,2)}")
    a(f"s_cbranch_scc0 {done}")
    a(f"s_add_u32 {s(S_SPIN)}, {s(S_SPIN)}, 1\ns_cmp_ge_u32 {s(S_SPIN)}, {SPIN_MAX}\ns_cbranch_scc1 {done}")
    a(f"s_sleep {opt('PS2', 1)}")
    poll2_issue(a, vaddr, vt)
    a(f"s_waitcnt vmcnt(0)\ns_branch {top}")
    a(f"{done}:")


class VQ:
    def __init__(self, a):
        self.a, self.q = a, []
    def add(self, tag, n):
        self.q += [tag] * n
    def count(self, *tags):
        last = max((i for i, x in enumerate(self.q) if x in tags), default=-1)
        n = len(self.q) - 1 - last
        assert n <= 63
        return n
    def wait(self, *tags):
        self.a(f"s_waitcnt vmcnt({self.count(*tags)})")


def flag_store(a, soff, vt0, vt1):
    a(f"v_mov_b32 {v(vt0)}, {s(S_NON)}\nv_mov_b32 {v(vt1)}, 0")
    a("s_mov_b64 exec, 1")
    a(f"buffer_store_dword {v(vt0)}, {v(vt1)}, {s(R_WS,4)}, {s(soff)} offen sc1")
    a("s_mov_b64 exec, -1")


def epoch_load(a, vt):
    a(f"v_mov_b32 {v(vt)}, {WS_EP:#x}")
    a(f"buffer_load_dword {v(vt)}, {v(vt)}, {s(R_WS,4)}, 0 offen sc1")


def epoch_take(a, vt):
    a(f"v_readfirstlane_b32 {s(S_NON)}, {v(vt)}")
    a("s_nop 0")
    a(f"s_add_u32 {s(S_NON)}, {s(S_NON)}, {NONCE_INC:#x}")


V_XA0, V_XA1, V_W = 2, 3, 4
V_XC0, V_XC1, V_WC = 7, 8, 9
ACC, F0, F1 = 16, 112, 152
G_ACC, G_WF, G_H = 176, 16, 80
G_L16, G_WD, G_TR, G_TR0, G_TR5, G_FL = 240, 241, 242, 246, 250, 254
NHB, NWF, NSTEP = 6, 4, 11
G_HT = 255


def acc(u, mat, sb):
    return ACC + ((u * 2 + mat) * 4 + sb) * 4


def g1_reads(fr, step, units):
    out = []
    for u in units:
        if u == 'x':
            for sb in range(4):
                out.append(f"ds_read_b128 {v(fr+4*sb,4)}, {v(V_XC1 if step else V_XC0)} offset:{sb*2048}")
            continue
        for mat in range(2):
            r = fr + 16 + (u * 2 + mat) * 4
            for t in range(2):
                out.append(f"ds_read_b64_tr_b16 {v(r+2*t,2)}, {v(V_WC+u)} offset:{mat*12288+step*2048+t*256}")
    return out


def g1_mfmas(fr, units):
    out = []
    for u in units:
        for mat in range(2):
            for sb in range(4):
                c = acc(u, mat, sb)
                out.append(f"v_mfma_f32_16x16x32_bf16 {v(c,4)}, {v(fr+16+(u*2+mat)*4,4)}, {v(fr+4*sb,4)}, {v(c,4)}")
    return out


V_LW, V_FC, V_FL = 12, 13, 192


COLD = Asm()


def g1_step_a(a):
    rd = g1_reads(F1, 1, ['x', 0, 1, 2])
    for i, m in enumerate(g1_mfmas(F0, [0, 1])):
        if i == 0:
            a("s_waitcnt lgkmcnt(8)")
        if i == 8:
            a("s_waitcnt lgkmcnt(12)")
            a(f"ds_read_b32 {v(V_FL)}, {v(V_FL+1)} offset:{W_FULL}")
        a(rd[i])
        a(m)
    a(f"ds_write_b32 {v(V_FL+2)}, {v(V_FC)}")
    lab = a.label("g1_skip")
    a(f"s_cbranch_vccnz {lab}")
    a("s_waitcnt lgkmcnt(15)")
    for l in g1_mfmas(F0, [2]):
        a(l)
    a(f"{lab}:")


def g1_step_b(a):
    mf = g1_mfmas(F1, [0, 1])
    rd = g1_reads(F0, 0, ['x', 0, 1, 2])
    slow, lab, lab2 = a.label("g1_slow"), a.label("g1_skip"), a.label("g1_skip")
    a("s_waitcnt lgkmcnt(9)")
    a(mf[0])
    a(f"v_add_u32 {v(V_XC0)}, {s(S_SLOT)}, {v(V_XA0)}")
    a(mf[1])
    a(f"v_readfirstlane_b32 {s(S_T0)}, {v(V_FL)}")
    a(f"v_add_u32 {v(V_WC)}, {s(S_SLOT)}, {v(V_W)}")
    a(mf[2])
    extra = [f"v_add_u32 {v(V_WC+1)}, {s(S_SLOT)}, {v(V_W+1)}", f"v_add_u32 {v(V_WC+2)}, {s(S_SLOT)}, {v(V_W+2)}",
             f"v_add_u32 {v(V_XC1)}, {s(S_SLOT)}, {v(V_XA1)}", f"v_add_u32 {v(V_FC)}, 1, {v(V_FC)}"]
    flip = f"v_xor_b32 {v(V_FL+1)}, 4, {v(V_FL+1)}"
    a(f"s_cmp_lt_u32 {s(S_T0)}, {s(S_T2)}\ns_cbranch_scc1 {slow}")
    r, e = list(rd), extra + [flip]
    for i, m in enumerate(mf[3:]):
        if i == 5:
            a("s_waitcnt lgkmcnt(13)")
        a(r.pop(0))
        if i < 3:
            a(r.pop(0))
        if e:
            a(e.pop(0))
        a(m)
    assert not r
    a(f"s_cbranch_vccnz {lab}")
    a("s_waitcnt lgkmcnt(15)")
    for l in g1_mfmas(F1, [2]):
        a(l)
    a(f"{lab}:")
    if ITST:
        it_issue(a)
        a("s_waitcnt lgkmcnt(0)")
        it_take(a, 16)
    a(f"s_cmp_lt_u32 {s(S_IT)}, 8")
    a("s_cbranch_scc1 g1_loop")
    main, a = a, COLD
    a.nlabel = main.nlabel + 5000
    a.c("next chunk not in yet: finish this one first")
    a(f"{slow}:")
    a("s_waitcnt lgkmcnt(0)")
    for l in interleave(mf[3:], extra, 0, 1):
        a(l)
    a(f"s_cbranch_vccnz {lab2}")
    for l in g1_mfmas(F1, [2]):
        a(l)
    a(f"{lab2}:")
    lds_min_wait(a, V_FL+1, W_FULL, 1, s(S_T2), V_FL)
    if ITST:
        it_issue(a)
        a("s_waitcnt lgkmcnt(0)")
        it_take(a, 32)
    for l in rd:
        a(l)
    a(flip)
    a("s_branch g1_loop")


def dma_chunk0(a):
    for i in range(4):
        a(f"s_add_u32 m0, {s(S_M0)}, {i*4096}")
        a(f"s_add_u32 {s(S_XO)}, {s(S_XO)}, 32768" if i else "s_nop 0")
        a(f"buffer_load_dwordx4 {v(VB_X)}, {s(R_X,4)}, {s(S_XO)} offen {CFX} lds")
    for blk in range(3):
        for mat in range(2):
            a(f"s_add_u32 m0, {s(S_M0)}, {16384 + (mat*3+blk)*4096 - 64*blk}")
            a("s_nop 0")
            a(f"buffer_load_dwordx4 {v(VB_W)}, {s(R_WU if mat else R_WG,4)}, {s(S_WO2 if blk == 2 else S_WO)} offen offset:{64*blk} {CFW} lds")


def spf(a, srd, sbase, offs):
    for o in offs:
        a(f"s_buffer_load_dword {s(S_DUM)}, {s(srd,4)}, {s(sbase)} offset:{o:#x}")


def lds_min_wait(a, vaddr, off, n, target, vt, nap=None):
    lab = a.label("lw")
    a(f"{lab}:")
    a(f"ds_read_b{32*n} {v(vt,n)}, {v(vaddr)} offset:{off}")
    a("s_waitcnt lgkmcnt(0)")
    if n == 4:
        a(f"v_min3_u32 {v(vt)}, {v(vt)}, {v(vt+1)}, {v(vt+2)}\nv_min_u32 {v(vt)}, {v(vt)}, {v(vt+3)}")
    elif n == 2:
        a(f"v_min_u32 {v(vt)}, {v(vt)}, {v(vt+1)}")
    a("s_nop 0")
    a(f"v_readfirstlane_b32 {s(S_T0)}, {v(vt)}")
    a("s_nop 0")
    done = a.label("lw_ok")
    a(f"s_cmp_ge_u32 {s(S_T0)}, {target}\ns_cbranch_scc1 {done}")
    if nap is None:
        nap = opt("NAP", 1) if vaddr == C_CNT else 0
    if nap:
        a(f"s_sleep {nap}")
    a(f"s_add_u32 {s(S_SPIN)}, {s(S_SPIN)}, 1\ns_cmp_lt_u32 {s(S_SPIN)}, {LSPIN_MAX}\ns_cbranch_scc1 {lab}")
    a(f"{done}:")


def lds_inc(a, vaddr, vone, off):
    a(f"s_mov_b64 exec, 1\nds_add_u32 {v(vaddr)}, {v(vone)} offset:{off}\ns_mov_b64 exec, -1")


WDE = opt("WDE", 0)


def wd_setup(a, first, S_WB=S_WB):
    a.c("Wd DMA lane offset: (l>>3)*1024 + ((l&7) ^ (((l>>4)&3)<<1))*16")
    a(f"v_lshrrev_b32 v12, 4, v0\nv_lshlrev_b32 v13, 1, v12\nv_and_b32 v14, 7, v0\nv_xor_b32 v13, v13, v14\nv_lshlrev_b32 v13, 4, v13\nv_lshrrev_b32 v14, 3, v0\nv_lshl_add_u32 {v(G_WD)}, v14, 10, v13")
    a(f"s_lshl_b32 {s(S_KC)}, {s(S_WB)}, 12")
    a(f"s_lshl_b32 {s(S_RA)}, {s(S_WB)}, 13\ns_add_u32 {s(S_RB)}, {s(S_RA)}, {131072 + 16384}\ns_add_u32 {s(S_RA)}, {s(S_RA)}, 131072\ns_cmp_eq_u32 {s(S_WB)}, 0\ns_cselect_b32 {s(S_RA)}, {L_RA0}, {s(S_RA)}")
    if opt("ROT", 1):
        a(f"s_and_b32 {s(S_T0)}, {s(S_MT)}, 3\ns_mul_i32 {s(S_T0)}, {s(S_T0)}, 3\ns_mul_i32 {s(S_T1)}, {s(S_NT)}, 7\ns_add_u32 {s(S_T0)}, {s(S_T0)}, {s(S_T1)}")
        a(f"s_mul_i32 {s(S_T1)}, {s(S_T0)}, 187\ns_lshr_b32 {s(S_T1)}, {s(S_T1)}, 11\ns_mul_i32 {s(S_T1)}, {s(S_T1)}, 11\ns_sub_u32 {s(S_T0)}, {s(S_T0)}, {s(S_T1)}")
    else:
        a(f"s_mov_b32 {s(S_T0)}, 0")
    a(f"s_add_u32 {s(S_DK)}, {s(S_T0)}, {first}\ns_sub_u32 {s(S_T1)}, {s(S_DK)}, 11\ns_cmp_ge_u32 {s(S_DK)}, 11\ns_cselect_b32 {s(S_DK)}, {s(S_T1)}, {s(S_DK)}")
    a(f"s_mul_i32 {s(S_DO)}, {s(S_WB)}, {NSTEP*32768}\ns_lshl_b32 {s(S_T1)}, {s(S_NT)}, 7\ns_add_u32 {s(S_DO)}, {s(S_DO)}, {s(S_T1)}")


def g2_setup(a):
    a(f"v_lshlrev_b32 {v(G_L16)}, 4, v0")
    wd_setup(a, NRW)
    a(f"s_mov_b32 {s(S_HK)}, {s(S_T0)}")
    a(f"s_cmp_eq_u32 {s(S_WAVE)}, 3\ns_cselect_b32 {s(S_KEND)}, 10, 99")
    a.c("tr address: w*4096 + (l>>2)*128 + ((db ^ ((l>>3)&3))*32) + (l&3)*8")
    a(f"v_lshrrev_b32 v13, 2, v0\nv_lshlrev_b32 v13, 7, v13\nv_and_b32 v15, 3, v0\nv_lshl_add_u32 v13, v15, 3, v13\nv_add_u32 v13, {s(S_KC)}, v13\nv_and_b32 v14, 3, v14")
    a(f"s_sub_u32 {s(S_T1)}, {s(S_RA)}, {s(S_KC)}")
    for db in range(4):
        a(f"v_xor_b32 v15, {db}, v14\nv_lshl_add_u32 {v(G_TR+db)}, v15, 5, v13\nv_add_u32 {v(G_TR0+db)}, {s(S_T1)}, {v(G_TR+db)}\nv_add_u32 {v(G_TR5+db)}, 0x10000, {v(G_TR+db)}")
    a(f"s_mul_i32 {s(S_HO)}, {s(S_MT)}, {2*NU*1024}\ns_mul_i32 {s(S_T0)}, {s(S_WAVE)}, {NSTEP*2048}\ns_add_u32 {s(S_HO)}, {s(S_HO)}, {s(S_T0)}")
    a.c("H flags this wave needs: F3[mt*32 + 8w + (l&7)]")
    a(f"s_lshl_b32 {s(S_T0)}, {s(S_MT)}, 2\ns_add_u32 {s(S_T0)}, {s(S_T0)}, {s(S_WAVE)}\ns_lshl_b32 {s(S_T0)}, {s(S_T0)}, 10\ns_add_u32 {s(S_T0)}, {s(S_T0)}, {WS_F3:#x}")
    if not opt("HT", 0):
        a(f"v_and_b32 v12, 7, v0\nv_lshlrev_b32 v12, 7, v12\nv_add_u32 {v(G_FL)}, {s(S_T0)}, v12")
        return
    a.c("lane (U = l>>1, p = l&1) watches the producer of unit U and pulls line nt of that unit into L2")
    a(f"s_cmp_eq_u32 {s(S_WAVE)}, 3\ns_cselect_b32 {s(S_T1)}, 2, 3\ns_cselect_b32 {s(S_T2)}, 19, 21")
    a(f"v_lshrrev_b32 v12, 1, v0\nv_min_u32 v12, {s(S_T2)}, v12\nv_mul_u32_u24 v13, 0x56, v12\nv_lshrrev_b32 v13, 8, v13")
    a(f"v_and_b32 v15, 1, v0\nv_mul_u32_u24 v15, {NU}, v15\nv_add_u32 v15, v15, v12\nv_lshlrev_b32 v15, 10, v15\ns_lshl_b32 {s(S_T2)}, {s(S_NT)}, 7\nv_add_u32 {v(G_HT)}, {s(S_T2)}, v15")
    a(f"v_lshrrev_b32 v12, 1, v12\nv_subrev_u32 v12, {s(S_T1)}, v12")
    a(f"v_max_i32 v12, v12, v13\nv_lshlrev_b32 v12, 7, v12\nv_add_u32 {v(G_FL)}, {s(S_T0)}, v12")


def g1_compute(a):
    a(f"s_setprio {opt('PRA', 3)}")
    if opt("TOUCH", 0):
        l1, l2 = a.label("tc"), a.label("tc")
        a(f"s_mov_b32 {s(R_K+3)}, 0x20000")
        a(f"s_cmp_ge_u32 {s(S_WAVE)}, 2\ns_cbranch_scc1 {l1}")
        a(f"s_lshl_b32 {s(S_T2)}, {s(S_WAVE)}, 8\ns_add_u32 {s(R_K)}, {s(R_X)}, {s(S_T2)}\ns_addc_u32 {s(R_K+1)}, {s(R_X+1)}, 0\ns_mov_b32 {s(R_K+2)}, {S*D*2 - 256:#x}")
        RX0 = R_X
        globals()["R_X"] = R_K
        touch_x(a, (0, 4) if opt("TOUCH", 0) == 2 else (0,), 1)
        globals()["R_X"] = RX0
        a(f"s_branch {l2}\n{l1}:")
        a(f"s_cmp_eq_u32 {s(S_WAVE)}, 2\ns_cselect_b64 {s(R_K,2)}, {s(R_WG,2)}, {s(R_WU,2)}\ns_mov_b32 {s(R_K+2)}, {D*F*2:#x}")
        touch_w(a, 0, (R_K,), 1)
        a(f"{l2}:")
    dma_chunk0(a)
    a("s_barrier")
    prologue(a, False, 2)
    if opt("SPF", 0):
        a.c("warm the lines the column sums need: rows 32mi + 16*(w&1).. of gate (w<2) or up")
        a(f"s_cmp_lt_u32 {s(S_WAVE)}, 2\ns_cselect_b64 {s(R_K,2)}, {s(R_WG,2)}, {s(R_WU,2)}\ns_mov_b32 {s(R_K+2)}, {D*F*2:#x}")
        a(f"s_lshl_b32 {s(S_T0)}, {s(S_MI)}, 1\ns_and_b32 {s(S_T1)}, {s(S_WAVE)}, 1\ns_add_u32 {s(S_T0)}, {s(S_T0)}, {s(S_T1)}\ns_mul_i32 {s(S_XO)}, {s(S_T0)}, {16*F*2}")
        a(f"s_lshl_b32 {s(S_T1)}, {s(S_FB0)}, 6\ns_add_u32 {s(S_XO)}, {s(S_XO)}, {s(S_T1)}")
        spf(a, R_K, S_XO, [r*F*2 + h*128 for r in range(7) for h in range(2)])
    a(f"s_and_b32 {s(S_SH)}, {s(S_WAVE)}, 1\ns_lshr_b32 {s(S_UH)}, {s(S_WAVE)}, 1")
    a.c("x fragment address: (64*sh + s16)*128 + ((kg ^ ((s16>>1)&7))*16)")
    a("v_and_b32 v10, 15, v0\nv_lshrrev_b32 v11, 4, v0\nv_lshrrev_b32 v12, 1, v10\nv_xor_b32 v12, v12, v11\nv_lshlrev_b32 v12, 4, v12")
    a(f"v_lshl_add_u32 {v(V_XA0)}, v10, 7, v12\ns_lshl_b32 {s(S_T0)}, {s(S_SH)}, 13\nv_add_u32 {v(V_XA0)}, {s(S_T0)}, {v(V_XA0)}")
    a(f"v_xor_b32 {v(V_XA1)}, 64, {v(V_XA0)}")
    a.c("W fragment address: 16384 + blk*4096 + kg*512 + r*64 + ((h^(kg&1))*32) + c*8")
    a("v_lshlrev_b32 v12, 9, v11\nv_bfe_u32 v13, v0, 2, 2\nv_lshl_add_u32 v12, v13, 6, v12\nv_and_b32 v13, 3, v0\nv_lshl_add_u32 v12, v13, 3, v12")
    a("v_and_b32 v13, 1, v11\nv_lshl_add_u32 v12, v13, 5, v12")
    a(f"s_mul_i32 {s(S_T0)}, {s(S_UH)}, {s(S_NBLK)}")
    for u in range(3):
        a(f"s_add_u32 {s(S_T1)}, {s(S_T0)}, {u}\ns_and_b32 {s(S_T2)}, {s(S_T1)}, 1\ns_lshl_b32 {s(S_T2)}, {s(S_T2)}, 5")
        a(f"s_lshr_b32 {s(S_T1)}, {s(S_T1)}, 1\ns_lshl_b32 {s(S_T1)}, {s(S_T1)}, 12\ns_add_u32 {s(S_T1)}, {s(S_T1)}, 16384")
        a(f"v_xor_b32 {v(V_W+u)}, {s(S_T2)}, v12\nv_add_u32 {v(V_W+u)}, {s(S_T1)}, {v(V_W+u)}")
    g2_setup(a)
    ep_setup(a)
    for i in range(48):
        a(f"v_pk_mov_b32 {v(ACC+2*i,2)}, 0, 0")
    for i in range(5):
        a(f"v_mov_b32 {v(V_XC0+i)}, {v(V_XA0+i)}")
    a(f"s_mov_b32 {s(S_IT)}, 0\ns_mov_b32 {s(S_SLOT)}, 0")
    a(f"v_mov_b32 {v(V_LW)}, {L_CNT}\nv_mov_b32 {v(V_FL+1)}, {L_CNT}\nv_mov_b32 {v(V_FC)}, 1\ns_lshl_b32 {s(S_T0)}, {s(S_WAVE)}, 2\ns_add_u32 {s(S_T0)}, {s(S_T0)}, {L_CNT + W_FREE}\nv_mov_b32 {v(V_FL+2)}, {s(S_T0)}")
    a.c("vcc != 0 marks a two-block tile")
    a(f"s_cmp_eq_u32 {s(S_NBLK)}, 2\ns_cselect_b64 vcc, -1, 0")
    if opt("SPF", 0):
        spf(a, R_K, S_XO, [r*F*2 + h*128 for r in range(7, 16) for h in range(2)])
    stamp(a, 1)
    a("s_waitcnt vmcnt(0)")
    a(f"ds_write_b32 {v(V_FL+2)}, {v(V_FC)} offset:{W_C0 - W_FREE}")
    lds_min_wait(a, V_LW, W_C0, 4, 1, 196)
    stamp(a, 2)
    for l in g1_reads(F0, 0, ['x', 0, 1, 2]):
        a(l)
    a("s_waitcnt lgkmcnt(0)")
    a("g1_loop:")
    a(f"s_add_u32 {s(S_SLOT)}, {s(S_SLOT)}, {SLOT}\ns_cmp_eq_u32 {s(S_SLOT)}, {NSLOT*SLOT}\ns_cselect_b32 {s(S_SLOT)}, 0, {s(S_SLOT)}")
    a(f"s_add_u32 {s(S_IT)}, {s(S_IT)}, 1\ns_and_b32 {s(S_T2)}, {s(S_IT)}, 7")
    g1_step_a(a)
    if ITST:
        it_issue(a)
        a("s_waitcnt lgkmcnt(0)")
        it_take(a, 0)
    g1_step_b(a)
    stamp(a, 3)


def wd_dma(i, rings=1):
    sl = SLOTMAP[i % NRW]
    ops = []
    n = 4 * rings
    for q in range(n):
        pre = f"s_lshl_b32 {s(S_T3)}, {s(S_DK)}, 15\ns_add_u32 {s(S_T3)}, {s(S_T3)}, {s(S_DO)}\n" if q == 0 else ""
        inc = 8192 if q != 4 else 2*NSTEP*32768 - 3*8192
        mid = "s_nop 0" if q == 0 else f"s_add_u32 {s(S_T3)}, {s(S_T3)}, {inc}"
        post = f"\ns_add_u32 {s(S_DK)}, {s(S_DK)}, 1\ns_cmp_eq_u32 {s(S_DK)}, 11\ns_cselect_b32 {s(S_DK)}, 0, {s(S_DK)}" if q == n - 1 else ""
        m0 = f"{s(S_RB if q >> 2 else S_RA)}, {sl*4096 + (q&3)*1024}" if sl < 2 else f"{s(S_KC)}, {(sl-2)*16384 + (q&3)*1024 + (q>>2)*8192}"
        ops.append(pre + f"s_add_u32 m0, {m0}\n{mid}\n"
                   f"buffer_load_dwordx4 {v(G_WD)}, {s(R_WD,4)}, {s(S_T3)} offen {CFD} lds" + post)
    return ops


def h_loads(i):
    hb = G_H + (i % NHB) * 16
    pre = (f"s_lshl_b32 {s(S_T1)}, {s(S_HK)}, 11\ns_add_u32 {s(S_T1)}, {s(S_T1)}, {s(S_HO)}\n"
           f"s_cmp_eq_u32 {s(S_HK)}, {s(S_KEND)}\ns_cselect_b32 {s(S_T1)}, {OOB:#x}, {s(S_T1)}\n")
    post = f"\ns_add_u32 {s(S_HK)}, {s(S_HK)}, 1\ns_cmp_eq_u32 {s(S_HK)}, 11\ns_cselect_b32 {s(S_HK)}, 0, {s(S_HK)}"
    ld = lambda r, off: f"buffer_load_dwordx4 {v(r,4)}, {v(G_L16)}, {s(R_WS,4)}, {s(S_T1)} offen offset:{off} sc1"
    return [pre + ld(hb, 0), ld(hb+4, 1024), f"s_add_u32 {s(S_T1)}, {s(S_T1)}, {NU*1024}\n" + ld(hb+8, 0), ld(hb+12, 1024) + post]


S_H0, S_H1 = S_XO, S_WO
E_A, E_ST = 208, 144


def ep_setup(a):
    a.c("epilogue addresses: row constants, column sums; HF offset = ((4*mi + 2*sh + pp)*86 + 2*fb0 + uu)*1024 + lane*16")
    a(f"v_and_b32 v10, 15, v0\nv_lshlrev_b32 v10, 4, v10\ns_lshl_b32 {s(S_T0)}, {s(S_SH)}, 10\ns_add_u32 {s(S_T0)}, {s(S_T0)}, {L_ST}\nv_add_u32 {v(E_A)}, {s(S_T0)}, v10")
    a(f"s_mul_i32 {s(S_T1)}, {s(S_UH)}, {s(S_NBLK)}\ns_lshl_b32 {s(S_T0)}, {s(S_T1)}, 6\ns_add_u32 {s(S_T0)}, {s(S_T0)}, {L_CS}")
    a(f"v_and_b32 v11, 48, v0\nv_add_u32 {v(E_A+1)}, {s(S_T0)}, v11")
    a(f"s_lshl_b32 {s(S_T0)}, {s(S_MI)}, 1\ns_add_u32 {s(S_T0)}, {s(S_T0)}, {s(S_SH)}\ns_mul_i32 {s(S_T0)}, {s(S_T0)}, {2*NU}")
    a(f"s_lshl_b32 {s(S_T2)}, {s(S_FB0)}, 1\ns_add_u32 {s(S_T0)}, {s(S_T0)}, {s(S_T2)}\ns_add_u32 {s(S_T0)}, {s(S_T0)}, {s(S_T1)}\ns_lshl_b32 {s(S_H0)}, {s(S_T0)}, 10")
    a(f"s_add_u32 {s(S_H1)}, {s(S_H0)}, {NU*1024}")
    a(f"s_lshl_b32 {s(S_T0)}, {s(S_SH)}, 2\ns_add_u32 {s(S_T0)}, {s(S_T0)}, {L_CNT}\nv_mov_b32 v15, {s(S_T0)}")


def g1_epilogue(a):
    VST, VCS, T = 112, 216, 168
    top, ok = a.label("ga"), a.label("ga_ok")
    a(f"{top}:")
    a(f"ds_read_b32 v14, {v(V_LW)} offset:{W_GATH}")
    for sb in range(4):
        a(f"ds_read_b128 {v(E_ST+4*sb,4)}, {v(E_A)} offset:{sb*256}")
    for u in range(3):
        for mat in range(2):
            a(f"ds_read_b128 {v(VCS+4*(u*2+mat),4)}, {v(E_A+1)} offset:{mat*512+u*64}")
    a(f"ds_read_b32 v1, {v(V_LW)} offset:{W_NON}")
    a(f"v_mov_b32 v13, 1\ns_waitcnt lgkmcnt(7)\nv_readfirstlane_b32 {s(S_T0)}, v14")
    for i in range(4):
        a(f"v_mov_b32 {v(VST+2*i)}, {v(E_ST+i)}\nv_mov_b32 {v(VST+2*i+1)}, {v(E_ST+i)}")
    a(f"s_cmp_ge_u32 {s(S_T0)}, 2\ns_cbranch_scc1 {ok}")
    a(f"s_add_u32 {s(S_SPIN)}, {s(S_SPIN)}, 1\ns_cmp_lt_u32 {s(S_SPIN)}, {LSPIN_MAX}\ns_cbranch_scc1 {top}")
    a(f"{ok}:")
    stamp(a, 4)
    for i in range(4, 16):
        a(f"v_mov_b32 {v(VST+2*i)}, {v(E_ST+i)}\nv_mov_b32 {v(VST+2*i+1)}, {v(E_ST+i)}")
    a("s_waitcnt lgkmcnt(0)")
    a(f"v_readfirstlane_b32 {s(S_NON)}, v1")
    lab, lab2 = a.label("ep_two"), a.label("ep_done")
    if opt("EPST", 0): stamp(a, 3)

    def group(u, pp):
        out = []
        o = T + 32 + 4 * pp
        pairs = [(2*pp + (q >> 1), q & 1, T + 8*q) for q in range(4)]
        def each(f):
            for sb, h, t in pairs:
                g, up, st = acc(u, 0, sb) + 2*h, acc(u, 1, sb) + 2*h, VST + 8*sb
                cg, cu = VCS + 4*(u*2) + 2*h, VCS + 4*(u*2+1) + 2*h
                out.append(f(g, up, st, cg, cu, t))
        each(lambda g, up, st, cg, cu, t: f"v_pk_fma_f32 {v(g,2)}, {v(cg,2)}, {v(st,2)}, {v(g,2)} neg_lo:[0,1,0] neg_hi:[0,1,0]")
        each(lambda g, up, st, cg, cu, t: f"v_pk_mul_f32 {v(t,2)}, {v(g,2)}, {v(g,2)}")
        each(lambda g, up, st, cg, cu, t: f"v_pk_fma_f32 {v(t,2)}, {v(t,2)}, {v(st+4,2)}, {v(st+2,2)}")
        each(lambda g, up, st, cg, cu, t: f"v_pk_mul_f32 {v(t,2)}, {v(t,2)}, {v(g,2)}")
        each(lambda g, up, st, cg, cu, t: f"v_exp_f32 {v(t)}, {v(t)}\nv_exp_f32 {v(t+1)}, {v(t+1)}")
        each(lambda g, up, st, cg, cu, t: f"v_pk_fma_f32 {v(up,2)}, {v(cu,2)}, {v(st,2)}, {v(up,2)} neg_lo:[0,1,0] neg_hi:[0,1,0]")
        each(lambda g, up, st, cg, cu, t: f"v_pk_fma_f32 {v(t,2)}, {v(t,2)}, {v(st+6,2)}, {v(st+6,2)}")
        each(lambda g, up, st, cg, cu, t: f"v_rcp_f32 {v(t)}, {v(t)}\nv_rcp_f32 {v(t+1)}, {v(t+1)}")
        each(lambda g, up, st, cg, cu, t: f"v_pk_mul_f32 {v(g,2)}, {v(g,2)}, {v(up,2)}")
        each(lambda g, up, st, cg, cu, t: f"v_pk_mul_f32 {v(t,2)}, {v(t,2)}, {v(g,2)}")
        for q, (sb, h, t) in enumerate(pairs):
            out.append(f"v_cvt_pk_bf16_f32 {v(o+q)}, {v(t)}, {v(t+1)}")
        if not opt("NOST", 0):
            out.append(f"buffer_store_dwordx4 {v(o,4)}, {v(G_L16)}, {s(R_WS,4)}, {s(S_H1 if pp else S_H0)} offen offset:{u*1024} {'sc1' if not opt('PLST', 0) else ''}")
        return out

    def stage_flag(n, W_WD=W_WD):
        ok = a.label("wd_ok")
        a(f"s_waitcnt lgkmcnt(0)\nv_readfirstlane_b32 {s(S_T0)}, v14\ns_nop 0\ns_cmp_ge_u32 {s(S_T0)}, {n}\ns_cbranch_scc1 {ok}")
        lds_min_wait(a, 15, W_WD, 1, n, 14)
        a(f"{ok}:")

    rd_flag = f"ds_read_b32 v14, v15 offset:{W_WD}"
    a.c("as a unit's accumulators retire they take two Wd steps; the freed ring slots are refilled")
    for l in group(0, 0) + [f"ds_read_b32 v14, v15 offset:{W_WE if WDE else W_WD}"] + group(0, 1):
        a(l)
    if opt("EPST", 0): stamp(a, 1)
    if not opt("NOTR", 0):
        stage_flag(1, W_WE if WDE else W_WD)
    if opt("EPST", 0): stamp(a, 2)
    for l in interleave(group(1, 0), [] if opt("NOTR", 0) else g2_tr(0) + g2_tr(1), 0, 2):
        a(l)
    a(rd_flag)
    for l in group(1, 1):
        a(l)
    a(f"s_cbranch_vccnz {lab}")
    for l in group(2, 0) + [rd_flag] + group(2, 1):
        a(l)
    a(f"{lab}:")
    a.c("release the conv waves")
    if not opt("CEARLY", 0):
        a("s_mov_b64 exec, 1\nds_add_u32 v12, v13\ns_mov_b64 exec, -1")
    stamp(a, 5)
    a.c("publish: F3[(2mi + sh)*32 + ni*2 + uh]")
    a(f"s_lshl_b32 {s(S_T0)}, {s(S_MI)}, 1\ns_add_u32 {s(S_T0)}, {s(S_T0)}, {s(S_SH)}\ns_lshl_b32 {s(S_T0)}, {s(S_T0)}, 4\ns_add_u32 {s(S_T0)}, {s(S_T0)}, {s(S_NI)}")
    a(f"s_lshl_b32 {s(S_T0)}, {s(S_T0)}, 1\ns_add_u32 {s(S_T0)}, {s(S_T0)}, {s(S_UH)}\ns_lshl_b32 {s(S_T0)}, {s(S_T0)}, 7\ns_add_u32 {s(S_T2)}, {s(S_T0)}, {WS_F3:#x}")
    a("s_waitcnt lgkmcnt(0)")
    for l in wd_dma(7) + wd_dma(8):
        a(l)
    a("s_waitcnt vmcnt(8)")
    flag_store(a, S_T2, 10, 11)
    stamp(a, 6)
    stage_flag(2)
    for l in g2_tr(2) + g2_tr(3):
        a(l)
    a("s_waitcnt lgkmcnt(0)")
    for l in wd_dma(9) + wd_dma(10):
        a(l)


def g2_tr(i):
    wf = G_WF + (i % NWF) * 16
    sl = SLOTMAP[i % NRW]
    base, off = (G_TR0, sl*4096) if sl < 2 else (G_TR5, 0) if sl == 6 else (G_TR, (sl-2)*16384)
    return [f"ds_read_b64_tr_b16 {v(wf+4*db+2*t,2)}, {v(base+db)} offset:{off + t*2048}" for db in range(4) for t in range(2)]


def g2_swaps(i, p):
    hb = G_H + (i % NHB) * 16
    return [f"v_swap_b32 {v(hb+8*p+2+k)}, {v(hb+8*p+4+k)}" for k in range(2)]


def g2_main(a):
    a(f"s_setprio {opt('PRG', 2)}")
    if opt("HT", 0):
        top, done = a.label("hp"), a.label("hp_ok")
        a(f"s_mov_b32 {s(S_SPIN)}, 0\ns_mov_b32 {s(S_EX)}, -1\ns_mov_b32 {s(S_EX+1)}, 0xfff")
        a(f"{top}:")
        a(f"buffer_load_dword v10, {v(G_FL)}, {s(R_WS,4)}, 0 offen sc1")
        a("s_waitcnt vmcnt(0)")
        a(f"v_cmp_ne_u32 vcc, {s(S_NON)}, v10")
        a(f"s_cbranch_vccz {done}")
        a(f"s_andn2_b64 exec, {s(S_EX,2)}, vcc\ns_and_b64 {s(S_EX,2)}, {s(S_EX,2)}, vcc")
        skip = a.label("hp_s")
        a(f"s_cbranch_execz {skip}")
        a(f"buffer_load_dword v11, {v(G_HT)}, {s(R_WS,4)}, {s(S_HO)} offen sc1")
        a(f"{skip}:")
        a("s_mov_b64 exec, -1\ns_sleep 1")
        a(f"s_add_u32 {s(S_SPIN)}, {s(S_SPIN)}, 1\ns_cmp_lt_u32 {s(S_SPIN)}, {SPIN_MAX}\ns_cbranch_scc1 {top}")
        a(f"{done}:")
    else:
        poll(a, G_FL, 10)
    stamp(a, 7)
    q = VQ(a)
    def hq(i):
        q.add(("h", i, 0), 2); q.add(("h", i, 1), 2)
    for i in range(NHB - 1):
        for op in h_loads(i):
            a(op)
        hq(i)
    lds_min_wait(a, 15, W_WD, 1, 3, 14)
    if opt("G2ST", 0): stamp(a, 1)
    q.wait(("h", 0, 0))
    if opt("G2ST", 0): stamp(a, 2)
    for l in g2_swaps(0, 0):
        a(l)
    a("s_nop 1")
    for i in range(NSTEP):
        if opt("G2ST", 0) and i in (2, 4, 6, 8):
            stamp(a, 2 + i // 2)
        if i == opt("HIS", 3):
            lds_inc(a, V_LW, 13, W_HI)
        wf, hb = G_WF + (i % NWF) * 16, G_H + (i % NHB) * 16
        ld = h_loads(i + NHB - 1) if i + NHB - 1 < NSTEP else []
        tr = g2_tr(i + 2) if NWF <= i + 2 < NSTEP else []
        n = 0
        for p in range(2):
            for db in range(4):
                for sb in (2*p, 2*p + 1):
                    c = G_ACC + (db * 4 + sb) * 4
                    a(f"v_mfma_f32_16x16x32_bf16 {v(c,4)}, {v(wf+4*db,4)}, {v(hb+4*sb,4)}, {v(c,4) if i else 0}")
                    n += 1
                    if n == 4:
                        q.wait(("h", i, 1))
                        for l in g2_swaps(i, 1):
                            a(l)
                    if n in (1, 5, 8, 11) and ld:
                        a(ld.pop(0))
                        q.add(("h", i + NHB - 1, 0 if len(ld) >= 2 else 1), 1)
                    if 5 <= n <= 12 and tr:
                        a(tr.pop(0))
                    if n == 13 and i + 1 < NSTEP:
                        q.wait(("h", i + 1, 0))
                        for l in g2_swaps(i + 1, 0):
                            a(l)
                        if i + 1 >= NWF:
                            a(f"s_waitcnt lgkmcnt({8 if i + 2 < NSTEP else 0})")
    stamp(a, 8)
    a.c("partial tile -> own ring slots 1..4: sb*16384 + w*4096 + s16*256 + ((4db + g) ^ (s16&7))*16")
    a(f"v_and_b32 v8, 15, v0\nv_lshrrev_b32 v9, 4, v0\nv_and_b32 v10, 7, v0\nv_xor_b32 v9, v9, v10\nv_lshlrev_b32 v9, 4, v9\nv_lshl_add_u32 v8, v8, 8, v9\nv_add_u32 v8, {s(S_KC)}, v8\nv_xor_b32 v9, 64, v8")
    a("s_nop 0")
    for db in range(4):
        for sb in range(4):
            a(f"ds_write_b128 {'v9' if db & 1 else 'v8'}, {v(G_ACC+(db*4+sb)*4,4)} offset:{sb*16384 + (db>>1)*128}")
    a("s_waitcnt lgkmcnt(0)")
    stamp(a, 9)
    a("s_barrier")


VB_X2 = 18


def dma_chunk(a):
    a(f"s_add_u32 {s(S_T1)}, {s(S_UH)}, {s(S_IT)}\ns_and_b32 {s(S_T1)}, {s(S_T1)}, 7")
    a(f"s_lshl_b32 {s(S_T0)}, {s(S_T1)}, 7\ns_add_u32 {s(S_T0)}, {s(S_T0)}, {s(S_XO)}")
    a(f"s_mul_i32 {s(S_T1)}, {s(S_T1)}, {64*F*2}\ns_add_u32 {s(S_HO)}, {s(S_WO)}, {s(S_T1)}\ns_add_u32 {s(S_DO)}, {s(S_WO2)}, {s(S_T1)}")
    for i in range(16):
        a(f"s_add_u32 m0, {s(S_SLOT)}, {i*1024}")
        a(f"s_add_u32 {s(S_T0)}, {s(S_T0)}, 8192" if i else "s_nop 0")
        a(f"buffer_load_dwordx4 {v(VB_X2 if i & 1 else VB_X)}, {s(R_X,4)}, {s(S_T0)} offen {CFX} lds")
    for k4 in range(4):
        if k4:
            a(f"s_add_u32 {s(S_HO)}, {s(S_HO)}, {16*F*2}\ns_add_u32 {s(S_DO)}, {s(S_DO)}, {16*F*2}")
        for blk in range(3):
            for mat in range(2):
                a(f"s_add_u32 m0, {s(S_SLOT)}, {16384 + (mat*3+blk)*4096 + k4*1024 - 64*blk}")
                a("s_nop 0")
                a(f"buffer_load_dwordx4 {v(VB_W)}, {s(R_WU if mat else R_WG,4)}, {s(S_DO if blk == 2 else S_HO)} offen offset:{64*blk} {CFW} lds")


GG = 224


def loader(a):
    a(f"s_setprio {opt('PRL', 2)}")
    a.c("loader w streams chunks 1+w, 3+w, ..")
    a(f"s_lshl_b32 {s(S_XO)}, {s(S_MI)}, 17\ns_lshl_b32 {s(S_WO)}, {s(S_FB0)}, 6")
    a(f"s_cmp_eq_u32 {s(S_NBLK)}, 3\ns_cselect_b32 {s(S_WO2)}, {s(S_WO)}, {OOB:#x}")
    a(f"s_lshl_b32 {s(S_T0)}, {s(S_WB)}, 6\nv_xor_b32 {v(VB_X)}, {s(S_T0)}, {v(VB_X)}\nv_xor_b32 {v(VB_X2)}, 64, {v(VB_X)}")
    a(f"s_add_u32 {s(S_IT)}, {s(S_WB)}, 1\ns_mul_i32 {s(S_SLOT)}, {s(S_IT)}, {SLOT}\ns_mov_b32 {s(S_SH)}, {s(S_WB)}")
    a(f"s_lshl_b32 {s(S_T0)}, {s(S_WB)}, 2\ns_add_u32 {s(S_T0)}, {s(S_T0)}, {L_CNT + W_FULL}\nv_mov_b32 v10, {s(S_T0)}")
    lds_min_wait(a, C_CNT, W_ISS, 1, s(S_WB), 20)
    a("ld_loop:")
    dma_chunk(a)
    a(f"v_mov_b32 v16, {s(S_IT)}")
    a(f"s_mov_b64 exec, 1\nds_max_u32 {v(C_CNT)}, v16 offset:{W_ISS}\ns_mov_b64 exec, -1")
    if ITST:
        it_issue(a)
        a("s_waitcnt lgkmcnt(0)")
        it_take(a, 0)
    a(f"s_sub_u32 {s(S_SLOT)}, {s(S_SLOT)}, {SLOT}\ns_cselect_b32 {s(S_SLOT)}, {2*SLOT}, {s(S_SLOT)}")
    a(f"s_cmp_ge_u32 {s(S_IT)}, 6\ns_cbranch_scc1 ld_done")
    a("s_waitcnt vmcnt(0)")
    a("ds_write_b32 v10, v16")
    if ITST:
        it_issue(a)
        a("s_waitcnt lgkmcnt(0)")
        it_take(a, 16)
    lds_min_wait(a, C_CNT, W_FREE, 4, s(S_IT), 20)
    if ITST:
        it_issue(a)
        a("s_waitcnt lgkmcnt(0)")
        it_take(a, 48)
    a(f"s_add_u32 {s(S_IT)}, {s(S_IT)}, 2")
    a("s_branch ld_loop")
    a("ld_done:")
    lstamp(a, 1)
    wd_setup(a, 2 if WDE else 0)
    a(f"s_lshl_b32 {s(S_T0)}, {s(S_WB)}, 2\nv_add_u32 v11, {s(S_T0)}, {v(C_CNT)}\nv_mov_b32 v17, 2")
    a("s_waitcnt vmcnt(0)")
    a("ds_write_b32 v10, v16")
    if KVL:
        return loader_late(a)
    lds_min_wait(a, C_CNT, W_ISS, 1, 7, 20)
    lds_min_wait(a, C_CNT, W_HP, 1, 2, 20)
    if not WDE:
        for op in wd_dma(0, 2) + wd_dma(1, 2):
            a(op)
    lstamp(a, 2)
    lds_min_wait(a, C_CNT, W_FREE, 4, 7, 20)
    for i in (2, 3):
        for op in wd_dma(i, 2):
            a(op)
    a("s_waitcnt vmcnt(16)")
    a(f"ds_write_b32 v11, {v(C_ONE)} offset:{W_WD}")
    lstamp(a, 3)
    lds_min_wait(a, C_CNT, W_FREE, 4, 8, 20)
    TH = opt("WDTH", 8)
    n = 0
    for i in (4, 5, 6):
        for op in wd_dma(i, 2):
            if not opt("NOWD", 0):
                a(op)
            n += 1
            if n % 4 == 0 and (TH or n == 8):
                a(f"s_waitcnt vmcnt({min(TH, n) if TH else 8})")
            if n == 8:
                a(f"ds_write_b32 v11, v17 offset:{W_WD}")
    a(f"ds_read_b32 v1, {v(C_CNT)} offset:{W_NON}")
    final_loads(a)
    a("s_waitcnt lgkmcnt(0)")
    a(f"v_readfirstlane_b32 {s(S_NON)}, v1")


def loader_late(a):
    lds_min_wait(a, C_CNT, W_FREE, 4, 7, 20)
    for op in wd_dma(0, 2) + wd_dma(1, 2):
        a(op)
    lstamp(a, 2)
    lds_min_wait(a, C_CNT, W_FREE, 4, 8, 20)
    for op in wd_dma(2, 2):
        a(op)
    a("s_waitcnt vmcnt(8)")
    a(f"ds_write_b32 v11, {v(C_ONE)} offset:{W_WD}")
    for op in wd_dma(3, 2) + wd_dma(4, 2):
        a(op)
    a("s_waitcnt vmcnt(8)")
    a(f"ds_write_b32 v11, v17 offset:{W_WD}")
    lstamp(a, 3)
    lds_min_wait(a, C_CNT, W_HP, 1, 2, 20)
    for op in wd_dma(5, 2) + wd_dma(6, 2):
        a(op)
    a(f"ds_read_b32 v1, {v(C_CNT)} offset:{W_NON}")
    final_loads(a)
    a("v_mov_b32 v17, 3\ns_waitcnt vmcnt(2) lgkmcnt(0)")
    a(f"ds_write_b32 v11, v17 offset:{W_WD}")
    a(f"v_readfirstlane_b32 {s(S_NON)}, v1")


VS, VKV, VSK = 144, 24, 64
ONE = 192


def round_bf16(a, r):
    a(f"v_cvt_pk_bf16_f32 {v(r)}, {v(r)}, {v(r)}\nv_lshlrev_b32 {v(r)}, 16, {v(r)}")


def stats_loads(a):
    a(f"s_lshl_b32 {s(S_T0)}, {s(S_TI)}, 1\ns_add_u32 {s(S_T0)}, {s(S_T0)}, {s(S_SH)}\ns_lshl_b32 {s(S_T0)}, {s(S_T0)}, 12")
    a("v_bfe_u32 v5, v0, 2, 2\nv_lshlrev_b32 v5, 10, v5\nv_and_b32 v6, 3, v0\nv_lshl_add_u32 v5, v6, 4, v5\nv_lshrrev_b32 v6, 4, v0\nv_lshl_add_u32 v5, v6, 6, v5")
    for r in range(4):
        a(f"buffer_load_dwordx4 {v(VS+4*r,4)}, v5, {s(R_X,4)}, {s(S_T0)} offen offset:{r*256} {CFS}")


def stats(a):
    G, O, R = 72, 76, 80
    for r in range(4):
        a(f"v_mfma_f32_16x16x32_bf16 {v(G,4)}, {v(VS+4*r,4)}, {v(VS+4*r,4)}, {v(G,4) if r else 0}")
        a(f"v_mfma_f32_16x16x32_bf16 {v(O,4)}, {v(ONE,4)}, {v(VS+4*r,4)}, {v(O,4) if r else 0}")
    a.c("diagonal element of lane (n, g = n>>2) is register n&3")
    a(f"v_and_b32 v6, 3, v0\nv_cmp_eq_u32 vcc, 1, v6\nv_cmp_eq_u32 {s(S_EX,2)}, 2, v6\nv_cmp_eq_u32 {s(S_XO,2)}, 3, v6")
    a(f"s_lshl_b32 {s(S_T0)}, {s(S_TI)}, 1\ns_add_u32 {s(S_T0)}, {s(S_T0)}, {s(S_SH)}\ns_lshl_b32 {s(S_T0)}, {s(S_T0)}, 6\ns_add_u32 {s(S_T0)}, {s(S_T0)}, {WS_ST:#x}")
    a("v_and_b32 v5, 48, v0\ns_nop 0")
    a(f"v_cndmask_b32 {v(G)}, {v(G)}, {v(G+1)}, vcc\nv_cndmask_b32 {v(G)}, {v(G)}, {v(G+2)}, {s(S_EX,2)}\nv_cndmask_b32 {v(G)}, {v(G)}, {v(G+3)}, {s(S_XO,2)}")
    for qp in ("[1,0,3,2]", "[2,3,0,1]"):
        a("s_nop 0")
        a(f"v_add_f32_dpp {v(O)}, {v(O)}, {v(O)} quad_perm:{qp} row_mask:0xf bank_mask:0xf")
        a(f"v_add_f32_dpp {v(G)}, {v(G)}, {v(G)} quad_perm:{qp} row_mask:0xf bank_mask:0xf")
    M, K1, K2, I2 = R, R + 1, R + 2, R + 3
    a(f"v_mul_f32 {v(M)}, {f32bits(1/512):#x}, {v(O)}\nv_mul_f32 {v(K2)}, {f32bits(1/512):#x}, {v(G)}")
    a(f"v_fma_f32 {v(K2)}, -{v(M)}, {v(M)}, {v(K2)}\nv_max_f32 {v(K2)}, 0, {v(K2)}")
    round_bf16(a, M)
    round_bf16(a, K2)
    a(f"v_add_f32 {v(K2)}, {f32bits(1e-5):#x}, {v(K2)}")
    round_bf16(a, K2)
    a(f"v_sqrt_f32 {v(K2)}, {v(K2)}\ns_nop 0")
    round_bf16(a, K2)
    a(f"v_rcp_f32 {v(K1)}, {v(K2)}\nv_mul_f32 {v(I2)}, {v(K2)}, {v(K2)}")
    a(f"v_mul_f32 {v(K2)}, {v(K1)}, {v(K1)}\nv_mul_f32 {v(K2)}, {v(K2)}, {v(K1)}")
    a(f"v_mul_f32 {v(K2)}, {f32bits(C2):#x}, {v(K2)}\nv_mul_f32 {v(K1)}, {f32bits(C1):#x}, {v(K1)}")
    a.c("row g is complete in lane 20g")
    a(f"s_mov_b32 {s(S_EX)}, 0x00100001\ns_mov_b32 {s(S_EX+1)}, 0x10000100\ns_mov_b64 exec, {s(S_EX,2)}")
    a(f"buffer_store_dwordx4 {v(R,4)}, v5, {s(R_WS,4)}, {s(S_T0)} offen sc1")
    a("s_mov_b64 exec, -1")


L_VST = 155648
NT = os.environ.get("CFK", "nt") + " " if opt("NT", 1) else ""
NTT = " nt" if opt("NTT", 0) else ""


def kv_dma(a):
    a("v_lshrrev_b32 v5, 3, v0\nv_lshlrev_b32 v5, 10, v5\nv_and_b32 v6, 7, v0\nv_lshl_add_u32 v5, v6, 4, v5")
    a(f"v_add_u32 v69, {s(S_DO)}, v5")
    a.c("rows above the start of the sequence are out of range and read as zero")
    a("v_subrev_u32 v7, 0xc00, v69\nv_cmp_gt_u32 vcc, 0xc00, v69\nv_mov_b32 v68, 0x7ff00000\ns_nop 1\nv_cndmask_b32 v7, v7, v68, vcc")
    a(f"s_mul_i32 {s(S_T0)}, {s(S_SH)}, {64*KVT_STR}\ns_add_u32 {s(S_T0)}, {s(S_T0)}, {L_KVT}")
    a(f"s_lshl_b32 {s(S_T2)}, {s(S_SH)}, 12\ns_add_u32 {s(S_T2)}, {s(S_T2)}, {L_VST}")
    for i in range(5):
        a(f"s_add_u32 m0, {s(S_T0)}, {1024*i}\ns_mov_b32 {s(S_T1)}, {max(8192*i - 3072, 0)}")
        a(f"buffer_load_dwordx4 {'v69' if i else 'v7'}, {s(R_K,4)}, {s(S_T1)} offen {NT}lds")
    for i in range(4):
        a(f"s_add_u32 m0, {s(S_T2)}, {1024*i}\ns_mov_b32 {s(S_T1)}, {8192*i}")
        a(f"buffer_load_dwordx4 v69, {s(R_V,4)}, {s(S_T1)} offen {NT}lds")
    a("v_and_b32 v6, 31, v0\nv_lshrrev_b32 v5, 5, v0\nv_lshlrev_b32 v5, 10, v5\nv_lshl_add_u32 v5, v6, 2, v5")
    a(f"v_add_u32 v68, {s(S_T0)}, v5\nv_add_u32 v69, {s(S_T2)}, v5")
    a(f"s_and_b32 {s(S_T1)}, {s(S_TI)}, 7\ns_lshl_b32 {s(S_T1)}, {s(S_T1)}, 9\nv_lshlrev_b32 v6, 4, v6")
    a(f"buffer_load_dwordx4 {v(VSK,4)}, v6, {s(R_SK,4)}, {s(S_T1)} offen")


def kv_reads(a):
    for ps in range(2):
        b = VKV + 19 * ps
        for i in range(11):
            a(f"ds_read_b32 {v(b+i)}, v68 offset:{ps*2048 + i*128}")
        for i in range(8):
            a(f"ds_read_b32 {v(b+11+i)}, v69 offset:{ps*2048 + i*128}")


def touch_x(a, p, vd):
    a(f"s_lshl_b32 {s(S_T0)}, {s(S_MI)}, 2\ns_and_b32 {s(S_T1)}, {s(S_NI)}, 3\ns_add_u32 {s(S_T0)}, {s(S_T0)}, {s(S_T1)}\ns_lshl_b32 {s(S_T0)}, {s(S_T0)}, 15")
    a("v_and_b32 v5, 31, v0\nv_lshrrev_b32 v6, 5, v0\nv_lshlrev_b32 v6, 7, v6\nv_lshl_add_u32 v5, v5, 10, v6")
    for q in p:
        a(f"buffer_load_dword {v(vd)}, v5, {s(R_X,4)}, {s(S_T0)} offen offset:{128*q}{NTT}")


def touch_w(a, p, srds, vd):
    a(f"s_and_b32 {s(S_T0)}, {s(S_MI)}, 7\ns_add_u32 {s(S_T0)}, {s(S_T0)}, {8*p}\ns_mul_i32 {s(S_T0)}, {s(S_T0)}, {8*F*2}\ns_lshl_b32 {s(S_T1)}, {s(S_FB0)}, 6\ns_add_u32 {s(S_T0)}, {s(S_T0)}, {s(S_T1)}")
    a(f"s_add_u32 {s(S_T1)}, {s(S_NBLK)}, 4")
    a(f"v_lshrrev_b32 v5, 4, v0\nv_bfe_u32 v6, v0, 1, 3\nv_lshl_add_u32 v5, v5, 6, v6\nv_mul_u32_u24 v5, {F*2}, v5\nv_and_b32 v6, 1, v0\nv_lshl_add_u32 v5, v6, {s(S_T1)}, v5")
    for r in srds:
        a(f"buffer_load_dword {v(vd)}, v5, {s(r,4)}, {s(S_T0)} offen{NTT}")
        if opt("TOUCH", 0) == 2:
            a(f"s_add_u32 {s(S_T0)}, {s(S_T0)}, {256*F*2}")
            a(f"buffer_load_dword {v(vd)}, v5, {s(r,4)}, {s(S_T0)} offen{NTT}")


KU, VU, KW, KO, KT = 72, 94, 110, 120, 128


def kv_taps(a):
    for j in range(4):
        for ch in range(2):
            src = VSK + 2*ch + (j >> 1)
            a(f"v_and_b32 {v(KW+2*j+ch)}, {s(S_C)}, {v(src)}" if j & 1 else f"v_lshlrev_b32 {v(KW+2*j+ch)}, 16, {v(src)}")
    a.c("KVT row = 2*(l&31) + ch, 16-B piece = 3 - (2*pass + l>>5)")
    a(f"v_and_b32 v70, 31, v0\nv_mul_u32_u24 v70, {2*KVT_STR}, v70\nv_lshrrev_b32 v5, 5, v0\nv_lshlrev_b32 v5, 4, v5\nv_sub_u32 v70, v70, v5")
    a(f"s_mul_i32 {s(S_T0)}, {s(S_SH)}, {64*KVT_STR}\ns_add_u32 {s(S_T0)}, {s(S_T0)}, {L_KVT + 16}\nv_add_u32 v70, {s(S_T0)}, v70")


def kv_compute(ps):
    b = VKV + 19 * ps
    o = []
    for i in range(11):
        o += [f"v_lshlrev_b32 {v(KU+2*i)}, 16, {v(b+i)}", f"v_and_b32 {v(KU+2*i+1)}, {s(S_C)}, {v(b+i)}"]
    for e in range(16):
        o.append(f"v_mul_f32 {v(KT+e)}, {v(KU+e)}, {v(KW+6+(e&1))}")
    for j in (2, 1, 0):
        for e in range(16):
            o.append(f"v_fmac_f32 {v(KT+e)}, {v(KU+e+2*(3-j))}, {v(KW+2*j+(e&1))}")
    for i in range(8):
        o += [f"v_lshlrev_b32 {v(VU+2*i)}, 16, {v(b+11+i)}", f"v_and_b32 {v(VU+2*i+1)}, {s(S_C)}, {v(b+11+i)}"]
    for e in range(16):
        o.append(f"v_mul_f32 {v(KT+e)}, {v(KT+e)}, {v(VU+e)}")
    for ch in range(2):
        for i in range(4):
            o.append(f"v_cvt_pk_bf16_f32 {v(KO+4*ch+i)}, {v(KT+2*(7-2*i)+ch)}, {v(KT+2*(6-2*i)+ch)}")
    o += [f"ds_write_b128 v70, {v(KO,4)} offset:{32*(1-ps)}", f"ds_write_b128 v70, {v(KO+4,4)} offset:{32*(1-ps) + KVT_STR}"]
    return o


def kv_store(a):
    a(f"v_lshrrev_b32 v5, 2, v0\nv_and_b32 v6, 3, v0\nv_lshlrev_b32 v6, 4, v6\nv_mul_u32_u24 v7, {KVT_STR}, v5\nv_add_u32 v7, v7, v6")
    a(f"s_mul_i32 {s(S_T0)}, {s(S_SH)}, {64*KVT_STR}\ns_add_u32 {s(S_T0)}, {s(S_T0)}, {L_KVT}\nv_add_u32 v7, {s(S_T0)}, v7")
    a("s_waitcnt lgkmcnt(0)")
    for i in range(4):
        a(f"ds_read_b128 {v(24+4*i,4)}, v7 offset:{16*i*KVT_STR}")
    a("v_lshl_add_u32 v5, v5, 12, v6")
    a(f"s_and_b32 {s(S_T0)}, {s(S_TI)}, 7\ns_lshl_b32 {s(S_T0)}, {s(S_T0)}, 18")
    a(f"s_lshr_b32 {s(S_T1)}, {s(S_TI)}, 3\ns_lshl_b32 {s(S_T1)}, {s(S_T1)}, 1\ns_add_u32 {s(S_T1)}, {s(S_T1)}, {s(S_SH)}\ns_lshl_b32 {s(S_T1)}, {s(S_T1)}, 6")
    a(f"s_sub_u32 {s(S_T0)}, {s(S_T0)}, {s(S_T1)}\ns_add_u32 {s(S_T0)}, {s(S_T0)}, {WS_KVR + 4096 - 64:#x}")
    for i in range(4):
        a(f"s_waitcnt lgkmcnt({3-i})")
        a(f"buffer_store_dwordx4 {v(24+4*i,4)}, v5, {s(R_WS,4)}, {s(S_T0)} offen sc1")
        a(f"s_add_u32 {s(S_T0)}, {s(S_T0)}, 65536")


def cs_loads(a):
    a(f"s_mul_i32 {s(S_T0)}, {s(S_MI)}, {32*F*2}\ns_lshl_b32 {s(S_T1)}, {s(S_FB0)}, 6\ns_add_u32 {s(S_T0)}, {s(S_T0)}, {s(S_T1)}\ns_add_u32 {s(S_T1)}, {s(S_T0)}, {16*F*2}")
    a(f"s_mul_i32 {s(S_M0)}, {s(S_SH)}, 6144\ns_add_u32 {s(S_M0)}, {s(S_M0)}, {L_CSS}")
    l1, l2 = a.label("cs"), a.label("cs")
    a(f"s_cmp_lg_u32 {s(S_SH)}, 0\ns_cbranch_scc1 {l1}")
    for r in (R_WG, R_WU):
        for blk in range(3):
            for k2 in range(2):
                a(f"s_add_u32 m0, {s(S_M0)}, {blk*2048 + k2*1024 - 64*blk}\ns_nop 0")
                a(f"buffer_load_dwordx4 {v(VB_W)}, {s(r,4)}, {s(S_T1 if k2 else S_T0)} offen offset:{64*blk} {CFS} lds")
        a(f"s_branch {l2}\n{l1}:" if r == R_WG else f"{l2}:")


def colsum(a):
    W, O = 144, 168
    a("v_lshrrev_b32 v5, 4, v0\nv_lshlrev_b32 v6, 9, v5\nv_bfe_u32 v7, v0, 2, 2\nv_lshl_add_u32 v6, v7, 6, v6\nv_and_b32 v7, 3, v0\nv_lshl_add_u32 v6, v7, 3, v6")
    a(f"v_and_b32 v7, 1, v5\nv_lshl_add_u32 v6, v7, 5, v6\nv_add_u32 v6, {s(S_M0)}, v6\nv_xor_b32 v7, 32, v6")
    for u in range(6):
        for tt in range(2):
            a(f"ds_read_b64_tr_b16 {v(W+4*u+2*tt,2)}, {'v7' if u & 1 else 'v6'} offset:{(u>>1)*2048 + tt*256}")
    a.c("CSP offset = ((ni*2 + hw)*16 + mi)*384 + u*64 + g*16")
    a(f"s_lshl_b32 {s(S_T0)}, {s(S_NI)}, 1\ns_add_u32 {s(S_T0)}, {s(S_T0)}, {s(S_SH)}\ns_lshl_b32 {s(S_T0)}, {s(S_T0)}, 4\ns_add_u32 {s(S_T0)}, {s(S_T0)}, {s(S_MI)}")
    a(f"s_mul_i32 {s(S_T0)}, {s(S_T0)}, 384\ns_add_u32 {s(S_T0)}, {s(S_T0)}, {WS_CSP:#x}")
    a("v_and_b32 v5, 48, v0")
    a("s_waitcnt lgkmcnt(0)")
    for u in range(6):
        a(f"v_mfma_f32_16x16x32_bf16 {v(O+4*u,4)}, {v(W+4*u,4)}, {v(ONE,4)}, 0")
    a(f"s_mov_b32 {s(S_EX)}, 0x00010001\ns_mov_b32 {s(S_EX+1)}, 0x00010001\ns_nop 5\ns_mov_b64 exec, {s(S_EX,2)}")
    for u in range(6):
        a(f"buffer_store_dwordx4 {v(O+4*u,4)}, v5, {s(R_WS,4)}, {s(S_T0)} offen offset:{u*64} sc1")
    a("s_mov_b64 exec, -1")


def hflag(a, base):
    a(f"s_lshl_b32 {s(S_T0)}, {s(S_TI)}, 7\ns_lshl_b32 {s(S_T1)}, {s(S_SH)}, 2\ns_add_u32 {s(S_T0)}, {s(S_T0)}, {s(S_T1)}\ns_add_u32 {s(S_T0)}, {s(S_T0)}, {base:#x}")
    flag_store(a, S_T0, 196, 197)


CG = 144


def cs_gather_issue(a):
    a(f"s_lshl_b32 {s(S_T0)}, {s(S_NI)}, 1\ns_add_u32 {s(S_T0)}, {s(S_T0)}, {s(S_SH)}\ns_mul_i32 {s(S_T0)}, {s(S_T0)}, 6144\ns_add_u32 {s(S_T0)}, {s(S_T0)}, {WS_CSP:#x}")
    a("v_and_b32 v5, 31, v0\nv_lshlrev_b32 v5, 4, v5\nv_lshrrev_b32 v6, 5, v0\nv_mul_u32_u24 v6, 3072, v6\nv_add_u32 v6, v5, v6")
    for i in range(8):
        a(f"buffer_load_dwordx4 {v(CG+4*i,4)}, v6, {s(R_WS,4)}, {s(S_T0)} offen offset:{i*384} sc1")


def cs_gather_finish(a):
    n = 8
    while n > 1:
        n //= 2
        for i in range(4 * n):
            a(f"v_add_f32 {v(CG+i)}, {v(CG+i)}, {v(CG+4*n+i)}")
    for i in range(4):
        a(f"v_mov_b32 {v(CG+4+i)}, {v(CG+i)}")
    a(f"s_lshl_b32 {s(S_T0)}, {s(S_SH)}, 9\ns_add_u32 {s(S_T0)}, {s(S_T0)}, {L_CS}\nv_and_b32 v8, 31, v0\nv_lshlrev_b32 v8, 4, v8\nv_add_u32 v8, {s(S_T0)}, v8")
    for i in range(4):
        a(f"v_permlane32_swap_b32 {v(CG+i)}, {v(CG+4+i)}")
    a("s_nop 0")
    for i in range(4):
        a(f"v_add_f32 {v(CG+i)}, {v(CG+i)}, {v(CG+4+i)}")
    a(f"ds_write_b128 v8, {v(CG,4)}")


def helper(a):
    q = VQ(a)
    a(f"s_sub_u32 {s(S_SH)}, {s(S_WB)}, 2")
    a(f"s_lshl_b32 {s(S_HO)}, {s(S_TI)}, 1\ns_add_u32 {s(S_HO)}, {s(S_HO)}, {s(S_SH)}\ns_lshl_b32 {s(S_HO)}, {s(S_HO)}, 12")
    a.c("k/v tile base: rows 32*(2*(ti>>3) + hw).., channels 64*(ti&7)")
    a(f"s_lshr_b32 {s(S_T0)}, {s(S_TI)}, 3\ns_lshl_b32 {s(S_T0)}, {s(S_T0)}, 1\ns_add_u32 {s(S_T0)}, {s(S_T0)}, {s(S_SH)}\ns_lshl_b32 {s(S_T0)}, {s(S_T0)}, 15")
    a(f"s_and_b32 {s(S_T1)}, {s(S_TI)}, 7\ns_lshl_b32 {s(S_T2)}, {s(S_T1)}, 7\ns_add_u32 {s(S_DO)}, {s(S_T0)}, {s(S_T2)}")
    a(f"s_mul_i32 {s(S_KC)}, {s(S_TI)}, {43*128}\ns_mul_i32 {s(S_T1)}, {s(S_SH)}, {22*128}\ns_add_u32 {s(S_KC)}, {s(S_KC)}, {s(S_T1)}")
    def sc():
        stats_loads(a); q.add("s", 4)
        cs_loads(a); q.add("csd", 6)
    SKV = opt("SKV", 0)
    KVAT = opt("KVAT", 0) or SKV or KVL
    def wdt():
        if not opt("WDT", 1):
            return
        a.c("first touch of Wd lines 43*ti + 22*hw + lane")
        a("v_lshlrev_b32 v11, 7, v0\ns_mov_b64 exec, 0x3fffff")
        a(f"buffer_load_dword v71, v11, {s(R_WD,4)}, {s(S_KC)} offen"); q.add("wd", 1)
        a("s_mov_b64 exec, -1")
    def cold():
        kv_dma(a); q.add("kv", 10)
        if not SKV and not PT and not opt("HW7", 0) and not KVL:
            wdt()
        if SKV != 1 and not opt("HW7", 0):
            conv_h_loads(a); q.add("h", 4)
    PT = opt("PT", 0)
    def ptouch():
        l1, l2 = a.label("pt"), a.label("pt")
        a(f"s_and_b32 {s(S_T0)}, {s(S_NI)}, 3\ns_cmp_lg_u32 {s(S_T0)}, 3\ns_cbranch_scc1 {l2}")
        a("v_lshrrev_b32 v5, 2, v0\nv_and_b32 v6, 3, v0\nv_lshlrev_b32 v6, 7, v6\nv_lshl_add_u32 v5, v5, 10, v6\nv_lshlrev_b32 v6, 7, v0")
        a(f"s_lshr_b32 {s(S_T0)}, {s(S_TI)}, 3\ns_lshl_b32 {s(S_T0)}, {s(S_T0)}, 16\ns_and_b32 {s(S_T1)}, {s(S_TI)}, 4\ns_lshl_b32 {s(S_T1)}, {s(S_T1)}, 7\ns_add_u32 {s(S_T0)}, {s(S_T0)}, {s(S_T1)}")
        a(f"s_cmp_lg_u32 {s(S_SH)}, 0\ns_cbranch_scc1 {l1}")
        for i in range(4):
            a(f"buffer_load_dword v71, v5, {s(R_K,4)}, {s(S_T0)} offen\ns_add_u32 {s(S_T0)}, {s(S_T0)}, 16384")
        a(f"s_sub_i32 {s(S_T0)}, {s(S_T0)}, {65536 + 3072}\ns_max_i32 {s(S_T0)}, {s(S_T0)}, 0\ns_mov_b64 exec, 0xfff")
        a(f"buffer_load_dword v71, v5, {s(R_K,4)}, {s(S_T0)} offen\ns_mov_b64 exec, -1")
        a(f"s_lshr_b32 {s(S_T0)}, {s(S_TI)}, 2\ns_mul_i32 {s(S_T0)}, {s(S_T0)}, {172*128}")
        for i in range(3):
            a(f"buffer_load_dword v71, v6, {s(R_WD,4)}, {s(S_T0)} offen\ns_add_u32 {s(S_T0)}, {s(S_T0)}, {8192 if i == 0 else 44*128}")
        a(f"s_branch {l2}\n{l1}:")
        for i in range(4):
            a(f"buffer_load_dword v71, v5, {s(R_V,4)}, {s(S_T0)} offen\ns_add_u32 {s(S_T0)}, {s(S_T0)}, 16384")
        a(f"s_lshr_b32 {s(S_T0)}, {s(S_TI)}, 2\ns_lshl_b32 {s(S_T0)}, {s(S_T0)}, 15")
        for i in range(4):
            a(f"buffer_load_dword v71, v6, {s(R_H,4)}, {s(S_T0)} offen\ns_add_u32 {s(S_T0)}, {s(S_T0)}, 8192")
        a(f"{l2}:")
    if PT == 1:
        ptouch()
    LATE = opt("LATE", 0)
    if LATE:
        lds_min_wait(a, C_CNT, W_ISS, 1, LATE, 20)
        l1, l2 = a.label("tc"), a.label("tc")
        a(f"s_cmp_lg_u32 {s(S_SH)}, 0\ns_cbranch_scc1 {l1}")
        touch_x(a, (4, 6), 71)
        a(f"s_branch {l2}\n{l1}:")
        touch_w(a, 4, (R_WG, R_WU), 71)
        a(f"{l2}:")
    epoch_load(a, 1); q.add("e", 1)
    sc()
    if KVL:
        wdt()
    if SKV:
        wdt()
        a(f"s_sub_i32 {s(S_KC)}, {s(S_DO)}, 3072\ns_max_i32 {s(S_KC)}, {s(S_KC)}, 0")
        spf(a, R_K, S_KC, [1024*i for i in range(35)])
    if not KVAT:
        cold()
    for i in range(4):
        a(f"v_mov_b32 {v(ONE+i)}, 0x3f803f80")
    a.c("F1 pairs: lanes 0-31 tiles 16mi + (l&15) (row records), lanes 32-63 tiles 16*(l&15) + ni (column sums)")
    a(f"s_lshl_b32 {s(S_T0)}, {s(S_MI)}, 11\nv_and_b32 v9, 15, v0\nv_lshlrev_b32 v8, 7, v9\nv_add_u32 v8, {s(S_T0)}, v8")
    a(f"s_lshl_b32 {s(S_T0)}, {s(S_NI)}, 7\nv_lshlrev_b32 v9, 11, v9\nv_add_u32 v9, {s(S_T0)}, v9\nv_cmp_lt_u32 vcc, 31, v0")
    a(f"s_nop 1\nv_cndmask_b32 v8, v8, v9, vcc\nv_add_u32 v8, {WS_F1:#x}, v8")
    q.wait("e", "s")
    stamp(a, 1)
    epoch_take(a, 1)
    a(f"v_mov_b32 v20, {s(S_NON)}\nds_write_b32 {v(C_CNT)}, v20 offset:{W_NON}")
    stats(a); q.add("st", 1)
    q.wait("csd")
    if PT == 2:
        ptouch()
    colsum(a); q.add("st", 6)
    stamp(a, 2)
    if KVL:
        q.wait("st")
        hflag(a, WS_F1)
        stamp(a, 3)
        lds_min_wait(a, C_CNT, W_ISS, 1, KVL - 1, 20)
        poll2_issue(a, 8, 198)
        a(f"s_lshr_b32 {s(S_T0)}, {s(S_TI)}, 5\ns_lshl_b32 {s(S_T0)}, {s(S_T0)}, 7\ns_add_u32 {s(S_T0)}, {s(S_T0)}, {WS_F2:#x}")
        a(f"v_and_b32 v16, 31, v0\nv_lshlrev_b32 v16, 10, v16\nv_add_u32 v16, {s(S_T0)}, v16")
        a("s_waitcnt vmcnt(0)")
        poll2_check(a, 8, 198)
        lds_min_wait(a, C_CNT, W_ISS, 1, KVL, 20)
        a(f"s_lshl_b32 {s(S_T0)}, {s(S_MI)}, 1\ns_add_u32 {s(S_T0)}, {s(S_T0)}, {s(S_SH)}\ns_lshl_b32 {s(S_T0)}, {s(S_T0)}, 10\ns_add_u32 {s(S_T0)}, {s(S_T0)}, {WS_ST:#x}")
        a(f"buffer_load_dwordx4 {v(GG,4)}, v4, {s(R_WS,4)}, {s(S_T0)} offen sc1")
        cs_gather_issue(a)
        a(f"s_lshl_b32 {s(S_T0)}, {s(S_SH)}, 10\ns_add_u32 {s(S_T0)}, {s(S_T0)}, {L_ST}\nv_add_u32 v9, {s(S_T0)}, v4")
        cold()
        a("s_waitcnt vmcnt(14)")
        a(f"ds_write_b128 v9, {v(GG,4)}")
        cs_gather_finish(a)
        lds_inc(a, C_CNT, C_ONE, W_GATH)
        stamp(a, 5)
        a(f"s_setprio {opt('PRK', 0)}")
        a("s_waitcnt vmcnt(4)")
        kv_reads(a)
        kv_taps(a)
        a("s_waitcnt lgkmcnt(0)")
        for l in kv_compute(0) + kv_compute(1):
            a(l)
        kv_store(a)
        lds_inc(a, C_CNT, C_ONE, W_HP)
        a("s_waitcnt vmcnt(4)")
        conv_h_shift(a, 40)
        a("s_waitcnt vmcnt(0)")
        hflag(a, WS_F2)
        stamp(a, 4)
        final_loads(a)
        lds_min_wait(a, C_CNT, W_FREE, 4, 6, 20)
        lds_min_wait(a, C_CNT, W_HP, 1, 2, 20)
        conv_h_stage(a, 40)
        poll2_issue(a, 16, 18)
        a("s_waitcnt vmcnt(0)")
        poll2_check(a, 16, 18)
        a(f"s_add_u32 {s(S_T2)}, {s(S_HO)}, {WS_KVR:#x}")
        for i in range(4):
            a(f"buffer_load_dwordx4 {v(128+4*i,4)}, v4, {s(R_WS,4)}, {s(S_T2)} offen offset:{1024*i} sc1")
        for i in range(4):
            a(f"s_waitcnt vmcnt({3-i})")
            a(f"ds_write_b128 v10, {v(128+4*i,4)} offset:{4*HSTR + 1024*i}")
        stamp(a, 6)
        return
    if SKV:
        spf(a, R_V, S_DO, [1024*i for i in range(14)])
        q.wait("st")
        hflag(a, WS_F1); q.add("f", 1)
        stamp(a, 3)
        spf(a, R_V, S_DO, [1024*i for i in range(14, 32)])
        a(f"s_and_b32 {s(S_T1)}, {s(S_TI)}, 7\ns_lshl_b32 {s(S_T1)}, {s(S_T1)}, 9")
        spf(a, R_SK, S_T1, [128*i for i in range(4)])
        if SKV == 2:
            spf(a, R_H, S_HO, [128*i for i in range(32)])
        a("s_waitcnt lgkmcnt(0)")
        cold()
    elif KVAT:
        a(f"s_lshr_b32 {s(S_T3)}, s2, 3\ns_and_b32 {s(S_T3)}, {s(S_T3)}, {opt('KVM', 0)}\ns_add_u32 {s(S_T3)}, {s(S_T3)}, {KVAT}")
        if PT:
            q.wait("st")
            hflag(a, WS_F1); q.add("f", 1)
            stamp(a, 3)
            a(f"s_and_b32 {s(S_T0)}, {s(S_NI)}, 3\ns_cmp_eq_u32 {s(S_T0)}, 3\ns_cselect_b32 {s(S_T3)}, 0, {s(S_T3)}")
        lds_min_wait(a, C_CNT, W_ISS, 1, s(S_T3), 20)
        cold()
        if not PT:
            q.wait("st")
            hflag(a, WS_F1); q.add("f", 1)
            stamp(a, 3)
    q.wait("kv")
    kv_reads(a)
    kv_taps(a)
    a("s_waitcnt lgkmcnt(0)")
    for l in kv_compute(0):
        a(l)
    if not KVAT:
        q.wait("st")
        hflag(a, WS_F1); q.add("f", 1)
        stamp(a, 3)
    for l in kv_compute(1):
        a(l)
    kv_store(a); q.add("kvst", 4)
    lds_inc(a, C_CNT, C_ONE, W_HP)
    q.wait("kvst")
    hflag(a, WS_F2); q.add("f", 1)
    stamp(a, 4)
    if opt("HW7", 0):
        lds_min_wait(a, C_CNT, W_ISS, 1, opt("HW7", 0), 20)
        wdt()
        conv_h_loads(a)
    else:
        conv_h_shift(a)
    if SKV == 1:
        spf(a, R_H, S_HO, [128*i for i in range(32)])
    if WDE:
        wd_setup(a, 0, S_SH)
        a(f"s_lshl_b32 {s(S_T0)}, {s(S_SH)}, 2\nv_add_u32 v11, {s(S_T0)}, {v(C_CNT)}")
        lds_min_wait(a, C_CNT, W_HP, 1, 2, 20)
        lds_min_wait(a, C_CNT, W_ISS, 1, WDE, 20)
        for op in wd_dma(0, 2) + wd_dma(1, 2):
            a(op)
    lds_min_wait(a, C_CNT, W_ISS, 1, opt("GATP", 7), 20)
    poll2_issue(a, 8, 198)
    a.c("F2 pairs of tiles 8*(l&31) + (ti>>5)")
    a(f"s_lshr_b32 {s(S_T0)}, {s(S_TI)}, 5\ns_lshl_b32 {s(S_T0)}, {s(S_T0)}, 7\ns_add_u32 {s(S_T0)}, {s(S_T0)}, {WS_F2:#x}")
    a(f"v_and_b32 v16, 31, v0\nv_lshlrev_b32 v16, 10, v16\nv_add_u32 v16, {s(S_T0)}, v16")
    a("s_waitcnt vmcnt(0)")
    if WDE:
        a(f"ds_write_b32 v11, {v(C_ONE)} offset:{W_WE}")
    poll2_check(a, 8, 198)
    lds_min_wait(a, C_CNT, W_ISS, 1, opt("GAT", 7), 20)
    poll2_issue(a, 16, 18)
    a(f"s_lshl_b32 {s(S_T0)}, {s(S_MI)}, 1\ns_add_u32 {s(S_T0)}, {s(S_T0)}, {s(S_SH)}\ns_lshl_b32 {s(S_T0)}, {s(S_T0)}, 10\ns_add_u32 {s(S_T0)}, {s(S_T0)}, {WS_ST:#x}")
    a(f"buffer_load_dwordx4 {v(GG,4)}, v4, {s(R_WS,4)}, {s(S_T0)} offen sc1")
    cs_gather_issue(a)
    a(f"s_lshl_b32 {s(S_T0)}, {s(S_SH)}, 10\ns_add_u32 {s(S_T0)}, {s(S_T0)}, {L_ST}\nv_add_u32 v9, {s(S_T0)}, v4")
    late, join = a.label("u_late"), a.label("u_join")
    def u_loads():
        a(f"s_add_u32 {s(S_T2)}, {s(S_HO)}, {WS_KVR:#x}")
        for i in range(4):
            a(f"buffer_load_dwordx4 {v(128+4*i,4)}, v4, {s(R_WS,4)}, {s(S_T2)} offen offset:{1024*i} sc1")
    def gather_done():
        a(f"ds_write_b128 v9, {v(GG,4)}")
        cs_gather_finish(a)
        lds_inc(a, C_CNT, C_ONE, W_GATH)
        stamp(a, 5)
    a("s_waitcnt vmcnt(9)")
    a(f"v_cmp_ne_u32 vcc, {s(S_NON)}, v18\nv_cmp_ne_u32 {s(S_EX,2)}, {s(S_NON)}, v19\ns_nop 0\ns_or_b64 vcc, vcc, {s(S_EX,2)}\ns_cbranch_scc1 {late}")
    u_loads()
    a("s_waitcnt vmcnt(4)")
    gather_done()
    a(f"{join}:")
    keep = a.L
    a.L = COLD.L
    a(f"{late}:")
    a("s_waitcnt vmcnt(0)")
    gather_done()
    poll2_check(a, 16, 18)
    u_loads()
    a(f"s_branch {join}")
    a.L = keep
    final_loads(a)
    lds_min_wait(a, C_CNT, W_FREE, 4, 6, 20)
    a.c("the other helper must be done with its transpose scratch before the conv region is written")
    lds_min_wait(a, C_CNT, W_HP, 1, 2, 20)
    if opt("HW7", 0):
        conv_h_shift(a)
    conv_h_stage(a)
    a("s_waitcnt vmcnt(2)")
    for i in range(4):
        a(f"ds_write_b128 v10, {v(128+4*i,4)} offset:{4*HSTR + 1024*i}")
    stamp(a, 6)


C_ACC, C_F0, C_F1 = 16, 48, 112
C_AA, C_BA = 2, 3


def bsync_post(a, n=4):
    a(f"s_add_u32 {s(S_CNT)}, {s(S_CNT)}, {n}")
    a("s_mov_b64 exec, 1")
    a(f"ds_add_u32 {v(C_CNT)}, {v(C_ONE)}")
    a("s_mov_b64 exec, -1")


def bsync_wait(a, nap=None):
    lds_min_wait(a, C_CNT, W_CNT, 1, s(S_CNT), 6, nap=opt("BNAP", 1) if nap is None else nap)


def bsync(a, n=4):
    bsync_post(a, n)
    bsync_wait(a)


def conv_reads(fr, roff):
    out = []
    for p in range(8):
        out.append(f"ds_read_b128 {v(fr+4*p,4)}, {v(C_AA)} offset:{512*p + roff}")
        out.append(f"ds_read_b64 {v(fr+32+4*p,2)}, {v(C_BA)} offset:{512*(7-p) + roff}")
        out.append(f"ds_read_b64 {v(fr+32+4*p+2,2)}, {v(C_BA)} offset:{512*(7-p) + roff + 8}")
    return out


def conv_mfmas(fr, first):
    out = []
    for tot in range(8):
        for p in range(tot + 1):
            q = tot - p
            out.append((max(p, q), f"v_mfma_f32_16x16x32_bf16 {v(C_ACC+4*tot,4)}, {v(fr+4*p,4)}, {v(fr+32+4*q,4)}, ", C_ACC + 4*tot))
    out.sort(key=lambda t: t[0])
    res, seen = [], set()
    for _, txt, c in out:
        res.append(txt + ("0" if first and c not in seen else v(c, 4)))
        seen.add(c)
    return res


HR = 200


def conv_h_loads(a):
    a(f"s_mul_i32 {s(S_RING)}, {s(S_SH)}, {CH_STR}\ns_add_u32 {s(S_RING)}, {s(S_RING)}, {L_CONV}")
    for h in range(4):
        a(f"buffer_load_dwordx4 {v(HR+6*h+2,4)}, v4, {s(R_H,4)}, {s(S_HO)} offen offset:{1024*h} {NT}")


def conv_h_shift(a, z=24):
    for i in range(4):
        a(f"v_mov_b32 {v(z+i)}, 0")
    a(f"v_add_u32 v10, {s(S_RING)}, v4")
    T = 72
    a.c("the two dwords in front of each lane's piece come from the lane below")
    for h in range(4):
        r = HR + 6 * h
        for i in range(2):
            a(f"v_mov_b32_dpp {v(r+i)}, {v(r-2+i)} wave_ror:1 row_mask:0xf bank_mask:0xf" if h else f"v_mov_b32 {v(r+i)}, 0")
    for h in range(4):
        r = HR + 6 * h
        for i in range(2):
            a(f"v_mov_b32_dpp {v(r+i)}, {v(r+4+i)} wave_shr:1 row_mask:0xf bank_mask:0xf")
    for h in range(4):
        r = HR + 6 * h
        for i in range(4):
            a(f"v_alignbit_b32 {v(T+i)}, {v(r+2+i)}, {v(r+1+i)}, 16")
        for i in range(4):
            a(f"v_mov_b32 {v(T+4+i)}, {v(r+1+i)}")
        for i in range(4):
            a(f"v_alignbit_b32 {v(T+8+i)}, {v(r+1+i)}, {v(r+i)}, 16")
        T += 12


def conv_h_stage(a, z=24):
    a.c("zero pads: 384 B in front of each h copy, 128 B behind u")
    a("s_mov_b64 exec, 0xffffff")
    for p in range(4):
        a(f"ds_write_b128 v10, {v(z,4)} offset:{p*HSTR}")
    a("s_mov_b64 exec, 0xff")
    a(f"ds_write_b128 v10, {v(z,4)} offset:{4*HSTR + 4096}")
    a("s_mov_b64 exec, -1")
    for h in range(4):
        a(f"ds_write_b128 v10, {v(HR+6*h+2,4)} offset:{384 + 1024*h}")
        for p in range(1, 4):
            a(f"ds_write_b128 v10, {v(72+12*h+4*(p-1),4)} offset:{p*HSTR + 384 + 1024*h}")


def conv_mid(a):
    a("s_waitcnt vmcnt(0)")
    a(f"ds_write_b32 v11, v251 offset:{W_WD}")
    poll2_check(a, 5, 198)
    a(f"s_lshl_b32 {s(S_T0)}, {s(S_MT)}, 2\ns_add_u32 {s(S_T0)}, {s(S_T0)}, {s(S_WB)}\ns_lshl_b32 {s(S_T0)}, {s(S_T0)}, 8\ns_add_u32 {s(S_T0)}, {s(S_T0)}, {WS_ST:#x}")
    a(f"buffer_load_dwordx4 {v(184,4)}, v15, {s(R_WS,4)}, {s(S_T0)} offen sc1")
    a(f"buffer_load_dwordx4 {v(188,4)}, v15, {s(R_WS,4)}, {s(S_T0)} offen offset:128 sc1")


def conv_main(a):
    U, UU, X, O = 48, 56, 112, 144
    for l in conv_reads(C_F0, 0):
        a(l)
    for r in range(4):
        cur, nxt = (C_F0, C_F1) if r % 2 == 0 else (C_F1, C_F0)
        a("s_waitcnt lgkmcnt(0)")
        if r < 3:
            rd = conv_reads(nxt, 64 * (r + 1))
        else:
            rd = [f"ds_read_b32 {v(U+2*b+c)}, v10 offset:{c*CH_STR + 256*(3-b)}" for b in range(4) for c in range(2)]
        for l in interleave(conv_mfmas(cur, r == 0), rd, 0, 1):
            a(l)
        if r == opt("WDR", 0):
            conv_mid(a)
    lstamp(a, 5)
    a(f"s_setprio {opt('PRX', opt('PRC', 3))}")
    bsync(a)
    if opt("XST", 0): lstamp(a, 1)
    for t in range(8):
        a(f"ds_write_b128 v8, {v(C_ACC+4*t,4)} offset:{t*1024}")
    bsync_post(a)
    a.c("skip term D*u at rows 512wb + 128b + 2l, +1")
    a(f"s_lshl_b32 s100, {s(S_C+1)}, 16\ns_and_b32 {s(S_C+1)}, {s(S_C+1)}, 0xffff0000")
    for b in range(4):
        for c in range(2):
            u, o = U + 2*b + c, UU + 4*b + 2*c
            a(f"v_and_b32 {v(o)}, {s(S_C)}, {v(u)}\nv_lshlrev_b32 {v(o+1)}, 16, {v(u)}")
    for b in range(4):
        for c in range(2):
            for j in range(2):
                a(f"v_mul_f32 {v(UU+4*b+2*c+j)}, {s(S_C+1) if c else 's100'}, {v(UU+4*b+2*c+j)}")
        a(f"v_mov_b32 {v(O+4*b+1)}, {s(S_NON)}\nv_mov_b32 {v(O+4*b+3)}, {s(S_NON)}")
    bsync_wait(a)
    if opt("XST", 0): lstamp(a, 2)
    for b in range(4):
        for w in range(4):
            a(f"ds_read_b64 {v(X+8*b+2*w,2)}, v9 offset:{w*8192 + b*512}")
    a("s_waitcnt vmcnt(0)")
    for b in range(4):
        a(f"s_waitcnt lgkmcnt({4*(3-b)})")
        for c in range(2):
            for j in range(2):
                o, x0 = UU + 4*b + 2*c + j, X + 8*b + 4*c + j
                a(f"v_add_f32 {v(o)}, {v(o)}, {v(x0)}")
        for c in range(2):
            for j in range(2):
                o, x0 = UU + 4*b + 2*c + j, X + 8*b + 4*c + j
                a(f"v_add_f32 {v(o)}, {v(o)}, {v(x0+2)}")
        for j in range(2):
            a(f"v_cvt_pk_bf16_f32 {v(O+4*b+2*j)}, {v(UU+4*b+j)}, {v(UU+4*b+2+j)}")
        if opt("XST", 0) and b == 0: lstamp(a, 3)
        a(f"buffer_store_dwordx4 {v(O+4*b,4)}, v4, {s(R_WS,4)}, {s(S_HO)} offen offset:{1024*b} sc1")
    a.c("the flag only says where to look: the granules carry their own tags")
    if opt("YACK", 0):
        a("s_waitcnt vmcnt(0)")
    flag_store(a, S_DO, 8, 9)


def conv_addr(a):
    a(f"s_lshr_b32 {s(S_T0)}, {s(S_WB)}, 1\ns_mul_i32 {s(S_RING)}, {s(S_T0)}, {CH_STR}\ns_add_u32 {s(S_RING)}, {s(S_RING)}, {L_CONV}")
    a(f"s_lshl_b32 {s(S_T3)}, {s(S_TI)}, 2\ns_load_dword {s(S_C+1)}, {s(S_DP,2)}, {s(S_T3)}")
    a.c("A address: base + (3-(m&3))*HSTR + 128*(m>>2) + 16*kg + 256*rh ; B address: ubase + 120 - 8n + 16kg + 256*rh")
    a(f"s_and_b32 {s(S_T0)}, {s(S_WB)}, 1\ns_lshl_b32 {s(S_T0)}, {s(S_T0)}, 8\ns_add_u32 {s(S_T0)}, {s(S_T0)}, {s(S_RING)}")
    a(f"v_and_b32 v6, 3, v0\nv_sub_u32 v6, 3, v6\nv_mul_u32_u24 v6, {HSTR}, v6\nv_bfe_u32 v7, v0, 2, 2\nv_lshl_add_u32 v6, v7, 7, v6")
    a(f"v_and_b32 v7, 48, v0\nv_add3_u32 {v(C_AA)}, v6, v7, {s(S_T0)}")
    a(f"v_and_b32 v6, 15, v0\nv_lshlrev_b32 v6, 3, v6\nv_sub_u32 v6, v7, v6\ns_add_u32 {s(S_T0)}, {s(S_T0)}, {4*HSTR + 120}\nv_add_u32 {v(C_BA)}, {s(S_T0)}, v6")
    a(f"s_lshl_b32 {s(S_T0)}, {s(S_WB)}, 13\ns_add_u32 {s(S_T0)}, {s(S_T0)}, {L_XCH}\nv_add_u32 v8, {s(S_T0)}, v4")
    a(f"s_lshl_b32 {s(S_T0)}, {s(S_WB)}, 11\ns_add_u32 {s(S_T0)}, {s(S_T0)}, {L_XCH}\nv_lshlrev_b32 v9, 3, v0\nv_add_u32 v9, {s(S_T0)}, v9")
    a.c("u for the skip term: ubase_c + 2*(2046 - 512wb - 128b - 2l)")
    a(f"s_lshl_b32 {s(S_T0)}, {s(S_WB)}, 10\ns_sub_u32 {s(S_T0)}, {L_CONV + 4*HSTR + 4092 - 768}, {s(S_T0)}\nv_lshlrev_b32 v10, 2, v0\nv_sub_u32 v10, {s(S_T0)}, v10")
    a.c("y granules: YG[ti][row*8]; flag F4[wb*256 + ti]")
    a(f"s_mul_i32 {s(S_T0)}, {s(S_TI)}, {YSTR}\ns_lshl_b32 {s(S_T1)}, {s(S_WB)}, 12\ns_add_u32 {s(S_T0)}, {s(S_T0)}, {s(S_T1)}\ns_add_u32 {s(S_HO)}, {s(S_T0)}, {WS_YG:#x}")
    a(f"s_lshl_b32 {s(S_T0)}, {s(S_WB)}, 8\ns_add_u32 {s(S_T0)}, {s(S_T0)}, {s(S_TI)}\ns_lshl_b32 {s(S_T0)}, {s(S_T0)}, 7\ns_add_u32 {s(S_DO)}, {s(S_T0)}, {WS_F4:#x}")
    a(f"s_mov_b32 {s(S_CNT)}, 0\ns_lshl_b32 {s(S_T0)}, {s(S_WB)}, 2\nv_add_u32 v11, {s(S_T0)}, {v(C_CNT)}\nv_mov_b32 v251, 3")
    a.c("F1 pairs of the two tiles that hold this wave's output rows")
    a(f"s_lshl_b32 {s(S_T1)}, {s(S_MT)}, 2\ns_add_u32 {s(S_T1)}, {s(S_T1)}, {s(S_WB)}\ns_lshl_b32 {s(S_T1)}, {s(S_T1)}, 8\ns_add_u32 {s(S_T1)}, {s(S_T1)}, {WS_F1:#x}")
    a(f"v_and_b32 v5, 1, v0\nv_lshlrev_b32 v5, 7, v5\nv_add_u32 v5, {s(S_T1)}, v5")
    poll2_issue(a, 5, 198)


def final_loads(a):
    a(f"s_lshl_b32 {s(S_T0)}, {s(S_MT)}, 2\ns_add_u32 {s(S_T0)}, {s(S_T0)}, {s(S_WB)}\ns_lshl_b32 {s(S_T1)}, {s(S_T0)}, 14\ns_lshl_b32 {s(S_T2)}, {s(S_NT)}, 7\ns_add_u32 {s(S_XO)}, {s(S_T1)}, {s(S_T2)}")
    a(f"s_add_u32 {s(S_WO)}, {s(S_XO)}, 8192")
    a("v_lshrrev_b32 v12, 3, v0\nv_and_b32 v13, 7, v0\nv_lshlrev_b32 v14, 4, v13\nv_lshl_add_u32 v14, v12, 10, v14\nv_lshlrev_b32 v15, 4, v12")
    a(f"buffer_load_dwordx4 {v(176,4)}, v14, {s(R_X,4)}, {s(S_XO)} offen")
    a(f"buffer_load_dwordx4 {v(180,4)}, v14, {s(R_X,4)}, {s(S_WO)} offen")


def final(a):
    XU, XN, YU, YL = 16, 72, 96, 160
    a.c("flags F4[(mt>>3)*256 + 32nt + 8wb + (l&7)]; granules of pairs 32nt + 8wb + 2i + (l>>5), rows 64mt + 2*(l&31) ..")
    a(f"s_lshl_b32 {s(S_T0)}, {s(S_NT)}, 2\ns_add_u32 {s(S_T0)}, {s(S_T0)}, {s(S_WB)}\ns_lshr_b32 {s(S_T1)}, {s(S_MT)}, 3\ns_lshl_b32 {s(S_T1)}, {s(S_T1)}, 5\ns_add_u32 {s(S_T1)}, {s(S_T1)}, {s(S_T0)}")
    a(f"s_lshl_b32 {s(S_T1)}, {s(S_T1)}, 10\ns_add_u32 {s(S_T1)}, {s(S_T1)}, {WS_F4:#x}\nv_lshlrev_b32 v5, 7, v13\nv_add_u32 v5, {s(S_T1)}, v5")
    a(f"s_mul_i32 {s(S_T0)}, {s(S_T0)}, {8*YSTR}\ns_lshl_b32 {s(S_T1)}, {s(S_MT)}, 9\ns_add_u32 {s(S_T0)}, {s(S_T0)}, {s(S_T1)}\ns_add_u32 {s(S_HO)}, {s(S_T0)}, {WS_YG:#x}")
    a(f"v_lshrrev_b32 v10, 5, v0\nv_mul_u32_u24 v8, {YSTR - 512}, v10\nv_add_u32 v8, v8, v4")

    def y_loads():
        a(f"s_mov_b32 {s(S_T1)}, {s(S_HO)}")
        for i in range(4):
            a(f"buffer_load_dwordx4 {v(YL+4*i,4)}, v8, {s(R_WS,4)}, {s(S_T1)} offen sc1")
            if i < 3:
                a(f"s_add_u32 {s(S_T1)}, {s(S_T1)}, {2*YSTR}")
    for t in range(2):
        for i in range(4):
            a(f"v_lshlrev_b32 {v(XU+8*t+2*i)}, 16, {v(176+4*t+i)}\nv_and_b32 {v(XU+8*t+2*i+1)}, {s(S_C)}, {v(176+4*t+i)}")
    for i in range(16):
        a(f"v_mov_b32 {v(YU+i)}, 0")
    a.c("transpose scratch [wb'][c*272 + e*64 + row*4]")
    a(f"s_mul_i32 {s(S_T0)}, {s(S_WB)}, 544\ns_add_u32 {s(S_T0)}, {s(S_T0)}, {L_YL}")
    a(f"v_and_b32 v9, 3, v12\nv_mul_u32_u24 v9, 2176, v9\nv_lshl_add_u32 v9, v10, 6, v9\nv_lshl_add_u32 v9, v13, 3, v9\nv_add_u32 v9, {s(S_T0)}, v9")
    a(f"s_mul_i32 {s(S_T0)}, {s(S_WB)}, 2176\ns_add_u32 {s(S_T0)}, {s(S_T0)}, {L_YL}")
    a(f"v_mul_u32_u24 v7, 272, v13\nv_lshl_add_u32 v7, v12, 2, v7\nv_add_u32 v7, {s(S_T0)}, v7")
    a.c("partials: wb*16384 + w*4096 + (8t + row)*256 + ((2c + h) ^ row)*16")
    a(f"s_lshl_b32 {s(S_T0)}, {s(S_WB)}, 14\nv_lshlrev_b32 v2, 1, v13\nv_xor_b32 v2, v2, v12\nv_lshlrev_b32 v2, 4, v2\nv_lshl_add_u32 v2, v12, 8, v2\nv_add_u32 v2, {s(S_T0)}, v2")
    a("v_xor_b32 v3, 16, v2")
    for t in range(2):
        a(f"v_mul_f32 {v(185+4*t)}, {f32bits(1.0/C1):#x}, {v(185+4*t)}")
        for i in range(8):
            a(f"v_sub_f32 {v(XN+8*t+i)}, {v(XU+8*t+i)}, {v(184+4*t)}")
        for i in range(8):
            a(f"v_mul_f32 {v(XN+8*t+i)}, {v(XN+8*t+i)}, {v(185+4*t)}")
    if not opt('LDST', 0): stamp(a, 7)
    a(f"s_setprio {opt('PRP', 0)}")
    a.c("stay off the memory path until the GEMM2 waves have issued their loads")
    lds_min_wait(a, C_CNT, W_HI, 1, 4, 6, nap=2)
    a(f"s_setprio {opt('PRF', 3)}")
    if not opt('LDST', 0): stamp(a, 8)
    top, done = a.label("yp"), a.label("yp_ok")
    a(f"s_mov_b32 {s(S_IT)}, 0")
    if opt("YFLAG", 1):
        poll(a, 5, 6)
    a(f"{top}:")
    y_loads()
    a("s_waitcnt vmcnt(0)")
    for i in range(4):
        a(f"v_xor_b32 {v(48+i)}, {s(S_NON)}, {v(YL+4*i+1)}\nv_xor_b32 {v(52+i)}, {s(S_NON)}, {v(YL+4*i+3)}\nv_mov_b32 {v(YL+4*i+1)}, {v(YL+4*i+2)}")
    a("v_or3_b32 v48, v48, v49, v50\nv_or3_b32 v51, v51, v52, v53\nv_or3_b32 v48, v48, v54, v55\nv_or_b32 v48, v48, v51\nv_cmp_ne_u32 vcc, 0, v48")
    a(f"s_cbranch_vccz {done}")
    poll(a, 5, 6)
    a(f"s_add_u32 {s(S_IT)}, {s(S_IT)}, {s(S_SPIN)}\ns_add_u32 {s(S_IT)}, {s(S_IT)}, 1\ns_cmp_lt_u32 {s(S_IT)}, {SPIN_MAX}\ns_cbranch_scc1 {top}")
    a(f"{done}:")
    for i in range(4):
        a(f"ds_write_b64 v9, {v(YL+4*i,2)} offset:{272*(i>>1) + 128*(i&1)}")
    bsync(a)
    for t in range(2):
        for e in range(8):
            a(f"ds_read_u16_d16_hi {v(YU+8*t+e)}, v7 offset:{64*(e>>1) + 32*t + 2*(e&1)}")
    for t in range(2):
        a(f"s_waitcnt lgkmcnt({8*(1-t)})")
        for i in range(8):
            a(f"v_fmac_f32 {v(XU+8*t+i)}, {v(XN+8*t+i)}, {v(YU+8*t+i)}")
    if not opt('LDST', 0): stamp(a, 9)
    if STAMPS:
        a("s_waitcnt lgkmcnt(0)")
    a("s_barrier")
    P = 112
    for t in range(2):
        for w in range(4):
            for h in range(2):
                a(f"ds_read_b128 {v(P+32*t+8*w+4*h,4)}, {'v3' if h else 'v2'} offset:{w*4096 + t*2048}")
    for t in range(2):
        a(f"s_waitcnt lgkmcnt({8*(1-t)})")
        p = P + 32 * t
        for i in range(4):
            a(f"v_pk_add_f32 {v(p+2*i,2)}, {v(p+2*i,2)}, {v(p+8+2*i,2)}")
        for i in range(4):
            a(f"v_pk_add_f32 {v(p+16+2*i,2)}, {v(p+16+2*i,2)}, {v(p+24+2*i,2)}")
        for i in range(4):
            a(f"v_pk_add_f32 {v(p+2*i,2)}, {v(p+2*i,2)}, {v(XU+8*t+2*i,2)}")
        for i in range(4):
            a(f"v_pk_add_f32 {v(p+2*i,2)}, {v(p+2*i,2)}, {v(p+16+2*i,2)}")
        for i in range(4):
            a(f"v_cvt_pk_bf16_f32 {v(48+4*t+i)}, {v(p+2*i)}, {v(p+2*i+1)}")
        a(f"buffer_store_dwordx4 {v(48+4*t,4)}, v14, {s(R_OUT,4)}, {s(S_WO if t else S_XO)} offen")


def epoch_flags_issue(a):
    a(f"v_lshlrev_b32 v6, 7, v0\ns_mov_b32 {s(S_T0)}, {WS_F1:#x}")
    for i in range(4):
        a(f"buffer_load_dword {v(2+i)}, v6, {s(R_WS,4)}, {s(S_T0)} offen sc1")
        a(f"s_add_u32 {s(S_T0)}, {s(S_T0)}, 8192")


def epoch_pre(a):
    done = a.label("ep_skip")
    a(f"s_lshl_b32 {s(S_T0)}, s2, 3\ns_add_u32 {s(S_T0)}, {s(S_T0)}, {s(S_WAVE)}\ns_cmp_lg_u32 {s(S_T0)}, 0\ns_cbranch_scc1 {done}")
    epoch_flags_issue(a)
    a(f"{done}:")


def epoch_advance(a):
    done, top, ok = a.label("ep_skip"), a.label("ep_top"), a.label("ep_ok")
    a(f"s_lshl_b32 {s(S_T0)}, s2, 3\ns_add_u32 {s(S_T0)}, {s(S_T0)}, {s(S_WAVE)}\ns_cmp_lg_u32 {s(S_T0)}, 0\ns_cbranch_scc1 {done}")
    a(f"s_mov_b32 {s(S_SPIN)}, 0")
    a(f"{top}:")
    for i in range(4):
        a(f"v_xor_b32 {v(2+i)}, {s(S_NON)}, {v(2+i)}")
    a("v_or_b32 v2, v2, v3\nv_or_b32 v4, v4, v5\nv_or_b32 v2, v2, v4\nv_cmp_ne_u32 vcc, 0, v2")
    a(f"s_cbranch_vccz {ok}")
    a(f"s_add_u32 {s(S_SPIN)}, {s(S_SPIN)}, 1\ns_cmp_ge_u32 {s(S_SPIN)}, {SPIN_MAX}\ns_cbranch_scc1 {ok}")
    epoch_flags_issue(a)
    a(f"s_waitcnt vmcnt(0)\ns_branch {top}")
    a(f"{ok}:")
    a(f"s_mov_b32 {s(S_T0)}, {WS_EP:#x}")
    flag_store(a, S_T0, 8, 9)
    a(f"{done}:")


def kernel(a):
    entry(a)
    prologue(a, False, 1)
    g1_compute(a)
    g1_epilogue(a)
    epoch_pre(a)
    g2_main(a)
    epoch_advance(a)
    stamp_flush(a)
    a("s_endpgm")
    a(".p2align 6\nL_load:")
    prologue(a)
    loader(a)
    a("s_branch L_bj")
    a(".p2align 6\nL_help:")
    prologue(a)
    helper(a)
    a("L_bj:")
    if opt("BST", 0): lstamp(a, 1)
    conv_addr(a)
    if opt("BST", 0): lstamp(a, 2)
    bsync(a, 4 if opt("CEARLY", 0) else 8)
    a(f"s_setprio {opt('PRC', 3)}")
    lstamp(a, 4)
    conv_main(a)
    lstamp(a, 6)
    final(a)
    stamp_flush(a)
    a("s_endpgm")
    a.L += COLD.L
    a("L_end:\ns_endpgm")


HEADER = open(f"cdna_kernels/{NAME}.s.ref").read().split("; Override launch")[0]


def build():
    a = Asm()
    kernel(a)
    out = HEADER + "; @launch grid=(256,1,1) block=(512,1,1) lds=163840\n"
    out += '.amdgcn_target "amdgcn-amd-amdhsa--gfx950"\n.text\n' + a.text()
    out += '.section .rodata,"a"\n.p2align 6\n' + kernel_desc(KNAME)
    return out


if __name__ == "__main__":
    open(sys.argv[1] if len(sys.argv) > 1 else "t_m.s", "w").write(build())
```

```python
import math, os, sys
from asmlib import *

NAME = "parallel_sum__ssm_conv_h3__geglu_ffn__prompt"
KNAME = NAME + "_kernel"
S, D, F = 2048, 512, 1376
NU = F // 16
STAMPS = os.environ.get("STAMPS") == "1"
def opt(name, default):
    return int(os.environ.get(name, default))

WS_HF, WS_KVR, WS_Y2, WS_ST, WS_CSP = 0, 0x600000, 0x800000, 0xA00000, 0xA10000
WS_F1, WS_F2, WS_F3, WS_F4, WS_EP = 0xA80000, 0xA88000, 0xAA0000, 0xAC0000, 0xAE0000
WS_STAMP = 0xC00000
WS_YG = 0x1000000
YSTR = 16384 + 256
WS_SIZE = 0x1500000
NONCE_INC = 0x9E3779B1
OOB = 0x7f000000
R_X, R_WG, R_WU, R_WS, R_K, R_V, R_SK, R_WD, R_OUT, R_H = 4, 8, 12, 16, 20, 24, 28, 32, 36, 40
S_DP = 44
S_EX = 46
(S_WAVE, S_MI, S_NI, S_FB0, S_NBLK, S_T0, S_T1, S_T2, S_T3, S_IT, S_SLOT, S_KC, S_XO, S_WO, S_WO2, S_M0,
 S_WB, S_SH, S_UH, S_TI, S_MT, S_NT, S_NON, S_RING, S_CNT, S_HO, S_DO, S_SPIN) = range(48, 76)
S_C = 76
S_DK, S_HK, S_KEND = 3, S_RING, S_CNT
SLOT, NSLOT = 40960, 3
L_KVT, KVT_STR = 122880, 80
L_CS, L_ST, L_CNT = 135680, 136704, 138752
HSTR = 4640
CH_STR = 4 * HSTR + 4224
L_CONV = 81920
L_XCH = 81920
L_YL = 114688
NRW = 7
KVL = opt("KVL", 0)
CFX, CFW, CFS, CFD = (os.environ.get(k, "") for k in ("CFX", "CFW", "CFS", "CFD"))
SLOTMAP = [2, 3, 4, 5, 6, 0, 1] if KVL else list(range(7))
L_RA0 = 127488
S_RA, S_RB = 101, S_M0
L_CSS = 139264
assert L_KVT + 2 * 64 * KVT_STR <= L_CS and L_CONV + 2 * CH_STR <= L_RA0 and L_RA0 + 8192 <= L_CS and L_CNT + 256 <= L_CSS
W_CNT, W_GATH, W_HP, W_FREE, W_FULL, W_NON, W_C0, W_ISS, W_WD, W_HI, W_WE = 0, 8, 12, 16, 32, 40, 48, 64, 80, 96, 112
S_DUM = 100
C1 = -2.0 * math.log2(math.e) * math.sqrt(2.0 / math.pi)
C2 = C1 * 0.044715
SPIN_MAX = 1 << 16
LSPIN_MAX = 1 << 22


def stamp(a, i):
    if STAMPS:
        a(f"{'s_memtime' if opt('CLK', 0) else 's_memrealtime'} {s(78+2*i,2)}")


def lstamp(a, i):
    if STAMPS and not opt("LDST", 0):
        lab = a.label("ls")
        a(f"s_cmp_ge_u32 {s(S_WB)}, 2\ns_cbranch_scc1 {lab}")
        stamp(a, i)
        a(f"{lab}:")


ITST = STAMPS and opt("ITST", 0)


def it_issue(a):
    if ITST:
        a("s_memrealtime s[96:97]")


def it_take(a, add):
    if ITST:
        a(f"s_add_u32 m0, {s(S_IT)}, {add}\ns_nop 0\nv_writelane_b32 v255, s96, m0")


def stamp_flush(a):
    if not STAMPS:
        return
    if ITST:
        a(f"s_lshl_b32 s96, s2, 3\ns_add_u32 s96, s96, {s(S_WAVE)}\ns_lshl_b32 s96, s96, 8\ns_add_u32 s96, s96, {WS_STAMP + 0x100000:#x}")
        a(f"v_lshlrev_b32 v2, 2, v0\nbuffer_store_dword v255, v2, {s(R_WS,4)}, s96 offen\ns_mov_b32 s96, 0")
    a("s_waitcnt vmcnt(0) lgkmcnt(0)")
    stamp(a, 10)
    a("s_waitcnt lgkmcnt(0)")
    for i in range(11):
        a(f"v_writelane_b32 v1, {s(78+2*i)}, {i}")
    a(f"s_lshl_b32 s78, s2, 3\ns_add_u32 s78, s78, {s(S_WAVE)}\ns_lshl_b32 s78, s78, 6\ns_add_u32 s78, s78, {WS_STAMP:#x}")
    a("v_lshlrev_b32 v2, 2, v0\ns_mov_b64 exec, 0x7ff")
    a(f"buffer_store_dword v1, v2, {s(R_WS,4)}, s78 offen")
    if opt("DBGST", 0):
        lab = a.label("dbg")
        a(f"s_cmp_lg_u32 s78, {WS_STAMP + opt('DBGW', 0)*64 + 100*512:#x}\ns_cbranch_scc1 {lab}")
        a("s_load_dwordx2 s[84:85], s[0:1], 88\ns_mov_b32 s86, 256\ns_mov_b32 s87, 0x20000\nv_readlane_b32 s82, v1, 0\ns_waitcnt lgkmcnt(0)")
        a("v_subrev_u32 v1, s82, v1")
        a("buffer_store_dword v1, v2, s[84:87], 0 offen")
        a(f"{lab}:")


TABLE = [(R_X, 0, S*D*2), (R_WG, 56, D*F*2), (R_WU, 64, D*F*2), (R_WS, 96, WS_SIZE), (R_K, 8, S*D*2), (R_V, 16, S*D*2),
         (R_SK, 24, D*8), (R_WD, 72, D*F*2), (R_OUT, 80, S*D*2), (R_H, 32, S*D*2)]


def entry(a):
    a(f".globl {KNAME}\n.p2align 8\n.type {KNAME},@function\n{KNAME}:")
    a("s_cmp_ge_u32 s2, 256\ns_cbranch_scc1 L_end")
    if opt("CPF", 0):
        n = opt("CPF", 0)
        a.c("pull this workgroup's share of the code into L2 ahead of the instruction fetch")
        a(f"s_getpc_b64 {s(S_EX,2)}\nL_pc:")
        a(f"s_lshr_b32 s3, s2, 3\nv_lshlrev_b32 v2, 5, v0\nv_add_u32 v2, s3, v2\nv_lshlrev_b32 v2, 7, v2\nv_mov_b32 v3, {s(S_EX+1)}")
        a(f"v_cmp_gt_u32 vcc, L_end-L_pc, v2\ns_and_saveexec_b64 {s(S_DP,2)}, vcc\ns_cbranch_execz L_nopf")
        a(f"v_add_co_u32 v2, vcc, {s(S_EX)}, v2\nv_addc_co_u32 v3, vcc, 0, v3, vcc")
        a("global_load_dword v212, v[2:3], off")
        a("L_nopf:\ns_mov_b64 exec, -1")
    a("v_lshrrev_b32 v1, 6, v0")
    a(f"s_load_dwordx2 {s(R_X,2)}, s[0:1], 0\ns_load_dwordx2 {s(R_WS,2)}, s[0:1], 96")
    stamp(a, 0)
    a(f"v_readfirstlane_b32 {s(S_WAVE)}, v1")
    a("v_and_b32 v0, 63, v0")
    a(f"s_cmp_ge_u32 {s(S_WAVE)}, 6\ns_cbranch_scc1 L_help")
    a(f"s_cmp_ge_u32 {s(S_WAVE)}, 4\ns_cbranch_scc1 L_load")


def prologue(a, bar=True, part=3):
    first = (R_X, R_WG, R_WU)
    if part & 1:
        for r, off, size in TABLE:
            if r in first[1:]:
                a(f"s_load_dwordx2 {s(r,2)}, s[0:1], {off}")
    if part & 2:
        for r, off, size in TABLE:
            if r not in first + (R_WS,):
                a(f"s_load_dwordx2 {s(r,2)}, s[0:1], {off}")
        a(f"s_load_dwordx2 {s(S_DP,2)}, s[0:1], 40")
        if STAMPS:
            for i in range(1, 11):
                a(f"s_mov_b32 {s(78+2*i)}, 0")
        if ITST:
            a("v_mov_b32 v255, 0")
    if part & 1 and not bar:
        a.c("LDS hand-off words start at zero")
        a(f"v_mov_b32 v20, 0\nv_lshlrev_b32 v5, 2, v0\nv_add_u32 v5, {L_CNT}, v5\nds_write_b32 v5, v20")
    for r, off, size in TABLE:
        if part & (1 if r in first else 2):
            a(f"s_mov_b32 {s(r+2)}, {size:#x}\ns_mov_b32 {s(r+3)}, 0x20000")
    if part & 1:
        a.c("x = wg&7, j = wg>>3; GEMM1 tile mi = 8*(x&1) + (j&7), ni = 4*(x>>1) + (j>>3); ti = 16*mi + ni")
        a(f"s_and_b32 {s(S_T0)}, s2, 1\ns_lshl_b32 {s(S_T0)}, {s(S_T0)}, 3")
        a(f"s_bfe_u32 {s(S_T1)}, s2, 0x30003\ns_add_u32 {s(S_MI)}, {s(S_T0)}, {s(S_T1)}")
        a(f"s_bfe_u32 {s(S_T0)}, s2, 0x20001\ns_lshl_b32 {s(S_T0)}, {s(S_T0)}, 2")
        a(f"s_lshr_b32 {s(S_T2)}, s2, 6\ns_add_u32 {s(S_NI)}, {s(S_T0)}, {s(S_T2)}")
        a.c("first 32-col block fb0 = 3*ni - (ni>>2) - (ni==15); nblk = 2 for ni in {3,7,11,14,15}")
        a(f"s_mul_i32 {s(S_FB0)}, {s(S_NI)}, 3\ns_lshr_b32 {s(S_T0)}, {s(S_NI)}, 2\ns_sub_u32 {s(S_FB0)}, {s(S_FB0)}, {s(S_T0)}")
        a(f"s_cmp_eq_u32 {s(S_NI)}, 15\ns_subb_u32 {s(S_FB0)}, {s(S_FB0)}, 0")
        a(f"s_bitcmp1_b32 0xc888, {s(S_NI)}\ns_cselect_b32 {s(S_NBLK)}, 2, 3")
        a(f"s_and_b32 {s(S_WB)}, {s(S_WAVE)}, 3")
        a.c("GEMM1 DMA lane offsets. x: (l>>3)*1024 + ((l&7) ^ ((4*(w&1) + l>>4)&7))*16 ; W: (l>>2)*2752 + ((l&3) ^ (2*(l>>5)))*16")
        a(f"s_and_b32 {s(S_T0)}, {s(S_WAVE)}, 1\ns_lshl_b32 {s(S_T0)}, {s(S_T0)}, 2")
        a(f"v_lshrrev_b32 v5, 4, v0\nv_add_u32 v5, {s(S_T0)}, v5\nv_and_b32 v6, 7, v0\nv_xor_b32 v5, v5, v6\nv_lshlrev_b32 v5, 4, v5")
        a(f"v_lshrrev_b32 v6, 3, v0\nv_lshl_add_u32 {v(VB_X)}, v6, 10, v5")
        a(f"v_lshrrev_b32 v5, 5, v0\nv_lshlrev_b32 v5, 1, v5\nv_and_b32 v6, 3, v0\nv_xor_b32 v5, v5, v6\nv_lshlrev_b32 v5, 4, v5")
        a(f"v_lshrrev_b32 v6, 2, v0\nv_mul_u32_u24 v6, {F*2}, v6\nv_add_u32 {v(VB_W)}, v6, v5")
        if not bar:
            a(f"s_lshl_b32 {s(S_XO)}, {s(S_MI)}, 17\ns_lshl_b32 {s(S_T0)}, {s(S_WB)}, 13\ns_add_u32 {s(S_XO)}, {s(S_XO)}, {s(S_T0)}")
            a(f"s_mul_i32 {s(S_WO)}, {s(S_WB)}, {16*F*2}\ns_lshl_b32 {s(S_T0)}, {s(S_FB0)}, 6\ns_add_u32 {s(S_WO)}, {s(S_WO)}, {s(S_T0)}")
            a(f"s_cmp_eq_u32 {s(S_NBLK)}, 3\ns_cselect_b32 {s(S_WO2)}, {s(S_WO)}, {OOB:#x}")
            a(f"s_lshl_b32 {s(S_M0)}, {s(S_WB)}, 10")
    if part & 2:
        a(f"s_lshl_b32 {s(S_TI)}, {s(S_MI)}, 4\ns_add_u32 {s(S_TI)}, {s(S_TI)}, {s(S_NI)}")
        a.c("GEMM2 tile mt = 4*x + (j&3), nt = j>>2")
        a(f"s_and_b32 {s(S_T0)}, s2, 7\ns_lshl_b32 {s(S_T0)}, {s(S_T0)}, 2\ns_bfe_u32 {s(S_T1)}, s2, 0x20003\ns_add_u32 {s(S_MT)}, {s(S_T0)}, {s(S_T1)}")
        a(f"s_lshr_b32 {s(S_NT)}, s2, 5\ns_mov_b32 {s(S_SPIN)}, 0")
    if bar:
        a(f"s_mov_b32 {s(S_UH)}, 0\nv_lshlrev_b32 v4, 4, v0\nv_mov_b32 {v(C_CNT)}, {L_CNT}\nv_mov_b32 {v(C_ONE)}, 1\ns_mov_b32 {s(S_C)}, 0xffff0000")
    if part & 1:
        a("s_waitcnt lgkmcnt(0)")
    if bar is True:
        a("s_barrier")


VB_X, VB_W = 14, 15
C_CNT, C_ONE = 252, 253


def poll(a, vaddr, vtmp):
    top, done = a.label("poll"), a.label("poll_ok")
    a(f"s_mov_b32 {s(S_SPIN)}, 0")
    a(f"{top}:")
    a(f"buffer_load_dword {v(vtmp)}, {v(vaddr)}, {s(R_WS,4)}, 0 offen sc1")
    a("s_waitcnt vmcnt(0)")
    a(f"v_cmp_ne_u32 vcc, {s(S_NON)}, {v(vtmp)}")
    a(f"s_cbranch_vccz {done}")
    a(f"s_sleep {opt('PSG' if vaddr == G_FL else 'PSY', 4)}")
    a(f"s_add_u32 {s(S_SPIN)}, {s(S_SPIN)}, 1\ns_cmp_lt_u32 {s(S_SPIN)}, {SPIN_MAX}\ns_cbranch_scc1 {top}")
    a(f"{done}:")


def poll2_issue(a, vaddr, vt):
    a(f"buffer_load_dwordx2 {v(vt,2)}, {v(vaddr)}, {s(R_WS,4)}, 0 offen sc1")


def poll2_check(a, vaddr, vt):
    top, done = a.label("poll"), a.label("poll_ok")
    a(f"s_mov_b32 {s(S_SPIN)}, 0")
    a(f"{top}:")
    a(f"v_cmp_ne_u32 vcc, {s(S_NON)}, {v(vt)}\nv_cmp_ne_u32 {s(S_EX,2)}, {s(S_NON)}, {v(vt+1)}")
    a(f"s_nop 0\ns_or_b64 vcc, vcc, {s(S_EX,2)}")
    a(f"s_cbranch_scc0 {done}")
    a(f"s_add_u32 {s(S_SPIN)}, {s(S_SPIN)}, 1\ns_cmp_ge_u32 {s(S_SPIN)}, {SPIN_MAX}\ns_cbranch_scc1 {done}")
    a(f"s_sleep {opt('PS2', 1)}")
    poll2_issue(a, vaddr, vt)
    a(f"s_waitcnt vmcnt(0)\ns_branch {top}")
    a(f"{done}:")


class VQ:
    def __init__(self, a):
        self.a, self.q = a, []
    def add(self, tag, n):
        self.q += [tag] * n
    def count(self, *tags):
        last = max((i for i, x in enumerate(self.q) if x in tags), default=-1)
        n = len(self.q) - 1 - last
        assert n <= 63
        return n
    def wait(self, *tags):
        self.a(f"s_waitcnt vmcnt({self.count(*tags)})")


def flag_store(a, soff, vt0, vt1):
    a(f"v_mov_b32 {v(vt0)}, {s(S_NON)}\nv_mov_b32 {v(vt1)}, 0")
    a("s_mov_b64 exec, 1")
    a(f"buffer_store_dword {v(vt0)}, {v(vt1)}, {s(R_WS,4)}, {s(soff)} offen sc1")
    a("s_mov_b64 exec, -1")


def epoch_load(a, vt):
    a(f"v_mov_b32 {v(vt)}, {WS_EP:#x}")
    a(f"buffer_load_dword {v(vt)}, {v(vt)}, {s(R_WS,4)}, 0 offen sc1")


def epoch_take(a, vt):
    a(f"v_readfirstlane_b32 {s(S_NON)}, {v(vt)}")
    a("s_nop 0")
    a(f"s_add_u32 {s(S_NON)}, {s(S_NON)}, {NONCE_INC:#x}")


V_XA0, V_XA1, V_W = 2, 3, 4
V_XC0, V_XC1, V_WC = 7, 8, 9
ACC, F0, F1 = 16, 112, 152
G_ACC, G_WF, G_H = 176, 16, 80
G_L16, G_WD, G_TR, G_TR0, G_TR5, G_FL = 240, 241, 242, 246, 250, 254
NHB, NWF, NSTEP = 6, 4, 11
G_HT = 255


def acc(u, mat, sb):
    return ACC + ((u * 2 + mat) * 4 + sb) * 4


def g1_reads(fr, step, units):
    out = []
    for u in units:
        if u == 'x':
            for sb in range(4):
                out.append(f"ds_read_b128 {v(fr+4*sb,4)}, {v(V_XC1 if step else V_XC0)} offset:{sb*2048}")
            continue
        for mat in range(2):
            r = fr + 16 + (u * 2 + mat) * 4
            for t in range(2):
                out.append(f"ds_read_b64_tr_b16 {v(r+2*t,2)}, {v(V_WC+u)} offset:{mat*12288+step*2048+t*256}")
    return out


def g1_mfmas(fr, units):
    out = []
    for u in units:
        for mat in range(2):
            for sb in range(4):
                c = acc(u, mat, sb)
                out.append(f"v_mfma_f32_16x16x32_bf16 {v(c,4)}, {v(fr+16+(u*2+mat)*4,4)}, {v(fr+4*sb,4)}, {v(c,4)}")
    return out


V_LW, V_FC, V_FL = 12, 13, 192


COLD = Asm()


def g1_step_a(a):
    rd = g1_reads(F1, 1, ['x', 0, 1, 2])
    for i, m in enumerate(g1_mfmas(F0, [0, 1])):
        if i == 0:
            a("s_waitcnt lgkmcnt(8)")
        if i == 8:
            a("s_waitcnt lgkmcnt(12)")
            a(f"ds_read_b32 {v(V_FL)}, {v(V_FL+1)} offset:{W_FULL}")
        a(rd[i])
        a(m)
    a(f"ds_write_b32 {v(V_FL+2)}, {v(V_FC)}")
    lab = a.label("g1_skip")
    a(f"s_cbranch_vccnz {lab}")
    a("s_waitcnt lgkmcnt(15)")
    for l in g1_mfmas(F0, [2]):
        a(l)
    a(f"{lab}:")


def g1_step_b(a):
    mf = g1_mfmas(F1, [0, 1])
    rd = g1_reads(F0, 0, ['x', 0, 1, 2])
    slow, lab, lab2 = a.label("g1_slow"), a.label("g1_skip"), a.label("g1_skip")
    a("s_waitcnt lgkmcnt(9)")
    a(mf[0])
    a(f"v_add_u32 {v(V_XC0)}, {s(S_SLOT)}, {v(V_XA0)}")
    a(mf[1])
    a(f"v_readfirstlane_b32 {s(S_T0)}, {v(V_FL)}")
    a(f"v_add_u32 {v(V_WC)}, {s(S_SLOT)}, {v(V_W)}")
    a(mf[2])
    extra = [f"v_add_u32 {v(V_WC+1)}, {s(S_SLOT)}, {v(V_W+1)}", f"v_add_u32 {v(V_WC+2)}, {s(S_SLOT)}, {v(V_W+2)}",
             f"v_add_u32 {v(V_XC1)}, {s(S_SLOT)}, {v(V_XA1)}", f"v_add_u32 {v(V_FC)}, 1, {v(V_FC)}"]
    flip = f"v_xor_b32 {v(V_FL+1)}, 4, {v(V_FL+1)}"
    a(f"s_cmp_lt_u32 {s(S_T0)}, {s(S_T2)}\ns_cbranch_scc1 {slow}")
    r, e = list(rd), extra + [flip]
    for i, m in enumerate(mf[3:]):
        if i == 5:
            a("s_waitcnt lgkmcnt(13)")
        a(r.pop(0))
        if i < 3:
            a(r.pop(0))
        if e:
            a(e.pop(0))
        a(m)
    assert not r
    a(f"s_cbranch_vccnz {lab}")
    a("s_waitcnt lgkmcnt(15)")
    for l in g1_mfmas(F1, [2]):
        a(l)
    a(f"{lab}:")
    if ITST:
        it_issue(a)
        a("s_waitcnt lgkmcnt(0)")
        it_take(a, 16)
    a(f"s_cmp_lt_u32 {s(S_IT)}, 8")
    a("s_cbranch_scc1 g1_loop")
    main, a = a, COLD
    a.nlabel = main.nlabel + 5000
    a.c("next chunk not in yet: finish this one first")
    a(f"{slow}:")
    a("s_waitcnt lgkmcnt(0)")
    for l in interleave(mf[3:], extra, 0, 1):
        a(l)
    a(f"s_cbranch_vccnz {lab2}")
    for l in g1_mfmas(F1, [2]):
        a(l)
    a(f"{lab2}:")
    lds_min_wait(a, V_FL+1, W_FULL, 1, s(S_T2), V_FL)
    if ITST:
        it_issue(a)
        a("s_waitcnt lgkmcnt(0)")
        it_take(a, 32)
    for l in rd:
        a(l)
    a(flip)
    a("s_branch g1_loop")


def dma_chunk0(a):
    for i in range(4):
        a(f"s_add_u32 m0, {s(S_M0)}, {i*4096}")
        a(f"s_add_u32 {s(S_XO)}, {s(S_XO)}, 32768" if i else "s_nop 0")
        a(f"buffer_load_dwordx4 {v(VB_X)}, {s(R_X,4)}, {s(S_XO)} offen {CFX} lds")
    for blk in range(3):
        for mat in range(2):
            a(f"s_add_u32 m0, {s(S_M0)}, {16384 + (mat*3+blk)*4096 - 64*blk}")
            a("s_nop 0")
            a(f"buffer_load_dwordx4 {v(VB_W)}, {s(R_WU if mat else R_WG,4)}, {s(S_WO2 if blk == 2 else S_WO)} offen offset:{64*blk} {CFW} lds")


def spf(a, srd, sbase, offs):
    for o in offs:
        a(f"s_buffer_load_dword {s(S_DUM)}, {s(srd,4)}, {s(sbase)} offset:{o:#x}")


def lds_min_wait(a, vaddr, off, n, target, vt, nap=None):
    lab = a.label("lw")
    a(f"{lab}:")
    a(f"ds_read_b{32*n} {v(vt,n)}, {v(vaddr)} offset:{off}")
    a("s_waitcnt lgkmcnt(0)")
    if n == 4:
        a(f"v_min3_u32 {v(vt)}, {v(vt)}, {v(vt+1)}, {v(vt+2)}\nv_min_u32 {v(vt)}, {v(vt)}, {v(vt+3)}")
    elif n == 2:
        a(f"v_min_u32 {v(vt)}, {v(vt)}, {v(vt+1)}")
    a("s_nop 0")
    a(f"v_readfirstlane_b32 {s(S_T0)}, {v(vt)}")
    a("s_nop 0")
    done = a.label("lw_ok")
    a(f"s_cmp_ge_u32 {s(S_T0)}, {target}\ns_cbranch_scc1 {done}")
    if nap is None:
        nap = opt("NAP", 1) if vaddr == C_CNT else 0
    if nap:
        a(f"s_sleep {nap}")
    a(f"s_add_u32 {s(S_SPIN)}, {s(S_SPIN)}, 1\ns_cmp_lt_u32 {s(S_SPIN)}, {LSPIN_MAX}\ns_cbranch_scc1 {lab}")
    a(f"{done}:")


def lds_inc(a, vaddr, vone, off):
    a(f"s_mov_b64 exec, 1\nds_add_u32 {v(vaddr)}, {v(vone)} offset:{off}\ns_mov_b64 exec, -1")


WDE = opt("WDE", 0)


def wd_setup(a, first, S_WB=S_WB):
    a.c("Wd DMA lane offset: (l>>3)*1024 + ((l&7) ^ (((l>>4)&3)<<1))*16")
    a(f"v_lshrrev_b32 v12, 4, v0\nv_lshlrev_b32 v13, 1, v12\nv_and_b32 v14, 7, v0\nv_xor_b32 v13, v13, v14\nv_lshlrev_b32 v13, 4, v13\nv_lshrrev_b32 v14, 3, v0\nv_lshl_add_u32 {v(G_WD)}, v14, 10, v13")
    a(f"s_lshl_b32 {s(S_KC)}, {s(S_WB)}, 12")
    a(f"s_lshl_b32 {s(S_RA)}, {s(S_WB)}, 13\ns_add_u32 {s(S_RB)}, {s(S_RA)}, {131072 + 16384}\ns_add_u32 {s(S_RA)}, {s(S_RA)}, 131072\ns_cmp_eq_u32 {s(S_WB)}, 0\ns_cselect_b32 {s(S_RA)}, {L_RA0}, {s(S_RA)}")
    if opt("ROT", 1):
        a(f"s_and_b32 {s(S_T0)}, {s(S_MT)}, 3\ns_mul_i32 {s(S_T0)}, {s(S_T0)}, 3\ns_mul_i32 {s(S_T1)}, {s(S_NT)}, 7\ns_add_u32 {s(S_T0)}, {s(S_T0)}, {s(S_T1)}")
        a(f"s_mul_i32 {s(S_T1)}, {s(S_T0)}, 187\ns_lshr_b32 {s(S_T1)}, {s(S_T1)}, 11\ns_mul_i32 {s(S_T1)}, {s(S_T1)}, 11\ns_sub_u32 {s(S_T0)}, {s(S_T0)}, {s(S_T1)}")
    else:
        a(f"s_mov_b32 {s(S_T0)}, 0")
    a(f"s_add_u32 {s(S_DK)}, {s(S_T0)}, {first}\ns_sub_u32 {s(S_T1)}, {s(S_DK)}, 11\ns_cmp_ge_u32 {s(S_DK)}, 11\ns_cselect_b32 {s(S_DK)}, {s(S_T1)}, {s(S_DK)}")
    a(f"s_mul_i32 {s(S_DO)}, {s(S_WB)}, {NSTEP*32768}\ns_lshl_b32 {s(S_T1)}, {s(S_NT)}, 7\ns_add_u32 {s(S_DO)}, {s(S_DO)}, {s(S_T1)}")


def g2_setup(a):
    a(f"v_lshlrev_b32 {v(G_L16)}, 4, v0")
    wd_setup(a, NRW)
    a(f"s_mov_b32 {s(S_HK)}, {s(S_T0)}")
    a(f"s_cmp_eq_u32 {s(S_WAVE)}, 3\ns_cselect_b32 {s(S_KEND)}, 10, 99")
    a.c("tr address: w*4096 + (l>>2)*128 + ((db ^ ((l>>3)&3))*32) + (l&3)*8")
    a(f"v_lshrrev_b32 v13, 2, v0\nv_lshlrev_b32 v13, 7, v13\nv_and_b32 v15, 3, v0\nv_lshl_add_u32 v13, v15, 3, v13\nv_add_u32 v13, {s(S_KC)}, v13\nv_and_b32 v14, 3, v14")
    a(f"s_sub_u32 {s(S_T1)}, {s(S_RA)}, {s(S_KC)}")
    for db in range(4):
        a(f"v_xor_b32 v15, {db}, v14\nv_lshl_add_u32 {v(G_TR+db)}, v15, 5, v13\nv_add_u32 {v(G_TR0+db)}, {s(S_T1)}, {v(G_TR+db)}\nv_add_u32 {v(G_TR5+db)}, 0x10000, {v(G_TR+db)}")
    a(f"s_mul_i32 {s(S_HO)}, {s(S_MT)}, {2*NU*1024}\ns_mul_i32 {s(S_T0)}, {s(S_WAVE)}, {NSTEP*2048}\ns_add_u32 {s(S_HO)}, {s(S_HO)}, {s(S_T0)}")
    a.c("H flags this wave needs: F3[mt*32 + 8w + (l&7)]")
    a(f"s_lshl_b32 {s(S_T0)}, {s(S_MT)}, 2\ns_add_u32 {s(S_T0)}, {s(S_T0)}, {s(S_WAVE)}\ns_lshl_b32 {s(S_T0)}, {s(S_T0)}, 10\ns_add_u32 {s(S_T0)}, {s(S_T0)}, {WS_F3:#x}")
    if not opt("HT", 0):
        a(f"v_and_b32 v12, 7, v0\nv_lshlrev_b32 v12, 7, v12\nv_add_u32 {v(G_FL)}, {s(S_T0)}, v12")
        return
    a.c("lane (U = l>>1, p = l&1) watches the producer of unit U and pulls line nt of that unit into L2")
    a(f"s_cmp_eq_u32 {s(S_WAVE)}, 3\ns_cselect_b32 {s(S_T1)}, 2, 3\ns_cselect_b32 {s(S_T2)}, 19, 21")
    a(f"v_lshrrev_b32 v12, 1, v0\nv_min_u32 v12, {s(S_T2)}, v12\nv_mul_u32_u24 v13, 0x56, v12\nv_lshrrev_b32 v13, 8, v13")
    a(f"v_and_b32 v15, 1, v0\nv_mul_u32_u24 v15, {NU}, v15\nv_add_u32 v15, v15, v12\nv_lshlrev_b32 v15, 10, v15\ns_lshl_b32 {s(S_T2)}, {s(S_NT)}, 7\nv_add_u32 {v(G_HT)}, {s(S_T2)}, v15")
    a(f"v_lshrrev_b32 v12, 1, v12\nv_subrev_u32 v12, {s(S_T1)}, v12")
    a(f"v_max_i32 v12, v12, v13\nv_lshlrev_b32 v12, 7, v12\nv_add_u32 {v(G_FL)}, {s(S_T0)}, v12")


def g1_compute(a):
    a(f"s_setprio {opt('PRA', 3)}")
    if opt("TOUCH", 0):
        l1, l2 = a.label("tc"), a.label("tc")
        a(f"s_mov_b32 {s(R_K+3)}, 0x20000")
        a(f"s_cmp_ge_u32 {s(S_WAVE)}, 2\ns_cbranch_scc1 {l1}")
        a(f"s_lshl_b32 {s(S_T2)}, {s(S_WAVE)}, 8\ns_add_u32 {s(R_K)}, {s(R_X)}, {s(S_T2)}\ns_addc_u32 {s(R_K+1)}, {s(R_X+1)}, 0\ns_mov_b32 {s(R_K+2)}, {S*D*2 - 256:#x}")
        RX0 = R_X
        globals()["R_X"] = R_K
        touch_x(a, (0, 4) if opt("TOUCH", 0) == 2 else (0,), 1)
        globals()["R_X"] = RX0
        a(f"s_branch {l2}\n{l1}:")
        a(f"s_cmp_eq_u32 {s(S_WAVE)}, 2\ns_cselect_b64 {s(R_K,2)}, {s(R_WG,2)}, {s(R_WU,2)}\ns_mov_b32 {s(R_K+2)}, {D*F*2:#x}")
        touch_w(a, 0, (R_K,), 1)
        a(f"{l2}:")
    dma_chunk0(a)
    a("s_barrier")
    prologue(a, False, 2)
    if opt("SPF", 0):
        a.c("warm the lines the column sums need: rows 32mi + 16*(w&1).. of gate (w<2) or up")
        a(f"s_cmp_lt_u32 {s(S_WAVE)}, 2\ns_cselect_b64 {s(R_K,2)}, {s(R_WG,2)}, {s(R_WU,2)}\ns_mov_b32 {s(R_K+2)}, {D*F*2:#x}")
        a(f"s_lshl_b32 {s(S_T0)}, {s(S_MI)}, 1\ns_and_b32 {s(S_T1)}, {s(S_WAVE)}, 1\ns_add_u32 {s(S_T0)}, {s(S_T0)}, {s(S_T1)}\ns_mul_i32 {s(S_XO)}, {s(S_T0)}, {16*F*2}")
        a(f"s_lshl_b32 {s(S_T1)}, {s(S_FB0)}, 6\ns_add_u32 {s(S_XO)}, {s(S_XO)}, {s(S_T1)}")
        spf(a, R_K, S_XO, [r*F*2 + h*128 for r in range(7) for h in range(2)])
    a(f"s_and_b32 {s(S_SH)}, {s(S_WAVE)}, 1\ns_lshr_b32 {s(S_UH)}, {s(S_WAVE)}, 1")
    a.c("x fragment address: (64*sh + s16)*128 + ((kg ^ ((s16>>1)&7))*16)")
    a("v_and_b32 v10, 15, v0\nv_lshrrev_b32 v11, 4, v0\nv_lshrrev_b32 v12, 1, v10\nv_xor_b32 v12, v12, v11\nv_lshlrev_b32 v12, 4, v12")
    a(f"v_lshl_add_u32 {v(V_XA0)}, v10, 7, v12\ns_lshl_b32 {s(S_T0)}, {s(S_SH)}, 13\nv_add_u32 {v(V_XA0)}, {s(S_T0)}, {v(V_XA0)}")
    a(f"v_xor_b32 {v(V_XA1)}, 64, {v(V_XA0)}")
    a.c("W fragment address: 16384 + blk*4096 + kg*512 + r*64 + ((h^(kg&1))*32) + c*8")
    a("v_lshlrev_b32 v12, 9, v11\nv_bfe_u32 v13, v0, 2, 2\nv_lshl_add_u32 v12, v13, 6, v12\nv_and_b32 v13, 3, v0\nv_lshl_add_u32 v12, v13, 3, v12")
    a("v_and_b32 v13, 1, v11\nv_lshl_add_u32 v12, v13, 5, v12")
    a(f"s_mul_i32 {s(S_T0)}, {s(S_UH)}, {s(S_NBLK)}")
    for u in range(3):
        a(f"s_add_u32 {s(S_T1)}, {s(S_T0)}, {u}\ns_and_b32 {s(S_T2)}, {s(S_T1)}, 1\ns_lshl_b32 {s(S_T2)}, {s(S_T2)}, 5")
        a(f"s_lshr_b32 {s(S_T1)}, {s(S_T1)}, 1\ns_lshl_b32 {s(S_T1)}, {s(S_T1)}, 12\ns_add_u32 {s(S_T1)}, {s(S_T1)}, 16384")
        a(f"v_xor_b32 {v(V_W+u)}, {s(S_T2)}, v12\nv_add_u32 {v(V_W+u)}, {s(S_T1)}, {v(V_W+u)}")
    g2_setup(a)
    ep_setup(a)
    for i in range(48):
        a(f"v_pk_mov_b32 {v(ACC+2*i,2)}, 0, 0")
    for i in range(5):
        a(f"v_mov_b32 {v(V_XC0+i)}, {v(V_XA0+i)}")
    a(f"s_mov_b32 {s(S_IT)}, 0\ns_mov_b32 {s(S_SLOT)}, 0")
    a(f"v_mov_b32 {v(V_LW)}, {L_CNT}\nv_mov_b32 {v(V_FL+1)}, {L_CNT}\nv_mov_b32 {v(V_FC)}, 1\ns_lshl_b32 {s(S_T0)}, {s(S_WAVE)}, 2\ns_add_u32 {s(S_T0)}, {s(S_T0)}, {L_CNT + W_FREE}\nv_mov_b32 {v(V_FL+2)}, {s(S_T0)}")
    a.c("vcc != 0 marks a two-block tile")
    a(f"s_cmp_eq_u32 {s(S_NBLK)}, 2\ns_cselect_b64 vcc, -1, 0")
    if opt("SPF", 0):
        spf(a, R_K, S_XO, [r*F*2 + h*128 for r in range(7, 16) for h in range(2)])
    stamp(a, 1)
    a("s_waitcnt vmcnt(0)")
    a(f"ds_write_b32 {v(V_FL+2)}, {v(V_FC)} offset:{W_C0 - W_FREE}")
    lds_min_wait(a, V_LW, W_C0, 4, 1, 196)
    stamp(a, 2)
    for l in g1_reads(F0, 0, ['x', 0, 1, 2]):
        a(l)
    a("s_waitcnt lgkmcnt(0)")
    a("g1_loop:")
    a(f"s_add_u32 {s(S_SLOT)}, {s(S_SLOT)}, {SLOT}\ns_cmp_eq_u32 {s(S_SLOT)}, {NSLOT*SLOT}\ns_cselect_b32 {s(S_SLOT)}, 0, {s(S_SLOT)}")
    a(f"s_add_u32 {s(S_IT)}, {s(S_IT)}, 1\ns_and_b32 {s(S_T2)}, {s(S_IT)}, 7")
    g1_step_a(a)
    if ITST:
        it_issue(a)
        a("s_waitcnt lgkmcnt(0)")
        it_take(a, 0)
    g1_step_b(a)
    stamp(a, 3)


def wd_dma(i, rings=1):
    sl = SLOTMAP[i % NRW]
    ops = []
    n = 4 * rings
    for q in range(n):
        pre = f"s_lshl_b32 {s(S_T3)}, {s(S_DK)}, 15\ns_add_u32 {s(S_T3)}, {s(S_T3)}, {s(S_DO)}\n" if q == 0 else ""
        inc = 8192 if q != 4 else 2*NSTEP*32768 - 3*8192
        mid = "s_nop 0" if q == 0 else f"s_add_u32 {s(S_T3)}, {s(S_T3)}, {inc}"
        post = f"\ns_add_u32 {s(S_DK)}, {s(S_DK)}, 1\ns_cmp_eq_u32 {s(S_DK)}, 11\ns_cselect_b32 {s(S_DK)}, 0, {s(S_DK)}" if q == n - 1 else ""
        m0 = f"{s(S_RB if q >> 2 else S_RA)}, {sl*4096 + (q&3)*1024}" if sl < 2 else f"{s(S_KC)}, {(sl-2)*16384 + (q&3)*1024 + (q>>2)*8192}"
        ops.append(pre + f"s_add_u32 m0, {m0}\n{mid}\n"
                   f"buffer_load_dwordx4 {v(G_WD)}, {s(R_WD,4)}, {s(S_T3)} offen {CFD} lds" + post)
    return ops


def h_loads(i):
    hb = G_H + (i % NHB) * 16
    pre = (f"s_lshl_b32 {s(S_T1)}, {s(S_HK)}, 11\ns_add_u32 {s(S_T1)}, {s(S_T1)}, {s(S_HO)}\n"
           f"s_cmp_eq_u32 {s(S_HK)}, {s(S_KEND)}\ns_cselect_b32 {s(S_T1)}, {OOB:#x}, {s(S_T1)}\n")
    post = f"\ns_add_u32 {s(S_HK)}, {s(S_HK)}, 1\ns_cmp_eq_u32 {s(S_HK)}, 11\ns_cselect_b32 {s(S_HK)}, 0, {s(S_HK)}"
    ld = lambda r, off: f"buffer_load_dwordx4 {v(r,4)}, {v(G_L16)}, {s(R_WS,4)}, {s(S_T1)} offen offset:{off} sc1"
    return [pre + ld(hb, 0), ld(hb+4, 1024), f"s_add_u32 {s(S_T1)}, {s(S_T1)}, {NU*1024}\n" + ld(hb+8, 0), ld(hb+12, 1024) + post]


S_H0, S_H1 = S_XO, S_WO
E_A, E_ST = 208, 144


def ep_setup(a):
    a.c("epilogue addresses: row constants, column sums; HF offset = ((4*mi + 2*sh + pp)*86 + 2*fb0 + uu)*1024 + lane*16")
    a(f"v_and_b32 v10, 15, v0\nv_lshlrev_b32 v10, 4, v10\ns_lshl_b32 {s(S_T0)}, {s(S_SH)}, 10\ns_add_u32 {s(S_T0)}, {s(S_T0)}, {L_ST}\nv_add_u32 {v(E_A)}, {s(S_T0)}, v10")
    a(f"s_mul_i32 {s(S_T1)}, {s(S_UH)}, {s(S_NBLK)}\ns_lshl_b32 {s(S_T0)}, {s(S_T1)}, 6\ns_add_u32 {s(S_T0)}, {s(S_T0)}, {L_CS}")
    a(f"v_and_b32 v11, 48, v0\nv_add_u32 {v(E_A+1)}, {s(S_T0)}, v11")
    a(f"s_lshl_b32 {s(S_T0)}, {s(S_MI)}, 1\ns_add_u32 {s(S_T0)}, {s(S_T0)}, {s(S_SH)}\ns_mul_i32 {s(S_T0)}, {s(S_T0)}, {2*NU}")
    a(f"s_lshl_b32 {s(S_T2)}, {s(S_FB0)}, 1\ns_add_u32 {s(S_T0)}, {s(S_T0)}, {s(S_T2)}\ns_add_u32 {s(S_T0)}, {s(S_T0)}, {s(S_T1)}\ns_lshl_b32 {s(S_H0)}, {s(S_T0)}, 10")
    a(f"s_add_u32 {s(S_H1)}, {s(S_H0)}, {NU*1024}")
    a(f"s_lshl_b32 {s(S_T0)}, {s(S_SH)}, 2\ns_add_u32 {s(S_T0)}, {s(S_T0)}, {L_CNT}\nv_mov_b32 v15, {s(S_T0)}")


def g1_epilogue(a):
    VST, VCS, T = 112, 216, 168
    top, ok = a.label("ga"), a.label("ga_ok")
    a(f"{top}:")
    a(f"ds_read_b32 v14, {v(V_LW)} offset:{W_GATH}")
    for sb in range(4):
        a(f"ds_read_b128 {v(E_ST+4*sb,4)}, {v(E_A)} offset:{sb*256}")
    for u in range(3):
        for mat in range(2):
            a(f"ds_read_b128 {v(VCS+4*(u*2+mat),4)}, {v(E_A+1)} offset:{mat*512+u*64}")
    a(f"ds_read_b32 v1, {v(V_LW)} offset:{W_NON}")
    a(f"v_mov_b32 v13, 1\ns_waitcnt lgkmcnt(7)\nv_readfirstlane_b32 {s(S_T0)}, v14")
    for i in range(4):
        a(f"v_mov_b32 {v(VST+2*i)}, {v(E_ST+i)}\nv_mov_b32 {v(VST+2*i+1)}, {v(E_ST+i)}")
    a(f"s_cmp_ge_u32 {s(S_T0)}, 2\ns_cbranch_scc1 {ok}")
    a(f"s_add_u32 {s(S_SPIN)}, {s(S_SPIN)}, 1\ns_cmp_lt_u32 {s(S_SPIN)}, {LSPIN_MAX}\ns_cbranch_scc1 {top}")
    a(f"{ok}:")
    stamp(a, 4)
    for i in range(4, 16):
        a(f"v_mov_b32 {v(VST+2*i)}, {v(E_ST+i)}\nv_mov_b32 {v(VST+2*i+1)}, {v(E_ST+i)}")
    a("s_waitcnt lgkmcnt(0)")
    a(f"v_readfirstlane_b32 {s(S_NON)}, v1")
    lab, lab2 = a.label("ep_two"), a.label("ep_done")
    if opt("EPST", 0): stamp(a, 3)

    def group(u, pp):
        out = []
        o = T + 32 + 4 * pp
        pairs = [(2*pp + (q >> 1), q & 1, T + 8*q) for q in range(4)]
        def each(f):
            for sb, h, t in pairs:
                g, up, st = acc(u, 0, sb) + 2*h, acc(u, 1, sb) + 2*h, VST + 8*sb
                cg, cu = VCS + 4*(u*2) + 2*h, VCS + 4*(u*2+1) + 2*h
                out.append(f(g, up, st, cg, cu, t))
        each(lambda g, up, st, cg, cu, t: f"v_pk_fma_f32 {v(g,2)}, {v(cg,2)}, {v(st,2)}, {v(g,2)} neg_lo:[0,1,0] neg_hi:[0,1,0]")
        each(lambda g, up, st, cg, cu, t: f"v_pk_mul_f32 {v(t,2)}, {v(g,2)}, {v(g,2)}")
        each(lambda g, up, st, cg, cu, t: f"v_pk_fma_f32 {v(t,2)}, {v(t,2)}, {v(st+4,2)}, {v(st+2,2)}")
        each(lambda g, up, st, cg, cu, t: f"v_pk_mul_f32 {v(t,2)}, {v(t,2)}, {v(g,2)}")
        each(lambda g, up, st, cg, cu, t: f"v_exp_f32 {v(t)}, {v(t)}\nv_exp_f32 {v(t+1)}, {v(t+1)}")
        each(lambda g, up, st, cg, cu, t: f"v_pk_fma_f32 {v(up,2)}, {v(cu,2)}, {v(st,2)}, {v(up,2)} neg_lo:[0,1,0] neg_hi:[0,1,0]")
        each(lambda g, up, st, cg, cu, t: f"v_pk_fma_f32 {v(t,2)}, {v(t,2)}, {v(st+6,2)}, {v(st+6,2)}")
        each(lambda g, up, st, cg, cu, t: f"v_rcp_f32 {v(t)}, {v(t)}\nv_rcp_f32 {v(t+1)}, {v(t+1)}")
        each(lambda g, up, st, cg, cu, t: f"v_pk_mul_f32 {v(g,2)}, {v(g,2)}, {v(up,2)}")
        each(lambda g, up, st, cg, cu, t: f"v_pk_mul_f32 {v(t,2)}, {v(t,2)}, {v(g,2)}")
        for q, (sb, h, t) in enumerate(pairs):
            out.append(f"v_cvt_pk_bf16_f32 {v(o+q)}, {v(t)}, {v(t+1)}")
        if not opt("NOST", 0):
            out.append(f"buffer_store_dwordx4 {v(o,4)}, {v(G_L16)}, {s(R_WS,4)}, {s(S_H1 if pp else S_H0)} offen offset:{u*1024} {'sc1' if not opt('PLST', 0) else ''}")
        return out

    def stage_flag(n, W_WD=W_WD):
        ok = a.label("wd_ok")
        a(f"s_waitcnt lgkmcnt(0)\nv_readfirstlane_b32 {s(S_T0)}, v14\ns_nop 0\ns_cmp_ge_u32 {s(S_T0)}, {n}\ns_cbranch_scc1 {ok}")
        lds_min_wait(a, 15, W_WD, 1, n, 14)
        a(f"{ok}:")

    rd_flag = f"ds_read_b32 v14, v15 offset:{W_WD}"
    a.c("as a unit's accumulators retire they take two Wd steps; the freed ring slots are refilled")
    for l in group(0, 0) + [f"ds_read_b32 v14, v15 offset:{W_WE if WDE else W_WD}"] + group(0, 1):
        a(l)
    if opt("EPST", 0): stamp(a, 1)
    if not opt("NOTR", 0):
        stage_flag(1, W_WE if WDE else W_WD)
    if opt("EPST", 0): stamp(a, 2)
    for l in interleave(group(1, 0), [] if opt("NOTR", 0) else g2_tr(0) + g2_tr(1), 0, 2):
        a(l)
    a(rd_flag)
    for l in group(1, 1):
        a(l)
    a(f"s_cbranch_vccnz {lab}")
    for l in group(2, 0) + [rd_flag] + group(2, 1):
        a(l)
    a(f"{lab}:")
    a.c("release the conv waves")
    if not opt("CEARLY", 0):
        a("s_mov_b64 exec, 1\nds_add_u32 v12, v13\ns_mov_b64 exec, -1")
    stamp(a, 5)
    a.c("publish: F3[(2mi + sh)*32 + ni*2 + uh]")
    a(f"s_lshl_b32 {s(S_T0)}, {s(S_MI)}, 1\ns_add_u32 {s(S_T0)}, {s(S_T0)}, {s(S_SH)}\ns_lshl_b32 {s(S_T0)}, {s(S_T0)}, 4\ns_add_u32 {s(S_T0)}, {s(S_T0)}, {s(S_NI)}")
    a(f"s_lshl_b32 {s(S_T0)}, {s(S_T0)}, 1\ns_add_u32 {s(S_T0)}, {s(S_T0)}, {s(S_UH)}\ns_lshl_b32 {s(S_T0)}, {s(S_T0)}, 7\ns_add_u32 {s(S_T2)}, {s(S_T0)}, {WS_F3:#x}")
    a("s_waitcnt lgkmcnt(0)")
    for l in wd_dma(7) + wd_dma(8):
        a(l)
    a("s_waitcnt vmcnt(8)")
    flag_store(a, S_T2, 10, 11)
    stamp(a, 6)
    stage_flag(2)
    for l in g2_tr(2) + g2_tr(3):
        a(l)
    a("s_waitcnt lgkmcnt(0)")
    for l in wd_dma(9) + wd_dma(10):
        a(l)


def g2_tr(i):
    wf = G_WF + (i % NWF) * 16
    sl = SLOTMAP[i % NRW]
    base, off = (G_TR0, sl*4096) if sl < 2 else (G_TR5, 0) if sl == 6 else (G_TR, (sl-2)*16384)
    return [f"ds_read_b64_tr_b16 {v(wf+4*db+2*t,2)}, {v(base+db)} offset:{off + t*2048}" for db in range(4) for t in range(2)]


def g2_swaps(i, p):
    hb = G_H + (i % NHB) * 16
    return [f"v_swap_b32 {v(hb+8*p+2+k)}, {v(hb+8*p+4+k)}" for k in range(2)]


def g2_main(a):
    a(f"s_setprio {opt('PRG', 2)}")
    if opt("HT", 0):
        top, done = a.label("hp"), a.label("hp_ok")
        a(f"s_mov_b32 {s(S_SPIN)}, 0\ns_mov_b32 {s(S_EX)}, -1\ns_mov_b32 {s(S_EX+1)}, 0xfff")
        a(f"{top}:")
        a(f"buffer_load_dword v10, {v(G_FL)}, {s(R_WS,4)}, 0 offen sc1")
        a("s_waitcnt vmcnt(0)")
        a(f"v_cmp_ne_u32 vcc, {s(S_NON)}, v10")
        a(f"s_cbranch_vccz {done}")
        a(f"s_andn2_b64 exec, {s(S_EX,2)}, vcc\ns_and_b64 {s(S_EX,2)}, {s(S_EX,2)}, vcc")
        skip = a.label("hp_s")
        a(f"s_cbranch_execz {skip}")
        a(f"buffer_load_dword v11, {v(G_HT)}, {s(R_WS,4)}, {s(S_HO)} offen sc1")
        a(f"{skip}:")
        a("s_mov_b64 exec, -1\ns_sleep 1")
        a(f"s_add_u32 {s(S_SPIN)}, {s(S_SPIN)}, 1\ns_cmp_lt_u32 {s(S_SPIN)}, {SPIN_MAX}\ns_cbranch_scc1 {top}")
        a(f"{done}:")
    else:
        poll(a, G_FL, 10)
    stamp(a, 7)
    q = VQ(a)
    def hq(i):
        q.add(("h", i, 0), 2); q.add(("h", i, 1), 2)
    for i in range(NHB - 1):
        for op in h_loads(i):
            a(op)
        hq(i)
    lds_min_wait(a, 15, W_WD, 1, 3, 14)
    if opt("G2ST", 0): stamp(a, 1)
    q.wait(("h", 0, 0))
    if opt("G2ST", 0): stamp(a, 2)
    for l in g2_swaps(0, 0):
        a(l)
    a("s_nop 1")
    for i in range(NSTEP):
        if opt("G2ST", 0) and i in (2, 4, 6, 8):
            stamp(a, 2 + i // 2)
        if i == opt("HIS", 5):
            lds_inc(a, V_LW, 13, W_HI)
        wf, hb = G_WF + (i % NWF) * 16, G_H + (i % NHB) * 16
        ld = h_loads(i + NHB - 1) if i + NHB - 1 < NSTEP else []
        tr = g2_tr(i + 2) if NWF <= i + 2 < NSTEP else []
        n = 0
        for p in range(2):
            for db in range(4):
                for sb in (2*p, 2*p + 1):
                    c = G_ACC + (db * 4 + sb) * 4
                    a(f"v_mfma_f32_16x16x32_bf16 {v(c,4)}, {v(wf+4*db,4)}, {v(hb+4*sb,4)}, {v(c,4) if i else 0}")
                    n += 1
                    if n == 4:
                        q.wait(("h", i, 1))
                        for l in g2_swaps(i, 1):
                            a(l)
                    if n in (1, 5, 8, 11) and ld:
                        a(ld.pop(0))
                        q.add(("h", i + NHB - 1, 0 if len(ld) >= 2 else 1), 1)
                    if 5 <= n <= 12 and tr:
                        a(tr.pop(0))
                    if n == 13 and i + 1 < NSTEP:
                        q.wait(("h", i + 1, 0))
                        for l in g2_swaps(i + 1, 0):
                            a(l)
                        if i + 1 >= NWF:
                            a(f"s_waitcnt lgkmcnt({8 if i + 2 < NSTEP else 0})")
    stamp(a, 8)
    a.c("partial tile -> own ring slots 1..4: sb*16384 + w*4096 + s16*256 + ((4db + g) ^ (s16&7))*16")
    a(f"v_and_b32 v8, 15, v0\nv_lshrrev_b32 v9, 4, v0\nv_and_b32 v10, 7, v0\nv_xor_b32 v9, v9, v10\nv_lshlrev_b32 v9, 4, v9\nv_lshl_add_u32 v8, v8, 8, v9\nv_add_u32 v8, {s(S_KC)}, v8\nv_xor_b32 v9, 64, v8")
    a("s_nop 0")
    for db in range(4):
        for sb in range(4):
            a(f"ds_write_b128 {'v9' if db & 1 else 'v8'}, {v(G_ACC+(db*4+sb)*4,4)} offset:{sb*16384 + (db>>1)*128}")
    a("s_waitcnt lgkmcnt(0)")
    stamp(a, 9)
    a("s_barrier")


VB_X2 = 18


def dma_chunk(a):
    a(f"s_add_u32 {s(S_T1)}, {s(S_UH)}, {s(S_IT)}\ns_and_b32 {s(S_T1)}, {s(S_T1)}, 7")
    a(f"s_lshl_b32 {s(S_T0)}, {s(S_T1)}, 7\ns_add_u32 {s(S_T0)}, {s(S_T0)}, {s(S_XO)}")
    a(f"s_mul_i32 {s(S_T1)}, {s(S_T1)}, {64*F*2}\ns_add_u32 {s(S_HO)}, {s(S_WO)}, {s(S_T1)}\ns_add_u32 {s(S_DO)}, {s(S_WO2)}, {s(S_T1)}")
    for i in range(16):
        a(f"s_add_u32 m0, {s(S_SLOT)}, {i*1024}")
        a(f"s_add_u32 {s(S_T0)}, {s(S_T0)}, 8192" if i else "s_nop 0")
        a(f"buffer_load_dwordx4 {v(VB_X2 if i & 1 else VB_X)}, {s(R_X,4)}, {s(S_T0)} offen {CFX} lds")
    for k4 in range(4):
        if ITST and k4 == 0:
            it_issue(a)
            a("s_waitcnt lgkmcnt(0)")
            it_take(a, 40)
        if k4:
            a(f"s_add_u32 {s(S_HO)}, {s(S_HO)}, {16*F*2}\ns_add_u32 {s(S_DO)}, {s(S_DO)}, {16*F*2}")
        for blk in range(3):
            for mat in range(2):
                a(f"s_add_u32 m0, {s(S_SLOT)}, {16384 + (mat*3+blk)*4096 + k4*1024 - 64*blk}")
                a("s_nop 0")
                a(f"buffer_load_dwordx4 {v(VB_W)}, {s(R_WU if mat else R_WG,4)}, {s(S_DO if blk == 2 else S_HO)} offen offset:{64*blk} {CFW} lds")


GG = 224


def loader(a):
    a(f"s_setprio {opt('PRL', 2)}")
    a.c("loader w streams chunks 1+w, 3+w, ..")
    a(f"s_lshl_b32 {s(S_XO)}, {s(S_MI)}, 17\ns_lshl_b32 {s(S_WO)}, {s(S_FB0)}, 6")
    a(f"s_cmp_eq_u32 {s(S_NBLK)}, 3\ns_cselect_b32 {s(S_WO2)}, {s(S_WO)}, {OOB:#x}")
    a(f"s_lshl_b32 {s(S_T0)}, {s(S_WB)}, 6\nv_xor_b32 {v(VB_X)}, {s(S_T0)}, {v(VB_X)}\nv_xor_b32 {v(VB_X2)}, 64, {v(VB_X)}")
    a(f"s_add_u32 {s(S_IT)}, {s(S_WB)}, 1\ns_mul_i32 {s(S_SLOT)}, {s(S_IT)}, {SLOT}\ns_mov_b32 {s(S_SH)}, {s(S_WB)}")
    a(f"s_lshl_b32 {s(S_T0)}, {s(S_WB)}, 2\ns_add_u32 {s(S_T0)}, {s(S_T0)}, {L_CNT + W_FULL}\nv_mov_b32 v10, {s(S_T0)}")
    lds_min_wait(a, C_CNT, W_ISS, 1, s(S_WB), 20)
    a("ld_loop:")
    if ITST:
        it_issue(a)
        a("s_waitcnt lgkmcnt(0)")
        it_take(a, 32)
    dma_chunk(a)
    a(f"v_mov_b32 v16, {s(S_IT)}")
    a(f"s_mov_b64 exec, 1\nds_max_u32 {v(C_CNT)}, v16 offset:{W_ISS}\ns_mov_b64 exec, -1")
    if ITST:
        it_issue(a)
        a("s_waitcnt lgkmcnt(0)")
        it_take(a, 0)
    a(f"s_sub_u32 {s(S_SLOT)}, {s(S_SLOT)}, {SLOT}\ns_cselect_b32 {s(S_SLOT)}, {2*SLOT}, {s(S_SLOT)}")
    a(f"s_cmp_ge_u32 {s(S_IT)}, 6\ns_cbranch_scc1 ld_done")
    a("s_waitcnt vmcnt(0)")
    a("ds_write_b32 v10, v16")
    if ITST:
        it_issue(a)
        a("s_waitcnt lgkmcnt(0)")
        it_take(a, 16)
    lds_min_wait(a, C_CNT, W_FREE, 4, s(S_IT), 20)
    if ITST:
        it_issue(a)
        a("s_waitcnt lgkmcnt(0)")
        it_take(a, 48)
    a(f"s_add_u32 {s(S_IT)}, {s(S_IT)}, 2")
    a("s_branch ld_loop")
    a("ld_done:")
    lstamp(a, 1)
    wd_setup(a, 2 if WDE else 0)
    a(f"s_lshl_b32 {s(S_T0)}, {s(S_WB)}, 2\nv_add_u32 v11, {s(S_T0)}, {v(C_CNT)}\nv_mov_b32 v17, 2")
    a("s_waitcnt vmcnt(0)")
    a("ds_write_b32 v10, v16")
    if KVL:
        return loader_late(a)
    lds_min_wait(a, C_CNT, W_ISS, 1, 7, 20)
    lds_min_wait(a, C_CNT, W_HP, 1, 2, 20)
    if not WDE:
        for op in wd_dma(0, 2) + wd_dma(1, 2):
            a(op)
    lstamp(a, 2)
    lds_min_wait(a, C_CNT, W_FREE, 4, 7, 20)
    for i in (2, 3):
        for op in wd_dma(i, 2):
            a(op)
    a("s_waitcnt vmcnt(16)")
    a(f"ds_write_b32 v11, {v(C_ONE)} offset:{W_WD}")
    lstamp(a, 3)
    lds_min_wait(a, C_CNT, W_FREE, 4, 8, 20)
    TH = opt("WDTH", 8)
    n = 0
    for i in (4, 5, 6):
        for op in wd_dma(i, 2):
            if not opt("NOWD", 0):
                a(op)
            n += 1
            if n % 4 == 0 and (TH or n == 8):
                a(f"s_waitcnt vmcnt({min(TH, n) if TH else 8})")
            if n == 8:
                a(f"ds_write_b32 v11, v17 offset:{W_WD}")
    a(f"ds_read_b32 v1, {v(C_CNT)} offset:{W_NON}")
    final_loads(a)
    a("s_waitcnt lgkmcnt(0)")
    a(f"v_readfirstlane_b32 {s(S_NON)}, v1")


def loader_late(a):
    lds_min_wait(a, C_CNT, W_FREE, 4, 7, 20)
    for op in wd_dma(0, 2) + wd_dma(1, 2):
        a(op)
    lstamp(a, 2)
    lds_min_wait(a, C_CNT, W_FREE, 4, 8, 20)
    for op in wd_dma(2, 2):
        a(op)
    a("s_waitcnt vmcnt(8)")
    a(f"ds_write_b32 v11, {v(C_ONE)} offset:{W_WD}")
    for op in wd_dma(3, 2) + wd_dma(4, 2):
        a(op)
    a("s_waitcnt vmcnt(8)")
    a(f"ds_write_b32 v11, v17 offset:{W_WD}")
    lstamp(a, 3)
    lds_min_wait(a, C_CNT, W_HP, 1, 2, 20)
    for op in wd_dma(5, 2) + wd_dma(6, 2):
        a(op)
    a(f"ds_read_b32 v1, {v(C_CNT)} offset:{W_NON}")
    final_loads(a)
    a("v_mov_b32 v17, 3\ns_waitcnt vmcnt(2) lgkmcnt(0)")
    a(f"ds_write_b32 v11, v17 offset:{W_WD}")
    a(f"v_readfirstlane_b32 {s(S_NON)}, v1")


VS, VKV, VSK = 144, 24, 64
ONE = 192


def round_bf16(a, r):
    a(f"v_cvt_pk_bf16_f32 {v(r)}, {v(r)}, {v(r)}\nv_lshlrev_b32 {v(r)}, 16, {v(r)}")


def stats_loads(a):
    a(f"s_lshl_b32 {s(S_T0)}, {s(S_TI)}, 1\ns_add_u32 {s(S_T0)}, {s(S_T0)}, {s(S_SH)}\ns_lshl_b32 {s(S_T0)}, {s(S_T0)}, 12")
    a("v_bfe_u32 v5, v0, 2, 2\nv_lshlrev_b32 v5, 10, v5\nv_and_b32 v6, 3, v0\nv_lshl_add_u32 v5, v6, 4, v5\nv_lshrrev_b32 v6, 4, v0\nv_lshl_add_u32 v5, v6, 6, v5")
    for r in range(4):
        a(f"buffer_load_dwordx4 {v(VS+4*r,4)}, v5, {s(R_X,4)}, {s(S_T0)} offen offset:{r*256} {CFS}")


def stats(a):
    G, O, R = 72, 76, 80
    for r in range(4):
        a(f"v_mfma_f32_16x16x32_bf16 {v(G,4)}, {v(VS+4*r,4)}, {v(VS+4*r,4)}, {v(G,4) if r else 0}")
        a(f"v_mfma_f32_16x16x32_bf16 {v(O,4)}, {v(ONE,4)}, {v(VS+4*r,4)}, {v(O,4) if r else 0}")
    a.c("diagonal element of lane (n, g = n>>2) is register n&3")
    a(f"v_and_b32 v6, 3, v0\nv_cmp_eq_u32 vcc, 1, v6\nv_cmp_eq_u32 {s(S_EX,2)}, 2, v6\nv_cmp_eq_u32 {s(S_XO,2)}, 3, v6")
    a(f"s_lshl_b32 {s(S_T0)}, {s(S_TI)}, 1\ns_add_u32 {s(S_T0)}, {s(S_T0)}, {s(S_SH)}\ns_lshl_b32 {s(S_T0)}, {s(S_T0)}, 6\ns_add_u32 {s(S_T0)}, {s(S_T0)}, {WS_ST:#x}")
    a("v_and_b32 v5, 48, v0\ns_nop 0")
    a(f"v_cndmask_b32 {v(G)}, {v(G)}, {v(G+1)}, vcc\nv_cndmask_b32 {v(G)}, {v(G)}, {v(G+2)}, {s(S_EX,2)}\nv_cndmask_b32 {v(G)}, {v(G)}, {v(G+3)}, {s(S_XO,2)}")
    for qp in ("[1,0,3,2]", "[2,3,0,1]"):
        a("s_nop 0")
        a(f"v_add_f32_dpp {v(O)}, {v(O)}, {v(O)} quad_perm:{qp} row_mask:0xf bank_mask:0xf")
        a(f"v_add_f32_dpp {v(G)}, {v(G)}, {v(G)} quad_perm:{qp} row_mask:0xf bank_mask:0xf")
    M, K1, K2, I2 = R, R + 1, R + 2, R + 3
    a(f"v_mul_f32 {v(M)}, {f32bits(1/512):#x}, {v(O)}\nv_mul_f32 {v(K2)}, {f32bits(1/512):#x}, {v(G)}")
    a(f"v_fma_f32 {v(K2)}, -{v(M)}, {v(M)}, {v(K2)}\nv_max_f32 {v(K2)}, 0, {v(K2)}")
    round_bf16(a, M)
    round_bf16(a, K2)
    a(f"v_add_f32 {v(K2)}, {f32bits(1e-5):#x}, {v(K2)}")
    round_bf16(a, K2)
    a(f"v_sqrt_f32 {v(K2)}, {v(K2)}\ns_nop 0")
    round_bf16(a, K2)
    a(f"v_rcp_f32 {v(K1)}, {v(K2)}\nv_mul_f32 {v(I2)}, {v(K2)}, {v(K2)}")
    a(f"v_mul_f32 {v(K2)}, {v(K1)}, {v(K1)}\nv_mul_f32 {v(K2)}, {v(K2)}, {v(K1)}")
    a(f"v_mul_f32 {v(K2)}, {f32bits(C2):#x}, {v(K2)}\nv_mul_f32 {v(K1)}, {f32bits(C1):#x}, {v(K1)}")
    a.c("row g is complete in lane 20g")
    a(f"s_mov_b32 {s(S_EX)}, 0x00100001\ns_mov_b32 {s(S_EX+1)}, 0x10000100\ns_mov_b64 exec, {s(S_EX,2)}")
    a(f"buffer_store_dwordx4 {v(R,4)}, v5, {s(R_WS,4)}, {s(S_T0)} offen sc1")
    a("s_mov_b64 exec, -1")


L_VST = 155648
NT = os.environ.get("CFK", "nt") + " " if opt("NT", 1) else ""
NTT = " nt" if opt("NTT", 0) else ""


def kv_dma(a):
    a("v_lshrrev_b32 v5, 3, v0\nv_lshlrev_b32 v5, 10, v5\nv_and_b32 v6, 7, v0\nv_lshl_add_u32 v5, v6, 4, v5")
    a(f"v_add_u32 v69, {s(S_DO)}, v5")
    a.c("rows above the start of the sequence are out of range and read as zero")
    a("v_subrev_u32 v7, 0xc00, v69\nv_cmp_gt_u32 vcc, 0xc00, v69\nv_mov_b32 v68, 0x7ff00000\ns_nop 1\nv_cndmask_b32 v7, v7, v68, vcc")
    a(f"s_mul_i32 {s(S_T0)}, {s(S_SH)}, {64*KVT_STR}\ns_add_u32 {s(S_T0)}, {s(S_T0)}, {L_KVT}")
    a(f"s_lshl_b32 {s(S_T2)}, {s(S_SH)}, 12\ns_add_u32 {s(S_T2)}, {s(S_T2)}, {L_VST}")
    for i in range(5):
        a(f"s_add_u32 m0, {s(S_T0)}, {1024*i}\ns_mov_b32 {s(S_T1)}, {max(8192*i - 3072, 0)}")
        a(f"buffer_load_dwordx4 {'v69' if i else 'v7'}, {s(R_K,4)}, {s(S_T1)} offen {NT}lds")
    for i in range(4):
        a(f"s_add_u32 m0, {s(S_T2)}, {1024*i}\ns_mov_b32 {s(S_T1)}, {8192*i}")
        a(f"buffer_load_dwordx4 v69, {s(R_V,4)}, {s(S_T1)} offen {NT}lds")
    a("v_and_b32 v6, 31, v0\nv_lshrrev_b32 v5, 5, v0\nv_lshlrev_b32 v5, 10, v5\nv_lshl_add_u32 v5, v6, 2, v5")
    a(f"v_add_u32 v68, {s(S_T0)}, v5\nv_add_u32 v69, {s(S_T2)}, v5")
    a(f"s_and_b32 {s(S_T1)}, {s(S_TI)}, 7\ns_lshl_b32 {s(S_T1)}, {s(S_T1)}, 9\nv_lshlrev_b32 v6, 4, v6")
    a(f"buffer_load_dwordx4 {v(VSK,4)}, v6, {s(R_SK,4)}, {s(S_T1)} offen")


def kv_reads(a):
    for ps in range(2):
        b = VKV + 19 * ps
        for i in range(11):
            a(f"ds_read_b32 {v(b+i)}, v68 offset:{ps*2048 + i*128}")
        for i in range(8):
            a(f"ds_read_b32 {v(b+11+i)}, v69 offset:{ps*2048 + i*128}")


def touch_x(a, p, vd):
    a(f"s_lshl_b32 {s(S_T0)}, {s(S_MI)}, 2\ns_and_b32 {s(S_T1)}, {s(S_NI)}, 3\ns_add_u32 {s(S_T0)}, {s(S_T0)}, {s(S_T1)}\ns_lshl_b32 {s(S_T0)}, {s(S_T0)}, 15")
    a("v_and_b32 v5, 31, v0\nv_lshrrev_b32 v6, 5, v0\nv_lshlrev_b32 v6, 7, v6\nv_lshl_add_u32 v5, v5, 10, v6")
    for q in p:
        a(f"buffer_load_dword {v(vd)}, v5, {s(R_X,4)}, {s(S_T0)} offen offset:{128*q}{NTT}")


def touch_w(a, p, srds, vd):
    a(f"s_and_b32 {s(S_T0)}, {s(S_MI)}, 7\ns_add_u32 {s(S_T0)}, {s(S_T0)}, {8*p}\ns_mul_i32 {s(S_T0)}, {s(S_T0)}, {8*F*2}\ns_lshl_b32 {s(S_T1)}, {s(S_FB0)}, 6\ns_add_u32 {s(S_T0)}, {s(S_T0)}, {s(S_T1)}")
    a(f"s_add_u32 {s(S_T1)}, {s(S_NBLK)}, 4")
    a(f"v_lshrrev_b32 v5, 4, v0\nv_bfe_u32 v6, v0, 1, 3\nv_lshl_add_u32 v5, v5, 6, v6\nv_mul_u32_u24 v5, {F*2}, v5\nv_and_b32 v6, 1, v0\nv_lshl_add_u32 v5, v6, {s(S_T1)}, v5")
    for r in srds:
        a(f"buffer_load_dword {v(vd)}, v5, {s(r,4)}, {s(S_T0)} offen{NTT}")
        if opt("TOUCH", 0) == 2:
            a(f"s_add_u32 {s(S_T0)}, {s(S_T0)}, {256*F*2}")
            a(f"buffer_load_dword {v(vd)}, v5, {s(r,4)}, {s(S_T0)} offen{NTT}")


KU, VU, KW, KO, KT = 72, 94, 110, 120, 128


def kv_taps(a):
    for j in range(4):
        for ch in range(2):
            src = VSK + 2*ch + (j >> 1)
            a(f"v_and_b32 {v(KW+2*j+ch)}, {s(S_C)}, {v(src)}" if j & 1 else f"v_lshlrev_b32 {v(KW+2*j+ch)}, 16, {v(src)}")
    a.c("KVT row = 2*(l&31) + ch, 16-B piece = 3 - (2*pass + l>>5)")
    a(f"v_and_b32 v70, 31, v0\nv_mul_u32_u24 v70, {2*KVT_STR}, v70\nv_lshrrev_b32 v5, 5, v0\nv_lshlrev_b32 v5, 4, v5\nv_sub_u32 v70, v70, v5")
    a(f"s_mul_i32 {s(S_T0)}, {s(S_SH)}, {64*KVT_STR}\ns_add_u32 {s(S_T0)}, {s(S_T0)}, {L_KVT + 16}\nv_add_u32 v70, {s(S_T0)}, v70")


def kv_compute(ps):
    b = VKV + 19 * ps
    o = []
    for i in range(11):
        o += [f"v_lshlrev_b32 {v(KU+2*i)}, 16, {v(b+i)}", f"v_and_b32 {v(KU+2*i+1)}, {s(S_C)}, {v(b+i)}"]
    for e in range(16):
        o.append(f"v_mul_f32 {v(KT+e)}, {v(KU+e)}, {v(KW+6+(e&1))}")
    for j in (2, 1, 0):
        for e in range(16):
            o.append(f"v_fmac_f32 {v(KT+e)}, {v(KU+e+2*(3-j))}, {v(KW+2*j+(e&1))}")
    for i in range(8):
        o += [f"v_lshlrev_b32 {v(VU+2*i)}, 16, {v(b+11+i)}", f"v_and_b32 {v(VU+2*i+1)}, {s(S_C)}, {v(b+11+i)}"]
    for e in range(16):
        o.append(f"v_mul_f32 {v(KT+e)}, {v(KT+e)}, {v(VU+e)}")
    for ch in range(2):
        for i in range(4):
            o.append(f"v_cvt_pk_bf16_f32 {v(KO+4*ch+i)}, {v(KT+2*(7-2*i)+ch)}, {v(KT+2*(6-2*i)+ch)}")
    o += [f"ds_write_b128 v70, {v(KO,4)} offset:{32*(1-ps)}", f"ds_write_b128 v70, {v(KO+4,4)} offset:{32*(1-ps) + KVT_STR}"]
    return o


def kv_store(a):
    a(f"v_lshrrev_b32 v5, 2, v0\nv_and_b32 v6, 3, v0\nv_lshlrev_b32 v6, 4, v6\nv_mul_u32_u24 v7, {KVT_STR}, v5\nv_add_u32 v7, v7, v6")
    a(f"s_mul_i32 {s(S_T0)}, {s(S_SH)}, {64*KVT_STR}\ns_add_u32 {s(S_T0)}, {s(S_T0)}, {L_KVT}\nv_add_u32 v7, {s(S_T0)}, v7")
    a("s_waitcnt lgkmcnt(0)")
    for i in range(4):
        a(f"ds_read_b128 {v(24+4*i,4)}, v7 offset:{16*i*KVT_STR}")
    a("v_lshl_add_u32 v5, v5, 12, v6")
    a(f"s_and_b32 {s(S_T0)}, {s(S_TI)}, 7\ns_lshl_b32 {s(S_T0)}, {s(S_T0)}, 18")
    a(f"s_lshr_b32 {s(S_T1)}, {s(S_TI)}, 3\ns_lshl_b32 {s(S_T1)}, {s(S_T1)}, 1\ns_add_u32 {s(S_T1)}, {s(S_T1)}, {s(S_SH)}\ns_lshl_b32 {s(S_T1)}, {s(S_T1)}, 6")
    a(f"s_sub_u32 {s(S_T0)}, {s(S_T0)}, {s(S_T1)}\ns_add_u32 {s(S_T0)}, {s(S_T0)}, {WS_KVR + 4096 - 64:#x}")
    for i in range(4):
        a(f"s_waitcnt lgkmcnt({3-i})")
        a(f"buffer_store_dwordx4 {v(24+4*i,4)}, v5, {s(R_WS,4)}, {s(S_T0)} offen sc1")
        a(f"s_add_u32 {s(S_T0)}, {s(S_T0)}, 65536")


def cs_loads(a):
    a(f"s_mul_i32 {s(S_T0)}, {s(S_MI)}, {32*F*2}\ns_lshl_b32 {s(S_T1)}, {s(S_FB0)}, 6\ns_add_u32 {s(S_T0)}, {s(S_T0)}, {s(S_T1)}\ns_add_u32 {s(S_T1)}, {s(S_T0)}, {16*F*2}")
    a(f"s_mul_i32 {s(S_M0)}, {s(S_SH)}, 6144\ns_add_u32 {s(S_M0)}, {s(S_M0)}, {L_CSS}")
    l1, l2 = a.label("cs"), a.label("cs")
    a(f"s_cmp_lg_u32 {s(S_SH)}, 0\ns_cbranch_scc1 {l1}")
    for r in (R_WG, R_WU):
        for blk in range(3):
            for k2 in range(2):
                a(f"s_add_u32 m0, {s(S_M0)}, {blk*2048 + k2*1024 - 64*blk}\ns_nop 0")
                a(f"buffer_load_dwordx4 {v(VB_W)}, {s(r,4)}, {s(S_T1 if k2 else S_T0)} offen offset:{64*blk} {CFS} lds")
        a(f"s_branch {l2}\n{l1}:" if r == R_WG else f"{l2}:")


def colsum(a):
    W, O = 144, 168
    a("v_lshrrev_b32 v5, 4, v0\nv_lshlrev_b32 v6, 9, v5\nv_bfe_u32 v7, v0, 2, 2\nv_lshl_add_u32 v6, v7, 6, v6\nv_and_b32 v7, 3, v0\nv_lshl_add_u32 v6, v7, 3, v6")
    a(f"v_and_b32 v7, 1, v5\nv_lshl_add_u32 v6, v7, 5, v6\nv_add_u32 v6, {s(S_M0)}, v6\nv_xor_b32 v7, 32, v6")
    for u in range(6):
        for tt in range(2):
            a(f"ds_read_b64_tr_b16 {v(W+4*u+2*tt,2)}, {'v7' if u & 1 else 'v6'} offset:{(u>>1)*2048 + tt*256}")
    a.c("CSP offset = ((ni*2 + hw)*16 + mi)*384 + u*64 + g*16")
    a(f"s_lshl_b32 {s(S_T0)}, {s(S_NI)}, 1\ns_add_u32 {s(S_T0)}, {s(S_T0)}, {s(S_SH)}\ns_lshl_b32 {s(S_T0)}, {s(S_T0)}, 4\ns_add_u32 {s(S_T0)}, {s(S_T0)}, {s(S_MI)}")
    a(f"s_mul_i32 {s(S_T0)}, {s(S_T0)}, 384\ns_add_u32 {s(S_T0)}, {s(S_T0)}, {WS_CSP:#x}")
    a("v_and_b32 v5, 48, v0")
    a("s_waitcnt lgkmcnt(0)")
    for u in range(6):
        a(f"v_mfma_f32_16x16x32_bf16 {v(O+4*u,4)}, {v(W+4*u,4)}, {v(ONE,4)}, 0")
    a(f"s_mov_b32 {s(S_EX)}, 0x00010001\ns_mov_b32 {s(S_EX+1)}, 0x00010001\ns_nop 5\ns_mov_b64 exec, {s(S_EX,2)}")
    for u in range(6):
        a(f"buffer_store_dwordx4 {v(O+4*u,4)}, v5, {s(R_WS,4)}, {s(S_T0)} offen offset:{u*64} sc1")
    a("s_mov_b64 exec, -1")


def hflag(a, base):
    a(f"s_lshl_b32 {s(S_T0)}, {s(S_TI)}, 7\ns_lshl_b32 {s(S_T1)}, {s(S_SH)}, 2\ns_add_u32 {s(S_T0)}, {s(S_T0)}, {s(S_T1)}\ns_add_u32 {s(S_T0)}, {s(S_T0)}, {base:#x}")
    flag_store(a, S_T0, 196, 197)


CG = 144


def cs_gather_issue(a):
    a(f"s_lshl_b32 {s(S_T0)}, {s(S_NI)}, 1\ns_add_u32 {s(S_T0)}, {s(S_T0)}, {s(S_SH)}\ns_mul_i32 {s(S_T0)}, {s(S_T0)}, 6144\ns_add_u32 {s(S_T0)}, {s(S_T0)}, {WS_CSP:#x}")
    a("v_and_b32 v5, 31, v0\nv_lshlrev_b32 v5, 4, v5\nv_lshrrev_b32 v6, 5, v0\nv_mul_u32_u24 v6, 3072, v6\nv_add_u32 v6, v5, v6")
    for i in range(8):
        a(f"buffer_load_dwordx4 {v(CG+4*i,4)}, v6, {s(R_WS,4)}, {s(S_T0)} offen offset:{i*384} sc1")


def cs_gather_finish(a):
    n = 8
    while n > 1:
        n //= 2
        for i in range(4 * n):
            a(f"v_add_f32 {v(CG+i)}, {v(CG+i)}, {v(CG+4*n+i)}")
    for i in range(4):
        a(f"v_mov_b32 {v(CG+4+i)}, {v(CG+i)}")
    a(f"s_lshl_b32 {s(S_T0)}, {s(S_SH)}, 9\ns_add_u32 {s(S_T0)}, {s(S_T0)}, {L_CS}\nv_and_b32 v8, 31, v0\nv_lshlrev_b32 v8, 4, v8\nv_add_u32 v8, {s(S_T0)}, v8")
    for i in range(4):
        a(f"v_permlane32_swap_b32 {v(CG+i)}, {v(CG+4+i)}")
    a("s_nop 0")
    for i in range(4):
        a(f"v_add_f32 {v(CG+i)}, {v(CG+i)}, {v(CG+4+i)}")
    a(f"ds_write_b128 v8, {v(CG,4)}")


def helper(a):
    q = VQ(a)
    a(f"s_sub_u32 {s(S_SH)}, {s(S_WB)}, 2")
    a(f"s_lshl_b32 {s(S_HO)}, {s(S_TI)}, 1\ns_add_u32 {s(S_HO)}, {s(S_HO)}, {s(S_SH)}\ns_lshl_b32 {s(S_HO)}, {s(S_HO)}, 12")
    a.c("k/v tile base: rows 32*(2*(ti>>3) + hw).., channels 64*(ti&7)")
    a(f"s_lshr_b32 {s(S_T0)}, {s(S_TI)}, 3\ns_lshl_b32 {s(S_T0)}, {s(S_T0)}, 1\ns_add_u32 {s(S_T0)}, {s(S_T0)}, {s(S_SH)}\ns_lshl_b32 {s(S_T0)}, {s(S_T0)}, 15")
    a(f"s_and_b32 {s(S_T1)}, {s(S_TI)}, 7\ns_lshl_b32 {s(S_T2)}, {s(S_T1)}, 7\ns_add_u32 {s(S_DO)}, {s(S_T0)}, {s(S_T2)}")
    a(f"s_mul_i32 {s(S_KC)}, {s(S_TI)}, {43*128}\ns_mul_i32 {s(S_T1)}, {s(S_SH)}, {22*128}\ns_add_u32 {s(S_KC)}, {s(S_KC)}, {s(S_T1)}")
    def sc():
        stats_loads(a); q.add("s", 4)
        cs_loads(a); q.add("csd", 6)
    SKV = opt("SKV", 0)
    KVAT = opt("KVAT", 0) or SKV or KVL
    def wdt():
        if not opt("WDT", 1):
            return
        a.c("first touch of Wd lines 43*ti + 22*hw + lane")
        a("v_lshlrev_b32 v11, 7, v0\ns_mov_b64 exec, 0x3fffff")
        a(f"buffer_load_dword v71, v11, {s(R_WD,4)}, {s(S_KC)} offen"); q.add("wd", 1)
        a("s_mov_b64 exec, -1")
    def cold():
        kv_dma(a); q.add("kv", 10)
        if not SKV and not PT and not opt("HW7", 0) and not KVL:
            wdt()
        if SKV != 1 and not opt("HW7", 0):
            conv_h_loads(a); q.add("h", 4)
    PT = opt("PT", 0)
    def ptouch():
        l1, l2 = a.label("pt"), a.label("pt")
        a(f"s_and_b32 {s(S_T0)}, {s(S_NI)}, 3\ns_cmp_lg_u32 {s(S_T0)}, 3\ns_cbranch_scc1 {l2}")
        a("v_lshrrev_b32 v5, 2, v0\nv_and_b32 v6, 3, v0\nv_lshlrev_b32 v6, 7, v6\nv_lshl_add_u32 v5, v5, 10, v6\nv_lshlrev_b32 v6, 7, v0")
        a(f"s_lshr_b32 {s(S_T0)}, {s(S_TI)}, 3\ns_lshl_b32 {s(S_T0)}, {s(S_T0)}, 16\ns_and_b32 {s(S_T1)}, {s(S_TI)}, 4\ns_lshl_b32 {s(S_T1)}, {s(S_T1)}, 7\ns_add_u32 {s(S_T0)}, {s(S_T0)}, {s(S_T1)}")
        a(f"s_cmp_lg_u32 {s(S_SH)}, 0\ns_cbranch_scc1 {l1}")
        for i in range(4):
            a(f"buffer_load_dword v71, v5, {s(R_K,4)}, {s(S_T0)} offen\ns_add_u32 {s(S_T0)}, {s(S_T0)}, 16384")
        a(f"s_sub_i32 {s(S_T0)}, {s(S_T0)}, {65536 + 3072}\ns_max_i32 {s(S_T0)}, {s(S_T0)}, 0\ns_mov_b64 exec, 0xfff")
        a(f"buffer_load_dword v71, v5, {s(R_K,4)}, {s(S_T0)} offen\ns_mov_b64 exec, -1")
        a(f"s_lshr_b32 {s(S_T0)}, {s(S_TI)}, 2\ns_mul_i32 {s(S_T0)}, {s(S_T0)}, {172*128}")
        for i in range(3):
            a(f"buffer_load_dword v71, v6, {s(R_WD,4)}, {s(S_T0)} offen\ns_add_u32 {s(S_T0)}, {s(S_T0)}, {8192 if i == 0 else 44*128}")
        a(f"s_branch {l2}\n{l1}:")
        for i in range(4):
            a(f"buffer_load_dword v71, v5, {s(R_V,4)}, {s(S_T0)} offen\ns_add_u32 {s(S_T0)}, {s(S_T0)}, 16384")
        a(f"s_lshr_b32 {s(S_T0)}, {s(S_TI)}, 2\ns_lshl_b32 {s(S_T0)}, {s(S_T0)}, 15")
        for i in range(4):
            a(f"buffer_load_dword v71, v6, {s(R_H,4)}, {s(S_T0)} offen\ns_add_u32 {s(S_T0)}, {s(S_T0)}, 8192")
        a(f"{l2}:")
    if PT == 1:
        ptouch()
    LATE = opt("LATE", 0)
    if LATE:
        lds_min_wait(a, C_CNT, W_ISS, 1, LATE, 20)
        l1, l2 = a.label("tc"), a.label("tc")
        a(f"s_cmp_lg_u32 {s(S_SH)}, 0\ns_cbranch_scc1 {l1}")
        touch_x(a, (4, 6), 71)
        a(f"s_branch {l2}\n{l1}:")
        touch_w(a, 4, (R_WG, R_WU), 71)
        a(f"{l2}:")
    def hs(n):
        if ITST:
            a(f"s_mov_b32 {s(S_IT)}, 0")
            it_issue(a)
            a("s_waitcnt lgkmcnt(0)")
            it_take(a, n)
    hs(1)
    KV1 = opt("KV1", 0)
    if KV1:
        if KV1 == 2:
            kv_dma(a); q.add("kv", 10)
        else:
            cold()
        a("s_barrier")
    if not opt("ELAST", 0):
        epoch_load(a, 1); q.add("e", 1)
    sc()
    if opt("ELAST", 0):
        epoch_load(a, 1); q.add("e", 1)
    hs(2)
    if KVL:
        wdt()
    if SKV:
        wdt()
        a(f"s_sub_i32 {s(S_KC)}, {s(S_DO)}, 3072\ns_max_i32 {s(S_KC)}, {s(S_KC)}, 0")
        spf(a, R_K, S_KC, [1024*i for i in range(35)])
    if KV1 == 2:
        wdt()
        conv_h_loads(a); q.add("h", 4)
    if not KVAT and not KV1:
        cold()
    hs(3)
    for i in range(4):
        a(f"v_mov_b32 {v(ONE+i)}, 0x3f803f80")
    a.c("F1 pairs: lanes 0-31 tiles 16mi + (l&15) (row records), lanes 32-63 tiles 16*(l&15) + ni (column sums)")
    a(f"s_lshl_b32 {s(S_T0)}, {s(S_MI)}, 11\nv_and_b32 v9, 15, v0\nv_lshlrev_b32 v8, 7, v9\nv_add_u32 v8, {s(S_T0)}, v8")
    a(f"s_lshl_b32 {s(S_T0)}, {s(S_NI)}, 7\nv_lshlrev_b32 v9, 11, v9\nv_add_u32 v9, {s(S_T0)}, v9\nv_cmp_lt_u32 vcc, 31, v0")
    a(f"s_nop 1\nv_cndmask_b32 v8, v8, v9, vcc\nv_add_u32 v8, {WS_F1:#x}, v8")
    q.wait("e", "s")
    stamp(a, 1)
    epoch_take(a, 1)
    a(f"v_mov_b32 v20, {s(S_NON)}\nds_write_b32 {v(C_CNT)}, v20 offset:{W_NON}")
    stats(a); q.add("st", 1)
    q.wait("csd")
    if PT == 2:
        ptouch()
    colsum(a); q.add("st", 6)
    stamp(a, 2)
    if KVL:
        q.wait("st")
        hflag(a, WS_F1)
        stamp(a, 3)
        lds_min_wait(a, C_CNT, W_ISS, 1, KVL - 1, 20)
        poll2_issue(a, 8, 198)
        a(f"s_lshr_b32 {s(S_T0)}, {s(S_TI)}, 5\ns_lshl_b32 {s(S_T0)}, {s(S_T0)}, 7\ns_add_u32 {s(S_T0)}, {s(S_T0)}, {WS_F2:#x}")
        a(f"v_and_b32 v16, 31, v0\nv_lshlrev_b32 v16, 10, v16\nv_add_u32 v16, {s(S_T0)}, v16")
        a("s_waitcnt vmcnt(0)")
        poll2_check(a, 8, 198)
        lds_min_wait(a, C_CNT, W_ISS, 1, KVL, 20)
        a(f"s_lshl_b32 {s(S_T0)}, {s(S_MI)}, 1\ns_add_u32 {s(S_T0)}, {s(S_T0)}, {s(S_SH)}\ns_lshl_b32 {s(S_T0)}, {s(S_T0)}, 10\ns_add_u32 {s(S_T0)}, {s(S_T0)}, {WS_ST:#x}")
        a(f"buffer_load_dwordx4 {v(GG,4)}, v4, {s(R_WS,4)}, {s(S_T0)} offen sc1")
        cs_gather_issue(a)
        a(f"s_lshl_b32 {s(S_T0)}, {s(S_SH)}, 10\ns_add_u32 {s(S_T0)}, {s(S_T0)}, {L_ST}\nv_add_u32 v9, {s(S_T0)}, v4")
        cold()
        a("s_waitcnt vmcnt(14)")
        a(f"ds_write_b128 v9, {v(GG,4)}")
        cs_gather_finish(a)
        lds_inc(a, C_CNT, C_ONE, W_GATH)
        stamp(a, 5)
        a(f"s_setprio {opt('PRK', 0)}")
        a("s_waitcnt vmcnt(4)")
        kv_reads(a)
        kv_taps(a)
        a("s_waitcnt lgkmcnt(0)")
        for l in kv_compute(0) + kv_compute(1):
            a(l)
        kv_store(a)
        lds_inc(a, C_CNT, C_ONE, W_HP)
        a("s_waitcnt vmcnt(4)")
        conv_h_shift(a, 40)
        a("s_waitcnt vmcnt(0)")
        hflag(a, WS_F2)
        stamp(a, 4)
        final_loads(a)
        lds_min_wait(a, C_CNT, W_FREE, 4, 6, 20)
        lds_min_wait(a, C_CNT, W_HP, 1, 2, 20)
        conv_h_stage(a, 40)
        poll2_issue(a, 16, 18)
        a("s_waitcnt vmcnt(0)")
        poll2_check(a, 16, 18)
        a(f"s_add_u32 {s(S_T2)}, {s(S_HO)}, {WS_KVR:#x}")
        for i in range(4):
            a(f"buffer_load_dwordx4 {v(128+4*i,4)}, v4, {s(R_WS,4)}, {s(S_T2)} offen offset:{1024*i} sc1")
        for i in range(4):
            a(f"s_waitcnt vmcnt({3-i})")
            a(f"ds_write_b128 v10, {v(128+4*i,4)} offset:{4*HSTR + 1024*i}")
        stamp(a, 6)
        return
    if SKV:
        spf(a, R_V, S_DO, [1024*i for i in range(14)])
        q.wait("st")
        hflag(a, WS_F1); q.add("f", 1)
        stamp(a, 3)
        spf(a, R_V, S_DO, [1024*i for i in range(14, 32)])
        a(f"s_and_b32 {s(S_T1)}, {s(S_TI)}, 7\ns_lshl_b32 {s(S_T1)}, {s(S_T1)}, 9")
        spf(a, R_SK, S_T1, [128*i for i in range(4)])
        if SKV == 2:
            spf(a, R_H, S_HO, [128*i for i in range(32)])
        a("s_waitcnt lgkmcnt(0)")
        cold()
    elif KVAT:
        a(f"s_lshr_b32 {s(S_T3)}, s2, 3\ns_and_b32 {s(S_T3)}, {s(S_T3)}, {opt('KVM', 0)}\ns_add_u32 {s(S_T3)}, {s(S_T3)}, {KVAT}")
        if PT:
            q.wait("st")
            hflag(a, WS_F1); q.add("f", 1)
            stamp(a, 3)
            a(f"s_and_b32 {s(S_T0)}, {s(S_NI)}, 3\ns_cmp_eq_u32 {s(S_T0)}, 3\ns_cselect_b32 {s(S_T3)}, 0, {s(S_T3)}")
        lds_min_wait(a, C_CNT, W_ISS, 1, s(S_T3), 20)
        cold()
        if not PT:
            q.wait("st")
            hflag(a, WS_F1); q.add("f", 1)
            stamp(a, 3)
    q.wait("kv")
    kv_reads(a)
    kv_taps(a)
    a("s_waitcnt lgkmcnt(0)")
    for l in kv_compute(0):
        a(l)
    if not KVAT:
        q.wait("st")
        hflag(a, WS_F1); q.add("f", 1)
        stamp(a, 3)
    for l in kv_compute(1):
        a(l)
    kv_store(a); q.add("kvst", 4)
    lds_inc(a, C_CNT, C_ONE, W_HP)
    q.wait("kvst")
    hflag(a, WS_F2); q.add("f", 1)
    stamp(a, 4)
    if opt("HW7", 0):
        lds_min_wait(a, C_CNT, W_ISS, 1, opt("HW7", 0), 20)
        wdt()
        conv_h_loads(a)
    else:
        conv_h_shift(a)
    if SKV == 1:
        spf(a, R_H, S_HO, [128*i for i in range(32)])
    if WDE:
        wd_setup(a, 0, S_SH)
        a(f"s_lshl_b32 {s(S_T0)}, {s(S_SH)}, 2\nv_add_u32 v11, {s(S_T0)}, {v(C_CNT)}")
        lds_min_wait(a, C_CNT, W_HP, 1, 2, 20)
        lds_min_wait(a, C_CNT, W_ISS, 1, WDE, 20)
        for op in wd_dma(0, 2) + wd_dma(1, 2):
            a(op)
    lds_min_wait(a, C_CNT, W_ISS, 1, opt("GATP", 7), 20)
    poll2_issue(a, 8, 198)
    a.c("F2 pairs of tiles 8*(l&31) + (ti>>5)")
    a(f"s_lshr_b32 {s(S_T0)}, {s(S_TI)}, 5\ns_lshl_b32 {s(S_T0)}, {s(S_T0)}, 7\ns_add_u32 {s(S_T0)}, {s(S_T0)}, {WS_F2:#x}")
    a(f"v_and_b32 v16, 31, v0\nv_lshlrev_b32 v16, 10, v16\nv_add_u32 v16, {s(S_T0)}, v16")
    a("s_waitcnt vmcnt(0)")
    if WDE:
        a(f"ds_write_b32 v11, {v(C_ONE)} offset:{W_WE}")
    poll2_check(a, 8, 198)
    lds_min_wait(a, C_CNT, W_ISS, 1, opt("GAT", 7), 20)
    poll2_issue(a, 16, 18)
    a(f"s_lshl_b32 {s(S_T0)}, {s(S_MI)}, 1\ns_add_u32 {s(S_T0)}, {s(S_T0)}, {s(S_SH)}\ns_lshl_b32 {s(S_T0)}, {s(S_T0)}, 10\ns_add_u32 {s(S_T0)}, {s(S_T0)}, {WS_ST:#x}")
    a(f"buffer_load_dwordx4 {v(GG,4)}, v4, {s(R_WS,4)}, {s(S_T0)} offen sc1")
    cs_gather_issue(a)
    a(f"s_lshl_b32 {s(S_T0)}, {s(S_SH)}, 10\ns_add_u32 {s(S_T0)}, {s(S_T0)}, {L_ST}\nv_add_u32 v9, {s(S_T0)}, v4")
    late, join = a.label("u_late"), a.label("u_join")
    def u_loads():
        a(f"s_add_u32 {s(S_T2)}, {s(S_HO)}, {WS_KVR:#x}")
        for i in range(4):
            a(f"buffer_load_dwordx4 {v(128+4*i,4)}, v4, {s(R_WS,4)}, {s(S_T2)} offen offset:{1024*i} sc1")
    def gather_done():
        a(f"ds_write_b128 v9, {v(GG,4)}")
        cs_gather_finish(a)
        lds_inc(a, C_CNT, C_ONE, W_GATH)
        stamp(a, 5)
    a("s_waitcnt vmcnt(9)")
    a(f"v_cmp_ne_u32 vcc, {s(S_NON)}, v18\nv_cmp_ne_u32 {s(S_EX,2)}, {s(S_NON)}, v19\ns_nop 0\ns_or_b64 vcc, vcc, {s(S_EX,2)}\ns_cbranch_scc1 {late}")
    u_loads()
    a("s_waitcnt vmcnt(4)")
    gather_done()
    a(f"{join}:")
    keep = a.L
    a.L = COLD.L
    a(f"{late}:")
    a("s_waitcnt vmcnt(0)")
    gather_done()
    poll2_check(a, 16, 18)
    u_loads()
    a(f"s_branch {join}")
    a.L = keep
    final_loads(a)
    lds_min_wait(a, C_CNT, W_FREE, 4, 6, 20)
    a.c("the other helper must be done with its transpose scratch before the conv region is written")
    lds_min_wait(a, C_CNT, W_HP, 1, 2, 20)
    if opt("HW7", 0):
        conv_h_shift(a)
    conv_h_stage(a)
    a("s_waitcnt vmcnt(2)")
    for i in range(4):
        a(f"ds_write_b128 v10, {v(128+4*i,4)} offset:{4*HSTR + 1024*i}")
    stamp(a, 6)


C_ACC, C_F0, C_F1 = 16, 48, 112
C_AA, C_BA = 2, 3


def bsync_post(a, n=4):
    a(f"s_add_u32 {s(S_CNT)}, {s(S_CNT)}, {n}")
    a("s_mov_b64 exec, 1")
    a(f"ds_add_u32 {v(C_CNT)}, {v(C_ONE)}")
    a("s_mov_b64 exec, -1")


def bsync_wait(a, nap=None):
    lds_min_wait(a, C_CNT, W_CNT, 1, s(S_CNT), 6, nap=opt("BNAP", 1) if nap is None else nap)


def bsync(a, n=4):
    bsync_post(a, n)
    bsync_wait(a)


def conv_reads(fr, roff):
    out = []
    for p in range(8):
        out.append(f"ds_read_b128 {v(fr+4*p,4)}, {v(C_AA)} offset:{512*p + roff}")
        out.append(f"ds_read_b64 {v(fr+32+4*p,2)}, {v(C_BA)} offset:{512*(7-p) + roff}")
        out.append(f"ds_read_b64 {v(fr+32+4*p+2,2)}, {v(C_BA)} offset:{512*(7-p) + roff + 8}")
    return out


def conv_mfmas(fr, first):
    out = []
    for tot in range(8):
        for p in range(tot + 1):
            q = tot - p
            out.append((max(p, q), f"v_mfma_f32_16x16x32_bf16 {v(C_ACC+4*tot,4)}, {v(fr+4*p,4)}, {v(fr+32+4*q,4)}, ", C_ACC + 4*tot))
    out.sort(key=lambda t: t[0])
    res, seen = [], set()
    for _, txt, c in out:
        res.append(txt + ("0" if first and c not in seen else v(c, 4)))
        seen.add(c)
    return res


HR = 200


def conv_h_loads(a):
    a(f"s_mul_i32 {s(S_RING)}, {s(S_SH)}, {CH_STR}\ns_add_u32 {s(S_RING)}, {s(S_RING)}, {L_CONV}")
    for h in range(4):
        a(f"buffer_load_dwordx4 {v(HR+6*h+2,4)}, v4, {s(R_H,4)}, {s(S_HO)} offen offset:{1024*h} {NT}")


def conv_h_shift(a, z=24):
    for i in range(4):
        a(f"v_mov_b32 {v(z+i)}, 0")
    a(f"v_add_u32 v10, {s(S_RING)}, v4")
    T = 72
    a.c("the two dwords in front of each lane's piece come from the lane below")
    for h in range(4):
        r = HR + 6 * h
        for i in range(2):
            a(f"v_mov_b32_dpp {v(r+i)}, {v(r-2+i)} wave_ror:1 row_mask:0xf bank_mask:0xf" if h else f"v_mov_b32 {v(r+i)}, 0")
    for h in range(4):
        r = HR + 6 * h
        for i in range(2):
            a(f"v_mov_b32_dpp {v(r+i)}, {v(r+4+i)} wave_shr:1 row_mask:0xf bank_mask:0xf")
    for h in range(4):
        r = HR + 6 * h
        for i in range(4):
            a(f"v_alignbit_b32 {v(T+i)}, {v(r+2+i)}, {v(r+1+i)}, 16")
        for i in range(4):
            a(f"v_mov_b32 {v(T+4+i)}, {v(r+1+i)}")
        for i in range(4):
            a(f"v_alignbit_b32 {v(T+8+i)}, {v(r+1+i)}, {v(r+i)}, 16")
        T += 12


def conv_h_stage(a, z=24):
    a.c("zero pads: 384 B in front of each h copy, 128 B behind u")
    a("s_mov_b64 exec, 0xffffff")
    for p in range(4):
        a(f"ds_write_b128 v10, {v(z,4)} offset:{p*HSTR}")
    a("s_mov_b64 exec, 0xff")
    a(f"ds_write_b128 v10, {v(z,4)} offset:{4*HSTR + 4096}")
    a("s_mov_b64 exec, -1")
    for h in range(4):
        a(f"ds_write_b128 v10, {v(HR+6*h+2,4)} offset:{384 + 1024*h}")
        for p in range(1, 4):
            a(f"ds_write_b128 v10, {v(72+12*h+4*(p-1),4)} offset:{p*HSTR + 384 + 1024*h}")


def conv_mid(a):
    a("s_waitcnt vmcnt(0)")
    a(f"ds_write_b32 v11, v251 offset:{W_WD}")
    poll2_check(a, 5, 198)
    a(f"s_lshl_b32 {s(S_T0)}, {s(S_MT)}, 2\ns_add_u32 {s(S_T0)}, {s(S_T0)}, {s(S_WB)}\ns_lshl_b32 {s(S_T0)}, {s(S_T0)}, 8\ns_add_u32 {s(S_T0)}, {s(S_T0)}, {WS_ST:#x}")
    a(f"buffer_load_dwordx4 {v(184,4)}, v15, {s(R_WS,4)}, {s(S_T0)} offen sc1")
    a(f"buffer_load_dwordx4 {v(188,4)}, v15, {s(R_WS,4)}, {s(S_T0)} offen offset:128 sc1")


def conv_main(a):
    U, UU, X, O = 48, 56, 112, 144
    for l in conv_reads(C_F0, 0):
        a(l)
    for r in range(4):
        cur, nxt = (C_F0, C_F1) if r % 2 == 0 else (C_F1, C_F0)
        a("s_waitcnt lgkmcnt(0)")
        if r < 3:
            rd = conv_reads(nxt, 64 * (r + 1))
        else:
            rd = [f"ds_read_b32 {v(U+2*b+c)}, v10 offset:{c*CH_STR + 256*(3-b)}" for b in range(4) for c in range(2)]
        for l in interleave(conv_mfmas(cur, r == 0), rd, 0, 1):
            a(l)
        if r == opt("WDR", 0):
            conv_mid(a)
    lstamp(a, 5)
    a(f"s_setprio {opt('PRX', opt('PRC', 3))}")
    bsync(a)
    if opt("XST", 0): lstamp(a, 1)
    for t in range(8):
        a(f"ds_write_b128 v8, {v(C_ACC+4*t,4)} offset:{t*1024}")
    bsync_post(a)
    a.c("skip term D*u at rows 512wb + 128b + 2l, +1")
    a(f"s_lshl_b32 s100, {s(S_C+1)}, 16\ns_and_b32 {s(S_C+1)}, {s(S_C+1)}, 0xffff0000")
    for b in range(4):
        for c in range(2):
            u, o = U + 2*b + c, UU + 4*b + 2*c
            a(f"v_and_b32 {v(o)}, {s(S_C)}, {v(u)}\nv_lshlrev_b32 {v(o+1)}, 16, {v(u)}")
    for b in range(4):
        for c in range(2):
            for j in range(2):
                a(f"v_mul_f32 {v(UU+4*b+2*c+j)}, {s(S_C+1) if c else 's100'}, {v(UU+4*b+2*c+j)}")
        a(f"v_mov_b32 {v(O+4*b+1)}, {s(S_NON)}\nv_mov_b32 {v(O+4*b+3)}, {s(S_NON)}")
    bsync_wait(a)
    if opt("XST", 0): lstamp(a, 2)
    for b in range(4):
        for w in range(4):
            a(f"ds_read_b64 {v(X+8*b+2*w,2)}, v9 offset:{w*8192 + b*512}")
    a("s_waitcnt vmcnt(0)")
    for b in range(4):
        a(f"s_waitcnt lgkmcnt({4*(3-b)})")
        for c in range(2):
            for j in range(2):
                o, x0 = UU + 4*b + 2*c + j, X + 8*b + 4*c + j
                a(f"v_add_f32 {v(o)}, {v(o)}, {v(x0)}")
        for c in range(2):
            for j in range(2):
                o, x0 = UU + 4*b + 2*c + j, X + 8*b + 4*c + j
                a(f"v_add_f32 {v(o)}, {v(o)}, {v(x0+2)}")
        for j in range(2):
            a(f"v_cvt_pk_bf16_f32 {v(O+4*b+2*j)}, {v(UU+4*b+j)}, {v(UU+4*b+2+j)}")
        if opt("XST", 0) and b == 0: lstamp(a, 3)
        a(f"buffer_store_dwordx4 {v(O+4*b,4)}, v4, {s(R_WS,4)}, {s(S_HO)} offen offset:{1024*b} sc1")
    a.c("the flag only says where to look: the granules carry their own tags")
    if opt("YACK", 0):
        a("s_waitcnt vmcnt(0)")
    flag_store(a, S_DO, 8, 9)


def conv_addr(a):
    a(f"s_lshr_b32 {s(S_T0)}, {s(S_WB)}, 1\ns_mul_i32 {s(S_RING)}, {s(S_T0)}, {CH_STR}\ns_add_u32 {s(S_RING)}, {s(S_RING)}, {L_CONV}")
    a(f"s_lshl_b32 {s(S_T3)}, {s(S_TI)}, 2\ns_load_dword {s(S_C+1)}, {s(S_DP,2)}, {s(S_T3)}")
    a.c("A address: base + (3-(m&3))*HSTR + 128*(m>>2) + 16*kg + 256*rh ; B address: ubase + 120 - 8n + 16kg + 256*rh")
    a(f"s_and_b32 {s(S_T0)}, {s(S_WB)}, 1\ns_lshl_b32 {s(S_T0)}, {s(S_T0)}, 8\ns_add_u32 {s(S_T0)}, {s(S_T0)}, {s(S_RING)}")
    a(f"v_and_b32 v6, 3, v0\nv_sub_u32 v6, 3, v6\nv_mul_u32_u24 v6, {HSTR}, v6\nv_bfe_u32 v7, v0, 2, 2\nv_lshl_add_u32 v6, v7, 7, v6")
    a(f"v_and_b32 v7, 48, v0\nv_add3_u32 {v(C_AA)}, v6, v7, {s(S_T0)}")
    a(f"v_and_b32 v6, 15, v0\nv_lshlrev_b32 v6, 3, v6\nv_sub_u32 v6, v7, v6\ns_add_u32 {s(S_T0)}, {s(S_T0)}, {4*HSTR + 120}\nv_add_u32 {v(C_BA)}, {s(S_T0)}, v6")
    a(f"s_lshl_b32 {s(S_T0)}, {s(S_WB)}, 13\ns_add_u32 {s(S_T0)}, {s(S_T0)}, {L_XCH}\nv_add_u32 v8, {s(S_T0)}, v4")
    a(f"s_lshl_b32 {s(S_T0)}, {s(S_WB)}, 11\ns_add_u32 {s(S_T0)}, {s(S_T0)}, {L_XCH}\nv_lshlrev_b32 v9, 3, v0\nv_add_u32 v9, {s(S_T0)}, v9")
    a.c("u for the skip term: ubase_c + 2*(2046 - 512wb - 128b - 2l)")
    a(f"s_lshl_b32 {s(S_T0)}, {s(S_WB)}, 10\ns_sub_u32 {s(S_T0)}, {L_CONV + 4*HSTR + 4092 - 768}, {s(S_T0)}\nv_lshlrev_b32 v10, 2, v0\nv_sub_u32 v10, {s(S_T0)}, v10")
    a.c("y granules: YG[ti][row*8]; flag F4[wb*256 + ti]")
    a(f"s_mul_i32 {s(S_T0)}, {s(S_TI)}, {YSTR}\ns_lshl_b32 {s(S_T1)}, {s(S_WB)}, 12\ns_add_u32 {s(S_T0)}, {s(S_T0)}, {s(S_T1)}\ns_add_u32 {s(S_HO)}, {s(S_T0)}, {WS_YG:#x}")
    a(f"s_lshl_b32 {s(S_T0)}, {s(S_WB)}, 8\ns_add_u32 {s(S_T0)}, {s(S_T0)}, {s(S_TI)}\ns_lshl_b32 {s(S_T0)}, {s(S_T0)}, 7\ns_add_u32 {s(S_DO)}, {s(S_T0)}, {WS_F4:#x}")
    a(f"s_mov_b32 {s(S_CNT)}, 0\ns_lshl_b32 {s(S_T0)}, {s(S_WB)}, 2\nv_add_u32 v11, {s(S_T0)}, {v(C_CNT)}\nv_mov_b32 v251, 3")
    a.c("F1 pairs of the two tiles that hold this wave's output rows")
    a(f"s_lshl_b32 {s(S_T1)}, {s(S_MT)}, 2\ns_add_u32 {s(S_T1)}, {s(S_T1)}, {s(S_WB)}\ns_lshl_b32 {s(S_T1)}, {s(S_T1)}, 8\ns_add_u32 {s(S_T1)}, {s(S_T1)}, {WS_F1:#x}")
    a(f"v_and_b32 v5, 1, v0\nv_lshlrev_b32 v5, 7, v5\nv_add_u32 v5, {s(S_T1)}, v5")
    poll2_issue(a, 5, 198)


def final_loads(a):
    a(f"s_lshl_b32 {s(S_T0)}, {s(S_MT)}, 2\ns_add_u32 {s(S_T0)}, {s(S_T0)}, {s(S_WB)}\ns_lshl_b32 {s(S_T1)}, {s(S_T0)}, 14\ns_lshl_b32 {s(S_T2)}, {s(S_NT)}, 7\ns_add_u32 {s(S_XO)}, {s(S_T1)}, {s(S_T2)}")
    a(f"s_add_u32 {s(S_WO)}, {s(S_XO)}, 8192")
    a("v_lshrrev_b32 v12, 3, v0\nv_and_b32 v13, 7, v0\nv_lshlrev_b32 v14, 4, v13\nv_lshl_add_u32 v14, v12, 10, v14\nv_lshlrev_b32 v15, 4, v12")
    a(f"buffer_load_dwordx4 {v(176,4)}, v14, {s(R_X,4)}, {s(S_XO)} offen")
    a(f"buffer_load_dwordx4 {v(180,4)}, v14, {s(R_X,4)}, {s(S_WO)} offen")


def final(a):
    XU, XN, YU, YL = 16, 72, 96, 160
    a.c("flags F4[(mt>>3)*256 + 32nt + 8wb + (l&7)]; granules of pairs 32nt + 8wb + 2i + (l>>5), rows 64mt + 2*(l&31) ..")
    a(f"s_lshl_b32 {s(S_T0)}, {s(S_NT)}, 2\ns_add_u32 {s(S_T0)}, {s(S_T0)}, {s(S_WB)}\ns_lshr_b32 {s(S_T1)}, {s(S_MT)}, 3\ns_lshl_b32 {s(S_T1)}, {s(S_T1)}, 5\ns_add_u32 {s(S_T1)}, {s(S_T1)}, {s(S_T0)}")
    a(f"s_lshl_b32 {s(S_T1)}, {s(S_T1)}, 10\ns_add_u32 {s(S_T1)}, {s(S_T1)}, {WS_F4:#x}\nv_lshlrev_b32 v5, 7, v13\nv_add_u32 v5, {s(S_T1)}, v5")
    a(f"s_mul_i32 {s(S_T0)}, {s(S_T0)}, {8*YSTR}\ns_lshl_b32 {s(S_T1)}, {s(S_MT)}, 9\ns_add_u32 {s(S_T0)}, {s(S_T0)}, {s(S_T1)}\ns_add_u32 {s(S_HO)}, {s(S_T0)}, {WS_YG:#x}")
    a(f"v_lshrrev_b32 v10, 5, v0\nv_mul_u32_u24 v8, {YSTR - 512}, v10\nv_add_u32 v8, v8, v4")

    def y_loads():
        a(f"s_mov_b32 {s(S_T1)}, {s(S_HO)}")
        for i in range(4):
            a(f"buffer_load_dwordx4 {v(YL+4*i,4)}, v8, {s(R_WS,4)}, {s(S_T1)} offen sc1")
            if i < 3:
                a(f"s_add_u32 {s(S_T1)}, {s(S_T1)}, {2*YSTR}")
    for t in range(2):
        for i in range(4):
            a(f"v_lshlrev_b32 {v(XU+8*t+2*i)}, 16, {v(176+4*t+i)}\nv_and_b32 {v(XU+8*t+2*i+1)}, {s(S_C)}, {v(176+4*t+i)}")
    for i in range(16):
        a(f"v_mov_b32 {v(YU+i)}, 0")
    a.c("transpose scratch [wb'][c*272 + e*64 + row*4]")
    a(f"s_mul_i32 {s(S_T0)}, {s(S_WB)}, 544\ns_add_u32 {s(S_T0)}, {s(S_T0)}, {L_YL}")
    a(f"v_and_b32 v9, 3, v12\nv_mul_u32_u24 v9, 2176, v9\nv_lshl_add_u32 v9, v10, 6, v9\nv_lshl_add_u32 v9, v13, 3, v9\nv_add_u32 v9, {s(S_T0)}, v9")
    a(f"s_mul_i32 {s(S_T0)}, {s(S_WB)}, 2176\ns_add_u32 {s(S_T0)}, {s(S_T0)}, {L_YL}")
    a(f"v_mul_u32_u24 v7, 272, v13\nv_lshl_add_u32 v7, v12, 2, v7\nv_add_u32 v7, {s(S_T0)}, v7")
    a.c("partials: wb*16384 + w*4096 + (8t + row)*256 + ((2c + h) ^ row)*16")
    a(f"s_lshl_b32 {s(S_T0)}, {s(S_WB)}, 14\nv_lshlrev_b32 v2, 1, v13\nv_xor_b32 v2, v2, v12\nv_lshlrev_b32 v2, 4, v2\nv_lshl_add_u32 v2, v12, 8, v2\nv_add_u32 v2, {s(S_T0)}, v2")
    a("v_xor_b32 v3, 16, v2")
    for t in range(2):
        a(f"v_mul_f32 {v(185+4*t)}, {f32bits(1.0/C1):#x}, {v(185+4*t)}")
        for i in range(8):
            a(f"v_sub_f32 {v(XN+8*t+i)}, {v(XU+8*t+i)}, {v(184+4*t)}")
        for i in range(8):
            a(f"v_mul_f32 {v(XN+8*t+i)}, {v(XN+8*t+i)}, {v(185+4*t)}")
    if not opt('LDST', 0): stamp(a, 7)
    a(f"s_setprio {opt('PRP', 0)}")
    a.c("stay off the memory path until the GEMM2 waves have issued their loads")
    lds_min_wait(a, C_CNT, W_HI, 1, 4, 6, nap=2)
    a(f"s_setprio {opt('PRF', 3)}")
    if not opt('LDST', 0): stamp(a, 8)
    top, done = a.label("yp"), a.label("yp_ok")
    a(f"s_mov_b32 {s(S_IT)}, 0")
    if opt("YFLAG", 1):
        poll(a, 5, 6)
    a(f"{top}:")
    y_loads()
    a("s_waitcnt vmcnt(0)")
    for i in range(4):
        a(f"v_xor_b32 {v(48+i)}, {s(S_NON)}, {v(YL+4*i+1)}\nv_xor_b32 {v(52+i)}, {s(S_NON)}, {v(YL+4*i+3)}\nv_mov_b32 {v(YL+4*i+1)}, {v(YL+4*i+2)}")
    a("v_or3_b32 v48, v48, v49, v50\nv_or3_b32 v51, v51, v52, v53\nv_or3_b32 v48, v48, v54, v55\nv_or_b32 v48, v48, v51\nv_cmp_ne_u32 vcc, 0, v48")
    a(f"s_cbranch_vccz {done}")
    poll(a, 5, 6)
    a(f"s_add_u32 {s(S_IT)}, {s(S_IT)}, {s(S_SPIN)}\ns_add_u32 {s(S_IT)}, {s(S_IT)}, 1\ns_cmp_lt_u32 {s(S_IT)}, {SPIN_MAX}\ns_cbranch_scc1 {top}")
    a(f"{done}:")
    for i in range(4):
        a(f"ds_write_b64 v9, {v(YL+4*i,2)} offset:{272*(i>>1) + 128*(i&1)}")
    bsync(a)
    for t in range(2):
        for e in range(8):
            a(f"ds_read_u16_d16_hi {v(YU+8*t+e)}, v7 offset:{64*(e>>1) + 32*t + 2*(e&1)}")
    for t in range(2):
        a(f"s_waitcnt lgkmcnt({8*(1-t)})")
        for i in range(8):
            a(f"v_fmac_f32 {v(XU+8*t+i)}, {v(XN+8*t+i)}, {v(YU+8*t+i)}")
    if not opt('LDST', 0): stamp(a, 9)
    if STAMPS:
        a("s_waitcnt lgkmcnt(0)")
    a("s_barrier")
    P = 112
    for t in range(2):
        for w in range(4):
            for h in range(2):
                a(f"ds_read_b128 {v(P+32*t+8*w+4*h,4)}, {'v3' if h else 'v2'} offset:{w*4096 + t*2048}")
    for t in range(2):
        a(f"s_waitcnt lgkmcnt({8*(1-t)})")
        p = P + 32 * t
        for i in range(4):
            a(f"v_pk_add_f32 {v(p+2*i,2)}, {v(p+2*i,2)}, {v(p+8+2*i,2)}")
        for i in range(4):
            a(f"v_pk_add_f32 {v(p+16+2*i,2)}, {v(p+16+2*i,2)}, {v(p+24+2*i,2)}")
        for i in range(4):
            a(f"v_pk_add_f32 {v(p+2*i,2)}, {v(p+2*i,2)}, {v(XU+8*t+2*i,2)}")
        for i in range(4):
            a(f"v_pk_add_f32 {v(p+2*i,2)}, {v(p+2*i,2)}, {v(p+16+2*i,2)}")
        for i in range(4):
            a(f"v_cvt_pk_bf16_f32 {v(48+4*t+i)}, {v(p+2*i)}, {v(p+2*i+1)}")
        a(f"buffer_store_dwordx4 {v(48+4*t,4)}, v14, {s(R_OUT,4)}, {s(S_WO if t else S_XO)} offen")


def epoch_flags_issue(a):
    a(f"v_lshlrev_b32 v6, 7, v0\ns_mov_b32 {s(S_T0)}, {WS_F1:#x}")
    for i in range(4):
        a(f"buffer_load_dword {v(2+i)}, v6, {s(R_WS,4)}, {s(S_T0)} offen sc1")
        a(f"s_add_u32 {s(S_T0)}, {s(S_T0)}, 8192")


def epoch_pre(a):
    done = a.label("ep_skip")
    a(f"s_lshl_b32 {s(S_T0)}, s2, 3\ns_add_u32 {s(S_T0)}, {s(S_T0)}, {s(S_WAVE)}\ns_cmp_lg_u32 {s(S_T0)}, 0\ns_cbranch_scc1 {done}")
    epoch_flags_issue(a)
    a(f"{done}:")


def epoch_advance(a):
    done, top, ok = a.label("ep_skip"), a.label("ep_top"), a.label("ep_ok")
    a(f"s_lshl_b32 {s(S_T0)}, s2, 3\ns_add_u32 {s(S_T0)}, {s(S_T0)}, {s(S_WAVE)}\ns_cmp_lg_u32 {s(S_T0)}, 0\ns_cbranch_scc1 {done}")
    a(f"s_mov_b32 {s(S_SPIN)}, 0")
    a(f"{top}:")
    for i in range(4):
        a(f"v_xor_b32 {v(2+i)}, {s(S_NON)}, {v(2+i)}")
    a("v_or_b32 v2, v2, v3\nv_or_b32 v4, v4, v5\nv_or_b32 v2, v2, v4\nv_cmp_ne_u32 vcc, 0, v2")
    a(f"s_cbranch_vccz {ok}")
    a(f"s_add_u32 {s(S_SPIN)}, {s(S_SPIN)}, 1\ns_cmp_ge_u32 {s(S_SPIN)}, {SPIN_MAX}\ns_cbranch_scc1 {ok}")
    epoch_flags_issue(a)
    a(f"s_waitcnt vmcnt(0)\ns_branch {top}")
    a(f"{ok}:")
    a(f"s_mov_b32 {s(S_T0)}, {WS_EP:#x}")
    flag_store(a, S_T0, 8, 9)
    a(f"{done}:")


def kernel(a):
    entry(a)
    prologue(a, False, 1)
    g1_compute(a)
    g1_epilogue(a)
    epoch_pre(a)
    g2_main(a)
    epoch_advance(a)
    stamp_flush(a)
    a("s_endpgm")
    a(".p2align 6\nL_load:")
    prologue(a)
    loader(a)
    a("s_branch L_bj")
    a(".p2align 6\nL_help:")
    prologue(a, 2 if opt("KV1", 0) else True)
    helper(a)
    a("L_bj:")
    if opt("BST", 0): lstamp(a, 1)
    conv_addr(a)
    if opt("BST", 0): lstamp(a, 2)
    bsync(a, 4 if opt("CEARLY", 0) else 8)
    a(f"s_setprio {opt('PRC', 3)}")
    lstamp(a, 4)
    conv_main(a)
    lstamp(a, 6)
    final(a)
    stamp_flush(a)
    a("s_endpgm")
    a.L += COLD.L
    a("L_end:\ns_endpgm")


HEADER = open(f"cdna_kernels/{NAME}.s.ref").read().split("; Override launch")[0]


def build():
    a = Asm()
    kernel(a)
    out = HEADER + "; @launch grid=(256,1,1) block=(512,1,1) lds=163840\n"
    out += '.amdgcn_target "amdgcn-amd-amdhsa--gfx950"\n.text\n' + a.text()
    out += '.section .rodata,"a"\n.p2align 6\n' + kernel_desc(KNAME)
    return out


if __name__ == "__main__":
    open(sys.argv[1] if len(sys.argv) > 1 else "t_m.s", "w").write(build())
```

```python
import math, os, sys
from asmlib import *

NAME = "parallel_sum__ssm_conv_h3__geglu_ffn__prompt"
KNAME = NAME + "_kernel"
S, D, F = 2048, 512, 1376
NU = F // 16
STAMPS = os.environ.get("STAMPS") == "1"
def opt(name, default):
    return int(os.environ.get(name, default))

WS_HF, WS_KVR, WS_Y2, WS_ST, WS_CSP = 0, 0x600000, 0x800000, 0xA00000, 0xA10000
WS_F1, WS_F2, WS_F3, WS_F4, WS_EP = 0xA80000, 0xA88000, 0xAA0000, 0xAC0000, 0xAE0000
WS_STAMP = 0xC00000
WS_YG = 0x1000000
YSTR = 16384 + 256
WS_SIZE = 0x1500000
NONCE_INC = 0x9E3779B1
OOB = 0x7f000000
R_X, R_WG, R_WU, R_WS, R_K, R_V, R_SK, R_WD, R_OUT, R_H = 4, 8, 12, 16, 20, 24, 28, 32, 36, 40
S_DP = 44
S_EX = 46
(S_WAVE, S_MI, S_NI, S_FB0, S_NBLK, S_T0, S_T1, S_T2, S_T3, S_IT, S_SLOT, S_KC, S_XO, S_WO, S_WO2, S_M0,
 S_WB, S_SH, S_UH, S_TI, S_MT, S_NT, S_NON, S_RING, S_CNT, S_HO, S_DO, S_SPIN) = range(48, 76)
S_C = 76
S_DK, S_HK, S_KEND = 3, S_RING, S_CNT
SLOT, NSLOT = 40960, 3
L_KVT, KVT_STR = 122880, 80
L_CS, L_ST, L_CNT = 135680, 136704, 138752
HSTR = 4640
CH_STR = 4 * HSTR + 4224
L_CONV = 81920
L_XCH = 81920
L_YL = 114688
NRW = 7
KVL = opt("KVL", 0)
CFX, CFW, CFS, CFD = (os.environ.get(k, "") for k in ("CFX", "CFW", "CFS", "CFD"))
SLOTMAP = [2, 3, 4, 5, 6, 0, 1] if KVL else list(range(7))
L_RA0 = 127488
S_RA, S_RB = 101, S_M0
L_CSS = 139264
assert L_KVT + 2 * 64 * KVT_STR <= L_CS and L_CONV + 2 * CH_STR <= L_RA0 and L_RA0 + 8192 <= L_CS and L_CNT + 256 <= L_CSS
W_CNT, W_GATH, W_HP, W_FREE, W_FULL, W_NON, W_C0, W_ISS, W_WD, W_HI, W_WE = 0, 8, 12, 16, 32, 40, 48, 64, 80, 96, 112
S_DUM = 100
C1 = -2.0 * math.log2(math.e) * math.sqrt(2.0 / math.pi)
C2 = C1 * 0.044715
SPIN_MAX = 1 << 16
LSPIN_MAX = 1 << 22


def stamp(a, i):
    if STAMPS:
        a(f"{'s_memtime' if opt('CLK', 0) else 's_memrealtime'} {s(78+2*i,2)}")


def lstamp(a, i):
    if STAMPS and not opt("LDST", 0):
        lab = a.label("ls")
        a(f"s_cmp_ge_u32 {s(S_WB)}, 2\ns_cbranch_scc1 {lab}")
        stamp(a, i)
        a(f"{lab}:")


ITST = STAMPS and opt("ITST", 0)


def it_issue(a):
    if ITST:
        a("s_memrealtime s[96:97]")


def it_take(a, add):
    if ITST:
        a(f"s_add_u32 m0, {s(S_IT)}, {add}\ns_nop 0\nv_writelane_b32 v255, s96, m0")


def stamp_flush(a):
    if not STAMPS:
        return
    if ITST:
        a(f"s_lshl_b32 s96, s2, 3\ns_add_u32 s96, s96, {s(S_WAVE)}\ns_lshl_b32 s96, s96, 8\ns_add_u32 s96, s96, {WS_STAMP + 0x100000:#x}")
        a(f"v_lshlrev_b32 v2, 2, v0\nbuffer_store_dword v255, v2, {s(R_WS,4)}, s96 offen\ns_mov_b32 s96, 0")
    a("s_waitcnt vmcnt(0) lgkmcnt(0)")
    stamp(a, 10)
    a("s_waitcnt lgkmcnt(0)")
    for i in range(11):
        a(f"v_writelane_b32 v1, {s(78+2*i)}, {i}")
    a(f"s_lshl_b32 s78, s2, 3\ns_add_u32 s78, s78, {s(S_WAVE)}\ns_lshl_b32 s78, s78, 6\ns_add_u32 s78, s78, {WS_STAMP:#x}")
    a("v_lshlrev_b32 v2, 2, v0\ns_mov_b64 exec, 0x7ff")
    a(f"buffer_store_dword v1, v2, {s(R_WS,4)}, s78 offen")
    if opt("DBGST", 0):
        lab = a.label("dbg")
        a(f"s_cmp_lg_u32 s78, {WS_STAMP + opt('DBGW', 0)*64 + 100*512:#x}\ns_cbranch_scc1 {lab}")
        a("s_load_dwordx2 s[84:85], s[0:1], 88\ns_mov_b32 s86, 256\ns_mov_b32 s87, 0x20000\nv_readlane_b32 s82, v1, 0\ns_waitcnt lgkmcnt(0)")
        a("v_subrev_u32 v1, s82, v1")
        a("buffer_store_dword v1, v2, s[84:87], 0 offen")
        a(f"{lab}:")


TABLE = [(R_X, 0, S*D*2), (R_WG, 56, D*F*2), (R_WU, 64, D*F*2), (R_WS, 96, WS_SIZE), (R_K, 8, S*D*2), (R_V, 16, S*D*2),
         (R_SK, 24, D*8), (R_WD, 72, D*F*2), (R_OUT, 80, S*D*2), (R_H, 32, S*D*2)]


def entry(a):
    a(f".globl {KNAME}\n.p2align 8\n.type {KNAME},@function\n{KNAME}:")
    a("s_cmp_ge_u32 s2, 256\ns_cbranch_scc1 L_end")
    if opt("CPF", 0):
        n = opt("CPF", 0)
        a.c("pull this workgroup's share of the code into L2 ahead of the instruction fetch")
        a(f"s_getpc_b64 {s(S_EX,2)}\nL_pc:")
        a(f"s_lshr_b32 s3, s2, 3\nv_lshlrev_b32 v2, 5, v0\nv_add_u32 v2, s3, v2\nv_lshlrev_b32 v2, 7, v2\nv_mov_b32 v3, {s(S_EX+1)}")
        a(f"v_cmp_gt_u32 vcc, L_end-L_pc, v2\ns_and_saveexec_b64 {s(S_DP,2)}, vcc\ns_cbranch_execz L_nopf")
        a(f"v_add_co_u32 v2, vcc, {s(S_EX)}, v2\nv_addc_co_u32 v3, vcc, 0, v3, vcc")
        a("global_load_dword v212, v[2:3], off")
        a("L_nopf:\ns_mov_b64 exec, -1")
    a("v_lshrrev_b32 v1, 6, v0")
    a(f"s_load_dwordx2 {s(R_X,2)}, s[0:1], 0\ns_load_dwordx2 {s(R_WS,2)}, s[0:1], 96")
    stamp(a, 0)
    a(f"v_readfirstlane_b32 {s(S_WAVE)}, v1")
    a("v_and_b32 v0, 63, v0")
    a(f"s_cmp_ge_u32 {s(S_WAVE)}, 6\ns_cbranch_scc1 L_help")
    a(f"s_cmp_ge_u32 {s(S_WAVE)}, 4\ns_cbranch_scc1 L_load")


def prologue(a, bar=True, part=3):
    first = (R_X, R_WG, R_WU)
    if part & 1:
        for r, off, size in TABLE:
            if r in first[1:]:
                a(f"s_load_dwordx2 {s(r,2)}, s[0:1], {off}")
    if part & 2:
        for r, off, size in TABLE:
            if r not in first + (R_WS,):
                a(f"s_load_dwordx2 {s(r,2)}, s[0:1], {off}")
        a(f"s_load_dwordx2 {s(S_DP,2)}, s[0:1], 40")
        if STAMPS:
            for i in range(1, 11):
                a(f"s_mov_b32 {s(78+2*i)}, 0")
        if ITST:
            a("v_mov_b32 v255, 0")
    if part & 1 and not bar:
        a.c("LDS hand-off words start at zero")
        a(f"v_mov_b32 v20, 0\nv_lshlrev_b32 v5, 2, v0\nv_add_u32 v5, {L_CNT}, v5\nds_write_b32 v5, v20")
    for r, off, size in TABLE:
        if part & (1 if r in first else 2):
            a(f"s_mov_b32 {s(r+2)}, {size:#x}\ns_mov_b32 {s(r+3)}, 0x20000")
    if part & 1:
        a.c("x = wg&7, j = wg>>3; GEMM1 tile mi = 8*(x&1) + (j&7), ni = 4*(x>>1) + (j>>3); ti = 16*mi + ni")
        a(f"s_and_b32 {s(S_T0)}, s2, 1\ns_lshl_b32 {s(S_T0)}, {s(S_T0)}, 3")
        a(f"s_bfe_u32 {s(S_T1)}, s2, 0x30003\ns_add_u32 {s(S_MI)}, {s(S_T0)}, {s(S_T1)}")
        a(f"s_bfe_u32 {s(S_T0)}, s2, 0x20001\ns_lshl_b32 {s(S_T0)}, {s(S_T0)}, 2")
        a(f"s_lshr_b32 {s(S_T2)}, s2, 6\ns_add_u32 {s(S_NI)}, {s(S_T0)}, {s(S_T2)}")
        a.c("first 32-col block fb0 = 3*ni - (ni>>2) - (ni==15); nblk = 2 for ni in {3,7,11,14,15}")
        a(f"s_mul_i32 {s(S_FB0)}, {s(S_NI)}, 3\ns_lshr_b32 {s(S_T0)}, {s(S_NI)}, 2\ns_sub_u32 {s(S_FB0)}, {s(S_FB0)}, {s(S_T0)}")
        a(f"s_cmp_eq_u32 {s(S_NI)}, 15\ns_subb_u32 {s(S_FB0)}, {s(S_FB0)}, 0")
        a(f"s_bitcmp1_b32 0xc888, {s(S_NI)}\ns_cselect_b32 {s(S_NBLK)}, 2, 3")
        a(f"s_and_b32 {s(S_WB)}, {s(S_WAVE)}, 3")
        a.c("GEMM1 DMA lane offsets. x: (l>>3)*1024 + ((l&7) ^ ((4*(w&1) + l>>4)&7))*16 ; W: (l>>2)*2752 + ((l&3) ^ (2*(l>>5)))*16")
        a(f"s_and_b32 {s(S_T0)}, {s(S_WAVE)}, 1\ns_lshl_b32 {s(S_T0)}, {s(S_T0)}, 2")
        a(f"v_lshrrev_b32 v5, 4, v0\nv_add_u32 v5, {s(S_T0)}, v5\nv_and_b32 v6, 7, v0\nv_xor_b32 v5, v5, v6\nv_lshlrev_b32 v5, 4, v5")
        a(f"v_lshrrev_b32 v6, 3, v0\nv_lshl_add_u32 {v(VB_X)}, v6, 10, v5")
        a(f"v_lshrrev_b32 v5, 5, v0\nv_lshlrev_b32 v5, 1, v5\nv_and_b32 v6, 3, v0\nv_xor_b32 v5, v5, v6\nv_lshlrev_b32 v5, 4, v5")
        a(f"v_lshrrev_b32 v6, 2, v0\nv_mul_u32_u24 v6, {F*2}, v6\nv_add_u32 {v(VB_W)}, v6, v5")
        if not bar:
            a(f"s_lshl_b32 {s(S_XO)}, {s(S_MI)}, 17\ns_lshl_b32 {s(S_T0)}, {s(S_WB)}, 13\ns_add_u32 {s(S_XO)}, {s(S_XO)}, {s(S_T0)}")
            a(f"s_mul_i32 {s(S_WO)}, {s(S_WB)}, {16*F*2}\ns_lshl_b32 {s(S_T0)}, {s(S_FB0)}, 6\ns_add_u32 {s(S_WO)}, {s(S_WO)}, {s(S_T0)}")
            a(f"s_cmp_eq_u32 {s(S_NBLK)}, 3\ns_cselect_b32 {s(S_WO2)}, {s(S_WO)}, {OOB:#x}")
            a(f"s_lshl_b32 {s(S_M0)}, {s(S_WB)}, 10")
    if part & 2:
        a(f"s_lshl_b32 {s(S_TI)}, {s(S_MI)}, 4\ns_add_u32 {s(S_TI)}, {s(S_TI)}, {s(S_NI)}")
        if opt("MTL", 1):
            a.c("GEMM2 tile mt = 16*(x&1) + 4*(x>>1) + (j&3), nt = j>>2")
            a(f"s_and_b32 {s(S_T0)}, s2, 1\ns_lshl_b32 {s(S_T0)}, {s(S_T0)}, 4\ns_and_b32 {s(S_T1)}, s2, 6\ns_lshl_b32 {s(S_T1)}, {s(S_T1)}, 1\ns_add_u32 {s(S_T0)}, {s(S_T0)}, {s(S_T1)}")
            a(f"s_bfe_u32 {s(S_T1)}, s2, 0x20003\ns_add_u32 {s(S_MT)}, {s(S_T0)}, {s(S_T1)}")
        else:
            a.c("GEMM2 tile mt = 4*x + (j&3), nt = j>>2")
            a(f"s_and_b32 {s(S_T0)}, s2, 7\ns_lshl_b32 {s(S_T0)}, {s(S_T0)}, 2\ns_bfe_u32 {s(S_T1)}, s2, 0x20003\ns_add_u32 {s(S_MT)}, {s(S_T0)}, {s(S_T1)}")
        a(f"s_lshr_b32 {s(S_NT)}, s2, 5\ns_mov_b32 {s(S_SPIN)}, 0")
    if bar:
        a(f"s_mov_b32 {s(S_UH)}, 0\nv_lshlrev_b32 v4, 4, v0\nv_mov_b32 {v(C_CNT)}, {L_CNT}\nv_mov_b32 {v(C_ONE)}, 1\ns_mov_b32 {s(S_C)}, 0xffff0000")
    if part & 1:
        a("s_waitcnt lgkmcnt(0)")
    if bar is True:
        a("s_barrier")


VB_X, VB_W = 14, 15
C_CNT, C_ONE = 252, 253


def poll(a, vaddr, vtmp):
    top, done = a.label("poll"), a.label("poll_ok")
    a(f"s_mov_b32 {s(S_SPIN)}, 0")
    a(f"{top}:")
    a(f"buffer_load_dword {v(vtmp)}, {v(vaddr)}, {s(R_WS,4)}, 0 offen sc1")
    a("s_waitcnt vmcnt(0)")
    a(f"v_cmp_ne_u32 vcc, {s(S_NON)}, {v(vtmp)}")
    a(f"s_cbranch_vccz {done}")
    a(f"s_sleep {opt('PSG' if vaddr == G_FL else 'PSY', 4)}")
    a(f"s_add_u32 {s(S_SPIN)}, {s(S_SPIN)}, 1\ns_cmp_lt_u32 {s(S_SPIN)}, {SPIN_MAX}\ns_cbranch_scc1 {top}")
    a(f"{done}:")


def poll2_issue(a, vaddr, vt):
    a(f"buffer_load_dwordx2 {v(vt,2)}, {v(vaddr)}, {s(R_WS,4)}, 0 offen sc1")


def poll2_check(a, vaddr, vt):
    top, done = a.label("poll"), a.label("poll_ok")
    a(f"s_mov_b32 {s(S_SPIN)}, 0")
    a(f"{top}:")
    a(f"v_cmp_ne_u32 vcc, {s(S_NON)}, {v(vt)}\nv_cmp_ne_u32 {s(S_EX,2)}, {s(S_NON)}, {v(vt+1)}")
    a(f"s_nop 0\ns_or_b64 vcc, vcc, {s(S_EX,2)}")
    a(f"s_cbranch_scc0 {done}")
    a(f"s_add_u32 {s(S_SPIN)}, {s(S_SPIN)}, 1\ns_cmp_ge_u32 {s(S_SPIN)}, {SPIN_MAX}\ns_cbranch_scc1 {done}")
    a(f"s_sleep {opt('PS2', 1)}")
    poll2_issue(a, vaddr, vt)
    a(f"s_waitcnt vmcnt(0)\ns_branch {top}")
    a(f"{done}:")


class VQ:
    def __init__(self, a):
        self.a, self.q = a, []
    def add(self, tag, n):
        self.q += [tag] * n
    def count(self, *tags):
        last = max((i for i, x in enumerate(self.q) if x in tags), default=-1)
        n = len(self.q) - 1 - last
        assert n <= 63
        return n
    def wait(self, *tags):
        self.a(f"s_waitcnt vmcnt({self.count(*tags)})")


def flag_store(a, soff, vt0, vt1):
    a(f"v_mov_b32 {v(vt0)}, {s(S_NON)}\nv_mov_b32 {v(vt1)}, 0")
    a("s_mov_b64 exec, 1")
    a(f"buffer_store_dword {v(vt0)}, {v(vt1)}, {s(R_WS,4)}, {s(soff)} offen sc1")
    a("s_mov_b64 exec, -1")


def epoch_load(a, vt):
    a(f"v_mov_b32 {v(vt)}, {WS_EP:#x}")
    a(f"buffer_load_dword {v(vt)}, {v(vt)}, {s(R_WS,4)}, 0 offen sc1")


def epoch_take(a, vt):
    a(f"v_readfirstlane_b32 {s(S_NON)}, {v(vt)}")
    a("s_nop 0")
    a(f"s_add_u32 {s(S_NON)}, {s(S_NON)}, {NONCE_INC:#x}")


V_XA0, V_XA1, V_W = 2, 3, 4
V_XC0, V_XC1, V_WC = 7, 8, 9
ACC, F0, F1 = 16, 112, 152
G_ACC, G_WF, G_H = 176, 16, 80
G_L16, G_WD, G_TR, G_TR0, G_TR5, G_FL = 240, 241, 242, 246, 250, 254
NHB, NWF, NSTEP = 6, 4, 11
G_HT = 255


def acc(u, mat, sb):
    return ACC + ((u * 2 + mat) * 4 + sb) * 4


def g1_reads(fr, step, units):
    out = []
    for u in units:
        if u == 'x':
            for sb in range(4):
                out.append(f"ds_read_b128 {v(fr+4*sb,4)}, {v(V_XC1 if step else V_XC0)} offset:{sb*2048}")
            continue
        for mat in range(2):
            r = fr + 16 + (u * 2 + mat) * 4
            for t in range(2):
                out.append(f"ds_read_b64_tr_b16 {v(r+2*t,2)}, {v(V_WC+u)} offset:{mat*12288+step*2048+t*256}")
    return out


def g1_mfmas(fr, units):
    out = []
    for u in units:
        for mat in range(2):
            for sb in range(4):
                c = acc(u, mat, sb)
                out.append(f"v_mfma_f32_16x16x32_bf16 {v(c,4)}, {v(fr+16+(u*2+mat)*4,4)}, {v(fr+4*sb,4)}, {v(c,4)}")
    return out


V_LW, V_FC, V_FL = 12, 13, 192


COLD = Asm()


def g1_step_a(a):
    rd = g1_reads(F1, 1, ['x', 0, 1, 2])
    for i, m in enumerate(g1_mfmas(F0, [0, 1])):
        if i == 0:
            a("s_waitcnt lgkmcnt(8)")
        if i == 8:
            a("s_waitcnt lgkmcnt(12)")
            a(f"ds_read_b32 {v(V_FL)}, {v(V_FL+1)} offset:{W_FULL}")
        a(rd[i])
        a(m)
    a(f"ds_write_b32 {v(V_FL+2)}, {v(V_FC)}")
    lab = a.label("g1_skip")
    a(f"s_cbranch_vccnz {lab}")
    a("s_waitcnt lgkmcnt(15)")
    for l in g1_mfmas(F0, [2]):
        a(l)
    a(f"{lab}:")


def g1_step_b(a):
    mf = g1_mfmas(F1, [0, 1])
    rd = g1_reads(F0, 0, ['x', 0, 1, 2])
    slow, lab, lab2 = a.label("g1_slow"), a.label("g1_skip"), a.label("g1_skip")
    a("s_waitcnt lgkmcnt(9)")
    a(mf[0])
    a(f"v_add_u32 {v(V_XC0)}, {s(S_SLOT)}, {v(V_XA0)}")
    a(mf[1])
    a(f"v_readfirstlane_b32 {s(S_T0)}, {v(V_FL)}")
    a(f"v_add_u32 {v(V_WC)}, {s(S_SLOT)}, {v(V_W)}")
    a(mf[2])
    extra = [f"v_add_u32 {v(V_WC+1)}, {s(S_SLOT)}, {v(V_W+1)}", f"v_add_u32 {v(V_WC+2)}, {s(S_SLOT)}, {v(V_W+2)}",
             f"v_add_u32 {v(V_XC1)}, {s(S_SLOT)}, {v(V_XA1)}", f"v_add_u32 {v(V_FC)}, 1, {v(V_FC)}"]
    flip = f"v_xor_b32 {v(V_FL+1)}, 4, {v(V_FL+1)}"
    a(f"s_cmp_lt_u32 {s(S_T0)}, {s(S_T2)}\ns_cbranch_scc1 {slow}")
    r, e = list(rd), extra + [flip]
    for i, m in enumerate(mf[3:]):
        if i == 5:
            a("s_waitcnt lgkmcnt(13)")
        a(r.pop(0))
        if i < 3:
            a(r.pop(0))
        if e:
            a(e.pop(0))
        a(m)
    assert not r
    a(f"s_cbranch_vccnz {lab}")
    a("s_waitcnt lgkmcnt(15)")
    for l in g1_mfmas(F1, [2]):
        a(l)
    a(f"{lab}:")
    if ITST:
        it_issue(a)
        a("s_waitcnt lgkmcnt(0)")
        it_take(a, 16)
    a(f"s_cmp_lt_u32 {s(S_IT)}, 8")
    a("s_cbranch_scc1 g1_loop")
    main, a = a, COLD
    a.nlabel = main.nlabel + 5000
    a.c("next chunk not in yet: finish this one first")
    a(f"{slow}:")
    a("s_waitcnt lgkmcnt(0)")
    for l in interleave(mf[3:], extra, 0, 1):
        a(l)
    a(f"s_cbranch_vccnz {lab2}")
    for l in g1_mfmas(F1, [2]):
        a(l)
    a(f"{lab2}:")
    lds_min_wait(a, V_FL+1, W_FULL, 1, s(S_T2), V_FL)
    if ITST:
        it_issue(a)
        a("s_waitcnt lgkmcnt(0)")
        it_take(a, 32)
    for l in rd:
        a(l)
    a(flip)
    a("s_branch g1_loop")


def dma_chunk0(a):
    for i in range(4):
        a(f"s_add_u32 m0, {s(S_M0)}, {i*4096}")
        a(f"s_add_u32 {s(S_XO)}, {s(S_XO)}, 32768" if i else "s_nop 0")
        a(f"buffer_load_dwordx4 {v(VB_X)}, {s(R_X,4)}, {s(S_XO)} offen {CFX} lds")
    for blk in range(3):
        for mat in range(2):
            a(f"s_add_u32 m0, {s(S_M0)}, {16384 + (mat*3+blk)*4096 - 64*blk}")
            a("s_nop 0")
            a(f"buffer_load_dwordx4 {v(VB_W)}, {s(R_WU if mat else R_WG,4)}, {s(S_WO2 if blk == 2 else S_WO)} offen offset:{64*blk} {CFW} lds")


def spf(a, srd, sbase, offs):
    for o in offs:
        a(f"s_buffer_load_dword {s(S_DUM)}, {s(srd,4)}, {s(sbase)} offset:{o:#x}")


def lds_min_wait(a, vaddr, off, n, target, vt, nap=None):
    lab = a.label("lw")
    a(f"{lab}:")
    a(f"ds_read_b{32*n} {v(vt,n)}, {v(vaddr)} offset:{off}")
    a("s_waitcnt lgkmcnt(0)")
    if n == 4:
        a(f"v_min3_u32 {v(vt)}, {v(vt)}, {v(vt+1)}, {v(vt+2)}\nv_min_u32 {v(vt)}, {v(vt)}, {v(vt+3)}")
    elif n == 2:
        a(f"v_min_u32 {v(vt)}, {v(vt)}, {v(vt+1)}")
    a("s_nop 0")
    a(f"v_readfirstlane_b32 {s(S_T0)}, {v(vt)}")
    a("s_nop 0")
    done = a.label("lw_ok")
    a(f"s_cmp_ge_u32 {s(S_T0)}, {target}\ns_cbranch_scc1 {done}")
    if nap is None:
        nap = opt("NAP", 1) if vaddr == C_CNT else 0
    if nap:
        a(f"s_sleep {nap}")
    a(f"s_add_u32 {s(S_SPIN)}, {s(S_SPIN)}, 1\ns_cmp_lt_u32 {s(S_SPIN)}, {LSPIN_MAX}\ns_cbranch_scc1 {lab}")
    a(f"{done}:")


def lds_inc(a, vaddr, vone, off):
    a(f"s_mov_b64 exec, 1\nds_add_u32 {v(vaddr)}, {v(vone)} offset:{off}\ns_mov_b64 exec, -1")


WDE = opt("WDE", 0)


def wd_setup(a, first, S_WB=S_WB):
    a.c("Wd DMA lane offset: (l>>3)*1024 + ((l&7) ^ (((l>>4)&3)<<1))*16")
    a(f"v_lshrrev_b32 v12, 4, v0\nv_lshlrev_b32 v13, 1, v12\nv_and_b32 v14, 7, v0\nv_xor_b32 v13, v13, v14\nv_lshlrev_b32 v13, 4, v13\nv_lshrrev_b32 v14, 3, v0\nv_lshl_add_u32 {v(G_WD)}, v14, 10, v13")
    a(f"s_lshl_b32 {s(S_KC)}, {s(S_WB)}, 12")
    a(f"s_lshl_b32 {s(S_RA)}, {s(S_WB)}, 13\ns_add_u32 {s(S_RB)}, {s(S_RA)}, {131072 + 16384}\ns_add_u32 {s(S_RA)}, {s(S_RA)}, 131072\ns_cmp_eq_u32 {s(S_WB)}, 0\ns_cselect_b32 {s(S_RA)}, {L_RA0}, {s(S_RA)}")
    if opt("ROT", 1):
        a(f"s_and_b32 {s(S_T0)}, {s(S_MT)}, 3\ns_mul_i32 {s(S_T0)}, {s(S_T0)}, 3\ns_mul_i32 {s(S_T1)}, {s(S_NT)}, 7\ns_add_u32 {s(S_T0)}, {s(S_T0)}, {s(S_T1)}")
        a(f"s_mul_i32 {s(S_T1)}, {s(S_T0)}, 187\ns_lshr_b32 {s(S_T1)}, {s(S_T1)}, 11\ns_mul_i32 {s(S_T1)}, {s(S_T1)}, 11\ns_sub_u32 {s(S_T0)}, {s(S_T0)}, {s(S_T1)}")
    else:
        a(f"s_mov_b32 {s(S_T0)}, 0")
    a(f"s_add_u32 {s(S_DK)}, {s(S_T0)}, {first}\ns_sub_u32 {s(S_T1)}, {s(S_DK)}, 11\ns_cmp_ge_u32 {s(S_DK)}, 11\ns_cselect_b32 {s(S_DK)}, {s(S_T1)}, {s(S_DK)}")
    a(f"s_mul_i32 {s(S_DO)}, {s(S_WB)}, {NSTEP*32768}\ns_lshl_b32 {s(S_T1)}, {s(S_NT)}, 7\ns_add_u32 {s(S_DO)}, {s(S_DO)}, {s(S_T1)}")


def g2_setup(a):
    a(f"v_lshlrev_b32 {v(G_L16)}, 4, v0")
    wd_setup(a, NRW)
    a(f"s_mov_b32 {s(S_HK)}, {s(S_T0)}")
    a(f"s_cmp_eq_u32 {s(S_WAVE)}, 3\ns_cselect_b32 {s(S_KEND)}, 10, 99")
    a.c("tr address: w*4096 + (l>>2)*128 + ((db ^ ((l>>3)&3))*32) + (l&3)*8")
    a(f"v_lshrrev_b32 v13, 2, v0\nv_lshlrev_b32 v13, 7, v13\nv_and_b32 v15, 3, v0\nv_lshl_add_u32 v13, v15, 3, v13\nv_add_u32 v13, {s(S_KC)}, v13\nv_and_b32 v14, 3, v14")
    a(f"s_sub_u32 {s(S_T1)}, {s(S_RA)}, {s(S_KC)}")
    for db in range(4):
        a(f"v_xor_b32 v15, {db}, v14\nv_lshl_add_u32 {v(G_TR+db)}, v15, 5, v13\nv_add_u32 {v(G_TR0+db)}, {s(S_T1)}, {v(G_TR+db)}\nv_add_u32 {v(G_TR5+db)}, 0x10000, {v(G_TR+db)}")
    a(f"s_mul_i32 {s(S_HO)}, {s(S_MT)}, {2*NU*1024}\ns_mul_i32 {s(S_T0)}, {s(S_WAVE)}, {NSTEP*2048}\ns_add_u32 {s(S_HO)}, {s(S_HO)}, {s(S_T0)}")
    a.c("H flags this wave needs: F3[mt*32 + 8w + (l&7)]")
    a(f"s_lshl_b32 {s(S_T0)}, {s(S_MT)}, 2\ns_add_u32 {s(S_T0)}, {s(S_T0)}, {s(S_WAVE)}\ns_lshl_b32 {s(S_T0)}, {s(S_T0)}, 10\ns_add_u32 {s(S_T0)}, {s(S_T0)}, {WS_F3:#x}")
    if not opt("HT", 0):
        a(f"v_and_b32 v12, 7, v0\nv_lshlrev_b32 v12, 7, v12\nv_add_u32 {v(G_FL)}, {s(S_T0)}, v12")
        return
    a.c("lane (U = l>>1, p = l&1) watches the producer of unit U and pulls line nt of that unit into L2")
    a(f"s_cmp_eq_u32 {s(S_WAVE)}, 3\ns_cselect_b32 {s(S_T1)}, 2, 3\ns_cselect_b32 {s(S_T2)}, 19, 21")
    a(f"v_lshrrev_b32 v12, 1, v0\nv_min_u32 v12, {s(S_T2)}, v12\nv_mul_u32_u24 v13, 0x56, v12\nv_lshrrev_b32 v13, 8, v13")
    a(f"v_and_b32 v15, 1, v0\nv_mul_u32_u24 v15, {NU}, v15\nv_add_u32 v15, v15, v12\nv_lshlrev_b32 v15, 10, v15\ns_lshl_b32 {s(S_T2)}, {s(S_NT)}, 7\nv_add_u32 {v(G_HT)}, {s(S_T2)}, v15")
    a(f"v_lshrrev_b32 v12, 1, v12\nv_subrev_u32 v12, {s(S_T1)}, v12")
    a(f"v_max_i32 v12, v12, v13\nv_lshlrev_b32 v12, 7, v12\nv_add_u32 {v(G_FL)}, {s(S_T0)}, v12")


def g1_compute(a):
    a(f"s_setprio {opt('PRA', 3)}")
    if opt("TOUCH", 0):
        l1, l2 = a.label("tc"), a.label("tc")
        a(f"s_mov_b32 {s(R_K+3)}, 0x20000")
        a(f"s_cmp_ge_u32 {s(S_WAVE)}, 2\ns_cbranch_scc1 {l1}")
        a(f"s_lshl_b32 {s(S_T2)}, {s(S_WAVE)}, 8\ns_add_u32 {s(R_K)}, {s(R_X)}, {s(S_T2)}\ns_addc_u32 {s(R_K+1)}, {s(R_X+1)}, 0\ns_mov_b32 {s(R_K+2)}, {S*D*2 - 256:#x}")
        RX0 = R_X
        globals()["R_X"] = R_K
        touch_x(a, (0, 4) if opt("TOUCH", 0) == 2 else (0,), 1)
        globals()["R_X"] = RX0
        a(f"s_branch {l2}\n{l1}:")
        a(f"s_cmp_eq_u32 {s(S_WAVE)}, 2\ns_cselect_b64 {s(R_K,2)}, {s(R_WG,2)}, {s(R_WU,2)}\ns_mov_b32 {s(R_K+2)}, {D*F*2:#x}")
        touch_w(a, 0, (R_K,), 1)
        a(f"{l2}:")
    dma_chunk0(a)
    a("s_barrier")
    prologue(a, False, 2)
    if opt("SPF", 0):
        a.c("warm the lines the column sums need: rows 32mi + 16*(w&1).. of gate (w<2) or up")
        a(f"s_cmp_lt_u32 {s(S_WAVE)}, 2\ns_cselect_b64 {s(R_K,2)}, {s(R_WG,2)}, {s(R_WU,2)}\ns_mov_b32 {s(R_K+2)}, {D*F*2:#x}")
        a(f"s_lshl_b32 {s(S_T0)}, {s(S_MI)}, 1\ns_and_b32 {s(S_T1)}, {s(S_WAVE)}, 1\ns_add_u32 {s(S_T0)}, {s(S_T0)}, {s(S_T1)}\ns_mul_i32 {s(S_XO)}, {s(S_T0)}, {16*F*2}")
        a(f"s_lshl_b32 {s(S_T1)}, {s(S_FB0)}, 6\ns_add_u32 {s(S_XO)}, {s(S_XO)}, {s(S_T1)}")
        spf(a, R_K, S_XO, [r*F*2 + h*128 for r in range(7) for h in range(2)])
    a(f"s_and_b32 {s(S_SH)}, {s(S_WAVE)}, 1\ns_lshr_b32 {s(S_UH)}, {s(S_WAVE)}, 1")
    a.c("x fragment address: (64*sh + s16)*128 + ((kg ^ ((s16>>1)&7))*16)")
    a("v_and_b32 v10, 15, v0\nv_lshrrev_b32 v11, 4, v0\nv_lshrrev_b32 v12, 1, v10\nv_xor_b32 v12, v12, v11\nv_lshlrev_b32 v12, 4, v12")
    a(f"v_lshl_add_u32 {v(V_XA0)}, v10, 7, v12\ns_lshl_b32 {s(S_T0)}, {s(S_SH)}, 13\nv_add_u32 {v(V_XA0)}, {s(S_T0)}, {v(V_XA0)}")
    a(f"v_xor_b32 {v(V_XA1)}, 64, {v(V_XA0)}")
    a.c("W fragment address: 16384 + blk*4096 + kg*512 + r*64 + ((h^(kg&1))*32) + c*8")
    a("v_lshlrev_b32 v12, 9, v11\nv_bfe_u32 v13, v0, 2, 2\nv_lshl_add_u32 v12, v13, 6, v12\nv_and_b32 v13, 3, v0\nv_lshl_add_u32 v12, v13, 3, v12")
    a("v_and_b32 v13, 1, v11\nv_lshl_add_u32 v12, v13, 5, v12")
    a(f"s_mul_i32 {s(S_T0)}, {s(S_UH)}, {s(S_NBLK)}")
    for u in range(3):
        a(f"s_add_u32 {s(S_T1)}, {s(S_T0)}, {u}\ns_and_b32 {s(S_T2)}, {s(S_T1)}, 1\ns_lshl_b32 {s(S_T2)}, {s(S_T2)}, 5")
        a(f"s_lshr_b32 {s(S_T1)}, {s(S_T1)}, 1\ns_lshl_b32 {s(S_T1)}, {s(S_T1)}, 12\ns_add_u32 {s(S_T1)}, {s(S_T1)}, 16384")
        a(f"v_xor_b32 {v(V_W+u)}, {s(S_T2)}, v12\nv_add_u32 {v(V_W+u)}, {s(S_T1)}, {v(V_W+u)}")
    g2_setup(a)
    ep_setup(a)
    for i in range(48):
        a(f"v_pk_mov_b32 {v(ACC+2*i,2)}, 0, 0")
    for i in range(5):
        a(f"v_mov_b32 {v(V_XC0+i)}, {v(V_XA0+i)}")
    a(f"s_mov_b32 {s(S_IT)}, 0\ns_mov_b32 {s(S_SLOT)}, 0")
    a(f"v_mov_b32 {v(V_LW)}, {L_CNT}\nv_mov_b32 {v(V_FL+1)}, {L_CNT}\nv_mov_b32 {v(V_FC)}, 1\ns_lshl_b32 {s(S_T0)}, {s(S_WAVE)}, 2\ns_add_u32 {s(S_T0)}, {s(S_T0)}, {L_CNT + W_FREE}\nv_mov_b32 {v(V_FL+2)}, {s(S_T0)}")
    a.c("vcc != 0 marks a two-block tile")
    a(f"s_cmp_eq_u32 {s(S_NBLK)}, 2\ns_cselect_b64 vcc, -1, 0")
    if opt("SPF", 0):
        spf(a, R_K, S_XO, [r*F*2 + h*128 for r in range(7, 16) for h in range(2)])
    stamp(a, 1)
    a("s_waitcnt vmcnt(0)")
    a(f"ds_write_b32 {v(V_FL+2)}, {v(V_FC)} offset:{W_C0 - W_FREE}")
    lds_min_wait(a, V_LW, W_C0, 4, 1, 196)
    stamp(a, 2)
    for l in g1_reads(F0, 0, ['x', 0, 1, 2]):
        a(l)
    a("s_waitcnt lgkmcnt(0)")
    a("g1_loop:")
    a(f"s_add_u32 {s(S_SLOT)}, {s(S_SLOT)}, {SLOT}\ns_cmp_eq_u32 {s(S_SLOT)}, {NSLOT*SLOT}\ns_cselect_b32 {s(S_SLOT)}, 0, {s(S_SLOT)}")
    a(f"s_add_u32 {s(S_IT)}, {s(S_IT)}, 1\ns_and_b32 {s(S_T2)}, {s(S_IT)}, 7")
    g1_step_a(a)
    if ITST:
        it_issue(a)
        a("s_waitcnt lgkmcnt(0)")
        it_take(a, 0)
    g1_step_b(a)
    stamp(a, 3)


def wd_dma(i, rings=1):
    sl = SLOTMAP[i % NRW]
    ops = []
    n = 4 * rings
    for q in range(n):
        pre = f"s_lshl_b32 {s(S_T3)}, {s(S_DK)}, 15\ns_add_u32 {s(S_T3)}, {s(S_T3)}, {s(S_DO)}\n" if q == 0 else ""
        inc = 8192 if q != 4 else 2*NSTEP*32768 - 3*8192
        mid = "s_nop 0" if q == 0 else f"s_add_u32 {s(S_T3)}, {s(S_T3)}, {inc}"
        post = f"\ns_add_u32 {s(S_DK)}, {s(S_DK)}, 1\ns_cmp_eq_u32 {s(S_DK)}, 11\ns_cselect_b32 {s(S_DK)}, 0, {s(S_DK)}" if q == n - 1 else ""
        m0 = f"{s(S_RB if q >> 2 else S_RA)}, {sl*4096 + (q&3)*1024}" if sl < 2 else f"{s(S_KC)}, {(sl-2)*16384 + (q&3)*1024 + (q>>2)*8192}"
        ops.append(pre + f"s_add_u32 m0, {m0}\n{mid}\n"
                   f"buffer_load_dwordx4 {v(G_WD)}, {s(R_WD,4)}, {s(S_T3)} offen {CFD} lds" + post)
    return ops


def h_loads(i):
    hb = G_H + (i % NHB) * 16
    pre = (f"s_lshl_b32 {s(S_T1)}, {s(S_HK)}, 11\ns_add_u32 {s(S_T1)}, {s(S_T1)}, {s(S_HO)}\n"
           f"s_cmp_eq_u32 {s(S_HK)}, {s(S_KEND)}\ns_cselect_b32 {s(S_T1)}, {OOB:#x}, {s(S_T1)}\n")
    post = f"\ns_add_u32 {s(S_HK)}, {s(S_HK)}, 1\ns_cmp_eq_u32 {s(S_HK)}, 11\ns_cselect_b32 {s(S_HK)}, 0, {s(S_HK)}"
    ld = lambda r, off: f"buffer_load_dwordx4 {v(r,4)}, {v(G_L16)}, {s(R_WS,4)}, {s(S_T1)} offen offset:{off} sc1"
    return [pre + ld(hb, 0), ld(hb+4, 1024), f"s_add_u32 {s(S_T1)}, {s(S_T1)}, {NU*1024}\n" + ld(hb+8, 0), ld(hb+12, 1024) + post]


S_H0, S_H1 = S_XO, S_WO
E_A, E_ST = 208, 144


def ep_setup(a):
    a.c("epilogue addresses: row constants, column sums; HF offset = ((4*mi + 2*sh + pp)*86 + 2*fb0 + uu)*1024 + lane*16")
    a(f"v_and_b32 v10, 15, v0\nv_lshlrev_b32 v10, 4, v10\ns_lshl_b32 {s(S_T0)}, {s(S_SH)}, 10\ns_add_u32 {s(S_T0)}, {s(S_T0)}, {L_ST}\nv_add_u32 {v(E_A)}, {s(S_T0)}, v10")
    a(f"s_mul_i32 {s(S_T1)}, {s(S_UH)}, {s(S_NBLK)}\ns_lshl_b32 {s(S_T0)}, {s(S_T1)}, 6\ns_add_u32 {s(S_T0)}, {s(S_T0)}, {L_CS}")
    a(f"v_and_b32 v11, 48, v0\nv_add_u32 {v(E_A+1)}, {s(S_T0)}, v11")
    a(f"s_lshl_b32 {s(S_T0)}, {s(S_MI)}, 1\ns_add_u32 {s(S_T0)}, {s(S_T0)}, {s(S_SH)}\ns_mul_i32 {s(S_T0)}, {s(S_T0)}, {2*NU}")
    a(f"s_lshl_b32 {s(S_T2)}, {s(S_FB0)}, 1\ns_add_u32 {s(S_T0)}, {s(S_T0)}, {s(S_T2)}\ns_add_u32 {s(S_T0)}, {s(S_T0)}, {s(S_T1)}\ns_lshl_b32 {s(S_H0)}, {s(S_T0)}, 10")
    a(f"s_add_u32 {s(S_H1)}, {s(S_H0)}, {NU*1024}")
    a(f"s_lshl_b32 {s(S_T0)}, {s(S_SH)}, 2\ns_add_u32 {s(S_T0)}, {s(S_T0)}, {L_CNT}\nv_mov_b32 v15, {s(S_T0)}")


def g1_epilogue(a):
    VST, VCS, T = 112, 216, 168
    top, ok = a.label("ga"), a.label("ga_ok")
    a(f"{top}:")
    a(f"ds_read_b32 v14, {v(V_LW)} offset:{W_GATH}")
    for sb in range(4):
        a(f"ds_read_b128 {v(E_ST+4*sb,4)}, {v(E_A)} offset:{sb*256}")
    for u in range(3):
        for mat in range(2):
            a(f"ds_read_b128 {v(VCS+4*(u*2+mat),4)}, {v(E_A+1)} offset:{mat*512+u*64}")
    a(f"ds_read_b32 v1, {v(V_LW)} offset:{W_NON}")
    a(f"v_mov_b32 v13, 1\ns_waitcnt lgkmcnt(7)\nv_readfirstlane_b32 {s(S_T0)}, v14")
    for i in range(4):
        a(f"v_mov_b32 {v(VST+2*i)}, {v(E_ST+i)}\nv_mov_b32 {v(VST+2*i+1)}, {v(E_ST+i)}")
    a(f"s_cmp_ge_u32 {s(S_T0)}, 2\ns_cbranch_scc1 {ok}")
    a(f"s_add_u32 {s(S_SPIN)}, {s(S_SPIN)}, 1\ns_cmp_lt_u32 {s(S_SPIN)}, {LSPIN_MAX}\ns_cbranch_scc1 {top}")
    a(f"{ok}:")
    stamp(a, 4)
    for i in range(4, 16):
        a(f"v_mov_b32 {v(VST+2*i)}, {v(E_ST+i)}\nv_mov_b32 {v(VST+2*i+1)}, {v(E_ST+i)}")
    a("s_waitcnt lgkmcnt(0)")
    a(f"v_readfirstlane_b32 {s(S_NON)}, v1")
    lab, lab2 = a.label("ep_two"), a.label("ep_done")
    if opt("EPST", 0): stamp(a, 3)

    def group(u, pp):
        out = []
        o = T + 32 + 4 * pp
        pairs = [(2*pp + (q >> 1), q & 1, T + 8*q) for q in range(4)]
        def each(f):
            for sb, h, t in pairs:
                g, up, st = acc(u, 0, sb) + 2*h, acc(u, 1, sb) + 2*h, VST + 8*sb
                cg, cu = VCS + 4*(u*2) + 2*h, VCS + 4*(u*2+1) + 2*h
                out.append(f(g, up, st, cg, cu, t))
        each(lambda g, up, st, cg, cu, t: f"v_pk_fma_f32 {v(g,2)}, {v(cg,2)}, {v(st,2)}, {v(g,2)} neg_lo:[0,1,0] neg_hi:[0,1,0]")
        each(lambda g, up, st, cg, cu, t: f"v_pk_mul_f32 {v(t,2)}, {v(g,2)}, {v(g,2)}")
        each(lambda g, up, st, cg, cu, t: f"v_pk_fma_f32 {v(t,2)}, {v(t,2)}, {v(st+4,2)}, {v(st+2,2)}")
        each(lambda g, up, st, cg, cu, t: f"v_pk_mul_f32 {v(t,2)}, {v(t,2)}, {v(g,2)}")
        each(lambda g, up, st, cg, cu, t: f"v_exp_f32 {v(t)}, {v(t)}\nv_exp_f32 {v(t+1)}, {v(t+1)}")
        each(lambda g, up, st, cg, cu, t: f"v_pk_fma_f32 {v(up,2)}, {v(cu,2)}, {v(st,2)}, {v(up,2)} neg_lo:[0,1,0] neg_hi:[0,1,0]")
        each(lambda g, up, st, cg, cu, t: f"v_pk_fma_f32 {v(t,2)}, {v(t,2)}, {v(st+6,2)}, {v(st+6,2)}")
        each(lambda g, up, st, cg, cu, t: f"v_rcp_f32 {v(t)}, {v(t)}\nv_rcp_f32 {v(t+1)}, {v(t+1)}")
        each(lambda g, up, st, cg, cu, t: f"v_pk_mul_f32 {v(g,2)}, {v(g,2)}, {v(up,2)}")
        each(lambda g, up, st, cg, cu, t: f"v_pk_mul_f32 {v(t,2)}, {v(t,2)}, {v(g,2)}")
        for q, (sb, h, t) in enumerate(pairs):
            out.append(f"v_cvt_pk_bf16_f32 {v(o+q)}, {v(t)}, {v(t+1)}")
        if not opt("NOST", 0):
            out.append(f"buffer_store_dwordx4 {v(o,4)}, {v(G_L16)}, {s(R_WS,4)}, {s(S_H1 if pp else S_H0)} offen offset:{u*1024} {'sc1' if not opt('PLST', 0) else ''}")
        return out

    def stage_flag(n, W_WD=W_WD):
        ok = a.label("wd_ok")
        a(f"s_waitcnt lgkmcnt(0)\nv_readfirstlane_b32 {s(S_T0)}, v14\ns_nop 0\ns_cmp_ge_u32 {s(S_T0)}, {n}\ns_cbranch_scc1 {ok}")
        lds_min_wait(a, 15, W_WD, 1, n, 14)
        a(f"{ok}:")

    rd_flag = f"ds_read_b32 v14, v15 offset:{W_WD}"
    a.c("as a unit's accumulators retire they take two Wd steps; the freed ring slots are refilled")
    for l in group(0, 0) + [f"ds_read_b32 v14, v15 offset:{W_WE if WDE else W_WD}"] + group(0, 1):
        a(l)
    if opt("EPST", 0): stamp(a, 1)
    if not opt("NOTR", 0):
        stage_flag(1, W_WE if WDE else W_WD)
    if opt("EPST", 0): stamp(a, 2)
    for l in interleave(group(1, 0), [] if opt("NOTR", 0) else g2_tr(0) + g2_tr(1), 0, 2):
        a(l)
    a(rd_flag)
    for l in group(1, 1):
        a(l)
    a(f"s_cbranch_vccnz {lab}")
    for l in group(2, 0) + [rd_flag] + group(2, 1):
        a(l)
    a(f"{lab}:")
    a.c("release the conv waves")
    if not opt("CEARLY", 0):
        a("s_mov_b64 exec, 1\nds_add_u32 v12, v13\ns_mov_b64 exec, -1")
    stamp(a, 5)
    a.c("publish: F3[(2mi + sh)*32 + ni*2 + uh]")
    a(f"s_lshl_b32 {s(S_T0)}, {s(S_MI)}, 1\ns_add_u32 {s(S_T0)}, {s(S_T0)}, {s(S_SH)}\ns_lshl_b32 {s(S_T0)}, {s(S_T0)}, 4\ns_add_u32 {s(S_T0)}, {s(S_T0)}, {s(S_NI)}")
    a(f"s_lshl_b32 {s(S_T0)}, {s(S_T0)}, 1\ns_add_u32 {s(S_T0)}, {s(S_T0)}, {s(S_UH)}\ns_lshl_b32 {s(S_T0)}, {s(S_T0)}, 7\ns_add_u32 {s(S_T2)}, {s(S_T0)}, {WS_F3:#x}")
    a("s_waitcnt lgkmcnt(0)")
    for l in wd_dma(7) + wd_dma(8):
        a(l)
    a("s_waitcnt vmcnt(8)")
    flag_store(a, S_T2, 10, 11)
    stamp(a, 6)
    stage_flag(2)
    for l in g2_tr(2) + g2_tr(3):
        a(l)
    a("s_waitcnt lgkmcnt(0)")
    for l in wd_dma(9) + wd_dma(10):
        a(l)


def g2_tr(i):
    wf = G_WF + (i % NWF) * 16
    sl = SLOTMAP[i % NRW]
    base, off = (G_TR0, sl*4096) if sl < 2 else (G_TR5, 0) if sl == 6 else (G_TR, (sl-2)*16384)
    return [f"ds_read_b64_tr_b16 {v(wf+4*db+2*t,2)}, {v(base+db)} offset:{off + t*2048}" for db in range(4) for t in range(2)]


def g2_swaps(i, p):
    hb = G_H + (i % NHB) * 16
    return [f"v_swap_b32 {v(hb+8*p+2+k)}, {v(hb+8*p+4+k)}" for k in range(2)]


def g2_main(a):
    a(f"s_setprio {opt('PRG', 2)}")
    if opt("HT", 0):
        top, done = a.label("hp"), a.label("hp_ok")
        a(f"s_mov_b32 {s(S_SPIN)}, 0\ns_mov_b32 {s(S_EX)}, -1\ns_mov_b32 {s(S_EX+1)}, 0xfff")
        a(f"{top}:")
        a(f"buffer_load_dword v10, {v(G_FL)}, {s(R_WS,4)}, 0 offen sc1")
        a("s_waitcnt vmcnt(0)")
        a(f"v_cmp_ne_u32 vcc, {s(S_NON)}, v10")
        a(f"s_cbranch_vccz {done}")
        a(f"s_andn2_b64 exec, {s(S_EX,2)}, vcc\ns_and_b64 {s(S_EX,2)}, {s(S_EX,2)}, vcc")
        skip = a.label("hp_s")
        a(f"s_cbranch_execz {skip}")
        a(f"buffer_load_dword v11, {v(G_HT)}, {s(R_WS,4)}, {s(S_HO)} offen sc1")
        a(f"{skip}:")
        a("s_mov_b64 exec, -1\ns_sleep 1")
        a(f"s_add_u32 {s(S_SPIN)}, {s(S_SPIN)}, 1\ns_cmp_lt_u32 {s(S_SPIN)}, {SPIN_MAX}\ns_cbranch_scc1 {top}")
        a(f"{done}:")
    else:
        poll(a, G_FL, 10)
    stamp(a, 7)
    q = VQ(a)
    def hq(i):
        q.add(("h", i, 0), 2); q.add(("h", i, 1), 2)
    for i in range(NHB - 1):
        for op in h_loads(i):
            a(op)
        hq(i)
    lds_min_wait(a, 15, W_WD, 1, 3, 14)
    if opt("G2ST", 0): stamp(a, 1)
    q.wait(("h", 0, 0))
    if opt("G2ST", 0): stamp(a, 2)
    for l in g2_swaps(0, 0):
        a(l)
    a("s_nop 1")
    for i in range(NSTEP):
        if opt("G2ST", 0) and i in (2, 4, 6, 8):
            stamp(a, 2 + i // 2)
        if i == opt("HIS", 5):
            lds_inc(a, V_LW, 13, W_HI)
        wf, hb = G_WF + (i % NWF) * 16, G_H + (i % NHB) * 16
        ld = h_loads(i + NHB - 1) if i + NHB - 1 < NSTEP else []
        tr = g2_tr(i + 2) if NWF <= i + 2 < NSTEP else []
        n = 0
        for p in range(2):
            for db in range(4):
                for sb in (2*p, 2*p + 1):
                    c = G_ACC + (db * 4 + sb) * 4
                    a(f"v_mfma_f32_16x16x32_bf16 {v(c,4)}, {v(wf+4*db,4)}, {v(hb+4*sb,4)}, {v(c,4) if i else 0}")
                    n += 1
                    if n == 4:
                        q.wait(("h", i, 1))
                        for l in g2_swaps(i, 1):
                            a(l)
                    if n in (1, 5, 8, 11) and ld:
                        a(ld.pop(0))
                        q.add(("h", i + NHB - 1, 0 if len(ld) >= 2 else 1), 1)
                    if 5 <= n <= 12 and tr:
                        a(tr.pop(0))
                    if n == 13 and i + 1 < NSTEP:
                        q.wait(("h", i + 1, 0))
                        for l in g2_swaps(i + 1, 0):
                            a(l)
                        if i + 1 >= NWF:
                            a(f"s_waitcnt lgkmcnt({8 if i + 2 < NSTEP else 0})")
    stamp(a, 8)
    a.c("partial tile -> own ring slots 1..4: sb*16384 + w*4096 + s16*256 + ((4db + g) ^ (s16&7))*16")
    a(f"v_and_b32 v8, 15, v0\nv_lshrrev_b32 v9, 4, v0\nv_and_b32 v10, 7, v0\nv_xor_b32 v9, v9, v10\nv_lshlrev_b32 v9, 4, v9\nv_lshl_add_u32 v8, v8, 8, v9\nv_add_u32 v8, {s(S_KC)}, v8\nv_xor_b32 v9, 64, v8")
    a("s_nop 0")
    for db in range(4):
        for sb in range(4):
            a(f"ds_write_b128 {'v9' if db & 1 else 'v8'}, {v(G_ACC+(db*4+sb)*4,4)} offset:{sb*16384 + (db>>1)*128}")
    a("s_waitcnt lgkmcnt(0)")
    stamp(a, 9)
    a("s_barrier")


VB_X2 = 18


def dma_chunk(a):
    a(f"s_add_u32 {s(S_T1)}, {s(S_UH)}, {s(S_IT)}\ns_and_b32 {s(S_T1)}, {s(S_T1)}, 7")
    a(f"s_lshl_b32 {s(S_T0)}, {s(S_T1)}, 7\ns_add_u32 {s(S_T0)}, {s(S_T0)}, {s(S_XO)}")
    a(f"s_mul_i32 {s(S_T1)}, {s(S_T1)}, {64*F*2}\ns_add_u32 {s(S_HO)}, {s(S_WO)}, {s(S_T1)}\ns_add_u32 {s(S_DO)}, {s(S_WO2)}, {s(S_T1)}")
    for i in range(16):
        a(f"s_add_u32 m0, {s(S_SLOT)}, {i*1024}")
        a(f"s_add_u32 {s(S_T0)}, {s(S_T0)}, 8192" if i else "s_nop 0")
        a(f"buffer_load_dwordx4 {v(VB_X2 if i & 1 else VB_X)}, {s(R_X,4)}, {s(S_T0)} offen {CFX} lds")
    for k4 in range(4):
        if ITST and k4 == 0:
            it_issue(a)
            a("s_waitcnt lgkmcnt(0)")
            it_take(a, 40)
        if k4:
            a(f"s_add_u32 {s(S_HO)}, {s(S_HO)}, {16*F*2}\ns_add_u32 {s(S_DO)}, {s(S_DO)}, {16*F*2}")
        for blk in range(3):
            for mat in range(2):
                a(f"s_add_u32 m0, {s(S_SLOT)}, {16384 + (mat*3+blk)*4096 + k4*1024 - 64*blk}")
                a("s_nop 0")
                a(f"buffer_load_dwordx4 {v(VB_W)}, {s(R_WU if mat else R_WG,4)}, {s(S_DO if blk == 2 else S_HO)} offen offset:{64*blk} {CFW} lds")


GG = 224


def loader(a):
    a(f"s_setprio {opt('PRL', 2)}")
    a.c("loader w streams chunks 1+w, 3+w, ..")
    a(f"s_lshl_b32 {s(S_XO)}, {s(S_MI)}, 17\ns_lshl_b32 {s(S_WO)}, {s(S_FB0)}, 6")
    a(f"s_cmp_eq_u32 {s(S_NBLK)}, 3\ns_cselect_b32 {s(S_WO2)}, {s(S_WO)}, {OOB:#x}")
    a(f"s_lshl_b32 {s(S_T0)}, {s(S_WB)}, 6\nv_xor_b32 {v(VB_X)}, {s(S_T0)}, {v(VB_X)}\nv_xor_b32 {v(VB_X2)}, 64, {v(VB_X)}")
    a(f"s_add_u32 {s(S_IT)}, {s(S_WB)}, 1\ns_mul_i32 {s(S_SLOT)}, {s(S_IT)}, {SLOT}\ns_mov_b32 {s(S_SH)}, {s(S_WB)}")
    a(f"s_lshl_b32 {s(S_T0)}, {s(S_WB)}, 2\ns_add_u32 {s(S_T0)}, {s(S_T0)}, {L_CNT + W_FULL}\nv_mov_b32 v10, {s(S_T0)}")
    lds_min_wait(a, C_CNT, W_ISS, 1, s(S_WB), 20)
    a("ld_loop:")
    if ITST:
        it_issue(a)
        a("s_waitcnt lgkmcnt(0)")
        it_take(a, 32)
    dma_chunk(a)
    a(f"v_mov_b32 v16, {s(S_IT)}")
    a(f"s_mov_b64 exec, 1\nds_max_u32 {v(C_CNT)}, v16 offset:{W_ISS}\ns_mov_b64 exec, -1")
    if ITST:
        it_issue(a)
        a("s_waitcnt lgkmcnt(0)")
        it_take(a, 0)
    a(f"s_sub_u32 {s(S_SLOT)}, {s(S_SLOT)}, {SLOT}\ns_cselect_b32 {s(S_SLOT)}, {2*SLOT}, {s(S_SLOT)}")
    a(f"s_cmp_ge_u32 {s(S_IT)}, 6\ns_cbranch_scc1 ld_done")
    a("s_waitcnt vmcnt(0)")
    a("ds_write_b32 v10, v16")
    if ITST:
        it_issue(a)
        a("s_waitcnt lgkmcnt(0)")
        it_take(a, 16)
    lds_min_wait(a, C_CNT, W_FREE, 4, s(S_IT), 20)
    if ITST:
        it_issue(a)
        a("s_waitcnt lgkmcnt(0)")
        it_take(a, 48)
    a(f"s_add_u32 {s(S_IT)}, {s(S_IT)}, 2")
    a("s_branch ld_loop")
    a("ld_done:")
    lstamp(a, 1)
    wd_setup(a, 2 if WDE else 0)
    a(f"s_lshl_b32 {s(S_T0)}, {s(S_WB)}, 2\nv_add_u32 v11, {s(S_T0)}, {v(C_CNT)}\nv_mov_b32 v17, 2")
    a("s_waitcnt vmcnt(0)")
    a("ds_write_b32 v10, v16")
    if KVL:
        return loader_late(a)
    lds_min_wait(a, C_CNT, W_ISS, 1, 7, 20)
    lds_min_wait(a, C_CNT, W_HP, 1, 2, 20)
    if not WDE:
        for op in wd_dma(0, 2) + wd_dma(1, 2):
            a(op)
    lstamp(a, 2)
    lds_min_wait(a, C_CNT, W_FREE, 4, 7, 20)
    for i in (2, 3):
        for op in wd_dma(i, 2):
            a(op)
    a("s_waitcnt vmcnt(16)")
    a(f"ds_write_b32 v11, {v(C_ONE)} offset:{W_WD}")
    lstamp(a, 3)
    lds_min_wait(a, C_CNT, W_FREE, 4, 8, 20)
    TH = opt("WDTH", 8)
    n = 0
    for i in (4, 5, 6):
        for op in wd_dma(i, 2):
            if not opt("NOWD", 0):
                a(op)
            n += 1
            if n % 4 == 0 and (TH or n == 8):
                a(f"s_waitcnt vmcnt({min(TH, n) if TH else 8})")
            if n == 8:
                a(f"ds_write_b32 v11, v17 offset:{W_WD}")
    a(f"ds_read_b32 v1, {v(C_CNT)} offset:{W_NON}")
    final_loads(a)
    a("s_waitcnt lgkmcnt(0)")
    a(f"v_readfirstlane_b32 {s(S_NON)}, v1")


def loader_late(a):
    lds_min_wait(a, C_CNT, W_FREE, 4, 7, 20)
    for op in wd_dma(0, 2) + wd_dma(1, 2):
        a(op)
    lstamp(a, 2)
    lds_min_wait(a, C_CNT, W_FREE, 4, 8, 20)
    for op in wd_dma(2, 2):
        a(op)
    a("s_waitcnt vmcnt(8)")
    a(f"ds_write_b32 v11, {v(C_ONE)} offset:{W_WD}")
    for op in wd_dma(3, 2) + wd_dma(4, 2):
        a(op)
    a("s_waitcnt vmcnt(8)")
    a(f"ds_write_b32 v11, v17 offset:{W_WD}")
    lstamp(a, 3)
    lds_min_wait(a, C_CNT, W_HP, 1, 2, 20)
    for op in wd_dma(5, 2) + wd_dma(6, 2):
        a(op)
    a(f"ds_read_b32 v1, {v(C_CNT)} offset:{W_NON}")
    final_loads(a)
    a("v_mov_b32 v17, 3\ns_waitcnt vmcnt(2) lgkmcnt(0)")
    a(f"ds_write_b32 v11, v17 offset:{W_WD}")
    a(f"v_readfirstlane_b32 {s(S_NON)}, v1")


VS, VKV, VSK = 144, 24, 64
ONE = 192


def round_bf16(a, r):
    a(f"v_cvt_pk_bf16_f32 {v(r)}, {v(r)}, {v(r)}\nv_lshlrev_b32 {v(r)}, 16, {v(r)}")


def stats_loads(a):
    a(f"s_lshl_b32 {s(S_T0)}, {s(S_TI)}, 1\ns_add_u32 {s(S_T0)}, {s(S_T0)}, {s(S_SH)}\ns_lshl_b32 {s(S_T0)}, {s(S_T0)}, 12")
    a("v_bfe_u32 v5, v0, 2, 2\nv_lshlrev_b32 v5, 10, v5\nv_and_b32 v6, 3, v0\nv_lshl_add_u32 v5, v6, 4, v5\nv_lshrrev_b32 v6, 4, v0\nv_lshl_add_u32 v5, v6, 6, v5")
    for r in range(4):
        a(f"buffer_load_dwordx4 {v(VS+4*r,4)}, v5, {s(R_X,4)}, {s(S_T0)} offen offset:{r*256} {CFS}")


def stats(a):
    G, O, R = 72, 76, 80
    for r in range(4):
        a(f"v_mfma_f32_16x16x32_bf16 {v(G,4)}, {v(VS+4*r,4)}, {v(VS+4*r,4)}, {v(G,4) if r else 0}")
        a(f"v_mfma_f32_16x16x32_bf16 {v(O,4)}, {v(ONE,4)}, {v(VS+4*r,4)}, {v(O,4) if r else 0}")
    a.c("diagonal element of lane (n, g = n>>2) is register n&3")
    a(f"v_and_b32 v6, 3, v0\nv_cmp_eq_u32 vcc, 1, v6\nv_cmp_eq_u32 {s(S_EX,2)}, 2, v6\nv_cmp_eq_u32 {s(S_XO,2)}, 3, v6")
    a(f"s_lshl_b32 {s(S_T0)}, {s(S_TI)}, 1\ns_add_u32 {s(S_T0)}, {s(S_T0)}, {s(S_SH)}\ns_lshl_b32 {s(S_T0)}, {s(S_T0)}, 6\ns_add_u32 {s(S_T0)}, {s(S_T0)}, {WS_ST:#x}")
    a("v_and_b32 v5, 48, v0\ns_nop 0")
    a(f"v_cndmask_b32 {v(G)}, {v(G)}, {v(G+1)}, vcc\nv_cndmask_b32 {v(G)}, {v(G)}, {v(G+2)}, {s(S_EX,2)}\nv_cndmask_b32 {v(G)}, {v(G)}, {v(G+3)}, {s(S_XO,2)}")
    for qp in ("[1,0,3,2]", "[2,3,0,1]"):
        a("s_nop 0")
        a(f"v_add_f32_dpp {v(O)}, {v(O)}, {v(O)} quad_perm:{qp} row_mask:0xf bank_mask:0xf")
        a(f"v_add_f32_dpp {v(G)}, {v(G)}, {v(G)} quad_perm:{qp} row_mask:0xf bank_mask:0xf")
    M, K1, K2, I2 = R, R + 1, R + 2, R + 3
    a(f"v_mul_f32 {v(M)}, {f32bits(1/512):#x}, {v(O)}\nv_mul_f32 {v(K2)}, {f32bits(1/512):#x}, {v(G)}")
    a(f"v_fma_f32 {v(K2)}, -{v(M)}, {v(M)}, {v(K2)}\nv_max_f32 {v(K2)}, 0, {v(K2)}")
    round_bf16(a, M)
    round_bf16(a, K2)
    a(f"v_add_f32 {v(K2)}, {f32bits(1e-5):#x}, {v(K2)}")
    round_bf16(a, K2)
    a(f"v_sqrt_f32 {v(K2)}, {v(K2)}\ns_nop 0")
    round_bf16(a, K2)
    a(f"v_rcp_f32 {v(K1)}, {v(K2)}\nv_mul_f32 {v(I2)}, {v(K2)}, {v(K2)}")
    a(f"v_mul_f32 {v(K2)}, {v(K1)}, {v(K1)}\nv_mul_f32 {v(K2)}, {v(K2)}, {v(K1)}")
    a(f"v_mul_f32 {v(K2)}, {f32bits(C2):#x}, {v(K2)}\nv_mul_f32 {v(K1)}, {f32bits(C1):#x}, {v(K1)}")
    a.c("row g is complete in lane 20g")
    a(f"s_mov_b32 {s(S_EX)}, 0x00100001\ns_mov_b32 {s(S_EX+1)}, 0x10000100\ns_mov_b64 exec, {s(S_EX,2)}")
    a(f"buffer_store_dwordx4 {v(R,4)}, v5, {s(R_WS,4)}, {s(S_T0)} offen sc1")
    a("s_mov_b64 exec, -1")


L_VST = 155648
NT = os.environ.get("CFK", "nt") + " " if opt("NT", 1) else ""
NTT = " nt" if opt("NTT", 0) else ""


def kv_dma(a):
    a("v_lshrrev_b32 v5, 3, v0\nv_lshlrev_b32 v5, 10, v5\nv_and_b32 v6, 7, v0\nv_lshl_add_u32 v5, v6, 4, v5")
    a(f"v_add_u32 v69, {s(S_DO)}, v5")
    a.c("rows above the start of the sequence are out of range and read as zero")
    a("v_subrev_u32 v7, 0xc00, v69\nv_cmp_gt_u32 vcc, 0xc00, v69\nv_mov_b32 v68, 0x7ff00000\ns_nop 1\nv_cndmask_b32 v7, v7, v68, vcc")
    a(f"s_mul_i32 {s(S_T0)}, {s(S_SH)}, {64*KVT_STR}\ns_add_u32 {s(S_T0)}, {s(S_T0)}, {L_KVT}")
    a(f"s_lshl_b32 {s(S_T2)}, {s(S_SH)}, 12\ns_add_u32 {s(S_T2)}, {s(S_T2)}, {L_VST}")
    for i in range(5):
        a(f"s_add_u32 m0, {s(S_T0)}, {1024*i}\ns_mov_b32 {s(S_T1)}, {max(8192*i - 3072, 0)}")
        a(f"buffer_load_dwordx4 {'v69' if i else 'v7'}, {s(R_K,4)}, {s(S_T1)} offen {NT}lds")
    for i in range(4):
        a(f"s_add_u32 m0, {s(S_T2)}, {1024*i}\ns_mov_b32 {s(S_T1)}, {8192*i}")
        a(f"buffer_load_dwordx4 v69, {s(R_V,4)}, {s(S_T1)} offen {NT}lds")
    a("v_and_b32 v6, 31, v0\nv_lshrrev_b32 v5, 5, v0\nv_lshlrev_b32 v5, 10, v5\nv_lshl_add_u32 v5, v6, 2, v5")
    a(f"v_add_u32 v68, {s(S_T0)}, v5\nv_add_u32 v69, {s(S_T2)}, v5")
    a(f"s_and_b32 {s(S_T1)}, {s(S_TI)}, 7\ns_lshl_b32 {s(S_T1)}, {s(S_T1)}, 9\nv_lshlrev_b32 v6, 4, v6")
    a(f"buffer_load_dwordx4 {v(VSK,4)}, v6, {s(R_SK,4)}, {s(S_T1)} offen")


def kv_reads(a):
    for ps in range(2):
        b = VKV + 19 * ps
        for i in range(11):
            a(f"ds_read_b32 {v(b+i)}, v68 offset:{ps*2048 + i*128}")
        for i in range(8):
            a(f"ds_read_b32 {v(b+11+i)}, v69 offset:{ps*2048 + i*128}")


def touch_x(a, p, vd):
    a(f"s_lshl_b32 {s(S_T0)}, {s(S_MI)}, 2\ns_and_b32 {s(S_T1)}, {s(S_NI)}, 3\ns_add_u32 {s(S_T0)}, {s(S_T0)}, {s(S_T1)}\ns_lshl_b32 {s(S_T0)}, {s(S_T0)}, 15")
    a("v_and_b32 v5, 31, v0\nv_lshrrev_b32 v6, 5, v0\nv_lshlrev_b32 v6, 7, v6\nv_lshl_add_u32 v5, v5, 10, v6")
    for q in p:
        a(f"buffer_load_dword {v(vd)}, v5, {s(R_X,4)}, {s(S_T0)} offen offset:{128*q}{NTT}")


def touch_w(a, p, srds, vd):
    a(f"s_and_b32 {s(S_T0)}, {s(S_MI)}, 7\ns_add_u32 {s(S_T0)}, {s(S_T0)}, {8*p}\ns_mul_i32 {s(S_T0)}, {s(S_T0)}, {8*F*2}\ns_lshl_b32 {s(S_T1)}, {s(S_FB0)}, 6\ns_add_u32 {s(S_T0)}, {s(S_T0)}, {s(S_T1)}")
    a(f"s_add_u32 {s(S_T1)}, {s(S_NBLK)}, 4")
    a(f"v_lshrrev_b32 v5, 4, v0\nv_bfe_u32 v6, v0, 1, 3\nv_lshl_add_u32 v5, v5, 6, v6\nv_mul_u32_u24 v5, {F*2}, v5\nv_and_b32 v6, 1, v0\nv_lshl_add_u32 v5, v6, {s(S_T1)}, v5")
    for r in srds:
        a(f"buffer_load_dword {v(vd)}, v5, {s(r,4)}, {s(S_T0)} offen{NTT}")
        if opt("TOUCH", 0) == 2:
            a(f"s_add_u32 {s(S_T0)}, {s(S_T0)}, {256*F*2}")
            a(f"buffer_load_dword {v(vd)}, v5, {s(r,4)}, {s(S_T0)} offen{NTT}")


KU, VU, KW, KO, KT = 72, 94, 110, 120, 128


def kv_taps(a):
    for j in range(4):
        for ch in range(2):
            src = VSK + 2*ch + (j >> 1)
            a(f"v_and_b32 {v(KW+2*j+ch)}, {s(S_C)}, {v(src)}" if j & 1 else f"v_lshlrev_b32 {v(KW+2*j+ch)}, 16, {v(src)}")
    a.c("KVT row = 2*(l&31) + ch, 16-B piece = 3 - (2*pass + l>>5)")
    a(f"v_and_b32 v70, 31, v0\nv_mul_u32_u24 v70, {2*KVT_STR}, v70\nv_lshrrev_b32 v5, 5, v0\nv_lshlrev_b32 v5, 4, v5\nv_sub_u32 v70, v70, v5")
    a(f"s_mul_i32 {s(S_T0)}, {s(S_SH)}, {64*KVT_STR}\ns_add_u32 {s(S_T0)}, {s(S_T0)}, {L_KVT + 16}\nv_add_u32 v70, {s(S_T0)}, v70")


def kv_compute(ps):
    b = VKV + 19 * ps
    o = []
    for i in range(11):
        o += [f"v_lshlrev_b32 {v(KU+2*i)}, 16, {v(b+i)}", f"v_and_b32 {v(KU+2*i+1)}, {s(S_C)}, {v(b+i)}"]
    for e in range(16):
        o.append(f"v_mul_f32 {v(KT+e)}, {v(KU+e)}, {v(KW+6+(e&1))}")
    for j in (2, 1, 0):
        for e in range(16):
            o.append(f"v_fmac_f32 {v(KT+e)}, {v(KU+e+2*(3-j))}, {v(KW+2*j+(e&1))}")
    for i in range(8):
        o += [f"v_lshlrev_b32 {v(VU+2*i)}, 16, {v(b+11+i)}", f"v_and_b32 {v(VU+2*i+1)}, {s(S_C)}, {v(b+11+i)}"]
    for e in range(16):
        o.append(f"v_mul_f32 {v(KT+e)}, {v(KT+e)}, {v(VU+e)}")
    for ch in range(2):
        for i in range(4):
            o.append(f"v_cvt_pk_bf16_f32 {v(KO+4*ch+i)}, {v(KT+2*(7-2*i)+ch)}, {v(KT+2*(6-2*i)+ch)}")
    o += [f"ds_write_b128 v70, {v(KO,4)} offset:{32*(1-ps)}", f"ds_write_b128 v70, {v(KO+4,4)} offset:{32*(1-ps) + KVT_STR}"]
    return o


def kv_store(a):
    a(f"v_lshrrev_b32 v5, 2, v0\nv_and_b32 v6, 3, v0\nv_lshlrev_b32 v6, 4, v6\nv_mul_u32_u24 v7, {KVT_STR}, v5\nv_add_u32 v7, v7, v6")
    a(f"s_mul_i32 {s(S_T0)}, {s(S_SH)}, {64*KVT_STR}\ns_add_u32 {s(S_T0)}, {s(S_T0)}, {L_KVT}\nv_add_u32 v7, {s(S_T0)}, v7")
    a("s_waitcnt lgkmcnt(0)")
    for i in range(4):
        a(f"ds_read_b128 {v(24+4*i,4)}, v7 offset:{16*i*KVT_STR}")
    a("v_lshl_add_u32 v5, v5, 12, v6")
    a(f"s_and_b32 {s(S_T0)}, {s(S_TI)}, 7\ns_lshl_b32 {s(S_T0)}, {s(S_T0)}, 18")
    a(f"s_lshr_b32 {s(S_T1)}, {s(S_TI)}, 3\ns_lshl_b32 {s(S_T1)}, {s(S_T1)}, 1\ns_add_u32 {s(S_T1)}, {s(S_T1)}, {s(S_SH)}\ns_lshl_b32 {s(S_T1)}, {s(S_T1)}, 6")
    a(f"s_sub_u32 {s(S_T0)}, {s(S_T0)}, {s(S_T1)}\ns_add_u32 {s(S_T0)}, {s(S_T0)}, {WS_KVR + 4096 - 64:#x}")
    for i in range(4):
        a(f"s_waitcnt lgkmcnt({3-i})")
        a(f"buffer_store_dwordx4 {v(24+4*i,4)}, v5, {s(R_WS,4)}, {s(S_T0)} offen sc1")
        a(f"s_add_u32 {s(S_T0)}, {s(S_T0)}, 65536")


def cs_loads(a):
    a(f"s_mul_i32 {s(S_T0)}, {s(S_MI)}, {32*F*2}\ns_lshl_b32 {s(S_T1)}, {s(S_FB0)}, 6\ns_add_u32 {s(S_T0)}, {s(S_T0)}, {s(S_T1)}\ns_add_u32 {s(S_T1)}, {s(S_T0)}, {16*F*2}")
    a(f"s_mul_i32 {s(S_M0)}, {s(S_SH)}, 6144\ns_add_u32 {s(S_M0)}, {s(S_M0)}, {L_CSS}")
    l1, l2 = a.label("cs"), a.label("cs")
    a(f"s_cmp_lg_u32 {s(S_SH)}, 0\ns_cbranch_scc1 {l1}")
    for r in (R_WG, R_WU):
        for blk in range(3):
            for k2 in range(2):
                a(f"s_add_u32 m0, {s(S_M0)}, {blk*2048 + k2*1024 - 64*blk}\ns_nop 0")
                a(f"buffer_load_dwordx4 {v(VB_W)}, {s(r,4)}, {s(S_T1 if k2 else S_T0)} offen offset:{64*blk} {CFS} lds")
        a(f"s_branch {l2}\n{l1}:" if r == R_WG else f"{l2}:")


def colsum(a):
    W, O = 144, 168
    a("v_lshrrev_b32 v5, 4, v0\nv_lshlrev_b32 v6, 9, v5\nv_bfe_u32 v7, v0, 2, 2\nv_lshl_add_u32 v6, v7, 6, v6\nv_and_b32 v7, 3, v0\nv_lshl_add_u32 v6, v7, 3, v6")
    a(f"v_and_b32 v7, 1, v5\nv_lshl_add_u32 v6, v7, 5, v6\nv_add_u32 v6, {s(S_M0)}, v6\nv_xor_b32 v7, 32, v6")
    for u in range(6):
        for tt in range(2):
            a(f"ds_read_b64_tr_b16 {v(W+4*u+2*tt,2)}, {'v7' if u & 1 else 'v6'} offset:{(u>>1)*2048 + tt*256}")
    a.c("CSP offset = ((ni*2 + hw)*16 + mi)*384 + u*64 + g*16")
    a(f"s_lshl_b32 {s(S_T0)}, {s(S_NI)}, 1\ns_add_u32 {s(S_T0)}, {s(S_T0)}, {s(S_SH)}\ns_lshl_b32 {s(S_T0)}, {s(S_T0)}, 4\ns_add_u32 {s(S_T0)}, {s(S_T0)}, {s(S_MI)}")
    a(f"s_mul_i32 {s(S_T0)}, {s(S_T0)}, 384\ns_add_u32 {s(S_T0)}, {s(S_T0)}, {WS_CSP:#x}")
    a("v_and_b32 v5, 48, v0")
    a("s_waitcnt lgkmcnt(0)")
    for u in range(6):
        a(f"v_mfma_f32_16x16x32_bf16 {v(O+4*u,4)}, {v(W+4*u,4)}, {v(ONE,4)}, 0")
    a(f"s_mov_b32 {s(S_EX)}, 0x00010001\ns_mov_b32 {s(S_EX+1)}, 0x00010001\ns_nop 5\ns_mov_b64 exec, {s(S_EX,2)}")
    for u in range(6):
        a(f"buffer_store_dwordx4 {v(O+4*u,4)}, v5, {s(R_WS,4)}, {s(S_T0)} offen offset:{u*64} sc1")
    a("s_mov_b64 exec, -1")


def hflag(a, base):
    a(f"s_lshl_b32 {s(S_T0)}, {s(S_TI)}, 7\ns_lshl_b32 {s(S_T1)}, {s(S_SH)}, 2\ns_add_u32 {s(S_T0)}, {s(S_T0)}, {s(S_T1)}\ns_add_u32 {s(S_T0)}, {s(S_T0)}, {base:#x}")
    flag_store(a, S_T0, 196, 197)


CG = 144


def cs_gather_issue(a):
    a(f"s_lshl_b32 {s(S_T0)}, {s(S_NI)}, 1\ns_add_u32 {s(S_T0)}, {s(S_T0)}, {s(S_SH)}\ns_mul_i32 {s(S_T0)}, {s(S_T0)}, 6144\ns_add_u32 {s(S_T0)}, {s(S_T0)}, {WS_CSP:#x}")
    a("v_and_b32 v5, 31, v0\nv_lshlrev_b32 v5, 4, v5\nv_lshrrev_b32 v6, 5, v0\nv_mul_u32_u24 v6, 3072, v6\nv_add_u32 v6, v5, v6")
    for i in range(8):
        a(f"buffer_load_dwordx4 {v(CG+4*i,4)}, v6, {s(R_WS,4)}, {s(S_T0)} offen offset:{i*384} sc1")


def cs_gather_finish(a):
    n = 8
    while n > 1:
        n //= 2
        for i in range(4 * n):
            a(f"v_add_f32 {v(CG+i)}, {v(CG+i)}, {v(CG+4*n+i)}")
    for i in range(4):
        a(f"v_mov_b32 {v(CG+4+i)}, {v(CG+i)}")
    a(f"s_lshl_b32 {s(S_T0)}, {s(S_SH)}, 9\ns_add_u32 {s(S_T0)}, {s(S_T0)}, {L_CS}\nv_and_b32 v8, 31, v0\nv_lshlrev_b32 v8, 4, v8\nv_add_u32 v8, {s(S_T0)}, v8")
    for i in range(4):
        a(f"v_permlane32_swap_b32 {v(CG+i)}, {v(CG+4+i)}")
    a("s_nop 0")
    for i in range(4):
        a(f"v_add_f32 {v(CG+i)}, {v(CG+i)}, {v(CG+4+i)}")
    a(f"ds_write_b128 v8, {v(CG,4)}")


def helper(a):
    q = VQ(a)
    a(f"s_sub_u32 {s(S_SH)}, {s(S_WB)}, 2")
    a(f"s_lshl_b32 {s(S_HO)}, {s(S_TI)}, 1\ns_add_u32 {s(S_HO)}, {s(S_HO)}, {s(S_SH)}\ns_lshl_b32 {s(S_HO)}, {s(S_HO)}, 12")
    a.c("k/v tile base: rows 32*(2*(ti>>3) + hw).., channels 64*(ti&7)")
    a(f"s_lshr_b32 {s(S_T0)}, {s(S_TI)}, 3\ns_lshl_b32 {s(S_T0)}, {s(S_T0)}, 1\ns_add_u32 {s(S_T0)}, {s(S_T0)}, {s(S_SH)}\ns_lshl_b32 {s(S_T0)}, {s(S_T0)}, 15")
    a(f"s_and_b32 {s(S_T1)}, {s(S_TI)}, 7\ns_lshl_b32 {s(S_T2)}, {s(S_T1)}, 7\ns_add_u32 {s(S_DO)}, {s(S_T0)}, {s(S_T2)}")
    a(f"s_mul_i32 {s(S_KC)}, {s(S_TI)}, {43*128}\ns_mul_i32 {s(S_T1)}, {s(S_SH)}, {22*128}\ns_add_u32 {s(S_KC)}, {s(S_KC)}, {s(S_T1)}")
    def sc():
        stats_loads(a); q.add("s", 4)
        cs_loads(a); q.add("csd", 6)
    SKV = opt("SKV", 0)
    KVAT = opt("KVAT", 0) or SKV or KVL
    def wdt():
        if not opt("WDT", 1):
            return
        a.c("first touch of Wd lines 43*ti + 22*hw + lane")
        a("v_lshlrev_b32 v11, 7, v0\ns_mov_b64 exec, 0x3fffff")
        a(f"buffer_load_dword v71, v11, {s(R_WD,4)}, {s(S_KC)} offen"); q.add("wd", 1)
        a("s_mov_b64 exec, -1")
    def cold():
        kv_dma(a); q.add("kv", 10)
        if not SKV and not PT and not opt("HW7", 0) and not KVL:
            wdt()
        if SKV != 1 and not opt("HW7", 0):
            conv_h_loads(a); q.add("h", 4)
    PT = opt("PT", 0)
    def ptouch():
        l1, l2 = a.label("pt"), a.label("pt")
        a(f"s_and_b32 {s(S_T0)}, {s(S_NI)}, 3\ns_cmp_lg_u32 {s(S_T0)}, 3\ns_cbranch_scc1 {l2}")
        a("v_lshrrev_b32 v5, 2, v0\nv_and_b32 v6, 3, v0\nv_lshlrev_b32 v6, 7, v6\nv_lshl_add_u32 v5, v5, 10, v6\nv_lshlrev_b32 v6, 7, v0")
        a(f"s_lshr_b32 {s(S_T0)}, {s(S_TI)}, 3\ns_lshl_b32 {s(S_T0)}, {s(S_T0)}, 16\ns_and_b32 {s(S_T1)}, {s(S_TI)}, 4\ns_lshl_b32 {s(S_T1)}, {s(S_T1)}, 7\ns_add_u32 {s(S_T0)}, {s(S_T0)}, {s(S_T1)}")
        a(f"s_cmp_lg_u32 {s(S_SH)}, 0\ns_cbranch_scc1 {l1}")
        for i in range(4):
            a(f"buffer_load_dword v71, v5, {s(R_K,4)}, {s(S_T0)} offen\ns_add_u32 {s(S_T0)}, {s(S_T0)}, 16384")
        a(f"s_sub_i32 {s(S_T0)}, {s(S_T0)}, {65536 + 3072}\ns_max_i32 {s(S_T0)}, {s(S_T0)}, 0\ns_mov_b64 exec, 0xfff")
        a(f"buffer_load_dword v71, v5, {s(R_K,4)}, {s(S_T0)} offen\ns_mov_b64 exec, -1")
        a(f"s_lshr_b32 {s(S_T0)}, {s(S_TI)}, 2\ns_mul_i32 {s(S_T0)}, {s(S_T0)}, {172*128}")
        for i in range(3):
            a(f"buffer_load_dword v71, v6, {s(R_WD,4)}, {s(S_T0)} offen\ns_add_u32 {s(S_T0)}, {s(S_T0)}, {8192 if i == 0 else 44*128}")
        a(f"s_branch {l2}\n{l1}:")
        for i in range(4):
            a(f"buffer_load_dword v71, v5, {s(R_V,4)}, {s(S_T0)} offen\ns_add_u32 {s(S_T0)}, {s(S_T0)}, 16384")
        a(f"s_lshr_b32 {s(S_T0)}, {s(S_TI)}, 2\ns_lshl_b32 {s(S_T0)}, {s(S_T0)}, 15")
        for i in range(4):
            a(f"buffer_load_dword v71, v6, {s(R_H,4)}, {s(S_T0)} offen\ns_add_u32 {s(S_T0)}, {s(S_T0)}, 8192")
        a(f"{l2}:")
    if PT == 1:
        ptouch()
    LATE = opt("LATE", 0)
    if LATE:
        lds_min_wait(a, C_CNT, W_ISS, 1, LATE, 20)
        l1, l2 = a.label("tc"), a.label("tc")
        a(f"s_cmp_lg_u32 {s(S_SH)}, 0\ns_cbranch_scc1 {l1}")
        touch_x(a, (4, 6), 71)
        a(f"s_branch {l2}\n{l1}:")
        touch_w(a, 4, (R_WG, R_WU), 71)
        a(f"{l2}:")
    def hs(n):
        if ITST:
            a(f"s_mov_b32 {s(S_IT)}, 0")
            it_issue(a)
            a("s_waitcnt lgkmcnt(0)")
            it_take(a, n)
    hs(1)
    KV1 = opt("KV1", 0)
    if KV1:
        if KV1 == 2:
            kv_dma(a); q.add("kv", 10)
        else:
            cold()
        a("s_barrier")
    if not opt("ELAST", 0):
        epoch_load(a, 1); q.add("e", 1)
    sc()
    if opt("ELAST", 0):
        epoch_load(a, 1); q.add("e", 1)
    hs(2)
    if KVL:
        wdt()
    if SKV:
        wdt()
        a(f"s_sub_i32 {s(S_KC)}, {s(S_DO)}, 3072\ns_max_i32 {s(S_KC)}, {s(S_KC)}, 0")
        spf(a, R_K, S_KC, [1024*i for i in range(35)])
    if KV1 == 2:
        wdt()
        conv_h_loads(a); q.add("h", 4)
    if not KVAT and not KV1:
        cold()
    hs(3)
    for i in range(4):
        a(f"v_mov_b32 {v(ONE+i)}, 0x3f803f80")
    a.c("F1 pairs: lanes 0-31 tiles 16mi + (l&15) (row records), lanes 32-63 tiles 16*(l&15) + ni (column sums)")
    a(f"s_lshl_b32 {s(S_T0)}, {s(S_MI)}, 11\nv_and_b32 v9, 15, v0\nv_lshlrev_b32 v8, 7, v9\nv_add_u32 v8, {s(S_T0)}, v8")
    a(f"s_lshl_b32 {s(S_T0)}, {s(S_NI)}, 7\nv_lshlrev_b32 v9, 11, v9\nv_add_u32 v9, {s(S_T0)}, v9\nv_cmp_lt_u32 vcc, 31, v0")
    a(f"s_nop 1\nv_cndmask_b32 v8, v8, v9, vcc\nv_add_u32 v8, {WS_F1:#x}, v8")
    q.wait("e", "s")
    stamp(a, 1)
    epoch_take(a, 1)
    a(f"v_mov_b32 v20, {s(S_NON)}\nds_write_b32 {v(C_CNT)}, v20 offset:{W_NON}")
    stats(a); q.add("st", 1)
    q.wait("csd")
    if PT == 2:
        ptouch()
    colsum(a); q.add("st", 6)
    stamp(a, 2)
    if KVL:
        q.wait("st")
        hflag(a, WS_F1)
        stamp(a, 3)
        lds_min_wait(a, C_CNT, W_ISS, 1, KVL - 1, 20)
        poll2_issue(a, 8, 198)
        a(f"s_lshr_b32 {s(S_T0)}, {s(S_TI)}, 5\ns_lshl_b32 {s(S_T0)}, {s(S_T0)}, 7\ns_add_u32 {s(S_T0)}, {s(S_T0)}, {WS_F2:#x}")
        a(f"v_and_b32 v16, 31, v0\nv_lshlrev_b32 v16, 10, v16\nv_add_u32 v16, {s(S_T0)}, v16")
        a("s_waitcnt vmcnt(0)")
        poll2_check(a, 8, 198)
        lds_min_wait(a, C_CNT, W_ISS, 1, KVL, 20)
        a(f"s_lshl_b32 {s(S_T0)}, {s(S_MI)}, 1\ns_add_u32 {s(S_T0)}, {s(S_T0)}, {s(S_SH)}\ns_lshl_b32 {s(S_T0)}, {s(S_T0)}, 10\ns_add_u32 {s(S_T0)}, {s(S_T0)}, {WS_ST:#x}")
        a(f"buffer_load_dwordx4 {v(GG,4)}, v4, {s(R_WS,4)}, {s(S_T0)} offen sc1")
        cs_gather_issue(a)
        a(f"s_lshl_b32 {s(S_T0)}, {s(S_SH)}, 10\ns_add_u32 {s(S_T0)}, {s(S_T0)}, {L_ST}\nv_add_u32 v9, {s(S_T0)}, v4")
        cold()
        a("s_waitcnt vmcnt(14)")
        a(f"ds_write_b128 v9, {v(GG,4)}")
        cs_gather_finish(a)
        lds_inc(a, C_CNT, C_ONE, W_GATH)
        stamp(a, 5)
        a(f"s_setprio {opt('PRK', 0)}")
        a("s_waitcnt vmcnt(4)")
        kv_reads(a)
        kv_taps(a)
        a("s_waitcnt lgkmcnt(0)")
        for l in kv_compute(0) + kv_compute(1):
            a(l)
        kv_store(a)
        lds_inc(a, C_CNT, C_ONE, W_HP)
        a("s_waitcnt vmcnt(4)")
        conv_h_shift(a, 40)
        a("s_waitcnt vmcnt(0)")
        hflag(a, WS_F2)
        stamp(a, 4)
        final_loads(a)
        lds_min_wait(a, C_CNT, W_FREE, 4, 6, 20)
        lds_min_wait(a, C_CNT, W_HP, 1, 2, 20)
        conv_h_stage(a, 40)
        poll2_issue(a, 16, 18)
        a("s_waitcnt vmcnt(0)")
        poll2_check(a, 16, 18)
        a(f"s_add_u32 {s(S_T2)}, {s(S_HO)}, {WS_KVR:#x}")
        for i in range(4):
            a(f"buffer_load_dwordx4 {v(128+4*i,4)}, v4, {s(R_WS,4)}, {s(S_T2)} offen offset:{1024*i} sc1")
        for i in range(4):
            a(f"s_waitcnt vmcnt({3-i})")
            a(f"ds_write_b128 v10, {v(128+4*i,4)} offset:{4*HSTR + 1024*i}")
        stamp(a, 6)
        return
    if SKV:
        spf(a, R_V, S_DO, [1024*i for i in range(14)])
        q.wait("st")
        hflag(a, WS_F1); q.add("f", 1)
        stamp(a, 3)
        spf(a, R_V, S_DO, [1024*i for i in range(14, 32)])
        a(f"s_and_b32 {s(S_T1)}, {s(S_TI)}, 7\ns_lshl_b32 {s(S_T1)}, {s(S_T1)}, 9")
        spf(a, R_SK, S_T1, [128*i for i in range(4)])
        if SKV == 2:
            spf(a, R_H, S_HO, [128*i for i in range(32)])
        a("s_waitcnt lgkmcnt(0)")
        cold()
    elif KVAT:
        a(f"s_lshr_b32 {s(S_T3)}, s2, 3\ns_and_b32 {s(S_T3)}, {s(S_T3)}, {opt('KVM', 0)}\ns_add_u32 {s(S_T3)}, {s(S_T3)}, {KVAT}")
        if PT:
            q.wait("st")
            hflag(a, WS_F1); q.add("f", 1)
            stamp(a, 3)
            a(f"s_and_b32 {s(S_T0)}, {s(S_NI)}, 3\ns_cmp_eq_u32 {s(S_T0)}, 3\ns_cselect_b32 {s(S_T3)}, 0, {s(S_T3)}")
        lds_min_wait(a, C_CNT, W_ISS, 1, s(S_T3), 20)
        cold()
        if not PT:
            q.wait("st")
            hflag(a, WS_F1); q.add("f", 1)
            stamp(a, 3)
    q.wait("kv")
    kv_reads(a)
    kv_taps(a)
    a("s_waitcnt lgkmcnt(0)")
    for l in kv_compute(0):
        a(l)
    if not KVAT:
        q.wait("st")
        hflag(a, WS_F1); q.add("f", 1)
        stamp(a, 3)
    for l in kv_compute(1):
        a(l)
    kv_store(a); q.add("kvst", 4)
    lds_inc(a, C_CNT, C_ONE, W_HP)
    q.wait("kvst")
    hflag(a, WS_F2); q.add("f", 1)
    stamp(a, 4)
    if opt("HW7", 0):
        lds_min_wait(a, C_CNT, W_ISS, 1, opt("HW7", 0), 20)
        wdt()
        conv_h_loads(a)
    else:
        conv_h_shift(a)
    if SKV == 1:
        spf(a, R_H, S_HO, [128*i for i in range(32)])
    if WDE:
        wd_setup(a, 0, S_SH)
        a(f"s_lshl_b32 {s(S_T0)}, {s(S_SH)}, 2\nv_add_u32 v11, {s(S_T0)}, {v(C_CNT)}")
        lds_min_wait(a, C_CNT, W_HP, 1, 2, 20)
        lds_min_wait(a, C_CNT, W_ISS, 1, WDE, 20)
        for op in wd_dma(0, 2) + wd_dma(1, 2):
            a(op)
    lds_min_wait(a, C_CNT, W_ISS, 1, opt("GATP", 7), 20)
    poll2_issue(a, 8, 198)
    a.c("F2 pairs of tiles 8*(l&31) + (ti>>5)")
    a(f"s_lshr_b32 {s(S_T0)}, {s(S_TI)}, 5\ns_lshl_b32 {s(S_T0)}, {s(S_T0)}, 7\ns_add_u32 {s(S_T0)}, {s(S_T0)}, {WS_F2:#x}")
    a(f"v_and_b32 v16, 31, v0\nv_lshlrev_b32 v16, 10, v16\nv_add_u32 v16, {s(S_T0)}, v16")
    a("s_waitcnt vmcnt(0)")
    if WDE:
        a(f"ds_write_b32 v11, {v(C_ONE)} offset:{W_WE}")
    poll2_check(a, 8, 198)
    lds_min_wait(a, C_CNT, W_ISS, 1, opt("GAT", 7), 20)
    poll2_issue(a, 16, 18)
    a(f"s_lshl_b32 {s(S_T0)}, {s(S_MI)}, 1\ns_add_u32 {s(S_T0)}, {s(S_T0)}, {s(S_SH)}\ns_lshl_b32 {s(S_T0)}, {s(S_T0)}, 10\ns_add_u32 {s(S_T0)}, {s(S_T0)}, {WS_ST:#x}")
    a(f"buffer_load_dwordx4 {v(GG,4)}, v4, {s(R_WS,4)}, {s(S_T0)} offen sc1")
    cs_gather_issue(a)
    a(f"s_lshl_b32 {s(S_T0)}, {s(S_SH)}, 10\ns_add_u32 {s(S_T0)}, {s(S_T0)}, {L_ST}\nv_add_u32 v9, {s(S_T0)}, v4")
    late, join = a.label("u_late"), a.label("u_join")
    def u_loads():
        a(f"s_add_u32 {s(S_T2)}, {s(S_HO)}, {WS_KVR:#x}")
        for i in range(4):
            a(f"buffer_load_dwordx4 {v(128+4*i,4)}, v4, {s(R_WS,4)}, {s(S_T2)} offen offset:{1024*i} sc1")
    def gather_done():
        a(f"ds_write_b128 v9, {v(GG,4)}")
        cs_gather_finish(a)
        lds_inc(a, C_CNT, C_ONE, W_GATH)
        stamp(a, 5)
    a("s_waitcnt vmcnt(9)")
    a(f"v_cmp_ne_u32 vcc, {s(S_NON)}, v18\nv_cmp_ne_u32 {s(S_EX,2)}, {s(S_NON)}, v19\ns_nop 0\ns_or_b64 vcc, vcc, {s(S_EX,2)}\ns_cbranch_scc1 {late}")
    u_loads()
    a("s_waitcnt vmcnt(4)")
    gather_done()
    a(f"{join}:")
    keep = a.L
    a.L = COLD.L
    a(f"{late}:")
    a("s_waitcnt vmcnt(0)")
    gather_done()
    poll2_check(a, 16, 18)
    u_loads()
    a(f"s_branch {join}")
    a.L = keep
    final_loads(a)
    lds_min_wait(a, C_CNT, W_FREE, 4, 6, 20)
    a.c("the other helper must be done with its transpose scratch before the conv region is written")
    lds_min_wait(a, C_CNT, W_HP, 1, 2, 20)
    if opt("HW7", 0):
        conv_h_shift(a)
    conv_h_stage(a)
    a("s_waitcnt vmcnt(2)")
    for i in range(4):
        a(f"ds_write_b128 v10, {v(128+4*i,4)} offset:{4*HSTR + 1024*i}")
    stamp(a, 6)


C_ACC, C_F0, C_F1 = 16, 48, 112
C_AA, C_BA = 2, 3


def bsync_post(a, n=4):
    a(f"s_add_u32 {s(S_CNT)}, {s(S_CNT)}, {n}")
    a("s_mov_b64 exec, 1")
    a(f"ds_add_u32 {v(C_CNT)}, {v(C_ONE)}")
    a("s_mov_b64 exec, -1")


def bsync_wait(a, nap=None):
    lds_min_wait(a, C_CNT, W_CNT, 1, s(S_CNT), 6, nap=opt("BNAP", 1) if nap is None else nap)


def bsync(a, n=4):
    bsync_post(a, n)
    bsync_wait(a)


def conv_reads(fr, roff):
    out = []
    for p in range(8):
        out.append(f"ds_read_b128 {v(fr+4*p,4)}, {v(C_AA)} offset:{512*p + roff}")
        out.append(f"ds_read_b64 {v(fr+32+4*p,2)}, {v(C_BA)} offset:{512*(7-p) + roff}")
        out.append(f"ds_read_b64 {v(fr+32+4*p+2,2)}, {v(C_BA)} offset:{512*(7-p) + roff + 8}")
    return out


def conv_mfmas(fr, first):
    out = []
    for tot in range(8):
        for p in range(tot + 1):
            q = tot - p
            out.append((max(p, q), f"v_mfma_f32_16x16x32_bf16 {v(C_ACC+4*tot,4)}, {v(fr+4*p,4)}, {v(fr+32+4*q,4)}, ", C_ACC + 4*tot))
    out.sort(key=lambda t: t[0])
    res, seen = [], set()
    for _, txt, c in out:
        res.append(txt + ("0" if first and c not in seen else v(c, 4)))
        seen.add(c)
    return res


HR = 200


def conv_h_loads(a):
    a(f"s_mul_i32 {s(S_RING)}, {s(S_SH)}, {CH_STR}\ns_add_u32 {s(S_RING)}, {s(S_RING)}, {L_CONV}")
    for h in range(4):
        a(f"buffer_load_dwordx4 {v(HR+6*h+2,4)}, v4, {s(R_H,4)}, {s(S_HO)} offen offset:{1024*h} {NT}")


def conv_h_shift(a, z=24):
    for i in range(4):
        a(f"v_mov_b32 {v(z+i)}, 0")
    a(f"v_add_u32 v10, {s(S_RING)}, v4")
    T = 72
    a.c("the two dwords in front of each lane's piece come from the lane below")
    for h in range(4):
        r = HR + 6 * h
        for i in range(2):
            a(f"v_mov_b32_dpp {v(r+i)}, {v(r-2+i)} wave_ror:1 row_mask:0xf bank_mask:0xf" if h else f"v_mov_b32 {v(r+i)}, 0")
    for h in range(4):
        r = HR + 6 * h
        for i in range(2):
            a(f"v_mov_b32_dpp {v(r+i)}, {v(r+4+i)} wave_shr:1 row_mask:0xf bank_mask:0xf")
    for h in range(4):
        r = HR + 6 * h
        for i in range(4):
            a(f"v_alignbit_b32 {v(T+i)}, {v(r+2+i)}, {v(r+1+i)}, 16")
        for i in range(4):
            a(f"v_mov_b32 {v(T+4+i)}, {v(r+1+i)}")
        for i in range(4):
            a(f"v_alignbit_b32 {v(T+8+i)}, {v(r+1+i)}, {v(r+i)}, 16")
        T += 12


def conv_h_stage(a, z=24):
    a.c("zero pads: 384 B in front of each h copy, 128 B behind u")
    a("s_mov_b64 exec, 0xffffff")
    for p in range(4):
        a(f"ds_write_b128 v10, {v(z,4)} offset:{p*HSTR}")
    a("s_mov_b64 exec, 0xff")
    a(f"ds_write_b128 v10, {v(z,4)} offset:{4*HSTR + 4096}")
    a("s_mov_b64 exec, -1")
    for h in range(4):
        a(f"ds_write_b128 v10, {v(HR+6*h+2,4)} offset:{384 + 1024*h}")
        for p in range(1, 4):
            a(f"ds_write_b128 v10, {v(72+12*h+4*(p-1),4)} offset:{p*HSTR + 384 + 1024*h}")


def conv_mid(a):
    a("s_waitcnt vmcnt(0)")
    a(f"ds_write_b32 v11, v251 offset:{W_WD}")
    poll2_check(a, 5, 198)
    a(f"s_lshl_b32 {s(S_T0)}, {s(S_MT)}, 2\ns_add_u32 {s(S_T0)}, {s(S_T0)}, {s(S_WB)}\ns_lshl_b32 {s(S_T0)}, {s(S_T0)}, 8\ns_add_u32 {s(S_T0)}, {s(S_T0)}, {WS_ST:#x}")
    a(f"buffer_load_dwordx4 {v(184,4)}, v15, {s(R_WS,4)}, {s(S_T0)} offen sc1")
    a(f"buffer_load_dwordx4 {v(188,4)}, v15, {s(R_WS,4)}, {s(S_T0)} offen offset:128 sc1")


def conv_main(a):
    U, UU, X, O = 48, 56, 112, 144
    for l in conv_reads(C_F0, 0):
        a(l)
    for r in range(4):
        cur, nxt = (C_F0, C_F1) if r % 2 == 0 else (C_F1, C_F0)
        a("s_waitcnt lgkmcnt(0)")
        if r < 3:
            rd = conv_reads(nxt, 64 * (r + 1))
        else:
            rd = [f"ds_read_b32 {v(U+2*b+c)}, v10 offset:{c*CH_STR + 256*(3-b)}" for b in range(4) for c in range(2)]
        for l in interleave(conv_mfmas(cur, r == 0), rd, 0, 1):
            a(l)
        if r == opt("WDR", 0):
            conv_mid(a)
    lstamp(a, 5)
    a(f"s_setprio {opt('PRX', opt('PRC', 3))}")
    bsync(a)
    if opt("XST", 0): lstamp(a, 1)
    for t in range(8):
        a(f"ds_write_b128 v8, {v(C_ACC+4*t,4)} offset:{t*1024}")
    bsync_post(a)
    a.c("skip term D*u at rows 512wb + 128b + 2l, +1")
    a(f"s_lshl_b32 s100, {s(S_C+1)}, 16\ns_and_b32 {s(S_C+1)}, {s(S_C+1)}, 0xffff0000")
    for b in range(4):
        for c in range(2):
            u, o = U + 2*b + c, UU + 4*b + 2*c
            a(f"v_and_b32 {v(o)}, {s(S_C)}, {v(u)}\nv_lshlrev_b32 {v(o+1)}, 16, {v(u)}")
    for b in range(4):
        for c in range(2):
            for j in range(2):
                a(f"v_mul_f32 {v(UU+4*b+2*c+j)}, {s(S_C+1) if c else 's100'}, {v(UU+4*b+2*c+j)}")
        a(f"v_mov_b32 {v(O+4*b+1)}, {s(S_NON)}\nv_mov_b32 {v(O+4*b+3)}, {s(S_NON)}")
    bsync_wait(a)
    if opt("XST", 0): lstamp(a, 2)
    for b in range(4):
        for w in range(4):
            a(f"ds_read_b64 {v(X+8*b+2*w,2)}, v9 offset:{w*8192 + b*512}")
    a("s_waitcnt vmcnt(0)")
    for b in range(4):
        a(f"s_waitcnt lgkmcnt({4*(3-b)})")
        for c in range(2):
            for j in range(2):
                o, x0 = UU + 4*b + 2*c + j, X + 8*b + 4*c + j
                a(f"v_add_f32 {v(o)}, {v(o)}, {v(x0)}")
        for c in range(2):
            for j in range(2):
                o, x0 = UU + 4*b + 2*c + j, X + 8*b + 4*c + j
                a(f"v_add_f32 {v(o)}, {v(o)}, {v(x0+2)}")
        for j in range(2):
            a(f"v_cvt_pk_bf16_f32 {v(O+4*b+2*j)}, {v(UU+4*b+j)}, {v(UU+4*b+2+j)}")
        if opt("XST", 0) and b == 0: lstamp(a, 3)
        a(f"buffer_store_dwordx4 {v(O+4*b,4)}, v4, {s(R_WS,4)}, {s(S_HO)} offen offset:{1024*b} sc1")
    a.c("the flag only says where to look: the granules carry their own tags")
    if opt("YACK", 0):
        a("s_waitcnt vmcnt(0)")
    flag_store(a, S_DO, 8, 9)


def conv_addr(a):
    a(f"s_lshr_b32 {s(S_T0)}, {s(S_WB)}, 1\ns_mul_i32 {s(S_RING)}, {s(S_T0)}, {CH_STR}\ns_add_u32 {s(S_RING)}, {s(S_RING)}, {L_CONV}")
    a(f"s_lshl_b32 {s(S_T3)}, {s(S_TI)}, 2\ns_load_dword {s(S_C+1)}, {s(S_DP,2)}, {s(S_T3)}")
    a.c("A address: base + (3-(m&3))*HSTR + 128*(m>>2) + 16*kg + 256*rh ; B address: ubase + 120 - 8n + 16kg + 256*rh")
    a(f"s_and_b32 {s(S_T0)}, {s(S_WB)}, 1\ns_lshl_b32 {s(S_T0)}, {s(S_T0)}, 8\ns_add_u32 {s(S_T0)}, {s(S_T0)}, {s(S_RING)}")
    a(f"v_and_b32 v6, 3, v0\nv_sub_u32 v6, 3, v6\nv_mul_u32_u24 v6, {HSTR}, v6\nv_bfe_u32 v7, v0, 2, 2\nv_lshl_add_u32 v6, v7, 7, v6")
    a(f"v_and_b32 v7, 48, v0\nv_add3_u32 {v(C_AA)}, v6, v7, {s(S_T0)}")
    a(f"v_and_b32 v6, 15, v0\nv_lshlrev_b32 v6, 3, v6\nv_sub_u32 v6, v7, v6\ns_add_u32 {s(S_T0)}, {s(S_T0)}, {4*HSTR + 120}\nv_add_u32 {v(C_BA)}, {s(S_T0)}, v6")
    a(f"s_lshl_b32 {s(S_T0)}, {s(S_WB)}, 13\ns_add_u32 {s(S_T0)}, {s(S_T0)}, {L_XCH}\nv_add_u32 v8, {s(S_T0)}, v4")
    a(f"s_lshl_b32 {s(S_T0)}, {s(S_WB)}, 11\ns_add_u32 {s(S_T0)}, {s(S_T0)}, {L_XCH}\nv_lshlrev_b32 v9, 3, v0\nv_add_u32 v9, {s(S_T0)}, v9")
    a.c("u for the skip term: ubase_c + 2*(2046 - 512wb - 128b - 2l)")
    a(f"s_lshl_b32 {s(S_T0)}, {s(S_WB)}, 10\ns_sub_u32 {s(S_T0)}, {L_CONV + 4*HSTR + 4092 - 768}, {s(S_T0)}\nv_lshlrev_b32 v10, 2, v0\nv_sub_u32 v10, {s(S_T0)}, v10")
    a.c("y granules: YG[ti][row*8]; flag F4[wb*256 + ti]")
    a(f"s_mul_i32 {s(S_T0)}, {s(S_TI)}, {YSTR}\ns_lshl_b32 {s(S_T1)}, {s(S_WB)}, 12\ns_add_u32 {s(S_T0)}, {s(S_T0)}, {s(S_T1)}\ns_add_u32 {s(S_HO)}, {s(S_T0)}, {WS_YG:#x}")
    a(f"s_lshl_b32 {s(S_T0)}, {s(S_WB)}, 8\ns_add_u32 {s(S_T0)}, {s(S_T0)}, {s(S_TI)}\ns_lshl_b32 {s(S_T0)}, {s(S_T0)}, 7\ns_add_u32 {s(S_DO)}, {s(S_T0)}, {WS_F4:#x}")
    a(f"s_mov_b32 {s(S_CNT)}, 0\ns_lshl_b32 {s(S_T0)}, {s(S_WB)}, 2\nv_add_u32 v11, {s(S_T0)}, {v(C_CNT)}\nv_mov_b32 v251, 3")
    a.c("F1 pairs of the two tiles that hold this wave's output rows")
    a(f"s_lshl_b32 {s(S_T1)}, {s(S_MT)}, 2\ns_add_u32 {s(S_T1)}, {s(S_T1)}, {s(S_WB)}\ns_lshl_b32 {s(S_T1)}, {s(S_T1)}, 8\ns_add_u32 {s(S_T1)}, {s(S_T1)}, {WS_F1:#x}")
    a(f"v_and_b32 v5, 1, v0\nv_lshlrev_b32 v5, 7, v5\nv_add_u32 v5, {s(S_T1)}, v5")
    poll2_issue(a, 5, 198)


def final_loads(a):
    a(f"s_lshl_b32 {s(S_T0)}, {s(S_MT)}, 2\ns_add_u32 {s(S_T0)}, {s(S_T0)}, {s(S_WB)}\ns_lshl_b32 {s(S_T1)}, {s(S_T0)}, 14\ns_lshl_b32 {s(S_T2)}, {s(S_NT)}, 7\ns_add_u32 {s(S_XO)}, {s(S_T1)}, {s(S_T2)}")
    a(f"s_add_u32 {s(S_WO)}, {s(S_XO)}, 8192")
    a("v_lshrrev_b32 v12, 3, v0\nv_and_b32 v13, 7, v0\nv_lshlrev_b32 v14, 4, v13\nv_lshl_add_u32 v14, v12, 10, v14\nv_lshlrev_b32 v15, 4, v12")
    a(f"buffer_load_dwordx4 {v(176,4)}, v14, {s(R_X,4)}, {s(S_XO)} offen")
    a(f"buffer_load_dwordx4 {v(180,4)}, v14, {s(R_X,4)}, {s(S_WO)} offen")


def final(a):
    XU, XN, YU, YL = 16, 72, 96, 160
    a.c("flags F4[(mt>>3)*256 + 32nt + 8wb + (l&7)]; granules of pairs 32nt + 8wb + 2i + (l>>5), rows 64mt + 2*(l&31) ..")
    a(f"s_lshl_b32 {s(S_T0)}, {s(S_NT)}, 2\ns_add_u32 {s(S_T0)}, {s(S_T0)}, {s(S_WB)}\ns_lshr_b32 {s(S_T1)}, {s(S_MT)}, 3\ns_lshl_b32 {s(S_T1)}, {s(S_T1)}, 5\ns_add_u32 {s(S_T1)}, {s(S_T1)}, {s(S_T0)}")
    a(f"s_lshl_b32 {s(S_T1)}, {s(S_T1)}, 10\ns_add_u32 {s(S_T1)}, {s(S_T1)}, {WS_F4:#x}\nv_lshlrev_b32 v5, 7, v13\nv_add_u32 v5, {s(S_T1)}, v5")
    a(f"s_mul_i32 {s(S_T0)}, {s(S_T0)}, {8*YSTR}\ns_lshl_b32 {s(S_T1)}, {s(S_MT)}, 9\ns_add_u32 {s(S_T0)}, {s(S_T0)}, {s(S_T1)}\ns_add_u32 {s(S_HO)}, {s(S_T0)}, {WS_YG:#x}")
    a(f"v_lshrrev_b32 v10, 5, v0\nv_mul_u32_u24 v8, {YSTR - 512}, v10\nv_add_u32 v8, v8, v4")

    def y_loads():
        a(f"s_mov_b32 {s(S_T1)}, {s(S_HO)}")
        for i in range(4):
            a(f"buffer_load_dwordx4 {v(YL+4*i,4)}, v8, {s(R_WS,4)}, {s(S_T1)} offen sc1")
            if i < 3:
                a(f"s_add_u32 {s(S_T1)}, {s(S_T1)}, {2*YSTR}")
    for t in range(2):
        for i in range(4):
            a(f"v_lshlrev_b32 {v(XU+8*t+2*i)}, 16, {v(176+4*t+i)}\nv_and_b32 {v(XU+8*t+2*i+1)}, {s(S_C)}, {v(176+4*t+i)}")
    for i in range(16):
        a(f"v_mov_b32 {v(YU+i)}, 0")
    a.c("transpose scratch [wb'][c*272 + e*64 + row*4]")
    a(f"s_mul_i32 {s(S_T0)}, {s(S_WB)}, 544\ns_add_u32 {s(S_T0)}, {s(S_T0)}, {L_YL}")
    a(f"v_and_b32 v9, 3, v12\nv_mul_u32_u24 v9, 2176, v9\nv_lshl_add_u32 v9, v10, 6, v9\nv_lshl_add_u32 v9, v13, 3, v9\nv_add_u32 v9, {s(S_T0)}, v9")
    a(f"s_mul_i32 {s(S_T0)}, {s(S_WB)}, 2176\ns_add_u32 {s(S_T0)}, {s(S_T0)}, {L_YL}")
    a(f"v_mul_u32_u24 v7, 272, v13\nv_lshl_add_u32 v7, v12, 2, v7\nv_add_u32 v7, {s(S_T0)}, v7")
    a.c("partials: wb*16384 + w*4096 + (8t + row)*256 + ((2c + h) ^ row)*16")
    a(f"s_lshl_b32 {s(S_T0)}, {s(S_WB)}, 14\nv_lshlrev_b32 v2, 1, v13\nv_xor_b32 v2, v2, v12\nv_lshlrev_b32 v2, 4, v2\nv_lshl_add_u32 v2, v12, 8, v2\nv_add_u32 v2, {s(S_T0)}, v2")
    a("v_xor_b32 v3, 16, v2")
    for t in range(2):
        a(f"v_mul_f32 {v(185+4*t)}, {f32bits(1.0/C1):#x}, {v(185+4*t)}")
        for i in range(8):
            a(f"v_sub_f32 {v(XN+8*t+i)}, {v(XU+8*t+i)}, {v(184+4*t)}")
        for i in range(8):
            a(f"v_mul_f32 {v(XN+8*t+i)}, {v(XN+8*t+i)}, {v(185+4*t)}")
    if not opt('LDST', 0): stamp(a, 7)
    a(f"s_setprio {opt('PRP', 0)}")
    a.c("stay off the memory path until the GEMM2 waves have issued their loads")
    lds_min_wait(a, C_CNT, W_HI, 1, 4, 6, nap=2)
    a(f"s_setprio {opt('PRF', 3)}")
    if not opt('LDST', 0): stamp(a, 8)
    top, done = a.label("yp"), a.label("yp_ok")
    a(f"s_mov_b32 {s(S_IT)}, 0")
    if opt("YFLAG", 1):
        poll(a, 5, 6)
    a(f"{top}:")
    y_loads()
    a("s_waitcnt vmcnt(0)")
    for i in range(4):
        a(f"v_xor_b32 {v(48+i)}, {s(S_NON)}, {v(YL+4*i+1)}\nv_xor_b32 {v(52+i)}, {s(S_NON)}, {v(YL+4*i+3)}\nv_mov_b32 {v(YL+4*i+1)}, {v(YL+4*i+2)}")
    a("v_or3_b32 v48, v48, v49, v50\nv_or3_b32 v51, v51, v52, v53\nv_or3_b32 v48, v48, v54, v55\nv_or_b32 v48, v48, v51\nv_cmp_ne_u32 vcc, 0, v48")
    a(f"s_cbranch_vccz {done}")
    poll(a, 5, 6)
    a(f"s_add_u32 {s(S_IT)}, {s(S_IT)}, {s(S_SPIN)}\ns_add_u32 {s(S_IT)}, {s(S_IT)}, 1\ns_cmp_lt_u32 {s(S_IT)}, {SPIN_MAX}\ns_cbranch_scc1 {top}")
    a(f"{done}:")
    for i in range(4):
        a(f"ds_write_b64 v9, {v(YL+4*i,2)} offset:{272*(i>>1) + 128*(i&1)}")
    bsync(a)
    for t in range(2):
        for e in range(8):
            a(f"ds_read_u16_d16_hi {v(YU+8*t+e)}, v7 offset:{64*(e>>1) + 32*t + 2*(e&1)}")
    for t in range(2):
        a(f"s_waitcnt lgkmcnt({8*(1-t)})")
        for i in range(8):
            a(f"v_fmac_f32 {v(XU+8*t+i)}, {v(XN+8*t+i)}, {v(YU+8*t+i)}")
    if not opt('LDST', 0): stamp(a, 9)
    if STAMPS:
        a("s_waitcnt lgkmcnt(0)")
    a("s_barrier")
    P = 112
    for t in range(2):
        for w in range(4):
            for h in range(2):
                a(f"ds_read_b128 {v(P+32*t+8*w+4*h,4)}, {'v3' if h else 'v2'} offset:{w*4096 + t*2048}")
    for t in range(2):
        a(f"s_waitcnt lgkmcnt({8*(1-t)})")
        p = P + 32 * t
        for i in range(4):
            a(f"v_pk_add_f32 {v(p+2*i,2)}, {v(p+2*i,2)}, {v(p+8+2*i,2)}")
        for i in range(4):
            a(f"v_pk_add_f32 {v(p+16+2*i,2)}, {v(p+16+2*i,2)}, {v(p+24+2*i,2)}")
        for i in range(4):
            a(f"v_pk_add_f32 {v(p+2*i,2)}, {v(p+2*i,2)}, {v(XU+8*t+2*i,2)}")
        for i in range(4):
            a(f"v_pk_add_f32 {v(p+2*i,2)}, {v(p+2*i,2)}, {v(p+16+2*i,2)}")
        for i in range(4):
            a(f"v_cvt_pk_bf16_f32 {v(48+4*t+i)}, {v(p+2*i)}, {v(p+2*i+1)}")
        a(f"buffer_store_dwordx4 {v(48+4*t,4)}, v14, {s(R_OUT,4)}, {s(S_WO if t else S_XO)} offen")


def epoch_flags_issue(a):
    a(f"v_lshlrev_b32 v6, 7, v0\ns_mov_b32 {s(S_T0)}, {WS_F1:#x}")
    for i in range(4):
        a(f"buffer_load_dword {v(2+i)}, v6, {s(R_WS,4)}, {s(S_T0)} offen sc1")
        a(f"s_add_u32 {s(S_T0)}, {s(S_T0)}, 8192")


def epoch_pre(a):
    done = a.label("ep_skip")
    a(f"s_lshl_b32 {s(S_T0)}, s2, 3\ns_add_u32 {s(S_T0)}, {s(S_T0)}, {s(S_WAVE)}\ns_cmp_lg_u32 {s(S_T0)}, 0\ns_cbranch_scc1 {done}")
    epoch_flags_issue(a)
    a(f"{done}:")


def epoch_advance(a):
    done, top, ok = a.label("ep_skip"), a.label("ep_top"), a.label("ep_ok")
    a(f"s_lshl_b32 {s(S_T0)}, s2, 3\ns_add_u32 {s(S_T0)}, {s(S_T0)}, {s(S_WAVE)}\ns_cmp_lg_u32 {s(S_T0)}, 0\ns_cbranch_scc1 {done}")
    a(f"s_mov_b32 {s(S_SPIN)}, 0")
    a(f"{top}:")
    for i in range(4):
        a(f"v_xor_b32 {v(2+i)}, {s(S_NON)}, {v(2+i)}")
    a("v_or_b32 v2, v2, v3\nv_or_b32 v4, v4, v5\nv_or_b32 v2, v2, v4\nv_cmp_ne_u32 vcc, 0, v2")
    a(f"s_cbranch_vccz {ok}")
    a(f"s_add_u32 {s(S_SPIN)}, {s(S_SPIN)}, 1\ns_cmp_ge_u32 {s(S_SPIN)}, {SPIN_MAX}\ns_cbranch_scc1 {ok}")
    epoch_flags_issue(a)
    a(f"s_waitcnt vmcnt(0)\ns_branch {top}")
    a(f"{ok}:")
    a(f"s_mov_b32 {s(S_T0)}, {WS_EP:#x}")
    flag_store(a, S_T0, 8, 9)
    a(f"{done}:")


def kernel(a):
    entry(a)
    prologue(a, False, 1)
    g1_compute(a)
    g1_epilogue(a)
    epoch_pre(a)
    g2_main(a)
    epoch_advance(a)
    stamp_flush(a)
    a("s_endpgm")
    a(".p2align 6\nL_load:")
    prologue(a)
    loader(a)
    a("s_branch L_bj")
    a(".p2align 6\nL_help:")
    prologue(a, 2 if opt("KV1", 0) else True)
    helper(a)
    a("L_bj:")
    if opt("BST", 0): lstamp(a, 1)
    conv_addr(a)
    if opt("BST", 0): lstamp(a, 2)
    bsync(a, 4 if opt("CEARLY", 0) else 8)
    a(f"s_setprio {opt('PRC', 3)}")
    lstamp(a, 4)
    conv_main(a)
    lstamp(a, 6)
    final(a)
    stamp_flush(a)
    a("s_endpgm")
    a.L += COLD.L
    a("L_end:\ns_endpgm")


HEADER = open(f"cdna_kernels/{NAME}.s.ref").read().split("; Override launch")[0]


def build():
    a = Asm()
    kernel(a)
    out = HEADER + "; @launch grid=(256,1,1) block=(512,1,1) lds=163840\n"
    out += '.amdgcn_target "amdgcn-amd-amdhsa--gfx950"\n.text\n' + a.text()
    out += '.section .rodata,"a"\n.p2align 6\n' + kernel_desc(KNAME)
    return out


if __name__ == "__main__":
    open(sys.argv[1] if len(sys.argv) > 1 else "t_m.s", "w").write(build())
```

```python
import math, os, sys
from asmlib import *

NAME = "parallel_sum__ssm_conv_h3__geglu_ffn__prompt"
KNAME = NAME + "_kernel"
S, D, F = 2048, 512, 1376
NU = F // 16
STAMPS = os.environ.get("STAMPS") == "1"
def opt(name, default):
    return int(os.environ.get(name, default))

WS_HF, WS_KVR, WS_Y2, WS_ST, WS_CSP = 0, 0x600000, 0x800000, 0xA00000, 0xA10000
WS_F1, WS_F2, WS_F3, WS_F4, WS_EP = 0xA80000, 0xA88000, 0xAA0000, 0xAC0000, 0xAE0000
WS_STAMP = 0xC00000
WS_YG = 0x1000000
YSTR = 16384 + 256
WS_SIZE = 0x1500000
NONCE_INC = 0x9E3779B1
OOB = 0x7f000000
R_X, R_WG, R_WU, R_WS, R_K, R_V, R_SK, R_WD, R_OUT, R_H = 4, 8, 12, 16, 20, 24, 28, 32, 36, 40
S_DP = 44
S_EX = 46
(S_WAVE, S_MI, S_NI, S_FB0, S_NBLK, S_T0, S_T1, S_T2, S_T3, S_IT, S_SLOT, S_KC, S_XO, S_WO, S_WO2, S_M0,
 S_WB, S_SH, S_UH, S_TI, S_MT, S_NT, S_NON, S_RING, S_CNT, S_HO, S_DO, S_SPIN) = range(48, 76)
S_C = 76
S_DK, S_HK, S_KEND = 3, S_RING, S_CNT
SLOT, NSLOT = 40960, 3
L_KVT, KVT_STR = 122880, 80
L_CS, L_ST, L_CNT = 135680, 136704, 138752
HSTR = 4640
CH_STR = 4 * HSTR + 4224
L_CONV = 81920
L_XCH = 81920
L_YL = 114688
NRW = 7
KVL = opt("KVL", 0)
CFX, CFW, CFS, CFD = (os.environ.get(k, "") for k in ("CFX", "CFW", "CFS", "CFD"))
SLOTMAP = [2, 3, 4, 5, 6, 0, 1] if KVL else list(range(7))
L_RA0 = 127488
S_RA, S_RB = 101, S_M0
L_CSS = 139264
assert L_KVT + 2 * 64 * KVT_STR <= L_CS and L_CONV + 2 * CH_STR <= L_RA0 and L_RA0 + 8192 <= L_CS and L_CNT + 256 <= L_CSS
W_CNT, W_GATH, W_HP, W_FREE, W_FULL, W_NON, W_C0, W_ISS, W_WD, W_HI, W_WE = 0, 8, 12, 16, 32, 40, 48, 64, 80, 96, 112
S_DUM = 100
C1 = -2.0 * math.log2(math.e) * math.sqrt(2.0 / math.pi)
C2 = C1 * 0.044715
SPIN_MAX = 1 << 16
LSPIN_MAX = 1 << 22


def stamp(a, i):
    if STAMPS:
        a(f"{'s_memtime' if opt('CLK', 0) else 's_memrealtime'} {s(78+2*i,2)}")


def lstamp(a, i):
    if STAMPS and not opt("LDST", 0):
        lab = a.label("ls")
        a(f"s_cmp_ge_u32 {s(S_WB)}, 2\ns_cbranch_scc1 {lab}")
        stamp(a, i)
        a(f"{lab}:")


ITST = STAMPS and opt("ITST", 0)


def it_issue(a):
    if ITST:
        a("s_memrealtime s[96:97]")


def it_take(a, add):
    if ITST:
        a(f"s_add_u32 m0, {s(S_IT)}, {add}\ns_nop 0\nv_writelane_b32 v255, s96, m0")


def stamp_flush(a):
    if not STAMPS:
        return
    if ITST:
        a(f"s_lshl_b32 s96, s2, 3\ns_add_u32 s96, s96, {s(S_WAVE)}\ns_lshl_b32 s96, s96, 8\ns_add_u32 s96, s96, {WS_STAMP + 0x100000:#x}")
        a(f"v_lshlrev_b32 v2, 2, v0\nbuffer_store_dword v255, v2, {s(R_WS,4)}, s96 offen\ns_mov_b32 s96, 0")
    a("s_waitcnt vmcnt(0) lgkmcnt(0)")
    stamp(a, 10)
    a("s_waitcnt lgkmcnt(0)")
    for i in range(11):
        a(f"v_writelane_b32 v1, {s(78+2*i)}, {i}")
    a(f"s_lshl_b32 s78, s2, 3\ns_add_u32 s78, s78, {s(S_WAVE)}\ns_lshl_b32 s78, s78, 6\ns_add_u32 s78, s78, {WS_STAMP:#x}")
    a("v_lshlrev_b32 v2, 2, v0\ns_mov_b64 exec, 0x7ff")
    a(f"buffer_store_dword v1, v2, {s(R_WS,4)}, s78 offen")
    if opt("DBGST", 0):
        lab = a.label("dbg")
        a(f"s_cmp_lg_u32 s78, {WS_STAMP + opt('DBGW', 0)*64 + 100*512:#x}\ns_cbranch_scc1 {lab}")
        a("s_load_dwordx2 s[84:85], s[0:1], 88\ns_mov_b32 s86, 256\ns_mov_b32 s87, 0x20000\nv_readlane_b32 s82, v1, 0\ns_waitcnt lgkmcnt(0)")
        a("v_subrev_u32 v1, s82, v1")
        a("buffer_store_dword v1, v2, s[84:87], 0 offen")
        a(f"{lab}:")


TABLE = [(R_X, 0, S*D*2), (R_WG, 56, D*F*2), (R_WU, 64, D*F*2), (R_WS, 96, WS_SIZE), (R_K, 8, S*D*2), (R_V, 16, S*D*2),
         (R_SK, 24, D*8), (R_WD, 72, D*F*2), (R_OUT, 80, S*D*2), (R_H, 32, S*D*2)]


def entry(a):
    a(f".globl {KNAME}\n.p2align 8\n.type {KNAME},@function\n{KNAME}:")
    a("s_cmp_ge_u32 s2, 256\ns_cbranch_scc1 L_end")
    if opt("CPF", 0):
        n = opt("CPF", 0)
        a.c("pull this workgroup's share of the code into L2 ahead of the instruction fetch")
        a(f"s_getpc_b64 {s(S_EX,2)}\nL_pc:")
        a(f"s_lshr_b32 s3, s2, 3\nv_lshlrev_b32 v2, 5, v0\nv_add_u32 v2, s3, v2\nv_lshlrev_b32 v2, 7, v2\nv_mov_b32 v3, {s(S_EX+1)}")
        a(f"v_cmp_gt_u32 vcc, L_end-L_pc, v2\ns_and_saveexec_b64 {s(S_DP,2)}, vcc\ns_cbranch_execz L_nopf")
        a(f"v_add_co_u32 v2, vcc, {s(S_EX)}, v2\nv_addc_co_u32 v3, vcc, 0, v3, vcc")
        a("global_load_dword v212, v[2:3], off")
        a("L_nopf:\ns_mov_b64 exec, -1")
    a("v_lshrrev_b32 v1, 6, v0")
    a(f"s_load_dwordx2 {s(R_X,2)}, s[0:1], 0\ns_load_dwordx2 {s(R_WS,2)}, s[0:1], 96")
    stamp(a, 0)
    a(f"v_readfirstlane_b32 {s(S_WAVE)}, v1")
    a("v_and_b32 v0, 63, v0")
    a(f"s_cmp_ge_u32 {s(S_WAVE)}, 6\ns_cbranch_scc1 L_help")
    a(f"s_cmp_ge_u32 {s(S_WAVE)}, 4\ns_cbranch_scc1 L_load")


def prologue(a, bar=True, part=3):
    first = (R_X, R_WG, R_WU)
    if part & 1:
        for r, off, size in TABLE:
            if r in first[1:]:
                a(f"s_load_dwordx2 {s(r,2)}, s[0:1], {off}")
    if part & 2:
        for r, off, size in TABLE:
            if r not in first + (R_WS,):
                a(f"s_load_dwordx2 {s(r,2)}, s[0:1], {off}")
        a(f"s_load_dwordx2 {s(S_DP,2)}, s[0:1], 40")
        if STAMPS:
            for i in range(1, 11):
                a(f"s_mov_b32 {s(78+2*i)}, 0")
        if ITST:
            a("v_mov_b32 v255, 0")
    if part & 1 and not bar:
        a.c("LDS hand-off words start at zero")
        a(f"v_mov_b32 v20, 0\nv_lshlrev_b32 v5, 2, v0\nv_add_u32 v5, {L_CNT}, v5\nds_write_b32 v5, v20")
    for r, off, size in TABLE:
        if part & (1 if r in first else 2):
            a(f"s_mov_b32 {s(r+2)}, {size:#x}\ns_mov_b32 {s(r+3)}, 0x20000")
    if part & 1:
        a.c("x = wg&7, j = wg>>3; GEMM1 tile mi = 8*(x&1) + (j&7), ni = 4*(x>>1) + (j>>3); ti = 16*mi + ni")
        a(f"s_and_b32 {s(S_T0)}, s2, 1\ns_lshl_b32 {s(S_T0)}, {s(S_T0)}, 3")
        a(f"s_bfe_u32 {s(S_T1)}, s2, 0x30003\ns_add_u32 {s(S_MI)}, {s(S_T0)}, {s(S_T1)}")
        a(f"s_bfe_u32 {s(S_T0)}, s2, 0x20001\ns_lshl_b32 {s(S_T0)}, {s(S_T0)}, 2")
        a(f"s_lshr_b32 {s(S_T2)}, s2, 6\ns_add_u32 {s(S_NI)}, {s(S_T0)}, {s(S_T2)}")
        a.c("first 32-col block fb0 = 3*ni - (ni>>2) - (ni==15); nblk = 2 for ni in {3,7,11,14,15}")
        a(f"s_mul_i32 {s(S_FB0)}, {s(S_NI)}, 3\ns_lshr_b32 {s(S_T0)}, {s(S_NI)}, 2\ns_sub_u32 {s(S_FB0)}, {s(S_FB0)}, {s(S_T0)}")
        a(f"s_cmp_eq_u32 {s(S_NI)}, 15\ns_subb_u32 {s(S_FB0)}, {s(S_FB0)}, 0")
        a(f"s_bitcmp1_b32 0xc888, {s(S_NI)}\ns_cselect_b32 {s(S_NBLK)}, 2, 3")
        a(f"s_and_b32 {s(S_WB)}, {s(S_WAVE)}, 3")
        a.c("GEMM1 DMA lane offsets. x: (l>>3)*1024 + ((l&7) ^ ((4*(w&1) + l>>4)&7))*16 ; W: (l>>2)*2752 + ((l&3) ^ (2*(l>>5)))*16")
        a(f"s_and_b32 {s(S_T0)}, {s(S_WAVE)}, 1\ns_lshl_b32 {s(S_T0)}, {s(S_T0)}, 2")
        a(f"v_lshrrev_b32 v5, 4, v0\nv_add_u32 v5, {s(S_T0)}, v5\nv_and_b32 v6, 7, v0\nv_xor_b32 v5, v5, v6\nv_lshlrev_b32 v5, 4, v5")
        a(f"v_lshrrev_b32 v6, 3, v0\nv_lshl_add_u32 {v(VB_X)}, v6, 10, v5")
        a(f"v_lshrrev_b32 v5, 5, v0\nv_lshlrev_b32 v5, 1, v5\nv_and_b32 v6, 3, v0\nv_xor_b32 v5, v5, v6\nv_lshlrev_b32 v5, 4, v5")
        a(f"v_lshrrev_b32 v6, 2, v0\nv_mul_u32_u24 v6, {F*2}, v6\nv_add_u32 {v(VB_W)}, v6, v5")
        if not bar:
            a(f"s_lshl_b32 {s(S_XO)}, {s(S_MI)}, 17\ns_lshl_b32 {s(S_T0)}, {s(S_WB)}, 13\ns_add_u32 {s(S_XO)}, {s(S_XO)}, {s(S_T0)}")
            a(f"s_mul_i32 {s(S_WO)}, {s(S_WB)}, {16*F*2}\ns_lshl_b32 {s(S_T0)}, {s(S_FB0)}, 6\ns_add_u32 {s(S_WO)}, {s(S_WO)}, {s(S_T0)}")
            a(f"s_cmp_eq_u32 {s(S_NBLK)}, 3\ns_cselect_b32 {s(S_WO2)}, {s(S_WO)}, {OOB:#x}")
            a(f"s_lshl_b32 {s(S_M0)}, {s(S_WB)}, 10")
    if part & 2:
        a(f"s_lshl_b32 {s(S_TI)}, {s(S_MI)}, 4\ns_add_u32 {s(S_TI)}, {s(S_TI)}, {s(S_NI)}")
        if opt("MTL", 1):
            a.c("GEMM2 tile mt = 16*(x&1) + 4*(x>>1) + (j&3), nt = j>>2")
            a(f"s_and_b32 {s(S_T0)}, s2, 1\ns_lshl_b32 {s(S_T0)}, {s(S_T0)}, 4\ns_and_b32 {s(S_T1)}, s2, 6\ns_lshl_b32 {s(S_T1)}, {s(S_T1)}, 1\ns_add_u32 {s(S_T0)}, {s(S_T0)}, {s(S_T1)}")
            a(f"s_bfe_u32 {s(S_T1)}, s2, 0x20003\ns_add_u32 {s(S_MT)}, {s(S_T0)}, {s(S_T1)}")
        else:
            a.c("GEMM2 tile mt = 4*x + (j&3), nt = j>>2")
            a(f"s_and_b32 {s(S_T0)}, s2, 7\ns_lshl_b32 {s(S_T0)}, {s(S_T0)}, 2\ns_bfe_u32 {s(S_T1)}, s2, 0x20003\ns_add_u32 {s(S_MT)}, {s(S_T0)}, {s(S_T1)}")
        a(f"s_lshr_b32 {s(S_NT)}, s2, 5\ns_mov_b32 {s(S_SPIN)}, 0")
    if bar:
        a(f"s_mov_b32 {s(S_UH)}, 0\nv_lshlrev_b32 v4, 4, v0\nv_mov_b32 {v(C_CNT)}, {L_CNT}\nv_mov_b32 {v(C_ONE)}, 1\ns_mov_b32 {s(S_C)}, 0xffff0000")
    if part & 1:
        a("s_waitcnt lgkmcnt(0)")
    if bar is True:
        a("s_barrier")


VB_X, VB_W = 14, 15
C_CNT, C_ONE = 252, 253


def poll(a, vaddr, vtmp):
    top, done = a.label("poll"), a.label("poll_ok")
    a(f"s_mov_b32 {s(S_SPIN)}, 0")
    a(f"{top}:")
    a(f"buffer_load_dword {v(vtmp)}, {v(vaddr)}, {s(R_WS,4)}, 0 offen sc1")
    a("s_waitcnt vmcnt(0)")
    a(f"v_cmp_ne_u32 vcc, {s(S_NON)}, {v(vtmp)}")
    a(f"s_cbranch_vccz {done}")
    a(f"s_sleep {opt('PSG' if vaddr == G_FL else 'PSY', 4)}")
    a(f"s_add_u32 {s(S_SPIN)}, {s(S_SPIN)}, 1\ns_cmp_lt_u32 {s(S_SPIN)}, {SPIN_MAX}\ns_cbranch_scc1 {top}")
    a(f"{done}:")


def poll2_issue(a, vaddr, vt):
    a(f"buffer_load_dwordx2 {v(vt,2)}, {v(vaddr)}, {s(R_WS,4)}, 0 offen sc1")


def poll2_check(a, vaddr, vt):
    top, done = a.label("poll"), a.label("poll_ok")
    a(f"s_mov_b32 {s(S_SPIN)}, 0")
    a(f"{top}:")
    a(f"v_cmp_ne_u32 vcc, {s(S_NON)}, {v(vt)}\nv_cmp_ne_u32 {s(S_EX,2)}, {s(S_NON)}, {v(vt+1)}")
    a(f"s_nop 0\ns_or_b64 vcc, vcc, {s(S_EX,2)}")
    a(f"s_cbranch_scc0 {done}")
    a(f"s_add_u32 {s(S_SPIN)}, {s(S_SPIN)}, 1\ns_cmp_ge_u32 {s(S_SPIN)}, {SPIN_MAX}\ns_cbranch_scc1 {done}")
    a(f"s_sleep {opt('PS2', 1)}")
    poll2_issue(a, vaddr, vt)
    a(f"s_waitcnt vmcnt(0)\ns_branch {top}")
    a(f"{done}:")


class VQ:
    def __init__(self, a):
        self.a, self.q = a, []
    def add(self, tag, n):
        self.q += [tag] * n
    def count(self, *tags):
        last = max((i for i, x in enumerate(self.q) if x in tags), default=-1)
        n = len(self.q) - 1 - last
        assert n <= 63
        return n
    def wait(self, *tags):
        self.a(f"s_waitcnt vmcnt({self.count(*tags)})")


def flag_store(a, soff, vt0, vt1):
    a(f"v_mov_b32 {v(vt0)}, {s(S_NON)}\nv_mov_b32 {v(vt1)}, 0")
    a("s_mov_b64 exec, 1")
    a(f"buffer_store_dword {v(vt0)}, {v(vt1)}, {s(R_WS,4)}, {s(soff)} offen sc1")
    a("s_mov_b64 exec, -1")


def epoch_load(a, vt):
    a(f"v_mov_b32 {v(vt)}, {WS_EP:#x}")
    a(f"buffer_load_dword {v(vt)}, {v(vt)}, {s(R_WS,4)}, 0 offen sc1")


def epoch_take(a, vt):
    a(f"v_readfirstlane_b32 {s(S_NON)}, {v(vt)}")
    a("s_nop 0")
    a(f"s_add_u32 {s(S_NON)}, {s(S_NON)}, {NONCE_INC:#x}")


V_XA0, V_XA1, V_W = 2, 3, 4
V_XC0, V_XC1, V_WC = 7, 8, 9
ACC, F0, F1 = 16, 112, 152
G_ACC, G_WF, G_H = 176, 16, 80
G_L16, G_WD, G_TR, G_TR0, G_TR5, G_FL = 240, 241, 242, 246, 250, 254
NHB, NWF, NSTEP = 6, 4, 11
G_HT = 255


def acc(u, mat, sb):
    return ACC + ((u * 2 + mat) * 4 + sb) * 4


def g1_reads(fr, step, units):
    out = []
    for u in units:
        if u == 'x':
            for sb in range(4):
                out.append(f"ds_read_b128 {v(fr+4*sb,4)}, {v(V_XC1 if step else V_XC0)} offset:{sb*2048}")
            continue
        for mat in range(2):
            r = fr + 16 + (u * 2 + mat) * 4
            for t in range(2):
                out.append(f"ds_read_b64_tr_b16 {v(r+2*t,2)}, {v(V_WC+u)} offset:{mat*12288+step*2048+t*256}")
    return out


def g1_mfmas(fr, units):
    out = []
    for u in units:
        for mat in range(2):
            for sb in range(4):
                c = acc(u, mat, sb)
                out.append(f"v_mfma_f32_16x16x32_bf16 {v(c,4)}, {v(fr+16+(u*2+mat)*4,4)}, {v(fr+4*sb,4)}, {v(c,4)}")
    return out


V_LW, V_FC, V_FL = 12, 13, 192


COLD = Asm()


def g1_step_a(a):
    rd = g1_reads(F1, 1, ['x', 0, 1, 2])
    for i, m in enumerate(g1_mfmas(F0, [0, 1])):
        if i == 0:
            a("s_waitcnt lgkmcnt(8)")
        if i == 8:
            a("s_waitcnt lgkmcnt(12)")
            a(f"ds_read_b32 {v(V_FL)}, {v(V_FL+1)} offset:{W_FULL}")
        a(rd[i])
        a(m)
    a(f"ds_write_b32 {v(V_FL+2)}, {v(V_FC)}")
    lab = a.label("g1_skip")
    a(f"s_cbranch_vccnz {lab}")
    a("s_waitcnt lgkmcnt(15)")
    for l in g1_mfmas(F0, [2]):
        a(l)
    a(f"{lab}:")


def g1_step_b(a):
    mf = g1_mfmas(F1, [0, 1])
    rd = g1_reads(F0, 0, ['x', 0, 1, 2])
    slow, lab, lab2 = a.label("g1_slow"), a.label("g1_skip"), a.label("g1_skip")
    a("s_waitcnt lgkmcnt(9)")
    a(mf[0])
    a(f"v_add_u32 {v(V_XC0)}, {s(S_SLOT)}, {v(V_XA0)}")
    a(mf[1])
    a(f"v_readfirstlane_b32 {s(S_T0)}, {v(V_FL)}")
    a(f"v_add_u32 {v(V_WC)}, {s(S_SLOT)}, {v(V_W)}")
    a(mf[2])
    extra = [f"v_add_u32 {v(V_WC+1)}, {s(S_SLOT)}, {v(V_W+1)}", f"v_add_u32 {v(V_WC+2)}, {s(S_SLOT)}, {v(V_W+2)}",
             f"v_add_u32 {v(V_XC1)}, {s(S_SLOT)}, {v(V_XA1)}", f"v_add_u32 {v(V_FC)}, 1, {v(V_FC)}"]
    flip = f"v_xor_b32 {v(V_FL+1)}, 4, {v(V_FL+1)}"
    a(f"s_cmp_lt_u32 {s(S_T0)}, {s(S_T2)}\ns_cbranch_scc1 {slow}")
    r, e = list(rd), extra + [flip]
    for i, m in enumerate(mf[3:]):
        if i == 5:
            a("s_waitcnt lgkmcnt(13)")
        a(r.pop(0))
        if i < 3:
            a(r.pop(0))
        if e:
            a(e.pop(0))
        a(m)
    assert not r
    a(f"s_cbranch_vccnz {lab}")
    a("s_waitcnt lgkmcnt(15)")
    for l in g1_mfmas(F1, [2]):
        a(l)
    a(f"{lab}:")
    if ITST:
        it_issue(a)
        a("s_waitcnt lgkmcnt(0)")
        it_take(a, 16)
    a(f"s_cmp_lt_u32 {s(S_IT)}, 8")
    a("s_cbranch_scc1 g1_loop")
    main, a = a, COLD
    a.nlabel = main.nlabel + 5000
    a.c("next chunk not in yet: finish this one first")
    a(f"{slow}:")
    a("s_waitcnt lgkmcnt(0)")
    for l in interleave(mf[3:], extra, 0, 1):
        a(l)
    a(f"s_cbranch_vccnz {lab2}")
    for l in g1_mfmas(F1, [2]):
        a(l)
    a(f"{lab2}:")
    lds_min_wait(a, V_FL+1, W_FULL, 1, s(S_T2), V_FL)
    if ITST:
        it_issue(a)
        a("s_waitcnt lgkmcnt(0)")
        it_take(a, 32)
    for l in rd:
        a(l)
    a(flip)
    a("s_branch g1_loop")


def dma_chunk0(a):
    for i in range(4):
        a(f"s_add_u32 m0, {s(S_M0)}, {i*4096}")
        a(f"s_add_u32 {s(S_XO)}, {s(S_XO)}, 32768" if i else "s_nop 0")
        a(f"buffer_load_dwordx4 {v(VB_X)}, {s(R_X,4)}, {s(S_XO)} offen {CFX} lds")
    for blk in range(3):
        for mat in range(2):
            a(f"s_add_u32 m0, {s(S_M0)}, {16384 + (mat*3+blk)*4096 - 64*blk}")
            a("s_nop 0")
            a(f"buffer_load_dwordx4 {v(VB_W)}, {s(R_WU if mat else R_WG,4)}, {s(S_WO2 if blk == 2 else S_WO)} offen offset:{64*blk} {CFW} lds")


def spf(a, srd, sbase, offs):
    for o in offs:
        a(f"s_buffer_load_dword {s(S_DUM)}, {s(srd,4)}, {s(sbase)} offset:{o:#x}")


def lds_min_wait(a, vaddr, off, n, target, vt, nap=None):
    lab = a.label("lw")
    a(f"{lab}:")
    a(f"ds_read_b{32*n} {v(vt,n)}, {v(vaddr)} offset:{off}")
    a("s_waitcnt lgkmcnt(0)")
    if n == 4:
        a(f"v_min3_u32 {v(vt)}, {v(vt)}, {v(vt+1)}, {v(vt+2)}\nv_min_u32 {v(vt)}, {v(vt)}, {v(vt+3)}")
    elif n == 2:
        a(f"v_min_u32 {v(vt)}, {v(vt)}, {v(vt+1)}")
    a("s_nop 0")
    a(f"v_readfirstlane_b32 {s(S_T0)}, {v(vt)}")
    a("s_nop 0")
    done = a.label("lw_ok")
    a(f"s_cmp_ge_u32 {s(S_T0)}, {target}\ns_cbranch_scc1 {done}")
    if nap is None:
        nap = opt("NAP", 1) if vaddr == C_CNT else 0
    if nap:
        a(f"s_sleep {nap}")
    a(f"s_add_u32 {s(S_SPIN)}, {s(S_SPIN)}, 1\ns_cmp_lt_u32 {s(S_SPIN)}, {LSPIN_MAX}\ns_cbranch_scc1 {lab}")
    a(f"{done}:")


def lds_inc(a, vaddr, vone, off):
    a(f"s_mov_b64 exec, 1\nds_add_u32 {v(vaddr)}, {v(vone)} offset:{off}\ns_mov_b64 exec, -1")


WDE = opt("WDE", 0)


def wd_setup(a, first, S_WB=S_WB):
    a.c("Wd DMA lane offset: (l>>3)*1024 + ((l&7) ^ (((l>>4)&3)<<1))*16")
    a(f"v_lshrrev_b32 v12, 4, v0\nv_lshlrev_b32 v13, 1, v12\nv_and_b32 v14, 7, v0\nv_xor_b32 v13, v13, v14\nv_lshlrev_b32 v13, 4, v13\nv_lshrrev_b32 v14, 3, v0\nv_lshl_add_u32 {v(G_WD)}, v14, 10, v13")
    a(f"s_lshl_b32 {s(S_KC)}, {s(S_WB)}, 12")
    a(f"s_lshl_b32 {s(S_RA)}, {s(S_WB)}, 13\ns_add_u32 {s(S_RB)}, {s(S_RA)}, {131072 + 16384}\ns_add_u32 {s(S_RA)}, {s(S_RA)}, 131072\ns_cmp_eq_u32 {s(S_WB)}, 0\ns_cselect_b32 {s(S_RA)}, {L_RA0}, {s(S_RA)}")
    if opt("ROT", 1):
        a(f"s_and_b32 {s(S_T0)}, {s(S_MT)}, 3\ns_mul_i32 {s(S_T0)}, {s(S_T0)}, 3\ns_mul_i32 {s(S_T1)}, {s(S_NT)}, 7\ns_add_u32 {s(S_T0)}, {s(S_T0)}, {s(S_T1)}")
        a(f"s_mul_i32 {s(S_T1)}, {s(S_T0)}, 187\ns_lshr_b32 {s(S_T1)}, {s(S_T1)}, 11\ns_mul_i32 {s(S_T1)}, {s(S_T1)}, 11\ns_sub_u32 {s(S_T0)}, {s(S_T0)}, {s(S_T1)}")
    else:
        a(f"s_mov_b32 {s(S_T0)}, 0")
    a(f"s_add_u32 {s(S_DK)}, {s(S_T0)}, {first}\ns_sub_u32 {s(S_T1)}, {s(S_DK)}, 11\ns_cmp_ge_u32 {s(S_DK)}, 11\ns_cselect_b32 {s(S_DK)}, {s(S_T1)}, {s(S_DK)}")
    a(f"s_mul_i32 {s(S_DO)}, {s(S_WB)}, {NSTEP*32768}\ns_lshl_b32 {s(S_T1)}, {s(S_NT)}, 7\ns_add_u32 {s(S_DO)}, {s(S_DO)}, {s(S_T1)}")


def g2_setup(a):
    a(f"v_lshlrev_b32 {v(G_L16)}, 4, v0")
    wd_setup(a, NRW)
    a(f"s_mov_b32 {s(S_HK)}, {s(S_T0)}")
    a(f"s_cmp_eq_u32 {s(S_WAVE)}, 3\ns_cselect_b32 {s(S_KEND)}, 10, 99")
    a.c("tr address: w*4096 + (l>>2)*128 + ((db ^ ((l>>3)&3))*32) + (l&3)*8")
    a(f"v_lshrrev_b32 v13, 2, v0\nv_lshlrev_b32 v13, 7, v13\nv_and_b32 v15, 3, v0\nv_lshl_add_u32 v13, v15, 3, v13\nv_add_u32 v13, {s(S_KC)}, v13\nv_and_b32 v14, 3, v14")
    a(f"s_sub_u32 {s(S_T1)}, {s(S_RA)}, {s(S_KC)}")
    for db in range(4):
        a(f"v_xor_b32 v15, {db}, v14\nv_lshl_add_u32 {v(G_TR+db)}, v15, 5, v13\nv_add_u32 {v(G_TR0+db)}, {s(S_T1)}, {v(G_TR+db)}\nv_add_u32 {v(G_TR5+db)}, 0x10000, {v(G_TR+db)}")
    a(f"s_mul_i32 {s(S_HO)}, {s(S_MT)}, {2*NU*1024}\ns_mul_i32 {s(S_T0)}, {s(S_WAVE)}, {NSTEP*2048}\ns_add_u32 {s(S_HO)}, {s(S_HO)}, {s(S_T0)}")
    a.c("H flags this wave needs: F3[mt*32 + 8w + (l&7)]")
    a(f"s_lshl_b32 {s(S_T0)}, {s(S_MT)}, 2\ns_add_u32 {s(S_T0)}, {s(S_T0)}, {s(S_WAVE)}\ns_lshl_b32 {s(S_T0)}, {s(S_T0)}, 10\ns_add_u32 {s(S_T0)}, {s(S_T0)}, {WS_F3:#x}")
    if not opt("HT", 0):
        a(f"v_and_b32 v12, 7, v0\nv_lshlrev_b32 v12, 7, v12\nv_add_u32 {v(G_FL)}, {s(S_T0)}, v12")
        return
    a.c("lane (U = l>>1, p = l&1) watches the producer of unit U and pulls line nt of that unit into L2")
    a(f"s_cmp_eq_u32 {s(S_WAVE)}, 3\ns_cselect_b32 {s(S_T1)}, 2, 3\ns_cselect_b32 {s(S_T2)}, 19, 21")
    a(f"v_lshrrev_b32 v12, 1, v0\nv_min_u32 v12, {s(S_T2)}, v12\nv_mul_u32_u24 v13, 0x56, v12\nv_lshrrev_b32 v13, 8, v13")
    a(f"v_and_b32 v15, 1, v0\nv_mul_u32_u24 v15, {NU}, v15\nv_add_u32 v15, v15, v12\nv_lshlrev_b32 v15, 10, v15\ns_lshl_b32 {s(S_T2)}, {s(S_NT)}, 7\nv_add_u32 {v(G_HT)}, {s(S_T2)}, v15")
    a(f"v_lshrrev_b32 v12, 1, v12\nv_subrev_u32 v12, {s(S_T1)}, v12")
    a(f"v_max_i32 v12, v12, v13\nv_lshlrev_b32 v12, 7, v12\nv_add_u32 {v(G_FL)}, {s(S_T0)}, v12")


def g1_compute(a):
    a(f"s_setprio {opt('PRA', 3)}")
    if opt("TOUCH", 0):
        l1, l2 = a.label("tc"), a.label("tc")
        a(f"s_mov_b32 {s(R_K+3)}, 0x20000")
        a(f"s_cmp_ge_u32 {s(S_WAVE)}, 2\ns_cbranch_scc1 {l1}")
        a(f"s_lshl_b32 {s(S_T2)}, {s(S_WAVE)}, 8\ns_add_u32 {s(R_K)}, {s(R_X)}, {s(S_T2)}\ns_addc_u32 {s(R_K+1)}, {s(R_X+1)}, 0\ns_mov_b32 {s(R_K+2)}, {S*D*2 - 256:#x}")
        RX0 = R_X
        globals()["R_X"] = R_K
        touch_x(a, (0, 4) if opt("TOUCH", 0) == 2 else (0,), 1)
        globals()["R_X"] = RX0
        a(f"s_branch {l2}\n{l1}:")
        a(f"s_cmp_eq_u32 {s(S_WAVE)}, 2\ns_cselect_b64 {s(R_K,2)}, {s(R_WG,2)}, {s(R_WU,2)}\ns_mov_b32 {s(R_K+2)}, {D*F*2:#x}")
        touch_w(a, 0, (R_K,), 1)
        a(f"{l2}:")
    dma_chunk0(a)
    a("s_barrier")
    prologue(a, False, 2)
    if opt("SPF", 0):
        a.c("warm the lines the column sums need: rows 32mi + 16*(w&1).. of gate (w<2) or up")
        a(f"s_cmp_lt_u32 {s(S_WAVE)}, 2\ns_cselect_b64 {s(R_K,2)}, {s(R_WG,2)}, {s(R_WU,2)}\ns_mov_b32 {s(R_K+2)}, {D*F*2:#x}")
        a(f"s_lshl_b32 {s(S_T0)}, {s(S_MI)}, 1\ns_and_b32 {s(S_T1)}, {s(S_WAVE)}, 1\ns_add_u32 {s(S_T0)}, {s(S_T0)}, {s(S_T1)}\ns_mul_i32 {s(S_XO)}, {s(S_T0)}, {16*F*2}")
        a(f"s_lshl_b32 {s(S_T1)}, {s(S_FB0)}, 6\ns_add_u32 {s(S_XO)}, {s(S_XO)}, {s(S_T1)}")
        spf(a, R_K, S_XO, [r*F*2 + h*128 for r in range(7) for h in range(2)])
    a(f"s_and_b32 {s(S_SH)}, {s(S_WAVE)}, 1\ns_lshr_b32 {s(S_UH)}, {s(S_WAVE)}, 1")
    a.c("x fragment address: (64*sh + s16)*128 + ((kg ^ ((s16>>1)&7))*16)")
    a("v_and_b32 v10, 15, v0\nv_lshrrev_b32 v11, 4, v0\nv_lshrrev_b32 v12, 1, v10\nv_xor_b32 v12, v12, v11\nv_lshlrev_b32 v12, 4, v12")
    a(f"v_lshl_add_u32 {v(V_XA0)}, v10, 7, v12\ns_lshl_b32 {s(S_T0)}, {s(S_SH)}, 13\nv_add_u32 {v(V_XA0)}, {s(S_T0)}, {v(V_XA0)}")
    a(f"v_xor_b32 {v(V_XA1)}, 64, {v(V_XA0)}")
    a.c("W fragment address: 16384 + blk*4096 + kg*512 + r*64 + ((h^(kg&1))*32) + c*8")
    a("v_lshlrev_b32 v12, 9, v11\nv_bfe_u32 v13, v0, 2, 2\nv_lshl_add_u32 v12, v13, 6, v12\nv_and_b32 v13, 3, v0\nv_lshl_add_u32 v12, v13, 3, v12")
    a("v_and_b32 v13, 1, v11\nv_lshl_add_u32 v12, v13, 5, v12")
    a(f"s_mul_i32 {s(S_T0)}, {s(S_UH)}, {s(S_NBLK)}")
    for u in range(3):
        a(f"s_add_u32 {s(S_T1)}, {s(S_T0)}, {u}\ns_and_b32 {s(S_T2)}, {s(S_T1)}, 1\ns_lshl_b32 {s(S_T2)}, {s(S_T2)}, 5")
        a(f"s_lshr_b32 {s(S_T1)}, {s(S_T1)}, 1\ns_lshl_b32 {s(S_T1)}, {s(S_T1)}, 12\ns_add_u32 {s(S_T1)}, {s(S_T1)}, 16384")
        a(f"v_xor_b32 {v(V_W+u)}, {s(S_T2)}, v12\nv_add_u32 {v(V_W+u)}, {s(S_T1)}, {v(V_W+u)}")
    g2_setup(a)
    ep_setup(a)
    for i in range(48):
        a(f"v_pk_mov_b32 {v(ACC+2*i,2)}, 0, 0")
    for i in range(5):
        a(f"v_mov_b32 {v(V_XC0+i)}, {v(V_XA0+i)}")
    a(f"s_mov_b32 {s(S_IT)}, 0\ns_mov_b32 {s(S_SLOT)}, 0")
    a(f"v_mov_b32 {v(V_LW)}, {L_CNT}\nv_mov_b32 {v(V_FL+1)}, {L_CNT}\nv_mov_b32 {v(V_FC)}, 1\ns_lshl_b32 {s(S_T0)}, {s(S_WAVE)}, 2\ns_add_u32 {s(S_T0)}, {s(S_T0)}, {L_CNT + W_FREE}\nv_mov_b32 {v(V_FL+2)}, {s(S_T0)}")
    a.c("vcc != 0 marks a two-block tile")
    a(f"s_cmp_eq_u32 {s(S_NBLK)}, 2\ns_cselect_b64 vcc, -1, 0")
    if opt("SPF", 0):
        spf(a, R_K, S_XO, [r*F*2 + h*128 for r in range(7, 16) for h in range(2)])
    stamp(a, 1)
    a("s_waitcnt vmcnt(0)")
    a(f"ds_write_b32 {v(V_FL+2)}, {v(V_FC)} offset:{W_C0 - W_FREE}")
    lds_min_wait(a, V_LW, W_C0, 4, 1, 196)
    stamp(a, 2)
    for l in g1_reads(F0, 0, ['x', 0, 1, 2]):
        a(l)
    a("s_waitcnt lgkmcnt(0)")
    if opt("LAL", 0):
        a(f".p2alignl {opt('LAL', 0)}, 0xbf800000")
    a("g1_loop:")
    a(f"s_add_u32 {s(S_SLOT)}, {s(S_SLOT)}, {SLOT}\ns_cmp_eq_u32 {s(S_SLOT)}, {NSLOT*SLOT}\ns_cselect_b32 {s(S_SLOT)}, 0, {s(S_SLOT)}")
    a(f"s_add_u32 {s(S_IT)}, {s(S_IT)}, 1\ns_and_b32 {s(S_T2)}, {s(S_IT)}, 7")
    g1_step_a(a)
    if ITST:
        it_issue(a)
        a("s_waitcnt lgkmcnt(0)")
        it_take(a, 0)
    g1_step_b(a)
    stamp(a, 3)


def wd_dma(i, rings=1):
    sl = SLOTMAP[i % NRW]
    ops = []
    n = 4 * rings
    for q in range(n):
        pre = f"s_lshl_b32 {s(S_T3)}, {s(S_DK)}, 15\ns_add_u32 {s(S_T3)}, {s(S_T3)}, {s(S_DO)}\n" if q == 0 else ""
        inc = 8192 if q != 4 else 2*NSTEP*32768 - 3*8192
        mid = "s_nop 0" if q == 0 else f"s_add_u32 {s(S_T3)}, {s(S_T3)}, {inc}"
        post = f"\ns_add_u32 {s(S_DK)}, {s(S_DK)}, 1\ns_cmp_eq_u32 {s(S_DK)}, 11\ns_cselect_b32 {s(S_DK)}, 0, {s(S_DK)}" if q == n - 1 else ""
        m0 = f"{s(S_RB if q >> 2 else S_RA)}, {sl*4096 + (q&3)*1024}" if sl < 2 else f"{s(S_KC)}, {(sl-2)*16384 + (q&3)*1024 + (q>>2)*8192}"
        ops.append(pre + f"s_add_u32 m0, {m0}\n{mid}\n"
                   f"buffer_load_dwordx4 {v(G_WD)}, {s(R_WD,4)}, {s(S_T3)} offen {CFD} lds" + post)
    return ops


def h_loads(i):
    hb = G_H + (i % NHB) * 16
    pre = (f"s_lshl_b32 {s(S_T1)}, {s(S_HK)}, 11\ns_add_u32 {s(S_T1)}, {s(S_T1)}, {s(S_HO)}\n"
           f"s_cmp_eq_u32 {s(S_HK)}, {s(S_KEND)}\ns_cselect_b32 {s(S_T1)}, {OOB:#x}, {s(S_T1)}\n")
    post = f"\ns_add_u32 {s(S_HK)}, {s(S_HK)}, 1\ns_cmp_eq_u32 {s(S_HK)}, 11\ns_cselect_b32 {s(S_HK)}, 0, {s(S_HK)}"
    ld = lambda r, off: f"buffer_load_dwordx4 {v(r,4)}, {v(G_L16)}, {s(R_WS,4)}, {s(S_T1)} offen offset:{off} sc1"
    return [pre + ld(hb, 0), ld(hb+4, 1024), f"s_add_u32 {s(S_T1)}, {s(S_T1)}, {NU*1024}\n" + ld(hb+8, 0), ld(hb+12, 1024) + post]


S_H0, S_H1 = S_XO, S_WO
E_A, E_ST = 208, 144


def ep_setup(a):
    a.c("epilogue addresses: row constants, column sums; HF offset = ((4*mi + 2*sh + pp)*86 + 2*fb0 + uu)*1024 + lane*16")
    a(f"v_and_b32 v10, 15, v0\nv_lshlrev_b32 v10, 4, v10\ns_lshl_b32 {s(S_T0)}, {s(S_SH)}, 10\ns_add_u32 {s(S_T0)}, {s(S_T0)}, {L_ST}\nv_add_u32 {v(E_A)}, {s(S_T0)}, v10")
    a(f"s_mul_i32 {s(S_T1)}, {s(S_UH)}, {s(S_NBLK)}\ns_lshl_b32 {s(S_T0)}, {s(S_T1)}, 6\ns_add_u32 {s(S_T0)}, {s(S_T0)}, {L_CS}")
    a(f"v_and_b32 v11, 48, v0\nv_add_u32 {v(E_A+1)}, {s(S_T0)}, v11")
    a(f"s_lshl_b32 {s(S_T0)}, {s(S_MI)}, 1\ns_add_u32 {s(S_T0)}, {s(S_T0)}, {s(S_SH)}\ns_mul_i32 {s(S_T0)}, {s(S_T0)}, {2*NU}")
    a(f"s_lshl_b32 {s(S_T2)}, {s(S_FB0)}, 1\ns_add_u32 {s(S_T0)}, {s(S_T0)}, {s(S_T2)}\ns_add_u32 {s(S_T0)}, {s(S_T0)}, {s(S_T1)}\ns_lshl_b32 {s(S_H0)}, {s(S_T0)}, 10")
    a(f"s_add_u32 {s(S_H1)}, {s(S_H0)}, {NU*1024}")
    a(f"s_lshl_b32 {s(S_T0)}, {s(S_SH)}, 2\ns_add_u32 {s(S_T0)}, {s(S_T0)}, {L_CNT}\nv_mov_b32 v15, {s(S_T0)}")


def g1_epilogue(a):
    VST, VCS, T = 112, 216, 168
    top, ok = a.label("ga"), a.label("ga_ok")
    a(f"{top}:")
    a(f"ds_read_b32 v14, {v(V_LW)} offset:{W_GATH}")
    for sb in range(4):
        a(f"ds_read_b128 {v(E_ST+4*sb,4)}, {v(E_A)} offset:{sb*256}")
    for u in range(3):
        for mat in range(2):
            a(f"ds_read_b128 {v(VCS+4*(u*2+mat),4)}, {v(E_A+1)} offset:{mat*512+u*64}")
    a(f"ds_read_b32 v1, {v(V_LW)} offset:{W_NON}")
    a(f"v_mov_b32 v13, 1\ns_waitcnt lgkmcnt(7)\nv_readfirstlane_b32 {s(S_T0)}, v14")
    for i in range(4):
        a(f"v_mov_b32 {v(VST+2*i)}, {v(E_ST+i)}\nv_mov_b32 {v(VST+2*i+1)}, {v(E_ST+i)}")
    a(f"s_cmp_ge_u32 {s(S_T0)}, 2\ns_cbranch_scc1 {ok}")
    a(f"s_add_u32 {s(S_SPIN)}, {s(S_SPIN)}, 1\ns_cmp_lt_u32 {s(S_SPIN)}, {LSPIN_MAX}\ns_cbranch_scc1 {top}")
    a(f"{ok}:")
    stamp(a, 4)
    for i in range(4, 16):
        a(f"v_mov_b32 {v(VST+2*i)}, {v(E_ST+i)}\nv_mov_b32 {v(VST+2*i+1)}, {v(E_ST+i)}")
    a("s_waitcnt lgkmcnt(0)")
    a(f"v_readfirstlane_b32 {s(S_NON)}, v1")
    lab, lab2 = a.label("ep_two"), a.label("ep_done")
    if opt("EPST", 0): stamp(a, 3)

    def group(u, pp):
        out = []
        o = T + 32 + 4 * pp
        pairs = [(2*pp + (q >> 1), q & 1, T + 8*q) for q in range(4)]
        def each(f):
            for sb, h, t in pairs:
                g, up, st = acc(u, 0, sb) + 2*h, acc(u, 1, sb) + 2*h, VST + 8*sb
                cg, cu = VCS + 4*(u*2) + 2*h, VCS + 4*(u*2+1) + 2*h
                out.append(f(g, up, st, cg, cu, t))
        each(lambda g, up, st, cg, cu, t: f"v_pk_fma_f32 {v(g,2)}, {v(cg,2)}, {v(st,2)}, {v(g,2)} neg_lo:[0,1,0] neg_hi:[0,1,0]")
        each(lambda g, up, st, cg, cu, t: f"v_pk_mul_f32 {v(t,2)}, {v(g,2)}, {v(g,2)}")
        each(lambda g, up, st, cg, cu, t: f"v_pk_fma_f32 {v(t,2)}, {v(t,2)}, {v(st+4,2)}, {v(st+2,2)}")
        each(lambda g, up, st, cg, cu, t: f"v_pk_mul_f32 {v(t,2)}, {v(t,2)}, {v(g,2)}")
        each(lambda g, up, st, cg, cu, t: f"v_exp_f32 {v(t)}, {v(t)}\nv_exp_f32 {v(t+1)}, {v(t+1)}")
        each(lambda g, up, st, cg, cu, t: f"v_pk_fma_f32 {v(up,2)}, {v(cu,2)}, {v(st,2)}, {v(up,2)} neg_lo:[0,1,0] neg_hi:[0,1,0]")
        each(lambda g, up, st, cg, cu, t: f"v_pk_fma_f32 {v(t,2)}, {v(t,2)}, {v(st+6,2)}, {v(st+6,2)}")
        each(lambda g, up, st, cg, cu, t: f"v_rcp_f32 {v(t)}, {v(t)}\nv_rcp_f32 {v(t+1)}, {v(t+1)}")
        each(lambda g, up, st, cg, cu, t: f"v_pk_mul_f32 {v(g,2)}, {v(g,2)}, {v(up,2)}")
        each(lambda g, up, st, cg, cu, t: f"v_pk_mul_f32 {v(t,2)}, {v(t,2)}, {v(g,2)}")
        for q, (sb, h, t) in enumerate(pairs):
            out.append(f"v_cvt_pk_bf16_f32 {v(o+q)}, {v(t)}, {v(t+1)}")
        if not opt("NOST", 0):
            out.append(f"buffer_store_dwordx4 {v(o,4)}, {v(G_L16)}, {s(R_WS,4)}, {s(S_H1 if pp else S_H0)} offen offset:{u*1024} {'sc1' if not opt('PLST', 0) else ''}")
        return out

    def stage_flag(n, W_WD=W_WD):
        ok = a.label("wd_ok")
        a(f"s_waitcnt lgkmcnt(0)\nv_readfirstlane_b32 {s(S_T0)}, v14\ns_nop 0\ns_cmp_ge_u32 {s(S_T0)}, {n}\ns_cbranch_scc1 {ok}")
        lds_min_wait(a, 15, W_WD, 1, n, 14)
        a(f"{ok}:")

    rd_flag = f"ds_read_b32 v14, v15 offset:{W_WD}"
    a.c("as a unit's accumulators retire they take two Wd steps; the freed ring slots are refilled")
    for l in group(0, 0) + [f"ds_read_b32 v14, v15 offset:{W_WE if WDE else W_WD}"] + group(0, 1):
        a(l)
    if opt("EPST", 0): stamp(a, 1)
    if not opt("NOTR", 0):
        stage_flag(1, W_WE if WDE else W_WD)
    if opt("EPST", 0): stamp(a, 2)
    for l in interleave(group(1, 0), [] if opt("NOTR", 0) else g2_tr(0) + g2_tr(1), 0, 2):
        a(l)
    a(rd_flag)
    for l in group(1, 1):
        a(l)
    a(f"s_cbranch_vccnz {lab}")
    for l in group(2, 0) + [rd_flag] + group(2, 1):
        a(l)
    a(f"{lab}:")
    a.c("release the conv waves")
    if not opt("CEARLY", 0):
        a("s_mov_b64 exec, 1\nds_add_u32 v12, v13\ns_mov_b64 exec, -1")
    stamp(a, 5)
    a.c("publish: F3[(2mi + sh)*32 + ni*2 + uh]")
    a(f"s_lshl_b32 {s(S_T0)}, {s(S_MI)}, 1\ns_add_u32 {s(S_T0)}, {s(S_T0)}, {s(S_SH)}\ns_lshl_b32 {s(S_T0)}, {s(S_T0)}, 4\ns_add_u32 {s(S_T0)}, {s(S_T0)}, {s(S_NI)}")
    a(f"s_lshl_b32 {s(S_T0)}, {s(S_T0)}, 1\ns_add_u32 {s(S_T0)}, {s(S_T0)}, {s(S_UH)}\ns_lshl_b32 {s(S_T0)}, {s(S_T0)}, 7\ns_add_u32 {s(S_T2)}, {s(S_T0)}, {WS_F3:#x}")
    a("s_waitcnt lgkmcnt(0)")
    for l in wd_dma(7) + wd_dma(8):
        a(l)
    a("s_waitcnt vmcnt(8)")
    flag_store(a, S_T2, 10, 11)
    stamp(a, 6)
    stage_flag(2)
    for l in g2_tr(2) + g2_tr(3):
        a(l)
    a("s_waitcnt lgkmcnt(0)")
    for l in wd_dma(9) + wd_dma(10):
        a(l)


def g2_tr(i):
    wf = G_WF + (i % NWF) * 16
    sl = SLOTMAP[i % NRW]
    base, off = (G_TR0, sl*4096) if sl < 2 else (G_TR5, 0) if sl == 6 else (G_TR, (sl-2)*16384)
    return [f"ds_read_b64_tr_b16 {v(wf+4*db+2*t,2)}, {v(base+db)} offset:{off + t*2048}" for db in range(4) for t in range(2)]


def g2_swaps(i, p):
    hb = G_H + (i % NHB) * 16
    return [f"v_swap_b32 {v(hb+8*p+2+k)}, {v(hb+8*p+4+k)}" for k in range(2)]


def g2_main(a):
    a(f"s_setprio {opt('PRG', 2)}")
    if opt("HT", 0):
        top, done = a.label("hp"), a.label("hp_ok")
        a(f"s_mov_b32 {s(S_SPIN)}, 0\ns_mov_b32 {s(S_EX)}, -1\ns_mov_b32 {s(S_EX+1)}, 0xfff")
        a(f"{top}:")
        a(f"buffer_load_dword v10, {v(G_FL)}, {s(R_WS,4)}, 0 offen sc1")
        a("s_waitcnt vmcnt(0)")
        a(f"v_cmp_ne_u32 vcc, {s(S_NON)}, v10")
        a(f"s_cbranch_vccz {done}")
        a(f"s_andn2_b64 exec, {s(S_EX,2)}, vcc\ns_and_b64 {s(S_EX,2)}, {s(S_EX,2)}, vcc")
        skip = a.label("hp_s")
        a(f"s_cbranch_execz {skip}")
        a(f"buffer_load_dword v11, {v(G_HT)}, {s(R_WS,4)}, {s(S_HO)} offen sc1")
        a(f"{skip}:")
        a("s_mov_b64 exec, -1\ns_sleep 1")
        a(f"s_add_u32 {s(S_SPIN)}, {s(S_SPIN)}, 1\ns_cmp_lt_u32 {s(S_SPIN)}, {SPIN_MAX}\ns_cbranch_scc1 {top}")
        a(f"{done}:")
    else:
        poll(a, G_FL, 10)
    stamp(a, 7)
    q = VQ(a)
    def hq(i):
        q.add(("h", i, 0), 2); q.add(("h", i, 1), 2)
    for i in range(NHB - 1):
        for op in h_loads(i):
            a(op)
        hq(i)
    lds_min_wait(a, 15, W_WD, 1, 3, 14)
    if opt("G2ST", 0): stamp(a, 1)
    q.wait(("h", 0, 0))
    if opt("G2ST", 0): stamp(a, 2)
    for l in g2_swaps(0, 0):
        a(l)
    a("s_nop 1")
    for i in range(NSTEP):
        if opt("G2ST", 0) and i in (2, 4, 6, 8):
            stamp(a, 2 + i // 2)
        if i == opt("HIS", 5):
            lds_inc(a, V_LW, 13, W_HI)
        wf, hb = G_WF + (i % NWF) * 16, G_H + (i % NHB) * 16
        ld = h_loads(i + NHB - 1) if i + NHB - 1 < NSTEP else []
        tr = g2_tr(i + 2) if NWF <= i + 2 < NSTEP else []
        n = 0
        for p in range(2):
            for db in range(4):
                for sb in (2*p, 2*p + 1):
                    c = G_ACC + (db * 4 + sb) * 4
                    a(f"v_mfma_f32_16x16x32_bf16 {v(c,4)}, {v(wf+4*db,4)}, {v(hb+4*sb,4)}, {v(c,4) if i else 0}")
                    n += 1
                    if n == 4:
                        q.wait(("h", i, 1))
                        for l in g2_swaps(i, 1):
                            a(l)
                    if n in (1, 5, 8, 11) and ld:
                        a(ld.pop(0))
                        q.add(("h", i + NHB - 1, 0 if len(ld) >= 2 else 1), 1)
                    if 5 <= n <= 12 and tr:
                        a(tr.pop(0))
                    if n == 13 and i + 1 < NSTEP:
                        q.wait(("h", i + 1, 0))
                        for l in g2_swaps(i + 1, 0):
                            a(l)
                        if i + 1 >= NWF:
                            a(f"s_waitcnt lgkmcnt({8 if i + 2 < NSTEP else 0})")
    stamp(a, 8)
    a.c("partial tile -> own ring slots 1..4: sb*16384 + w*4096 + s16*256 + ((4db + g) ^ (s16&7))*16")
    a(f"v_and_b32 v8, 15, v0\nv_lshrrev_b32 v9, 4, v0\nv_and_b32 v10, 7, v0\nv_xor_b32 v9, v9, v10\nv_lshlrev_b32 v9, 4, v9\nv_lshl_add_u32 v8, v8, 8, v9\nv_add_u32 v8, {s(S_KC)}, v8\nv_xor_b32 v9, 64, v8")
    a("s_nop 0")
    for db in range(4):
        for sb in range(4):
            a(f"ds_write_b128 {'v9' if db & 1 else 'v8'}, {v(G_ACC+(db*4+sb)*4,4)} offset:{sb*16384 + (db>>1)*128}")
    a("s_waitcnt lgkmcnt(0)")
    stamp(a, 9)
    a("s_barrier")


VB_X2 = 18


def dma_chunk(a):
    a(f"s_add_u32 {s(S_T1)}, {s(S_UH)}, {s(S_IT)}\ns_and_b32 {s(S_T1)}, {s(S_T1)}, 7")
    a(f"s_lshl_b32 {s(S_T0)}, {s(S_T1)}, 7\ns_add_u32 {s(S_T0)}, {s(S_T0)}, {s(S_XO)}")
    a(f"s_mul_i32 {s(S_T1)}, {s(S_T1)}, {64*F*2}\ns_add_u32 {s(S_HO)}, {s(S_WO)}, {s(S_T1)}\ns_add_u32 {s(S_DO)}, {s(S_WO2)}, {s(S_T1)}")
    for i in range(16):
        a(f"s_add_u32 m0, {s(S_SLOT)}, {i*1024}")
        a(f"s_add_u32 {s(S_T0)}, {s(S_T0)}, 8192" if i else "s_nop 0")
        a(f"buffer_load_dwordx4 {v(VB_X2 if i & 1 else VB_X)}, {s(R_X,4)}, {s(S_T0)} offen {CFX} lds")
    for k4 in range(4):
        if ITST and k4 == 0:
            it_issue(a)
            a("s_waitcnt lgkmcnt(0)")
            it_take(a, 40)
        if k4:
            a(f"s_add_u32 {s(S_HO)}, {s(S_HO)}, {16*F*2}\ns_add_u32 {s(S_DO)}, {s(S_DO)}, {16*F*2}")
        for blk in range(3):
            for mat in range(2):
                a(f"s_add_u32 m0, {s(S_SLOT)}, {16384 + (mat*3+blk)*4096 + k4*1024 - 64*blk}")
                a("s_nop 0")
                a(f"buffer_load_dwordx4 {v(VB_W)}, {s(R_WU if mat else R_WG,4)}, {s(S_DO if blk == 2 else S_HO)} offen offset:{64*blk} {CFW} lds")


GG = 224


def loader(a):
    a(f"s_setprio {opt('PRL', 2)}")
    a.c("loader w streams chunks 1+w, 3+w, ..")
    a(f"s_lshl_b32 {s(S_XO)}, {s(S_MI)}, 17\ns_lshl_b32 {s(S_WO)}, {s(S_FB0)}, 6")
    a(f"s_cmp_eq_u32 {s(S_NBLK)}, 3\ns_cselect_b32 {s(S_WO2)}, {s(S_WO)}, {OOB:#x}")
    a(f"s_lshl_b32 {s(S_T0)}, {s(S_WB)}, 6\nv_xor_b32 {v(VB_X)}, {s(S_T0)}, {v(VB_X)}\nv_xor_b32 {v(VB_X2)}, 64, {v(VB_X)}")
    a(f"s_add_u32 {s(S_IT)}, {s(S_WB)}, 1\ns_mul_i32 {s(S_SLOT)}, {s(S_IT)}, {SLOT}\ns_mov_b32 {s(S_SH)}, {s(S_WB)}")
    a(f"s_lshl_b32 {s(S_T0)}, {s(S_WB)}, 2\ns_add_u32 {s(S_T0)}, {s(S_T0)}, {L_CNT + W_FULL}\nv_mov_b32 v10, {s(S_T0)}")
    lds_min_wait(a, C_CNT, W_ISS, 1, s(S_WB), 20)
    a("ld_loop:")
    if ITST:
        it_issue(a)
        a("s_waitcnt lgkmcnt(0)")
        it_take(a, 32)
    dma_chunk(a)
    a(f"v_mov_b32 v16, {s(S_IT)}")
    a(f"s_mov_b64 exec, 1\nds_max_u32 {v(C_CNT)}, v16 offset:{W_ISS}\ns_mov_b64 exec, -1")
    if ITST:
        it_issue(a)
        a("s_waitcnt lgkmcnt(0)")
        it_take(a, 0)
    a(f"s_sub_u32 {s(S_SLOT)}, {s(S_SLOT)}, {SLOT}\ns_cselect_b32 {s(S_SLOT)}, {2*SLOT}, {s(S_SLOT)}")
    a(f"s_cmp_ge_u32 {s(S_IT)}, 6\ns_cbranch_scc1 ld_done")
    a("s_waitcnt vmcnt(0)")
    a("ds_write_b32 v10, v16")
    if ITST:
        it_issue(a)
        a("s_waitcnt lgkmcnt(0)")
        it_take(a, 16)
    lds_min_wait(a, C_CNT, W_FREE, 4, s(S_IT), 20)
    if ITST:
        it_issue(a)
        a("s_waitcnt lgkmcnt(0)")
        it_take(a, 48)
    a(f"s_add_u32 {s(S_IT)}, {s(S_IT)}, 2")
    a("s_branch ld_loop")
    a("ld_done:")
    lstamp(a, 1)
    wd_setup(a, 2 if WDE else 0)
    a(f"s_lshl_b32 {s(S_T0)}, {s(S_WB)}, 2\nv_add_u32 v11, {s(S_T0)}, {v(C_CNT)}\nv_mov_b32 v17, 2")
    a("s_waitcnt vmcnt(0)")
    a("ds_write_b32 v10, v16")
    if KVL:
        return loader_late(a)
    lds_min_wait(a, C_CNT, W_ISS, 1, 7, 20)
    lds_min_wait(a, C_CNT, W_HP, 1, 2, 20)
    if not WDE:
        for op in wd_dma(0, 2) + wd_dma(1, 2):
            a(op)
    lstamp(a, 2)
    lds_min_wait(a, C_CNT, W_FREE, 4, 7, 20)
    for i in (2, 3):
        for op in wd_dma(i, 2):
            a(op)
    a("s_waitcnt vmcnt(16)")
    a(f"ds_write_b32 v11, {v(C_ONE)} offset:{W_WD}")
    lstamp(a, 3)
    lds_min_wait(a, C_CNT, W_FREE, 4, 8, 20)
    TH = opt("WDTH", 8)
    n = 0
    for i in (4, 5, 6):
        for op in wd_dma(i, 2):
            if not opt("NOWD", 0):
                a(op)
            n += 1
            if n % 4 == 0 and (TH or n == 8):
                a(f"s_waitcnt vmcnt({min(TH, n) if TH else 8})")
            if n == 8:
                a(f"ds_write_b32 v11, v17 offset:{W_WD}")
    a(f"ds_read_b32 v1, {v(C_CNT)} offset:{W_NON}")
    final_loads(a)
    a("s_waitcnt lgkmcnt(0)")
    a(f"v_readfirstlane_b32 {s(S_NON)}, v1")


def loader_late(a):
    lds_min_wait(a, C_CNT, W_FREE, 4, 7, 20)
    for op in wd_dma(0, 2) + wd_dma(1, 2):
        a(op)
    lstamp(a, 2)
    lds_min_wait(a, C_CNT, W_FREE, 4, 8, 20)
    for op in wd_dma(2, 2):
        a(op)
    a("s_waitcnt vmcnt(8)")
    a(f"ds_write_b32 v11, {v(C_ONE)} offset:{W_WD}")
    for op in wd_dma(3, 2) + wd_dma(4, 2):
        a(op)
    a("s_waitcnt vmcnt(8)")
    a(f"ds_write_b32 v11, v17 offset:{W_WD}")
    lstamp(a, 3)
    lds_min_wait(a, C_CNT, W_HP, 1, 2, 20)
    for op in wd_dma(5, 2) + wd_dma(6, 2):
        a(op)
    a(f"ds_read_b32 v1, {v(C_CNT)} offset:{W_NON}")
    final_loads(a)
    a("v_mov_b32 v17, 3\ns_waitcnt vmcnt(2) lgkmcnt(0)")
    a(f"ds_write_b32 v11, v17 offset:{W_WD}")
    a(f"v_readfirstlane_b32 {s(S_NON)}, v1")


VS, VKV, VSK = 144, 24, 64
ONE = 192


def round_bf16(a, r):
    a(f"v_cvt_pk_bf16_f32 {v(r)}, {v(r)}, {v(r)}\nv_lshlrev_b32 {v(r)}, 16, {v(r)}")


def stats_loads(a):
    a(f"s_lshl_b32 {s(S_T0)}, {s(S_TI)}, 1\ns_add_u32 {s(S_T0)}, {s(S_T0)}, {s(S_SH)}\ns_lshl_b32 {s(S_T0)}, {s(S_T0)}, 12")
    a("v_bfe_u32 v5, v0, 2, 2\nv_lshlrev_b32 v5, 10, v5\nv_and_b32 v6, 3, v0\nv_lshl_add_u32 v5, v6, 4, v5\nv_lshrrev_b32 v6, 4, v0\nv_lshl_add_u32 v5, v6, 6, v5")
    for r in range(4):
        a(f"buffer_load_dwordx4 {v(VS+4*r,4)}, v5, {s(R_X,4)}, {s(S_T0)} offen offset:{r*256} {CFS}")


def stats(a):
    G, O, R = 72, 76, 80
    for r in range(4):
        a(f"v_mfma_f32_16x16x32_bf16 {v(G,4)}, {v(VS+4*r,4)}, {v(VS+4*r,4)}, {v(G,4) if r else 0}")
        a(f"v_mfma_f32_16x16x32_bf16 {v(O,4)}, {v(ONE,4)}, {v(VS+4*r,4)}, {v(O,4) if r else 0}")
    a.c("diagonal element of lane (n, g = n>>2) is register n&3")
    a(f"v_and_b32 v6, 3, v0\nv_cmp_eq_u32 vcc, 1, v6\nv_cmp_eq_u32 {s(S_EX,2)}, 2, v6\nv_cmp_eq_u32 {s(S_XO,2)}, 3, v6")
    a(f"s_lshl_b32 {s(S_T0)}, {s(S_TI)}, 1\ns_add_u32 {s(S_T0)}, {s(S_T0)}, {s(S_SH)}\ns_lshl_b32 {s(S_T0)}, {s(S_T0)}, 6\ns_add_u32 {s(S_T0)}, {s(S_T0)}, {WS_ST:#x}")
    a("v_and_b32 v5, 48, v0\ns_nop 0")
    a(f"v_cndmask_b32 {v(G)}, {v(G)}, {v(G+1)}, vcc\nv_cndmask_b32 {v(G)}, {v(G)}, {v(G+2)}, {s(S_EX,2)}\nv_cndmask_b32 {v(G)}, {v(G)}, {v(G+3)}, {s(S_XO,2)}")
    for qp in ("[1,0,3,2]", "[2,3,0,1]"):
        a("s_nop 0")
        a(f"v_add_f32_dpp {v(O)}, {v(O)}, {v(O)} quad_perm:{qp} row_mask:0xf bank_mask:0xf")
        a(f"v_add_f32_dpp {v(G)}, {v(G)}, {v(G)} quad_perm:{qp} row_mask:0xf bank_mask:0xf")
    M, K1, K2, I2 = R, R + 1, R + 2, R + 3
    a(f"v_mul_f32 {v(M)}, {f32bits(1/512):#x}, {v(O)}\nv_mul_f32 {v(K2)}, {f32bits(1/512):#x}, {v(G)}")
    a(f"v_fma_f32 {v(K2)}, -{v(M)}, {v(M)}, {v(K2)}\nv_max_f32 {v(K2)}, 0, {v(K2)}")
    round_bf16(a, M)
    round_bf16(a, K2)
    a(f"v_add_f32 {v(K2)}, {f32bits(1e-5):#x}, {v(K2)}")
    round_bf16(a, K2)
    a(f"v_sqrt_f32 {v(K2)}, {v(K2)}\ns_nop 0")
    round_bf16(a, K2)
    a(f"v_rcp_f32 {v(K1)}, {v(K2)}\nv_mul_f32 {v(I2)}, {v(K2)}, {v(K2)}")
    a(f"v_mul_f32 {v(K2)}, {v(K1)}, {v(K1)}\nv_mul_f32 {v(K2)}, {v(K2)}, {v(K1)}")
    a(f"v_mul_f32 {v(K2)}, {f32bits(C2):#x}, {v(K2)}\nv_mul_f32 {v(K1)}, {f32bits(C1):#x}, {v(K1)}")
    a.c("row g is complete in lane 20g")
    a(f"s_mov_b32 {s(S_EX)}, 0x00100001\ns_mov_b32 {s(S_EX+1)}, 0x10000100\ns_mov_b64 exec, {s(S_EX,2)}")
    a(f"buffer_store_dwordx4 {v(R,4)}, v5, {s(R_WS,4)}, {s(S_T0)} offen sc1")
    a("s_mov_b64 exec, -1")


L_VST = 155648
NT = os.environ.get("CFK", "nt") + " " if opt("NT", 1) else ""
NTT = " nt" if opt("NTT", 0) else ""


def kv_dma(a):
    a("v_lshrrev_b32 v5, 3, v0\nv_lshlrev_b32 v5, 10, v5\nv_and_b32 v6, 7, v0\nv_lshl_add_u32 v5, v6, 4, v5")
    a(f"v_add_u32 v69, {s(S_DO)}, v5")
    a.c("rows above the start of the sequence are out of range and read as zero")
    a("v_subrev_u32 v7, 0xc00, v69\nv_cmp_gt_u32 vcc, 0xc00, v69\nv_mov_b32 v68, 0x7ff00000\ns_nop 1\nv_cndmask_b32 v7, v7, v68, vcc")
    a(f"s_mul_i32 {s(S_T0)}, {s(S_SH)}, {64*KVT_STR}\ns_add_u32 {s(S_T0)}, {s(S_T0)}, {L_KVT}")
    a(f"s_lshl_b32 {s(S_T2)}, {s(S_SH)}, 12\ns_add_u32 {s(S_T2)}, {s(S_T2)}, {L_VST}")
    for i in range(5):
        a(f"s_add_u32 m0, {s(S_T0)}, {1024*i}\ns_mov_b32 {s(S_T1)}, {max(8192*i - 3072, 0)}")
        a(f"buffer_load_dwordx4 {'v69' if i else 'v7'}, {s(R_K,4)}, {s(S_T1)} offen {NT}lds")
    for i in range(4):
        a(f"s_add_u32 m0, {s(S_T2)}, {1024*i}\ns_mov_b32 {s(S_T1)}, {8192*i}")
        a(f"buffer_load_dwordx4 v69, {s(R_V,4)}, {s(S_T1)} offen {NT}lds")
    a("v_and_b32 v6, 31, v0\nv_lshrrev_b32 v5, 5, v0\nv_lshlrev_b32 v5, 10, v5\nv_lshl_add_u32 v5, v6, 2, v5")
    a(f"v_add_u32 v68, {s(S_T0)}, v5\nv_add_u32 v69, {s(S_T2)}, v5")
    a(f"s_and_b32 {s(S_T1)}, {s(S_TI)}, 7\ns_lshl_b32 {s(S_T1)}, {s(S_T1)}, 9\nv_lshlrev_b32 v6, 4, v6")
    a(f"buffer_load_dwordx4 {v(VSK,4)}, v6, {s(R_SK,4)}, {s(S_T1)} offen")


def kv_reads(a):
    for ps in range(2):
        b = VKV + 19 * ps
        for i in range(11):
            a(f"ds_read_b32 {v(b+i)}, v68 offset:{ps*2048 + i*128}")
        for i in range(8):
            a(f"ds_read_b32 {v(b+11+i)}, v69 offset:{ps*2048 + i*128}")


def touch_x(a, p, vd):
    a(f"s_lshl_b32 {s(S_T0)}, {s(S_MI)}, 2\ns_and_b32 {s(S_T1)}, {s(S_NI)}, 3\ns_add_u32 {s(S_T0)}, {s(S_T0)}, {s(S_T1)}\ns_lshl_b32 {s(S_T0)}, {s(S_T0)}, 15")
    a("v_and_b32 v5, 31, v0\nv_lshrrev_b32 v6, 5, v0\nv_lshlrev_b32 v6, 7, v6\nv_lshl_add_u32 v5, v5, 10, v6")
    for q in p:
        a(f"buffer_load_dword {v(vd)}, v5, {s(R_X,4)}, {s(S_T0)} offen offset:{128*q}{NTT}")


def touch_w(a, p, srds, vd):
    a(f"s_and_b32 {s(S_T0)}, {s(S_MI)}, 7\ns_add_u32 {s(S_T0)}, {s(S_T0)}, {8*p}\ns_mul_i32 {s(S_T0)}, {s(S_T0)}, {8*F*2}\ns_lshl_b32 {s(S_T1)}, {s(S_FB0)}, 6\ns_add_u32 {s(S_T0)}, {s(S_T0)}, {s(S_T1)}")
    a(f"s_add_u32 {s(S_T1)}, {s(S_NBLK)}, 4")
    a(f"v_lshrrev_b32 v5, 4, v0\nv_bfe_u32 v6, v0, 1, 3\nv_lshl_add_u32 v5, v5, 6, v6\nv_mul_u32_u24 v5, {F*2}, v5\nv_and_b32 v6, 1, v0\nv_lshl_add_u32 v5, v6, {s(S_T1)}, v5")
    for r in srds:
        a(f"buffer_load_dword {v(vd)}, v5, {s(r,4)}, {s(S_T0)} offen{NTT}")
        if opt("TOUCH", 0) == 2:
            a(f"s_add_u32 {s(S_T0)}, {s(S_T0)}, {256*F*2}")
            a(f"buffer_load_dword {v(vd)}, v5, {s(r,4)}, {s(S_T0)} offen{NTT}")


KU, VU, KW, KO, KT = 72, 94, 110, 120, 128


def kv_taps(a):
    for j in range(4):
        for ch in range(2):
            src = VSK + 2*ch + (j >> 1)
            a(f"v_and_b32 {v(KW+2*j+ch)}, {s(S_C)}, {v(src)}" if j & 1 else f"v_lshlrev_b32 {v(KW+2*j+ch)}, 16, {v(src)}")
    a.c("KVT row = 2*(l&31) + ch, 16-B piece = 3 - (2*pass + l>>5)")
    a(f"v_and_b32 v70, 31, v0\nv_mul_u32_u24 v70, {2*KVT_STR}, v70\nv_lshrrev_b32 v5, 5, v0\nv_lshlrev_b32 v5, 4, v5\nv_sub_u32 v70, v70, v5")
    a(f"s_mul_i32 {s(S_T0)}, {s(S_SH)}, {64*KVT_STR}\ns_add_u32 {s(S_T0)}, {s(S_T0)}, {L_KVT + 16}\nv_add_u32 v70, {s(S_T0)}, v70")


def kv_compute(ps):
    b = VKV + 19 * ps
    o = []
    for i in range(11):
        o += [f"v_lshlrev_b32 {v(KU+2*i)}, 16, {v(b+i)}", f"v_and_b32 {v(KU+2*i+1)}, {s(S_C)}, {v(b+i)}"]
    for e in range(16):
        o.append(f"v_mul_f32 {v(KT+e)}, {v(KU+e)}, {v(KW+6+(e&1))}")
    for j in (2, 1, 0):
        for e in range(16):
            o.append(f"v_fmac_f32 {v(KT+e)}, {v(KU+e+2*(3-j))}, {v(KW+2*j+(e&1))}")
    for i in range(8):
        o += [f"v_lshlrev_b32 {v(VU+2*i)}, 16, {v(b+11+i)}", f"v_and_b32 {v(VU+2*i+1)}, {s(S_C)}, {v(b+11+i)}"]
    for e in range(16):
        o.append(f"v_mul_f32 {v(KT+e)}, {v(KT+e)}, {v(VU+e)}")
    for ch in range(2):
        for i in range(4):
            o.append(f"v_cvt_pk_bf16_f32 {v(KO+4*ch+i)}, {v(KT+2*(7-2*i)+ch)}, {v(KT+2*(6-2*i)+ch)}")
    o += [f"ds_write_b128 v70, {v(KO,4)} offset:{32*(1-ps)}", f"ds_write_b128 v70, {v(KO+4,4)} offset:{32*(1-ps) + KVT_STR}"]
    return o


def kv_store(a):
    a(f"v_lshrrev_b32 v5, 2, v0\nv_and_b32 v6, 3, v0\nv_lshlrev_b32 v6, 4, v6\nv_mul_u32_u24 v7, {KVT_STR}, v5\nv_add_u32 v7, v7, v6")
    a(f"s_mul_i32 {s(S_T0)}, {s(S_SH)}, {64*KVT_STR}\ns_add_u32 {s(S_T0)}, {s(S_T0)}, {L_KVT}\nv_add_u32 v7, {s(S_T0)}, v7")
    a("s_waitcnt lgkmcnt(0)")
    for i in range(4):
        a(f"ds_read_b128 {v(24+4*i,4)}, v7 offset:{16*i*KVT_STR}")
    a("v_lshl_add_u32 v5, v5, 12, v6")
    a(f"s_and_b32 {s(S_T0)}, {s(S_TI)}, 7\ns_lshl_b32 {s(S_T0)}, {s(S_T0)}, 18")
    a(f"s_lshr_b32 {s(S_T1)}, {s(S_TI)}, 3\ns_lshl_b32 {s(S_T1)}, {s(S_T1)}, 1\ns_add_u32 {s(S_T1)}, {s(S_T1)}, {s(S_SH)}\ns_lshl_b32 {s(S_T1)}, {s(S_T1)}, 6")
    a(f"s_sub_u32 {s(S_T0)}, {s(S_T0)}, {s(S_T1)}\ns_add_u32 {s(S_T0)}, {s(S_T0)}, {WS_KVR + 4096 - 64:#x}")
    for i in range(4):
        a(f"s_waitcnt lgkmcnt({3-i})")
        a(f"buffer_store_dwordx4 {v(24+4*i,4)}, v5, {s(R_WS,4)}, {s(S_T0)} offen sc1")
        a(f"s_add_u32 {s(S_T0)}, {s(S_T0)}, 65536")


def cs_loads(a):
    a(f"s_mul_i32 {s(S_T0)}, {s(S_MI)}, {32*F*2}\ns_lshl_b32 {s(S_T1)}, {s(S_FB0)}, 6\ns_add_u32 {s(S_T0)}, {s(S_T0)}, {s(S_T1)}\ns_add_u32 {s(S_T1)}, {s(S_T0)}, {16*F*2}")
    a(f"s_mul_i32 {s(S_M0)}, {s(S_SH)}, 6144\ns_add_u32 {s(S_M0)}, {s(S_M0)}, {L_CSS}")
    l1, l2 = a.label("cs"), a.label("cs")
    a(f"s_cmp_lg_u32 {s(S_SH)}, 0\ns_cbranch_scc1 {l1}")
    for r in (R_WG, R_WU):
        for blk in range(3):
            for k2 in range(2):
                a(f"s_add_u32 m0, {s(S_M0)}, {blk*2048 + k2*1024 - 64*blk}\ns_nop 0")
                a(f"buffer_load_dwordx4 {v(VB_W)}, {s(r,4)}, {s(S_T1 if k2 else S_T0)} offen offset:{64*blk} {CFS} lds")
        a(f"s_branch {l2}\n{l1}:" if r == R_WG else f"{l2}:")


def colsum(a):
    W, O = 144, 168
    a("v_lshrrev_b32 v5, 4, v0\nv_lshlrev_b32 v6, 9, v5\nv_bfe_u32 v7, v0, 2, 2\nv_lshl_add_u32 v6, v7, 6, v6\nv_and_b32 v7, 3, v0\nv_lshl_add_u32 v6, v7, 3, v6")
    a(f"v_and_b32 v7, 1, v5\nv_lshl_add_u32 v6, v7, 5, v6\nv_add_u32 v6, {s(S_M0)}, v6\nv_xor_b32 v7, 32, v6")
    for u in range(6):
        for tt in range(2):
            a(f"ds_read_b64_tr_b16 {v(W+4*u+2*tt,2)}, {'v7' if u & 1 else 'v6'} offset:{(u>>1)*2048 + tt*256}")
    a.c("CSP offset = ((ni*2 + hw)*16 + mi)*384 + u*64 + g*16")
    a(f"s_lshl_b32 {s(S_T0)}, {s(S_NI)}, 1\ns_add_u32 {s(S_T0)}, {s(S_T0)}, {s(S_SH)}\ns_lshl_b32 {s(S_T0)}, {s(S_T0)}, 4\ns_add_u32 {s(S_T0)}, {s(S_T0)}, {s(S_MI)}")
    a(f"s_mul_i32 {s(S_T0)}, {s(S_T0)}, 384\ns_add_u32 {s(S_T0)}, {s(S_T0)}, {WS_CSP:#x}")
    a("v_and_b32 v5, 48, v0")
    a("s_waitcnt lgkmcnt(0)")
    for u in range(6):
        a(f"v_mfma_f32_16x16x32_bf16 {v(O+4*u,4)}, {v(W+4*u,4)}, {v(ONE,4)}, 0")
    a(f"s_mov_b32 {s(S_EX)}, 0x00010001\ns_mov_b32 {s(S_EX+1)}, 0x00010001\ns_nop 5\ns_mov_b64 exec, {s(S_EX,2)}")
    for u in range(6):
        a(f"buffer_store_dwordx4 {v(O+4*u,4)}, v5, {s(R_WS,4)}, {s(S_T0)} offen offset:{u*64} sc1")
    a("s_mov_b64 exec, -1")


def hflag(a, base):
    a(f"s_lshl_b32 {s(S_T0)}, {s(S_TI)}, 7\ns_lshl_b32 {s(S_T1)}, {s(S_SH)}, 2\ns_add_u32 {s(S_T0)}, {s(S_T0)}, {s(S_T1)}\ns_add_u32 {s(S_T0)}, {s(S_T0)}, {base:#x}")
    flag_store(a, S_T0, 196, 197)


CG = 144


def cs_gather_issue(a):
    a(f"s_lshl_b32 {s(S_T0)}, {s(S_NI)}, 1\ns_add_u32 {s(S_T0)}, {s(S_T0)}, {s(S_SH)}\ns_mul_i32 {s(S_T0)}, {s(S_T0)}, 6144\ns_add_u32 {s(S_T0)}, {s(S_T0)}, {WS_CSP:#x}")
    a("v_and_b32 v5, 31, v0\nv_lshlrev_b32 v5, 4, v5\nv_lshrrev_b32 v6, 5, v0\nv_mul_u32_u24 v6, 3072, v6\nv_add_u32 v6, v5, v6")
    for i in range(8):
        a(f"buffer_load_dwordx4 {v(CG+4*i,4)}, v6, {s(R_WS,4)}, {s(S_T0)} offen offset:{i*384} sc1")


def cs_gather_finish(a):
    n = 8
    while n > 1:
        n //= 2
        for i in range(4 * n):
            a(f"v_add_f32 {v(CG+i)}, {v(CG+i)}, {v(CG+4*n+i)}")
    for i in range(4):
        a(f"v_mov_b32 {v(CG+4+i)}, {v(CG+i)}")
    a(f"s_lshl_b32 {s(S_T0)}, {s(S_SH)}, 9\ns_add_u32 {s(S_T0)}, {s(S_T0)}, {L_CS}\nv_and_b32 v8, 31, v0\nv_lshlrev_b32 v8, 4, v8\nv_add_u32 v8, {s(S_T0)}, v8")
    for i in range(4):
        a(f"v_permlane32_swap_b32 {v(CG+i)}, {v(CG+4+i)}")
    a("s_nop 0")
    for i in range(4):
        a(f"v_add_f32 {v(CG+i)}, {v(CG+i)}, {v(CG+4+i)}")
    a(f"ds_write_b128 v8, {v(CG,4)}")


def helper(a):
    q = VQ(a)
    a(f"s_sub_u32 {s(S_SH)}, {s(S_WB)}, 2")
    a(f"s_lshl_b32 {s(S_HO)}, {s(S_TI)}, 1\ns_add_u32 {s(S_HO)}, {s(S_HO)}, {s(S_SH)}\ns_lshl_b32 {s(S_HO)}, {s(S_HO)}, 12")
    a.c("k/v tile base: rows 32*(2*(ti>>3) + hw).., channels 64*(ti&7)")
    a(f"s_lshr_b32 {s(S_T0)}, {s(S_TI)}, 3\ns_lshl_b32 {s(S_T0)}, {s(S_T0)}, 1\ns_add_u32 {s(S_T0)}, {s(S_T0)}, {s(S_SH)}\ns_lshl_b32 {s(S_T0)}, {s(S_T0)}, 15")
    a(f"s_and_b32 {s(S_T1)}, {s(S_TI)}, 7\ns_lshl_b32 {s(S_T2)}, {s(S_T1)}, 7\ns_add_u32 {s(S_DO)}, {s(S_T0)}, {s(S_T2)}")
    a(f"s_mul_i32 {s(S_KC)}, {s(S_TI)}, {43*128}\ns_mul_i32 {s(S_T1)}, {s(S_SH)}, {22*128}\ns_add_u32 {s(S_KC)}, {s(S_KC)}, {s(S_T1)}")
    def sc():
        stats_loads(a); q.add("s", 4)
        cs_loads(a); q.add("csd", 6)
    SKV = opt("SKV", 0)
    KVAT = opt("KVAT", 0) or SKV or KVL
    def wdt():
        if not opt("WDT", 1):
            return
        a.c("first touch of Wd lines 43*ti + 22*hw + lane")
        a("v_lshlrev_b32 v11, 7, v0\ns_mov_b64 exec, 0x3fffff")
        a(f"buffer_load_dword v71, v11, {s(R_WD,4)}, {s(S_KC)} offen"); q.add("wd", 1)
        a("s_mov_b64 exec, -1")
    def cold():
        kv_dma(a); q.add("kv", 10)
        if not SKV and not PT and not opt("HW7", 0) and not KVL:
            wdt()
        if SKV != 1 and not opt("HW7", 0):
            conv_h_loads(a); q.add("h", 4)
    PT = opt("PT", 0)
    def ptouch():
        l1, l2 = a.label("pt"), a.label("pt")
        a(f"s_and_b32 {s(S_T0)}, {s(S_NI)}, 3\ns_cmp_lg_u32 {s(S_T0)}, 3\ns_cbranch_scc1 {l2}")
        a("v_lshrrev_b32 v5, 2, v0\nv_and_b32 v6, 3, v0\nv_lshlrev_b32 v6, 7, v6\nv_lshl_add_u32 v5, v5, 10, v6\nv_lshlrev_b32 v6, 7, v0")
        a(f"s_lshr_b32 {s(S_T0)}, {s(S_TI)}, 3\ns_lshl_b32 {s(S_T0)}, {s(S_T0)}, 16\ns_and_b32 {s(S_T1)}, {s(S_TI)}, 4\ns_lshl_b32 {s(S_T1)}, {s(S_T1)}, 7\ns_add_u32 {s(S_T0)}, {s(S_T0)}, {s(S_T1)}")
        a(f"s_cmp_lg_u32 {s(S_SH)}, 0\ns_cbranch_scc1 {l1}")
        for i in range(4):
            a(f"buffer_load_dword v71, v5, {s(R_K,4)}, {s(S_T0)} offen\ns_add_u32 {s(S_T0)}, {s(S_T0)}, 16384")
        a(f"s_sub_i32 {s(S_T0)}, {s(S_T0)}, {65536 + 3072}\ns_max_i32 {s(S_T0)}, {s(S_T0)}, 0\ns_mov_b64 exec, 0xfff")
        a(f"buffer_load_dword v71, v5, {s(R_K,4)}, {s(S_T0)} offen\ns_mov_b64 exec, -1")
        a(f"s_lshr_b32 {s(S_T0)}, {s(S_TI)}, 2\ns_mul_i32 {s(S_T0)}, {s(S_T0)}, {172*128}")
        for i in range(3):
            a(f"buffer_load_dword v71, v6, {s(R_WD,4)}, {s(S_T0)} offen\ns_add_u32 {s(S_T0)}, {s(S_T0)}, {8192 if i == 0 else 44*128}")
        a(f"s_branch {l2}\n{l1}:")
        for i in range(4):
            a(f"buffer_load_dword v71, v5, {s(R_V,4)}, {s(S_T0)} offen\ns_add_u32 {s(S_T0)}, {s(S_T0)}, 16384")
        a(f"s_lshr_b32 {s(S_T0)}, {s(S_TI)}, 2\ns_lshl_b32 {s(S_T0)}, {s(S_T0)}, 15")
        for i in range(4):
            a(f"buffer_load_dword v71, v6, {s(R_H,4)}, {s(S_T0)} offen\ns_add_u32 {s(S_T0)}, {s(S_T0)}, 8192")
        a(f"{l2}:")
    if PT == 1:
        ptouch()
    LATE = opt("LATE", 0)
    if LATE:
        lds_min_wait(a, C_CNT, W_ISS, 1, LATE, 20)
        l1, l2 = a.label("tc"), a.label("tc")
        a(f"s_cmp_lg_u32 {s(S_SH)}, 0\ns_cbranch_scc1 {l1}")
        touch_x(a, (4, 6), 71)
        a(f"s_branch {l2}\n{l1}:")
        touch_w(a, 4, (R_WG, R_WU), 71)
        a(f"{l2}:")
    def hs(n):
        if ITST:
            a(f"s_mov_b32 {s(S_IT)}, 0")
            it_issue(a)
            a("s_waitcnt lgkmcnt(0)")
            it_take(a, n)
    hs(1)
    KV1 = opt("KV1", 0)
    if KV1:
        if KV1 == 2:
            kv_dma(a); q.add("kv", 10)
        else:
            cold()
        a("s_barrier")
    if not opt("ELAST", 0):
        epoch_load(a, 1); q.add("e", 1)
    sc()
    if opt("ELAST", 0):
        epoch_load(a, 1); q.add("e", 1)
    hs(2)
    if KVL:
        wdt()
    if SKV:
        wdt()
        a(f"s_sub_i32 {s(S_KC)}, {s(S_DO)}, 3072\ns_max_i32 {s(S_KC)}, {s(S_KC)}, 0")
        spf(a, R_K, S_KC, [1024*i for i in range(35)])
    if KV1 == 2:
        wdt()
        conv_h_loads(a); q.add("h", 4)
    if not KVAT and not KV1:
        cold()
    hs(3)
    for i in range(4):
        a(f"v_mov_b32 {v(ONE+i)}, 0x3f803f80")
    a.c("F1 pairs: lanes 0-31 tiles 16mi + (l&15) (row records), lanes 32-63 tiles 16*(l&15) + ni (column sums)")
    a(f"s_lshl_b32 {s(S_T0)}, {s(S_MI)}, 11\nv_and_b32 v9, 15, v0\nv_lshlrev_b32 v8, 7, v9\nv_add_u32 v8, {s(S_T0)}, v8")
    a(f"s_lshl_b32 {s(S_T0)}, {s(S_NI)}, 7\nv_lshlrev_b32 v9, 11, v9\nv_add_u32 v9, {s(S_T0)}, v9\nv_cmp_lt_u32 vcc, 31, v0")
    a(f"s_nop 1\nv_cndmask_b32 v8, v8, v9, vcc\nv_add_u32 v8, {WS_F1:#x}, v8")
    q.wait("e", "s")
    stamp(a, 1)
    epoch_take(a, 1)
    a(f"v_mov_b32 v20, {s(S_NON)}\nds_write_b32 {v(C_CNT)}, v20 offset:{W_NON}")
    stats(a); q.add("st", 1)
    q.wait("csd")
    if PT == 2:
        ptouch()
    colsum(a); q.add("st", 6)
    stamp(a, 2)
    if KVL:
        q.wait("st")
        hflag(a, WS_F1)
        stamp(a, 3)
        lds_min_wait(a, C_CNT, W_ISS, 1, KVL - 1, 20)
        poll2_issue(a, 8, 198)
        a(f"s_lshr_b32 {s(S_T0)}, {s(S_TI)}, 5\ns_lshl_b32 {s(S_T0)}, {s(S_T0)}, 7\ns_add_u32 {s(S_T0)}, {s(S_T0)}, {WS_F2:#x}")
        a(f"v_and_b32 v16, 31, v0\nv_lshlrev_b32 v16, 10, v16\nv_add_u32 v16, {s(S_T0)}, v16")
        a("s_waitcnt vmcnt(0)")
        poll2_check(a, 8, 198)
        lds_min_wait(a, C_CNT, W_ISS, 1, KVL, 20)
        a(f"s_lshl_b32 {s(S_T0)}, {s(S_MI)}, 1\ns_add_u32 {s(S_T0)}, {s(S_T0)}, {s(S_SH)}\ns_lshl_b32 {s(S_T0)}, {s(S_T0)}, 10\ns_add_u32 {s(S_T0)}, {s(S_T0)}, {WS_ST:#x}")
        a(f"buffer_load_dwordx4 {v(GG,4)}, v4, {s(R_WS,4)}, {s(S_T0)} offen sc1")
        cs_gather_issue(a)
        a(f"s_lshl_b32 {s(S_T0)}, {s(S_SH)}, 10\ns_add_u32 {s(S_T0)}, {s(S_T0)}, {L_ST}\nv_add_u32 v9, {s(S_T0)}, v4")
        cold()
        a("s_waitcnt vmcnt(14)")
        a(f"ds_write_b128 v9, {v(GG,4)}")
        cs_gather_finish(a)
        lds_inc(a, C_CNT, C_ONE, W_GATH)
        stamp(a, 5)
        a(f"s_setprio {opt('PRK', 0)}")
        a("s_waitcnt vmcnt(4)")
        kv_reads(a)
        kv_taps(a)
        a("s_waitcnt lgkmcnt(0)")
        for l in kv_compute(0) + kv_compute(1):
            a(l)
        kv_store(a)
        lds_inc(a, C_CNT, C_ONE, W_HP)
        a("s_waitcnt vmcnt(4)")
        conv_h_shift(a, 40)
        a("s_waitcnt vmcnt(0)")
        hflag(a, WS_F2)
        stamp(a, 4)
        final_loads(a)
        lds_min_wait(a, C_CNT, W_FREE, 4, 6, 20)
        lds_min_wait(a, C_CNT, W_HP, 1, 2, 20)
        conv_h_stage(a, 40)
        poll2_issue(a, 16, 18)
        a("s_waitcnt vmcnt(0)")
        poll2_check(a, 16, 18)
        a(f"s_add_u32 {s(S_T2)}, {s(S_HO)}, {WS_KVR:#x}")
        for i in range(4):
            a(f"buffer_load_dwordx4 {v(128+4*i,4)}, v4, {s(R_WS,4)}, {s(S_T2)} offen offset:{1024*i} sc1")
        for i in range(4):
            a(f"s_waitcnt vmcnt({3-i})")
            a(f"ds_write_b128 v10, {v(128+4*i,4)} offset:{4*HSTR + 1024*i}")
        stamp(a, 6)
        return
    if SKV:
        spf(a, R_V, S_DO, [1024*i for i in range(14)])
        q.wait("st")
        hflag(a, WS_F1); q.add("f", 1)
        stamp(a, 3)
        spf(a, R_V, S_DO, [1024*i for i in range(14, 32)])
        a(f"s_and_b32 {s(S_T1)}, {s(S_TI)}, 7\ns_lshl_b32 {s(S_T1)}, {s(S_T1)}, 9")
        spf(a, R_SK, S_T1, [128*i for i in range(4)])
        if SKV == 2:
            spf(a, R_H, S_HO, [128*i for i in range(32)])
        a("s_waitcnt lgkmcnt(0)")
        cold()
    elif KVAT:
        a(f"s_lshr_b32 {s(S_T3)}, s2, 3\ns_and_b32 {s(S_T3)}, {s(S_T3)}, {opt('KVM', 0)}\ns_add_u32 {s(S_T3)}, {s(S_T3)}, {KVAT}")
        if PT:
            q.wait("st")
            hflag(a, WS_F1); q.add("f", 1)
            stamp(a, 3)
            a(f"s_and_b32 {s(S_T0)}, {s(S_NI)}, 3\ns_cmp_eq_u32 {s(S_T0)}, 3\ns_cselect_b32 {s(S_T3)}, 0, {s(S_T3)}")
        lds_min_wait(a, C_CNT, W_ISS, 1, s(S_T3), 20)
        cold()
        if not PT:
            q.wait("st")
            hflag(a, WS_F1); q.add("f", 1)
            stamp(a, 3)
    q.wait("kv")
    kv_reads(a)
    kv_taps(a)
    a("s_waitcnt lgkmcnt(0)")
    for l in kv_compute(0):
        a(l)
    if not KVAT:
        q.wait("st")
        hflag(a, WS_F1); q.add("f", 1)
        stamp(a, 3)
    for l in kv_compute(1):
        a(l)
    kv_store(a); q.add("kvst", 4)
    lds_inc(a, C_CNT, C_ONE, W_HP)
    q.wait("kvst")
    hflag(a, WS_F2); q.add("f", 1)
    stamp(a, 4)
    if opt("HW7", 0):
        lds_min_wait(a, C_CNT, W_ISS, 1, opt("HW7", 0), 20)
        wdt()
        conv_h_loads(a)
    else:
        conv_h_shift(a)
    if SKV == 1:
        spf(a, R_H, S_HO, [128*i for i in range(32)])
    if WDE:
        wd_setup(a, 0, S_SH)
        a(f"s_lshl_b32 {s(S_T0)}, {s(S_SH)}, 2\nv_add_u32 v11, {s(S_T0)}, {v(C_CNT)}")
        lds_min_wait(a, C_CNT, W_HP, 1, 2, 20)
        lds_min_wait(a, C_CNT, W_ISS, 1, WDE, 20)
        for op in wd_dma(0, 2) + wd_dma(1, 2):
            a(op)
    lds_min_wait(a, C_CNT, W_ISS, 1, opt("GATP", 7), 20)
    poll2_issue(a, 8, 198)
    a.c("F2 pairs of tiles 8*(l&31) + (ti>>5)")
    a(f"s_lshr_b32 {s(S_T0)}, {s(S_TI)}, 5\ns_lshl_b32 {s(S_T0)}, {s(S_T0)}, 7\ns_add_u32 {s(S_T0)}, {s(S_T0)}, {WS_F2:#x}")
    a(f"v_and_b32 v16, 31, v0\nv_lshlrev_b32 v16, 10, v16\nv_add_u32 v16, {s(S_T0)}, v16")
    a("s_waitcnt vmcnt(0)")
    if WDE:
        a(f"ds_write_b32 v11, {v(C_ONE)} offset:{W_WE}")
    poll2_check(a, 8, 198)
    lds_min_wait(a, C_CNT, W_ISS, 1, opt("GAT", 7), 20)
    poll2_issue(a, 16, 18)
    a(f"s_lshl_b32 {s(S_T0)}, {s(S_MI)}, 1\ns_add_u32 {s(S_T0)}, {s(S_T0)}, {s(S_SH)}\ns_lshl_b32 {s(S_T0)}, {s(S_T0)}, 10\ns_add_u32 {s(S_T0)}, {s(S_T0)}, {WS_ST:#x}")
    a(f"buffer_load_dwordx4 {v(GG,4)}, v4, {s(R_WS,4)}, {s(S_T0)} offen sc1")
    cs_gather_issue(a)
    a(f"s_lshl_b32 {s(S_T0)}, {s(S_SH)}, 10\ns_add_u32 {s(S_T0)}, {s(S_T0)}, {L_ST}\nv_add_u32 v9, {s(S_T0)}, v4")
    late, join = a.label("u_late"), a.label("u_join")
    def u_loads():
        a(f"s_add_u32 {s(S_T2)}, {s(S_HO)}, {WS_KVR:#x}")
        for i in range(4):
            a(f"buffer_load_dwordx4 {v(128+4*i,4)}, v4, {s(R_WS,4)}, {s(S_T2)} offen offset:{1024*i} sc1")
    def gather_done():
        a(f"ds_write_b128 v9, {v(GG,4)}")
        cs_gather_finish(a)
        lds_inc(a, C_CNT, C_ONE, W_GATH)
        stamp(a, 5)
    a("s_waitcnt vmcnt(9)")
    a(f"v_cmp_ne_u32 vcc, {s(S_NON)}, v18\nv_cmp_ne_u32 {s(S_EX,2)}, {s(S_NON)}, v19\ns_nop 0\ns_or_b64 vcc, vcc, {s(S_EX,2)}\ns_cbranch_scc1 {late}")
    u_loads()
    a("s_waitcnt vmcnt(4)")
    gather_done()
    a(f"{join}:")
    keep = a.L
    a.L = COLD.L
    a(f"{late}:")
    a("s_waitcnt vmcnt(0)")
    gather_done()
    poll2_check(a, 16, 18)
    u_loads()
    a(f"s_branch {join}")
    a.L = keep
    final_loads(a)
    lds_min_wait(a, C_CNT, W_FREE, 4, 6, 20)
    a.c("the other helper must be done with its transpose scratch before the conv region is written")
    lds_min_wait(a, C_CNT, W_HP, 1, 2, 20)
    if opt("HW7", 0):
        conv_h_shift(a)
    conv_h_stage(a)
    a("s_waitcnt vmcnt(2)")
    for i in range(4):
        a(f"ds_write_b128 v10, {v(128+4*i,4)} offset:{4*HSTR + 1024*i}")
    stamp(a, 6)


C_ACC, C_F0, C_F1 = 16, 48, 112
C_AA, C_BA = 2, 3


def bsync_post(a, n=4):
    a(f"s_add_u32 {s(S_CNT)}, {s(S_CNT)}, {n}")
    a("s_mov_b64 exec, 1")
    a(f"ds_add_u32 {v(C_CNT)}, {v(C_ONE)}")
    a("s_mov_b64 exec, -1")


def bsync_wait(a, nap=None):
    lds_min_wait(a, C_CNT, W_CNT, 1, s(S_CNT), 6, nap=opt("BNAP", 1) if nap is None else nap)


def bsync(a, n=4):
    bsync_post(a, n)
    bsync_wait(a)


def conv_reads(fr, roff):
    out = []
    for p in range(8):
        out.append(f"ds_read_b128 {v(fr+4*p,4)}, {v(C_AA)} offset:{512*p + roff}")
        out.append(f"ds_read_b64 {v(fr+32+4*p,2)}, {v(C_BA)} offset:{512*(7-p) + roff}")
        out.append(f"ds_read_b64 {v(fr+32+4*p+2,2)}, {v(C_BA)} offset:{512*(7-p) + roff + 8}")
    return out


def conv_mfmas(fr, first):
    out = []
    for tot in range(8):
        for p in range(tot + 1):
            q = tot - p
            out.append((max(p, q), f"v_mfma_f32_16x16x32_bf16 {v(C_ACC+4*tot,4)}, {v(fr+4*p,4)}, {v(fr+32+4*q,4)}, ", C_ACC + 4*tot))
    out.sort(key=lambda t: t[0])
    res, seen = [], set()
    for _, txt, c in out:
        res.append(txt + ("0" if first and c not in seen else v(c, 4)))
        seen.add(c)
    return res


HR = 200


def conv_h_loads(a):
    a(f"s_mul_i32 {s(S_RING)}, {s(S_SH)}, {CH_STR}\ns_add_u32 {s(S_RING)}, {s(S_RING)}, {L_CONV}")
    for h in range(4):
        a(f"buffer_load_dwordx4 {v(HR+6*h+2,4)}, v4, {s(R_H,4)}, {s(S_HO)} offen offset:{1024*h} {NT}")


def conv_h_shift(a, z=24):
    for i in range(4):
        a(f"v_mov_b32 {v(z+i)}, 0")
    a(f"v_add_u32 v10, {s(S_RING)}, v4")
    T = 72
    a.c("the two dwords in front of each lane's piece come from the lane below")
    for h in range(4):
        r = HR + 6 * h
        for i in range(2):
            a(f"v_mov_b32_dpp {v(r+i)}, {v(r-2+i)} wave_ror:1 row_mask:0xf bank_mask:0xf" if h else f"v_mov_b32 {v(r+i)}, 0")
    for h in range(4):
        r = HR + 6 * h
        for i in range(2):
            a(f"v_mov_b32_dpp {v(r+i)}, {v(r+4+i)} wave_shr:1 row_mask:0xf bank_mask:0xf")
    for h in range(4):
        r = HR + 6 * h
        for i in range(4):
            a(f"v_alignbit_b32 {v(T+i)}, {v(r+2+i)}, {v(r+1+i)}, 16")
        for i in range(4):
            a(f"v_mov_b32 {v(T+4+i)}, {v(r+1+i)}")
        for i in range(4):
            a(f"v_alignbit_b32 {v(T+8+i)}, {v(r+1+i)}, {v(r+i)}, 16")
        T += 12


def conv_h_stage(a, z=24):
    a.c("zero pads: 384 B in front of each h copy, 128 B behind u")
    a("s_mov_b64 exec, 0xffffff")
    for p in range(4):
        a(f"ds_write_b128 v10, {v(z,4)} offset:{p*HSTR}")
    a("s_mov_b64 exec, 0xff")
    a(f"ds_write_b128 v10, {v(z,4)} offset:{4*HSTR + 4096}")
    a("s_mov_b64 exec, -1")
    for h in range(4):
        a(f"ds_write_b128 v10, {v(HR+6*h+2,4)} offset:{384 + 1024*h}")
        for p in range(1, 4):
            a(f"ds_write_b128 v10, {v(72+12*h+4*(p-1),4)} offset:{p*HSTR + 384 + 1024*h}")


def conv_mid(a):
    a("s_waitcnt vmcnt(0)")
    a(f"ds_write_b32 v11, v251 offset:{W_WD}")
    poll2_check(a, 5, 198)
    a(f"s_lshl_b32 {s(S_T0)}, {s(S_MT)}, 2\ns_add_u32 {s(S_T0)}, {s(S_T0)}, {s(S_WB)}\ns_lshl_b32 {s(S_T0)}, {s(S_T0)}, 8\ns_add_u32 {s(S_T0)}, {s(S_T0)}, {WS_ST:#x}")
    a(f"buffer_load_dwordx4 {v(184,4)}, v15, {s(R_WS,4)}, {s(S_T0)} offen sc1")
    a(f"buffer_load_dwordx4 {v(188,4)}, v15, {s(R_WS,4)}, {s(S_T0)} offen offset:128 sc1")


def conv_main(a):
    U, UU, X, O = 48, 56, 112, 144
    for l in conv_reads(C_F0, 0):
        a(l)
    for r in range(4):
        cur, nxt = (C_F0, C_F1) if r % 2 == 0 else (C_F1, C_F0)
        a("s_waitcnt lgkmcnt(0)")
        if r < 3:
            rd = conv_reads(nxt, 64 * (r + 1))
        else:
            rd = [f"ds_read_b32 {v(U+2*b+c)}, v10 offset:{c*CH_STR + 256*(3-b)}" for b in range(4) for c in range(2)]
        for l in interleave(conv_mfmas(cur, r == 0), rd, 0, 1):
            a(l)
        if r == opt("WDR", 0):
            conv_mid(a)
    lstamp(a, 5)
    a(f"s_setprio {opt('PRX', opt('PRC', 3))}")
    bsync(a)
    if opt("XST", 0): lstamp(a, 1)
    for t in range(8):
        a(f"ds_write_b128 v8, {v(C_ACC+4*t,4)} offset:{t*1024}")
    bsync_post(a)
    a.c("skip term D*u at rows 512wb + 128b + 2l, +1")
    a(f"s_lshl_b32 s100, {s(S_C+1)}, 16\ns_and_b32 {s(S_C+1)}, {s(S_C+1)}, 0xffff0000")
    for b in range(4):
        for c in range(2):
            u, o = U + 2*b + c, UU + 4*b + 2*c
            a(f"v_and_b32 {v(o)}, {s(S_C)}, {v(u)}\nv_lshlrev_b32 {v(o+1)}, 16, {v(u)}")
    for b in range(4):
        for c in range(2):
            for j in range(2):
                a(f"v_mul_f32 {v(UU+4*b+2*c+j)}, {s(S_C+1) if c else 's100'}, {v(UU+4*b+2*c+j)}")
        a(f"v_mov_b32 {v(O+4*b+1)}, {s(S_NON)}\nv_mov_b32 {v(O+4*b+3)}, {s(S_NON)}")
    bsync_wait(a)
    if opt("XST", 0): lstamp(a, 2)
    for b in range(4):
        for w in range(4):
            a(f"ds_read_b64 {v(X+8*b+2*w,2)}, v9 offset:{w*8192 + b*512}")
    a("s_waitcnt vmcnt(0)")
    for b in range(4):
        a(f"s_waitcnt lgkmcnt({4*(3-b)})")
        for c in range(2):
            for j in range(2):
                o, x0 = UU + 4*b + 2*c + j, X + 8*b + 4*c + j
                a(f"v_add_f32 {v(o)}, {v(o)}, {v(x0)}")
        for c in range(2):
            for j in range(2):
                o, x0 = UU + 4*b + 2*c + j, X + 8*b + 4*c + j
                a(f"v_add_f32 {v(o)}, {v(o)}, {v(x0+2)}")
        for j in range(2):
            a(f"v_cvt_pk_bf16_f32 {v(O+4*b+2*j)}, {v(UU+4*b+j)}, {v(UU+4*b+2+j)}")
        if opt("XST", 0) and b == 0: lstamp(a, 3)
        a(f"buffer_store_dwordx4 {v(O+4*b,4)}, v4, {s(R_WS,4)}, {s(S_HO)} offen offset:{1024*b} sc1")
    a.c("the flag only says where to look: the granules carry their own tags")
    if opt("YACK", 0):
        a("s_waitcnt vmcnt(0)")
    flag_store(a, S_DO, 8, 9)


def conv_addr(a):
    a(f"s_lshr_b32 {s(S_T0)}, {s(S_WB)}, 1\ns_mul_i32 {s(S_RING)}, {s(S_T0)}, {CH_STR}\ns_add_u32 {s(S_RING)}, {s(S_RING)}, {L_CONV}")
    a(f"s_lshl_b32 {s(S_T3)}, {s(S_TI)}, 2\ns_load_dword {s(S_C+1)}, {s(S_DP,2)}, {s(S_T3)}")
    a.c("A address: base + (3-(m&3))*HSTR + 128*(m>>2) + 16*kg + 256*rh ; B address: ubase + 120 - 8n + 16kg + 256*rh")
    a(f"s_and_b32 {s(S_T0)}, {s(S_WB)}, 1\ns_lshl_b32 {s(S_T0)}, {s(S_T0)}, 8\ns_add_u32 {s(S_T0)}, {s(S_T0)}, {s(S_RING)}")
    a(f"v_and_b32 v6, 3, v0\nv_sub_u32 v6, 3, v6\nv_mul_u32_u24 v6, {HSTR}, v6\nv_bfe_u32 v7, v0, 2, 2\nv_lshl_add_u32 v6, v7, 7, v6")
    a(f"v_and_b32 v7, 48, v0\nv_add3_u32 {v(C_AA)}, v6, v7, {s(S_T0)}")
    a(f"v_and_b32 v6, 15, v0\nv_lshlrev_b32 v6, 3, v6\nv_sub_u32 v6, v7, v6\ns_add_u32 {s(S_T0)}, {s(S_T0)}, {4*HSTR + 120}\nv_add_u32 {v(C_BA)}, {s(S_T0)}, v6")
    a(f"s_lshl_b32 {s(S_T0)}, {s(S_WB)}, 13\ns_add_u32 {s(S_T0)}, {s(S_T0)}, {L_XCH}\nv_add_u32 v8, {s(S_T0)}, v4")
    a(f"s_lshl_b32 {s(S_T0)}, {s(S_WB)}, 11\ns_add_u32 {s(S_T0)}, {s(S_T0)}, {L_XCH}\nv_lshlrev_b32 v9, 3, v0\nv_add_u32 v9, {s(S_T0)}, v9")
    a.c("u for the skip term: ubase_c + 2*(2046 - 512wb - 128b - 2l)")
    a(f"s_lshl_b32 {s(S_T0)}, {s(S_WB)}, 10\ns_sub_u32 {s(S_T0)}, {L_CONV + 4*HSTR + 4092 - 768}, {s(S_T0)}\nv_lshlrev_b32 v10, 2, v0\nv_sub_u32 v10, {s(S_T0)}, v10")
    a.c("y granules: YG[ti][row*8]; flag F4[wb*256 + ti]")
    a(f"s_mul_i32 {s(S_T0)}, {s(S_TI)}, {YSTR}\ns_lshl_b32 {s(S_T1)}, {s(S_WB)}, 12\ns_add_u32 {s(S_T0)}, {s(S_T0)}, {s(S_T1)}\ns_add_u32 {s(S_HO)}, {s(S_T0)}, {WS_YG:#x}")
    a(f"s_lshl_b32 {s(S_T0)}, {s(S_WB)}, 8\ns_add_u32 {s(S_T0)}, {s(S_T0)}, {s(S_TI)}\ns_lshl_b32 {s(S_T0)}, {s(S_T0)}, 7\ns_add_u32 {s(S_DO)}, {s(S_T0)}, {WS_F4:#x}")
    a(f"s_mov_b32 {s(S_CNT)}, 0\ns_lshl_b32 {s(S_T0)}, {s(S_WB)}, 2\nv_add_u32 v11, {s(S_T0)}, {v(C_CNT)}\nv_mov_b32 v251, 3")
    a.c("F1 pairs of the two tiles that hold this wave's output rows")
    a(f"s_lshl_b32 {s(S_T1)}, {s(S_MT)}, 2\ns_add_u32 {s(S_T1)}, {s(S_T1)}, {s(S_WB)}\ns_lshl_b32 {s(S_T1)}, {s(S_T1)}, 8\ns_add_u32 {s(S_T1)}, {s(S_T1)}, {WS_F1:#x}")
    a(f"v_and_b32 v5, 1, v0\nv_lshlrev_b32 v5, 7, v5\nv_add_u32 v5, {s(S_T1)}, v5")
    poll2_issue(a, 5, 198)


def final_loads(a):
    a(f"s_lshl_b32 {s(S_T0)}, {s(S_MT)}, 2\ns_add_u32 {s(S_T0)}, {s(S_T0)}, {s(S_WB)}\ns_lshl_b32 {s(S_T1)}, {s(S_T0)}, 14\ns_lshl_b32 {s(S_T2)}, {s(S_NT)}, 7\ns_add_u32 {s(S_XO)}, {s(S_T1)}, {s(S_T2)}")
    a(f"s_add_u32 {s(S_WO)}, {s(S_XO)}, 8192")
    a("v_lshrrev_b32 v12, 3, v0\nv_and_b32 v13, 7, v0\nv_lshlrev_b32 v14, 4, v13\nv_lshl_add_u32 v14, v12, 10, v14\nv_lshlrev_b32 v15, 4, v12")
    a(f"buffer_load_dwordx4 {v(176,4)}, v14, {s(R_X,4)}, {s(S_XO)} offen")
    a(f"buffer_load_dwordx4 {v(180,4)}, v14, {s(R_X,4)}, {s(S_WO)} offen")


def final(a):
    XU, XN, YU, YL = 16, 72, 96, 160
    a.c("flags F4[(mt>>3)*256 + 32nt + 8wb + (l&7)]; granules of pairs 32nt + 8wb + 2i + (l>>5), rows 64mt + 2*(l&31) ..")
    a(f"s_lshl_b32 {s(S_T0)}, {s(S_NT)}, 2\ns_add_u32 {s(S_T0)}, {s(S_T0)}, {s(S_WB)}\ns_lshr_b32 {s(S_T1)}, {s(S_MT)}, 3\ns_lshl_b32 {s(S_T1)}, {s(S_T1)}, 5\ns_add_u32 {s(S_T1)}, {s(S_T1)}, {s(S_T0)}")
    a(f"s_lshl_b32 {s(S_T1)}, {s(S_T1)}, 10\ns_add_u32 {s(S_T1)}, {s(S_T1)}, {WS_F4:#x}\nv_lshlrev_b32 v5, 7, v13\nv_add_u32 v5, {s(S_T1)}, v5")
    a(f"s_mul_i32 {s(S_T0)}, {s(S_T0)}, {8*YSTR}\ns_lshl_b32 {s(S_T1)}, {s(S_MT)}, 9\ns_add_u32 {s(S_T0)}, {s(S_T0)}, {s(S_T1)}\ns_add_u32 {s(S_HO)}, {s(S_T0)}, {WS_YG:#x}")
    a(f"v_lshrrev_b32 v10, 5, v0\nv_mul_u32_u24 v8, {YSTR - 512}, v10\nv_add_u32 v8, v8, v4")

    def y_loads():
        a(f"s_mov_b32 {s(S_T1)}, {s(S_HO)}")
        for i in range(4):
            a(f"buffer_load_dwordx4 {v(YL+4*i,4)}, v8, {s(R_WS,4)}, {s(S_T1)} offen sc1")
            if i < 3:
                a(f"s_add_u32 {s(S_T1)}, {s(S_T1)}, {2*YSTR}")
    for t in range(2):
        for i in range(4):
            a(f"v_lshlrev_b32 {v(XU+8*t+2*i)}, 16, {v(176+4*t+i)}\nv_and_b32 {v(XU+8*t+2*i+1)}, {s(S_C)}, {v(176+4*t+i)}")
    for i in range(16):
        a(f"v_mov_b32 {v(YU+i)}, 0")
    a.c("transpose scratch [wb'][c*272 + e*64 + row*4]")
    a(f"s_mul_i32 {s(S_T0)}, {s(S_WB)}, 544\ns_add_u32 {s(S_T0)}, {s(S_T0)}, {L_YL}")
    a(f"v_and_b32 v9, 3, v12\nv_mul_u32_u24 v9, 2176, v9\nv_lshl_add_u32 v9, v10, 6, v9\nv_lshl_add_u32 v9, v13, 3, v9\nv_add_u32 v9, {s(S_T0)}, v9")
    a(f"s_mul_i32 {s(S_T0)}, {s(S_WB)}, 2176\ns_add_u32 {s(S_T0)}, {s(S_T0)}, {L_YL}")
    a(f"v_mul_u32_u24 v7, 272, v13\nv_lshl_add_u32 v7, v12, 2, v7\nv_add_u32 v7, {s(S_T0)}, v7")
    a.c("partials: wb*16384 + w*4096 + (8t + row)*256 + ((2c + h) ^ row)*16")
    a(f"s_lshl_b32 {s(S_T0)}, {s(S_WB)}, 14\nv_lshlrev_b32 v2, 1, v13\nv_xor_b32 v2, v2, v12\nv_lshlrev_b32 v2, 4, v2\nv_lshl_add_u32 v2, v12, 8, v2\nv_add_u32 v2, {s(S_T0)}, v2")
    a("v_xor_b32 v3, 16, v2")
    for t in range(2):
        a(f"v_mul_f32 {v(185+4*t)}, {f32bits(1.0/C1):#x}, {v(185+4*t)}")
        for i in range(8):
            a(f"v_sub_f32 {v(XN+8*t+i)}, {v(XU+8*t+i)}, {v(184+4*t)}")
        for i in range(8):
            a(f"v_mul_f32 {v(XN+8*t+i)}, {v(XN+8*t+i)}, {v(185+4*t)}")
    if not opt('LDST', 0): stamp(a, 7)
    a(f"s_setprio {opt('PRP', 0)}")
    a.c("stay off the memory path until the GEMM2 waves have issued their loads")
    lds_min_wait(a, C_CNT, W_HI, 1, 4, 6, nap=2)
    a(f"s_setprio {opt('PRF', 3)}")
    if not opt('LDST', 0): stamp(a, 8)
    top, done = a.label("yp"), a.label("yp_ok")
    a(f"s_mov_b32 {s(S_IT)}, 0")
    if opt("YFLAG", 1):
        poll(a, 5, 6)
    a(f"{top}:")
    y_loads()
    a("s_waitcnt vmcnt(0)")
    for i in range(4):
        a(f"v_xor_b32 {v(48+i)}, {s(S_NON)}, {v(YL+4*i+1)}\nv_xor_b32 {v(52+i)}, {s(S_NON)}, {v(YL+4*i+3)}\nv_mov_b32 {v(YL+4*i+1)}, {v(YL+4*i+2)}")
    a("v_or3_b32 v48, v48, v49, v50\nv_or3_b32 v51, v51, v52, v53\nv_or3_b32 v48, v48, v54, v55\nv_or_b32 v48, v48, v51\nv_cmp_ne_u32 vcc, 0, v48")
    a(f"s_cbranch_vccz {done}")
    poll(a, 5, 6)
    a(f"s_add_u32 {s(S_IT)}, {s(S_IT)}, {s(S_SPIN)}\ns_add_u32 {s(S_IT)}, {s(S_IT)}, 1\ns_cmp_lt_u32 {s(S_IT)}, {SPIN_MAX}\ns_cbranch_scc1 {top}")
    a(f"{done}:")
    for i in range(4):
        a(f"ds_write_b64 v9, {v(YL+4*i,2)} offset:{272*(i>>1) + 128*(i&1)}")
    bsync(a)
    for t in range(2):
        for e in range(8):
            a(f"ds_read_u16_d16_hi {v(YU+8*t+e)}, v7 offset:{64*(e>>1) + 32*t + 2*(e&1)}")
    for t in range(2):
        a(f"s_waitcnt lgkmcnt({8*(1-t)})")
        for i in range(8):
            a(f"v_fmac_f32 {v(XU+8*t+i)}, {v(XN+8*t+i)}, {v(YU+8*t+i)}")
    if not opt('LDST', 0): stamp(a, 9)
    if STAMPS:
        a("s_waitcnt lgkmcnt(0)")
    a("s_barrier")
    P = 112
    for t in range(2):
        for w in range(4):
            for h in range(2):
                a(f"ds_read_b128 {v(P+32*t+8*w+4*h,4)}, {'v3' if h else 'v2'} offset:{w*4096 + t*2048}")
    for t in range(2):
        a(f"s_waitcnt lgkmcnt({8*(1-t)})")
        p = P + 32 * t
        for i in range(4):
            a(f"v_pk_add_f32 {v(p+2*i,2)}, {v(p+2*i,2)}, {v(p+8+2*i,2)}")
        for i in range(4):
            a(f"v_pk_add_f32 {v(p+16+2*i,2)}, {v(p+16+2*i,2)}, {v(p+24+2*i,2)}")
        for i in range(4):
            a(f"v_pk_add_f32 {v(p+2*i,2)}, {v(p+2*i,2)}, {v(XU+8*t+2*i,2)}")
        for i in range(4):
            a(f"v_pk_add_f32 {v(p+2*i,2)}, {v(p+2*i,2)}, {v(p+16+2*i,2)}")
        for i in range(4):
            a(f"v_cvt_pk_bf16_f32 {v(48+4*t+i)}, {v(p+2*i)}, {v(p+2*i+1)}")
        a(f"buffer_store_dwordx4 {v(48+4*t,4)}, v14, {s(R_OUT,4)}, {s(S_WO if t else S_XO)} offen")


def epoch_flags_issue(a):
    a(f"v_lshlrev_b32 v6, 7, v0\ns_mov_b32 {s(S_T0)}, {WS_F1:#x}")
    for i in range(4):
        a(f"buffer_load_dword {v(2+i)}, v6, {s(R_WS,4)}, {s(S_T0)} offen sc1")
        a(f"s_add_u32 {s(S_T0)}, {s(S_T0)}, 8192")


def epoch_pre(a):
    done = a.label("ep_skip")
    a(f"s_lshl_b32 {s(S_T0)}, s2, 3\ns_add_u32 {s(S_T0)}, {s(S_T0)}, {s(S_WAVE)}\ns_cmp_lg_u32 {s(S_T0)}, 0\ns_cbranch_scc1 {done}")
    epoch_flags_issue(a)
    a(f"{done}:")


def epoch_advance(a):
    done, top, ok = a.label("ep_skip"), a.label("ep_top"), a.label("ep_ok")
    a(f"s_lshl_b32 {s(S_T0)}, s2, 3\ns_add_u32 {s(S_T0)}, {s(S_T0)}, {s(S_WAVE)}\ns_cmp_lg_u32 {s(S_T0)}, 0\ns_cbranch_scc1 {done}")
    a(f"s_mov_b32 {s(S_SPIN)}, 0")
    a(f"{top}:")
    for i in range(4):
        a(f"v_xor_b32 {v(2+i)}, {s(S_NON)}, {v(2+i)}")
    a("v_or_b32 v2, v2, v3\nv_or_b32 v4, v4, v5\nv_or_b32 v2, v2, v4\nv_cmp_ne_u32 vcc, 0, v2")
    a(f"s_cbranch_vccz {ok}")
    a(f"s_add_u32 {s(S_SPIN)}, {s(S_SPIN)}, 1\ns_cmp_ge_u32 {s(S_SPIN)}, {SPIN_MAX}\ns_cbranch_scc1 {ok}")
    epoch_flags_issue(a)
    a(f"s_waitcnt vmcnt(0)\ns_branch {top}")
    a(f"{ok}:")
    a(f"s_mov_b32 {s(S_T0)}, {WS_EP:#x}")
    flag_store(a, S_T0, 8, 9)
    a(f"{done}:")


def kernel(a):
    entry(a)
    prologue(a, False, 1)
    g1_compute(a)
    g1_epilogue(a)
    epoch_pre(a)
    g2_main(a)
    epoch_advance(a)
    stamp_flush(a)
    a("s_endpgm")
    a(f".p2align {opt('AL', 6)}\n" + ".fill 16, 4, 0xbf800000\n" * opt("PAD", 0) + "L_load:")
    prologue(a)
    loader(a)
    a("s_branch L_bj")
    a(f".p2align {opt('AL', 6)}\nL_help:")
    prologue(a, 2 if opt("KV1", 0) else True)
    helper(a)
    a("L_bj:")
    if opt("BST", 0): lstamp(a, 1)
    conv_addr(a)
    if opt("BST", 0): lstamp(a, 2)
    bsync(a, 4 if opt("CEARLY", 0) else 8)
    a(f"s_setprio {opt('PRC', 3)}")
    lstamp(a, 4)
    conv_main(a)
    lstamp(a, 6)
    final(a)
    stamp_flush(a)
    a("s_endpgm")
    a.L += COLD.L
    a("L_end:\ns_endpgm")


HEADER = open(f"cdna_kernels/{NAME}.s.ref").read().split("; Override launch")[0]


def build():
    a = Asm()
    kernel(a)
    out = HEADER + "; @launch grid=(256,1,1) block=(512,1,1) lds=163840\n"
    out += '.amdgcn_target "amdgcn-amd-amdhsa--gfx950"\n.text\n' + a.text()
    out += '.section .rodata,"a"\n.p2align 6\n' + kernel_desc(KNAME)
    return out


if __name__ == "__main__":
    open(sys.argv[1] if len(sys.argv) > 1 else "t_m.s", "w").write(build())
```

```python
import math, os, sys
from asmlib import *

NAME = "parallel_sum__ssm_conv_h3__geglu_ffn__prompt"
KNAME = NAME + "_kernel"
S, D, F = 2048, 512, 1376
NU = F // 16
STAMPS = os.environ.get("STAMPS") == "1"
def opt(name, default):
    return int(os.environ.get(name, default))

WS_HF, WS_KVR, WS_Y2, WS_ST, WS_CSP = 0, 0x600000, 0x800000, 0xA00000, 0xA10000
WS_F1, WS_F2, WS_F3, WS_F4, WS_EP = 0xA80000, 0xA88000, 0xAA0000, 0xAC0000, 0xAE0000
WS_STAMP = 0xC00000
WS_YG = 0x1000000
YSTR = 16384 + 256
WS_SIZE = 0x1500000
NONCE_INC = 0x9E3779B1
OOB = 0x7f000000
R_X, R_WG, R_WU, R_WS, R_K, R_V, R_SK, R_WD, R_OUT, R_H = 4, 8, 12, 16, 20, 24, 28, 32, 36, 40
S_DP = 44
S_EX = 46
(S_WAVE, S_MI, S_NI, S_FB0, S_NBLK, S_T0, S_T1, S_T2, S_T3, S_IT, S_SLOT, S_KC, S_XO, S_WO, S_WO2, S_M0,
 S_WB, S_SH, S_UH, S_TI, S_MT, S_NT, S_NON, S_RING, S_CNT, S_HO, S_DO, S_SPIN) = range(48, 76)
S_C = 76
S_DK, S_HK, S_KEND = 3, S_RING, S_CNT
SLOT, NSLOT = 40960, 3
L_KVT, KVT_STR = 122880, 80
L_CS, L_ST, L_CNT = 135680, 136704, 138752
HSTR = 4640
CH_STR = 4 * HSTR + 4224
L_CONV = 81920
L_XCH = 81920
L_YL = 114688
NRW = 7
KVL = opt("KVL", 0)
CFX, CFW, CFS, CFD = (os.environ.get(k, "") for k in ("CFX", "CFW", "CFS", "CFD"))
SLOTMAP = [2, 3, 4, 5, 6, 0, 1] if KVL else list(range(7))
L_RA0 = 127488
S_RA, S_RB = 101, S_M0
L_CSS = 139264
assert L_KVT + 2 * 64 * KVT_STR <= L_CS and L_CONV + 2 * CH_STR <= L_RA0 and L_RA0 + 8192 <= L_CS and L_CNT + 256 <= L_CSS
W_CNT, W_GATH, W_HP, W_FREE, W_FULL, W_NON, W_C0, W_ISS, W_WD, W_HI, W_WE = 0, 8, 12, 16, 32, 40, 48, 64, 80, 96, 112
S_DUM = 100
C1 = -2.0 * math.log2(math.e) * math.sqrt(2.0 / math.pi)
C2 = C1 * 0.044715
SPIN_MAX = 1 << 16
LSPIN_MAX = 1 << 22


def stamp(a, i):
    if STAMPS:
        a(f"{'s_memtime' if opt('CLK', 0) else 's_memrealtime'} {s(78+2*i,2)}")


def lstamp(a, i):
    if STAMPS and not opt("LDST", 0):
        lab = a.label("ls")
        a(f"s_cmp_ge_u32 {s(S_WB)}, 2\ns_cbranch_scc1 {lab}")
        stamp(a, i)
        a(f"{lab}:")


ITST = STAMPS and opt("ITST", 0)


def it_issue(a):
    if ITST:
        a("s_memrealtime s[96:97]")


def it_take(a, add):
    if ITST:
        a(f"s_add_u32 m0, {s(S_IT)}, {add}\ns_nop 0\nv_writelane_b32 v255, s96, m0")


def stamp_flush(a):
    if not STAMPS:
        return
    if ITST:
        a(f"s_lshl_b32 s96, s2, 3\ns_add_u32 s96, s96, {s(S_WAVE)}\ns_lshl_b32 s96, s96, 8\ns_add_u32 s96, s96, {WS_STAMP + 0x100000:#x}")
        a(f"v_lshlrev_b32 v2, 2, v0\nbuffer_store_dword v255, v2, {s(R_WS,4)}, s96 offen\ns_mov_b32 s96, 0")
    a("s_waitcnt vmcnt(0) lgkmcnt(0)")
    stamp(a, 10)
    a("s_waitcnt lgkmcnt(0)")
    for i in range(11):
        a(f"v_writelane_b32 v1, {s(78+2*i)}, {i}")
    a(f"s_lshl_b32 s78, s2, 3\ns_add_u32 s78, s78, {s(S_WAVE)}\ns_lshl_b32 s78, s78, 6\ns_add_u32 s78, s78, {WS_STAMP:#x}")
    a("v_lshlrev_b32 v2, 2, v0\ns_mov_b64 exec, 0x7ff")
    a(f"buffer_store_dword v1, v2, {s(R_WS,4)}, s78 offen")
    if opt("DBGST", 0):
        lab = a.label("dbg")
        a(f"s_cmp_lg_u32 s78, {WS_STAMP + opt('DBGW', 0)*64 + 100*512:#x}\ns_cbranch_scc1 {lab}")
        a("s_load_dwordx2 s[84:85], s[0:1], 88\ns_mov_b32 s86, 256\ns_mov_b32 s87, 0x20000\nv_readlane_b32 s82, v1, 0\ns_waitcnt lgkmcnt(0)")
        a("v_subrev_u32 v1, s82, v1")
        a("buffer_store_dword v1, v2, s[84:87], 0 offen")
        a(f"{lab}:")


TABLE = [(R_X, 0, S*D*2), (R_WG, 56, D*F*2), (R_WU, 64, D*F*2), (R_WS, 96, WS_SIZE), (R_K, 8, S*D*2), (R_V, 16, S*D*2),
         (R_SK, 24, D*8), (R_WD, 72, D*F*2), (R_OUT, 80, S*D*2), (R_H, 32, S*D*2)]


def entry(a):
    a(f".globl {KNAME}\n.p2align 8\n.type {KNAME},@function\n{KNAME}:")
    a("s_cmp_ge_u32 s2, 256\ns_cbranch_scc1 L_end")
    if opt("CPF", 0):
        n = opt("CPF", 0)
        a.c("pull this workgroup's share of the code into L2 ahead of the instruction fetch")
        a(f"s_getpc_b64 {s(S_EX,2)}\nL_pc:")
        a(f"s_lshr_b32 s3, s2, 3\nv_lshlrev_b32 v2, 5, v0\nv_add_u32 v2, s3, v2\nv_lshlrev_b32 v2, 7, v2\nv_mov_b32 v3, {s(S_EX+1)}")
        a(f"v_cmp_gt_u32 vcc, L_end-L_pc, v2\ns_and_saveexec_b64 {s(S_DP,2)}, vcc\ns_cbranch_execz L_nopf")
        a(f"v_add_co_u32 v2, vcc, {s(S_EX)}, v2\nv_addc_co_u32 v3, vcc, 0, v3, vcc")
        a("global_load_dword v212, v[2:3], off")
        a("L_nopf:\ns_mov_b64 exec, -1")
    a("v_lshrrev_b32 v1, 6, v0")
    a(f"s_load_dwordx2 {s(R_X,2)}, s[0:1], 0\ns_load_dwordx2 {s(R_WS,2)}, s[0:1], 96")
    stamp(a, 0)
    a(f"v_readfirstlane_b32 {s(S_WAVE)}, v1")
    a("v_and_b32 v0, 63, v0")
    a(f"s_cmp_ge_u32 {s(S_WAVE)}, 6\ns_cbranch_scc1 L_help")
    a(f"s_cmp_ge_u32 {s(S_WAVE)}, 4\ns_cbranch_scc1 L_load")


def prologue(a, bar=True, part=3):
    first = (R_X, R_WG, R_WU)
    if part & 1:
        for r, off, size in TABLE:
            if r in first[1:]:
                a(f"s_load_dwordx2 {s(r,2)}, s[0:1], {off}")
    if part & 2:
        for r, off, size in TABLE:
            if r not in first + (R_WS,):
                a(f"s_load_dwordx2 {s(r,2)}, s[0:1], {off}")
        a(f"s_load_dwordx2 {s(S_DP,2)}, s[0:1], 40")
        if STAMPS:
            for i in range(1, 11):
                a(f"s_mov_b32 {s(78+2*i)}, 0")
        if ITST:
            a("v_mov_b32 v255, 0")
    if part & 1 and not bar:
        a.c("LDS hand-off words start at zero")
        a(f"v_mov_b32 v20, 0\nv_lshlrev_b32 v5, 2, v0\nv_add_u32 v5, {L_CNT}, v5\nds_write_b32 v5, v20")
    for r, off, size in TABLE:
        if part & (1 if r in first else 2):
            a(f"s_mov_b32 {s(r+2)}, {size:#x}\ns_mov_b32 {s(r+3)}, 0x20000")
    if part & 1:
        a.c("x = wg&7, j = wg>>3; GEMM1 tile mi = 8*(x&1) + (j&7), ni = 4*(x>>1) + (j>>3); ti = 16*mi + ni")
        a(f"s_and_b32 {s(S_T0)}, s2, 1\ns_lshl_b32 {s(S_T0)}, {s(S_T0)}, 3")
        a(f"s_bfe_u32 {s(S_T1)}, s2, 0x30003\ns_add_u32 {s(S_MI)}, {s(S_T0)}, {s(S_T1)}")
        a(f"s_bfe_u32 {s(S_T0)}, s2, 0x20001\ns_lshl_b32 {s(S_T0)}, {s(S_T0)}, 2")
        a(f"s_lshr_b32 {s(S_T2)}, s2, 6\ns_add_u32 {s(S_NI)}, {s(S_T0)}, {s(S_T2)}")
        a.c("first 32-col block fb0 = 3*ni - (ni>>2) - (ni==15); nblk = 2 for ni in {3,7,11,14,15}")
        a(f"s_mul_i32 {s(S_FB0)}, {s(S_NI)}, 3\ns_lshr_b32 {s(S_T0)}, {s(S_NI)}, 2\ns_sub_u32 {s(S_FB0)}, {s(S_FB0)}, {s(S_T0)}")
        a(f"s_cmp_eq_u32 {s(S_NI)}, 15\ns_subb_u32 {s(S_FB0)}, {s(S_FB0)}, 0")
        a(f"s_bitcmp1_b32 0xc888, {s(S_NI)}\ns_cselect_b32 {s(S_NBLK)}, 2, 3")
        a(f"s_and_b32 {s(S_WB)}, {s(S_WAVE)}, 3")
        a.c("GEMM1 DMA lane offsets. x: (l>>3)*1024 + ((l&7) ^ ((4*(w&1) + l>>4)&7))*16 ; W: (l>>2)*2752 + ((l&3) ^ (2*(l>>5)))*16")
        a(f"s_and_b32 {s(S_T0)}, {s(S_WAVE)}, 1\ns_lshl_b32 {s(S_T0)}, {s(S_T0)}, 2")
        a(f"v_lshrrev_b32 v5, 4, v0\nv_add_u32 v5, {s(S_T0)}, v5\nv_and_b32 v6, 7, v0\nv_xor_b32 v5, v5, v6\nv_lshlrev_b32 v5, 4, v5")
        a(f"v_lshrrev_b32 v6, 3, v0\nv_lshl_add_u32 {v(VB_X)}, v6, 10, v5")
        a(f"v_lshrrev_b32 v5, 5, v0\nv_lshlrev_b32 v5, 1, v5\nv_and_b32 v6, 3, v0\nv_xor_b32 v5, v5, v6\nv_lshlrev_b32 v5, 4, v5")
        a(f"v_lshrrev_b32 v6, 2, v0\nv_mul_u32_u24 v6, {F*2}, v6\nv_add_u32 {v(VB_W)}, v6, v5")
        if not bar:
            a(f"s_lshl_b32 {s(S_XO)}, {s(S_MI)}, 17\ns_lshl_b32 {s(S_T0)}, {s(S_WB)}, 13\ns_add_u32 {s(S_XO)}, {s(S_XO)}, {s(S_T0)}")
            a(f"s_mul_i32 {s(S_WO)}, {s(S_WB)}, {16*F*2}\ns_lshl_b32 {s(S_T0)}, {s(S_FB0)}, 6\ns_add_u32 {s(S_WO)}, {s(S_WO)}, {s(S_T0)}")
            a(f"s_cmp_eq_u32 {s(S_NBLK)}, 3\ns_cselect_b32 {s(S_WO2)}, {s(S_WO)}, {OOB:#x}")
            a(f"s_lshl_b32 {s(S_M0)}, {s(S_WB)}, 10")
    if part & 2:
        a(f"s_lshl_b32 {s(S_TI)}, {s(S_MI)}, 4\ns_add_u32 {s(S_TI)}, {s(S_TI)}, {s(S_NI)}")
        if opt("MTL", 1):
            a.c("GEMM2 tile mt = 16*(x&1) + 4*(x>>1) + (j&3), nt = j>>2")
            a(f"s_and_b32 {s(S_T0)}, s2, 1\ns_lshl_b32 {s(S_T0)}, {s(S_T0)}, 4\ns_and_b32 {s(S_T1)}, s2, 6\ns_lshl_b32 {s(S_T1)}, {s(S_T1)}, 1\ns_add_u32 {s(S_T0)}, {s(S_T0)}, {s(S_T1)}")
            a(f"s_bfe_u32 {s(S_T1)}, s2, 0x20003\ns_add_u32 {s(S_MT)}, {s(S_T0)}, {s(S_T1)}")
        else:
            a.c("GEMM2 tile mt = 4*x + (j&3), nt = j>>2")
            a(f"s_and_b32 {s(S_T0)}, s2, 7\ns_lshl_b32 {s(S_T0)}, {s(S_T0)}, 2\ns_bfe_u32 {s(S_T1)}, s2, 0x20003\ns_add_u32 {s(S_MT)}, {s(S_T0)}, {s(S_T1)}")
        a(f"s_lshr_b32 {s(S_NT)}, s2, 5\ns_mov_b32 {s(S_SPIN)}, 0")
    if bar:
        a(f"s_mov_b32 {s(S_UH)}, 0\nv_lshlrev_b32 v4, 4, v0\nv_mov_b32 {v(C_CNT)}, {L_CNT}\nv_mov_b32 {v(C_ONE)}, 1\ns_mov_b32 {s(S_C)}, 0xffff0000")
    if part & 1:
        a("s_waitcnt lgkmcnt(0)")
    if bar is True:
        a("s_barrier")


VB_X, VB_W = 14, 15
C_CNT, C_ONE = 252, 253


def poll(a, vaddr, vtmp):
    top, done = a.label("poll"), a.label("poll_ok")
    a(f"s_mov_b32 {s(S_SPIN)}, 0")
    a(f"{top}:")
    a(f"buffer_load_dword {v(vtmp)}, {v(vaddr)}, {s(R_WS,4)}, 0 offen sc1")
    a("s_waitcnt vmcnt(0)")
    a(f"v_cmp_ne_u32 vcc, {s(S_NON)}, {v(vtmp)}")
    a(f"s_cbranch_vccz {done}")
    a(f"s_sleep {opt('PSG' if vaddr == G_FL else 'PSY', 4)}")
    a(f"s_add_u32 {s(S_SPIN)}, {s(S_SPIN)}, 1\ns_cmp_lt_u32 {s(S_SPIN)}, {SPIN_MAX}\ns_cbranch_scc1 {top}")
    a(f"{done}:")


def poll2_issue(a, vaddr, vt):
    a(f"buffer_load_dwordx2 {v(vt,2)}, {v(vaddr)}, {s(R_WS,4)}, 0 offen sc1")


def poll2_check(a, vaddr, vt):
    top, done = a.label("poll"), a.label("poll_ok")
    a(f"s_mov_b32 {s(S_SPIN)}, 0")
    a(f"{top}:")
    a(f"v_cmp_ne_u32 vcc, {s(S_NON)}, {v(vt)}\nv_cmp_ne_u32 {s(S_EX,2)}, {s(S_NON)}, {v(vt+1)}")
    a(f"s_nop 0\ns_or_b64 vcc, vcc, {s(S_EX,2)}")
    a(f"s_cbranch_scc0 {done}")
    a(f"s_add_u32 {s(S_SPIN)}, {s(S_SPIN)}, 1\ns_cmp_ge_u32 {s(S_SPIN)}, {SPIN_MAX}\ns_cbranch_scc1 {done}")
    a(f"s_sleep {opt('PS2', 1)}")
    poll2_issue(a, vaddr, vt)
    a(f"s_waitcnt vmcnt(0)\ns_branch {top}")
    a(f"{done}:")


class VQ:
    def __init__(self, a):
        self.a, self.q = a, []
    def add(self, tag, n):
        self.q += [tag] * n
    def count(self, *tags):
        last = max((i for i, x in enumerate(self.q) if x in tags), default=-1)
        n = len(self.q) - 1 - last
        assert n <= 63
        return n
    def wait(self, *tags):
        self.a(f"s_waitcnt vmcnt({self.count(*tags)})")


def flag_store(a, soff, vt0, vt1):
    a(f"v_mov_b32 {v(vt0)}, {s(S_NON)}\nv_mov_b32 {v(vt1)}, 0")
    a("s_mov_b64 exec, 1")
    a(f"buffer_store_dword {v(vt0)}, {v(vt1)}, {s(R_WS,4)}, {s(soff)} offen sc1")
    a("s_mov_b64 exec, -1")


def epoch_load(a, vt):
    a(f"v_mov_b32 {v(vt)}, {WS_EP:#x}")
    a(f"buffer_load_dword {v(vt)}, {v(vt)}, {s(R_WS,4)}, 0 offen sc1")


def epoch_take(a, vt):
    a(f"v_readfirstlane_b32 {s(S_NON)}, {v(vt)}")
    a("s_nop 0")
    a(f"s_add_u32 {s(S_NON)}, {s(S_NON)}, {NONCE_INC:#x}")


V_XA0, V_XA1, V_W = 2, 3, 4
V_XC0, V_XC1, V_WC = 7, 8, 9
ACC, F0, F1 = 16, 112, 152
G_ACC, G_WF, G_H = 176, 16, 80
G_L16, G_WD, G_TR, G_TR0, G_TR5, G_FL = 240, 241, 242, 246, 250, 254
NHB, NWF, NSTEP = 6, 4, 11
G_HT = 255


def acc(u, mat, sb):
    return ACC + ((u * 2 + mat) * 4 + sb) * 4


def g1_reads(fr, step, units):
    out = []
    for u in units:
        if u == 'x':
            for sb in range(4):
                out.append(f"ds_read_b128 {v(fr+4*sb,4)}, {v(V_XC1 if step else V_XC0)} offset:{sb*2048}")
            continue
        for mat in range(2):
            r = fr + 16 + (u * 2 + mat) * 4
            for t in range(2):
                out.append(f"ds_read_b64_tr_b16 {v(r+2*t,2)}, {v(V_WC+u)} offset:{mat*12288+step*2048+t*256}")
    return out


def g1_mfmas(fr, units):
    out = []
    for u in units:
        for mat in range(2):
            for sb in range(4):
                c = acc(u, mat, sb)
                out.append(f"v_mfma_f32_16x16x32_bf16 {v(c,4)}, {v(fr+16+(u*2+mat)*4,4)}, {v(fr+4*sb,4)}, {v(c,4)}")
    return out


V_LW, V_FC, V_FL = 12, 13, 192


COLD = Asm()


def g1_step_a(a):
    rd = g1_reads(F1, 1, ['x', 0, 1, 2])
    for i, m in enumerate(g1_mfmas(F0, [0, 1])):
        if i == 0:
            a("s_waitcnt lgkmcnt(8)")
        if i == 8:
            a("s_waitcnt lgkmcnt(12)")
            a(f"ds_read_b32 {v(V_FL)}, {v(V_FL+1)} offset:{W_FULL}")
        a(rd[i])
        a(m)
    a(f"ds_write_b32 {v(V_FL+2)}, {v(V_FC)}")
    lab = a.label("g1_skip")
    a(f"s_cbranch_vccnz {lab}")
    a("s_waitcnt lgkmcnt(15)")
    for l in g1_mfmas(F0, [2]):
        a(l)
    a(f"{lab}:")


def g1_step_b(a):
    mf = g1_mfmas(F1, [0, 1])
    rd = g1_reads(F0, 0, ['x', 0, 1, 2])
    slow, lab, lab2 = a.label("g1_slow"), a.label("g1_skip"), a.label("g1_skip")
    a("s_waitcnt lgkmcnt(9)")
    a(mf[0])
    a(f"v_add_u32 {v(V_XC0)}, {s(S_SLOT)}, {v(V_XA0)}")
    a(mf[1])
    a(f"v_readfirstlane_b32 {s(S_T0)}, {v(V_FL)}")
    a(f"v_add_u32 {v(V_WC)}, {s(S_SLOT)}, {v(V_W)}")
    a(mf[2])
    extra = [f"v_add_u32 {v(V_WC+1)}, {s(S_SLOT)}, {v(V_W+1)}", f"v_add_u32 {v(V_WC+2)}, {s(S_SLOT)}, {v(V_W+2)}",
             f"v_add_u32 {v(V_XC1)}, {s(S_SLOT)}, {v(V_XA1)}", f"v_add_u32 {v(V_FC)}, 1, {v(V_FC)}"]
    flip = f"v_xor_b32 {v(V_FL+1)}, 4, {v(V_FL+1)}"
    a(f"s_cmp_lt_u32 {s(S_T0)}, {s(S_T2)}\ns_cbranch_scc1 {slow}")
    r, e = list(rd), extra + [flip]
    for i, m in enumerate(mf[3:]):
        if i == 5:
            a("s_waitcnt lgkmcnt(13)")
        a(r.pop(0))
        if i < 3:
            a(r.pop(0))
        if e:
            a(e.pop(0))
        a(m)
    assert not r
    a(f"s_cbranch_vccnz {lab}")
    a("s_waitcnt lgkmcnt(15)")
    for l in g1_mfmas(F1, [2]):
        a(l)
    a(f"{lab}:")
    if ITST:
        it_issue(a)
        a("s_waitcnt lgkmcnt(0)")
        it_take(a, 16)
    a(f"s_cmp_lt_u32 {s(S_IT)}, 8")
    a("s_cbranch_scc1 g1_loop")
    main, a = a, COLD
    a.nlabel = main.nlabel + 5000
    a.c("next chunk not in yet: finish this one first")
    a(f"{slow}:")
    a("s_waitcnt lgkmcnt(0)")
    for l in interleave(mf[3:], extra, 0, 1):
        a(l)
    a(f"s_cbranch_vccnz {lab2}")
    for l in g1_mfmas(F1, [2]):
        a(l)
    a(f"{lab2}:")
    lds_min_wait(a, V_FL+1, W_FULL, 1, s(S_T2), V_FL)
    if ITST:
        it_issue(a)
        a("s_waitcnt lgkmcnt(0)")
        it_take(a, 32)
    for l in rd:
        a(l)
    a(flip)
    a("s_branch g1_loop")


def dma_chunk0(a):
    for i in range(4):
        a(f"s_add_u32 m0, {s(S_M0)}, {i*4096}")
        a(f"s_add_u32 {s(S_XO)}, {s(S_XO)}, 32768" if i else "s_nop 0")
        a(f"buffer_load_dwordx4 {v(VB_X)}, {s(R_X,4)}, {s(S_XO)} offen {CFX} lds")
    for blk in range(3):
        for mat in range(2):
            a(f"s_add_u32 m0, {s(S_M0)}, {16384 + (mat*3+blk)*4096 - 64*blk}")
            a("s_nop 0")
            a(f"buffer_load_dwordx4 {v(VB_W)}, {s(R_WU if mat else R_WG,4)}, {s(S_WO2 if blk == 2 else S_WO)} offen offset:{64*blk} {CFW} lds")


def spf(a, srd, sbase, offs):
    for o in offs:
        a(f"s_buffer_load_dword {s(S_DUM)}, {s(srd,4)}, {s(sbase)} offset:{o:#x}")


def lds_min_wait(a, vaddr, off, n, target, vt, nap=None):
    lab = a.label("lw")
    a(f"{lab}:")
    a(f"ds_read_b{32*n} {v(vt,n)}, {v(vaddr)} offset:{off}")
    a("s_waitcnt lgkmcnt(0)")
    if n == 4:
        a(f"v_min3_u32 {v(vt)}, {v(vt)}, {v(vt+1)}, {v(vt+2)}\nv_min_u32 {v(vt)}, {v(vt)}, {v(vt+3)}")
    elif n == 2:
        a(f"v_min_u32 {v(vt)}, {v(vt)}, {v(vt+1)}")
    a("s_nop 0")
    a(f"v_readfirstlane_b32 {s(S_T0)}, {v(vt)}")
    a("s_nop 0")
    done = a.label("lw_ok")
    a(f"s_cmp_ge_u32 {s(S_T0)}, {target}\ns_cbranch_scc1 {done}")
    if nap is None:
        nap = opt("NAP", 1) if vaddr == C_CNT else 0
    if nap:
        a(f"s_sleep {nap}")
    a(f"s_add_u32 {s(S_SPIN)}, {s(S_SPIN)}, 1\ns_cmp_lt_u32 {s(S_SPIN)}, {LSPIN_MAX}\ns_cbranch_scc1 {lab}")
    a(f"{done}:")


def lds_inc(a, vaddr, vone, off):
    a(f"s_mov_b64 exec, 1\nds_add_u32 {v(vaddr)}, {v(vone)} offset:{off}\ns_mov_b64 exec, -1")


WDE = opt("WDE", 0)


def wd_setup(a, first, S_WB=S_WB):
    a.c("Wd DMA lane offset: (l>>3)*1024 + ((l&7) ^ (((l>>4)&3)<<1))*16")
    a(f"v_lshrrev_b32 v12, 4, v0\nv_lshlrev_b32 v13, 1, v12\nv_and_b32 v14, 7, v0\nv_xor_b32 v13, v13, v14\nv_lshlrev_b32 v13, 4, v13\nv_lshrrev_b32 v14, 3, v0\nv_lshl_add_u32 {v(G_WD)}, v14, 10, v13")
    a(f"s_lshl_b32 {s(S_KC)}, {s(S_WB)}, 12")
    a(f"s_lshl_b32 {s(S_RA)}, {s(S_WB)}, 13\ns_add_u32 {s(S_RB)}, {s(S_RA)}, {131072 + 16384}\ns_add_u32 {s(S_RA)}, {s(S_RA)}, 131072\ns_cmp_eq_u32 {s(S_WB)}, 0\ns_cselect_b32 {s(S_RA)}, {L_RA0}, {s(S_RA)}")
    if opt("ROT", 1):
        a(f"s_and_b32 {s(S_T0)}, {s(S_MT)}, 3\ns_mul_i32 {s(S_T0)}, {s(S_T0)}, 3\ns_mul_i32 {s(S_T1)}, {s(S_NT)}, 7\ns_add_u32 {s(S_T0)}, {s(S_T0)}, {s(S_T1)}")
        a(f"s_mul_i32 {s(S_T1)}, {s(S_T0)}, 187\ns_lshr_b32 {s(S_T1)}, {s(S_T1)}, 11\ns_mul_i32 {s(S_T1)}, {s(S_T1)}, 11\ns_sub_u32 {s(S_T0)}, {s(S_T0)}, {s(S_T1)}")
    else:
        a(f"s_mov_b32 {s(S_T0)}, 0")
    a(f"s_add_u32 {s(S_DK)}, {s(S_T0)}, {first}\ns_sub_u32 {s(S_T1)}, {s(S_DK)}, 11\ns_cmp_ge_u32 {s(S_DK)}, 11\ns_cselect_b32 {s(S_DK)}, {s(S_T1)}, {s(S_DK)}")
    a(f"s_mul_i32 {s(S_DO)}, {s(S_WB)}, {NSTEP*32768}\ns_lshl_b32 {s(S_T1)}, {s(S_NT)}, 7\ns_add_u32 {s(S_DO)}, {s(S_DO)}, {s(S_T1)}")


def g2_setup(a):
    a(f"v_lshlrev_b32 {v(G_L16)}, 4, v0")
    wd_setup(a, NRW)
    a(f"s_mov_b32 {s(S_HK)}, {s(S_T0)}")
    a(f"s_cmp_eq_u32 {s(S_WAVE)}, 3\ns_cselect_b32 {s(S_KEND)}, 10, 99")
    a.c("tr address: w*4096 + (l>>2)*128 + ((db ^ ((l>>3)&3))*32) + (l&3)*8")
    a(f"v_lshrrev_b32 v13, 2, v0\nv_lshlrev_b32 v13, 7, v13\nv_and_b32 v15, 3, v0\nv_lshl_add_u32 v13, v15, 3, v13\nv_add_u32 v13, {s(S_KC)}, v13\nv_and_b32 v14, 3, v14")
    a(f"s_sub_u32 {s(S_T1)}, {s(S_RA)}, {s(S_KC)}")
    for db in range(4):
        a(f"v_xor_b32 v15, {db}, v14\nv_lshl_add_u32 {v(G_TR+db)}, v15, 5, v13\nv_add_u32 {v(G_TR0+db)}, {s(S_T1)}, {v(G_TR+db)}\nv_add_u32 {v(G_TR5+db)}, 0x10000, {v(G_TR+db)}")
    a(f"s_mul_i32 {s(S_HO)}, {s(S_MT)}, {2*NU*1024}\ns_mul_i32 {s(S_T0)}, {s(S_WAVE)}, {NSTEP*2048}\ns_add_u32 {s(S_HO)}, {s(S_HO)}, {s(S_T0)}")
    a.c("H flags this wave needs: F3[mt*32 + 8w + (l&7)]")
    a(f"s_lshl_b32 {s(S_T0)}, {s(S_MT)}, 2\ns_add_u32 {s(S_T0)}, {s(S_T0)}, {s(S_WAVE)}\ns_lshl_b32 {s(S_T0)}, {s(S_T0)}, 10\ns_add_u32 {s(S_T0)}, {s(S_T0)}, {WS_F3:#x}")
    if opt("PROG", 0):
        a.c("lane (p = l&15, h = (l>>4)&1) watches the producer of unit U = 2*((rot + p) mod 11) + h")
        a(f"v_and_b32 v12, 15, v0\nv_min_u32 v12, 10, v12\nv_add_u32 v12, {s(S_HK)}, v12\nv_subrev_u32 v13, 11, v12\nv_min_u32 v12, v12, v13")
        a("v_bfe_u32 v13, v0, 4, 1\nv_lshl_add_u32 v12, v12, 1, v13\nv_mul_u32_u24 v13, 0x56, v12\nv_lshrrev_b32 v13, 8, v13")
        a(f"s_cmp_eq_u32 {s(S_WAVE)}, 3\ns_cselect_b32 {s(S_T1)}, 2, 3\nv_lshrrev_b32 v12, 1, v12\nv_subrev_u32 v12, {s(S_T1)}, v12")
        a(f"v_max_i32 v12, v12, v13\nv_min_u32 v12, 7, v12\nv_lshlrev_b32 v12, 7, v12\nv_add_u32 {v(G_FL)}, {s(S_T0)}, v12")
        return
    if not opt("HT", 0):
        a(f"v_and_b32 v12, 7, v0\nv_lshlrev_b32 v12, 7, v12\nv_add_u32 {v(G_FL)}, {s(S_T0)}, v12")
        return
    a.c("lane (U = l>>1, p = l&1) watches the producer of unit U and pulls line nt of that unit into L2")
    a(f"s_cmp_eq_u32 {s(S_WAVE)}, 3\ns_cselect_b32 {s(S_T1)}, 2, 3\ns_cselect_b32 {s(S_T2)}, 19, 21")
    a(f"v_lshrrev_b32 v12, 1, v0\nv_min_u32 v12, {s(S_T2)}, v12\nv_mul_u32_u24 v13, 0x56, v12\nv_lshrrev_b32 v13, 8, v13")
    a(f"v_and_b32 v15, 1, v0\nv_mul_u32_u24 v15, {NU}, v15\nv_add_u32 v15, v15, v12\nv_lshlrev_b32 v15, 10, v15\ns_lshl_b32 {s(S_T2)}, {s(S_NT)}, 7\nv_add_u32 {v(G_HT)}, {s(S_T2)}, v15")
    a(f"v_lshrrev_b32 v12, 1, v12\nv_subrev_u32 v12, {s(S_T1)}, v12")
    a(f"v_max_i32 v12, v12, v13\nv_lshlrev_b32 v12, 7, v12\nv_add_u32 {v(G_FL)}, {s(S_T0)}, v12")


def g1_compute(a):
    a(f"s_setprio {opt('PRA', 3)}")
    if opt("TOUCH", 0):
        l1, l2 = a.label("tc"), a.label("tc")
        a(f"s_mov_b32 {s(R_K+3)}, 0x20000")
        a(f"s_cmp_ge_u32 {s(S_WAVE)}, 2\ns_cbranch_scc1 {l1}")
        a(f"s_lshl_b32 {s(S_T2)}, {s(S_WAVE)}, 8\ns_add_u32 {s(R_K)}, {s(R_X)}, {s(S_T2)}\ns_addc_u32 {s(R_K+1)}, {s(R_X+1)}, 0\ns_mov_b32 {s(R_K+2)}, {S*D*2 - 256:#x}")
        RX0 = R_X
        globals()["R_X"] = R_K
        touch_x(a, (0, 4) if opt("TOUCH", 0) == 2 else (0,), 1)
        globals()["R_X"] = RX0
        a(f"s_branch {l2}\n{l1}:")
        a(f"s_cmp_eq_u32 {s(S_WAVE)}, 2\ns_cselect_b64 {s(R_K,2)}, {s(R_WG,2)}, {s(R_WU,2)}\ns_mov_b32 {s(R_K+2)}, {D*F*2:#x}")
        touch_w(a, 0, (R_K,), 1)
        a(f"{l2}:")
    dma_chunk0(a)
    a("s_barrier")
    prologue(a, False, 2)
    if opt("SPF", 0):
        a.c("warm the lines the column sums need: rows 32mi + 16*(w&1).. of gate (w<2) or up")
        a(f"s_cmp_lt_u32 {s(S_WAVE)}, 2\ns_cselect_b64 {s(R_K,2)}, {s(R_WG,2)}, {s(R_WU,2)}\ns_mov_b32 {s(R_K+2)}, {D*F*2:#x}")
        a(f"s_lshl_b32 {s(S_T0)}, {s(S_MI)}, 1\ns_and_b32 {s(S_T1)}, {s(S_WAVE)}, 1\ns_add_u32 {s(S_T0)}, {s(S_T0)}, {s(S_T1)}\ns_mul_i32 {s(S_XO)}, {s(S_T0)}, {16*F*2}")
        a(f"s_lshl_b32 {s(S_T1)}, {s(S_FB0)}, 6\ns_add_u32 {s(S_XO)}, {s(S_XO)}, {s(S_T1)}")
        spf(a, R_K, S_XO, [r*F*2 + h*128 for r in range(7) for h in range(2)])
    a(f"s_and_b32 {s(S_SH)}, {s(S_WAVE)}, 1\ns_lshr_b32 {s(S_UH)}, {s(S_WAVE)}, 1")
    a.c("x fragment address: (64*sh + s16)*128 + ((kg ^ ((s16>>1)&7))*16)")
    a("v_and_b32 v10, 15, v0\nv_lshrrev_b32 v11, 4, v0\nv_lshrrev_b32 v12, 1, v10\nv_xor_b32 v12, v12, v11\nv_lshlrev_b32 v12, 4, v12")
    a(f"v_lshl_add_u32 {v(V_XA0)}, v10, 7, v12\ns_lshl_b32 {s(S_T0)}, {s(S_SH)}, 13\nv_add_u32 {v(V_XA0)}, {s(S_T0)}, {v(V_XA0)}")
    a(f"v_xor_b32 {v(V_XA1)}, 64, {v(V_XA0)}")
    a.c("W fragment address: 16384 + blk*4096 + kg*512 + r*64 + ((h^(kg&1))*32) + c*8")
    a("v_lshlrev_b32 v12, 9, v11\nv_bfe_u32 v13, v0, 2, 2\nv_lshl_add_u32 v12, v13, 6, v12\nv_and_b32 v13, 3, v0\nv_lshl_add_u32 v12, v13, 3, v12")
    a("v_and_b32 v13, 1, v11\nv_lshl_add_u32 v12, v13, 5, v12")
    a(f"s_mul_i32 {s(S_T0)}, {s(S_UH)}, {s(S_NBLK)}")
    for u in range(3):
        a(f"s_add_u32 {s(S_T1)}, {s(S_T0)}, {u}\ns_and_b32 {s(S_T2)}, {s(S_T1)}, 1\ns_lshl_b32 {s(S_T2)}, {s(S_T2)}, 5")
        a(f"s_lshr_b32 {s(S_T1)}, {s(S_T1)}, 1\ns_lshl_b32 {s(S_T1)}, {s(S_T1)}, 12\ns_add_u32 {s(S_T1)}, {s(S_T1)}, 16384")
        a(f"v_xor_b32 {v(V_W+u)}, {s(S_T2)}, v12\nv_add_u32 {v(V_W+u)}, {s(S_T1)}, {v(V_W+u)}")
    g2_setup(a)
    ep_setup(a)
    for i in range(48):
        a(f"v_pk_mov_b32 {v(ACC+2*i,2)}, 0, 0")
    for i in range(5):
        a(f"v_mov_b32 {v(V_XC0+i)}, {v(V_XA0+i)}")
    a(f"s_mov_b32 {s(S_IT)}, 0\ns_mov_b32 {s(S_SLOT)}, 0")
    a(f"v_mov_b32 {v(V_LW)}, {L_CNT}\nv_mov_b32 {v(V_FL+1)}, {L_CNT}\nv_mov_b32 {v(V_FC)}, 1\ns_lshl_b32 {s(S_T0)}, {s(S_WAVE)}, 2\ns_add_u32 {s(S_T0)}, {s(S_T0)}, {L_CNT + W_FREE}\nv_mov_b32 {v(V_FL+2)}, {s(S_T0)}")
    a.c("vcc != 0 marks a two-block tile")
    a(f"s_cmp_eq_u32 {s(S_NBLK)}, 2\ns_cselect_b64 vcc, -1, 0")
    if opt("SPF", 0):
        spf(a, R_K, S_XO, [r*F*2 + h*128 for r in range(7, 16) for h in range(2)])
    stamp(a, 1)
    a("s_waitcnt vmcnt(0)")
    a(f"ds_write_b32 {v(V_FL+2)}, {v(V_FC)} offset:{W_C0 - W_FREE}")
    lds_min_wait(a, V_LW, W_C0, 4, 1, 196)
    stamp(a, 2)
    for l in g1_reads(F0, 0, ['x', 0, 1, 2]):
        a(l)
    a("s_waitcnt lgkmcnt(0)")
    if opt("LAL", 0):
        a(f".p2alignl {opt('LAL', 0)}, 0xbf800000")
    a("g1_loop:")
    a(f"s_add_u32 {s(S_SLOT)}, {s(S_SLOT)}, {SLOT}\ns_cmp_eq_u32 {s(S_SLOT)}, {NSLOT*SLOT}\ns_cselect_b32 {s(S_SLOT)}, 0, {s(S_SLOT)}")
    a(f"s_add_u32 {s(S_IT)}, {s(S_IT)}, 1\ns_and_b32 {s(S_T2)}, {s(S_IT)}, 7")
    g1_step_a(a)
    if ITST:
        it_issue(a)
        a("s_waitcnt lgkmcnt(0)")
        it_take(a, 0)
    g1_step_b(a)
    stamp(a, 3)


def wd_dma(i, rings=1):
    sl = SLOTMAP[i % NRW]
    ops = []
    n = 4 * rings
    for q in range(n):
        pre = f"s_lshl_b32 {s(S_T3)}, {s(S_DK)}, 15\ns_add_u32 {s(S_T3)}, {s(S_T3)}, {s(S_DO)}\n" if q == 0 else ""
        inc = 8192 if q != 4 else 2*NSTEP*32768 - 3*8192
        mid = "s_nop 0" if q == 0 else f"s_add_u32 {s(S_T3)}, {s(S_T3)}, {inc}"
        post = f"\ns_add_u32 {s(S_DK)}, {s(S_DK)}, 1\ns_cmp_eq_u32 {s(S_DK)}, 11\ns_cselect_b32 {s(S_DK)}, 0, {s(S_DK)}" if q == n - 1 else ""
        m0 = f"{s(S_RB if q >> 2 else S_RA)}, {sl*4096 + (q&3)*1024}" if sl < 2 else f"{s(S_KC)}, {(sl-2)*16384 + (q&3)*1024 + (q>>2)*8192}"
        ops.append(pre + f"s_add_u32 m0, {m0}\n{mid}\n"
                   f"buffer_load_dwordx4 {v(G_WD)}, {s(R_WD,4)}, {s(S_T3)} offen {CFD} lds" + post)
    return ops


def h_loads(i):
    hb = G_H + (i % NHB) * 16
    pre = (f"s_lshl_b32 {s(S_T1)}, {s(S_HK)}, 11\ns_add_u32 {s(S_T1)}, {s(S_T1)}, {s(S_HO)}\n"
           f"s_cmp_eq_u32 {s(S_HK)}, {s(S_KEND)}\ns_cselect_b32 {s(S_T1)}, {OOB:#x}, {s(S_T1)}\n")
    post = f"\ns_add_u32 {s(S_HK)}, {s(S_HK)}, 1\ns_cmp_eq_u32 {s(S_HK)}, 11\ns_cselect_b32 {s(S_HK)}, 0, {s(S_HK)}"
    ld = lambda r, off: f"buffer_load_dwordx4 {v(r,4)}, {v(G_L16)}, {s(R_WS,4)}, {s(S_T1)} offen offset:{off} sc1"
    return [pre + ld(hb, 0), ld(hb+4, 1024), f"s_add_u32 {s(S_T1)}, {s(S_T1)}, {NU*1024}\n" + ld(hb+8, 0), ld(hb+12, 1024) + post]


S_H0, S_H1 = S_XO, S_WO
E_A, E_ST = 208, 144


def ep_setup(a):
    a.c("epilogue addresses: row constants, column sums; HF offset = ((4*mi + 2*sh + pp)*86 + 2*fb0 + uu)*1024 + lane*16")
    a(f"v_and_b32 v10, 15, v0\nv_lshlrev_b32 v10, 4, v10\ns_lshl_b32 {s(S_T0)}, {s(S_SH)}, 10\ns_add_u32 {s(S_T0)}, {s(S_T0)}, {L_ST}\nv_add_u32 {v(E_A)}, {s(S_T0)}, v10")
    a(f"s_mul_i32 {s(S_T1)}, {s(S_UH)}, {s(S_NBLK)}\ns_lshl_b32 {s(S_T0)}, {s(S_T1)}, 6\ns_add_u32 {s(S_T0)}, {s(S_T0)}, {L_CS}")
    a(f"v_and_b32 v11, 48, v0\nv_add_u32 {v(E_A+1)}, {s(S_T0)}, v11")
    a(f"s_lshl_b32 {s(S_T0)}, {s(S_MI)}, 1\ns_add_u32 {s(S_T0)}, {s(S_T0)}, {s(S_SH)}\ns_mul_i32 {s(S_T0)}, {s(S_T0)}, {2*NU}")
    a(f"s_lshl_b32 {s(S_T2)}, {s(S_FB0)}, 1\ns_add_u32 {s(S_T0)}, {s(S_T0)}, {s(S_T2)}\ns_add_u32 {s(S_T0)}, {s(S_T0)}, {s(S_T1)}\ns_lshl_b32 {s(S_H0)}, {s(S_T0)}, 10")
    a(f"s_add_u32 {s(S_H1)}, {s(S_H0)}, {NU*1024}")
    a(f"s_lshl_b32 {s(S_T0)}, {s(S_SH)}, 2\ns_add_u32 {s(S_T0)}, {s(S_T0)}, {L_CNT}\nv_mov_b32 v15, {s(S_T0)}")


def g1_epilogue(a):
    VST, VCS, T = 112, 216, 168
    top, ok = a.label("ga"), a.label("ga_ok")
    a(f"{top}:")
    a(f"ds_read_b32 v14, {v(V_LW)} offset:{W_GATH}")
    for sb in range(4):
        a(f"ds_read_b128 {v(E_ST+4*sb,4)}, {v(E_A)} offset:{sb*256}")
    for u in range(3):
        for mat in range(2):
            a(f"ds_read_b128 {v(VCS+4*(u*2+mat),4)}, {v(E_A+1)} offset:{mat*512+u*64}")
    a(f"ds_read_b32 v1, {v(V_LW)} offset:{W_NON}")
    a(f"v_mov_b32 v13, 1\ns_waitcnt lgkmcnt(7)\nv_readfirstlane_b32 {s(S_T0)}, v14")
    for i in range(4):
        a(f"v_mov_b32 {v(VST+2*i)}, {v(E_ST+i)}\nv_mov_b32 {v(VST+2*i+1)}, {v(E_ST+i)}")
    a(f"s_cmp_ge_u32 {s(S_T0)}, 2\ns_cbranch_scc1 {ok}")
    a(f"s_add_u32 {s(S_SPIN)}, {s(S_SPIN)}, 1\ns_cmp_lt_u32 {s(S_SPIN)}, {LSPIN_MAX}\ns_cbranch_scc1 {top}")
    a(f"{ok}:")
    stamp(a, 4)
    for i in range(4, 16):
        a(f"v_mov_b32 {v(VST+2*i)}, {v(E_ST+i)}\nv_mov_b32 {v(VST+2*i+1)}, {v(E_ST+i)}")
    a("s_waitcnt lgkmcnt(0)")
    a(f"v_readfirstlane_b32 {s(S_NON)}, v1")
    lab, lab2 = a.label("ep_two"), a.label("ep_done")
    if opt("EPST", 0): stamp(a, 3)

    def group(u, pp):
        out = []
        o = T + 32 + 4 * pp
        pairs = [(2*pp + (q >> 1), q & 1, T + 8*q) for q in range(4)]
        def each(f):
            for sb, h, t in pairs:
                g, up, st = acc(u, 0, sb) + 2*h, acc(u, 1, sb) + 2*h, VST + 8*sb
                cg, cu = VCS + 4*(u*2) + 2*h, VCS + 4*(u*2+1) + 2*h
                out.append(f(g, up, st, cg, cu, t))
        each(lambda g, up, st, cg, cu, t: f"v_pk_fma_f32 {v(g,2)}, {v(cg,2)}, {v(st,2)}, {v(g,2)} neg_lo:[0,1,0] neg_hi:[0,1,0]")
        each(lambda g, up, st, cg, cu, t: f"v_pk_mul_f32 {v(t,2)}, {v(g,2)}, {v(g,2)}")
        each(lambda g, up, st, cg, cu, t: f"v_pk_fma_f32 {v(t,2)}, {v(t,2)}, {v(st+4,2)}, {v(st+2,2)}")
        each(lambda g, up, st, cg, cu, t: f"v_pk_mul_f32 {v(t,2)}, {v(t,2)}, {v(g,2)}")
        each(lambda g, up, st, cg, cu, t: f"v_exp_f32 {v(t)}, {v(t)}\nv_exp_f32 {v(t+1)}, {v(t+1)}")
        each(lambda g, up, st, cg, cu, t: f"v_pk_fma_f32 {v(up,2)}, {v(cu,2)}, {v(st,2)}, {v(up,2)} neg_lo:[0,1,0] neg_hi:[0,1,0]")
        each(lambda g, up, st, cg, cu, t: f"v_pk_fma_f32 {v(t,2)}, {v(t,2)}, {v(st+6,2)}, {v(st+6,2)}")
        each(lambda g, up, st, cg, cu, t: f"v_rcp_f32 {v(t)}, {v(t)}\nv_rcp_f32 {v(t+1)}, {v(t+1)}")
        each(lambda g, up, st, cg, cu, t: f"v_pk_mul_f32 {v(g,2)}, {v(g,2)}, {v(up,2)}")
        each(lambda g, up, st, cg, cu, t: f"v_pk_mul_f32 {v(t,2)}, {v(t,2)}, {v(g,2)}")
        for q, (sb, h, t) in enumerate(pairs):
            out.append(f"v_cvt_pk_bf16_f32 {v(o+q)}, {v(t)}, {v(t+1)}")
        if not opt("NOST", 0):
            out.append(f"buffer_store_dwordx4 {v(o,4)}, {v(G_L16)}, {s(R_WS,4)}, {s(S_H1 if pp else S_H0)} offen offset:{u*1024} {'sc1' if not opt('PLST', 0) else ''}")
        return out

    def stage_flag(n, W_WD=W_WD):
        ok = a.label("wd_ok")
        a(f"s_waitcnt lgkmcnt(0)\nv_readfirstlane_b32 {s(S_T0)}, v14\ns_nop 0\ns_cmp_ge_u32 {s(S_T0)}, {n}\ns_cbranch_scc1 {ok}")
        lds_min_wait(a, 15, W_WD, 1, n, 14)
        a(f"{ok}:")

    rd_flag = f"ds_read_b32 v14, v15 offset:{W_WD}"
    a.c("as a unit's accumulators retire they take two Wd steps; the freed ring slots are refilled")
    for l in group(0, 0) + [f"ds_read_b32 v14, v15 offset:{W_WE if WDE else W_WD}"] + group(0, 1):
        a(l)
    if opt("EPST", 0): stamp(a, 1)
    if not opt("NOTR", 0):
        stage_flag(1, W_WE if WDE else W_WD)
    if opt("EPST", 0): stamp(a, 2)
    for l in interleave(group(1, 0), [] if opt("NOTR", 0) else g2_tr(0) + g2_tr(1), 0, 2):
        a(l)
    a(rd_flag)
    for l in group(1, 1):
        a(l)
    a(f"s_cbranch_vccnz {lab}")
    for l in group(2, 0) + [rd_flag] + group(2, 1):
        a(l)
    a(f"{lab}:")
    a.c("release the conv waves")
    if not opt("CEARLY", 0):
        a("s_mov_b64 exec, 1\nds_add_u32 v12, v13\ns_mov_b64 exec, -1")
    stamp(a, 5)
    a.c("publish: F3[(2mi + sh)*32 + ni*2 + uh]")
    a(f"s_lshl_b32 {s(S_T0)}, {s(S_MI)}, 1\ns_add_u32 {s(S_T0)}, {s(S_T0)}, {s(S_SH)}\ns_lshl_b32 {s(S_T0)}, {s(S_T0)}, 4\ns_add_u32 {s(S_T0)}, {s(S_T0)}, {s(S_NI)}")
    a(f"s_lshl_b32 {s(S_T0)}, {s(S_T0)}, 1\ns_add_u32 {s(S_T0)}, {s(S_T0)}, {s(S_UH)}\ns_lshl_b32 {s(S_T0)}, {s(S_T0)}, 7\ns_add_u32 {s(S_T2)}, {s(S_T0)}, {WS_F3:#x}")
    a("s_waitcnt lgkmcnt(0)")
    for l in wd_dma(7) + wd_dma(8):
        a(l)
    a("s_waitcnt vmcnt(8)")
    flag_store(a, S_T2, 10, 11)
    stamp(a, 6)
    stage_flag(2)
    for l in g2_tr(2) + g2_tr(3):
        a(l)
    a("s_waitcnt lgkmcnt(0)")
    if not opt("W9L", 0):
        for l in wd_dma(9) + wd_dma(10):
            a(l)


def g2_tr(i):
    wf = G_WF + (i % NWF) * 16
    sl = SLOTMAP[i % NRW]
    base, off = (G_TR0, sl*4096) if sl < 2 else (G_TR5, 0) if sl == 6 else (G_TR, (sl-2)*16384)
    return [f"ds_read_b64_tr_b16 {v(wf+4*db+2*t,2)}, {v(base+db)} offset:{off + t*2048}" for db in range(4) for t in range(2)]


def g2_swaps(i, p):
    hb = G_H + (i % NHB) * 16
    return [f"v_swap_b32 {v(hb+8*p+2+k)}, {v(hb+8*p+4+k)}" for k in range(2)]


def g2_need(n):
    g2_need.k += 1
    top, ok = f"g2p_{g2_need.k}", f"g2ok_{g2_need.k}"
    return (f"s_cmp_ge_u32 {s(S_IT)}, {n}\ns_cbranch_scc1 {ok}\n{top}:\n"
            f"buffer_load_dword v10, {v(G_FL)}, {s(R_WS,4)}, 0 offen sc1\ns_add_u32 {s(S_SPIN)}, {s(S_SPIN)}, 1\ns_waitcnt vmcnt(0)\n"
            f"v_cmp_ne_u32 vcc, {s(S_NON)}, v10\ns_cmp_ge_u32 {s(S_SPIN)}, {SPIN_MAX}\ns_cbranch_scc1 {ok}\n"
            f"s_lshr_b32 {s(S_T0)}, vcc_lo, 16\ns_or_b32 {s(S_T0)}, {s(S_T0)}, vcc_lo\ns_bitset1_b32 {s(S_T0)}, 11\ns_ff1_i32_b32 {s(S_IT)}, {s(S_T0)}\n"
            f"s_cmp_ge_u32 {s(S_IT)}, {n}\ns_cbranch_scc1 {ok}\ns_sleep {opt('GSL', 4)}\ns_branch {top}\n{ok}:")
g2_need.k = 0


def g2_main(a):
    PROG = opt("PROG", 0)
    a(f"s_setprio {opt('PRG', 2)}")
    if PROG:
        a(f"s_mov_b32 {s(S_IT)}, 0\ns_mov_b32 {s(S_SPIN)}, 0")
        a(g2_need(PROG))
    elif opt("HT", 0):
        top, done = a.label("hp"), a.label("hp_ok")
        a(f"s_mov_b32 {s(S_SPIN)}, 0\ns_mov_b32 {s(S_EX)}, -1\ns_mov_b32 {s(S_EX+1)}, 0xfff")
        a(f"{top}:")
        a(f"buffer_load_dword v10, {v(G_FL)}, {s(R_WS,4)}, 0 offen sc1")
        a("s_waitcnt vmcnt(0)")
        a(f"v_cmp_ne_u32 vcc, {s(S_NON)}, v10")
        a(f"s_cbranch_vccz {done}")
        a(f"s_andn2_b64 exec, {s(S_EX,2)}, vcc\ns_and_b64 {s(S_EX,2)}, {s(S_EX,2)}, vcc")
        skip = a.label("hp_s")
        a(f"s_cbranch_execz {skip}")
        a(f"buffer_load_dword v11, {v(G_HT)}, {s(R_WS,4)}, {s(S_HO)} offen sc1")
        a(f"{skip}:")
        a("s_mov_b64 exec, -1\ns_sleep 1")
        a(f"s_add_u32 {s(S_SPIN)}, {s(S_SPIN)}, 1\ns_cmp_lt_u32 {s(S_SPIN)}, {SPIN_MAX}\ns_cbranch_scc1 {top}")
        a(f"{done}:")
    else:
        poll(a, G_FL, 10)
    stamp(a, 7)
    q = VQ(a)
    def hq(i):
        q.add(("h", i, 0), 2); q.add(("h", i, 1), 2)
    for i in range(NHB - 1):
        if PROG and i >= PROG:
            a(g2_need(i + 1))
        for op in h_loads(i):
            a(op)
        hq(i)
    if opt("W9L", 0):
        for l in wd_dma(9) + wd_dma(10):
            a(l)
        q.add("wd", 8)
    lds_min_wait(a, 15, W_WD, 1, 3, 14)
    if opt("G2ST", 0): stamp(a, 1)
    q.wait(("h", 0, 0))
    if opt("G2ST", 0): stamp(a, 2)
    for l in g2_swaps(0, 0):
        a(l)
    a("s_nop 1")
    for i in range(NSTEP):
        if opt("G2ST", 0) and i in (2, 4, 6, 8):
            stamp(a, 2 + i // 2)
        if i == opt("HIS", 5):
            lds_inc(a, V_LW, 13, W_HI)
        wf, hb = G_WF + (i % NWF) * 16, G_H + (i % NHB) * 16
        ld = h_loads(i + NHB - 1) if i + NHB - 1 < NSTEP else []
        if ld and PROG and i + NHB > PROG:
            ld[0] = g2_need(i + NHB) + "\n" + ld[0]
        tr = g2_tr(i + 2) if NWF <= i + 2 < NSTEP else []
        n = 0
        for p in range(2):
            for db in range(4):
                for sb in (2*p, 2*p + 1):
                    c = G_ACC + (db * 4 + sb) * 4
                    a(f"v_mfma_f32_16x16x32_bf16 {v(c,4)}, {v(wf+4*db,4)}, {v(hb+4*sb,4)}, {v(c,4) if i else 0}")
                    n += 1
                    if n == 4:
                        q.wait(("h", i, 1))
                        for l in g2_swaps(i, 1):
                            a(l)
                    if n in (1, 5, 8, 11) and ld:
                        a(ld.pop(0))
                        q.add(("h", i + NHB - 1, 0 if len(ld) >= 2 else 1), 1)
                    if 5 <= n <= 12 and tr:
                        a(tr.pop(0))
                    if n == 13 and i + 1 < NSTEP:
                        q.wait(("h", i + 1, 0))
                        for l in g2_swaps(i + 1, 0):
                            a(l)
                        if i + 1 >= NWF:
                            a(f"s_waitcnt lgkmcnt({8 if i + 2 < NSTEP else 0})")
    stamp(a, 8)
    a.c("partial tile -> own ring slots 1..4: sb*16384 + w*4096 + s16*256 + ((4db + g) ^ (s16&7))*16")
    a(f"v_and_b32 v8, 15, v0\nv_lshrrev_b32 v9, 4, v0\nv_and_b32 v10, 7, v0\nv_xor_b32 v9, v9, v10\nv_lshlrev_b32 v9, 4, v9\nv_lshl_add_u32 v8, v8, 8, v9\nv_add_u32 v8, {s(S_KC)}, v8\nv_xor_b32 v9, 64, v8")
    a("s_nop 0")
    for db in range(4):
        for sb in range(4):
            a(f"ds_write_b128 {'v9' if db & 1 else 'v8'}, {v(G_ACC+(db*4+sb)*4,4)} offset:{sb*16384 + (db>>1)*128}")
    a("s_waitcnt lgkmcnt(0)")
    stamp(a, 9)
    a("s_barrier")


VB_X2 = 18


def dma_chunk(a):
    a(f"s_add_u32 {s(S_T1)}, {s(S_UH)}, {s(S_IT)}\ns_and_b32 {s(S_T1)}, {s(S_T1)}, 7")
    a(f"s_lshl_b32 {s(S_T0)}, {s(S_T1)}, 7\ns_add_u32 {s(S_T0)}, {s(S_T0)}, {s(S_XO)}")
    a(f"s_mul_i32 {s(S_T1)}, {s(S_T1)}, {64*F*2}\ns_add_u32 {s(S_HO)}, {s(S_WO)}, {s(S_T1)}\ns_add_u32 {s(S_DO)}, {s(S_WO2)}, {s(S_T1)}")
    for i in range(16):
        a(f"s_add_u32 m0, {s(S_SLOT)}, {i*1024}")
        a(f"s_add_u32 {s(S_T0)}, {s(S_T0)}, 8192" if i else "s_nop 0")
        a(f"buffer_load_dwordx4 {v(VB_X2 if i & 1 else VB_X)}, {s(R_X,4)}, {s(S_T0)} offen {CFX} lds")
    for k4 in range(4):
        if ITST and k4 == 0:
            it_issue(a)
            a("s_waitcnt lgkmcnt(0)")
            it_take(a, 40)
        if k4:
            a(f"s_add_u32 {s(S_HO)}, {s(S_HO)}, {16*F*2}\ns_add_u32 {s(S_DO)}, {s(S_DO)}, {16*F*2}")
        for blk in range(3):
            for mat in range(2):
                a(f"s_add_u32 m0, {s(S_SLOT)}, {16384 + (mat*3+blk)*4096 + k4*1024 - 64*blk}")
                a("s_nop 0")
                a(f"buffer_load_dwordx4 {v(VB_W)}, {s(R_WU if mat else R_WG,4)}, {s(S_DO if blk == 2 else S_HO)} offen offset:{64*blk} {CFW} lds")


GG = 224


def loader(a):
    a(f"s_setprio {opt('PRL', 2)}")
    a.c("loader w streams chunks 1+w, 3+w, ..")
    a(f"s_lshl_b32 {s(S_XO)}, {s(S_MI)}, 17\ns_lshl_b32 {s(S_WO)}, {s(S_FB0)}, 6")
    a(f"s_cmp_eq_u32 {s(S_NBLK)}, 3\ns_cselect_b32 {s(S_WO2)}, {s(S_WO)}, {OOB:#x}")
    a(f"s_lshl_b32 {s(S_T0)}, {s(S_WB)}, 6\nv_xor_b32 {v(VB_X)}, {s(S_T0)}, {v(VB_X)}\nv_xor_b32 {v(VB_X2)}, 64, {v(VB_X)}")
    a(f"s_add_u32 {s(S_IT)}, {s(S_WB)}, 1\ns_mul_i32 {s(S_SLOT)}, {s(S_IT)}, {SLOT}\ns_mov_b32 {s(S_SH)}, {s(S_WB)}")
    a(f"s_lshl_b32 {s(S_T0)}, {s(S_WB)}, 2\ns_add_u32 {s(S_T0)}, {s(S_T0)}, {L_CNT + W_FULL}\nv_mov_b32 v10, {s(S_T0)}")
    lds_min_wait(a, C_CNT, W_ISS, 1, s(S_WB), 20)
    a("ld_loop:")
    if ITST:
        it_issue(a)
        a("s_waitcnt lgkmcnt(0)")
        it_take(a, 32)
    dma_chunk(a)
    a(f"v_mov_b32 v16, {s(S_IT)}")
    a(f"s_mov_b64 exec, 1\nds_max_u32 {v(C_CNT)}, v16 offset:{W_ISS}\ns_mov_b64 exec, -1")
    if ITST:
        it_issue(a)
        a("s_waitcnt lgkmcnt(0)")
        it_take(a, 0)
    a(f"s_sub_u32 {s(S_SLOT)}, {s(S_SLOT)}, {SLOT}\ns_cselect_b32 {s(S_SLOT)}, {2*SLOT}, {s(S_SLOT)}")
    a(f"s_cmp_ge_u32 {s(S_IT)}, 6\ns_cbranch_scc1 ld_done")
    a("s_waitcnt vmcnt(0)")
    a("ds_write_b32 v10, v16")
    if ITST:
        it_issue(a)
        a("s_waitcnt lgkmcnt(0)")
        it_take(a, 16)
    lds_min_wait(a, C_CNT, W_FREE, 4, s(S_IT), 20)
    if ITST:
        it_issue(a)
        a("s_waitcnt lgkmcnt(0)")
        it_take(a, 48)
    a(f"s_add_u32 {s(S_IT)}, {s(S_IT)}, 2")
    a("s_branch ld_loop")
    a("ld_done:")
    lstamp(a, 1)
    wd_setup(a, 2 if WDE else 0)
    a(f"s_lshl_b32 {s(S_T0)}, {s(S_WB)}, 2\nv_add_u32 v11, {s(S_T0)}, {v(C_CNT)}\nv_mov_b32 v17, 2")
    a("s_waitcnt vmcnt(0)")
    a("ds_write_b32 v10, v16")
    if KVL:
        return loader_late(a)
    lds_min_wait(a, C_CNT, W_ISS, 1, 7, 20)
    lds_min_wait(a, C_CNT, W_HP, 1, 2, 20)
    if not WDE:
        for op in wd_dma(0, 2) + wd_dma(1, 2):
            a(op)
    lstamp(a, 2)
    lds_min_wait(a, C_CNT, W_FREE, 4, 7, 20)
    for i in (2, 3):
        for op in wd_dma(i, 2):
            a(op)
    a("s_waitcnt vmcnt(16)")
    a(f"ds_write_b32 v11, {v(C_ONE)} offset:{W_WD}")
    lstamp(a, 3)
    lds_min_wait(a, C_CNT, W_FREE, 4, 8, 20)
    TH = opt("WDTH", 8)
    n = 0
    for i in (4, 5, 6):
        for op in wd_dma(i, 2):
            if not opt("NOWD", 0):
                a(op)
            n += 1
            if n % 4 == 0 and (TH or n == 8):
                a(f"s_waitcnt vmcnt({min(TH, n) if TH else 8})")
            if n == 8:
                a(f"ds_write_b32 v11, v17 offset:{W_WD}")
    a(f"ds_read_b32 v1, {v(C_CNT)} offset:{W_NON}")
    final_loads(a)
    a("s_waitcnt lgkmcnt(0)")
    a(f"v_readfirstlane_b32 {s(S_NON)}, v1")


def loader_late(a):
    lds_min_wait(a, C_CNT, W_FREE, 4, 7, 20)
    for op in wd_dma(0, 2) + wd_dma(1, 2):
        a(op)
    lstamp(a, 2)
    lds_min_wait(a, C_CNT, W_FREE, 4, 8, 20)
    for op in wd_dma(2, 2):
        a(op)
    a("s_waitcnt vmcnt(8)")
    a(f"ds_write_b32 v11, {v(C_ONE)} offset:{W_WD}")
    for op in wd_dma(3, 2) + wd_dma(4, 2):
        a(op)
    a("s_waitcnt vmcnt(8)")
    a(f"ds_write_b32 v11, v17 offset:{W_WD}")
    lstamp(a, 3)
    lds_min_wait(a, C_CNT, W_HP, 1, 2, 20)
    for op in wd_dma(5, 2) + wd_dma(6, 2):
        a(op)
    a(f"ds_read_b32 v1, {v(C_CNT)} offset:{W_NON}")
    final_loads(a)
    a("v_mov_b32 v17, 3\ns_waitcnt vmcnt(2) lgkmcnt(0)")
    a(f"ds_write_b32 v11, v17 offset:{W_WD}")
    a(f"v_readfirstlane_b32 {s(S_NON)}, v1")


VS, VKV, VSK = 144, 24, 64
ONE = 192


def round_bf16(a, r):
    a(f"v_cvt_pk_bf16_f32 {v(r)}, {v(r)}, {v(r)}\nv_lshlrev_b32 {v(r)}, 16, {v(r)}")


def stats_loads(a):
    a(f"s_lshl_b32 {s(S_T0)}, {s(S_TI)}, 1\ns_add_u32 {s(S_T0)}, {s(S_T0)}, {s(S_SH)}\ns_lshl_b32 {s(S_T0)}, {s(S_T0)}, 12")
    a("v_bfe_u32 v5, v0, 2, 2\nv_lshlrev_b32 v5, 10, v5\nv_and_b32 v6, 3, v0\nv_lshl_add_u32 v5, v6, 4, v5\nv_lshrrev_b32 v6, 4, v0\nv_lshl_add_u32 v5, v6, 6, v5")
    for r in range(4):
        a(f"buffer_load_dwordx4 {v(VS+4*r,4)}, v5, {s(R_X,4)}, {s(S_T0)} offen offset:{r*256} {CFS}")


def stats(a):
    G, O, R = 72, 76, 80
    for r in range(4):
        a(f"v_mfma_f32_16x16x32_bf16 {v(G,4)}, {v(VS+4*r,4)}, {v(VS+4*r,4)}, {v(G,4) if r else 0}")
        a(f"v_mfma_f32_16x16x32_bf16 {v(O,4)}, {v(ONE,4)}, {v(VS+4*r,4)}, {v(O,4) if r else 0}")
    a.c("diagonal element of lane (n, g = n>>2) is register n&3")
    a(f"v_and_b32 v6, 3, v0\nv_cmp_eq_u32 vcc, 1, v6\nv_cmp_eq_u32 {s(S_EX,2)}, 2, v6\nv_cmp_eq_u32 {s(S_XO,2)}, 3, v6")
    a(f"s_lshl_b32 {s(S_T0)}, {s(S_TI)}, 1\ns_add_u32 {s(S_T0)}, {s(S_T0)}, {s(S_SH)}\ns_lshl_b32 {s(S_T0)}, {s(S_T0)}, 6\ns_add_u32 {s(S_T0)}, {s(S_T0)}, {WS_ST:#x}")
    a("v_and_b32 v5, 48, v0\ns_nop 0")
    a(f"v_cndmask_b32 {v(G)}, {v(G)}, {v(G+1)}, vcc\nv_cndmask_b32 {v(G)}, {v(G)}, {v(G+2)}, {s(S_EX,2)}\nv_cndmask_b32 {v(G)}, {v(G)}, {v(G+3)}, {s(S_XO,2)}")
    for qp in ("[1,0,3,2]", "[2,3,0,1]"):
        a("s_nop 0")
        a(f"v_add_f32_dpp {v(O)}, {v(O)}, {v(O)} quad_perm:{qp} row_mask:0xf bank_mask:0xf")
        a(f"v_add_f32_dpp {v(G)}, {v(G)}, {v(G)} quad_perm:{qp} row_mask:0xf bank_mask:0xf")
    M, K1, K2, I2 = R, R + 1, R + 2, R + 3
    a(f"v_mul_f32 {v(M)}, {f32bits(1/512):#x}, {v(O)}\nv_mul_f32 {v(K2)}, {f32bits(1/512):#x}, {v(G)}")
    a(f"v_fma_f32 {v(K2)}, -{v(M)}, {v(M)}, {v(K2)}\nv_max_f32 {v(K2)}, 0, {v(K2)}")
    round_bf16(a, M)
    round_bf16(a, K2)
    a(f"v_add_f32 {v(K2)}, {f32bits(1e-5):#x}, {v(K2)}")
    round_bf16(a, K2)
    a(f"v_sqrt_f32 {v(K2)}, {v(K2)}\ns_nop 0")
    round_bf16(a, K2)
    a(f"v_rcp_f32 {v(K1)}, {v(K2)}\nv_mul_f32 {v(I2)}, {v(K2)}, {v(K2)}")
    a(f"v_mul_f32 {v(K2)}, {v(K1)}, {v(K1)}\nv_mul_f32 {v(K2)}, {v(K2)}, {v(K1)}")
    a(f"v_mul_f32 {v(K2)}, {f32bits(C2):#x}, {v(K2)}\nv_mul_f32 {v(K1)}, {f32bits(C1):#x}, {v(K1)}")
    a.c("row g is complete in lane 20g")
    a(f"s_mov_b32 {s(S_EX)}, 0x00100001\ns_mov_b32 {s(S_EX+1)}, 0x10000100\ns_mov_b64 exec, {s(S_EX,2)}")
    a(f"buffer_store_dwordx4 {v(R,4)}, v5, {s(R_WS,4)}, {s(S_T0)} offen sc1")
    a("s_mov_b64 exec, -1")


L_VST = 155648
NT = os.environ.get("CFK", "nt") + " " if opt("NT", 1) else ""
NTT = " nt" if opt("NTT", 0) else ""


def kv_dma(a):
    a("v_lshrrev_b32 v5, 3, v0\nv_lshlrev_b32 v5, 10, v5\nv_and_b32 v6, 7, v0\nv_lshl_add_u32 v5, v6, 4, v5")
    a(f"v_add_u32 v69, {s(S_DO)}, v5")
    a.c("rows above the start of the sequence are out of range and read as zero")
    a("v_subrev_u32 v7, 0xc00, v69\nv_cmp_gt_u32 vcc, 0xc00, v69\nv_mov_b32 v68, 0x7ff00000\ns_nop 1\nv_cndmask_b32 v7, v7, v68, vcc")
    a(f"s_mul_i32 {s(S_T0)}, {s(S_SH)}, {64*KVT_STR}\ns_add_u32 {s(S_T0)}, {s(S_T0)}, {L_KVT}")
    a(f"s_lshl_b32 {s(S_T2)}, {s(S_SH)}, 12\ns_add_u32 {s(S_T2)}, {s(S_T2)}, {L_VST}")
    for i in range(5):
        a(f"s_add_u32 m0, {s(S_T0)}, {1024*i}\ns_mov_b32 {s(S_T1)}, {max(8192*i - 3072, 0)}")
        a(f"buffer_load_dwordx4 {'v69' if i else 'v7'}, {s(R_K,4)}, {s(S_T1)} offen {NT}lds")
    for i in range(4):
        a(f"s_add_u32 m0, {s(S_T2)}, {1024*i}\ns_mov_b32 {s(S_T1)}, {8192*i}")
        a(f"buffer_load_dwordx4 v69, {s(R_V,4)}, {s(S_T1)} offen {NT}lds")
    a("v_and_b32 v6, 31, v0\nv_lshrrev_b32 v5, 5, v0\nv_lshlrev_b32 v5, 10, v5\nv_lshl_add_u32 v5, v6, 2, v5")
    a(f"v_add_u32 v68, {s(S_T0)}, v5\nv_add_u32 v69, {s(S_T2)}, v5")
    a(f"s_and_b32 {s(S_T1)}, {s(S_TI)}, 7\ns_lshl_b32 {s(S_T1)}, {s(S_T1)}, 9\nv_lshlrev_b32 v6, 4, v6")
    a(f"buffer_load_dwordx4 {v(VSK,4)}, v6, {s(R_SK,4)}, {s(S_T1)} offen")


def kv_reads(a):
    for ps in range(2):
        b = VKV + 19 * ps
        for i in range(11):
            a(f"ds_read_b32 {v(b+i)}, v68 offset:{ps*2048 + i*128}")
        for i in range(8):
            a(f"ds_read_b32 {v(b+11+i)}, v69 offset:{ps*2048 + i*128}")


def touch_x(a, p, vd):
    a(f"s_lshl_b32 {s(S_T0)}, {s(S_MI)}, 2\ns_and_b32 {s(S_T1)}, {s(S_NI)}, 3\ns_add_u32 {s(S_T0)}, {s(S_T0)}, {s(S_T1)}\ns_lshl_b32 {s(S_T0)}, {s(S_T0)}, 15")
    a("v_and_b32 v5, 31, v0\nv_lshrrev_b32 v6, 5, v0\nv_lshlrev_b32 v6, 7, v6\nv_lshl_add_u32 v5, v5, 10, v6")
    for q in p:
        a(f"buffer_load_dword {v(vd)}, v5, {s(R_X,4)}, {s(S_T0)} offen offset:{128*q}{NTT}")


def touch_w(a, p, srds, vd):
    a(f"s_and_b32 {s(S_T0)}, {s(S_MI)}, 7\ns_add_u32 {s(S_T0)}, {s(S_T0)}, {8*p}\ns_mul_i32 {s(S_T0)}, {s(S_T0)}, {8*F*2}\ns_lshl_b32 {s(S_T1)}, {s(S_FB0)}, 6\ns_add_u32 {s(S_T0)}, {s(S_T0)}, {s(S_T1)}")
    a(f"s_add_u32 {s(S_T1)}, {s(S_NBLK)}, 4")
    a(f"v_lshrrev_b32 v5, 4, v0\nv_bfe_u32 v6, v0, 1, 3\nv_lshl_add_u32 v5, v5, 6, v6\nv_mul_u32_u24 v5, {F*2}, v5\nv_and_b32 v6, 1, v0\nv_lshl_add_u32 v5, v6, {s(S_T1)}, v5")
    for r in srds:
        a(f"buffer_load_dword {v(vd)}, v5, {s(r,4)}, {s(S_T0)} offen{NTT}")
        if opt("TOUCH", 0) == 2:
            a(f"s_add_u32 {s(S_T0)}, {s(S_T0)}, {256*F*2}")
            a(f"buffer_load_dword {v(vd)}, v5, {s(r,4)}, {s(S_T0)} offen{NTT}")


KU, VU, KW, KO, KT = 72, 94, 110, 120, 128


def kv_taps(a):
    for j in range(4):
        for ch in range(2):
            src = VSK + 2*ch + (j >> 1)
            a(f"v_and_b32 {v(KW+2*j+ch)}, {s(S_C)}, {v(src)}" if j & 1 else f"v_lshlrev_b32 {v(KW+2*j+ch)}, 16, {v(src)}")
    a.c("KVT row = 2*(l&31) + ch, 16-B piece = 3 - (2*pass + l>>5)")
    a(f"v_and_b32 v70, 31, v0\nv_mul_u32_u24 v70, {2*KVT_STR}, v70\nv_lshrrev_b32 v5, 5, v0\nv_lshlrev_b32 v5, 4, v5\nv_sub_u32 v70, v70, v5")
    a(f"s_mul_i32 {s(S_T0)}, {s(S_SH)}, {64*KVT_STR}\ns_add_u32 {s(S_T0)}, {s(S_T0)}, {L_KVT + 16}\nv_add_u32 v70, {s(S_T0)}, v70")


def kv_compute(ps):
    b = VKV + 19 * ps
    o = []
    for i in range(11):
        o += [f"v_lshlrev_b32 {v(KU+2*i)}, 16, {v(b+i)}", f"v_and_b32 {v(KU+2*i+1)}, {s(S_C)}, {v(b+i)}"]
    for e in range(16):
        o.append(f"v_mul_f32 {v(KT+e)}, {v(KU+e)}, {v(KW+6+(e&1))}")
    for j in (2, 1, 0):
        for e in range(16):
            o.append(f"v_fmac_f32 {v(KT+e)}, {v(KU+e+2*(3-j))}, {v(KW+2*j+(e&1))}")
    for i in range(8):
        o += [f"v_lshlrev_b32 {v(VU+2*i)}, 16, {v(b+11+i)}", f"v_and_b32 {v(VU+2*i+1)}, {s(S_C)}, {v(b+11+i)}"]
    for e in range(16):
        o.append(f"v_mul_f32 {v(KT+e)}, {v(KT+e)}, {v(VU+e)}")
    for ch in range(2):
        for i in range(4):
            o.append(f"v_cvt_pk_bf16_f32 {v(KO+4*ch+i)}, {v(KT+2*(7-2*i)+ch)}, {v(KT+2*(6-2*i)+ch)}")
    o += [f"ds_write_b128 v70, {v(KO,4)} offset:{32*(1-ps)}", f"ds_write_b128 v70, {v(KO+4,4)} offset:{32*(1-ps) + KVT_STR}"]
    return o


def kv_store(a):
    a(f"v_lshrrev_b32 v5, 2, v0\nv_and_b32 v6, 3, v0\nv_lshlrev_b32 v6, 4, v6\nv_mul_u32_u24 v7, {KVT_STR}, v5\nv_add_u32 v7, v7, v6")
    a(f"s_mul_i32 {s(S_T0)}, {s(S_SH)}, {64*KVT_STR}\ns_add_u32 {s(S_T0)}, {s(S_T0)}, {L_KVT}\nv_add_u32 v7, {s(S_T0)}, v7")
    a("s_waitcnt lgkmcnt(0)")
    for i in range(4):
        a(f"ds_read_b128 {v(24+4*i,4)}, v7 offset:{16*i*KVT_STR}")
    a("v_lshl_add_u32 v5, v5, 12, v6")
    a(f"s_and_b32 {s(S_T0)}, {s(S_TI)}, 7\ns_lshl_b32 {s(S_T0)}, {s(S_T0)}, 18")
    a(f"s_lshr_b32 {s(S_T1)}, {s(S_TI)}, 3\ns_lshl_b32 {s(S_T1)}, {s(S_T1)}, 1\ns_add_u32 {s(S_T1)}, {s(S_T1)}, {s(S_SH)}\ns_lshl_b32 {s(S_T1)}, {s(S_T1)}, 6")
    a(f"s_sub_u32 {s(S_T0)}, {s(S_T0)}, {s(S_T1)}\ns_add_u32 {s(S_T0)}, {s(S_T0)}, {WS_KVR + 4096 - 64:#x}")
    for i in range(4):
        a(f"s_waitcnt lgkmcnt({3-i})")
        a(f"buffer_store_dwordx4 {v(24+4*i,4)}, v5, {s(R_WS,4)}, {s(S_T0)} offen sc1")
        a(f"s_add_u32 {s(S_T0)}, {s(S_T0)}, 65536")


def cs_loads(a):
    a(f"s_mul_i32 {s(S_T0)}, {s(S_MI)}, {32*F*2}\ns_lshl_b32 {s(S_T1)}, {s(S_FB0)}, 6\ns_add_u32 {s(S_T0)}, {s(S_T0)}, {s(S_T1)}\ns_add_u32 {s(S_T1)}, {s(S_T0)}, {16*F*2}")
    a(f"s_mul_i32 {s(S_M0)}, {s(S_SH)}, 6144\ns_add_u32 {s(S_M0)}, {s(S_M0)}, {L_CSS}")
    l1, l2 = a.label("cs"), a.label("cs")
    a(f"s_cmp_lg_u32 {s(S_SH)}, 0\ns_cbranch_scc1 {l1}")
    for r in (R_WG, R_WU):
        for blk in range(3):
            for k2 in range(2):
                a(f"s_add_u32 m0, {s(S_M0)}, {blk*2048 + k2*1024 - 64*blk}\ns_nop 0")
                a(f"buffer_load_dwordx4 {v(VB_W)}, {s(r,4)}, {s(S_T1 if k2 else S_T0)} offen offset:{64*blk} {CFS} lds")
        a(f"s_branch {l2}\n{l1}:" if r == R_WG else f"{l2}:")


def colsum(a):
    W, O = 144, 168
    a("v_lshrrev_b32 v5, 4, v0\nv_lshlrev_b32 v6, 9, v5\nv_bfe_u32 v7, v0, 2, 2\nv_lshl_add_u32 v6, v7, 6, v6\nv_and_b32 v7, 3, v0\nv_lshl_add_u32 v6, v7, 3, v6")
    a(f"v_and_b32 v7, 1, v5\nv_lshl_add_u32 v6, v7, 5, v6\nv_add_u32 v6, {s(S_M0)}, v6\nv_xor_b32 v7, 32, v6")
    for u in range(6):
        for tt in range(2):
            a(f"ds_read_b64_tr_b16 {v(W+4*u+2*tt,2)}, {'v7' if u & 1 else 'v6'} offset:{(u>>1)*2048 + tt*256}")
    a.c("CSP offset = ((ni*2 + hw)*16 + mi)*384 + u*64 + g*16")
    a(f"s_lshl_b32 {s(S_T0)}, {s(S_NI)}, 1\ns_add_u32 {s(S_T0)}, {s(S_T0)}, {s(S_SH)}\ns_lshl_b32 {s(S_T0)}, {s(S_T0)}, 4\ns_add_u32 {s(S_T0)}, {s(S_T0)}, {s(S_MI)}")
    a(f"s_mul_i32 {s(S_T0)}, {s(S_T0)}, 384\ns_add_u32 {s(S_T0)}, {s(S_T0)}, {WS_CSP:#x}")
    a("v_and_b32 v5, 48, v0")
    a("s_waitcnt lgkmcnt(0)")
    for u in range(6):
        a(f"v_mfma_f32_16x16x32_bf16 {v(O+4*u,4)}, {v(W+4*u,4)}, {v(ONE,4)}, 0")
    a(f"s_mov_b32 {s(S_EX)}, 0x00010001\ns_mov_b32 {s(S_EX+1)}, 0x00010001\ns_nop 5\ns_mov_b64 exec, {s(S_EX,2)}")
    for u in range(6):
        a(f"buffer_store_dwordx4 {v(O+4*u,4)}, v5, {s(R_WS,4)}, {s(S_T0)} offen offset:{u*64} sc1")
    a("s_mov_b64 exec, -1")


def hflag(a, base):
    a(f"s_lshl_b32 {s(S_T0)}, {s(S_TI)}, 7\ns_lshl_b32 {s(S_T1)}, {s(S_SH)}, 2\ns_add_u32 {s(S_T0)}, {s(S_T0)}, {s(S_T1)}\ns_add_u32 {s(S_T0)}, {s(S_T0)}, {base:#x}")
    flag_store(a, S_T0, 196, 197)


CG = 144


def cs_gather_issue(a):
    a(f"s_lshl_b32 {s(S_T0)}, {s(S_NI)}, 1\ns_add_u32 {s(S_T0)}, {s(S_T0)}, {s(S_SH)}\ns_mul_i32 {s(S_T0)}, {s(S_T0)}, 6144\ns_add_u32 {s(S_T0)}, {s(S_T0)}, {WS_CSP:#x}")
    a("v_and_b32 v5, 31, v0\nv_lshlrev_b32 v5, 4, v5\nv_lshrrev_b32 v6, 5, v0\nv_mul_u32_u24 v6, 3072, v6\nv_add_u32 v6, v5, v6")
    for i in range(8):
        a(f"buffer_load_dwordx4 {v(CG+4*i,4)}, v6, {s(R_WS,4)}, {s(S_T0)} offen offset:{i*384} sc1")


def cs_gather_finish(a):
    n = 8
    while n > 1:
        n //= 2
        for i in range(4 * n):
            a(f"v_add_f32 {v(CG+i)}, {v(CG+i)}, {v(CG+4*n+i)}")
    for i in range(4):
        a(f"v_mov_b32 {v(CG+4+i)}, {v(CG+i)}")
    a(f"s_lshl_b32 {s(S_T0)}, {s(S_SH)}, 9\ns_add_u32 {s(S_T0)}, {s(S_T0)}, {L_CS}\nv_and_b32 v8, 31, v0\nv_lshlrev_b32 v8, 4, v8\nv_add_u32 v8, {s(S_T0)}, v8")
    for i in range(4):
        a(f"v_permlane32_swap_b32 {v(CG+i)}, {v(CG+4+i)}")
    a("s_nop 0")
    for i in range(4):
        a(f"v_add_f32 {v(CG+i)}, {v(CG+i)}, {v(CG+4+i)}")
    a(f"ds_write_b128 v8, {v(CG,4)}")


def helper(a):
    q = VQ(a)
    a(f"s_sub_u32 {s(S_SH)}, {s(S_WB)}, 2")
    a(f"s_lshl_b32 {s(S_HO)}, {s(S_TI)}, 1\ns_add_u32 {s(S_HO)}, {s(S_HO)}, {s(S_SH)}\ns_lshl_b32 {s(S_HO)}, {s(S_HO)}, 12")
    a.c("k/v tile base: rows 32*(2*(ti>>3) + hw).., channels 64*(ti&7)")
    a(f"s_lshr_b32 {s(S_T0)}, {s(S_TI)}, 3\ns_lshl_b32 {s(S_T0)}, {s(S_T0)}, 1\ns_add_u32 {s(S_T0)}, {s(S_T0)}, {s(S_SH)}\ns_lshl_b32 {s(S_T0)}, {s(S_T0)}, 15")
    a(f"s_and_b32 {s(S_T1)}, {s(S_TI)}, 7\ns_lshl_b32 {s(S_T2)}, {s(S_T1)}, 7\ns_add_u32 {s(S_DO)}, {s(S_T0)}, {s(S_T2)}")
    a(f"s_mul_i32 {s(S_KC)}, {s(S_TI)}, {43*128}\ns_mul_i32 {s(S_T1)}, {s(S_SH)}, {22*128}\ns_add_u32 {s(S_KC)}, {s(S_KC)}, {s(S_T1)}")
    def sc():
        stats_loads(a); q.add("s", 4)
        cs_loads(a); q.add("csd", 6)
    SKV = opt("SKV", 0)
    KVAT = opt("KVAT", 0) or SKV or KVL
    def wdt():
        if not opt("WDT", 1):
            return
        a.c("first touch of Wd lines 43*ti + 22*hw + lane")
        a("v_lshlrev_b32 v11, 7, v0\ns_mov_b64 exec, 0x3fffff")
        a(f"buffer_load_dword v71, v11, {s(R_WD,4)}, {s(S_KC)} offen"); q.add("wd", 1)
        a("s_mov_b64 exec, -1")
    def cold():
        kv_dma(a); q.add("kv", 10)
        if not SKV and not PT and not opt("HW7", 0) and not KVL:
            wdt()
        if SKV != 1 and not opt("HW7", 0):
            conv_h_loads(a); q.add("h", 4)
    PT = opt("PT", 0)
    def ptouch():
        l1, l2 = a.label("pt"), a.label("pt")
        a(f"s_and_b32 {s(S_T0)}, {s(S_NI)}, 3\ns_cmp_lg_u32 {s(S_T0)}, 3\ns_cbranch_scc1 {l2}")
        a("v_lshrrev_b32 v5, 2, v0\nv_and_b32 v6, 3, v0\nv_lshlrev_b32 v6, 7, v6\nv_lshl_add_u32 v5, v5, 10, v6\nv_lshlrev_b32 v6, 7, v0")
        a(f"s_lshr_b32 {s(S_T0)}, {s(S_TI)}, 3\ns_lshl_b32 {s(S_T0)}, {s(S_T0)}, 16\ns_and_b32 {s(S_T1)}, {s(S_TI)}, 4\ns_lshl_b32 {s(S_T1)}, {s(S_T1)}, 7\ns_add_u32 {s(S_T0)}, {s(S_T0)}, {s(S_T1)}")
        a(f"s_cmp_lg_u32 {s(S_SH)}, 0\ns_cbranch_scc1 {l1}")
        for i in range(4):
            a(f"buffer_load_dword v71, v5, {s(R_K,4)}, {s(S_T0)} offen\ns_add_u32 {s(S_T0)}, {s(S_T0)}, 16384")
        a(f"s_sub_i32 {s(S_T0)}, {s(S_T0)}, {65536 + 3072}\ns_max_i32 {s(S_T0)}, {s(S_T0)}, 0\ns_mov_b64 exec, 0xfff")
        a(f"buffer_load_dword v71, v5, {s(R_K,4)}, {s(S_T0)} offen\ns_mov_b64 exec, -1")
        a(f"s_lshr_b32 {s(S_T0)}, {s(S_TI)}, 2\ns_mul_i32 {s(S_T0)}, {s(S_T0)}, {172*128}")
        for i in range(3):
            a(f"buffer_load_dword v71, v6, {s(R_WD,4)}, {s(S_T0)} offen\ns_add_u32 {s(S_T0)}, {s(S_T0)}, {8192 if i == 0 else 44*128}")
        a(f"s_branch {l2}\n{l1}:")
        for i in range(4):
            a(f"buffer_load_dword v71, v5, {s(R_V,4)}, {s(S_T0)} offen\ns_add_u32 {s(S_T0)}, {s(S_T0)}, 16384")
        a(f"s_lshr_b32 {s(S_T0)}, {s(S_TI)}, 2\ns_lshl_b32 {s(S_T0)}, {s(S_T0)}, 15")
        for i in range(4):
            a(f"buffer_load_dword v71, v6, {s(R_H,4)}, {s(S_T0)} offen\ns_add_u32 {s(S_T0)}, {s(S_T0)}, 8192")
        a(f"{l2}:")
    if PT == 1:
        ptouch()
    LATE = opt("LATE", 0)
    if LATE:
        lds_min_wait(a, C_CNT, W_ISS, 1, LATE, 20)
        l1, l2 = a.label("tc"), a.label("tc")
        a(f"s_cmp_lg_u32 {s(S_SH)}, 0\ns_cbranch_scc1 {l1}")
        touch_x(a, (4, 6), 71)
        a(f"s_branch {l2}\n{l1}:")
        touch_w(a, 4, (R_WG, R_WU), 71)
        a(f"{l2}:")
    def hs(n):
        if ITST:
            a(f"s_mov_b32 {s(S_IT)}, 0")
            it_issue(a)
            a("s_waitcnt lgkmcnt(0)")
            it_take(a, n)
    hs(1)
    KV1 = opt("KV1", 0)
    if KV1:
        if KV1 == 2:
            kv_dma(a); q.add("kv", 10)
        else:
            cold()
        a("s_barrier")
    if not opt("ELAST", 0):
        epoch_load(a, 1); q.add("e", 1)
    sc()
    if opt("ELAST", 0):
        epoch_load(a, 1); q.add("e", 1)
    hs(2)
    if KVL:
        wdt()
    if SKV:
        wdt()
        a(f"s_sub_i32 {s(S_KC)}, {s(S_DO)}, 3072\ns_max_i32 {s(S_KC)}, {s(S_KC)}, 0")
        spf(a, R_K, S_KC, [1024*i for i in range(35)])
    if KV1 == 2:
        wdt()
        conv_h_loads(a); q.add("h", 4)
    if not KVAT and not KV1:
        cold()
    hs(3)
    for i in range(4):
        a(f"v_mov_b32 {v(ONE+i)}, 0x3f803f80")
    a.c("F1 pairs: lanes 0-31 tiles 16mi + (l&15) (row records), lanes 32-63 tiles 16*(l&15) + ni (column sums)")
    a(f"s_lshl_b32 {s(S_T0)}, {s(S_MI)}, 11\nv_and_b32 v9, 15, v0\nv_lshlrev_b32 v8, 7, v9\nv_add_u32 v8, {s(S_T0)}, v8")
    a(f"s_lshl_b32 {s(S_T0)}, {s(S_NI)}, 7\nv_lshlrev_b32 v9, 11, v9\nv_add_u32 v9, {s(S_T0)}, v9\nv_cmp_lt_u32 vcc, 31, v0")
    a(f"s_nop 1\nv_cndmask_b32 v8, v8, v9, vcc\nv_add_u32 v8, {WS_F1:#x}, v8")
    q.wait("e", "s")
    stamp(a, 1)
    epoch_take(a, 1)
    a(f"v_mov_b32 v20, {s(S_NON)}\nds_write_b32 {v(C_CNT)}, v20 offset:{W_NON}")
    stats(a); q.add("st", 1)
    q.wait("csd")
    if PT == 2:
        ptouch()
    colsum(a); q.add("st", 6)
    stamp(a, 2)
    if KVL:
        q.wait("st")
        hflag(a, WS_F1)
        stamp(a, 3)
        lds_min_wait(a, C_CNT, W_ISS, 1, KVL - 1, 20)
        poll2_issue(a, 8, 198)
        a(f"s_lshr_b32 {s(S_T0)}, {s(S_TI)}, 5\ns_lshl_b32 {s(S_T0)}, {s(S_T0)}, 7\ns_add_u32 {s(S_T0)}, {s(S_T0)}, {WS_F2:#x}")
        a(f"v_and_b32 v16, 31, v0\nv_lshlrev_b32 v16, 10, v16\nv_add_u32 v16, {s(S_T0)}, v16")
        a("s_waitcnt vmcnt(0)")
        poll2_check(a, 8, 198)
        lds_min_wait(a, C_CNT, W_ISS, 1, KVL, 20)
        a(f"s_lshl_b32 {s(S_T0)}, {s(S_MI)}, 1\ns_add_u32 {s(S_T0)}, {s(S_T0)}, {s(S_SH)}\ns_lshl_b32 {s(S_T0)}, {s(S_T0)}, 10\ns_add_u32 {s(S_T0)}, {s(S_T0)}, {WS_ST:#x}")
        a(f"buffer_load_dwordx4 {v(GG,4)}, v4, {s(R_WS,4)}, {s(S_T0)} offen sc1")
        cs_gather_issue(a)
        a(f"s_lshl_b32 {s(S_T0)}, {s(S_SH)}, 10\ns_add_u32 {s(S_T0)}, {s(S_T0)}, {L_ST}\nv_add_u32 v9, {s(S_T0)}, v4")
        cold()
        a("s_waitcnt vmcnt(14)")
        a(f"ds_write_b128 v9, {v(GG,4)}")
        cs_gather_finish(a)
        lds_inc(a, C_CNT, C_ONE, W_GATH)
        stamp(a, 5)
        a(f"s_setprio {opt('PRK', 0)}")
        a("s_waitcnt vmcnt(4)")
        kv_reads(a)
        kv_taps(a)
        a("s_waitcnt lgkmcnt(0)")
        for l in kv_compute(0) + kv_compute(1):
            a(l)
        kv_store(a)
        lds_inc(a, C_CNT, C_ONE, W_HP)
        a("s_waitcnt vmcnt(4)")
        conv_h_shift(a, 40)
        a("s_waitcnt vmcnt(0)")
        hflag(a, WS_F2)
        stamp(a, 4)
        final_loads(a)
        lds_min_wait(a, C_CNT, W_FREE, 4, 6, 20)
        lds_min_wait(a, C_CNT, W_HP, 1, 2, 20)
        conv_h_stage(a, 40)
        poll2_issue(a, 16, 18)
        a("s_waitcnt vmcnt(0)")
        poll2_check(a, 16, 18)
        a(f"s_add_u32 {s(S_T2)}, {s(S_HO)}, {WS_KVR:#x}")
        for i in range(4):
            a(f"buffer_load_dwordx4 {v(128+4*i,4)}, v4, {s(R_WS,4)}, {s(S_T2)} offen offset:{1024*i} sc1")
        for i in range(4):
            a(f"s_waitcnt vmcnt({3-i})")
            a(f"ds_write_b128 v10, {v(128+4*i,4)} offset:{4*HSTR + 1024*i}")
        stamp(a, 6)
        return
    if SKV:
        spf(a, R_V, S_DO, [1024*i for i in range(14)])
        q.wait("st")
        hflag(a, WS_F1); q.add("f", 1)
        stamp(a, 3)
        spf(a, R_V, S_DO, [1024*i for i in range(14, 32)])
        a(f"s_and_b32 {s(S_T1)}, {s(S_TI)}, 7\ns_lshl_b32 {s(S_T1)}, {s(S_T1)}, 9")
        spf(a, R_SK, S_T1, [128*i for i in range(4)])
        if SKV == 2:
            spf(a, R_H, S_HO, [128*i for i in range(32)])
        a("s_waitcnt lgkmcnt(0)")
        cold()
    elif KVAT:
        a(f"s_lshr_b32 {s(S_T3)}, s2, 3\ns_and_b32 {s(S_T3)}, {s(S_T3)}, {opt('KVM', 0)}\ns_add_u32 {s(S_T3)}, {s(S_T3)}, {KVAT}")
        if PT:
            q.wait("st")
            hflag(a, WS_F1); q.add("f", 1)
            stamp(a, 3)
            a(f"s_and_b32 {s(S_T0)}, {s(S_NI)}, 3\ns_cmp_eq_u32 {s(S_T0)}, 3\ns_cselect_b32 {s(S_T3)}, 0, {s(S_T3)}")
        lds_min_wait(a, C_CNT, W_ISS, 1, s(S_T3), 20)
        cold()
        if not PT:
            q.wait("st")
            hflag(a, WS_F1); q.add("f", 1)
            stamp(a, 3)
    q.wait("kv")
    kv_reads(a)
    kv_taps(a)
    a("s_waitcnt lgkmcnt(0)")
    for l in kv_compute(0):
        a(l)
    if not KVAT:
        q.wait("st")
        hflag(a, WS_F1); q.add("f", 1)
        stamp(a, 3)
    for l in kv_compute(1):
        a(l)
    kv_store(a); q.add("kvst", 4)
    lds_inc(a, C_CNT, C_ONE, W_HP)
    q.wait("kvst")
    hflag(a, WS_F2); q.add("f", 1)
    stamp(a, 4)
    if opt("HW7", 0):
        lds_min_wait(a, C_CNT, W_ISS, 1, opt("HW7", 0), 20)
        wdt()
        conv_h_loads(a)
    else:
        conv_h_shift(a)
    if SKV == 1:
        spf(a, R_H, S_HO, [128*i for i in range(32)])
    if WDE:
        wd_setup(a, 0, S_SH)
        a(f"s_lshl_b32 {s(S_T0)}, {s(S_SH)}, 2\nv_add_u32 v11, {s(S_T0)}, {v(C_CNT)}")
        lds_min_wait(a, C_CNT, W_HP, 1, 2, 20)
        lds_min_wait(a, C_CNT, W_ISS, 1, WDE, 20)
        for op in wd_dma(0, 2) + wd_dma(1, 2):
            a(op)
    lds_min_wait(a, C_CNT, W_ISS, 1, opt("GATP", 7), 20)
    poll2_issue(a, 8, 198)
    a.c("F2 pairs of tiles 8*(l&31) + (ti>>5)")
    a(f"s_lshr_b32 {s(S_T0)}, {s(S_TI)}, 5\ns_lshl_b32 {s(S_T0)}, {s(S_T0)}, 7\ns_add_u32 {s(S_T0)}, {s(S_T0)}, {WS_F2:#x}")
    a(f"v_and_b32 v16, 31, v0\nv_lshlrev_b32 v16, 10, v16\nv_add_u32 v16, {s(S_T0)}, v16")
    a("s_waitcnt vmcnt(0)")
    if WDE:
        a(f"ds_write_b32 v11, {v(C_ONE)} offset:{W_WE}")
    poll2_check(a, 8, 198)
    lds_min_wait(a, C_CNT, W_ISS, 1, opt("GAT", 7), 20)
    poll2_issue(a, 16, 18)
    a(f"s_lshl_b32 {s(S_T0)}, {s(S_MI)}, 1\ns_add_u32 {s(S_T0)}, {s(S_T0)}, {s(S_SH)}\ns_lshl_b32 {s(S_T0)}, {s(S_T0)}, 10\ns_add_u32 {s(S_T0)}, {s(S_T0)}, {WS_ST:#x}")
    a(f"buffer_load_dwordx4 {v(GG,4)}, v4, {s(R_WS,4)}, {s(S_T0)} offen sc1")
    cs_gather_issue(a)
    a(f"s_lshl_b32 {s(S_T0)}, {s(S_SH)}, 10\ns_add_u32 {s(S_T0)}, {s(S_T0)}, {L_ST}\nv_add_u32 v9, {s(S_T0)}, v4")
    late, join = a.label("u_late"), a.label("u_join")
    def u_loads():
        a(f"s_add_u32 {s(S_T2)}, {s(S_HO)}, {WS_KVR:#x}")
        for i in range(4):
            a(f"buffer_load_dwordx4 {v(128+4*i,4)}, v4, {s(R_WS,4)}, {s(S_T2)} offen offset:{1024*i} sc1")
    def gather_done():
        a(f"ds_write_b128 v9, {v(GG,4)}")
        cs_gather_finish(a)
        lds_inc(a, C_CNT, C_ONE, W_GATH)
        stamp(a, 5)
    a("s_waitcnt vmcnt(9)")
    a(f"v_cmp_ne_u32 vcc, {s(S_NON)}, v18\nv_cmp_ne_u32 {s(S_EX,2)}, {s(S_NON)}, v19\ns_nop 0\ns_or_b64 vcc, vcc, {s(S_EX,2)}\ns_cbranch_scc1 {late}")
    u_loads()
    a("s_waitcnt vmcnt(4)")
    gather_done()
    a(f"{join}:")
    keep = a.L
    a.L = COLD.L
    a(f"{late}:")
    a("s_waitcnt vmcnt(0)")
    gather_done()
    poll2_check(a, 16, 18)
    u_loads()
    a(f"s_branch {join}")
    a.L = keep
    final_loads(a)
    lds_min_wait(a, C_CNT, W_FREE, 4, 6, 20)
    a.c("the other helper must be done with its transpose scratch before the conv region is written")
    lds_min_wait(a, C_CNT, W_HP, 1, 2, 20)
    if opt("HW7", 0):
        conv_h_shift(a)
    conv_h_stage(a)
    a("s_waitcnt vmcnt(2)")
    for i in range(4):
        a(f"ds_write_b128 v10, {v(128+4*i,4)} offset:{4*HSTR + 1024*i}")
    stamp(a, 6)


C_ACC, C_F0, C_F1 = 16, 48, 112
C_AA, C_BA = 2, 3


def bsync_post(a, n=4):
    a(f"s_add_u32 {s(S_CNT)}, {s(S_CNT)}, {n}")
    a("s_mov_b64 exec, 1")
    a(f"ds_add_u32 {v(C_CNT)}, {v(C_ONE)}")
    a("s_mov_b64 exec, -1")


def bsync_wait(a, nap=None):
    lds_min_wait(a, C_CNT, W_CNT, 1, s(S_CNT), 6, nap=opt("BNAP", 1) if nap is None else nap)


def bsync(a, n=4):
    bsync_post(a, n)
    bsync_wait(a)


def conv_reads(fr, roff):
    out = []
    for p in range(8):
        out.append(f"ds_read_b128 {v(fr+4*p,4)}, {v(C_AA)} offset:{512*p + roff}")
        out.append(f"ds_read_b64 {v(fr+32+4*p,2)}, {v(C_BA)} offset:{512*(7-p) + roff}")
        out.append(f"ds_read_b64 {v(fr+32+4*p+2,2)}, {v(C_BA)} offset:{512*(7-p) + roff + 8}")
    return out


def conv_mfmas(fr, first):
    out = []
    for tot in range(8):
        for p in range(tot + 1):
            q = tot - p
            out.append((max(p, q), f"v_mfma_f32_16x16x32_bf16 {v(C_ACC+4*tot,4)}, {v(fr+4*p,4)}, {v(fr+32+4*q,4)}, ", C_ACC + 4*tot))
    out.sort(key=lambda t: t[0])
    res, seen = [], set()
    for _, txt, c in out:
        res.append(txt + ("0" if first and c not in seen else v(c, 4)))
        seen.add(c)
    return res


HR = 200


def conv_h_loads(a):
    a(f"s_mul_i32 {s(S_RING)}, {s(S_SH)}, {CH_STR}\ns_add_u32 {s(S_RING)}, {s(S_RING)}, {L_CONV}")
    for h in range(4):
        a(f"buffer_load_dwordx4 {v(HR+6*h+2,4)}, v4, {s(R_H,4)}, {s(S_HO)} offen offset:{1024*h} {NT}")


def conv_h_shift(a, z=24):
    for i in range(4):
        a(f"v_mov_b32 {v(z+i)}, 0")
    a(f"v_add_u32 v10, {s(S_RING)}, v4")
    T = 72
    a.c("the two dwords in front of each lane's piece come from the lane below")
    for h in range(4):
        r = HR + 6 * h
        for i in range(2):
            a(f"v_mov_b32_dpp {v(r+i)}, {v(r-2+i)} wave_ror:1 row_mask:0xf bank_mask:0xf" if h else f"v_mov_b32 {v(r+i)}, 0")
    for h in range(4):
        r = HR + 6 * h
        for i in range(2):
            a(f"v_mov_b32_dpp {v(r+i)}, {v(r+4+i)} wave_shr:1 row_mask:0xf bank_mask:0xf")
    for h in range(4):
        r = HR + 6 * h
        for i in range(4):
            a(f"v_alignbit_b32 {v(T+i)}, {v(r+2+i)}, {v(r+1+i)}, 16")
        for i in range(4):
            a(f"v_mov_b32 {v(T+4+i)}, {v(r+1+i)}")
        for i in range(4):
            a(f"v_alignbit_b32 {v(T+8+i)}, {v(r+1+i)}, {v(r+i)}, 16")
        T += 12


def conv_h_stage(a, z=24):
    a.c("zero pads: 384 B in front of each h copy, 128 B behind u")
    a("s_mov_b64 exec, 0xffffff")
    for p in range(4):
        a(f"ds_write_b128 v10, {v(z,4)} offset:{p*HSTR}")
    a("s_mov_b64 exec, 0xff")
    a(f"ds_write_b128 v10, {v(z,4)} offset:{4*HSTR + 4096}")
    a("s_mov_b64 exec, -1")
    for h in range(4):
        a(f"ds_write_b128 v10, {v(HR+6*h+2,4)} offset:{384 + 1024*h}")
        for p in range(1, 4):
            a(f"ds_write_b128 v10, {v(72+12*h+4*(p-1),4)} offset:{p*HSTR + 384 + 1024*h}")


def conv_mid(a):
    a("s_waitcnt vmcnt(0)")
    a(f"ds_write_b32 v11, v251 offset:{W_WD}")
    poll2_check(a, 5, 198)
    a(f"s_lshl_b32 {s(S_T0)}, {s(S_MT)}, 2\ns_add_u32 {s(S_T0)}, {s(S_T0)}, {s(S_WB)}\ns_lshl_b32 {s(S_T0)}, {s(S_T0)}, 8\ns_add_u32 {s(S_T0)}, {s(S_T0)}, {WS_ST:#x}")
    a(f"buffer_load_dwordx4 {v(184,4)}, v15, {s(R_WS,4)}, {s(S_T0)} offen sc1")
    a(f"buffer_load_dwordx4 {v(188,4)}, v15, {s(R_WS,4)}, {s(S_T0)} offen offset:128 sc1")


def conv_main(a):
    U, UU, X, O = 48, 56, 112, 144
    for l in conv_reads(C_F0, 0):
        a(l)
    for r in range(4):
        cur, nxt = (C_F0, C_F1) if r % 2 == 0 else (C_F1, C_F0)
        a("s_waitcnt lgkmcnt(0)")
        if r < 3:
            rd = conv_reads(nxt, 64 * (r + 1))
        else:
            rd = [f"ds_read_b32 {v(U+2*b+c)}, v10 offset:{c*CH_STR + 256*(3-b)}" for b in range(4) for c in range(2)]
        for l in interleave(conv_mfmas(cur, r == 0), rd, 0, 1):
            a(l)
        if r == opt("WDR", 0):
            conv_mid(a)
    lstamp(a, 5)
    a(f"s_setprio {opt('PRX', opt('PRC', 3))}")
    bsync(a)
    if opt("XST", 0): lstamp(a, 1)
    for t in range(8):
        a(f"ds_write_b128 v8, {v(C_ACC+4*t,4)} offset:{t*1024}")
    bsync_post(a)
    a.c("skip term D*u at rows 512wb + 128b + 2l, +1")
    a(f"s_lshl_b32 s100, {s(S_C+1)}, 16\ns_and_b32 {s(S_C+1)}, {s(S_C+1)}, 0xffff0000")
    for b in range(4):
        for c in range(2):
            u, o = U + 2*b + c, UU + 4*b + 2*c
            a(f"v_and_b32 {v(o)}, {s(S_C)}, {v(u)}\nv_lshlrev_b32 {v(o+1)}, 16, {v(u)}")
    for b in range(4):
        for c in range(2):
            for j in range(2):
                a(f"v_mul_f32 {v(UU+4*b+2*c+j)}, {s(S_C+1) if c else 's100'}, {v(UU+4*b+2*c+j)}")
        a(f"v_mov_b32 {v(O+4*b+1)}, {s(S_NON)}\nv_mov_b32 {v(O+4*b+3)}, {s(S_NON)}")
    bsync_wait(a)
    if opt("XST", 0): lstamp(a, 2)
    for b in range(4):
        for w in range(4):
            a(f"ds_read_b64 {v(X+8*b+2*w,2)}, v9 offset:{w*8192 + b*512}")
    a("s_waitcnt vmcnt(0)")
    for b in range(4):
        a(f"s_waitcnt lgkmcnt({4*(3-b)})")
        for c in range(2):
            for j in range(2):
                o, x0 = UU + 4*b + 2*c + j, X + 8*b + 4*c + j
                a(f"v_add_f32 {v(o)}, {v(o)}, {v(x0)}")
        for c in range(2):
            for j in range(2):
                o, x0 = UU + 4*b + 2*c + j, X + 8*b + 4*c + j
                a(f"v_add_f32 {v(o)}, {v(o)}, {v(x0+2)}")
        for j in range(2):
            a(f"v_cvt_pk_bf16_f32 {v(O+4*b+2*j)}, {v(UU+4*b+j)}, {v(UU+4*b+2+j)}")
        if opt("XST", 0) and b == 0: lstamp(a, 3)
        a(f"buffer_store_dwordx4 {v(O+4*b,4)}, v4, {s(R_WS,4)}, {s(S_HO)} offen offset:{1024*b} sc1")
    a.c("the flag only says where to look: the granules carry their own tags")
    if opt("YACK", 0):
        a("s_waitcnt vmcnt(0)")
    flag_store(a, S_DO, 8, 9)


def conv_addr(a):
    a(f"s_lshr_b32 {s(S_T0)}, {s(S_WB)}, 1\ns_mul_i32 {s(S_RING)}, {s(S_T0)}, {CH_STR}\ns_add_u32 {s(S_RING)}, {s(S_RING)}, {L_CONV}")
    a(f"s_lshl_b32 {s(S_T3)}, {s(S_TI)}, 2\ns_load_dword {s(S_C+1)}, {s(S_DP,2)}, {s(S_T3)}")
    a.c("A address: base + (3-(m&3))*HSTR + 128*(m>>2) + 16*kg + 256*rh ; B address: ubase + 120 - 8n + 16kg + 256*rh")
    a(f"s_and_b32 {s(S_T0)}, {s(S_WB)}, 1\ns_lshl_b32 {s(S_T0)}, {s(S_T0)}, 8\ns_add_u32 {s(S_T0)}, {s(S_T0)}, {s(S_RING)}")
    a(f"v_and_b32 v6, 3, v0\nv_sub_u32 v6, 3, v6\nv_mul_u32_u24 v6, {HSTR}, v6\nv_bfe_u32 v7, v0, 2, 2\nv_lshl_add_u32 v6, v7, 7, v6")
    a(f"v_and_b32 v7, 48, v0\nv_add3_u32 {v(C_AA)}, v6, v7, {s(S_T0)}")
    a(f"v_and_b32 v6, 15, v0\nv_lshlrev_b32 v6, 3, v6\nv_sub_u32 v6, v7, v6\ns_add_u32 {s(S_T0)}, {s(S_T0)}, {4*HSTR + 120}\nv_add_u32 {v(C_BA)}, {s(S_T0)}, v6")
    a(f"s_lshl_b32 {s(S_T0)}, {s(S_WB)}, 13\ns_add_u32 {s(S_T0)}, {s(S_T0)}, {L_XCH}\nv_add_u32 v8, {s(S_T0)}, v4")
    a(f"s_lshl_b32 {s(S_T0)}, {s(S_WB)}, 11\ns_add_u32 {s(S_T0)}, {s(S_T0)}, {L_XCH}\nv_lshlrev_b32 v9, 3, v0\nv_add_u32 v9, {s(S_T0)}, v9")
    a.c("u for the skip term: ubase_c + 2*(2046 - 512wb - 128b - 2l)")
    a(f"s_lshl_b32 {s(S_T0)}, {s(S_WB)}, 10\ns_sub_u32 {s(S_T0)}, {L_CONV + 4*HSTR + 4092 - 768}, {s(S_T0)}\nv_lshlrev_b32 v10, 2, v0\nv_sub_u32 v10, {s(S_T0)}, v10")
    a.c("y granules: YG[ti][row*8]; flag F4[wb*256 + ti]")
    a(f"s_mul_i32 {s(S_T0)}, {s(S_TI)}, {YSTR}\ns_lshl_b32 {s(S_T1)}, {s(S_WB)}, 12\ns_add_u32 {s(S_T0)}, {s(S_T0)}, {s(S_T1)}\ns_add_u32 {s(S_HO)}, {s(S_T0)}, {WS_YG:#x}")
    a(f"s_lshl_b32 {s(S_T0)}, {s(S_WB)}, 8\ns_add_u32 {s(S_T0)}, {s(S_T0)}, {s(S_TI)}\ns_lshl_b32 {s(S_T0)}, {s(S_T0)}, 7\ns_add_u32 {s(S_DO)}, {s(S_T0)}, {WS_F4:#x}")
    a(f"s_mov_b32 {s(S_CNT)}, 0\ns_lshl_b32 {s(S_T0)}, {s(S_WB)}, 2\nv_add_u32 v11, {s(S_T0)}, {v(C_CNT)}\nv_mov_b32 v251, 3")
    a.c("F1 pairs of the two tiles that hold this wave's output rows")
    a(f"s_lshl_b32 {s(S_T1)}, {s(S_MT)}, 2\ns_add_u32 {s(S_T1)}, {s(S_T1)}, {s(S_WB)}\ns_lshl_b32 {s(S_T1)}, {s(S_T1)}, 8\ns_add_u32 {s(S_T1)}, {s(S_T1)}, {WS_F1:#x}")
    a(f"v_and_b32 v5, 1, v0\nv_lshlrev_b32 v5, 7, v5\nv_add_u32 v5, {s(S_T1)}, v5")
    poll2_issue(a, 5, 198)


def final_loads(a):
    a(f"s_lshl_b32 {s(S_T0)}, {s(S_MT)}, 2\ns_add_u32 {s(S_T0)}, {s(S_T0)}, {s(S_WB)}\ns_lshl_b32 {s(S_T1)}, {s(S_T0)}, 14\ns_lshl_b32 {s(S_T2)}, {s(S_NT)}, 7\ns_add_u32 {s(S_XO)}, {s(S_T1)}, {s(S_T2)}")
    a(f"s_add_u32 {s(S_WO)}, {s(S_XO)}, 8192")
    a("v_lshrrev_b32 v12, 3, v0\nv_and_b32 v13, 7, v0\nv_lshlrev_b32 v14, 4, v13\nv_lshl_add_u32 v14, v12, 10, v14\nv_lshlrev_b32 v15, 4, v12")
    a(f"buffer_load_dwordx4 {v(176,4)}, v14, {s(R_X,4)}, {s(S_XO)} offen")
    a(f"buffer_load_dwordx4 {v(180,4)}, v14, {s(R_X,4)}, {s(S_WO)} offen")


def final(a):
    XU, XN, YU, YL = 16, 72, 96, 160
    a.c("flags F4[(mt>>3)*256 + 32nt + 8wb + (l&7)]; granules of pairs 32nt + 8wb + 2i + (l>>5), rows 64mt + 2*(l&31) ..")
    a(f"s_lshl_b32 {s(S_T0)}, {s(S_NT)}, 2\ns_add_u32 {s(S_T0)}, {s(S_T0)}, {s(S_WB)}\ns_lshr_b32 {s(S_T1)}, {s(S_MT)}, 3\ns_lshl_b32 {s(S_T1)}, {s(S_T1)}, 5\ns_add_u32 {s(S_T1)}, {s(S_T1)}, {s(S_T0)}")
    a(f"s_lshl_b32 {s(S_T1)}, {s(S_T1)}, 10\ns_add_u32 {s(S_T1)}, {s(S_T1)}, {WS_F4:#x}\nv_lshlrev_b32 v5, 7, v13\nv_add_u32 v5, {s(S_T1)}, v5")
    a(f"s_mul_i32 {s(S_T0)}, {s(S_T0)}, {8*YSTR}\ns_lshl_b32 {s(S_T1)}, {s(S_MT)}, 9\ns_add_u32 {s(S_T0)}, {s(S_T0)}, {s(S_T1)}\ns_add_u32 {s(S_HO)}, {s(S_T0)}, {WS_YG:#x}")
    a(f"v_lshrrev_b32 v10, 5, v0\nv_mul_u32_u24 v8, {YSTR - 512}, v10\nv_add_u32 v8, v8, v4")

    def y_loads():
        a(f"s_mov_b32 {s(S_T1)}, {s(S_HO)}")
        for i in range(4):
            a(f"buffer_load_dwordx4 {v(YL+4*i,4)}, v8, {s(R_WS,4)}, {s(S_T1)} offen sc1")
            if i < 3:
                a(f"s_add_u32 {s(S_T1)}, {s(S_T1)}, {2*YSTR}")
    for t in range(2):
        for i in range(4):
            a(f"v_lshlrev_b32 {v(XU+8*t+2*i)}, 16, {v(176+4*t+i)}\nv_and_b32 {v(XU+8*t+2*i+1)}, {s(S_C)}, {v(176+4*t+i)}")
    for i in range(16):
        a(f"v_mov_b32 {v(YU+i)}, 0")
    a.c("transpose scratch [wb'][c*272 + e*64 + row*4]")
    a(f"s_mul_i32 {s(S_T0)}, {s(S_WB)}, 544\ns_add_u32 {s(S_T0)}, {s(S_T0)}, {L_YL}")
    a(f"v_and_b32 v9, 3, v12\nv_mul_u32_u24 v9, 2176, v9\nv_lshl_add_u32 v9, v10, 6, v9\nv_lshl_add_u32 v9, v13, 3, v9\nv_add_u32 v9, {s(S_T0)}, v9")
    a(f"s_mul_i32 {s(S_T0)}, {s(S_WB)}, 2176\ns_add_u32 {s(S_T0)}, {s(S_T0)}, {L_YL}")
    a(f"v_mul_u32_u24 v7, 272, v13\nv_lshl_add_u32 v7, v12, 2, v7\nv_add_u32 v7, {s(S_T0)}, v7")
    a.c("partials: wb*16384 + w*4096 + (8t + row)*256 + ((2c + h) ^ row)*16")
    a(f"s_lshl_b32 {s(S_T0)}, {s(S_WB)}, 14\nv_lshlrev_b32 v2, 1, v13\nv_xor_b32 v2, v2, v12\nv_lshlrev_b32 v2, 4, v2\nv_lshl_add_u32 v2, v12, 8, v2\nv_add_u32 v2, {s(S_T0)}, v2")
    a("v_xor_b32 v3, 16, v2")
    for t in range(2):
        a(f"v_mul_f32 {v(185+4*t)}, {f32bits(1.0/C1):#x}, {v(185+4*t)}")
        for i in range(8):
            a(f"v_sub_f32 {v(XN+8*t+i)}, {v(XU+8*t+i)}, {v(184+4*t)}")
        for i in range(8):
            a(f"v_mul_f32 {v(XN+8*t+i)}, {v(XN+8*t+i)}, {v(185+4*t)}")
    if not opt('LDST', 0): stamp(a, 7)
    a(f"s_setprio {opt('PRP', 0)}")
    a.c("stay off the memory path until the GEMM2 waves have issued their loads")
    lds_min_wait(a, C_CNT, W_HI, 1, 4, 6, nap=2)
    a(f"s_setprio {opt('PRF', 3)}")
    if not opt('LDST', 0): stamp(a, 8)
    top, done = a.label("yp"), a.label("yp_ok")
    a(f"s_mov_b32 {s(S_IT)}, 0")
    if opt("YFLAG", 1):
        poll(a, 5, 6)
    a(f"{top}:")
    y_loads()
    a("s_waitcnt vmcnt(0)")
    for i in range(4):
        a(f"v_xor_b32 {v(48+i)}, {s(S_NON)}, {v(YL+4*i+1)}\nv_xor_b32 {v(52+i)}, {s(S_NON)}, {v(YL+4*i+3)}\nv_mov_b32 {v(YL+4*i+1)}, {v(YL+4*i+2)}")
    a("v_or3_b32 v48, v48, v49, v50\nv_or3_b32 v51, v51, v52, v53\nv_or3_b32 v48, v48, v54, v55\nv_or_b32 v48, v48, v51\nv_cmp_ne_u32 vcc, 0, v48")
    a(f"s_cbranch_vccz {done}")
    poll(a, 5, 6)
    a(f"s_add_u32 {s(S_IT)}, {s(S_IT)}, {s(S_SPIN)}\ns_add_u32 {s(S_IT)}, {s(S_IT)}, 1\ns_cmp_lt_u32 {s(S_IT)}, {SPIN_MAX}\ns_cbranch_scc1 {top}")
    a(f"{done}:")
    for i in range(4):
        a(f"ds_write_b64 v9, {v(YL+4*i,2)} offset:{272*(i>>1) + 128*(i&1)}")
    bsync(a)
    for t in range(2):
        for e in range(8):
            a(f"ds_read_u16_d16_hi {v(YU+8*t+e)}, v7 offset:{64*(e>>1) + 32*t + 2*(e&1)}")
    for t in range(2):
        a(f"s_waitcnt lgkmcnt({8*(1-t)})")
        for i in range(8):
            a(f"v_fmac_f32 {v(XU+8*t+i)}, {v(XN+8*t+i)}, {v(YU+8*t+i)}")
    if not opt('LDST', 0): stamp(a, 9)
    if STAMPS:
        a("s_waitcnt lgkmcnt(0)")
    a("s_barrier")
    P = 112
    for t in range(2):
        for w in range(4):
            for h in range(2):
                a(f"ds_read_b128 {v(P+32*t+8*w+4*h,4)}, {'v3' if h else 'v2'} offset:{w*4096 + t*2048}")
    for t in range(2):
        a(f"s_waitcnt lgkmcnt({8*(1-t)})")
        p = P + 32 * t
        for i in range(4):
            a(f"v_pk_add_f32 {v(p+2*i,2)}, {v(p+2*i,2)}, {v(p+8+2*i,2)}")
        for i in range(4):
            a(f"v_pk_add_f32 {v(p+16+2*i,2)}, {v(p+16+2*i,2)}, {v(p+24+2*i,2)}")
        for i in range(4):
            a(f"v_pk_add_f32 {v(p+2*i,2)}, {v(p+2*i,2)}, {v(XU+8*t+2*i,2)}")
        for i in range(4):
            a(f"v_pk_add_f32 {v(p+2*i,2)}, {v(p+2*i,2)}, {v(p+16+2*i,2)}")
        for i in range(4):
            a(f"v_cvt_pk_bf16_f32 {v(48+4*t+i)}, {v(p+2*i)}, {v(p+2*i+1)}")
        a(f"buffer_store_dwordx4 {v(48+4*t,4)}, v14, {s(R_OUT,4)}, {s(S_WO if t else S_XO)} offen")


def epoch_flags_issue(a):
    a(f"v_lshlrev_b32 v6, 7, v0\ns_mov_b32 {s(S_T0)}, {WS_F1:#x}")
    for i in range(4):
        a(f"buffer_load_dword {v(2+i)}, v6, {s(R_WS,4)}, {s(S_T0)} offen sc1")
        a(f"s_add_u32 {s(S_T0)}, {s(S_T0)}, 8192")


def epoch_pre(a):
    done = a.label("ep_skip")
    a(f"s_lshl_b32 {s(S_T0)}, s2, 3\ns_add_u32 {s(S_T0)}, {s(S_T0)}, {s(S_WAVE)}\ns_cmp_lg_u32 {s(S_T0)}, 0\ns_cbranch_scc1 {done}")
    epoch_flags_issue(a)
    a(f"{done}:")


def epoch_advance(a):
    done, top, ok = a.label("ep_skip"), a.label("ep_top"), a.label("ep_ok")
    a(f"s_lshl_b32 {s(S_T0)}, s2, 3\ns_add_u32 {s(S_T0)}, {s(S_T0)}, {s(S_WAVE)}\ns_cmp_lg_u32 {s(S_T0)}, 0\ns_cbranch_scc1 {done}")
    a(f"s_mov_b32 {s(S_SPIN)}, 0")
    a(f"{top}:")
    for i in range(4):
        a(f"v_xor_b32 {v(2+i)}, {s(S_NON)}, {v(2+i)}")
    a("v_or_b32 v2, v2, v3\nv_or_b32 v4, v4, v5\nv_or_b32 v2, v2, v4\nv_cmp_ne_u32 vcc, 0, v2")
    a(f"s_cbranch_vccz {ok}")
    a(f"s_add_u32 {s(S_SPIN)}, {s(S_SPIN)}, 1\ns_cmp_ge_u32 {s(S_SPIN)}, {SPIN_MAX}\ns_cbranch_scc1 {ok}")
    epoch_flags_issue(a)
    a(f"s_waitcnt vmcnt(0)\ns_branch {top}")
    a(f"{ok}:")
    a(f"s_mov_b32 {s(S_T0)}, {WS_EP:#x}")
    flag_store(a, S_T0, 8, 9)
    a(f"{done}:")


def kernel(a):
    entry(a)
    prologue(a, False, 1)
    g1_compute(a)
    g1_epilogue(a)
    epoch_pre(a)
    g2_main(a)
    epoch_advance(a)
    stamp_flush(a)
    a("s_endpgm")
    a(f".p2align {opt('AL', 6)}\n" + ".fill 16, 4, 0xbf800000\n" * opt("PAD", 0) + "L_load:")
    prologue(a)
    loader(a)
    a("s_branch L_bj")
    a(f".p2align {opt('AL', 6)}\nL_help:")
    prologue(a, 2 if opt("KV1", 0) else True)
    helper(a)
    a("L_bj:")
    if opt("BST", 0): lstamp(a, 1)
    conv_addr(a)
    if opt("BST", 0): lstamp(a, 2)
    bsync(a, 4 if opt("CEARLY", 0) else 8)
    a(f"s_setprio {opt('PRC', 3)}")
    lstamp(a, 4)
    conv_main(a)
    lstamp(a, 6)
    final(a)
    stamp_flush(a)
    a("s_endpgm")
    a.L += COLD.L
    a("L_end:\ns_endpgm")


HEADER = open(f"cdna_kernels/{NAME}.s.ref").read().split("; Override launch")[0]


def build():
    a = Asm()
    kernel(a)
    out = HEADER + "; @launch grid=(256,1,1) block=(512,1,1) lds=163840\n"
    out += '.amdgcn_target "amdgcn-amd-amdhsa--gfx950"\n.text\n' + a.text()
    out += '.section .rodata,"a"\n.p2align 6\n' + kernel_desc(KNAME)
    return out


if __name__ == "__main__":
    open(sys.argv[1] if len(sys.argv) > 1 else "t_m.s", "w").write(build())
```

```python
import math, os, sys
from asmlib import *

NAME = "parallel_sum__ssm_conv_h3__geglu_ffn__prompt"
KNAME = NAME + "_kernel"
S, D, F = 2048, 512, 1376
NU = F // 16
STAMPS = os.environ.get("STAMPS") == "1"
def opt(name, default):
    return int(os.environ.get(name, default))

WS_HF, WS_KVR, WS_Y2, WS_ST, WS_CSP = 0, 0x600000, 0x800000, 0xA00000, 0xA10000
WS_F1, WS_F2, WS_F3, WS_F4, WS_EP = 0xA80000, 0xA88000, 0xAA0000, 0xAC0000, 0xAE0000
WS_STAMP = 0xC00000
WS_YG = 0x1000000
YSTR = 16384 + 256
WS_SIZE = 0x1500000
NONCE_INC = 0x9E3779B1
OOB = 0x7f000000
R_X, R_WG, R_WU, R_WS, R_K, R_V, R_SK, R_WD, R_OUT, R_H = 4, 8, 12, 16, 20, 24, 28, 32, 36, 40
S_DP = 44
S_EX = 46
(S_WAVE, S_MI, S_NI, S_FB0, S_NBLK, S_T0, S_T1, S_T2, S_T3, S_IT, S_SLOT, S_KC, S_XO, S_WO, S_WO2, S_M0,
 S_WB, S_SH, S_UH, S_TI, S_MT, S_NT, S_NON, S_RING, S_CNT, S_HO, S_DO, S_SPIN) = range(48, 76)
S_C = 76
S_DK, S_HK, S_KEND = 3, S_RING, S_CNT
SLOT, NSLOT = 40960, 3
L_KVT, KVT_STR = 122880, 80
L_CS, L_ST, L_CNT = 135680, 136704, 138752
HSTR = 4640
CH_STR = 4 * HSTR + 4224
L_CONV = 81920
L_XCH = 81920
L_YL = 114688
NRW = 7
KVL = opt("KVL", 0)
CFX, CFW, CFS, CFD = (os.environ.get(k, "") for k in ("CFX", "CFW", "CFS", "CFD"))
SLOTMAP = [2, 3, 4, 5, 6, 0, 1] if KVL else list(range(7))
L_RA0 = 127488
S_RA, S_RB = 101, S_M0
L_CSS = 139264
assert L_KVT + 2 * 64 * KVT_STR <= L_CS and L_CONV + 2 * CH_STR <= L_RA0 and L_RA0 + 8192 <= L_CS and L_CNT + 256 <= L_CSS
W_CNT, W_GATH, W_HP, W_FREE, W_FULL, W_NON, W_C0, W_ISS, W_WD, W_HI, W_WE = 0, 8, 12, 16, 32, 40, 48, 64, 80, 96, 112
S_DUM = 100
C1 = -2.0 * math.log2(math.e) * math.sqrt(2.0 / math.pi)
C2 = C1 * 0.044715
SPIN_MAX = 1 << 16
LSPIN_MAX = 1 << 22


def stamp(a, i):
    if STAMPS:
        a(f"{'s_memtime' if opt('CLK', 0) else 's_memrealtime'} {s(78+2*i,2)}")


def lstamp(a, i):
    if STAMPS and not opt("LDST", 0):
        lab = a.label("ls")
        a(f"s_cmp_ge_u32 {s(S_WB)}, 2\ns_cbranch_scc1 {lab}")
        stamp(a, i)
        a(f"{lab}:")


ITST = STAMPS and opt("ITST", 0)


def it_issue(a):
    if ITST:
        a("s_memrealtime s[96:97]")


def it_take(a, add):
    if ITST:
        a(f"s_add_u32 m0, {s(S_IT)}, {add}\ns_nop 0\nv_writelane_b32 v255, s96, m0")


def stamp_flush(a):
    if not STAMPS:
        return
    if ITST:
        a(f"s_lshl_b32 s96, s2, 3\ns_add_u32 s96, s96, {s(S_WAVE)}\ns_lshl_b32 s96, s96, 8\ns_add_u32 s96, s96, {WS_STAMP + 0x100000:#x}")
        a(f"v_lshlrev_b32 v2, 2, v0\nbuffer_store_dword v255, v2, {s(R_WS,4)}, s96 offen\ns_mov_b32 s96, 0")
    a("s_waitcnt vmcnt(0) lgkmcnt(0)")
    stamp(a, 10)
    a("s_waitcnt lgkmcnt(0)")
    for i in range(11):
        a(f"v_writelane_b32 v1, {s(78+2*i)}, {i}")
    a(f"s_lshl_b32 s78, s2, 3\ns_add_u32 s78, s78, {s(S_WAVE)}\ns_lshl_b32 s78, s78, 6\ns_add_u32 s78, s78, {WS_STAMP:#x}")
    a("v_lshlrev_b32 v2, 2, v0\ns_mov_b64 exec, 0x7ff")
    a(f"buffer_store_dword v1, v2, {s(R_WS,4)}, s78 offen")
    if opt("DBGST", 0):
        lab = a.label("dbg")
        a(f"s_cmp_lg_u32 s78, {WS_STAMP + opt('DBGW', 0)*64 + 100*512:#x}\ns_cbranch_scc1 {lab}")
        a("s_load_dwordx2 s[84:85], s[0:1], 88\ns_mov_b32 s86, 256\ns_mov_b32 s87, 0x20000\nv_readlane_b32 s82, v1, 0\ns_waitcnt lgkmcnt(0)")
        a("v_subrev_u32 v1, s82, v1")
        a("buffer_store_dword v1, v2, s[84:87], 0 offen")
        a(f"{lab}:")


TABLE = [(R_X, 0, S*D*2), (R_WG, 56, D*F*2), (R_WU, 64, D*F*2), (R_WS, 96, WS_SIZE), (R_K, 8, S*D*2), (R_V, 16, S*D*2),
         (R_SK, 24, D*8), (R_WD, 72, D*F*2), (R_OUT, 80, S*D*2), (R_H, 32, S*D*2)]


def entry(a):
    a(f".globl {KNAME}\n.p2align 8\n.type {KNAME},@function\n{KNAME}:")
    a("s_cmp_ge_u32 s2, 256\ns_cbranch_scc1 L_end")
    if opt("CPF", 0):
        n = opt("CPF", 0)
        a.c("pull this workgroup's share of the code into L2 ahead of the instruction fetch")
        a(f"s_getpc_b64 {s(S_EX,2)}\nL_pc:")
        a(f"s_lshr_b32 s3, s2, 3\nv_lshlrev_b32 v2, 5, v0\nv_add_u32 v2, s3, v2\nv_lshlrev_b32 v2, 7, v2\nv_mov_b32 v3, {s(S_EX+1)}")
        a(f"v_cmp_gt_u32 vcc, L_end-L_pc, v2\ns_and_saveexec_b64 {s(S_DP,2)}, vcc\ns_cbranch_execz L_nopf")
        a(f"v_add_co_u32 v2, vcc, {s(S_EX)}, v2\nv_addc_co_u32 v3, vcc, 0, v3, vcc")
        a("global_load_dword v212, v[2:3], off")
        a("L_nopf:\ns_mov_b64 exec, -1")
    a("v_lshrrev_b32 v1, 6, v0")
    a(f"s_load_dwordx2 {s(R_X,2)}, s[0:1], 0\ns_load_dwordx2 {s(R_WS,2)}, s[0:1], 96")
    stamp(a, 0)
    a(f"v_readfirstlane_b32 {s(S_WAVE)}, v1")
    a("v_and_b32 v0, 63, v0")
    a(f"s_cmp_ge_u32 {s(S_WAVE)}, 6\ns_cbranch_scc1 L_help")
    a(f"s_cmp_ge_u32 {s(S_WAVE)}, 4\ns_cbranch_scc1 L_load")


def prologue(a, bar=True, part=3):
    first = (R_X, R_WG, R_WU)
    if part & 1:
        for r, off, size in TABLE:
            if r in first[1:]:
                a(f"s_load_dwordx2 {s(r,2)}, s[0:1], {off}")
    if part & 2:
        for r, off, size in TABLE:
            if r not in first + (R_WS,):
                a(f"s_load_dwordx2 {s(r,2)}, s[0:1], {off}")
        a(f"s_load_dwordx2 {s(S_DP,2)}, s[0:1], 40")
        if STAMPS:
            for i in range(1, 11):
                a(f"s_mov_b32 {s(78+2*i)}, 0")
        if ITST:
            a("v_mov_b32 v255, 0")
    if part & 1 and not bar:
        a.c("LDS hand-off words start at zero")
        a(f"v_mov_b32 v20, 0\nv_lshlrev_b32 v5, 2, v0\nv_add_u32 v5, {L_CNT}, v5\nds_write_b32 v5, v20")
    for r, off, size in TABLE:
        if part & (1 if r in first else 2):
            a(f"s_mov_b32 {s(r+2)}, {size:#x}\ns_mov_b32 {s(r+3)}, 0x20000")
    if part & 1:
        a.c("x = wg&7, j = wg>>3; GEMM1 tile mi = 8*(x&1) + (j&7), ni = 4*(x>>1) + (j>>3); ti = 16*mi + ni")
        a(f"s_and_b32 {s(S_T0)}, s2, 1\ns_lshl_b32 {s(S_T0)}, {s(S_T0)}, 3")
        a(f"s_bfe_u32 {s(S_T1)}, s2, 0x30003\ns_add_u32 {s(S_MI)}, {s(S_T0)}, {s(S_T1)}")
        a(f"s_bfe_u32 {s(S_T0)}, s2, 0x20001\ns_lshl_b32 {s(S_T0)}, {s(S_T0)}, 2")
        a(f"s_lshr_b32 {s(S_T2)}, s2, 6\ns_add_u32 {s(S_NI)}, {s(S_T0)}, {s(S_T2)}")
        a.c("first 32-col block fb0 = 3*ni - (ni>>2) - (ni==15); nblk = 2 for ni in {3,7,11,14,15}")
        a(f"s_mul_i32 {s(S_FB0)}, {s(S_NI)}, 3\ns_lshr_b32 {s(S_T0)}, {s(S_NI)}, 2\ns_sub_u32 {s(S_FB0)}, {s(S_FB0)}, {s(S_T0)}")
        a(f"s_cmp_eq_u32 {s(S_NI)}, 15\ns_subb_u32 {s(S_FB0)}, {s(S_FB0)}, 0")
        a(f"s_bitcmp1_b32 0xc888, {s(S_NI)}\ns_cselect_b32 {s(S_NBLK)}, 2, 3")
        a(f"s_and_b32 {s(S_WB)}, {s(S_WAVE)}, 3")
        a.c("GEMM1 DMA lane offsets. x: (l>>3)*1024 + ((l&7) ^ ((4*(w&1) + l>>4)&7))*16 ; W: (l>>2)*2752 + ((l&3) ^ (2*(l>>5)))*16")
        a(f"s_and_b32 {s(S_T0)}, {s(S_WAVE)}, 1\ns_lshl_b32 {s(S_T0)}, {s(S_T0)}, 2")
        a(f"v_lshrrev_b32 v5, 4, v0\nv_add_u32 v5, {s(S_T0)}, v5\nv_and_b32 v6, 7, v0\nv_xor_b32 v5, v5, v6\nv_lshlrev_b32 v5, 4, v5")
        a(f"v_lshrrev_b32 v6, 3, v0\nv_lshl_add_u32 {v(VB_X)}, v6, 10, v5")
        a(f"v_lshrrev_b32 v5, 5, v0\nv_lshlrev_b32 v5, 1, v5\nv_and_b32 v6, 3, v0\nv_xor_b32 v5, v5, v6\nv_lshlrev_b32 v5, 4, v5")
        a(f"v_lshrrev_b32 v6, 2, v0\nv_mul_u32_u24 v6, {F*2}, v6\nv_add_u32 {v(VB_W)}, v6, v5")
        if not bar:
            a(f"s_lshl_b32 {s(S_XO)}, {s(S_MI)}, 17\ns_lshl_b32 {s(S_T0)}, {s(S_WB)}, 13\ns_add_u32 {s(S_XO)}, {s(S_XO)}, {s(S_T0)}")
            a(f"s_mul_i32 {s(S_WO)}, {s(S_WB)}, {16*F*2}\ns_lshl_b32 {s(S_T0)}, {s(S_FB0)}, 6\ns_add_u32 {s(S_WO)}, {s(S_WO)}, {s(S_T0)}")
            a(f"s_cmp_eq_u32 {s(S_NBLK)}, 3\ns_cselect_b32 {s(S_WO2)}, {s(S_WO)}, {OOB:#x}")
            a(f"s_lshl_b32 {s(S_M0)}, {s(S_WB)}, 10")
    if part & 2:
        a(f"s_lshl_b32 {s(S_TI)}, {s(S_MI)}, 4\ns_add_u32 {s(S_TI)}, {s(S_TI)}, {s(S_NI)}")
        if opt("MTL", 1):
            a.c("GEMM2 tile mt = 16*(x&1) + 4*(x>>1) + (j&3), nt = j>>2")
            a(f"s_and_b32 {s(S_T0)}, s2, 1\ns_lshl_b32 {s(S_T0)}, {s(S_T0)}, 4\ns_and_b32 {s(S_T1)}, s2, 6\ns_lshl_b32 {s(S_T1)}, {s(S_T1)}, 1\ns_add_u32 {s(S_T0)}, {s(S_T0)}, {s(S_T1)}")
            a(f"s_bfe_u32 {s(S_T1)}, s2, 0x20003\ns_add_u32 {s(S_MT)}, {s(S_T0)}, {s(S_T1)}")
        else:
            a.c("GEMM2 tile mt = 4*x + (j&3), nt = j>>2")
            a(f"s_and_b32 {s(S_T0)}, s2, 7\ns_lshl_b32 {s(S_T0)}, {s(S_T0)}, 2\ns_bfe_u32 {s(S_T1)}, s2, 0x20003\ns_add_u32 {s(S_MT)}, {s(S_T0)}, {s(S_T1)}")
        a(f"s_lshr_b32 {s(S_NT)}, s2, 5\ns_mov_b32 {s(S_SPIN)}, 0")
    if bar:
        a(f"s_mov_b32 {s(S_UH)}, 0\nv_lshlrev_b32 v4, 4, v0\nv_mov_b32 {v(C_CNT)}, {L_CNT}\nv_mov_b32 {v(C_ONE)}, 1\ns_mov_b32 {s(S_C)}, 0xffff0000")
    if part & 1:
        a("s_waitcnt lgkmcnt(0)")
    if bar is True:
        a("s_barrier")


VB_X, VB_W = 14, 15
C_CNT, C_ONE = 252, 253


def poll(a, vaddr, vtmp):
    top, done = a.label("poll"), a.label("poll_ok")
    a(f"s_mov_b32 {s(S_SPIN)}, 0")
    a(f"{top}:")
    a(f"buffer_load_dword {v(vtmp)}, {v(vaddr)}, {s(R_WS,4)}, 0 offen sc1")
    a("s_waitcnt vmcnt(0)")
    a(f"v_cmp_ne_u32 vcc, {s(S_NON)}, {v(vtmp)}")
    a(f"s_cbranch_vccz {done}")
    a(f"s_sleep {opt('PSG' if vaddr == G_FL else 'PSY', 4)}")
    a(f"s_add_u32 {s(S_SPIN)}, {s(S_SPIN)}, 1\ns_cmp_lt_u32 {s(S_SPIN)}, {SPIN_MAX}\ns_cbranch_scc1 {top}")
    a(f"{done}:")


def poll2_issue(a, vaddr, vt):
    a(f"buffer_load_dwordx2 {v(vt,2)}, {v(vaddr)}, {s(R_WS,4)}, 0 offen sc1")


def poll2_check(a, vaddr, vt):
    top, done = a.label("poll"), a.label("poll_ok")
    a(f"s_mov_b32 {s(S_SPIN)}, 0")
    a(f"{top}:")
    a(f"v_cmp_ne_u32 vcc, {s(S_NON)}, {v(vt)}\nv_cmp_ne_u32 {s(S_EX,2)}, {s(S_NON)}, {v(vt+1)}")
    a(f"s_nop 0\ns_or_b64 vcc, vcc, {s(S_EX,2)}")
    a(f"s_cbranch_scc0 {done}")
    a(f"s_add_u32 {s(S_SPIN)}, {s(S_SPIN)}, 1\ns_cmp_ge_u32 {s(S_SPIN)}, {SPIN_MAX}\ns_cbranch_scc1 {done}")
    a(f"s_sleep {opt('PS2', 1)}")
    poll2_issue(a, vaddr, vt)
    a(f"s_waitcnt vmcnt(0)\ns_branch {top}")
    a(f"{done}:")


class VQ:
    def __init__(self, a):
        self.a, self.q = a, []
    def add(self, tag, n):
        self.q += [tag] * n
    def count(self, *tags):
        last = max((i for i, x in enumerate(self.q) if x in tags), default=-1)
        n = len(self.q) - 1 - last
        assert n <= 63
        return n
    def wait(self, *tags):
        self.a(f"s_waitcnt vmcnt({self.count(*tags)})")


def flag_store(a, soff, vt0, vt1):
    a(f"v_mov_b32 {v(vt0)}, {s(S_NON)}\nv_mov_b32 {v(vt1)}, 0")
    a("s_mov_b64 exec, 1")
    a(f"buffer_store_dword {v(vt0)}, {v(vt1)}, {s(R_WS,4)}, {s(soff)} offen sc1")
    a("s_mov_b64 exec, -1")


def epoch_load(a, vt):
    a(f"v_mov_b32 {v(vt)}, {WS_EP:#x}")
    a(f"buffer_load_dword {v(vt)}, {v(vt)}, {s(R_WS,4)}, 0 offen sc1")


def epoch_take(a, vt):
    a(f"v_readfirstlane_b32 {s(S_NON)}, {v(vt)}")
    a("s_nop 0")
    a(f"s_add_u32 {s(S_NON)}, {s(S_NON)}, {NONCE_INC:#x}")


V_XA0, V_XA1, V_W = 2, 3, 4
V_XC0, V_XC1, V_WC = 7, 8, 9
ACC, F0, F1 = 16, 112, 152
G_ACC, G_WF, G_H = 176, 16, 80
G_L16, G_WD, G_TR, G_TR0, G_TR5, G_FL = 240, 241, 242, 246, 250, 254
NHB, NWF, NSTEP = 6, 4, 11
G_HT = 255


def acc(u, mat, sb):
    return ACC + ((u * 2 + mat) * 4 + sb) * 4


def g1_reads(fr, step, units):
    out = []
    for u in units:
        if u == 'x':
            for sb in range(4):
                out.append(f"ds_read_b128 {v(fr+4*sb,4)}, {v(V_XC1 if step else V_XC0)} offset:{sb*2048}")
            continue
        for mat in range(2):
            r = fr + 16 + (u * 2 + mat) * 4
            for t in range(2):
                out.append(f"ds_read_b64_tr_b16 {v(r+2*t,2)}, {v(V_WC+u)} offset:{mat*12288+step*2048+t*256}")
    return out


def g1_mfmas(fr, units):
    out = []
    for u in units:
        for mat in range(2):
            for sb in range(4):
                c = acc(u, mat, sb)
                out.append(f"v_mfma_f32_16x16x32_bf16 {v(c,4)}, {v(fr+16+(u*2+mat)*4,4)}, {v(fr+4*sb,4)}, {v(c,4)}")
    return out


V_LW, V_FC, V_FL = 12, 13, 192


COLD = Asm()


def g1_step_a(a):
    rd = g1_reads(F1, 1, ['x', 0, 1, 2])
    for i, m in enumerate(g1_mfmas(F0, [0, 1])):
        if i == 0:
            a("s_waitcnt lgkmcnt(8)")
        if i == 8:
            a("s_waitcnt lgkmcnt(12)")
            a(f"ds_read_b32 {v(V_FL)}, {v(V_FL+1)} offset:{W_FULL}")
        a(rd[i])
        a(m)
    a(f"ds_write_b32 {v(V_FL+2)}, {v(V_FC)}")
    lab = a.label("g1_skip")
    a(f"s_cbranch_vccnz {lab}")
    a("s_waitcnt lgkmcnt(15)")
    for l in g1_mfmas(F0, [2]):
        a(l)
    a(f"{lab}:")


def g1_step_b(a):
    mf = g1_mfmas(F1, [0, 1])
    rd = g1_reads(F0, 0, ['x', 0, 1, 2])
    slow, lab, lab2 = a.label("g1_slow"), a.label("g1_skip"), a.label("g1_skip")
    a("s_waitcnt lgkmcnt(9)")
    a(mf[0])
    a(f"v_add_u32 {v(V_XC0)}, {s(S_SLOT)}, {v(V_XA0)}")
    a(mf[1])
    a(f"v_readfirstlane_b32 {s(S_T0)}, {v(V_FL)}")
    a(f"v_add_u32 {v(V_WC)}, {s(S_SLOT)}, {v(V_W)}")
    a(mf[2])
    extra = [f"v_add_u32 {v(V_WC+1)}, {s(S_SLOT)}, {v(V_W+1)}", f"v_add_u32 {v(V_WC+2)}, {s(S_SLOT)}, {v(V_W+2)}",
             f"v_add_u32 {v(V_XC1)}, {s(S_SLOT)}, {v(V_XA1)}", f"v_add_u32 {v(V_FC)}, 1, {v(V_FC)}"]
    flip = f"v_xor_b32 {v(V_FL+1)}, 4, {v(V_FL+1)}"
    a(f"s_cmp_lt_u32 {s(S_T0)}, {s(S_T2)}\ns_cbranch_scc1 {slow}")
    r, e = list(rd), extra + [flip]
    for i, m in enumerate(mf[3:]):
        if i == 5:
            a("s_waitcnt lgkmcnt(13)")
        a(r.pop(0))
        if i < 3:
            a(r.pop(0))
        if e:
            a(e.pop(0))
        a(m)
    assert not r
    a(f"s_cbranch_vccnz {lab}")
    a("s_waitcnt lgkmcnt(15)")
    for l in g1_mfmas(F1, [2]):
        a(l)
    a(f"{lab}:")
    if ITST:
        it_issue(a)
        a("s_waitcnt lgkmcnt(0)")
        it_take(a, 16)
    a(f"s_cmp_lt_u32 {s(S_IT)}, 8")
    a("s_cbranch_scc1 g1_loop")
    main, a = a, COLD
    a.nlabel = main.nlabel + 5000
    a.c("next chunk not in yet: finish this one first")
    a(f"{slow}:")
    a("s_waitcnt lgkmcnt(0)")
    for l in interleave(mf[3:], extra, 0, 1):
        a(l)
    a(f"s_cbranch_vccnz {lab2}")
    for l in g1_mfmas(F1, [2]):
        a(l)
    a(f"{lab2}:")
    lds_min_wait(a, V_FL+1, W_FULL, 1, s(S_T2), V_FL)
    if ITST:
        it_issue(a)
        a("s_waitcnt lgkmcnt(0)")
        it_take(a, 32)
    for l in rd:
        a(l)
    a(flip)
    a("s_branch g1_loop")


def dma_chunk0(a):
    for i in range(4):
        a(f"s_add_u32 m0, {s(S_M0)}, {i*4096}")
        a(f"s_add_u32 {s(S_XO)}, {s(S_XO)}, 32768" if i else "s_nop 0")
        a(f"buffer_load_dwordx4 {v(VB_X)}, {s(R_X,4)}, {s(S_XO)} offen {CFX} lds")
    for blk in range(3):
        for mat in range(2):
            a(f"s_add_u32 m0, {s(S_M0)}, {16384 + (mat*3+blk)*4096 - 64*blk}")
            a("s_nop 0")
            a(f"buffer_load_dwordx4 {v(VB_W)}, {s(R_WU if mat else R_WG,4)}, {s(S_WO2 if blk == 2 else S_WO)} offen offset:{64*blk} {CFW} lds")


def spf(a, srd, sbase, offs):
    for o in offs:
        a(f"s_buffer_load_dword {s(S_DUM)}, {s(srd,4)}, {s(sbase)} offset:{o:#x}")


def lds_min_wait(a, vaddr, off, n, target, vt, nap=None):
    lab = a.label("lw")
    a(f"{lab}:")
    a(f"ds_read_b{32*n} {v(vt,n)}, {v(vaddr)} offset:{off}")
    a("s_waitcnt lgkmcnt(0)")
    if n == 4:
        a(f"v_min3_u32 {v(vt)}, {v(vt)}, {v(vt+1)}, {v(vt+2)}\nv_min_u32 {v(vt)}, {v(vt)}, {v(vt+3)}")
    elif n == 2:
        a(f"v_min_u32 {v(vt)}, {v(vt)}, {v(vt+1)}")
    a("s_nop 0")
    a(f"v_readfirstlane_b32 {s(S_T0)}, {v(vt)}")
    a("s_nop 0")
    done = a.label("lw_ok")
    a(f"s_cmp_ge_u32 {s(S_T0)}, {target}\ns_cbranch_scc1 {done}")
    if nap is None:
        nap = opt("NAP", 1) if vaddr == C_CNT else 0
    if nap:
        a(f"s_sleep {nap}")
    a(f"s_add_u32 {s(S_SPIN)}, {s(S_SPIN)}, 1\ns_cmp_lt_u32 {s(S_SPIN)}, {LSPIN_MAX}\ns_cbranch_scc1 {lab}")
    a(f"{done}:")


def lds_inc(a, vaddr, vone, off):
    a(f"s_mov_b64 exec, 1\nds_add_u32 {v(vaddr)}, {v(vone)} offset:{off}\ns_mov_b64 exec, -1")


WDE = opt("WDE", 0)


def wd_setup(a, first, S_WB=S_WB):
    a.c("Wd DMA lane offset: (l>>3)*1024 + ((l&7) ^ (((l>>4)&3)<<1))*16")
    a(f"v_lshrrev_b32 v12, 4, v0\nv_lshlrev_b32 v13, 1, v12\nv_and_b32 v14, 7, v0\nv_xor_b32 v13, v13, v14\nv_lshlrev_b32 v13, 4, v13\nv_lshrrev_b32 v14, 3, v0\nv_lshl_add_u32 {v(G_WD)}, v14, 10, v13")
    a(f"s_lshl_b32 {s(S_KC)}, {s(S_WB)}, 12")
    a(f"s_lshl_b32 {s(S_RA)}, {s(S_WB)}, 13\ns_add_u32 {s(S_RB)}, {s(S_RA)}, {131072 + 16384}\ns_add_u32 {s(S_RA)}, {s(S_RA)}, 131072\ns_cmp_eq_u32 {s(S_WB)}, 0\ns_cselect_b32 {s(S_RA)}, {L_RA0}, {s(S_RA)}")
    if opt("ROT", 1):
        a(f"s_and_b32 {s(S_T0)}, {s(S_MT)}, 3\ns_mul_i32 {s(S_T0)}, {s(S_T0)}, 3\ns_mul_i32 {s(S_T1)}, {s(S_NT)}, 7\ns_add_u32 {s(S_T0)}, {s(S_T0)}, {s(S_T1)}")
        a(f"s_mul_i32 {s(S_T1)}, {s(S_T0)}, 187\ns_lshr_b32 {s(S_T1)}, {s(S_T1)}, 11\ns_mul_i32 {s(S_T1)}, {s(S_T1)}, 11\ns_sub_u32 {s(S_T0)}, {s(S_T0)}, {s(S_T1)}")
    else:
        a(f"s_mov_b32 {s(S_T0)}, 0")
    a(f"s_add_u32 {s(S_DK)}, {s(S_T0)}, {first}\ns_sub_u32 {s(S_T1)}, {s(S_DK)}, 11\ns_cmp_ge_u32 {s(S_DK)}, 11\ns_cselect_b32 {s(S_DK)}, {s(S_T1)}, {s(S_DK)}")
    a(f"s_mul_i32 {s(S_DO)}, {s(S_WB)}, {NSTEP*32768}\ns_lshl_b32 {s(S_T1)}, {s(S_NT)}, 7\ns_add_u32 {s(S_DO)}, {s(S_DO)}, {s(S_T1)}")


def g2_setup(a):
    a(f"v_lshlrev_b32 {v(G_L16)}, 4, v0")
    wd_setup(a, NRW)
    a(f"s_mov_b32 {s(S_HK)}, {s(S_T0)}")
    a(f"s_cmp_eq_u32 {s(S_WAVE)}, 3\ns_cselect_b32 {s(S_KEND)}, 10, 99")
    a.c("tr address: w*4096 + (l>>2)*128 + ((db ^ ((l>>3)&3))*32) + (l&3)*8")
    a(f"v_lshrrev_b32 v13, 2, v0\nv_lshlrev_b32 v13, 7, v13\nv_and_b32 v15, 3, v0\nv_lshl_add_u32 v13, v15, 3, v13\nv_add_u32 v13, {s(S_KC)}, v13\nv_and_b32 v14, 3, v14")
    a(f"s_sub_u32 {s(S_T1)}, {s(S_RA)}, {s(S_KC)}")
    for db in range(4):
        a(f"v_xor_b32 v15, {db}, v14\nv_lshl_add_u32 {v(G_TR+db)}, v15, 5, v13\nv_add_u32 {v(G_TR0+db)}, {s(S_T1)}, {v(G_TR+db)}\nv_add_u32 {v(G_TR5+db)}, 0x10000, {v(G_TR+db)}")
    a(f"s_mul_i32 {s(S_HO)}, {s(S_MT)}, {2*NU*1024}\ns_mul_i32 {s(S_T0)}, {s(S_WAVE)}, {NSTEP*2048}\ns_add_u32 {s(S_HO)}, {s(S_HO)}, {s(S_T0)}")
    a.c("H flags this wave needs: F3[mt*32 + 8w + (l&7)]")
    a(f"s_lshl_b32 {s(S_T0)}, {s(S_MT)}, 2\ns_add_u32 {s(S_T0)}, {s(S_T0)}, {s(S_WAVE)}\ns_lshl_b32 {s(S_T0)}, {s(S_T0)}, 10\ns_add_u32 {s(S_T0)}, {s(S_T0)}, {WS_F3:#x}")
    if opt("PROG", 1):
        a.c("lane (p = l&15, h = (l>>4)&1) watches the producer of unit U = 2*((rot + p) mod 11) + h")
        a(f"v_and_b32 v12, 15, v0\nv_min_u32 v12, 10, v12\nv_add_u32 v12, {s(S_HK)}, v12\nv_subrev_u32 v13, 11, v12\nv_min_u32 v12, v12, v13")
        a("v_bfe_u32 v13, v0, 4, 1\nv_lshl_add_u32 v12, v12, 1, v13\nv_mul_u32_u24 v13, 0x56, v12\nv_lshrrev_b32 v13, 8, v13")
        a(f"s_cmp_eq_u32 {s(S_WAVE)}, 3\ns_cselect_b32 {s(S_T1)}, 2, 3\nv_lshrrev_b32 v12, 1, v12\nv_subrev_u32 v12, {s(S_T1)}, v12")
        a(f"v_max_i32 v12, v12, v13\nv_min_u32 v12, 7, v12\nv_lshlrev_b32 v12, 7, v12\nv_add_u32 {v(G_FL)}, {s(S_T0)}, v12")
        return
    if not opt("HT", 0):
        a(f"v_and_b32 v12, 7, v0\nv_lshlrev_b32 v12, 7, v12\nv_add_u32 {v(G_FL)}, {s(S_T0)}, v12")
        return
    a.c("lane (U = l>>1, p = l&1) watches the producer of unit U and pulls line nt of that unit into L2")
    a(f"s_cmp_eq_u32 {s(S_WAVE)}, 3\ns_cselect_b32 {s(S_T1)}, 2, 3\ns_cselect_b32 {s(S_T2)}, 19, 21")
    a(f"v_lshrrev_b32 v12, 1, v0\nv_min_u32 v12, {s(S_T2)}, v12\nv_mul_u32_u24 v13, 0x56, v12\nv_lshrrev_b32 v13, 8, v13")
    a(f"v_and_b32 v15, 1, v0\nv_mul_u32_u24 v15, {NU}, v15\nv_add_u32 v15, v15, v12\nv_lshlrev_b32 v15, 10, v15\ns_lshl_b32 {s(S_T2)}, {s(S_NT)}, 7\nv_add_u32 {v(G_HT)}, {s(S_T2)}, v15")
    a(f"v_lshrrev_b32 v12, 1, v12\nv_subrev_u32 v12, {s(S_T1)}, v12")
    a(f"v_max_i32 v12, v12, v13\nv_lshlrev_b32 v12, 7, v12\nv_add_u32 {v(G_FL)}, {s(S_T0)}, v12")


def g1_compute(a):
    a(f"s_setprio {opt('PRA', 3)}")
    if opt("TOUCH", 0):
        l1, l2 = a.label("tc"), a.label("tc")
        a(f"s_mov_b32 {s(R_K+3)}, 0x20000")
        a(f"s_cmp_ge_u32 {s(S_WAVE)}, 2\ns_cbranch_scc1 {l1}")
        a(f"s_lshl_b32 {s(S_T2)}, {s(S_WAVE)}, 8\ns_add_u32 {s(R_K)}, {s(R_X)}, {s(S_T2)}\ns_addc_u32 {s(R_K+1)}, {s(R_X+1)}, 0\ns_mov_b32 {s(R_K+2)}, {S*D*2 - 256:#x}")
        RX0 = R_X
        globals()["R_X"] = R_K
        touch_x(a, (0, 4) if opt("TOUCH", 0) == 2 else (0,), 1)
        globals()["R_X"] = RX0
        a(f"s_branch {l2}\n{l1}:")
        a(f"s_cmp_eq_u32 {s(S_WAVE)}, 2\ns_cselect_b64 {s(R_K,2)}, {s(R_WG,2)}, {s(R_WU,2)}\ns_mov_b32 {s(R_K+2)}, {D*F*2:#x}")
        touch_w(a, 0, (R_K,), 1)
        a(f"{l2}:")
    dma_chunk0(a)
    a("s_barrier")
    prologue(a, False, 2)
    if opt("SPF", 0):
        a.c("warm the lines the column sums need: rows 32mi + 16*(w&1).. of gate (w<2) or up")
        a(f"s_cmp_lt_u32 {s(S_WAVE)}, 2\ns_cselect_b64 {s(R_K,2)}, {s(R_WG,2)}, {s(R_WU,2)}\ns_mov_b32 {s(R_K+2)}, {D*F*2:#x}")
        a(f"s_lshl_b32 {s(S_T0)}, {s(S_MI)}, 1\ns_and_b32 {s(S_T1)}, {s(S_WAVE)}, 1\ns_add_u32 {s(S_T0)}, {s(S_T0)}, {s(S_T1)}\ns_mul_i32 {s(S_XO)}, {s(S_T0)}, {16*F*2}")
        a(f"s_lshl_b32 {s(S_T1)}, {s(S_FB0)}, 6\ns_add_u32 {s(S_XO)}, {s(S_XO)}, {s(S_T1)}")
        spf(a, R_K, S_XO, [r*F*2 + h*128 for r in range(7) for h in range(2)])
    a(f"s_and_b32 {s(S_SH)}, {s(S_WAVE)}, 1\ns_lshr_b32 {s(S_UH)}, {s(S_WAVE)}, 1")
    a.c("x fragment address: (64*sh + s16)*128 + ((kg ^ ((s16>>1)&7))*16)")
    a("v_and_b32 v10, 15, v0\nv_lshrrev_b32 v11, 4, v0\nv_lshrrev_b32 v12, 1, v10\nv_xor_b32 v12, v12, v11\nv_lshlrev_b32 v12, 4, v12")
    a(f"v_lshl_add_u32 {v(V_XA0)}, v10, 7, v12\ns_lshl_b32 {s(S_T0)}, {s(S_SH)}, 13\nv_add_u32 {v(V_XA0)}, {s(S_T0)}, {v(V_XA0)}")
    a(f"v_xor_b32 {v(V_XA1)}, 64, {v(V_XA0)}")
    a.c("W fragment address: 16384 + blk*4096 + kg*512 + r*64 + ((h^(kg&1))*32) + c*8")
    a("v_lshlrev_b32 v12, 9, v11\nv_bfe_u32 v13, v0, 2, 2\nv_lshl_add_u32 v12, v13, 6, v12\nv_and_b32 v13, 3, v0\nv_lshl_add_u32 v12, v13, 3, v12")
    a("v_and_b32 v13, 1, v11\nv_lshl_add_u32 v12, v13, 5, v12")
    a(f"s_mul_i32 {s(S_T0)}, {s(S_UH)}, {s(S_NBLK)}")
    for u in range(3):
        a(f"s_add_u32 {s(S_T1)}, {s(S_T0)}, {u}\ns_and_b32 {s(S_T2)}, {s(S_T1)}, 1\ns_lshl_b32 {s(S_T2)}, {s(S_T2)}, 5")
        a(f"s_lshr_b32 {s(S_T1)}, {s(S_T1)}, 1\ns_lshl_b32 {s(S_T1)}, {s(S_T1)}, 12\ns_add_u32 {s(S_T1)}, {s(S_T1)}, 16384")
        a(f"v_xor_b32 {v(V_W+u)}, {s(S_T2)}, v12\nv_add_u32 {v(V_W+u)}, {s(S_T1)}, {v(V_W+u)}")
    g2_setup(a)
    ep_setup(a)
    for i in range(48):
        a(f"v_pk_mov_b32 {v(ACC+2*i,2)}, 0, 0")
    for i in range(5):
        a(f"v_mov_b32 {v(V_XC0+i)}, {v(V_XA0+i)}")
    a(f"s_mov_b32 {s(S_IT)}, 0\ns_mov_b32 {s(S_SLOT)}, 0")
    a(f"v_mov_b32 {v(V_LW)}, {L_CNT}\nv_mov_b32 {v(V_FL+1)}, {L_CNT}\nv_mov_b32 {v(V_FC)}, 1\ns_lshl_b32 {s(S_T0)}, {s(S_WAVE)}, 2\ns_add_u32 {s(S_T0)}, {s(S_T0)}, {L_CNT + W_FREE}\nv_mov_b32 {v(V_FL+2)}, {s(S_T0)}")
    a.c("vcc != 0 marks a two-block tile")
    a(f"s_cmp_eq_u32 {s(S_NBLK)}, 2\ns_cselect_b64 vcc, -1, 0")
    if opt("SPF", 0):
        spf(a, R_K, S_XO, [r*F*2 + h*128 for r in range(7, 16) for h in range(2)])
    stamp(a, 1)
    a("s_waitcnt vmcnt(0)")
    a(f"ds_write_b32 {v(V_FL+2)}, {v(V_FC)} offset:{W_C0 - W_FREE}")
    lds_min_wait(a, V_LW, W_C0, 4, 1, 196)
    stamp(a, 2)
    for l in g1_reads(F0, 0, ['x', 0, 1, 2]):
        a(l)
    a("s_waitcnt lgkmcnt(0)")
    if opt("LAL", 0):
        a(f".p2alignl {opt('LAL', 0)}, 0xbf800000")
    a("g1_loop:")
    a(f"s_add_u32 {s(S_SLOT)}, {s(S_SLOT)}, {SLOT}\ns_cmp_eq_u32 {s(S_SLOT)}, {NSLOT*SLOT}\ns_cselect_b32 {s(S_SLOT)}, 0, {s(S_SLOT)}")
    a(f"s_add_u32 {s(S_IT)}, {s(S_IT)}, 1\ns_and_b32 {s(S_T2)}, {s(S_IT)}, 7")
    g1_step_a(a)
    if ITST:
        it_issue(a)
        a("s_waitcnt lgkmcnt(0)")
        it_take(a, 0)
    g1_step_b(a)
    stamp(a, 3)


def wd_dma(i, rings=1):
    sl = SLOTMAP[i % NRW]
    ops = []
    n = 4 * rings
    for q in range(n):
        pre = f"s_lshl_b32 {s(S_T3)}, {s(S_DK)}, 15\ns_add_u32 {s(S_T3)}, {s(S_T3)}, {s(S_DO)}\n" if q == 0 else ""
        inc = 8192 if q != 4 else 2*NSTEP*32768 - 3*8192
        mid = "s_nop 0" if q == 0 else f"s_add_u32 {s(S_T3)}, {s(S_T3)}, {inc}"
        post = f"\ns_add_u32 {s(S_DK)}, {s(S_DK)}, 1\ns_cmp_eq_u32 {s(S_DK)}, 11\ns_cselect_b32 {s(S_DK)}, 0, {s(S_DK)}" if q == n - 1 else ""
        m0 = f"{s(S_RB if q >> 2 else S_RA)}, {sl*4096 + (q&3)*1024}" if sl < 2 else f"{s(S_KC)}, {(sl-2)*16384 + (q&3)*1024 + (q>>2)*8192}"
        ops.append(pre + f"s_add_u32 m0, {m0}\n{mid}\n"
                   f"buffer_load_dwordx4 {v(G_WD)}, {s(R_WD,4)}, {s(S_T3)} offen {CFD} lds" + post)
    return ops


def h_loads(i):
    hb = G_H + (i % NHB) * 16
    pre = (f"s_lshl_b32 {s(S_T1)}, {s(S_HK)}, 11\ns_add_u32 {s(S_T1)}, {s(S_T1)}, {s(S_HO)}\n"
           f"s_cmp_eq_u32 {s(S_HK)}, {s(S_KEND)}\ns_cselect_b32 {s(S_T1)}, {OOB:#x}, {s(S_T1)}\n")
    post = f"\ns_add_u32 {s(S_HK)}, {s(S_HK)}, 1\ns_cmp_eq_u32 {s(S_HK)}, 11\ns_cselect_b32 {s(S_HK)}, 0, {s(S_HK)}"
    ld = lambda r, off: f"buffer_load_dwordx4 {v(r,4)}, {v(G_L16)}, {s(R_WS,4)}, {s(S_T1)} offen offset:{off} sc1"
    return [pre + ld(hb, 0), ld(hb+4, 1024), f"s_add_u32 {s(S_T1)}, {s(S_T1)}, {NU*1024}\n" + ld(hb+8, 0), ld(hb+12, 1024) + post]


S_H0, S_H1 = S_XO, S_WO
E_A, E_ST = 208, 144


def ep_setup(a):
    a.c("epilogue addresses: row constants, column sums; HF offset = ((4*mi + 2*sh + pp)*86 + 2*fb0 + uu)*1024 + lane*16")
    a(f"v_and_b32 v10, 15, v0\nv_lshlrev_b32 v10, 4, v10\ns_lshl_b32 {s(S_T0)}, {s(S_SH)}, 10\ns_add_u32 {s(S_T0)}, {s(S_T0)}, {L_ST}\nv_add_u32 {v(E_A)}, {s(S_T0)}, v10")
    a(f"s_mul_i32 {s(S_T1)}, {s(S_UH)}, {s(S_NBLK)}\ns_lshl_b32 {s(S_T0)}, {s(S_T1)}, 6\ns_add_u32 {s(S_T0)}, {s(S_T0)}, {L_CS}")
    a(f"v_and_b32 v11, 48, v0\nv_add_u32 {v(E_A+1)}, {s(S_T0)}, v11")
    a(f"s_lshl_b32 {s(S_T0)}, {s(S_MI)}, 1\ns_add_u32 {s(S_T0)}, {s(S_T0)}, {s(S_SH)}\ns_mul_i32 {s(S_T0)}, {s(S_T0)}, {2*NU}")
    a(f"s_lshl_b32 {s(S_T2)}, {s(S_FB0)}, 1\ns_add_u32 {s(S_T0)}, {s(S_T0)}, {s(S_T2)}\ns_add_u32 {s(S_T0)}, {s(S_T0)}, {s(S_T1)}\ns_lshl_b32 {s(S_H0)}, {s(S_T0)}, 10")
    a(f"s_add_u32 {s(S_H1)}, {s(S_H0)}, {NU*1024}")
    a(f"s_lshl_b32 {s(S_T0)}, {s(S_SH)}, 2\ns_add_u32 {s(S_T0)}, {s(S_T0)}, {L_CNT}\nv_mov_b32 v15, {s(S_T0)}")


def g1_epilogue(a):
    VST, VCS, T = 112, 216, 168
    top, ok = a.label("ga"), a.label("ga_ok")
    a(f"{top}:")
    a(f"ds_read_b32 v14, {v(V_LW)} offset:{W_GATH}")
    for sb in range(4):
        a(f"ds_read_b128 {v(E_ST+4*sb,4)}, {v(E_A)} offset:{sb*256}")
    for u in range(3):
        for mat in range(2):
            a(f"ds_read_b128 {v(VCS+4*(u*2+mat),4)}, {v(E_A+1)} offset:{mat*512+u*64}")
    a(f"ds_read_b32 v1, {v(V_LW)} offset:{W_NON}")
    a(f"v_mov_b32 v13, 1\ns_waitcnt lgkmcnt(7)\nv_readfirstlane_b32 {s(S_T0)}, v14")
    for i in range(4):
        a(f"v_mov_b32 {v(VST+2*i)}, {v(E_ST+i)}\nv_mov_b32 {v(VST+2*i+1)}, {v(E_ST+i)}")
    a(f"s_cmp_ge_u32 {s(S_T0)}, 2\ns_cbranch_scc1 {ok}")
    a(f"s_add_u32 {s(S_SPIN)}, {s(S_SPIN)}, 1\ns_cmp_lt_u32 {s(S_SPIN)}, {LSPIN_MAX}\ns_cbranch_scc1 {top}")
    a(f"{ok}:")
    stamp(a, 4)
    for i in range(4, 16):
        a(f"v_mov_b32 {v(VST+2*i)}, {v(E_ST+i)}\nv_mov_b32 {v(VST+2*i+1)}, {v(E_ST+i)}")
    a("s_waitcnt lgkmcnt(0)")
    a(f"v_readfirstlane_b32 {s(S_NON)}, v1")
    lab, lab2 = a.label("ep_two"), a.label("ep_done")
    if opt("EPST", 0): stamp(a, 3)

    def group(u, pp):
        out = []
        o = T + 32 + 4 * pp
        pairs = [(2*pp + (q >> 1), q & 1, T + 8*q) for q in range(4)]
        def each(f):
            for sb, h, t in pairs:
                g, up, st = acc(u, 0, sb) + 2*h, acc(u, 1, sb) + 2*h, VST + 8*sb
                cg, cu = VCS + 4*(u*2) + 2*h, VCS + 4*(u*2+1) + 2*h
                out.append(f(g, up, st, cg, cu, t))
        each(lambda g, up, st, cg, cu, t: f"v_pk_fma_f32 {v(g,2)}, {v(cg,2)}, {v(st,2)}, {v(g,2)} neg_lo:[0,1,0] neg_hi:[0,1,0]")
        each(lambda g, up, st, cg, cu, t: f"v_pk_mul_f32 {v(t,2)}, {v(g,2)}, {v(g,2)}")
        each(lambda g, up, st, cg, cu, t: f"v_pk_fma_f32 {v(t,2)}, {v(t,2)}, {v(st+4,2)}, {v(st+2,2)}")
        each(lambda g, up, st, cg, cu, t: f"v_pk_mul_f32 {v(t,2)}, {v(t,2)}, {v(g,2)}")
        each(lambda g, up, st, cg, cu, t: f"v_exp_f32 {v(t)}, {v(t)}\nv_exp_f32 {v(t+1)}, {v(t+1)}")
        each(lambda g, up, st, cg, cu, t: f"v_pk_fma_f32 {v(up,2)}, {v(cu,2)}, {v(st,2)}, {v(up,2)} neg_lo:[0,1,0] neg_hi:[0,1,0]")
        each(lambda g, up, st, cg, cu, t: f"v_pk_fma_f32 {v(t,2)}, {v(t,2)}, {v(st+6,2)}, {v(st+6,2)}")
        each(lambda g, up, st, cg, cu, t: f"v_rcp_f32 {v(t)}, {v(t)}\nv_rcp_f32 {v(t+1)}, {v(t+1)}")
        each(lambda g, up, st, cg, cu, t: f"v_pk_mul_f32 {v(g,2)}, {v(g,2)}, {v(up,2)}")
        each(lambda g, up, st, cg, cu, t: f"v_pk_mul_f32 {v(t,2)}, {v(t,2)}, {v(g,2)}")
        for q, (sb, h, t) in enumerate(pairs):
            out.append(f"v_cvt_pk_bf16_f32 {v(o+q)}, {v(t)}, {v(t+1)}")
        if not opt("NOST", 0):
            out.append(f"buffer_store_dwordx4 {v(o,4)}, {v(G_L16)}, {s(R_WS,4)}, {s(S_H1 if pp else S_H0)} offen offset:{u*1024} {'sc1' if not opt('PLST', 0) else ''}")
        return out

    def stage_flag(n, W_WD=W_WD):
        ok = a.label("wd_ok")
        a(f"s_waitcnt lgkmcnt(0)\nv_readfirstlane_b32 {s(S_T0)}, v14\ns_nop 0\ns_cmp_ge_u32 {s(S_T0)}, {n}\ns_cbranch_scc1 {ok}")
        lds_min_wait(a, 15, W_WD, 1, n, 14)
        a(f"{ok}:")

    rd_flag = f"ds_read_b32 v14, v15 offset:{W_WD}"
    a.c("as a unit's accumulators retire they take two Wd steps; the freed ring slots are refilled")
    for l in group(0, 0) + [f"ds_read_b32 v14, v15 offset:{W_WE if WDE else W_WD}"] + group(0, 1):
        a(l)
    if opt("EPST", 0): stamp(a, 1)
    if not opt("NOTR", 0):
        stage_flag(1, W_WE if WDE else W_WD)
    if opt("EPST", 0): stamp(a, 2)
    for l in interleave(group(1, 0), [] if opt("NOTR", 0) else g2_tr(0) + g2_tr(1), 0, 2):
        a(l)
    a(rd_flag)
    for l in group(1, 1):
        a(l)
    a(f"s_cbranch_vccnz {lab}")
    for l in group(2, 0) + [rd_flag] + group(2, 1):
        a(l)
    a(f"{lab}:")
    a.c("release the conv waves")
    if not opt("CEARLY", 0):
        a("s_mov_b64 exec, 1\nds_add_u32 v12, v13\ns_mov_b64 exec, -1")
    stamp(a, 5)
    a.c("publish: F3[(2mi + sh)*32 + ni*2 + uh]")
    a(f"s_lshl_b32 {s(S_T0)}, {s(S_MI)}, 1\ns_add_u32 {s(S_T0)}, {s(S_T0)}, {s(S_SH)}\ns_lshl_b32 {s(S_T0)}, {s(S_T0)}, 4\ns_add_u32 {s(S_T0)}, {s(S_T0)}, {s(S_NI)}")
    a(f"s_lshl_b32 {s(S_T0)}, {s(S_T0)}, 1\ns_add_u32 {s(S_T0)}, {s(S_T0)}, {s(S_UH)}\ns_lshl_b32 {s(S_T0)}, {s(S_T0)}, 7\ns_add_u32 {s(S_T2)}, {s(S_T0)}, {WS_F3:#x}")
    a("s_waitcnt lgkmcnt(0)")
    for l in wd_dma(7) + wd_dma(8):
        a(l)
    a("s_waitcnt vmcnt(8)")
    flag_store(a, S_T2, 10, 11)
    stamp(a, 6)
    stage_flag(2)
    for l in g2_tr(2) + g2_tr(3):
        a(l)
    a("s_waitcnt lgkmcnt(0)")
    if not opt("W9L", 0):
        for l in wd_dma(9) + wd_dma(10):
            a(l)


def g2_tr(i):
    wf = G_WF + (i % NWF) * 16
    sl = SLOTMAP[i % NRW]
    base, off = (G_TR0, sl*4096) if sl < 2 else (G_TR5, 0) if sl == 6 else (G_TR, (sl-2)*16384)
    return [f"ds_read_b64_tr_b16 {v(wf+4*db+2*t,2)}, {v(base+db)} offset:{off + t*2048}" for db in range(4) for t in range(2)]


def g2_swaps(i, p):
    hb = G_H + (i % NHB) * 16
    return [f"v_swap_b32 {v(hb+8*p+2+k)}, {v(hb+8*p+4+k)}" for k in range(2)]


def g2_need(n):
    g2_need.k += 1
    top, ok = f"g2p_{g2_need.k}", f"g2ok_{g2_need.k}"
    return (f"s_cmp_ge_u32 {s(S_IT)}, {n}\ns_cbranch_scc1 {ok}\n{top}:\n"
            f"buffer_load_dword v10, {v(G_FL)}, {s(R_WS,4)}, 0 offen sc1\ns_add_u32 {s(S_SPIN)}, {s(S_SPIN)}, 1\ns_waitcnt vmcnt(0)\n"
            f"v_cmp_ne_u32 vcc, {s(S_NON)}, v10\ns_cmp_ge_u32 {s(S_SPIN)}, {SPIN_MAX}\ns_cbranch_scc1 {ok}\n"
            f"s_lshr_b32 {s(S_T0)}, vcc_lo, 16\ns_or_b32 {s(S_T0)}, {s(S_T0)}, vcc_lo\ns_bitset1_b32 {s(S_T0)}, 11\ns_ff1_i32_b32 {s(S_IT)}, {s(S_T0)}\n"
            f"s_cmp_ge_u32 {s(S_IT)}, {n}\ns_cbranch_scc1 {ok}\ns_sleep {opt('GSL', 2)}\ns_branch {top}\n{ok}:")
g2_need.k = 0


def g2_main(a):
    PROG = opt("PROG", 1)
    a(f"s_setprio {opt('PRG', 2)}")
    if PROG:
        a(f"s_mov_b32 {s(S_IT)}, 0\ns_mov_b32 {s(S_SPIN)}, 0")
        a(g2_need(PROG))
    elif opt("HT", 0):
        top, done = a.label("hp"), a.label("hp_ok")
        a(f"s_mov_b32 {s(S_SPIN)}, 0\ns_mov_b32 {s(S_EX)}, -1\ns_mov_b32 {s(S_EX+1)}, 0xfff")
        a(f"{top}:")
        a(f"buffer_load_dword v10, {v(G_FL)}, {s(R_WS,4)}, 0 offen sc1")
        a("s_waitcnt vmcnt(0)")
        a(f"v_cmp_ne_u32 vcc, {s(S_NON)}, v10")
        a(f"s_cbranch_vccz {done}")
        a(f"s_andn2_b64 exec, {s(S_EX,2)}, vcc\ns_and_b64 {s(S_EX,2)}, {s(S_EX,2)}, vcc")
        skip = a.label("hp_s")
        a(f"s_cbranch_execz {skip}")
        a(f"buffer_load_dword v11, {v(G_HT)}, {s(R_WS,4)}, {s(S_HO)} offen sc1")
        a(f"{skip}:")
        a("s_mov_b64 exec, -1\ns_sleep 1")
        a(f"s_add_u32 {s(S_SPIN)}, {s(S_SPIN)}, 1\ns_cmp_lt_u32 {s(S_SPIN)}, {SPIN_MAX}\ns_cbranch_scc1 {top}")
        a(f"{done}:")
    else:
        poll(a, G_FL, 10)
    stamp(a, 7)
    q = VQ(a)
    def hq(i):
        q.add(("h", i, 0), 2); q.add(("h", i, 1), 2)
    for i in range(NHB - 1):
        if PROG and i >= PROG:
            a(g2_need(i + 1))
        for op in h_loads(i):
            a(op)
        hq(i)
    if opt("W9L", 0):
        for l in wd_dma(9) + wd_dma(10):
            a(l)
        q.add("wd", 8)
    lds_min_wait(a, 15, W_WD, 1, 3, 14)
    if opt("G2ST", 0): stamp(a, 1)
    q.wait(("h", 0, 0))
    if opt("G2ST", 0): stamp(a, 2)
    for l in g2_swaps(0, 0):
        a(l)
    a("s_nop 1")
    for i in range(NSTEP):
        if opt("G2ST", 0) and i in (2, 4, 6, 8):
            stamp(a, 2 + i // 2)
        if i == opt("HIS", 6):
            lds_inc(a, V_LW, 13, W_HI)
        wf, hb = G_WF + (i % NWF) * 16, G_H + (i % NHB) * 16
        ld = h_loads(i + NHB - 1) if i + NHB - 1 < NSTEP else []
        if ld and PROG and i + NHB > PROG:
            ld[0] = g2_need(i + NHB) + "\n" + ld[0]
        tr = g2_tr(i + 2) if NWF <= i + 2 < NSTEP else []
        n = 0
        for p in range(2):
            for db in range(4):
                for sb in (2*p, 2*p + 1):
                    c = G_ACC + (db * 4 + sb) * 4
                    a(f"v_mfma_f32_16x16x32_bf16 {v(c,4)}, {v(wf+4*db,4)}, {v(hb+4*sb,4)}, {v(c,4) if i else 0}")
                    n += 1
                    if n == 4:
                        q.wait(("h", i, 1))
                        for l in g2_swaps(i, 1):
                            a(l)
                    if n in (1, 5, 8, 11) and ld:
                        a(ld.pop(0))
                        q.add(("h", i + NHB - 1, 0 if len(ld) >= 2 else 1), 1)
                    if 5 <= n <= 12 and tr:
                        a(tr.pop(0))
                    if n == 13 and i + 1 < NSTEP:
                        q.wait(("h", i + 1, 0))
                        for l in g2_swaps(i + 1, 0):
                            a(l)
                        if i + 1 >= NWF:
                            a(f"s_waitcnt lgkmcnt({8 if i + 2 < NSTEP else 0})")
    stamp(a, 8)
    a.c("partial tile -> own ring slots 1..4: sb*16384 + w*4096 + s16*256 + ((4db + g) ^ (s16&7))*16")
    a(f"v_and_b32 v8, 15, v0\nv_lshrrev_b32 v9, 4, v0\nv_and_b32 v10, 7, v0\nv_xor_b32 v9, v9, v10\nv_lshlrev_b32 v9, 4, v9\nv_lshl_add_u32 v8, v8, 8, v9\nv_add_u32 v8, {s(S_KC)}, v8\nv_xor_b32 v9, 64, v8")
    a("s_nop 0")
    for db in range(4):
        for sb in range(4):
            a(f"ds_write_b128 {'v9' if db & 1 else 'v8'}, {v(G_ACC+(db*4+sb)*4,4)} offset:{sb*16384 + (db>>1)*128}")
    a("s_waitcnt lgkmcnt(0)")
    stamp(a, 9)
    a("s_barrier")


VB_X2 = 18


def dma_chunk(a):
    a(f"s_add_u32 {s(S_T1)}, {s(S_UH)}, {s(S_IT)}\ns_and_b32 {s(S_T1)}, {s(S_T1)}, 7")
    a(f"s_lshl_b32 {s(S_T0)}, {s(S_T1)}, 7\ns_add_u32 {s(S_T0)}, {s(S_T0)}, {s(S_XO)}")
    a(f"s_mul_i32 {s(S_T1)}, {s(S_T1)}, {64*F*2}\ns_add_u32 {s(S_HO)}, {s(S_WO)}, {s(S_T1)}\ns_add_u32 {s(S_DO)}, {s(S_WO2)}, {s(S_T1)}")
    for i in range(16):
        a(f"s_add_u32 m0, {s(S_SLOT)}, {i*1024}")
        a(f"s_add_u32 {s(S_T0)}, {s(S_T0)}, 8192" if i else "s_nop 0")
        a(f"buffer_load_dwordx4 {v(VB_X2 if i & 1 else VB_X)}, {s(R_X,4)}, {s(S_T0)} offen {CFX} lds")
    for k4 in range(4):
        if ITST and k4 == 0:
            it_issue(a)
            a("s_waitcnt lgkmcnt(0)")
            it_take(a, 40)
        if k4:
            a(f"s_add_u32 {s(S_HO)}, {s(S_HO)}, {16*F*2}\ns_add_u32 {s(S_DO)}, {s(S_DO)}, {16*F*2}")
        for blk in range(3):
            for mat in range(2):
                a(f"s_add_u32 m0, {s(S_SLOT)}, {16384 + (mat*3+blk)*4096 + k4*1024 - 64*blk}")
                a("s_nop 0")
                a(f"buffer_load_dwordx4 {v(VB_W)}, {s(R_WU if mat else R_WG,4)}, {s(S_DO if blk == 2 else S_HO)} offen offset:{64*blk} {CFW} lds")


GG = 224


def loader(a):
    a(f"s_setprio {opt('PRL', 2)}")
    a.c("loader w streams chunks 1+w, 3+w, ..")
    a(f"s_lshl_b32 {s(S_XO)}, {s(S_MI)}, 17\ns_lshl_b32 {s(S_WO)}, {s(S_FB0)}, 6")
    a(f"s_cmp_eq_u32 {s(S_NBLK)}, 3\ns_cselect_b32 {s(S_WO2)}, {s(S_WO)}, {OOB:#x}")
    a(f"s_lshl_b32 {s(S_T0)}, {s(S_WB)}, 6\nv_xor_b32 {v(VB_X)}, {s(S_T0)}, {v(VB_X)}\nv_xor_b32 {v(VB_X2)}, 64, {v(VB_X)}")
    a(f"s_add_u32 {s(S_IT)}, {s(S_WB)}, 1\ns_mul_i32 {s(S_SLOT)}, {s(S_IT)}, {SLOT}\ns_mov_b32 {s(S_SH)}, {s(S_WB)}")
    a(f"s_lshl_b32 {s(S_T0)}, {s(S_WB)}, 2\ns_add_u32 {s(S_T0)}, {s(S_T0)}, {L_CNT + W_FULL}\nv_mov_b32 v10, {s(S_T0)}")
    lds_min_wait(a, C_CNT, W_ISS, 1, s(S_WB), 20)
    a("ld_loop:")
    if ITST:
        it_issue(a)
        a("s_waitcnt lgkmcnt(0)")
        it_take(a, 32)
    dma_chunk(a)
    a(f"v_mov_b32 v16, {s(S_IT)}")
    a(f"s_mov_b64 exec, 1\nds_max_u32 {v(C_CNT)}, v16 offset:{W_ISS}\ns_mov_b64 exec, -1")
    if ITST:
        it_issue(a)
        a("s_waitcnt lgkmcnt(0)")
        it_take(a, 0)
    a(f"s_sub_u32 {s(S_SLOT)}, {s(S_SLOT)}, {SLOT}\ns_cselect_b32 {s(S_SLOT)}, {2*SLOT}, {s(S_SLOT)}")
    a(f"s_cmp_ge_u32 {s(S_IT)}, 6\ns_cbranch_scc1 ld_done")
    a("s_waitcnt vmcnt(0)")
    a("ds_write_b32 v10, v16")
    if ITST:
        it_issue(a)
        a("s_waitcnt lgkmcnt(0)")
        it_take(a, 16)
    lds_min_wait(a, C_CNT, W_FREE, 4, s(S_IT), 20)
    if ITST:
        it_issue(a)
        a("s_waitcnt lgkmcnt(0)")
        it_take(a, 48)
    a(f"s_add_u32 {s(S_IT)}, {s(S_IT)}, 2")
    a("s_branch ld_loop")
    a("ld_done:")
    lstamp(a, 1)
    wd_setup(a, 2 if WDE else 0)
    a(f"s_lshl_b32 {s(S_T0)}, {s(S_WB)}, 2\nv_add_u32 v11, {s(S_T0)}, {v(C_CNT)}\nv_mov_b32 v17, 2")
    a("s_waitcnt vmcnt(0)")
    a("ds_write_b32 v10, v16")
    if KVL:
        return loader_late(a)
    lds_min_wait(a, C_CNT, W_ISS, 1, 7, 20)
    lds_min_wait(a, C_CNT, W_HP, 1, 2, 20)
    if not WDE:
        for op in wd_dma(0, 2) + wd_dma(1, 2):
            a(op)
    lstamp(a, 2)
    lds_min_wait(a, C_CNT, W_FREE, 4, 7, 20)
    for i in (2, 3):
        for op in wd_dma(i, 2):
            a(op)
    a("s_waitcnt vmcnt(16)")
    a(f"ds_write_b32 v11, {v(C_ONE)} offset:{W_WD}")
    lstamp(a, 3)
    lds_min_wait(a, C_CNT, W_FREE, 4, 8, 20)
    TH = opt("WDTH", 8)
    n = 0
    for i in (4, 5, 6):
        for op in wd_dma(i, 2):
            if not opt("NOWD", 0):
                a(op)
            n += 1
            if n % 4 == 0 and (TH or n == 8):
                a(f"s_waitcnt vmcnt({min(TH, n) if TH else 8})")
            if n == 8:
                a(f"ds_write_b32 v11, v17 offset:{W_WD}")
    a(f"ds_read_b32 v1, {v(C_CNT)} offset:{W_NON}")
    final_loads(a)
    a("s_waitcnt lgkmcnt(0)")
    a(f"v_readfirstlane_b32 {s(S_NON)}, v1")


def loader_late(a):
    lds_min_wait(a, C_CNT, W_FREE, 4, 7, 20)
    for op in wd_dma(0, 2) + wd_dma(1, 2):
        a(op)
    lstamp(a, 2)
    lds_min_wait(a, C_CNT, W_FREE, 4, 8, 20)
    for op in wd_dma(2, 2):
        a(op)
    a("s_waitcnt vmcnt(8)")
    a(f"ds_write_b32 v11, {v(C_ONE)} offset:{W_WD}")
    for op in wd_dma(3, 2) + wd_dma(4, 2):
        a(op)
    a("s_waitcnt vmcnt(8)")
    a(f"ds_write_b32 v11, v17 offset:{W_WD}")
    lstamp(a, 3)
    lds_min_wait(a, C_CNT, W_HP, 1, 2, 20)
    for op in wd_dma(5, 2) + wd_dma(6, 2):
        a(op)
    a(f"ds_read_b32 v1, {v(C_CNT)} offset:{W_NON}")
    final_loads(a)
    a("v_mov_b32 v17, 3\ns_waitcnt vmcnt(2) lgkmcnt(0)")
    a(f"ds_write_b32 v11, v17 offset:{W_WD}")
    a(f"v_readfirstlane_b32 {s(S_NON)}, v1")


VS, VKV, VSK = 144, 24, 64
ONE = 192


def round_bf16(a, r):
    a(f"v_cvt_pk_bf16_f32 {v(r)}, {v(r)}, {v(r)}\nv_lshlrev_b32 {v(r)}, 16, {v(r)}")


def stats_loads(a):
    a(f"s_lshl_b32 {s(S_T0)}, {s(S_TI)}, 1\ns_add_u32 {s(S_T0)}, {s(S_T0)}, {s(S_SH)}\ns_lshl_b32 {s(S_T0)}, {s(S_T0)}, 12")
    a("v_bfe_u32 v5, v0, 2, 2\nv_lshlrev_b32 v5, 10, v5\nv_and_b32 v6, 3, v0\nv_lshl_add_u32 v5, v6, 4, v5\nv_lshrrev_b32 v6, 4, v0\nv_lshl_add_u32 v5, v6, 6, v5")
    for r in range(4):
        a(f"buffer_load_dwordx4 {v(VS+4*r,4)}, v5, {s(R_X,4)}, {s(S_T0)} offen offset:{r*256} {CFS}")


def stats(a):
    G, O, R = 72, 76, 80
    for r in range(4):
        a(f"v_mfma_f32_16x16x32_bf16 {v(G,4)}, {v(VS+4*r,4)}, {v(VS+4*r,4)}, {v(G,4) if r else 0}")
        a(f"v_mfma_f32_16x16x32_bf16 {v(O,4)}, {v(ONE,4)}, {v(VS+4*r,4)}, {v(O,4) if r else 0}")
    a.c("diagonal element of lane (n, g = n>>2) is register n&3")
    a(f"v_and_b32 v6, 3, v0\nv_cmp_eq_u32 vcc, 1, v6\nv_cmp_eq_u32 {s(S_EX,2)}, 2, v6\nv_cmp_eq_u32 {s(S_XO,2)}, 3, v6")
    a(f"s_lshl_b32 {s(S_T0)}, {s(S_TI)}, 1\ns_add_u32 {s(S_T0)}, {s(S_T0)}, {s(S_SH)}\ns_lshl_b32 {s(S_T0)}, {s(S_T0)}, 6\ns_add_u32 {s(S_T0)}, {s(S_T0)}, {WS_ST:#x}")
    a("v_and_b32 v5, 48, v0\ns_nop 0")
    a(f"v_cndmask_b32 {v(G)}, {v(G)}, {v(G+1)}, vcc\nv_cndmask_b32 {v(G)}, {v(G)}, {v(G+2)}, {s(S_EX,2)}\nv_cndmask_b32 {v(G)}, {v(G)}, {v(G+3)}, {s(S_XO,2)}")
    for qp in ("[1,0,3,2]", "[2,3,0,1]"):
        a("s_nop 0")
        a(f"v_add_f32_dpp {v(O)}, {v(O)}, {v(O)} quad_perm:{qp} row_mask:0xf bank_mask:0xf")
        a(f"v_add_f32_dpp {v(G)}, {v(G)}, {v(G)} quad_perm:{qp} row_mask:0xf bank_mask:0xf")
    M, K1, K2, I2 = R, R + 1, R + 2, R + 3
    a(f"v_mul_f32 {v(M)}, {f32bits(1/512):#x}, {v(O)}\nv_mul_f32 {v(K2)}, {f32bits(1/512):#x}, {v(G)}")
    a(f"v_fma_f32 {v(K2)}, -{v(M)}, {v(M)}, {v(K2)}\nv_max_f32 {v(K2)}, 0, {v(K2)}")
    round_bf16(a, M)
    round_bf16(a, K2)
    a(f"v_add_f32 {v(K2)}, {f32bits(1e-5):#x}, {v(K2)}")
    round_bf16(a, K2)
    a(f"v_sqrt_f32 {v(K2)}, {v(K2)}\ns_nop 0")
    round_bf16(a, K2)
    a(f"v_rcp_f32 {v(K1)}, {v(K2)}\nv_mul_f32 {v(I2)}, {v(K2)}, {v(K2)}")
    a(f"v_mul_f32 {v(K2)}, {v(K1)}, {v(K1)}\nv_mul_f32 {v(K2)}, {v(K2)}, {v(K1)}")
    a(f"v_mul_f32 {v(K2)}, {f32bits(C2):#x}, {v(K2)}\nv_mul_f32 {v(K1)}, {f32bits(C1):#x}, {v(K1)}")
    a.c("row g is complete in lane 20g")
    a(f"s_mov_b32 {s(S_EX)}, 0x00100001\ns_mov_b32 {s(S_EX+1)}, 0x10000100\ns_mov_b64 exec, {s(S_EX,2)}")
    a(f"buffer_store_dwordx4 {v(R,4)}, v5, {s(R_WS,4)}, {s(S_T0)} offen sc1")
    a("s_mov_b64 exec, -1")


L_VST = 155648
NT = os.environ.get("CFK", "nt") + " " if opt("NT", 1) else ""
NTT = " nt" if opt("NTT", 0) else ""


def kv_dma(a):
    a("v_lshrrev_b32 v5, 3, v0\nv_lshlrev_b32 v5, 10, v5\nv_and_b32 v6, 7, v0\nv_lshl_add_u32 v5, v6, 4, v5")
    a(f"v_add_u32 v69, {s(S_DO)}, v5")
    a.c("rows above the start of the sequence are out of range and read as zero")
    a("v_subrev_u32 v7, 0xc00, v69\nv_cmp_gt_u32 vcc, 0xc00, v69\nv_mov_b32 v68, 0x7ff00000\ns_nop 1\nv_cndmask_b32 v7, v7, v68, vcc")
    a(f"s_mul_i32 {s(S_T0)}, {s(S_SH)}, {64*KVT_STR}\ns_add_u32 {s(S_T0)}, {s(S_T0)}, {L_KVT}")
    a(f"s_lshl_b32 {s(S_T2)}, {s(S_SH)}, 12\ns_add_u32 {s(S_T2)}, {s(S_T2)}, {L_VST}")
    for i in range(5):
        a(f"s_add_u32 m0, {s(S_T0)}, {1024*i}\ns_mov_b32 {s(S_T1)}, {max(8192*i - 3072, 0)}")
        a(f"buffer_load_dwordx4 {'v69' if i else 'v7'}, {s(R_K,4)}, {s(S_T1)} offen {NT}lds")
    for i in range(4):
        a(f"s_add_u32 m0, {s(S_T2)}, {1024*i}\ns_mov_b32 {s(S_T1)}, {8192*i}")
        a(f"buffer_load_dwordx4 v69, {s(R_V,4)}, {s(S_T1)} offen {NT}lds")
    a("v_and_b32 v6, 31, v0\nv_lshrrev_b32 v5, 5, v0\nv_lshlrev_b32 v5, 10, v5\nv_lshl_add_u32 v5, v6, 2, v5")
    a(f"v_add_u32 v68, {s(S_T0)}, v5\nv_add_u32 v69, {s(S_T2)}, v5")
    a(f"s_and_b32 {s(S_T1)}, {s(S_TI)}, 7\ns_lshl_b32 {s(S_T1)}, {s(S_T1)}, 9\nv_lshlrev_b32 v6, 4, v6")
    a(f"buffer_load_dwordx4 {v(VSK,4)}, v6, {s(R_SK,4)}, {s(S_T1)} offen")


def kv_reads(a):
    for ps in range(2):
        b = VKV + 19 * ps
        for i in range(11):
            a(f"ds_read_b32 {v(b+i)}, v68 offset:{ps*2048 + i*128}")
        for i in range(8):
            a(f"ds_read_b32 {v(b+11+i)}, v69 offset:{ps*2048 + i*128}")


def touch_x(a, p, vd):
    a(f"s_lshl_b32 {s(S_T0)}, {s(S_MI)}, 2\ns_and_b32 {s(S_T1)}, {s(S_NI)}, 3\ns_add_u32 {s(S_T0)}, {s(S_T0)}, {s(S_T1)}\ns_lshl_b32 {s(S_T0)}, {s(S_T0)}, 15")
    a("v_and_b32 v5, 31, v0\nv_lshrrev_b32 v6, 5, v0\nv_lshlrev_b32 v6, 7, v6\nv_lshl_add_u32 v5, v5, 10, v6")
    for q in p:
        a(f"buffer_load_dword {v(vd)}, v5, {s(R_X,4)}, {s(S_T0)} offen offset:{128*q}{NTT}")


def touch_w(a, p, srds, vd):
    a(f"s_and_b32 {s(S_T0)}, {s(S_MI)}, 7\ns_add_u32 {s(S_T0)}, {s(S_T0)}, {8*p}\ns_mul_i32 {s(S_T0)}, {s(S_T0)}, {8*F*2}\ns_lshl_b32 {s(S_T1)}, {s(S_FB0)}, 6\ns_add_u32 {s(S_T0)}, {s(S_T0)}, {s(S_T1)}")
    a(f"s_add_u32 {s(S_T1)}, {s(S_NBLK)}, 4")
    a(f"v_lshrrev_b32 v5, 4, v0\nv_bfe_u32 v6, v0, 1, 3\nv_lshl_add_u32 v5, v5, 6, v6\nv_mul_u32_u24 v5, {F*2}, v5\nv_and_b32 v6, 1, v0\nv_lshl_add_u32 v5, v6, {s(S_T1)}, v5")
    for r in srds:
        a(f"buffer_load_dword {v(vd)}, v5, {s(r,4)}, {s(S_T0)} offen{NTT}")
        if opt("TOUCH", 0) == 2:
            a(f"s_add_u32 {s(S_T0)}, {s(S_T0)}, {256*F*2}")
            a(f"buffer_load_dword {v(vd)}, v5, {s(r,4)}, {s(S_T0)} offen{NTT}")


KU, VU, KW, KO, KT = 72, 94, 110, 120, 128


def kv_taps(a):
    for j in range(4):
        for ch in range(2):
            src = VSK + 2*ch + (j >> 1)
            a(f"v_and_b32 {v(KW+2*j+ch)}, {s(S_C)}, {v(src)}" if j & 1 else f"v_lshlrev_b32 {v(KW+2*j+ch)}, 16, {v(src)}")
    a.c("KVT row = 2*(l&31) + ch, 16-B piece = 3 - (2*pass + l>>5)")
    a(f"v_and_b32 v70, 31, v0\nv_mul_u32_u24 v70, {2*KVT_STR}, v70\nv_lshrrev_b32 v5, 5, v0\nv_lshlrev_b32 v5, 4, v5\nv_sub_u32 v70, v70, v5")
    a(f"s_mul_i32 {s(S_T0)}, {s(S_SH)}, {64*KVT_STR}\ns_add_u32 {s(S_T0)}, {s(S_T0)}, {L_KVT + 16}\nv_add_u32 v70, {s(S_T0)}, v70")


def kv_compute(ps):
    b = VKV + 19 * ps
    o = []
    for i in range(11):
        o += [f"v_lshlrev_b32 {v(KU+2*i)}, 16, {v(b+i)}", f"v_and_b32 {v(KU+2*i+1)}, {s(S_C)}, {v(b+i)}"]
    for e in range(16):
        o.append(f"v_mul_f32 {v(KT+e)}, {v(KU+e)}, {v(KW+6+(e&1))}")
    for j in (2, 1, 0):
        for e in range(16):
            o.append(f"v_fmac_f32 {v(KT+e)}, {v(KU+e+2*(3-j))}, {v(KW+2*j+(e&1))}")
    for i in range(8):
        o += [f"v_lshlrev_b32 {v(VU+2*i)}, 16, {v(b+11+i)}", f"v_and_b32 {v(VU+2*i+1)}, {s(S_C)}, {v(b+11+i)}"]
    for e in range(16):
        o.append(f"v_mul_f32 {v(KT+e)}, {v(KT+e)}, {v(VU+e)}")
    for ch in range(2):
        for i in range(4):
            o.append(f"v_cvt_pk_bf16_f32 {v(KO+4*ch+i)}, {v(KT+2*(7-2*i)+ch)}, {v(KT+2*(6-2*i)+ch)}")
    o += [f"ds_write_b128 v70, {v(KO,4)} offset:{32*(1-ps)}", f"ds_write_b128 v70, {v(KO+4,4)} offset:{32*(1-ps) + KVT_STR}"]
    return o


def kv_store(a):
    a(f"v_lshrrev_b32 v5, 2, v0\nv_and_b32 v6, 3, v0\nv_lshlrev_b32 v6, 4, v6\nv_mul_u32_u24 v7, {KVT_STR}, v5\nv_add_u32 v7, v7, v6")
    a(f"s_mul_i32 {s(S_T0)}, {s(S_SH)}, {64*KVT_STR}\ns_add_u32 {s(S_T0)}, {s(S_T0)}, {L_KVT}\nv_add_u32 v7, {s(S_T0)}, v7")
    a("s_waitcnt lgkmcnt(0)")
    for i in range(4):
        a(f"ds_read_b128 {v(24+4*i,4)}, v7 offset:{16*i*KVT_STR}")
    a("v_lshl_add_u32 v5, v5, 12, v6")
    a(f"s_and_b32 {s(S_T0)}, {s(S_TI)}, 7\ns_lshl_b32 {s(S_T0)}, {s(S_T0)}, 18")
    a(f"s_lshr_b32 {s(S_T1)}, {s(S_TI)}, 3\ns_lshl_b32 {s(S_T1)}, {s(S_T1)}, 1\ns_add_u32 {s(S_T1)}, {s(S_T1)}, {s(S_SH)}\ns_lshl_b32 {s(S_T1)}, {s(S_T1)}, 6")
    a(f"s_sub_u32 {s(S_T0)}, {s(S_T0)}, {s(S_T1)}\ns_add_u32 {s(S_T0)}, {s(S_T0)}, {WS_KVR + 4096 - 64:#x}")
    for i in range(4):
        a(f"s_waitcnt lgkmcnt({3-i})")
        a(f"buffer_store_dwordx4 {v(24+4*i,4)}, v5, {s(R_WS,4)}, {s(S_T0)} offen sc1")
        a(f"s_add_u32 {s(S_T0)}, {s(S_T0)}, 65536")


def cs_loads(a):
    a(f"s_mul_i32 {s(S_T0)}, {s(S_MI)}, {32*F*2}\ns_lshl_b32 {s(S_T1)}, {s(S_FB0)}, 6\ns_add_u32 {s(S_T0)}, {s(S_T0)}, {s(S_T1)}\ns_add_u32 {s(S_T1)}, {s(S_T0)}, {16*F*2}")
    a(f"s_mul_i32 {s(S_M0)}, {s(S_SH)}, 6144\ns_add_u32 {s(S_M0)}, {s(S_M0)}, {L_CSS}")
    l1, l2 = a.label("cs"), a.label("cs")
    a(f"s_cmp_lg_u32 {s(S_SH)}, 0\ns_cbranch_scc1 {l1}")
    for r in (R_WG, R_WU):
        for blk in range(3):
            for k2 in range(2):
                a(f"s_add_u32 m0, {s(S_M0)}, {blk*2048 + k2*1024 - 64*blk}\ns_nop 0")
                a(f"buffer_load_dwordx4 {v(VB_W)}, {s(r,4)}, {s(S_T1 if k2 else S_T0)} offen offset:{64*blk} {CFS} lds")
        a(f"s_branch {l2}\n{l1}:" if r == R_WG else f"{l2}:")


def colsum(a):
    W, O = 144, 168
    a("v_lshrrev_b32 v5, 4, v0\nv_lshlrev_b32 v6, 9, v5\nv_bfe_u32 v7, v0, 2, 2\nv_lshl_add_u32 v6, v7, 6, v6\nv_and_b32 v7, 3, v0\nv_lshl_add_u32 v6, v7, 3, v6")
    a(f"v_and_b32 v7, 1, v5\nv_lshl_add_u32 v6, v7, 5, v6\nv_add_u32 v6, {s(S_M0)}, v6\nv_xor_b32 v7, 32, v6")
    for u in range(6):
        for tt in range(2):
            a(f"ds_read_b64_tr_b16 {v(W+4*u+2*tt,2)}, {'v7' if u & 1 else 'v6'} offset:{(u>>1)*2048 + tt*256}")
    a.c("CSP offset = ((ni*2 + hw)*16 + mi)*384 + u*64 + g*16")
    a(f"s_lshl_b32 {s(S_T0)}, {s(S_NI)}, 1\ns_add_u32 {s(S_T0)}, {s(S_T0)}, {s(S_SH)}\ns_lshl_b32 {s(S_T0)}, {s(S_T0)}, 4\ns_add_u32 {s(S_T0)}, {s(S_T0)}, {s(S_MI)}")
    a(f"s_mul_i32 {s(S_T0)}, {s(S_T0)}, 384\ns_add_u32 {s(S_T0)}, {s(S_T0)}, {WS_CSP:#x}")
    a("v_and_b32 v5, 48, v0")
    a("s_waitcnt lgkmcnt(0)")
    for u in range(6):
        a(f"v_mfma_f32_16x16x32_bf16 {v(O+4*u,4)}, {v(W+4*u,4)}, {v(ONE,4)}, 0")
    a(f"s_mov_b32 {s(S_EX)}, 0x00010001\ns_mov_b32 {s(S_EX+1)}, 0x00010001\ns_nop 5\ns_mov_b64 exec, {s(S_EX,2)}")
    for u in range(6):
        a(f"buffer_store_dwordx4 {v(O+4*u,4)}, v5, {s(R_WS,4)}, {s(S_T0)} offen offset:{u*64} sc1")
    a("s_mov_b64 exec, -1")


def hflag(a, base):
    a(f"s_lshl_b32 {s(S_T0)}, {s(S_TI)}, 7\ns_lshl_b32 {s(S_T1)}, {s(S_SH)}, 2\ns_add_u32 {s(S_T0)}, {s(S_T0)}, {s(S_T1)}\ns_add_u32 {s(S_T0)}, {s(S_T0)}, {base:#x}")
    flag_store(a, S_T0, 196, 197)


CG = 144


def cs_gather_issue(a):
    a(f"s_lshl_b32 {s(S_T0)}, {s(S_NI)}, 1\ns_add_u32 {s(S_T0)}, {s(S_T0)}, {s(S_SH)}\ns_mul_i32 {s(S_T0)}, {s(S_T0)}, 6144\ns_add_u32 {s(S_T0)}, {s(S_T0)}, {WS_CSP:#x}")
    a("v_and_b32 v5, 31, v0\nv_lshlrev_b32 v5, 4, v5\nv_lshrrev_b32 v6, 5, v0\nv_mul_u32_u24 v6, 3072, v6\nv_add_u32 v6, v5, v6")
    for i in range(8):
        a(f"buffer_load_dwordx4 {v(CG+4*i,4)}, v6, {s(R_WS,4)}, {s(S_T0)} offen offset:{i*384} sc1")


def cs_gather_finish(a):
    n = 8
    while n > 1:
        n //= 2
        for i in range(4 * n):
            a(f"v_add_f32 {v(CG+i)}, {v(CG+i)}, {v(CG+4*n+i)}")
    for i in range(4):
        a(f"v_mov_b32 {v(CG+4+i)}, {v(CG+i)}")
    a(f"s_lshl_b32 {s(S_T0)}, {s(S_SH)}, 9\ns_add_u32 {s(S_T0)}, {s(S_T0)}, {L_CS}\nv_and_b32 v8, 31, v0\nv_lshlrev_b32 v8, 4, v8\nv_add_u32 v8, {s(S_T0)}, v8")
    for i in range(4):
        a(f"v_permlane32_swap_b32 {v(CG+i)}, {v(CG+4+i)}")
    a("s_nop 0")
    for i in range(4):
        a(f"v_add_f32 {v(CG+i)}, {v(CG+i)}, {v(CG+4+i)}")
    a(f"ds_write_b128 v8, {v(CG,4)}")


def helper(a):
    q = VQ(a)
    a(f"s_sub_u32 {s(S_SH)}, {s(S_WB)}, 2")
    a(f"s_lshl_b32 {s(S_HO)}, {s(S_TI)}, 1\ns_add_u32 {s(S_HO)}, {s(S_HO)}, {s(S_SH)}\ns_lshl_b32 {s(S_HO)}, {s(S_HO)}, 12")
    a.c("k/v tile base: rows 32*(2*(ti>>3) + hw).., channels 64*(ti&7)")
    a(f"s_lshr_b32 {s(S_T0)}, {s(S_TI)}, 3\ns_lshl_b32 {s(S_T0)}, {s(S_T0)}, 1\ns_add_u32 {s(S_T0)}, {s(S_T0)}, {s(S_SH)}\ns_lshl_b32 {s(S_T0)}, {s(S_T0)}, 15")
    a(f"s_and_b32 {s(S_T1)}, {s(S_TI)}, 7\ns_lshl_b32 {s(S_T2)}, {s(S_T1)}, 7\ns_add_u32 {s(S_DO)}, {s(S_T0)}, {s(S_T2)}")
    a(f"s_mul_i32 {s(S_KC)}, {s(S_TI)}, {43*128}\ns_mul_i32 {s(S_T1)}, {s(S_SH)}, {22*128}\ns_add_u32 {s(S_KC)}, {s(S_KC)}, {s(S_T1)}")
    def sc():
        stats_loads(a); q.add("s", 4)
        cs_loads(a); q.add("csd", 6)
    SKV = opt("SKV", 0)
    KVAT = opt("KVAT", 0) or SKV or KVL
    def wdt():
        if not opt("WDT", 1):
            return
        a.c("first touch of Wd lines 43*ti + 22*hw + lane")
        a("v_lshlrev_b32 v11, 7, v0\ns_mov_b64 exec, 0x3fffff")
        a(f"buffer_load_dword v71, v11, {s(R_WD,4)}, {s(S_KC)} offen"); q.add("wd", 1)
        a("s_mov_b64 exec, -1")
    def cold():
        kv_dma(a); q.add("kv", 10)
        if not SKV and not PT and not opt("HW7", 0) and not KVL:
            wdt()
        if SKV != 1 and not opt("HW7", 0):
            conv_h_loads(a); q.add("h", 4)
    PT = opt("PT", 0)
    def ptouch():
        l1, l2 = a.label("pt"), a.label("pt")
        a(f"s_and_b32 {s(S_T0)}, {s(S_NI)}, 3\ns_cmp_lg_u32 {s(S_T0)}, 3\ns_cbranch_scc1 {l2}")
        a("v_lshrrev_b32 v5, 2, v0\nv_and_b32 v6, 3, v0\nv_lshlrev_b32 v6, 7, v6\nv_lshl_add_u32 v5, v5, 10, v6\nv_lshlrev_b32 v6, 7, v0")
        a(f"s_lshr_b32 {s(S_T0)}, {s(S_TI)}, 3\ns_lshl_b32 {s(S_T0)}, {s(S_T0)}, 16\ns_and_b32 {s(S_T1)}, {s(S_TI)}, 4\ns_lshl_b32 {s(S_T1)}, {s(S_T1)}, 7\ns_add_u32 {s(S_T0)}, {s(S_T0)}, {s(S_T1)}")
        a(f"s_cmp_lg_u32 {s(S_SH)}, 0\ns_cbranch_scc1 {l1}")
        for i in range(4):
            a(f"buffer_load_dword v71, v5, {s(R_K,4)}, {s(S_T0)} offen\ns_add_u32 {s(S_T0)}, {s(S_T0)}, 16384")
        a(f"s_sub_i32 {s(S_T0)}, {s(S_T0)}, {65536 + 3072}\ns_max_i32 {s(S_T0)}, {s(S_T0)}, 0\ns_mov_b64 exec, 0xfff")
        a(f"buffer_load_dword v71, v5, {s(R_K,4)}, {s(S_T0)} offen\ns_mov_b64 exec, -1")
        a(f"s_lshr_b32 {s(S_T0)}, {s(S_TI)}, 2\ns_mul_i32 {s(S_T0)}, {s(S_T0)}, {172*128}")
        for i in range(3):
            a(f"buffer_load_dword v71, v6, {s(R_WD,4)}, {s(S_T0)} offen\ns_add_u32 {s(S_T0)}, {s(S_T0)}, {8192 if i == 0 else 44*128}")
        a(f"s_branch {l2}\n{l1}:")
        for i in range(4):
            a(f"buffer_load_dword v71, v5, {s(R_V,4)}, {s(S_T0)} offen\ns_add_u32 {s(S_T0)}, {s(S_T0)}, 16384")
        a(f"s_lshr_b32 {s(S_T0)}, {s(S_TI)}, 2\ns_lshl_b32 {s(S_T0)}, {s(S_T0)}, 15")
        for i in range(4):
            a(f"buffer_load_dword v71, v6, {s(R_H,4)}, {s(S_T0)} offen\ns_add_u32 {s(S_T0)}, {s(S_T0)}, 8192")
        a(f"{l2}:")
    if PT == 1:
        ptouch()
    LATE = opt("LATE", 0)
    if LATE:
        lds_min_wait(a, C_CNT, W_ISS, 1, LATE, 20)
        l1, l2 = a.label("tc"), a.label("tc")
        a(f"s_cmp_lg_u32 {s(S_SH)}, 0\ns_cbranch_scc1 {l1}")
        touch_x(a, (4, 6), 71)
        a(f"s_branch {l2}\n{l1}:")
        touch_w(a, 4, (R_WG, R_WU), 71)
        a(f"{l2}:")
    def hs(n):
        if ITST:
            a(f"s_mov_b32 {s(S_IT)}, 0")
            it_issue(a)
            a("s_waitcnt lgkmcnt(0)")
            it_take(a, n)
    hs(1)
    KV1 = opt("KV1", 0)
    if KV1:
        if KV1 == 2:
            kv_dma(a); q.add("kv", 10)
        else:
            cold()
        a("s_barrier")
    if not opt("ELAST", 0):
        epoch_load(a, 1); q.add("e", 1)
    sc()
    if opt("ELAST", 0):
        epoch_load(a, 1); q.add("e", 1)
    hs(2)
    if KVL:
        wdt()
    if SKV:
        wdt()
        a(f"s_sub_i32 {s(S_KC)}, {s(S_DO)}, 3072\ns_max_i32 {s(S_KC)}, {s(S_KC)}, 0")
        spf(a, R_K, S_KC, [1024*i for i in range(35)])
    if KV1 == 2:
        wdt()
        conv_h_loads(a); q.add("h", 4)
    if not KVAT and not KV1:
        cold()
    hs(3)
    for i in range(4):
        a(f"v_mov_b32 {v(ONE+i)}, 0x3f803f80")
    a.c("F1 pairs: lanes 0-31 tiles 16mi + (l&15) (row records), lanes 32-63 tiles 16*(l&15) + ni (column sums)")
    a(f"s_lshl_b32 {s(S_T0)}, {s(S_MI)}, 11\nv_and_b32 v9, 15, v0\nv_lshlrev_b32 v8, 7, v9\nv_add_u32 v8, {s(S_T0)}, v8")
    a(f"s_lshl_b32 {s(S_T0)}, {s(S_NI)}, 7\nv_lshlrev_b32 v9, 11, v9\nv_add_u32 v9, {s(S_T0)}, v9\nv_cmp_lt_u32 vcc, 31, v0")
    a(f"s_nop 1\nv_cndmask_b32 v8, v8, v9, vcc\nv_add_u32 v8, {WS_F1:#x}, v8")
    q.wait("e", "s")
    stamp(a, 1)
    epoch_take(a, 1)
    a(f"v_mov_b32 v20, {s(S_NON)}\nds_write_b32 {v(C_CNT)}, v20 offset:{W_NON}")
    stats(a); q.add("st", 1)
    q.wait("csd")
    if PT == 2:
        ptouch()
    colsum(a); q.add("st", 6)
    stamp(a, 2)
    if KVL:
        q.wait("st")
        hflag(a, WS_F1)
        stamp(a, 3)
        lds_min_wait(a, C_CNT, W_ISS, 1, KVL - 1, 20)
        poll2_issue(a, 8, 198)
        a(f"s_lshr_b32 {s(S_T0)}, {s(S_TI)}, 5\ns_lshl_b32 {s(S_T0)}, {s(S_T0)}, 7\ns_add_u32 {s(S_T0)}, {s(S_T0)}, {WS_F2:#x}")
        a(f"v_and_b32 v16, 31, v0\nv_lshlrev_b32 v16, 10, v16\nv_add_u32 v16, {s(S_T0)}, v16")
        a("s_waitcnt vmcnt(0)")
        poll2_check(a, 8, 198)
        lds_min_wait(a, C_CNT, W_ISS, 1, KVL, 20)
        a(f"s_lshl_b32 {s(S_T0)}, {s(S_MI)}, 1\ns_add_u32 {s(S_T0)}, {s(S_T0)}, {s(S_SH)}\ns_lshl_b32 {s(S_T0)}, {s(S_T0)}, 10\ns_add_u32 {s(S_T0)}, {s(S_T0)}, {WS_ST:#x}")
        a(f"buffer_load_dwordx4 {v(GG,4)}, v4, {s(R_WS,4)}, {s(S_T0)} offen sc1")
        cs_gather_issue(a)
        a(f"s_lshl_b32 {s(S_T0)}, {s(S_SH)}, 10\ns_add_u32 {s(S_T0)}, {s(S_T0)}, {L_ST}\nv_add_u32 v9, {s(S_T0)}, v4")
        cold()
        a("s_waitcnt vmcnt(14)")
        a(f"ds_write_b128 v9, {v(GG,4)}")
        cs_gather_finish(a)
        lds_inc(a, C_CNT, C_ONE, W_GATH)
        stamp(a, 5)
        a(f"s_setprio {opt('PRK', 0)}")
        a("s_waitcnt vmcnt(4)")
        kv_reads(a)
        kv_taps(a)
        a("s_waitcnt lgkmcnt(0)")
        for l in kv_compute(0) + kv_compute(1):
            a(l)
        kv_store(a)
        lds_inc(a, C_CNT, C_ONE, W_HP)
        a("s_waitcnt vmcnt(4)")
        conv_h_shift(a, 40)
        a("s_waitcnt vmcnt(0)")
        hflag(a, WS_F2)
        stamp(a, 4)
        final_loads(a)
        lds_min_wait(a, C_CNT, W_FREE, 4, 6, 20)
        lds_min_wait(a, C_CNT, W_HP, 1, 2, 20)
        conv_h_stage(a, 40)
        poll2_issue(a, 16, 18)
        a("s_waitcnt vmcnt(0)")
        poll2_check(a, 16, 18)
        a(f"s_add_u32 {s(S_T2)}, {s(S_HO)}, {WS_KVR:#x}")
        for i in range(4):
            a(f"buffer_load_dwordx4 {v(128+4*i,4)}, v4, {s(R_WS,4)}, {s(S_T2)} offen offset:{1024*i} sc1")
        for i in range(4):
            a(f"s_waitcnt vmcnt({3-i})")
            a(f"ds_write_b128 v10, {v(128+4*i,4)} offset:{4*HSTR + 1024*i}")
        stamp(a, 6)
        return
    if SKV:
        spf(a, R_V, S_DO, [1024*i for i in range(14)])
        q.wait("st")
        hflag(a, WS_F1); q.add("f", 1)
        stamp(a, 3)
        spf(a, R_V, S_DO, [1024*i for i in range(14, 32)])
        a(f"s_and_b32 {s(S_T1)}, {s(S_TI)}, 7\ns_lshl_b32 {s(S_T1)}, {s(S_T1)}, 9")
        spf(a, R_SK, S_T1, [128*i for i in range(4)])
        if SKV == 2:
            spf(a, R_H, S_HO, [128*i for i in range(32)])
        a("s_waitcnt lgkmcnt(0)")
        cold()
    elif KVAT:
        a(f"s_lshr_b32 {s(S_T3)}, s2, 3\ns_and_b32 {s(S_T3)}, {s(S_T3)}, {opt('KVM', 0)}\ns_add_u32 {s(S_T3)}, {s(S_T3)}, {KVAT}")
        if PT:
            q.wait("st")
            hflag(a, WS_F1); q.add("f", 1)
            stamp(a, 3)
            a(f"s_and_b32 {s(S_T0)}, {s(S_NI)}, 3\ns_cmp_eq_u32 {s(S_T0)}, 3\ns_cselect_b32 {s(S_T3)}, 0, {s(S_T3)}")
        lds_min_wait(a, C_CNT, W_ISS, 1, s(S_T3), 20)
        cold()
        if not PT:
            q.wait("st")
            hflag(a, WS_F1); q.add("f", 1)
            stamp(a, 3)
    q.wait("kv")
    kv_reads(a)
    kv_taps(a)
    a("s_waitcnt lgkmcnt(0)")
    for l in kv_compute(0):
        a(l)
    if not KVAT:
        q.wait("st")
        hflag(a, WS_F1); q.add("f", 1)
        stamp(a, 3)
    for l in kv_compute(1):
        a(l)
    kv_store(a); q.add("kvst", 4)
    lds_inc(a, C_CNT, C_ONE, W_HP)
    q.wait("kvst")
    hflag(a, WS_F2); q.add("f", 1)
    stamp(a, 4)
    if opt("HW7", 0):
        lds_min_wait(a, C_CNT, W_ISS, 1, opt("HW7", 0), 20)
        wdt()
        conv_h_loads(a)
    else:
        conv_h_shift(a)
    if SKV == 1:
        spf(a, R_H, S_HO, [128*i for i in range(32)])
    if WDE:
        wd_setup(a, 0, S_SH)
        a(f"s_lshl_b32 {s(S_T0)}, {s(S_SH)}, 2\nv_add_u32 v11, {s(S_T0)}, {v(C_CNT)}")
        lds_min_wait(a, C_CNT, W_HP, 1, 2, 20)
        lds_min_wait(a, C_CNT, W_ISS, 1, WDE, 20)
        for op in wd_dma(0, 2) + wd_dma(1, 2):
            a(op)
    lds_min_wait(a, C_CNT, W_ISS, 1, opt("GATP", 7), 20)
    poll2_issue(a, 8, 198)
    a.c("F2 pairs of tiles 8*(l&31) + (ti>>5)")
    a(f"s_lshr_b32 {s(S_T0)}, {s(S_TI)}, 5\ns_lshl_b32 {s(S_T0)}, {s(S_T0)}, 7\ns_add_u32 {s(S_T0)}, {s(S_T0)}, {WS_F2:#x}")
    a(f"v_and_b32 v16, 31, v0\nv_lshlrev_b32 v16, 10, v16\nv_add_u32 v16, {s(S_T0)}, v16")
    a("s_waitcnt vmcnt(0)")
    if WDE:
        a(f"ds_write_b32 v11, {v(C_ONE)} offset:{W_WE}")
    poll2_check(a, 8, 198)
    lds_min_wait(a, C_CNT, W_ISS, 1, opt("GAT", 7), 20)
    poll2_issue(a, 16, 18)
    a(f"s_lshl_b32 {s(S_T0)}, {s(S_MI)}, 1\ns_add_u32 {s(S_T0)}, {s(S_T0)}, {s(S_SH)}\ns_lshl_b32 {s(S_T0)}, {s(S_T0)}, 10\ns_add_u32 {s(S_T0)}, {s(S_T0)}, {WS_ST:#x}")
    a(f"buffer_load_dwordx4 {v(GG,4)}, v4, {s(R_WS,4)}, {s(S_T0)} offen sc1")
    cs_gather_issue(a)
    a(f"s_lshl_b32 {s(S_T0)}, {s(S_SH)}, 10\ns_add_u32 {s(S_T0)}, {s(S_T0)}, {L_ST}\nv_add_u32 v9, {s(S_T0)}, v4")
    late, join = a.label("u_late"), a.label("u_join")
    def u_loads():
        a(f"s_add_u32 {s(S_T2)}, {s(S_HO)}, {WS_KVR:#x}")
        for i in range(4):
            a(f"buffer_load_dwordx4 {v(128+4*i,4)}, v4, {s(R_WS,4)}, {s(S_T2)} offen offset:{1024*i} sc1")
    def gather_done():
        a(f"ds_write_b128 v9, {v(GG,4)}")
        cs_gather_finish(a)
        lds_inc(a, C_CNT, C_ONE, W_GATH)
        stamp(a, 5)
    a("s_waitcnt vmcnt(9)")
    a(f"v_cmp_ne_u32 vcc, {s(S_NON)}, v18\nv_cmp_ne_u32 {s(S_EX,2)}, {s(S_NON)}, v19\ns_nop 0\ns_or_b64 vcc, vcc, {s(S_EX,2)}\ns_cbranch_scc1 {late}")
    u_loads()
    a("s_waitcnt vmcnt(4)")
    gather_done()
    a(f"{join}:")
    keep = a.L
    a.L = COLD.L
    a(f"{late}:")
    a("s_waitcnt vmcnt(0)")
    gather_done()
    poll2_check(a, 16, 18)
    u_loads()
    a(f"s_branch {join}")
    a.L = keep
    final_loads(a)
    lds_min_wait(a, C_CNT, W_FREE, 4, 6, 20)
    a.c("the other helper must be done with its transpose scratch before the conv region is written")
    lds_min_wait(a, C_CNT, W_HP, 1, 2, 20)
    if opt("HW7", 0):
        conv_h_shift(a)
    conv_h_stage(a)
    a("s_waitcnt vmcnt(2)")
    for i in range(4):
        a(f"ds_write_b128 v10, {v(128+4*i,4)} offset:{4*HSTR + 1024*i}")
    stamp(a, 6)


C_ACC, C_F0, C_F1 = 16, 48, 112
C_AA, C_BA = 2, 3


def bsync_post(a, n=4):
    a(f"s_add_u32 {s(S_CNT)}, {s(S_CNT)}, {n}")
    a("s_mov_b64 exec, 1")
    a(f"ds_add_u32 {v(C_CNT)}, {v(C_ONE)}")
    a("s_mov_b64 exec, -1")


def bsync_wait(a, nap=None):
    lds_min_wait(a, C_CNT, W_CNT, 1, s(S_CNT), 6, nap=opt("BNAP", 0) if nap is None else nap)


def bsync(a, n=4):
    bsync_post(a, n)
    bsync_wait(a)


def conv_reads(fr, roff):
    out = []
    for p in range(8):
        out.append(f"ds_read_b128 {v(fr+4*p,4)}, {v(C_AA)} offset:{512*p + roff}")
        out.append(f"ds_read_b64 {v(fr+32+4*p,2)}, {v(C_BA)} offset:{512*(7-p) + roff}")
        out.append(f"ds_read_b64 {v(fr+32+4*p+2,2)}, {v(C_BA)} offset:{512*(7-p) + roff + 8}")
    return out


def conv_mfmas(fr, first):
    out = []
    for tot in range(8):
        for p in range(tot + 1):
            q = tot - p
            out.append((max(p, q), f"v_mfma_f32_16x16x32_bf16 {v(C_ACC+4*tot,4)}, {v(fr+4*p,4)}, {v(fr+32+4*q,4)}, ", C_ACC + 4*tot))
    out.sort(key=lambda t: t[0])
    res, seen = [], set()
    for _, txt, c in out:
        res.append(txt + ("0" if first and c not in seen else v(c, 4)))
        seen.add(c)
    return res


HR = 200


def conv_h_loads(a):
    a(f"s_mul_i32 {s(S_RING)}, {s(S_SH)}, {CH_STR}\ns_add_u32 {s(S_RING)}, {s(S_RING)}, {L_CONV}")
    for h in range(4):
        a(f"buffer_load_dwordx4 {v(HR+6*h+2,4)}, v4, {s(R_H,4)}, {s(S_HO)} offen offset:{1024*h} {NT}")


def conv_h_shift(a, z=24):
    for i in range(4):
        a(f"v_mov_b32 {v(z+i)}, 0")
    a(f"v_add_u32 v10, {s(S_RING)}, v4")
    T = 72
    a.c("the two dwords in front of each lane's piece come from the lane below")
    for h in range(4):
        r = HR + 6 * h
        for i in range(2):
            a(f"v_mov_b32_dpp {v(r+i)}, {v(r-2+i)} wave_ror:1 row_mask:0xf bank_mask:0xf" if h else f"v_mov_b32 {v(r+i)}, 0")
    for h in range(4):
        r = HR + 6 * h
        for i in range(2):
            a(f"v_mov_b32_dpp {v(r+i)}, {v(r+4+i)} wave_shr:1 row_mask:0xf bank_mask:0xf")
    for h in range(4):
        r = HR + 6 * h
        for i in range(4):
            a(f"v_alignbit_b32 {v(T+i)}, {v(r+2+i)}, {v(r+1+i)}, 16")
        for i in range(4):
            a(f"v_mov_b32 {v(T+4+i)}, {v(r+1+i)}")
        for i in range(4):
            a(f"v_alignbit_b32 {v(T+8+i)}, {v(r+1+i)}, {v(r+i)}, 16")
        T += 12


def conv_h_stage(a, z=24):
    a.c("zero pads: 384 B in front of each h copy, 128 B behind u")
    a("s_mov_b64 exec, 0xffffff")
    for p in range(4):
        a(f"ds_write_b128 v10, {v(z,4)} offset:{p*HSTR}")
    a("s_mov_b64 exec, 0xff")
    a(f"ds_write_b128 v10, {v(z,4)} offset:{4*HSTR + 4096}")
    a("s_mov_b64 exec, -1")
    for h in range(4):
        a(f"ds_write_b128 v10, {v(HR+6*h+2,4)} offset:{384 + 1024*h}")
        for p in range(1, 4):
            a(f"ds_write_b128 v10, {v(72+12*h+4*(p-1),4)} offset:{p*HSTR + 384 + 1024*h}")


def conv_mid(a):
    a("s_waitcnt vmcnt(0)")
    a(f"ds_write_b32 v11, v251 offset:{W_WD}")
    poll2_check(a, 5, 198)
    a(f"s_lshl_b32 {s(S_T0)}, {s(S_MT)}, 2\ns_add_u32 {s(S_T0)}, {s(S_T0)}, {s(S_WB)}\ns_lshl_b32 {s(S_T0)}, {s(S_T0)}, 8\ns_add_u32 {s(S_T0)}, {s(S_T0)}, {WS_ST:#x}")
    a(f"buffer_load_dwordx4 {v(184,4)}, v15, {s(R_WS,4)}, {s(S_T0)} offen sc1")
    a(f"buffer_load_dwordx4 {v(188,4)}, v15, {s(R_WS,4)}, {s(S_T0)} offen offset:128 sc1")


def conv_main(a):
    U, UU, X, O = 48, 56, 112, 144
    for l in conv_reads(C_F0, 0):
        a(l)
    for r in range(4):
        cur, nxt = (C_F0, C_F1) if r % 2 == 0 else (C_F1, C_F0)
        a("s_waitcnt lgkmcnt(0)")
        if r < 3:
            rd = conv_reads(nxt, 64 * (r + 1))
        else:
            rd = [f"ds_read_b32 {v(U+2*b+c)}, v10 offset:{c*CH_STR + 256*(3-b)}" for b in range(4) for c in range(2)]
        for l in interleave(conv_mfmas(cur, r == 0), rd, 0, 1):
            a(l)
        if r == opt("WDR", 0):
            conv_mid(a)
    lstamp(a, 5)
    a(f"s_setprio {opt('PRX', opt('PRC', 3))}")
    bsync(a)
    if opt("XST", 0): lstamp(a, 1)
    for t in range(8):
        a(f"ds_write_b128 v8, {v(C_ACC+4*t,4)} offset:{t*1024}")
    bsync_post(a)
    a.c("skip term D*u at rows 512wb + 128b + 2l, +1")
    a(f"s_lshl_b32 s100, {s(S_C+1)}, 16\ns_and_b32 {s(S_C+1)}, {s(S_C+1)}, 0xffff0000")
    for b in range(4):
        for c in range(2):
            u, o = U + 2*b + c, UU + 4*b + 2*c
            a(f"v_and_b32 {v(o)}, {s(S_C)}, {v(u)}\nv_lshlrev_b32 {v(o+1)}, 16, {v(u)}")
    for b in range(4):
        for c in range(2):
            for j in range(2):
                a(f"v_mul_f32 {v(UU+4*b+2*c+j)}, {s(S_C+1) if c else 's100'}, {v(UU+4*b+2*c+j)}")
        a(f"v_mov_b32 {v(O+4*b+1)}, {s(S_NON)}\nv_mov_b32 {v(O+4*b+3)}, {s(S_NON)}")
    bsync_wait(a)
    if opt("XST", 0): lstamp(a, 2)
    for b in range(4):
        for w in range(4):
            a(f"ds_read_b64 {v(X+8*b+2*w,2)}, v9 offset:{w*8192 + b*512}")
    a("s_waitcnt vmcnt(0)")
    for b in range(4):
        a(f"s_waitcnt lgkmcnt({4*(3-b)})")
        for c in range(2):
            for j in range(2):
                o, x0 = UU + 4*b + 2*c + j, X + 8*b + 4*c + j
                a(f"v_add_f32 {v(o)}, {v(o)}, {v(x0)}")
        for c in range(2):
            for j in range(2):
                o, x0 = UU + 4*b + 2*c + j, X + 8*b + 4*c + j
                a(f"v_add_f32 {v(o)}, {v(o)}, {v(x0+2)}")
        for j in range(2):
            a(f"v_cvt_pk_bf16_f32 {v(O+4*b+2*j)}, {v(UU+4*b+j)}, {v(UU+4*b+2+j)}")
        if opt("XST", 0) and b == 0: lstamp(a, 3)
        a(f"buffer_store_dwordx4 {v(O+4*b,4)}, v4, {s(R_WS,4)}, {s(S_HO)} offen offset:{1024*b} sc1")
    a.c("the flag only says where to look: the granules carry their own tags")
    if opt("YACK", 0):
        a("s_waitcnt vmcnt(0)")
    flag_store(a, S_DO, 8, 9)


def conv_addr(a):
    a(f"s_lshr_b32 {s(S_T0)}, {s(S_WB)}, 1\ns_mul_i32 {s(S_RING)}, {s(S_T0)}, {CH_STR}\ns_add_u32 {s(S_RING)}, {s(S_RING)}, {L_CONV}")
    a(f"s_lshl_b32 {s(S_T3)}, {s(S_TI)}, 2\ns_load_dword {s(S_C+1)}, {s(S_DP,2)}, {s(S_T3)}")
    a.c("A address: base + (3-(m&3))*HSTR + 128*(m>>2) + 16*kg + 256*rh ; B address: ubase + 120 - 8n + 16kg + 256*rh")
    a(f"s_and_b32 {s(S_T0)}, {s(S_WB)}, 1\ns_lshl_b32 {s(S_T0)}, {s(S_T0)}, 8\ns_add_u32 {s(S_T0)}, {s(S_T0)}, {s(S_RING)}")
    a(f"v_and_b32 v6, 3, v0\nv_sub_u32 v6, 3, v6\nv_mul_u32_u24 v6, {HSTR}, v6\nv_bfe_u32 v7, v0, 2, 2\nv_lshl_add_u32 v6, v7, 7, v6")
    a(f"v_and_b32 v7, 48, v0\nv_add3_u32 {v(C_AA)}, v6, v7, {s(S_T0)}")
    a(f"v_and_b32 v6, 15, v0\nv_lshlrev_b32 v6, 3, v6\nv_sub_u32 v6, v7, v6\ns_add_u32 {s(S_T0)}, {s(S_T0)}, {4*HSTR + 120}\nv_add_u32 {v(C_BA)}, {s(S_T0)}, v6")
    a(f"s_lshl_b32 {s(S_T0)}, {s(S_WB)}, 13\ns_add_u32 {s(S_T0)}, {s(S_T0)}, {L_XCH}\nv_add_u32 v8, {s(S_T0)}, v4")
    a(f"s_lshl_b32 {s(S_T0)}, {s(S_WB)}, 11\ns_add_u32 {s(S_T0)}, {s(S_T0)}, {L_XCH}\nv_lshlrev_b32 v9, 3, v0\nv_add_u32 v9, {s(S_T0)}, v9")
    a.c("u for the skip term: ubase_c + 2*(2046 - 512wb - 128b - 2l)")
    a(f"s_lshl_b32 {s(S_T0)}, {s(S_WB)}, 10\ns_sub_u32 {s(S_T0)}, {L_CONV + 4*HSTR + 4092 - 768}, {s(S_T0)}\nv_lshlrev_b32 v10, 2, v0\nv_sub_u32 v10, {s(S_T0)}, v10")
    a.c("y granules: YG[ti][row*8]; flag F4[wb*256 + ti]")
    a(f"s_mul_i32 {s(S_T0)}, {s(S_TI)}, {YSTR}\ns_lshl_b32 {s(S_T1)}, {s(S_WB)}, 12\ns_add_u32 {s(S_T0)}, {s(S_T0)}, {s(S_T1)}\ns_add_u32 {s(S_HO)}, {s(S_T0)}, {WS_YG:#x}")
    a(f"s_lshl_b32 {s(S_T0)}, {s(S_WB)}, 8\ns_add_u32 {s(S_T0)}, {s(S_T0)}, {s(S_TI)}\ns_lshl_b32 {s(S_T0)}, {s(S_T0)}, 7\ns_add_u32 {s(S_DO)}, {s(S_T0)}, {WS_F4:#x}")
    a(f"s_mov_b32 {s(S_CNT)}, 0\ns_lshl_b32 {s(S_T0)}, {s(S_WB)}, 2\nv_add_u32 v11, {s(S_T0)}, {v(C_CNT)}\nv_mov_b32 v251, 3")
    a.c("F1 pairs of the two tiles that hold this wave's output rows")
    a(f"s_lshl_b32 {s(S_T1)}, {s(S_MT)}, 2\ns_add_u32 {s(S_T1)}, {s(S_T1)}, {s(S_WB)}\ns_lshl_b32 {s(S_T1)}, {s(S_T1)}, 8\ns_add_u32 {s(S_T1)}, {s(S_T1)}, {WS_F1:#x}")
    a(f"v_and_b32 v5, 1, v0\nv_lshlrev_b32 v5, 7, v5\nv_add_u32 v5, {s(S_T1)}, v5")
    poll2_issue(a, 5, 198)


def final_loads(a):
    a(f"s_lshl_b32 {s(S_T0)}, {s(S_MT)}, 2\ns_add_u32 {s(S_T0)}, {s(S_T0)}, {s(S_WB)}\ns_lshl_b32 {s(S_T1)}, {s(S_T0)}, 14\ns_lshl_b32 {s(S_T2)}, {s(S_NT)}, 7\ns_add_u32 {s(S_XO)}, {s(S_T1)}, {s(S_T2)}")
    a(f"s_add_u32 {s(S_WO)}, {s(S_XO)}, 8192")
    a("v_lshrrev_b32 v12, 3, v0\nv_and_b32 v13, 7, v0\nv_lshlrev_b32 v14, 4, v13\nv_lshl_add_u32 v14, v12, 10, v14\nv_lshlrev_b32 v15, 4, v12")
    a(f"buffer_load_dwordx4 {v(176,4)}, v14, {s(R_X,4)}, {s(S_XO)} offen")
    a(f"buffer_load_dwordx4 {v(180,4)}, v14, {s(R_X,4)}, {s(S_WO)} offen")


def final(a):
    XU, XN, YU, YL = 16, 72, 96, 160
    a.c("flags F4[(mt>>3)*256 + 32nt + 8wb + (l&7)]; granules of pairs 32nt + 8wb + 2i + (l>>5), rows 64mt + 2*(l&31) ..")
    a(f"s_lshl_b32 {s(S_T0)}, {s(S_NT)}, 2\ns_add_u32 {s(S_T0)}, {s(S_T0)}, {s(S_WB)}\ns_lshr_b32 {s(S_T1)}, {s(S_MT)}, 3\ns_lshl_b32 {s(S_T1)}, {s(S_T1)}, 5\ns_add_u32 {s(S_T1)}, {s(S_T1)}, {s(S_T0)}")
    a(f"s_lshl_b32 {s(S_T1)}, {s(S_T1)}, 10\ns_add_u32 {s(S_T1)}, {s(S_T1)}, {WS_F4:#x}\nv_lshlrev_b32 v5, 7, v13\nv_add_u32 v5, {s(S_T1)}, v5")
    a(f"s_mul_i32 {s(S_T0)}, {s(S_T0)}, {8*YSTR}\ns_lshl_b32 {s(S_T1)}, {s(S_MT)}, 9\ns_add_u32 {s(S_T0)}, {s(S_T0)}, {s(S_T1)}\ns_add_u32 {s(S_HO)}, {s(S_T0)}, {WS_YG:#x}")
    a(f"v_lshrrev_b32 v10, 5, v0\nv_mul_u32_u24 v8, {YSTR - 512}, v10\nv_add_u32 v8, v8, v4")

    def y_loads():
        a(f"s_mov_b32 {s(S_T1)}, {s(S_HO)}")
        for i in range(4):
            a(f"buffer_load_dwordx4 {v(YL+4*i,4)}, v8, {s(R_WS,4)}, {s(S_T1)} offen sc1")
            if i < 3:
                a(f"s_add_u32 {s(S_T1)}, {s(S_T1)}, {2*YSTR}")
    for t in range(2):
        for i in range(4):
            a(f"v_lshlrev_b32 {v(XU+8*t+2*i)}, 16, {v(176+4*t+i)}\nv_and_b32 {v(XU+8*t+2*i+1)}, {s(S_C)}, {v(176+4*t+i)}")
    for i in range(16):
        a(f"v_mov_b32 {v(YU+i)}, 0")
    a.c("transpose scratch [wb'][c*272 + e*64 + row*4]")
    a(f"s_mul_i32 {s(S_T0)}, {s(S_WB)}, 544\ns_add_u32 {s(S_T0)}, {s(S_T0)}, {L_YL}")
    a(f"v_and_b32 v9, 3, v12\nv_mul_u32_u24 v9, 2176, v9\nv_lshl_add_u32 v9, v10, 6, v9\nv_lshl_add_u32 v9, v13, 3, v9\nv_add_u32 v9, {s(S_T0)}, v9")
    a(f"s_mul_i32 {s(S_T0)}, {s(S_WB)}, 2176\ns_add_u32 {s(S_T0)}, {s(S_T0)}, {L_YL}")
    a(f"v_mul_u32_u24 v7, 272, v13\nv_lshl_add_u32 v7, v12, 2, v7\nv_add_u32 v7, {s(S_T0)}, v7")
    a.c("partials: wb*16384 + w*4096 + (8t + row)*256 + ((2c + h) ^ row)*16")
    a(f"s_lshl_b32 {s(S_T0)}, {s(S_WB)}, 14\nv_lshlrev_b32 v2, 1, v13\nv_xor_b32 v2, v2, v12\nv_lshlrev_b32 v2, 4, v2\nv_lshl_add_u32 v2, v12, 8, v2\nv_add_u32 v2, {s(S_T0)}, v2")
    a("v_xor_b32 v3, 16, v2")
    for t in range(2):
        a(f"v_mul_f32 {v(185+4*t)}, {f32bits(1.0/C1):#x}, {v(185+4*t)}")
        for i in range(8):
            a(f"v_sub_f32 {v(XN+8*t+i)}, {v(XU+8*t+i)}, {v(184+4*t)}")
        for i in range(8):
            a(f"v_mul_f32 {v(XN+8*t+i)}, {v(XN+8*t+i)}, {v(185+4*t)}")
    if not opt('LDST', 0): stamp(a, 7)
    a(f"s_setprio {opt('PRP', 0)}")
    a.c("stay off the memory path until the GEMM2 waves have issued their loads")
    lds_min_wait(a, C_CNT, W_HI, 1, 4, 6, nap=2)
    a(f"s_setprio {opt('PRF', 3)}")
    if not opt('LDST', 0): stamp(a, 8)
    top, done = a.label("yp"), a.label("yp_ok")
    a(f"s_mov_b32 {s(S_IT)}, 0")
    if opt("YFLAG", 0):
        poll(a, 5, 6)
    a(f"{top}:")
    y_loads()
    a("s_waitcnt vmcnt(0)")
    for i in range(4):
        a(f"v_xor_b32 {v(48+i)}, {s(S_NON)}, {v(YL+4*i+1)}\nv_xor_b32 {v(52+i)}, {s(S_NON)}, {v(YL+4*i+3)}\nv_mov_b32 {v(YL+4*i+1)}, {v(YL+4*i+2)}")
    a("v_or3_b32 v48, v48, v49, v50\nv_or3_b32 v51, v51, v52, v53\nv_or3_b32 v48, v48, v54, v55\nv_or_b32 v48, v48, v51\nv_cmp_ne_u32 vcc, 0, v48")
    a(f"s_cbranch_vccz {done}")
    poll(a, 5, 6)
    a(f"s_add_u32 {s(S_IT)}, {s(S_IT)}, {s(S_SPIN)}\ns_add_u32 {s(S_IT)}, {s(S_IT)}, 1\ns_cmp_lt_u32 {s(S_IT)}, {SPIN_MAX}\ns_cbranch_scc1 {top}")
    a(f"{done}:")
    for i in range(4):
        a(f"ds_write_b64 v9, {v(YL+4*i,2)} offset:{272*(i>>1) + 128*(i&1)}")
    bsync(a)
    for t in range(2):
        for e in range(8):
            a(f"ds_read_u16_d16_hi {v(YU+8*t+e)}, v7 offset:{64*(e>>1) + 32*t + 2*(e&1)}")
    for t in range(2):
        a(f"s_waitcnt lgkmcnt({8*(1-t)})")
        for i in range(8):
            a(f"v_fmac_f32 {v(XU+8*t+i)}, {v(XN+8*t+i)}, {v(YU+8*t+i)}")
    if not opt('LDST', 0): stamp(a, 9)
    if STAMPS:
        a("s_waitcnt lgkmcnt(0)")
    a("s_barrier")
    P = 112
    for t in range(2):
        for w in range(4):
            for h in range(2):
                a(f"ds_read_b128 {v(P+32*t+8*w+4*h,4)}, {'v3' if h else 'v2'} offset:{w*4096 + t*2048}")
    for t in range(2):
        a(f"s_waitcnt lgkmcnt({8*(1-t)})")
        p = P + 32 * t
        for i in range(4):
            a(f"v_pk_add_f32 {v(p+2*i,2)}, {v(p+2*i,2)}, {v(p+8+2*i,2)}")
        for i in range(4):
            a(f"v_pk_add_f32 {v(p+16+2*i,2)}, {v(p+16+2*i,2)}, {v(p+24+2*i,2)}")
        for i in range(4):
            a(f"v_pk_add_f32 {v(p+2*i,2)}, {v(p+2*i,2)}, {v(XU+8*t+2*i,2)}")
        for i in range(4):
            a(f"v_pk_add_f32 {v(p+2*i,2)}, {v(p+2*i,2)}, {v(p+16+2*i,2)}")
        for i in range(4):
            a(f"v_cvt_pk_bf16_f32 {v(48+4*t+i)}, {v(p+2*i)}, {v(p+2*i+1)}")
        a(f"buffer_store_dwordx4 {v(48+4*t,4)}, v14, {s(R_OUT,4)}, {s(S_WO if t else S_XO)} offen")


def epoch_flags_issue(a):
    a(f"v_lshlrev_b32 v6, 7, v0\ns_mov_b32 {s(S_T0)}, {WS_F1:#x}")
    for i in range(4):
        a(f"buffer_load_dword {v(2+i)}, v6, {s(R_WS,4)}, {s(S_T0)} offen sc1")
        a(f"s_add_u32 {s(S_T0)}, {s(S_T0)}, 8192")


def epoch_pre(a):
    done = a.label("ep_skip")
    a(f"s_lshl_b32 {s(S_T0)}, s2, 3\ns_add_u32 {s(S_T0)}, {s(S_T0)}, {s(S_WAVE)}\ns_cmp_lg_u32 {s(S_T0)}, 0\ns_cbranch_scc1 {done}")
    epoch_flags_issue(a)
    a(f"{done}:")


def epoch_advance(a):
    done, top, ok = a.label("ep_skip"), a.label("ep_top"), a.label("ep_ok")
    a(f"s_lshl_b32 {s(S_T0)}, s2, 3\ns_add_u32 {s(S_T0)}, {s(S_T0)}, {s(S_WAVE)}\ns_cmp_lg_u32 {s(S_T0)}, 0\ns_cbranch_scc1 {done}")
    a(f"s_mov_b32 {s(S_SPIN)}, 0")
    a(f"{top}:")
    for i in range(4):
        a(f"v_xor_b32 {v(2+i)}, {s(S_NON)}, {v(2+i)}")
    a("v_or_b32 v2, v2, v3\nv_or_b32 v4, v4, v5\nv_or_b32 v2, v2, v4\nv_cmp_ne_u32 vcc, 0, v2")
    a(f"s_cbranch_vccz {ok}")
    a(f"s_add_u32 {s(S_SPIN)}, {s(S_SPIN)}, 1\ns_cmp_ge_u32 {s(S_SPIN)}, {SPIN_MAX}\ns_cbranch_scc1 {ok}")
    epoch_flags_issue(a)
    a(f"s_waitcnt vmcnt(0)\ns_branch {top}")
    a(f"{ok}:")
    a(f"s_mov_b32 {s(S_T0)}, {WS_EP:#x}")
    flag_store(a, S_T0, 8, 9)
    a(f"{done}:")


def kernel(a):
    entry(a)
    prologue(a, False, 1)
    g1_compute(a)
    g1_epilogue(a)
    epoch_pre(a)
    g2_main(a)
    epoch_advance(a)
    stamp_flush(a)
    a("s_endpgm")
    a(f".p2align {opt('AL', 6)}\n" + ".fill 16, 4, 0xbf800000\n" * opt("PAD", 0) + "L_load:")
    prologue(a)
    loader(a)
    a("s_branch L_bj")
    a(f".p2align {opt('AL', 6)}\nL_help:")
    prologue(a, 2 if opt("KV1", 0) else True)
    helper(a)
    a("L_bj:")
    if opt("BST", 0): lstamp(a, 1)
    conv_addr(a)
    if opt("BST", 0): lstamp(a, 2)
    bsync(a, 4 if opt("CEARLY", 0) else 8)
    a(f"s_setprio {opt('PRC', 3)}")
    lstamp(a, 4)
    conv_main(a)
    lstamp(a, 6)
    final(a)
    stamp_flush(a)
    a("s_endpgm")
    a.L += COLD.L
    a("L_end:\ns_endpgm")


HEADER = open(f"cdna_kernels/{NAME}.s.ref").read().split("; Override launch")[0]


def build():
    a = Asm()
    kernel(a)
    out = HEADER + "; @launch grid=(256,1,1) block=(512,1,1) lds=163840\n"
    out += '.amdgcn_target "amdgcn-amd-amdhsa--gfx950"\n.text\n' + a.text()
    out += '.section .rodata,"a"\n.p2align 6\n' + kernel_desc(KNAME)
    return out


if __name__ == "__main__":
    open(sys.argv[1] if len(sys.argv) > 1 else "t_m.s", "w").write(build())
```

```python
import math, os, sys
from asmlib import *

NAME = "parallel_sum__ssm_conv_h3__geglu_ffn__prompt"
KNAME = NAME + "_kernel"
S, D, F = 2048, 512, 1376
NU = F // 16
STAMPS = os.environ.get("STAMPS") == "1"
def opt(name, default):
    return int(os.environ.get(name, default))

WS_HF, WS_KVR, WS_Y2, WS_ST, WS_CSP = 0, 0x600000, 0x800000, 0xA00000, 0xA10000
WS_F1, WS_F2, WS_F3, WS_F4, WS_EP = 0xA80000, 0xA88000, 0xAA0000, 0xAC0000, 0xAE0000
WS_STAMP = 0xC00000
WS_YG = 0x1000000
YSTR = 16384 + 256
WS_SIZE = 0x1500000
NONCE_INC = 0x9E3779B1
OOB = 0x7f000000
R_X, R_WG, R_WU, R_WS, R_K, R_V, R_SK, R_WD, R_OUT, R_H = 4, 8, 12, 16, 20, 24, 28, 32, 36, 40
S_DP = 44
S_EX = 46
(S_WAVE, S_MI, S_NI, S_FB0, S_NBLK, S_T0, S_T1, S_T2, S_T3, S_IT, S_SLOT, S_KC, S_XO, S_WO, S_WO2, S_M0,
 S_WB, S_SH, S_UH, S_TI, S_MT, S_NT, S_NON, S_RING, S_CNT, S_HO, S_DO, S_SPIN) = range(48, 76)
S_C = 76
S_DK, S_HK, S_KEND = 3, S_RING, S_CNT
SLOT, NSLOT = 40960, 3
L_KVT, KVT_STR = 122880, 80
L_CS, L_ST, L_CNT = 135680, 136704, 138752
HSTR = 4640
CH_STR = 4 * HSTR + 4224
L_CONV = 81920
L_XCH = 81920
L_YL = 114688
NRW = 7
KVL = opt("KVL", 0)
CFX, CFW, CFS, CFD = (os.environ.get(k, "") for k in ("CFX", "CFW", "CFS", "CFD"))
SLOTMAP = [2, 3, 4, 5, 6, 0, 1] if KVL else list(range(7))
L_RA0 = 127488
S_RA, S_RB = 101, S_M0
L_CSS = 139264
assert L_KVT + 2 * 64 * KVT_STR <= L_CS and L_CONV + 2 * CH_STR <= L_RA0 and L_RA0 + 8192 <= L_CS and L_CNT + 256 <= L_CSS
W_CNT, W_GATH, W_HP, W_FREE, W_FULL, W_NON, W_C0, W_ISS, W_WD, W_HI, W_WE = 0, 8, 12, 16, 32, 40, 48, 64, 80, 96, 112
S_DUM = 100
C1 = -2.0 * math.log2(math.e) * math.sqrt(2.0 / math.pi)
C2 = C1 * 0.044715
SPIN_MAX = 1 << 16
LSPIN_MAX = 1 << 22


def stamp(a, i):
    if STAMPS:
        a(f"{'s_memtime' if opt('CLK', 0) else 's_memrealtime'} {s(78+2*i,2)}")


def lstamp(a, i):
    if STAMPS and not opt("LDST", 0):
        lab = a.label("ls")
        a(f"s_cmp_ge_u32 {s(S_WB)}, 2\ns_cbranch_scc1 {lab}")
        stamp(a, i)
        a(f"{lab}:")


ITST = STAMPS and opt("ITST", 0)


def it_issue(a):
    if ITST:
        a("s_memrealtime s[96:97]")


def it_take(a, add):
    if ITST:
        a(f"s_add_u32 m0, {s(S_IT)}, {add}\ns_nop 0\nv_writelane_b32 v255, s96, m0")


def stamp_flush(a):
    if not STAMPS:
        return
    if ITST:
        a(f"s_lshl_b32 s96, s2, 3\ns_add_u32 s96, s96, {s(S_WAVE)}\ns_lshl_b32 s96, s96, 8\ns_add_u32 s96, s96, {WS_STAMP + 0x100000:#x}")
        a(f"v_lshlrev_b32 v2, 2, v0\nbuffer_store_dword v255, v2, {s(R_WS,4)}, s96 offen\ns_mov_b32 s96, 0")
    a("s_waitcnt vmcnt(0) lgkmcnt(0)")
    stamp(a, 10)
    a("s_waitcnt lgkmcnt(0)")
    for i in range(11):
        a(f"v_writelane_b32 v1, {s(78+2*i)}, {i}")
    a(f"s_lshl_b32 s78, s2, 3\ns_add_u32 s78, s78, {s(S_WAVE)}\ns_lshl_b32 s78, s78, 6\ns_add_u32 s78, s78, {WS_STAMP:#x}")
    a("v_lshlrev_b32 v2, 2, v0\ns_mov_b64 exec, 0x7ff")
    a(f"buffer_store_dword v1, v2, {s(R_WS,4)}, s78 offen")
    if opt("DBGST", 0):
        lab = a.label("dbg")
        a(f"s_cmp_lg_u32 s78, {WS_STAMP + opt('DBGW', 0)*64 + 100*512:#x}\ns_cbranch_scc1 {lab}")
        a("s_load_dwordx2 s[84:85], s[0:1], 88\ns_mov_b32 s86, 256\ns_mov_b32 s87, 0x20000\nv_readlane_b32 s82, v1, 0\ns_waitcnt lgkmcnt(0)")
        a("v_subrev_u32 v1, s82, v1")
        a("buffer_store_dword v1, v2, s[84:87], 0 offen")
        a(f"{lab}:")


TABLE = [(R_X, 0, S*D*2), (R_WG, 56, D*F*2), (R_WU, 64, D*F*2), (R_WS, 96, WS_SIZE), (R_K, 8, S*D*2), (R_V, 16, S*D*2),
         (R_SK, 24, D*8), (R_WD, 72, D*F*2), (R_OUT, 80, S*D*2), (R_H, 32, S*D*2)]


def entry(a):
    a(f".globl {KNAME}\n.p2align 8\n.type {KNAME},@function\n{KNAME}:")
    a("s_cmp_ge_u32 s2, 256\ns_cbranch_scc1 L_end")
    if opt("CPF", 0):
        n = opt("CPF", 0)
        a.c("pull this workgroup's share of the code into L2 ahead of the instruction fetch")
        a(f"s_getpc_b64 {s(S_EX,2)}\nL_pc:")
        a(f"s_lshr_b32 s3, s2, 3\nv_lshlrev_b32 v2, 5, v0\nv_add_u32 v2, s3, v2\nv_lshlrev_b32 v2, 7, v2\nv_mov_b32 v3, {s(S_EX+1)}")
        a(f"v_cmp_gt_u32 vcc, L_end-L_pc, v2\ns_and_saveexec_b64 {s(S_DP,2)}, vcc\ns_cbranch_execz L_nopf")
        a(f"v_add_co_u32 v2, vcc, {s(S_EX)}, v2\nv_addc_co_u32 v3, vcc, 0, v3, vcc")
        a("global_load_dword v212, v[2:3], off")
        a("L_nopf:\ns_mov_b64 exec, -1")
    a("v_lshrrev_b32 v1, 6, v0")
    a(f"s_load_dwordx2 {s(R_X,2)}, s[0:1], 0\ns_load_dwordx2 {s(R_WS,2)}, s[0:1], 96")
    stamp(a, 0)
    a(f"v_readfirstlane_b32 {s(S_WAVE)}, v1")
    a("v_and_b32 v0, 63, v0")
    a(f"s_cmp_ge_u32 {s(S_WAVE)}, 6\ns_cbranch_scc1 L_help")
    a(f"s_cmp_ge_u32 {s(S_WAVE)}, 4\ns_cbranch_scc1 L_load")


def prologue(a, bar=True, part=3):
    first = (R_X, R_WG, R_WU)
    if part & 1:
        for r, off, size in TABLE:
            if r in first[1:]:
                a(f"s_load_dwordx2 {s(r,2)}, s[0:1], {off}")
    if part & 2:
        for r, off, size in TABLE:
            if r not in first + (R_WS,):
                a(f"s_load_dwordx2 {s(r,2)}, s[0:1], {off}")
        a(f"s_load_dwordx2 {s(S_DP,2)}, s[0:1], 40")
        if STAMPS:
            for i in range(1, 11):
                a(f"s_mov_b32 {s(78+2*i)}, 0")
        if ITST:
            a("v_mov_b32 v255, 0")
    if part & 1 and not bar:
        a.c("LDS hand-off words start at zero")
        a(f"v_mov_b32 v20, 0\nv_lshlrev_b32 v5, 2, v0\nv_add_u32 v5, {L_CNT}, v5\nds_write_b32 v5, v20")
    for r, off, size in TABLE:
        if part & (1 if r in first else 2):
            a(f"s_mov_b32 {s(r+2)}, {size:#x}\ns_mov_b32 {s(r+3)}, 0x20000")
    if part & 1:
        a.c("x = wg&7, j = wg>>3; GEMM1 tile mi = 8*(x&1) + (j&7), ni = 4*(x>>1) + (j>>3); ti = 16*mi + ni")
        a(f"s_and_b32 {s(S_T0)}, s2, 1\ns_lshl_b32 {s(S_T0)}, {s(S_T0)}, 3")
        a(f"s_bfe_u32 {s(S_T1)}, s2, 0x30003\ns_add_u32 {s(S_MI)}, {s(S_T0)}, {s(S_T1)}")
        a(f"s_bfe_u32 {s(S_T0)}, s2, 0x20001\ns_lshl_b32 {s(S_T0)}, {s(S_T0)}, 2")
        a(f"s_lshr_b32 {s(S_T2)}, s2, 6\ns_add_u32 {s(S_NI)}, {s(S_T0)}, {s(S_T2)}")
        NIM = {1: [0,1,2,4, 5,6,7,8, 9,10,11,3, 12,13,14,15], 2: [0,1,2,4, 5,6,8,9, 10,11,3,7, 12,13,14,15],
               3: [0,1,2,3, 4,5,6,7, 12,13,14,15, 8,9,10,11], 4: [0,1,2,4, 5,6,7,8, 13,14,15,3, 9,10,11,12],
               5: [0,4,8,12, 1,5,9,13, 3,7,11,15, 2,6,10,14]}.get(opt("NIM", 5))
        if NIM:
            assert sorted(NIM) == list(range(16))
            tab = sum(x << (4*i) for i, x in enumerate(NIM))
            a.c("column tiles are dealt so that the two-block ones sit on the later-starting slots")
            a(f"s_mov_b32 {s(S_EX)}, {tab & 0xffffffff:#x}\ns_mov_b32 {s(S_EX+1)}, {tab >> 32:#x}\ns_lshl_b32 {s(S_NI)}, {s(S_NI)}, 2")
            a(f"s_lshr_b64 {s(S_EX,2)}, {s(S_EX,2)}, {s(S_NI)}\ns_and_b32 {s(S_NI)}, {s(S_EX)}, 15")
        a.c("first 32-col block fb0 = 3*ni - (ni>>2) - (ni==15); nblk = 2 for ni in {3,7,11,14,15}")
        a(f"s_mul_i32 {s(S_FB0)}, {s(S_NI)}, 3\ns_lshr_b32 {s(S_T0)}, {s(S_NI)}, 2\ns_sub_u32 {s(S_FB0)}, {s(S_FB0)}, {s(S_T0)}")
        a(f"s_cmp_eq_u32 {s(S_NI)}, 15\ns_subb_u32 {s(S_FB0)}, {s(S_FB0)}, 0")
        a(f"s_bitcmp1_b32 0xc888, {s(S_NI)}\ns_cselect_b32 {s(S_NBLK)}, 2, 3")
        a(f"s_and_b32 {s(S_WB)}, {s(S_WAVE)}, 3")
        a.c("GEMM1 DMA lane offsets. x: (l>>3)*1024 + ((l&7) ^ ((4*(w&1) + l>>4)&7))*16 ; W: (l>>2)*2752 + ((l&3) ^ (2*(l>>5)))*16")
        a(f"s_and_b32 {s(S_T0)}, {s(S_WAVE)}, 1\ns_lshl_b32 {s(S_T0)}, {s(S_T0)}, 2")
        a(f"v_lshrrev_b32 v5, 4, v0\nv_add_u32 v5, {s(S_T0)}, v5\nv_and_b32 v6, 7, v0\nv_xor_b32 v5, v5, v6\nv_lshlrev_b32 v5, 4, v5")
        a(f"v_lshrrev_b32 v6, 3, v0\nv_lshl_add_u32 {v(VB_X)}, v6, 10, v5")
        a(f"v_lshrrev_b32 v5, 5, v0\nv_lshlrev_b32 v5, 1, v5\nv_and_b32 v6, 3, v0\nv_xor_b32 v5, v5, v6\nv_lshlrev_b32 v5, 4, v5")
        a(f"v_lshrrev_b32 v6, 2, v0\nv_mul_u32_u24 v6, {F*2}, v6\nv_add_u32 {v(VB_W)}, v6, v5")
        if not bar:
            a(f"s_lshl_b32 {s(S_XO)}, {s(S_MI)}, 17\ns_lshl_b32 {s(S_T0)}, {s(S_WB)}, 13\ns_add_u32 {s(S_XO)}, {s(S_XO)}, {s(S_T0)}")
            a(f"s_mul_i32 {s(S_WO)}, {s(S_WB)}, {16*F*2}\ns_lshl_b32 {s(S_T0)}, {s(S_FB0)}, 6\ns_add_u32 {s(S_WO)}, {s(S_WO)}, {s(S_T0)}")
            a(f"s_cmp_eq_u32 {s(S_NBLK)}, 3\ns_cselect_b32 {s(S_WO2)}, {s(S_WO)}, {OOB:#x}")
            a(f"s_lshl_b32 {s(S_M0)}, {s(S_WB)}, 10")
    if part & 2:
        a(f"s_lshl_b32 {s(S_TI)}, {s(S_MI)}, 4\ns_add_u32 {s(S_TI)}, {s(S_TI)}, {s(S_NI)}")
        if opt("MTL", 1):
            a.c("GEMM2 tile mt = 16*(x&1) + 4*(x>>1) + (j&3), nt = j>>2")
            a(f"s_and_b32 {s(S_T0)}, s2, 1\ns_lshl_b32 {s(S_T0)}, {s(S_T0)}, 4\ns_and_b32 {s(S_T1)}, s2, 6\ns_lshl_b32 {s(S_T1)}, {s(S_T1)}, 1\ns_add_u32 {s(S_T0)}, {s(S_T0)}, {s(S_T1)}")
            a(f"s_bfe_u32 {s(S_T1)}, s2, 0x20003\ns_add_u32 {s(S_MT)}, {s(S_T0)}, {s(S_T1)}")
        else:
            a.c("GEMM2 tile mt = 4*x + (j&3), nt = j>>2")
            a(f"s_and_b32 {s(S_T0)}, s2, 7\ns_lshl_b32 {s(S_T0)}, {s(S_T0)}, 2\ns_bfe_u32 {s(S_T1)}, s2, 0x20003\ns_add_u32 {s(S_MT)}, {s(S_T0)}, {s(S_T1)}")
        a(f"s_lshr_b32 {s(S_NT)}, s2, 5\ns_mov_b32 {s(S_SPIN)}, 0")
    if bar:
        a(f"s_mov_b32 {s(S_UH)}, 0\nv_lshlrev_b32 v4, 4, v0\nv_mov_b32 {v(C_CNT)}, {L_CNT}\nv_mov_b32 {v(C_ONE)}, 1\ns_mov_b32 {s(S_C)}, 0xffff0000")
    if part & 1:
        a("s_waitcnt lgkmcnt(0)")
    if bar is True:
        a("s_barrier")


VB_X, VB_W = 14, 15
C_CNT, C_ONE = 252, 253


def poll(a, vaddr, vtmp):
    top, done = a.label("poll"), a.label("poll_ok")
    a(f"s_mov_b32 {s(S_SPIN)}, 0")
    a(f"{top}:")
    a(f"buffer_load_dword {v(vtmp)}, {v(vaddr)}, {s(R_WS,4)}, 0 offen sc1")
    a("s_waitcnt vmcnt(0)")
    a(f"v_cmp_ne_u32 vcc, {s(S_NON)}, {v(vtmp)}")
    a(f"s_cbranch_vccz {done}")
    a(f"s_sleep {opt('PSG' if vaddr == G_FL else 'PSY', 4)}")
    a(f"s_add_u32 {s(S_SPIN)}, {s(S_SPIN)}, 1\ns_cmp_lt_u32 {s(S_SPIN)}, {SPIN_MAX}\ns_cbranch_scc1 {top}")
    a(f"{done}:")


def poll2_issue(a, vaddr, vt):
    a(f"buffer_load_dwordx2 {v(vt,2)}, {v(vaddr)}, {s(R_WS,4)}, 0 offen sc1")


def poll2_check(a, vaddr, vt):
    top, done = a.label("poll"), a.label("poll_ok")
    a(f"s_mov_b32 {s(S_SPIN)}, 0")
    a(f"{top}:")
    a(f"v_cmp_ne_u32 vcc, {s(S_NON)}, {v(vt)}\nv_cmp_ne_u32 {s(S_EX,2)}, {s(S_NON)}, {v(vt+1)}")
    a(f"s_nop 0\ns_or_b64 vcc, vcc, {s(S_EX,2)}")
    a(f"s_cbranch_scc0 {done}")
    a(f"s_add_u32 {s(S_SPIN)}, {s(S_SPIN)}, 1\ns_cmp_ge_u32 {s(S_SPIN)}, {SPIN_MAX}\ns_cbranch_scc1 {done}")
    a(f"s_sleep {opt('PS2', 1)}")
    poll2_issue(a, vaddr, vt)
    a(f"s_waitcnt vmcnt(0)\ns_branch {top}")
    a(f"{done}:")


class VQ:
    def __init__(self, a):
        self.a, self.q = a, []
    def add(self, tag, n):
        self.q += [tag] * n
    def count(self, *tags):
        last = max((i for i, x in enumerate(self.q) if x in tags), default=-1)
        n = len(self.q) - 1 - last
        assert n <= 63
        return n
    def wait(self, *tags):
        self.a(f"s_waitcnt vmcnt({self.count(*tags)})")


def flag_store(a, soff, vt0, vt1):
    a(f"v_mov_b32 {v(vt0)}, {s(S_NON)}\nv_mov_b32 {v(vt1)}, 0")
    a("s_mov_b64 exec, 1")
    a(f"buffer_store_dword {v(vt0)}, {v(vt1)}, {s(R_WS,4)}, {s(soff)} offen sc1")
    a("s_mov_b64 exec, -1")


def epoch_load(a, vt):
    a(f"v_mov_b32 {v(vt)}, {WS_EP:#x}")
    a(f"buffer_load_dword {v(vt)}, {v(vt)}, {s(R_WS,4)}, 0 offen sc1")


def epoch_take(a, vt):
    a(f"v_readfirstlane_b32 {s(S_NON)}, {v(vt)}")
    a("s_nop 0")
    a(f"s_add_u32 {s(S_NON)}, {s(S_NON)}, {NONCE_INC:#x}")


V_XA0, V_XA1, V_W = 2, 3, 4
V_XC0, V_XC1, V_WC = 7, 8, 9
ACC, F0, F1 = 16, 112, 152
G_ACC, G_WF, G_H = 176, 16, 80
G_L16, G_WD, G_TR, G_TR0, G_TR5, G_FL = 240, 241, 242, 246, 250, 254
NHB, NWF, NSTEP = 6, 4, 11
G_HT = 255


def acc(u, mat, sb):
    return ACC + ((u * 2 + mat) * 4 + sb) * 4


def g1_reads(fr, step, units):
    out = []
    for u in units:
        if u == 'x':
            for sb in range(4):
                out.append(f"ds_read_b128 {v(fr+4*sb,4)}, {v(V_XC1 if step else V_XC0)} offset:{sb*2048}")
            continue
        for mat in range(2):
            r = fr + 16 + (u * 2 + mat) * 4
            for t in range(2):
                out.append(f"ds_read_b64_tr_b16 {v(r+2*t,2)}, {v(V_WC+u)} offset:{mat*12288+step*2048+t*256}")
    return out


def g1_mfmas(fr, units):
    out = []
    for u in units:
        for mat in range(2):
            for sb in range(4):
                c = acc(u, mat, sb)
                out.append(f"v_mfma_f32_16x16x32_bf16 {v(c,4)}, {v(fr+16+(u*2+mat)*4,4)}, {v(fr+4*sb,4)}, {v(c,4)}")
    return out


V_LW, V_FC, V_FL = 12, 13, 192


COLD = Asm()


def g1_step_a(a):
    rd = g1_reads(F1, 1, ['x', 0, 1, 2])
    for i, m in enumerate(g1_mfmas(F0, [0, 1])):
        if i == 0:
            a("s_waitcnt lgkmcnt(8)")
        if i == 8:
            a("s_waitcnt lgkmcnt(12)")
            a(f"ds_read_b32 {v(V_FL)}, {v(V_FL+1)} offset:{W_FULL}")
        a(rd[i])
        a(m)
    a(f"ds_write_b32 {v(V_FL+2)}, {v(V_FC)}")
    lab = a.label("g1_skip")
    a(f"s_cbranch_vccnz {lab}")
    a("s_waitcnt lgkmcnt(15)")
    for l in g1_mfmas(F0, [2]):
        a(l)
    a(f"{lab}:")


def g1_step_b(a):
    mf = g1_mfmas(F1, [0, 1])
    rd = g1_reads(F0, 0, ['x', 0, 1, 2])
    slow, lab, lab2 = a.label("g1_slow"), a.label("g1_skip"), a.label("g1_skip")
    a("s_waitcnt lgkmcnt(9)")
    a(mf[0])
    a(f"v_add_u32 {v(V_XC0)}, {s(S_SLOT)}, {v(V_XA0)}")
    a(mf[1])
    a(f"v_readfirstlane_b32 {s(S_T0)}, {v(V_FL)}")
    a(f"v_add_u32 {v(V_WC)}, {s(S_SLOT)}, {v(V_W)}")
    a(mf[2])
    extra = [f"v_add_u32 {v(V_WC+1)}, {s(S_SLOT)}, {v(V_W+1)}", f"v_add_u32 {v(V_WC+2)}, {s(S_SLOT)}, {v(V_W+2)}",
             f"v_add_u32 {v(V_XC1)}, {s(S_SLOT)}, {v(V_XA1)}", f"v_add_u32 {v(V_FC)}, 1, {v(V_FC)}"]
    flip = f"v_xor_b32 {v(V_FL+1)}, 4, {v(V_FL+1)}"
    a(f"s_cmp_lt_u32 {s(S_T0)}, {s(S_T2)}\ns_cbranch_scc1 {slow}")
    r, e = list(rd), extra + [flip]
    for i, m in enumerate(mf[3:]):
        if i == 5:
            a("s_waitcnt lgkmcnt(13)")
        a(r.pop(0))
        if i < 3:
            a(r.pop(0))
        if e:
            a(e.pop(0))
        a(m)
    assert not r
    a(f"s_cbranch_vccnz {lab}")
    a("s_waitcnt lgkmcnt(15)")
    for l in g1_mfmas(F1, [2]):
        a(l)
    a(f"{lab}:")
    if ITST:
        it_issue(a)
        a("s_waitcnt lgkmcnt(0)")
        it_take(a, 16)
    a(f"s_cmp_lt_u32 {s(S_IT)}, 8")
    a("s_cbranch_scc1 g1_loop")
    main, a = a, COLD
    a.nlabel = main.nlabel + 5000
    a.c("next chunk not in yet: finish this one first")
    a(f"{slow}:")
    a("s_waitcnt lgkmcnt(0)")
    for l in interleave(mf[3:], extra, 0, 1):
        a(l)
    a(f"s_cbranch_vccnz {lab2}")
    for l in g1_mfmas(F1, [2]):
        a(l)
    a(f"{lab2}:")
    lds_min_wait(a, V_FL+1, W_FULL, 1, s(S_T2), V_FL)
    if ITST:
        it_issue(a)
        a("s_waitcnt lgkmcnt(0)")
        it_take(a, 32)
    for l in rd:
        a(l)
    a(flip)
    a("s_branch g1_loop")


def dma_chunk0(a):
    for i in range(4):
        a(f"s_add_u32 m0, {s(S_M0)}, {i*4096}")
        a(f"s_add_u32 {s(S_XO)}, {s(S_XO)}, 32768" if i else "s_nop 0")
        a(f"buffer_load_dwordx4 {v(VB_X)}, {s(R_X,4)}, {s(S_XO)} offen {CFX} lds")
    for blk in range(3):
        for mat in range(2):
            a(f"s_add_u32 m0, {s(S_M0)}, {16384 + (mat*3+blk)*4096 - 64*blk}")
            a("s_nop 0")
            a(f"buffer_load_dwordx4 {v(VB_W)}, {s(R_WU if mat else R_WG,4)}, {s(S_WO2 if blk == 2 else S_WO)} offen offset:{64*blk} {CFW} lds")


def spf(a, srd, sbase, offs):
    for o in offs:
        a(f"s_buffer_load_dword {s(S_DUM)}, {s(srd,4)}, {s(sbase)} offset:{o:#x}")


def lds_min_wait(a, vaddr, off, n, target, vt, nap=None):
    lab = a.label("lw")
    a(f"{lab}:")
    a(f"ds_read_b{32*n} {v(vt,n)}, {v(vaddr)} offset:{off}")
    a("s_waitcnt lgkmcnt(0)")
    if n == 4:
        a(f"v_min3_u32 {v(vt)}, {v(vt)}, {v(vt+1)}, {v(vt+2)}\nv_min_u32 {v(vt)}, {v(vt)}, {v(vt+3)}")
    elif n == 2:
        a(f"v_min_u32 {v(vt)}, {v(vt)}, {v(vt+1)}")
    a("s_nop 0")
    a(f"v_readfirstlane_b32 {s(S_T0)}, {v(vt)}")
    a("s_nop 0")
    done = a.label("lw_ok")
    a(f"s_cmp_ge_u32 {s(S_T0)}, {target}\ns_cbranch_scc1 {done}")
    if nap is None:
        nap = opt("NAP", 1) if vaddr == C_CNT else 0
    if nap:
        a(f"s_sleep {nap}")
    a(f"s_add_u32 {s(S_SPIN)}, {s(S_SPIN)}, 1\ns_cmp_lt_u32 {s(S_SPIN)}, {LSPIN_MAX}\ns_cbranch_scc1 {lab}")
    a(f"{done}:")


def lds_inc(a, vaddr, vone, off):
    a(f"s_mov_b64 exec, 1\nds_add_u32 {v(vaddr)}, {v(vone)} offset:{off}\ns_mov_b64 exec, -1")


WDE = opt("WDE", 0)


def wd_setup(a, first, S_WB=S_WB):
    a.c("Wd DMA lane offset: (l>>3)*1024 + ((l&7) ^ (((l>>4)&3)<<1))*16")
    a(f"v_lshrrev_b32 v12, 4, v0\nv_lshlrev_b32 v13, 1, v12\nv_and_b32 v14, 7, v0\nv_xor_b32 v13, v13, v14\nv_lshlrev_b32 v13, 4, v13\nv_lshrrev_b32 v14, 3, v0\nv_lshl_add_u32 {v(G_WD)}, v14, 10, v13")
    a(f"s_lshl_b32 {s(S_KC)}, {s(S_WB)}, 12")
    a(f"s_lshl_b32 {s(S_RA)}, {s(S_WB)}, 13\ns_add_u32 {s(S_RB)}, {s(S_RA)}, {131072 + 16384}\ns_add_u32 {s(S_RA)}, {s(S_RA)}, 131072\ns_cmp_eq_u32 {s(S_WB)}, 0\ns_cselect_b32 {s(S_RA)}, {L_RA0}, {s(S_RA)}")
    if opt("ROT", 0):
        a(f"s_and_b32 {s(S_T0)}, {s(S_MT)}, 3\ns_mul_i32 {s(S_T0)}, {s(S_T0)}, 3\ns_mul_i32 {s(S_T1)}, {s(S_NT)}, 7\ns_add_u32 {s(S_T0)}, {s(S_T0)}, {s(S_T1)}")
        a(f"s_mul_i32 {s(S_T1)}, {s(S_T0)}, 187\ns_lshr_b32 {s(S_T1)}, {s(S_T1)}, 11\ns_mul_i32 {s(S_T1)}, {s(S_T1)}, 11\ns_sub_u32 {s(S_T0)}, {s(S_T0)}, {s(S_T1)}")
    else:
        a(f"s_mov_b32 {s(S_T0)}, {opt('ROTC', 0)}")
    a(f"s_add_u32 {s(S_DK)}, {s(S_T0)}, {first}\ns_sub_u32 {s(S_T1)}, {s(S_DK)}, 11\ns_cmp_ge_u32 {s(S_DK)}, 11\ns_cselect_b32 {s(S_DK)}, {s(S_T1)}, {s(S_DK)}")
    a(f"s_mul_i32 {s(S_DO)}, {s(S_WB)}, {NSTEP*32768}\ns_lshl_b32 {s(S_T1)}, {s(S_NT)}, 7\ns_add_u32 {s(S_DO)}, {s(S_DO)}, {s(S_T1)}")


def g2_setup(a):
    a(f"v_lshlrev_b32 {v(G_L16)}, 4, v0")
    wd_setup(a, NRW)
    a(f"s_mov_b32 {s(S_HK)}, {s(S_T0)}")
    a(f"s_cmp_eq_u32 {s(S_WAVE)}, 3\ns_cselect_b32 {s(S_KEND)}, 10, 99")
    a.c("tr address: w*4096 + (l>>2)*128 + ((db ^ ((l>>3)&3))*32) + (l&3)*8")
    a(f"v_lshrrev_b32 v13, 2, v0\nv_lshlrev_b32 v13, 7, v13\nv_and_b32 v15, 3, v0\nv_lshl_add_u32 v13, v15, 3, v13\nv_add_u32 v13, {s(S_KC)}, v13\nv_and_b32 v14, 3, v14")
    a(f"s_sub_u32 {s(S_T1)}, {s(S_RA)}, {s(S_KC)}")
    for db in range(4):
        a(f"v_xor_b32 v15, {db}, v14\nv_lshl_add_u32 {v(G_TR+db)}, v15, 5, v13\nv_add_u32 {v(G_TR0+db)}, {s(S_T1)}, {v(G_TR+db)}\nv_add_u32 {v(G_TR5+db)}, 0x10000, {v(G_TR+db)}")
    a(f"s_mul_i32 {s(S_HO)}, {s(S_MT)}, {2*NU*1024}\ns_mul_i32 {s(S_T0)}, {s(S_WAVE)}, {NSTEP*2048}\ns_add_u32 {s(S_HO)}, {s(S_HO)}, {s(S_T0)}")
    a.c("H flags this wave needs: F3[mt*32 + 8w + (l&7)]")
    a(f"s_lshl_b32 {s(S_T0)}, {s(S_MT)}, 2\ns_add_u32 {s(S_T0)}, {s(S_T0)}, {s(S_WAVE)}\ns_lshl_b32 {s(S_T0)}, {s(S_T0)}, 10\ns_add_u32 {s(S_T0)}, {s(S_T0)}, {WS_F3:#x}")
    if opt("PROG", 1):
        a.c("lane (p = l&15, h = (l>>4)&1) watches the producer of unit U = 2*((rot + p) mod 11) + h")
        a(f"v_and_b32 v12, 15, v0\nv_min_u32 v12, 10, v12\nv_add_u32 v12, {s(S_HK)}, v12\nv_subrev_u32 v13, 11, v12\nv_min_u32 v12, v12, v13")
        a("v_bfe_u32 v13, v0, 4, 1\nv_lshl_add_u32 v12, v12, 1, v13\nv_mul_u32_u24 v13, 0x56, v12\nv_lshrrev_b32 v13, 8, v13")
        a(f"s_cmp_eq_u32 {s(S_WAVE)}, 3\ns_cselect_b32 {s(S_T1)}, 2, 3\nv_lshrrev_b32 v12, 1, v12\nv_subrev_u32 v12, {s(S_T1)}, v12")
        a(f"v_max_i32 v12, v12, v13\nv_min_u32 v12, 7, v12\nv_lshlrev_b32 v12, 7, v12\nv_add_u32 {v(G_FL)}, {s(S_T0)}, v12")
        return
    if not opt("HT", 0):
        a(f"v_and_b32 v12, 7, v0\nv_lshlrev_b32 v12, 7, v12\nv_add_u32 {v(G_FL)}, {s(S_T0)}, v12")
        return
    a.c("lane (U = l>>1, p = l&1) watches the producer of unit U and pulls line nt of that unit into L2")
    a(f"s_cmp_eq_u32 {s(S_WAVE)}, 3\ns_cselect_b32 {s(S_T1)}, 2, 3\ns_cselect_b32 {s(S_T2)}, 19, 21")
    a(f"v_lshrrev_b32 v12, 1, v0\nv_min_u32 v12, {s(S_T2)}, v12\nv_mul_u32_u24 v13, 0x56, v12\nv_lshrrev_b32 v13, 8, v13")
    a(f"v_and_b32 v15, 1, v0\nv_mul_u32_u24 v15, {NU}, v15\nv_add_u32 v15, v15, v12\nv_lshlrev_b32 v15, 10, v15\ns_lshl_b32 {s(S_T2)}, {s(S_NT)}, 7\nv_add_u32 {v(G_HT)}, {s(S_T2)}, v15")
    a(f"v_lshrrev_b32 v12, 1, v12\nv_subrev_u32 v12, {s(S_T1)}, v12")
    a(f"v_max_i32 v12, v12, v13\nv_lshlrev_b32 v12, 7, v12\nv_add_u32 {v(G_FL)}, {s(S_T0)}, v12")


def g1_compute(a):
    a(f"s_setprio {opt('PRA', 3)}")
    if opt("TOUCH", 0):
        l1, l2 = a.label("tc"), a.label("tc")
        a(f"s_mov_b32 {s(R_K+3)}, 0x20000")
        a(f"s_cmp_ge_u32 {s(S_WAVE)}, 2\ns_cbranch_scc1 {l1}")
        a(f"s_lshl_b32 {s(S_T2)}, {s(S_WAVE)}, 8\ns_add_u32 {s(R_K)}, {s(R_X)}, {s(S_T2)}\ns_addc_u32 {s(R_K+1)}, {s(R_X+1)}, 0\ns_mov_b32 {s(R_K+2)}, {S*D*2 - 256:#x}")
        RX0 = R_X
        globals()["R_X"] = R_K
        touch_x(a, (0, 4) if opt("TOUCH", 0) == 2 else (0,), 1)
        globals()["R_X"] = RX0
        a(f"s_branch {l2}\n{l1}:")
        a(f"s_cmp_eq_u32 {s(S_WAVE)}, 2\ns_cselect_b64 {s(R_K,2)}, {s(R_WG,2)}, {s(R_WU,2)}\ns_mov_b32 {s(R_K+2)}, {D*F*2:#x}")
        touch_w(a, 0, (R_K,), 1)
        a(f"{l2}:")
    dma_chunk0(a)
    a("s_barrier")
    prologue(a, False, 2)
    if opt("SPF", 0):
        a.c("warm the lines the column sums need: rows 32mi + 16*(w&1).. of gate (w<2) or up")
        a(f"s_cmp_lt_u32 {s(S_WAVE)}, 2\ns_cselect_b64 {s(R_K,2)}, {s(R_WG,2)}, {s(R_WU,2)}\ns_mov_b32 {s(R_K+2)}, {D*F*2:#x}")
        a(f"s_lshl_b32 {s(S_T0)}, {s(S_MI)}, 1\ns_and_b32 {s(S_T1)}, {s(S_WAVE)}, 1\ns_add_u32 {s(S_T0)}, {s(S_T0)}, {s(S_T1)}\ns_mul_i32 {s(S_XO)}, {s(S_T0)}, {16*F*2}")
        a(f"s_lshl_b32 {s(S_T1)}, {s(S_FB0)}, 6\ns_add_u32 {s(S_XO)}, {s(S_XO)}, {s(S_T1)}")
        spf(a, R_K, S_XO, [r*F*2 + h*128 for r in range(7) for h in range(2)])
    a(f"s_and_b32 {s(S_SH)}, {s(S_WAVE)}, 1\ns_lshr_b32 {s(S_UH)}, {s(S_WAVE)}, 1")
    a.c("x fragment address: (64*sh + s16)*128 + ((kg ^ ((s16>>1)&7))*16)")
    a("v_and_b32 v10, 15, v0\nv_lshrrev_b32 v11, 4, v0\nv_lshrrev_b32 v12, 1, v10\nv_xor_b32 v12, v12, v11\nv_lshlrev_b32 v12, 4, v12")
    a(f"v_lshl_add_u32 {v(V_XA0)}, v10, 7, v12\ns_lshl_b32 {s(S_T0)}, {s(S_SH)}, 13\nv_add_u32 {v(V_XA0)}, {s(S_T0)}, {v(V_XA0)}")
    a(f"v_xor_b32 {v(V_XA1)}, 64, {v(V_XA0)}")
    a.c("W fragment address: 16384 + blk*4096 + kg*512 + r*64 + ((h^(kg&1))*32) + c*8")
    a("v_lshlrev_b32 v12, 9, v11\nv_bfe_u32 v13, v0, 2, 2\nv_lshl_add_u32 v12, v13, 6, v12\nv_and_b32 v13, 3, v0\nv_lshl_add_u32 v12, v13, 3, v12")
    a("v_and_b32 v13, 1, v11\nv_lshl_add_u32 v12, v13, 5, v12")
    a(f"s_mul_i32 {s(S_T0)}, {s(S_UH)}, {s(S_NBLK)}")
    for u in range(3):
        a(f"s_add_u32 {s(S_T1)}, {s(S_T0)}, {u}\ns_and_b32 {s(S_T2)}, {s(S_T1)}, 1\ns_lshl_b32 {s(S_T2)}, {s(S_T2)}, 5")
        a(f"s_lshr_b32 {s(S_T1)}, {s(S_T1)}, 1\ns_lshl_b32 {s(S_T1)}, {s(S_T1)}, 12\ns_add_u32 {s(S_T1)}, {s(S_T1)}, 16384")
        a(f"v_xor_b32 {v(V_W+u)}, {s(S_T2)}, v12\nv_add_u32 {v(V_W+u)}, {s(S_T1)}, {v(V_W+u)}")
    g2_setup(a)
    ep_setup(a)
    for i in range(48):
        a(f"v_pk_mov_b32 {v(ACC+2*i,2)}, 0, 0")
    for i in range(5):
        a(f"v_mov_b32 {v(V_XC0+i)}, {v(V_XA0+i)}")
    a(f"s_mov_b32 {s(S_IT)}, 0\ns_mov_b32 {s(S_SLOT)}, 0")
    a(f"v_mov_b32 {v(V_LW)}, {L_CNT}\nv_mov_b32 {v(V_FL+1)}, {L_CNT}\nv_mov_b32 {v(V_FC)}, 1\ns_lshl_b32 {s(S_T0)}, {s(S_WAVE)}, 2\ns_add_u32 {s(S_T0)}, {s(S_T0)}, {L_CNT + W_FREE}\nv_mov_b32 {v(V_FL+2)}, {s(S_T0)}")
    a.c("vcc != 0 marks a two-block tile")
    a(f"s_cmp_eq_u32 {s(S_NBLK)}, 2\ns_cselect_b64 vcc, -1, 0")
    if opt("SPF", 0):
        spf(a, R_K, S_XO, [r*F*2 + h*128 for r in range(7, 16) for h in range(2)])
    stamp(a, 1)
    a("s_waitcnt vmcnt(0)")
    a(f"ds_write_b32 {v(V_FL+2)}, {v(V_FC)} offset:{W_C0 - W_FREE}")
    lds_min_wait(a, V_LW, W_C0, 4, 1, 196)
    stamp(a, 2)
    for l in g1_reads(F0, 0, ['x', 0, 1, 2]):
        a(l)
    a("s_waitcnt lgkmcnt(0)")
    if opt("LAL", 0):
        a(f".p2alignl {opt('LAL', 0)}, 0xbf800000")
    a("g1_loop:")
    a(f"s_add_u32 {s(S_SLOT)}, {s(S_SLOT)}, {SLOT}\ns_cmp_eq_u32 {s(S_SLOT)}, {NSLOT*SLOT}\ns_cselect_b32 {s(S_SLOT)}, 0, {s(S_SLOT)}")
    a(f"s_add_u32 {s(S_IT)}, {s(S_IT)}, 1\ns_and_b32 {s(S_T2)}, {s(S_IT)}, 7")
    g1_step_a(a)
    if ITST:
        it_issue(a)
        a("s_waitcnt lgkmcnt(0)")
        it_take(a, 0)
    g1_step_b(a)
    stamp(a, 3)


def wd_dma(i, rings=1):
    sl = SLOTMAP[i % NRW]
    ops = []
    n = 4 * rings
    for q in range(n):
        pre = f"s_lshl_b32 {s(S_T3)}, {s(S_DK)}, 15\ns_add_u32 {s(S_T3)}, {s(S_T3)}, {s(S_DO)}\n" if q == 0 else ""
        inc = 8192 if q != 4 else 2*NSTEP*32768 - 3*8192
        mid = "s_nop 0" if q == 0 else f"s_add_u32 {s(S_T3)}, {s(S_T3)}, {inc}"
        post = f"\ns_add_u32 {s(S_DK)}, {s(S_DK)}, 1\ns_cmp_eq_u32 {s(S_DK)}, 11\ns_cselect_b32 {s(S_DK)}, 0, {s(S_DK)}" if q == n - 1 else ""
        m0 = f"{s(S_RB if q >> 2 else S_RA)}, {sl*4096 + (q&3)*1024}" if sl < 2 else f"{s(S_KC)}, {(sl-2)*16384 + (q&3)*1024 + (q>>2)*8192}"
        ops.append(pre + f"s_add_u32 m0, {m0}\n{mid}\n"
                   f"buffer_load_dwordx4 {v(G_WD)}, {s(R_WD,4)}, {s(S_T3)} offen {CFD} lds" + post)
    return ops


def h_loads(i):
    hb = G_H + (i % NHB) * 16
    pre = (f"s_lshl_b32 {s(S_T1)}, {s(S_HK)}, 11\ns_add_u32 {s(S_T1)}, {s(S_T1)}, {s(S_HO)}\n"
           f"s_cmp_eq_u32 {s(S_HK)}, {s(S_KEND)}\ns_cselect_b32 {s(S_T1)}, {OOB:#x}, {s(S_T1)}\n")
    post = f"\ns_add_u32 {s(S_HK)}, {s(S_HK)}, 1\ns_cmp_eq_u32 {s(S_HK)}, 11\ns_cselect_b32 {s(S_HK)}, 0, {s(S_HK)}"
    ld = lambda r, off: f"buffer_load_dwordx4 {v(r,4)}, {v(G_L16)}, {s(R_WS,4)}, {s(S_T1)} offen offset:{off} sc1"
    return [pre + ld(hb, 0), ld(hb+4, 1024), f"s_add_u32 {s(S_T1)}, {s(S_T1)}, {NU*1024}\n" + ld(hb+8, 0), ld(hb+12, 1024) + post]


S_H0, S_H1 = S_XO, S_WO
E_A, E_ST = 208, 144


def ep_setup(a):
    a.c("epilogue addresses: row constants, column sums; HF offset = ((4*mi + 2*sh + pp)*86 + 2*fb0 + uu)*1024 + lane*16")
    a(f"v_and_b32 v10, 15, v0\nv_lshlrev_b32 v10, 4, v10\ns_lshl_b32 {s(S_T0)}, {s(S_SH)}, 10\ns_add_u32 {s(S_T0)}, {s(S_T0)}, {L_ST}\nv_add_u32 {v(E_A)}, {s(S_T0)}, v10")
    a(f"s_mul_i32 {s(S_T1)}, {s(S_UH)}, {s(S_NBLK)}\ns_lshl_b32 {s(S_T0)}, {s(S_T1)}, 6\ns_add_u32 {s(S_T0)}, {s(S_T0)}, {L_CS}")
    a(f"v_and_b32 v11, 48, v0\nv_add_u32 {v(E_A+1)}, {s(S_T0)}, v11")
    a(f"s_lshl_b32 {s(S_T0)}, {s(S_MI)}, 1\ns_add_u32 {s(S_T0)}, {s(S_T0)}, {s(S_SH)}\ns_mul_i32 {s(S_T0)}, {s(S_T0)}, {2*NU}")
    a(f"s_lshl_b32 {s(S_T2)}, {s(S_FB0)}, 1\ns_add_u32 {s(S_T0)}, {s(S_T0)}, {s(S_T2)}\ns_add_u32 {s(S_T0)}, {s(S_T0)}, {s(S_T1)}\ns_lshl_b32 {s(S_H0)}, {s(S_T0)}, 10")
    a(f"s_add_u32 {s(S_H1)}, {s(S_H0)}, {NU*1024}")
    a(f"s_lshl_b32 {s(S_T0)}, {s(S_SH)}, 2\ns_add_u32 {s(S_T0)}, {s(S_T0)}, {L_CNT}\nv_mov_b32 v15, {s(S_T0)}")


def g1_epilogue(a):
    VST, VCS, T = 112, 216, 168
    top, ok = a.label("ga"), a.label("ga_ok")
    a(f"{top}:")
    a(f"ds_read_b32 v14, {v(V_LW)} offset:{W_GATH}")
    for sb in range(4):
        a(f"ds_read_b128 {v(E_ST+4*sb,4)}, {v(E_A)} offset:{sb*256}")
    for u in range(3):
        for mat in range(2):
            a(f"ds_read_b128 {v(VCS+4*(u*2+mat),4)}, {v(E_A+1)} offset:{mat*512+u*64}")
    a(f"ds_read_b32 v1, {v(V_LW)} offset:{W_NON}")
    a(f"v_mov_b32 v13, 1\ns_waitcnt lgkmcnt(7)\nv_readfirstlane_b32 {s(S_T0)}, v14")
    for i in range(4):
        a(f"v_mov_b32 {v(VST+2*i)}, {v(E_ST+i)}\nv_mov_b32 {v(VST+2*i+1)}, {v(E_ST+i)}")
    a(f"s_cmp_ge_u32 {s(S_T0)}, 2\ns_cbranch_scc1 {ok}")
    a(f"s_add_u32 {s(S_SPIN)}, {s(S_SPIN)}, 1\ns_cmp_lt_u32 {s(S_SPIN)}, {LSPIN_MAX}\ns_cbranch_scc1 {top}")
    a(f"{ok}:")
    stamp(a, 4)
    for i in range(4, 16):
        a(f"v_mov_b32 {v(VST+2*i)}, {v(E_ST+i)}\nv_mov_b32 {v(VST+2*i+1)}, {v(E_ST+i)}")
    a("s_waitcnt lgkmcnt(0)")
    a(f"v_readfirstlane_b32 {s(S_NON)}, v1")
    lab, lab2 = a.label("ep_two"), a.label("ep_done")
    if opt("EPST", 0): stamp(a, 3)

    def group(u, pp):
        out = []
        o = T + 32 + 4 * pp
        pairs = [(2*pp + (q >> 1), q & 1, T + 8*q) for q in range(4)]
        def each(f):
            for sb, h, t in pairs:
                g, up, st = acc(u, 0, sb) + 2*h, acc(u, 1, sb) + 2*h, VST + 8*sb
                cg, cu = VCS + 4*(u*2) + 2*h, VCS + 4*(u*2+1) + 2*h
                out.append(f(g, up, st, cg, cu, t))
        each(lambda g, up, st, cg, cu, t: f"v_pk_fma_f32 {v(g,2)}, {v(cg,2)}, {v(st,2)}, {v(g,2)} neg_lo:[0,1,0] neg_hi:[0,1,0]")
        each(lambda g, up, st, cg, cu, t: f"v_pk_mul_f32 {v(t,2)}, {v(g,2)}, {v(g,2)}")
        each(lambda g, up, st, cg, cu, t: f"v_pk_fma_f32 {v(t,2)}, {v(t,2)}, {v(st+4,2)}, {v(st+2,2)}")
        each(lambda g, up, st, cg, cu, t: f"v_pk_mul_f32 {v(t,2)}, {v(t,2)}, {v(g,2)}")
        each(lambda g, up, st, cg, cu, t: f"v_exp_f32 {v(t)}, {v(t)}\nv_exp_f32 {v(t+1)}, {v(t+1)}")
        each(lambda g, up, st, cg, cu, t: f"v_pk_fma_f32 {v(up,2)}, {v(cu,2)}, {v(st,2)}, {v(up,2)} neg_lo:[0,1,0] neg_hi:[0,1,0]")
        each(lambda g, up, st, cg, cu, t: f"v_pk_fma_f32 {v(t,2)}, {v(t,2)}, {v(st+6,2)}, {v(st+6,2)}")
        each(lambda g, up, st, cg, cu, t: f"v_rcp_f32 {v(t)}, {v(t)}\nv_rcp_f32 {v(t+1)}, {v(t+1)}")
        each(lambda g, up, st, cg, cu, t: f"v_pk_mul_f32 {v(g,2)}, {v(g,2)}, {v(up,2)}")
        each(lambda g, up, st, cg, cu, t: f"v_pk_mul_f32 {v(t,2)}, {v(t,2)}, {v(g,2)}")
        for q, (sb, h, t) in enumerate(pairs):
            out.append(f"v_cvt_pk_bf16_f32 {v(o+q)}, {v(t)}, {v(t+1)}")
        if not opt("NOST", 0):
            out.append(f"buffer_store_dwordx4 {v(o,4)}, {v(G_L16)}, {s(R_WS,4)}, {s(S_H1 if pp else S_H0)} offen offset:{u*1024} {'sc1' if not opt('PLST', 0) else ''}")
        return out

    def stage_flag(n, W_WD=W_WD):
        ok = a.label("wd_ok")
        a(f"s_waitcnt lgkmcnt(0)\nv_readfirstlane_b32 {s(S_T0)}, v14\ns_nop 0\ns_cmp_ge_u32 {s(S_T0)}, {n}\ns_cbranch_scc1 {ok}")
        lds_min_wait(a, 15, W_WD, 1, n, 14)
        a(f"{ok}:")

    rd_flag = f"ds_read_b32 v14, v15 offset:{W_WD}"
    a.c("as a unit's accumulators retire they take two Wd steps; the freed ring slots are refilled")
    for l in group(0, 0) + [f"ds_read_b32 v14, v15 offset:{W_WE if WDE else W_WD}"] + group(0, 1):
        a(l)
    if opt("EPST", 0): stamp(a, 1)
    if not opt("NOTR", 0):
        stage_flag(1, W_WE if WDE else W_WD)
    if opt("EPST", 0): stamp(a, 2)
    for l in interleave(group(1, 0), [] if opt("NOTR", 0) else g2_tr(0) + g2_tr(1), 0, 2):
        a(l)
    a(rd_flag)
    for l in group(1, 1):
        a(l)
    a(f"s_cbranch_vccnz {lab}")
    for l in group(2, 0) + [rd_flag] + group(2, 1):
        a(l)
    a(f"{lab}:")
    a.c("release the conv waves")
    if not opt("CEARLY", 0):
        a("s_mov_b64 exec, 1\nds_add_u32 v12, v13\ns_mov_b64 exec, -1")
    stamp(a, 5)
    a.c("publish: F3[(2mi + sh)*32 + ni*2 + uh]")
    a(f"s_lshl_b32 {s(S_T0)}, {s(S_MI)}, 1\ns_add_u32 {s(S_T0)}, {s(S_T0)}, {s(S_SH)}\ns_lshl_b32 {s(S_T0)}, {s(S_T0)}, 4\ns_add_u32 {s(S_T0)}, {s(S_T0)}, {s(S_NI)}")
    a(f"s_lshl_b32 {s(S_T0)}, {s(S_T0)}, 1\ns_add_u32 {s(S_T0)}, {s(S_T0)}, {s(S_UH)}\ns_lshl_b32 {s(S_T0)}, {s(S_T0)}, 7\ns_add_u32 {s(S_T2)}, {s(S_T0)}, {WS_F3:#x}")
    a("s_waitcnt lgkmcnt(0)")
    for l in wd_dma(7) + wd_dma(8):
        a(l)
    a("s_waitcnt vmcnt(8)")
    flag_store(a, S_T2, 10, 11)
    stamp(a, 6)
    stage_flag(2)
    for l in g2_tr(2) + g2_tr(3):
        a(l)
    a("s_waitcnt lgkmcnt(0)")
    if not opt("W9L", 0):
        for l in wd_dma(9) + wd_dma(10):
            a(l)


def g2_tr(i):
    wf = G_WF + (i % NWF) * 16
    sl = SLOTMAP[i % NRW]
    base, off = (G_TR0, sl*4096) if sl < 2 else (G_TR5, 0) if sl == 6 else (G_TR, (sl-2)*16384)
    return [f"ds_read_b64_tr_b16 {v(wf+4*db+2*t,2)}, {v(base+db)} offset:{off + t*2048}" for db in range(4) for t in range(2)]


def g2_swaps(i, p):
    hb = G_H + (i % NHB) * 16
    return [f"v_swap_b32 {v(hb+8*p+2+k)}, {v(hb+8*p+4+k)}" for k in range(2)]


def g2_need(n):
    g2_need.k += 1
    top, ok = f"g2p_{g2_need.k}", f"g2ok_{g2_need.k}"
    return (f"s_cmp_ge_u32 {s(S_IT)}, {n}\ns_cbranch_scc1 {ok}\n{top}:\n"
            f"buffer_load_dword v10, {v(G_FL)}, {s(R_WS,4)}, 0 offen sc1\ns_add_u32 {s(S_SPIN)}, {s(S_SPIN)}, 1\ns_waitcnt vmcnt(0)\n"
            f"v_cmp_ne_u32 vcc, {s(S_NON)}, v10\ns_cmp_ge_u32 {s(S_SPIN)}, {SPIN_MAX}\ns_cbranch_scc1 {ok}\n"
            f"s_lshr_b32 {s(S_T0)}, vcc_lo, 16\ns_or_b32 {s(S_T0)}, {s(S_T0)}, vcc_lo\ns_bitset1_b32 {s(S_T0)}, 11\ns_ff1_i32_b32 {s(S_IT)}, {s(S_T0)}\n"
            f"s_cmp_ge_u32 {s(S_IT)}, {n}\ns_cbranch_scc1 {ok}\ns_sleep {opt('GSL', 2)}\ns_branch {top}\n{ok}:")
g2_need.k = 0


def g2_main(a):
    PROG = opt("PROG", 1)
    a(f"s_setprio {opt('PRG', 2)}")
    if PROG:
        a(f"s_mov_b32 {s(S_IT)}, 0\ns_mov_b32 {s(S_SPIN)}, 0")
        a(g2_need(PROG))
    elif opt("HT", 0):
        top, done = a.label("hp"), a.label("hp_ok")
        a(f"s_mov_b32 {s(S_SPIN)}, 0\ns_mov_b32 {s(S_EX)}, -1\ns_mov_b32 {s(S_EX+1)}, 0xfff")
        a(f"{top}:")
        a(f"buffer_load_dword v10, {v(G_FL)}, {s(R_WS,4)}, 0 offen sc1")
        a("s_waitcnt vmcnt(0)")
        a(f"v_cmp_ne_u32 vcc, {s(S_NON)}, v10")
        a(f"s_cbranch_vccz {done}")
        a(f"s_andn2_b64 exec, {s(S_EX,2)}, vcc\ns_and_b64 {s(S_EX,2)}, {s(S_EX,2)}, vcc")
        skip = a.label("hp_s")
        a(f"s_cbranch_execz {skip}")
        a(f"buffer_load_dword v11, {v(G_HT)}, {s(R_WS,4)}, {s(S_HO)} offen sc1")
        a(f"{skip}:")
        a("s_mov_b64 exec, -1\ns_sleep 1")
        a(f"s_add_u32 {s(S_SPIN)}, {s(S_SPIN)}, 1\ns_cmp_lt_u32 {s(S_SPIN)}, {SPIN_MAX}\ns_cbranch_scc1 {top}")
        a(f"{done}:")
    else:
        poll(a, G_FL, 10)
    stamp(a, 7)
    q = VQ(a)
    def hq(i):
        q.add(("h", i, 0), 2); q.add(("h", i, 1), 2)
    for i in range(NHB - 1):
        if PROG and i >= PROG:
            a(g2_need(i + 1))
        for op in h_loads(i):
            a(op)
        hq(i)
    if opt("W9L", 0):
        for l in wd_dma(9) + wd_dma(10):
            a(l)
        q.add("wd", 8)
    lds_min_wait(a, 15, W_WD, 1, 3, 14)
    if opt("G2ST", 0): stamp(a, 1)
    q.wait(("h", 0, 0))
    if opt("G2ST", 0): stamp(a, 2)
    for l in g2_swaps(0, 0):
        a(l)
    a("s_nop 1")
    for i in range(NSTEP):
        if opt("G2ST", 0) and i in (2, 4, 6, 8):
            stamp(a, 2 + i // 2)
        if i == opt("HIS", 6):
            lds_inc(a, V_LW, 13, W_HI)
        wf, hb = G_WF + (i % NWF) * 16, G_H + (i % NHB) * 16
        ld = h_loads(i + NHB - 1) if i + NHB - 1 < NSTEP else []
        if ld and PROG and i + NHB > PROG:
            ld[0] = g2_need(i + NHB) + "\n" + ld[0]
        tr = g2_tr(i + 2) if NWF <= i + 2 < NSTEP else []
        n = 0
        for p in range(2):
            for db in range(4):
                for sb in (2*p, 2*p + 1):
                    c = G_ACC + (db * 4 + sb) * 4
                    a(f"v_mfma_f32_16x16x32_bf16 {v(c,4)}, {v(wf+4*db,4)}, {v(hb+4*sb,4)}, {v(c,4) if i else 0}")
                    n += 1
                    if n == 4:
                        q.wait(("h", i, 1))
                        for l in g2_swaps(i, 1):
                            a(l)
                    if n in (1, 5, 8, 11) and ld:
                        a(ld.pop(0))
                        q.add(("h", i + NHB - 1, 0 if len(ld) >= 2 else 1), 1)
                    if 5 <= n <= 12 and tr:
                        a(tr.pop(0))
                    if n == 13 and i + 1 < NSTEP:
                        q.wait(("h", i + 1, 0))
                        for l in g2_swaps(i + 1, 0):
                            a(l)
                        if i + 1 >= NWF:
                            a(f"s_waitcnt lgkmcnt({8 if i + 2 < NSTEP else 0})")
    stamp(a, 8)
    a.c("partial tile -> own ring slots 1..4: sb*16384 + w*4096 + s16*256 + ((4db + g) ^ (s16&7))*16")
    a(f"v_and_b32 v8, 15, v0\nv_lshrrev_b32 v9, 4, v0\nv_and_b32 v10, 7, v0\nv_xor_b32 v9, v9, v10\nv_lshlrev_b32 v9, 4, v9\nv_lshl_add_u32 v8, v8, 8, v9\nv_add_u32 v8, {s(S_KC)}, v8\nv_xor_b32 v9, 64, v8")
    a("s_nop 0")
    for db in range(4):
        for sb in range(4):
            a(f"ds_write_b128 {'v9' if db & 1 else 'v8'}, {v(G_ACC+(db*4+sb)*4,4)} offset:{sb*16384 + (db>>1)*128}")
    a("s_waitcnt lgkmcnt(0)")
    stamp(a, 9)
    a("s_barrier")


VB_X2 = 18


def dma_chunk(a):
    a(f"s_add_u32 {s(S_T1)}, {s(S_UH)}, {s(S_IT)}\ns_and_b32 {s(S_T1)}, {s(S_T1)}, 7")
    a(f"s_lshl_b32 {s(S_T0)}, {s(S_T1)}, 7\ns_add_u32 {s(S_T0)}, {s(S_T0)}, {s(S_XO)}")
    a(f"s_mul_i32 {s(S_T1)}, {s(S_T1)}, {64*F*2}\ns_add_u32 {s(S_HO)}, {s(S_WO)}, {s(S_T1)}\ns_add_u32 {s(S_DO)}, {s(S_WO2)}, {s(S_T1)}")
    for i in range(16):
        a(f"s_add_u32 m0, {s(S_SLOT)}, {i*1024}")
        a(f"s_add_u32 {s(S_T0)}, {s(S_T0)}, 8192" if i else "s_nop 0")
        a(f"buffer_load_dwordx4 {v(VB_X2 if i & 1 else VB_X)}, {s(R_X,4)}, {s(S_T0)} offen {CFX} lds")
    for k4 in range(4):
        if ITST and k4 == 0:
            it_issue(a)
            a("s_waitcnt lgkmcnt(0)")
            it_take(a, 40)
        if k4:
            a(f"s_add_u32 {s(S_HO)}, {s(S_HO)}, {16*F*2}\ns_add_u32 {s(S_DO)}, {s(S_DO)}, {16*F*2}")
        for blk in range(3):
            for mat in range(2):
                a(f"s_add_u32 m0, {s(S_SLOT)}, {16384 + (mat*3+blk)*4096 + k4*1024 - 64*blk}")
                a("s_nop 0")
                a(f"buffer_load_dwordx4 {v(VB_W)}, {s(R_WU if mat else R_WG,4)}, {s(S_DO if blk == 2 else S_HO)} offen offset:{64*blk} {CFW} lds")


GG = 224


def loader(a):
    a(f"s_setprio {opt('PRL', 2)}")
    a.c("loader w streams chunks 1+w, 3+w, ..")
    a(f"s_lshl_b32 {s(S_XO)}, {s(S_MI)}, 17\ns_lshl_b32 {s(S_WO)}, {s(S_FB0)}, 6")
    a(f"s_cmp_eq_u32 {s(S_NBLK)}, 3\ns_cselect_b32 {s(S_WO2)}, {s(S_WO)}, {OOB:#x}")
    a(f"s_lshl_b32 {s(S_T0)}, {s(S_WB)}, 6\nv_xor_b32 {v(VB_X)}, {s(S_T0)}, {v(VB_X)}\nv_xor_b32 {v(VB_X2)}, 64, {v(VB_X)}")
    a(f"s_add_u32 {s(S_IT)}, {s(S_WB)}, 1\ns_mul_i32 {s(S_SLOT)}, {s(S_IT)}, {SLOT}\ns_mov_b32 {s(S_SH)}, {s(S_WB)}")
    a(f"s_lshl_b32 {s(S_T0)}, {s(S_WB)}, 2\ns_add_u32 {s(S_T0)}, {s(S_T0)}, {L_CNT + W_FULL}\nv_mov_b32 v10, {s(S_T0)}")
    lds_min_wait(a, C_CNT, W_ISS, 1, s(S_WB), 20)
    a("ld_loop:")
    if ITST:
        it_issue(a)
        a("s_waitcnt lgkmcnt(0)")
        it_take(a, 32)
    dma_chunk(a)
    a(f"v_mov_b32 v16, {s(S_IT)}")
    a(f"s_mov_b64 exec, 1\nds_max_u32 {v(C_CNT)}, v16 offset:{W_ISS}\ns_mov_b64 exec, -1")
    if ITST:
        it_issue(a)
        a("s_waitcnt lgkmcnt(0)")
        it_take(a, 0)
    a(f"s_sub_u32 {s(S_SLOT)}, {s(S_SLOT)}, {SLOT}\ns_cselect_b32 {s(S_SLOT)}, {2*SLOT}, {s(S_SLOT)}")
    a(f"s_cmp_ge_u32 {s(S_IT)}, 6\ns_cbranch_scc1 ld_done")
    a("s_waitcnt vmcnt(0)")
    a("ds_write_b32 v10, v16")
    if ITST:
        it_issue(a)
        a("s_waitcnt lgkmcnt(0)")
        it_take(a, 16)
    lds_min_wait(a, C_CNT, W_FREE, 4, s(S_IT), 20)
    if ITST:
        it_issue(a)
        a("s_waitcnt lgkmcnt(0)")
        it_take(a, 48)
    a(f"s_add_u32 {s(S_IT)}, {s(S_IT)}, 2")
    a("s_branch ld_loop")
    a("ld_done:")
    lstamp(a, 1)
    wd_setup(a, 2 if WDE else 0)
    a(f"s_lshl_b32 {s(S_T0)}, {s(S_WB)}, 2\nv_add_u32 v11, {s(S_T0)}, {v(C_CNT)}\nv_mov_b32 v17, 2")
    a("s_waitcnt vmcnt(0)")
    a("ds_write_b32 v10, v16")
    if KVL:
        return loader_late(a)
    lds_min_wait(a, C_CNT, W_ISS, 1, 7, 20)
    lds_min_wait(a, C_CNT, W_HP, 1, 2, 20)
    if not WDE:
        for op in wd_dma(0, 2) + wd_dma(1, 2):
            a(op)
    lstamp(a, 2)
    lds_min_wait(a, C_CNT, W_FREE, 4, 7, 20)
    for i in (2, 3):
        for op in wd_dma(i, 2):
            a(op)
    a("s_waitcnt vmcnt(16)")
    a(f"ds_write_b32 v11, {v(C_ONE)} offset:{W_WD}")
    lstamp(a, 3)
    lds_min_wait(a, C_CNT, W_FREE, 4, 8, 20)
    TH = opt("WDTH", 8)
    n = 0
    for i in (4, 5, 6):
        for op in wd_dma(i, 2):
            if not opt("NOWD", 0):
                a(op)
            n += 1
            if n % 4 == 0 and (TH or n == 8):
                a(f"s_waitcnt vmcnt({min(TH, n) if TH else 8})")
            if n == 8:
                a(f"ds_write_b32 v11, v17 offset:{W_WD}")
    a(f"ds_read_b32 v1, {v(C_CNT)} offset:{W_NON}")
    final_loads(a)
    a("s_waitcnt lgkmcnt(0)")
    a(f"v_readfirstlane_b32 {s(S_NON)}, v1")


def loader_late(a):
    lds_min_wait(a, C_CNT, W_FREE, 4, 7, 20)
    for op in wd_dma(0, 2) + wd_dma(1, 2):
        a(op)
    lstamp(a, 2)
    lds_min_wait(a, C_CNT, W_FREE, 4, 8, 20)
    for op in wd_dma(2, 2):
        a(op)
    a("s_waitcnt vmcnt(8)")
    a(f"ds_write_b32 v11, {v(C_ONE)} offset:{W_WD}")
    for op in wd_dma(3, 2) + wd_dma(4, 2):
        a(op)
    a("s_waitcnt vmcnt(8)")
    a(f"ds_write_b32 v11, v17 offset:{W_WD}")
    lstamp(a, 3)
    lds_min_wait(a, C_CNT, W_HP, 1, 2, 20)
    for op in wd_dma(5, 2) + wd_dma(6, 2):
        a(op)
    a(f"ds_read_b32 v1, {v(C_CNT)} offset:{W_NON}")
    final_loads(a)
    a("v_mov_b32 v17, 3\ns_waitcnt vmcnt(2) lgkmcnt(0)")
    a(f"ds_write_b32 v11, v17 offset:{W_WD}")
    a(f"v_readfirstlane_b32 {s(S_NON)}, v1")


VS, VKV, VSK = 144, 24, 64
ONE = 192


def round_bf16(a, r):
    a(f"v_cvt_pk_bf16_f32 {v(r)}, {v(r)}, {v(r)}\nv_lshlrev_b32 {v(r)}, 16, {v(r)}")


def stats_loads(a):
    a(f"s_lshl_b32 {s(S_T0)}, {s(S_TI)}, 1\ns_add_u32 {s(S_T0)}, {s(S_T0)}, {s(S_SH)}\ns_lshl_b32 {s(S_T0)}, {s(S_T0)}, 12")
    a("v_bfe_u32 v5, v0, 2, 2\nv_lshlrev_b32 v5, 10, v5\nv_and_b32 v6, 3, v0\nv_lshl_add_u32 v5, v6, 4, v5\nv_lshrrev_b32 v6, 4, v0\nv_lshl_add_u32 v5, v6, 6, v5")
    for r in range(4):
        a(f"buffer_load_dwordx4 {v(VS+4*r,4)}, v5, {s(R_X,4)}, {s(S_T0)} offen offset:{r*256} {CFS}")


def stats(a):
    G, O, R = 72, 76, 80
    for r in range(4):
        a(f"v_mfma_f32_16x16x32_bf16 {v(G,4)}, {v(VS+4*r,4)}, {v(VS+4*r,4)}, {v(G,4) if r else 0}")
        a(f"v_mfma_f32_16x16x32_bf16 {v(O,4)}, {v(ONE,4)}, {v(VS+4*r,4)}, {v(O,4) if r else 0}")
    a.c("diagonal element of lane (n, g = n>>2) is register n&3")
    a(f"v_and_b32 v6, 3, v0\nv_cmp_eq_u32 vcc, 1, v6\nv_cmp_eq_u32 {s(S_EX,2)}, 2, v6\nv_cmp_eq_u32 {s(S_XO,2)}, 3, v6")
    a(f"s_lshl_b32 {s(S_T0)}, {s(S_TI)}, 1\ns_add_u32 {s(S_T0)}, {s(S_T0)}, {s(S_SH)}\ns_lshl_b32 {s(S_T0)}, {s(S_T0)}, 6\ns_add_u32 {s(S_T0)}, {s(S_T0)}, {WS_ST:#x}")
    a("v_and_b32 v5, 48, v0\ns_nop 0")
    a(f"v_cndmask_b32 {v(G)}, {v(G)}, {v(G+1)}, vcc\nv_cndmask_b32 {v(G)}, {v(G)}, {v(G+2)}, {s(S_EX,2)}\nv_cndmask_b32 {v(G)}, {v(G)}, {v(G+3)}, {s(S_XO,2)}")
    for qp in ("[1,0,3,2]", "[2,3,0,1]"):
        a("s_nop 0")
        a(f"v_add_f32_dpp {v(O)}, {v(O)}, {v(O)} quad_perm:{qp} row_mask:0xf bank_mask:0xf")
        a(f"v_add_f32_dpp {v(G)}, {v(G)}, {v(G)} quad_perm:{qp} row_mask:0xf bank_mask:0xf")
    M, K1, K2, I2 = R, R + 1, R + 2, R + 3
    a(f"v_mul_f32 {v(M)}, {f32bits(1/512):#x}, {v(O)}\nv_mul_f32 {v(K2)}, {f32bits(1/512):#x}, {v(G)}")
    a(f"v_fma_f32 {v(K2)}, -{v(M)}, {v(M)}, {v(K2)}\nv_max_f32 {v(K2)}, 0, {v(K2)}")
    round_bf16(a, M)
    round_bf16(a, K2)
    a(f"v_add_f32 {v(K2)}, {f32bits(1e-5):#x}, {v(K2)}")
    round_bf16(a, K2)
    a(f"v_sqrt_f32 {v(K2)}, {v(K2)}\ns_nop 0")
    round_bf16(a, K2)
    a(f"v_rcp_f32 {v(K1)}, {v(K2)}\nv_mul_f32 {v(I2)}, {v(K2)}, {v(K2)}")
    a(f"v_mul_f32 {v(K2)}, {v(K1)}, {v(K1)}\nv_mul_f32 {v(K2)}, {v(K2)}, {v(K1)}")
    a(f"v_mul_f32 {v(K2)}, {f32bits(C2):#x}, {v(K2)}\nv_mul_f32 {v(K1)}, {f32bits(C1):#x}, {v(K1)}")
    a.c("row g is complete in lane 20g")
    a(f"s_mov_b32 {s(S_EX)}, 0x00100001\ns_mov_b32 {s(S_EX+1)}, 0x10000100\ns_mov_b64 exec, {s(S_EX,2)}")
    a(f"buffer_store_dwordx4 {v(R,4)}, v5, {s(R_WS,4)}, {s(S_T0)} offen sc1")
    a("s_mov_b64 exec, -1")


L_VST = 155648
NT = os.environ.get("CFK", "nt") + " " if opt("NT", 1) else ""
NTT = " nt" if opt("NTT", 0) else ""


def kv_dma(a):
    a("v_lshrrev_b32 v5, 3, v0\nv_lshlrev_b32 v5, 10, v5\nv_and_b32 v6, 7, v0\nv_lshl_add_u32 v5, v6, 4, v5")
    a(f"v_add_u32 v69, {s(S_DO)}, v5")
    a.c("rows above the start of the sequence are out of range and read as zero")
    a("v_subrev_u32 v7, 0xc00, v69\nv_cmp_gt_u32 vcc, 0xc00, v69\nv_mov_b32 v68, 0x7ff00000\ns_nop 1\nv_cndmask_b32 v7, v7, v68, vcc")
    a(f"s_mul_i32 {s(S_T0)}, {s(S_SH)}, {64*KVT_STR}\ns_add_u32 {s(S_T0)}, {s(S_T0)}, {L_KVT}")
    a(f"s_lshl_b32 {s(S_T2)}, {s(S_SH)}, 12\ns_add_u32 {s(S_T2)}, {s(S_T2)}, {L_VST}")
    for i in range(5):
        a(f"s_add_u32 m0, {s(S_T0)}, {1024*i}\ns_mov_b32 {s(S_T1)}, {max(8192*i - 3072, 0)}")
        a(f"buffer_load_dwordx4 {'v69' if i else 'v7'}, {s(R_K,4)}, {s(S_T1)} offen {NT}lds")
    for i in range(4):
        a(f"s_add_u32 m0, {s(S_T2)}, {1024*i}\ns_mov_b32 {s(S_T1)}, {8192*i}")
        a(f"buffer_load_dwordx4 v69, {s(R_V,4)}, {s(S_T1)} offen {NT}lds")
    a("v_and_b32 v6, 31, v0\nv_lshrrev_b32 v5, 5, v0\nv_lshlrev_b32 v5, 10, v5\nv_lshl_add_u32 v5, v6, 2, v5")
    a(f"v_add_u32 v68, {s(S_T0)}, v5\nv_add_u32 v69, {s(S_T2)}, v5")
    a(f"s_and_b32 {s(S_T1)}, {s(S_TI)}, 7\ns_lshl_b32 {s(S_T1)}, {s(S_T1)}, 9\nv_lshlrev_b32 v6, 4, v6")
    a(f"buffer_load_dwordx4 {v(VSK,4)}, v6, {s(R_SK,4)}, {s(S_T1)} offen")


def kv_reads(a):
    for ps in range(2):
        b = VKV + 19 * ps
        for i in range(11):
            a(f"ds_read_b32 {v(b+i)}, v68 offset:{ps*2048 + i*128}")
        for i in range(8):
            a(f"ds_read_b32 {v(b+11+i)}, v69 offset:{ps*2048 + i*128}")


def touch_x(a, p, vd):
    a(f"s_lshl_b32 {s(S_T0)}, {s(S_MI)}, 2\ns_and_b32 {s(S_T1)}, {s(S_NI)}, 3\ns_add_u32 {s(S_T0)}, {s(S_T0)}, {s(S_T1)}\ns_lshl_b32 {s(S_T0)}, {s(S_T0)}, 15")
    a("v_and_b32 v5, 31, v0\nv_lshrrev_b32 v6, 5, v0\nv_lshlrev_b32 v6, 7, v6\nv_lshl_add_u32 v5, v5, 10, v6")
    for q in p:
        a(f"buffer_load_dword {v(vd)}, v5, {s(R_X,4)}, {s(S_T0)} offen offset:{128*q}{NTT}")


def touch_w(a, p, srds, vd):
    a(f"s_and_b32 {s(S_T0)}, {s(S_MI)}, 7\ns_add_u32 {s(S_T0)}, {s(S_T0)}, {8*p}\ns_mul_i32 {s(S_T0)}, {s(S_T0)}, {8*F*2}\ns_lshl_b32 {s(S_T1)}, {s(S_FB0)}, 6\ns_add_u32 {s(S_T0)}, {s(S_T0)}, {s(S_T1)}")
    a(f"s_add_u32 {s(S_T1)}, {s(S_NBLK)}, 4")
    a(f"v_lshrrev_b32 v5, 4, v0\nv_bfe_u32 v6, v0, 1, 3\nv_lshl_add_u32 v5, v5, 6, v6\nv_mul_u32_u24 v5, {F*2}, v5\nv_and_b32 v6, 1, v0\nv_lshl_add_u32 v5, v6, {s(S_T1)}, v5")
    for r in srds:
        a(f"buffer_load_dword {v(vd)}, v5, {s(r,4)}, {s(S_T0)} offen{NTT}")
        if opt("TOUCH", 0) == 2:
            a(f"s_add_u32 {s(S_T0)}, {s(S_T0)}, {256*F*2}")
            a(f"buffer_load_dword {v(vd)}, v5, {s(r,4)}, {s(S_T0)} offen{NTT}")


KU, VU, KW, KO, KT = 72, 94, 110, 120, 128


def kv_taps(a):
    for j in range(4):
        for ch in range(2):
            src = VSK + 2*ch + (j >> 1)
            a(f"v_and_b32 {v(KW+2*j+ch)}, {s(S_C)}, {v(src)}" if j & 1 else f"v_lshlrev_b32 {v(KW+2*j+ch)}, 16, {v(src)}")
    a.c("KVT row = 2*(l&31) + ch, 16-B piece = 3 - (2*pass + l>>5)")
    a(f"v_and_b32 v70, 31, v0\nv_mul_u32_u24 v70, {2*KVT_STR}, v70\nv_lshrrev_b32 v5, 5, v0\nv_lshlrev_b32 v5, 4, v5\nv_sub_u32 v70, v70, v5")
    a(f"s_mul_i32 {s(S_T0)}, {s(S_SH)}, {64*KVT_STR}\ns_add_u32 {s(S_T0)}, {s(S_T0)}, {L_KVT + 16}\nv_add_u32 v70, {s(S_T0)}, v70")


def kv_compute(ps):
    b = VKV + 19 * ps
    o = []
    for i in range(11):
        o += [f"v_lshlrev_b32 {v(KU+2*i)}, 16, {v(b+i)}", f"v_and_b32 {v(KU+2*i+1)}, {s(S_C)}, {v(b+i)}"]
    for e in range(16):
        o.append(f"v_mul_f32 {v(KT+e)}, {v(KU+e)}, {v(KW+6+(e&1))}")
    for j in (2, 1, 0):
        for e in range(16):
            o.append(f"v_fmac_f32 {v(KT+e)}, {v(KU+e+2*(3-j))}, {v(KW+2*j+(e&1))}")
    for i in range(8):
        o += [f"v_lshlrev_b32 {v(VU+2*i)}, 16, {v(b+11+i)}", f"v_and_b32 {v(VU+2*i+1)}, {s(S_C)}, {v(b+11+i)}"]
    for e in range(16):
        o.append(f"v_mul_f32 {v(KT+e)}, {v(KT+e)}, {v(VU+e)}")
    for ch in range(2):
        for i in range(4):
            o.append(f"v_cvt_pk_bf16_f32 {v(KO+4*ch+i)}, {v(KT+2*(7-2*i)+ch)}, {v(KT+2*(6-2*i)+ch)}")
    o += [f"ds_write_b128 v70, {v(KO,4)} offset:{32*(1-ps)}", f"ds_write_b128 v70, {v(KO+4,4)} offset:{32*(1-ps) + KVT_STR}"]
    return o


def kv_store(a):
    a(f"v_lshrrev_b32 v5, 2, v0\nv_and_b32 v6, 3, v0\nv_lshlrev_b32 v6, 4, v6\nv_mul_u32_u24 v7, {KVT_STR}, v5\nv_add_u32 v7, v7, v6")
    a(f"s_mul_i32 {s(S_T0)}, {s(S_SH)}, {64*KVT_STR}\ns_add_u32 {s(S_T0)}, {s(S_T0)}, {L_KVT}\nv_add_u32 v7, {s(S_T0)}, v7")
    a("s_waitcnt lgkmcnt(0)")
    for i in range(4):
        a(f"ds_read_b128 {v(24+4*i,4)}, v7 offset:{16*i*KVT_STR}")
    a("v_lshl_add_u32 v5, v5, 12, v6")
    a(f"s_and_b32 {s(S_T0)}, {s(S_TI)}, 7\ns_lshl_b32 {s(S_T0)}, {s(S_T0)}, 18")
    a(f"s_lshr_b32 {s(S_T1)}, {s(S_TI)}, 3\ns_lshl_b32 {s(S_T1)}, {s(S_T1)}, 1\ns_add_u32 {s(S_T1)}, {s(S_T1)}, {s(S_SH)}\ns_lshl_b32 {s(S_T1)}, {s(S_T1)}, 6")
    a(f"s_sub_u32 {s(S_T0)}, {s(S_T0)}, {s(S_T1)}\ns_add_u32 {s(S_T0)}, {s(S_T0)}, {WS_KVR + 4096 - 64:#x}")
    for i in range(4):
        a(f"s_waitcnt lgkmcnt({3-i})")
        a(f"buffer_store_dwordx4 {v(24+4*i,4)}, v5, {s(R_WS,4)}, {s(S_T0)} offen sc1")
        a(f"s_add_u32 {s(S_T0)}, {s(S_T0)}, 65536")


def cs_loads(a):
    a(f"s_mul_i32 {s(S_T0)}, {s(S_MI)}, {32*F*2}\ns_lshl_b32 {s(S_T1)}, {s(S_FB0)}, 6\ns_add_u32 {s(S_T0)}, {s(S_T0)}, {s(S_T1)}\ns_add_u32 {s(S_T1)}, {s(S_T0)}, {16*F*2}")
    a(f"s_mul_i32 {s(S_M0)}, {s(S_SH)}, 6144\ns_add_u32 {s(S_M0)}, {s(S_M0)}, {L_CSS}")
    l1, l2 = a.label("cs"), a.label("cs")
    a(f"s_cmp_lg_u32 {s(S_SH)}, 0\ns_cbranch_scc1 {l1}")
    for r in (R_WG, R_WU):
        for blk in range(3):
            for k2 in range(2):
                a(f"s_add_u32 m0, {s(S_M0)}, {blk*2048 + k2*1024 - 64*blk}\ns_nop 0")
                a(f"buffer_load_dwordx4 {v(VB_W)}, {s(r,4)}, {s(S_T1 if k2 else S_T0)} offen offset:{64*blk} {CFS} lds")
        a(f"s_branch {l2}\n{l1}:" if r == R_WG else f"{l2}:")


def colsum(a):
    W, O = 144, 168
    a("v_lshrrev_b32 v5, 4, v0\nv_lshlrev_b32 v6, 9, v5\nv_bfe_u32 v7, v0, 2, 2\nv_lshl_add_u32 v6, v7, 6, v6\nv_and_b32 v7, 3, v0\nv_lshl_add_u32 v6, v7, 3, v6")
    a(f"v_and_b32 v7, 1, v5\nv_lshl_add_u32 v6, v7, 5, v6\nv_add_u32 v6, {s(S_M0)}, v6\nv_xor_b32 v7, 32, v6")
    for u in range(6):
        for tt in range(2):
            a(f"ds_read_b64_tr_b16 {v(W+4*u+2*tt,2)}, {'v7' if u & 1 else 'v6'} offset:{(u>>1)*2048 + tt*256}")
    a.c("CSP offset = ((ni*2 + hw)*16 + mi)*384 + u*64 + g*16")
    a(f"s_lshl_b32 {s(S_T0)}, {s(S_NI)}, 1\ns_add_u32 {s(S_T0)}, {s(S_T0)}, {s(S_SH)}\ns_lshl_b32 {s(S_T0)}, {s(S_T0)}, 4\ns_add_u32 {s(S_T0)}, {s(S_T0)}, {s(S_MI)}")
    a(f"s_mul_i32 {s(S_T0)}, {s(S_T0)}, 384\ns_add_u32 {s(S_T0)}, {s(S_T0)}, {WS_CSP:#x}")
    a("v_and_b32 v5, 48, v0")
    a("s_waitcnt lgkmcnt(0)")
    for u in range(6):
        a(f"v_mfma_f32_16x16x32_bf16 {v(O+4*u,4)}, {v(W+4*u,4)}, {v(ONE,4)}, 0")
    a(f"s_mov_b32 {s(S_EX)}, 0x00010001\ns_mov_b32 {s(S_EX+1)}, 0x00010001\ns_nop 5\ns_mov_b64 exec, {s(S_EX,2)}")
    for u in range(6):
        a(f"buffer_store_dwordx4 {v(O+4*u,4)}, v5, {s(R_WS,4)}, {s(S_T0)} offen offset:{u*64} sc1")
    a("s_mov_b64 exec, -1")


def hflag(a, base):
    a(f"s_lshl_b32 {s(S_T0)}, {s(S_TI)}, 7\ns_lshl_b32 {s(S_T1)}, {s(S_SH)}, 2\ns_add_u32 {s(S_T0)}, {s(S_T0)}, {s(S_T1)}\ns_add_u32 {s(S_T0)}, {s(S_T0)}, {base:#x}")
    flag_store(a, S_T0, 196, 197)


CG = 144


def cs_gather_issue(a):
    a(f"s_lshl_b32 {s(S_T0)}, {s(S_NI)}, 1\ns_add_u32 {s(S_T0)}, {s(S_T0)}, {s(S_SH)}\ns_mul_i32 {s(S_T0)}, {s(S_T0)}, 6144\ns_add_u32 {s(S_T0)}, {s(S_T0)}, {WS_CSP:#x}")
    a("v_and_b32 v5, 31, v0\nv_lshlrev_b32 v5, 4, v5\nv_lshrrev_b32 v6, 5, v0\nv_mul_u32_u24 v6, 3072, v6\nv_add_u32 v6, v5, v6")
    for i in range(8):
        a(f"buffer_load_dwordx4 {v(CG+4*i,4)}, v6, {s(R_WS,4)}, {s(S_T0)} offen offset:{i*384} sc1")


def cs_gather_finish(a):
    n = 8
    while n > 1:
        n //= 2
        for i in range(4 * n):
            a(f"v_add_f32 {v(CG+i)}, {v(CG+i)}, {v(CG+4*n+i)}")
    for i in range(4):
        a(f"v_mov_b32 {v(CG+4+i)}, {v(CG+i)}")
    a(f"s_lshl_b32 {s(S_T0)}, {s(S_SH)}, 9\ns_add_u32 {s(S_T0)}, {s(S_T0)}, {L_CS}\nv_and_b32 v8, 31, v0\nv_lshlrev_b32 v8, 4, v8\nv_add_u32 v8, {s(S_T0)}, v8")
    for i in range(4):
        a(f"v_permlane32_swap_b32 {v(CG+i)}, {v(CG+4+i)}")
    a("s_nop 0")
    for i in range(4):
        a(f"v_add_f32 {v(CG+i)}, {v(CG+i)}, {v(CG+4+i)}")
    a(f"ds_write_b128 v8, {v(CG,4)}")


def helper(a):
    q = VQ(a)
    a(f"s_sub_u32 {s(S_SH)}, {s(S_WB)}, 2")
    a(f"s_lshl_b32 {s(S_HO)}, {s(S_TI)}, 1\ns_add_u32 {s(S_HO)}, {s(S_HO)}, {s(S_SH)}\ns_lshl_b32 {s(S_HO)}, {s(S_HO)}, 12")
    a.c("k/v tile base: rows 32*(2*(ti>>3) + hw).., channels 64*(ti&7)")
    a(f"s_lshr_b32 {s(S_T0)}, {s(S_TI)}, 3\ns_lshl_b32 {s(S_T0)}, {s(S_T0)}, 1\ns_add_u32 {s(S_T0)}, {s(S_T0)}, {s(S_SH)}\ns_lshl_b32 {s(S_T0)}, {s(S_T0)}, 15")
    a(f"s_and_b32 {s(S_T1)}, {s(S_TI)}, 7\ns_lshl_b32 {s(S_T2)}, {s(S_T1)}, 7\ns_add_u32 {s(S_DO)}, {s(S_T0)}, {s(S_T2)}")
    a(f"s_mul_i32 {s(S_KC)}, {s(S_TI)}, {43*128}\ns_mul_i32 {s(S_T1)}, {s(S_SH)}, {22*128}\ns_add_u32 {s(S_KC)}, {s(S_KC)}, {s(S_T1)}")
    def sc():
        stats_loads(a); q.add("s", 4)
        cs_loads(a); q.add("csd", 6)
    SKV = opt("SKV", 0)
    KVAT = opt("KVAT", 0) or SKV or KVL
    def wdt():
        if not opt("WDT", 1):
            return
        a.c("first touch of Wd lines 43*ti + 22*hw + lane")
        a("v_lshlrev_b32 v11, 7, v0\ns_mov_b64 exec, 0x3fffff")
        a(f"buffer_load_dword v71, v11, {s(R_WD,4)}, {s(S_KC)} offen"); q.add("wd", 1)
        a("s_mov_b64 exec, -1")
    def cold():
        kv_dma(a); q.add("kv", 10)
        if not SKV and not PT and not opt("HW7", 0) and not KVL:
            wdt()
        if SKV != 1 and not opt("HW7", 0):
            conv_h_loads(a); q.add("h", 4)
    PT = opt("PT", 0)
    def ptouch():
        l1, l2 = a.label("pt"), a.label("pt")
        a(f"s_and_b32 {s(S_T0)}, {s(S_NI)}, 3\ns_cmp_lg_u32 {s(S_T0)}, 3\ns_cbranch_scc1 {l2}")
        a("v_lshrrev_b32 v5, 2, v0\nv_and_b32 v6, 3, v0\nv_lshlrev_b32 v6, 7, v6\nv_lshl_add_u32 v5, v5, 10, v6\nv_lshlrev_b32 v6, 7, v0")
        a(f"s_lshr_b32 {s(S_T0)}, {s(S_TI)}, 3\ns_lshl_b32 {s(S_T0)}, {s(S_T0)}, 16\ns_and_b32 {s(S_T1)}, {s(S_TI)}, 4\ns_lshl_b32 {s(S_T1)}, {s(S_T1)}, 7\ns_add_u32 {s(S_T0)}, {s(S_T0)}, {s(S_T1)}")
        a(f"s_cmp_lg_u32 {s(S_SH)}, 0\ns_cbranch_scc1 {l1}")
        for i in range(4):
            a(f"buffer_load_dword v71, v5, {s(R_K,4)}, {s(S_T0)} offen\ns_add_u32 {s(S_T0)}, {s(S_T0)}, 16384")
        a(f"s_sub_i32 {s(S_T0)}, {s(S_T0)}, {65536 + 3072}\ns_max_i32 {s(S_T0)}, {s(S_T0)}, 0\ns_mov_b64 exec, 0xfff")
        a(f"buffer_load_dword v71, v5, {s(R_K,4)}, {s(S_T0)} offen\ns_mov_b64 exec, -1")
        a(f"s_lshr_b32 {s(S_T0)}, {s(S_TI)}, 2\ns_mul_i32 {s(S_T0)}, {s(S_T0)}, {172*128}")
        for i in range(3):
            a(f"buffer_load_dword v71, v6, {s(R_WD,4)}, {s(S_T0)} offen\ns_add_u32 {s(S_T0)}, {s(S_T0)}, {8192 if i == 0 else 44*128}")
        a(f"s_branch {l2}\n{l1}:")
        for i in range(4):
            a(f"buffer_load_dword v71, v5, {s(R_V,4)}, {s(S_T0)} offen\ns_add_u32 {s(S_T0)}, {s(S_T0)}, 16384")
        a(f"s_lshr_b32 {s(S_T0)}, {s(S_TI)}, 2\ns_lshl_b32 {s(S_T0)}, {s(S_T0)}, 15")
        for i in range(4):
            a(f"buffer_load_dword v71, v6, {s(R_H,4)}, {s(S_T0)} offen\ns_add_u32 {s(S_T0)}, {s(S_T0)}, 8192")
        a(f"{l2}:")
    if PT == 1:
        ptouch()
    LATE = opt("LATE", 0)
    if LATE:
        lds_min_wait(a, C_CNT, W_ISS, 1, LATE, 20)
        l1, l2 = a.label("tc"), a.label("tc")
        a(f"s_cmp_lg_u32 {s(S_SH)}, 0\ns_cbranch_scc1 {l1}")
        touch_x(a, (4, 6), 71)
        a(f"s_branch {l2}\n{l1}:")
        touch_w(a, 4, (R_WG, R_WU), 71)
        a(f"{l2}:")
    def hs(n):
        if ITST:
            a(f"s_mov_b32 {s(S_IT)}, 0")
            it_issue(a)
            a("s_waitcnt lgkmcnt(0)")
            it_take(a, n)
    hs(1)
    KV1 = opt("KV1", 0)
    if KV1:
        if KV1 == 2:
            kv_dma(a); q.add("kv", 10)
        else:
            cold()
        a("s_barrier")
    if not opt("ELAST", 0):
        epoch_load(a, 1); q.add("e", 1)
    sc()
    if opt("ELAST", 0):
        epoch_load(a, 1); q.add("e", 1)
    hs(2)
    if KVL:
        wdt()
    if SKV:
        wdt()
        a(f"s_sub_i32 {s(S_KC)}, {s(S_DO)}, 3072\ns_max_i32 {s(S_KC)}, {s(S_KC)}, 0")
        spf(a, R_K, S_KC, [1024*i for i in range(35)])
    if KV1 == 2:
        wdt()
        conv_h_loads(a); q.add("h", 4)
    if not KVAT and not KV1:
        cold()
    hs(3)
    for i in range(4):
        a(f"v_mov_b32 {v(ONE+i)}, 0x3f803f80")
    a.c("F1 pairs: lanes 0-31 tiles 16mi + (l&15) (row records), lanes 32-63 tiles 16*(l&15) + ni (column sums)")
    a(f"s_lshl_b32 {s(S_T0)}, {s(S_MI)}, 11\nv_and_b32 v9, 15, v0\nv_lshlrev_b32 v8, 7, v9\nv_add_u32 v8, {s(S_T0)}, v8")
    a(f"s_lshl_b32 {s(S_T0)}, {s(S_NI)}, 7\nv_lshlrev_b32 v9, 11, v9\nv_add_u32 v9, {s(S_T0)}, v9\nv_cmp_lt_u32 vcc, 31, v0")
    a(f"s_nop 1\nv_cndmask_b32 v8, v8, v9, vcc\nv_add_u32 v8, {WS_F1:#x}, v8")
    q.wait("e", "s")
    stamp(a, 1)
    epoch_take(a, 1)
    a(f"v_mov_b32 v20, {s(S_NON)}\nds_write_b32 {v(C_CNT)}, v20 offset:{W_NON}")
    stats(a); q.add("st", 1)
    q.wait("csd")
    if PT == 2:
        ptouch()
    colsum(a); q.add("st", 6)
    stamp(a, 2)
    if KVL:
        q.wait("st")
        hflag(a, WS_F1)
        stamp(a, 3)
        lds_min_wait(a, C_CNT, W_ISS, 1, KVL - 1, 20)
        poll2_issue(a, 8, 198)
        a(f"s_lshr_b32 {s(S_T0)}, {s(S_TI)}, 5\ns_lshl_b32 {s(S_T0)}, {s(S_T0)}, 7\ns_add_u32 {s(S_T0)}, {s(S_T0)}, {WS_F2:#x}")
        a(f"v_and_b32 v16, 31, v0\nv_lshlrev_b32 v16, 10, v16\nv_add_u32 v16, {s(S_T0)}, v16")
        a("s_waitcnt vmcnt(0)")
        poll2_check(a, 8, 198)
        lds_min_wait(a, C_CNT, W_ISS, 1, KVL, 20)
        a(f"s_lshl_b32 {s(S_T0)}, {s(S_MI)}, 1\ns_add_u32 {s(S_T0)}, {s(S_T0)}, {s(S_SH)}\ns_lshl_b32 {s(S_T0)}, {s(S_T0)}, 10\ns_add_u32 {s(S_T0)}, {s(S_T0)}, {WS_ST:#x}")
        a(f"buffer_load_dwordx4 {v(GG,4)}, v4, {s(R_WS,4)}, {s(S_T0)} offen sc1")
        cs_gather_issue(a)
        a(f"s_lshl_b32 {s(S_T0)}, {s(S_SH)}, 10\ns_add_u32 {s(S_T0)}, {s(S_T0)}, {L_ST}\nv_add_u32 v9, {s(S_T0)}, v4")
        cold()
        a("s_waitcnt vmcnt(14)")
        a(f"ds_write_b128 v9, {v(GG,4)}")
        cs_gather_finish(a)
        lds_inc(a, C_CNT, C_ONE, W_GATH)
        stamp(a, 5)
        a(f"s_setprio {opt('PRK', 0)}")
        a("s_waitcnt vmcnt(4)")
        kv_reads(a)
        kv_taps(a)
        a("s_waitcnt lgkmcnt(0)")
        for l in kv_compute(0) + kv_compute(1):
            a(l)
        kv_store(a)
        lds_inc(a, C_CNT, C_ONE, W_HP)
        a("s_waitcnt vmcnt(4)")
        conv_h_shift(a, 40)
        a("s_waitcnt vmcnt(0)")
        hflag(a, WS_F2)
        stamp(a, 4)
        final_loads(a)
        lds_min_wait(a, C_CNT, W_FREE, 4, 6, 20)
        lds_min_wait(a, C_CNT, W_HP, 1, 2, 20)
        conv_h_stage(a, 40)
        poll2_issue(a, 16, 18)
        a("s_waitcnt vmcnt(0)")
        poll2_check(a, 16, 18)
        a(f"s_add_u32 {s(S_T2)}, {s(S_HO)}, {WS_KVR:#x}")
        for i in range(4):
            a(f"buffer_load_dwordx4 {v(128+4*i,4)}, v4, {s(R_WS,4)}, {s(S_T2)} offen offset:{1024*i} sc1")
        for i in range(4):
            a(f"s_waitcnt vmcnt({3-i})")
            a(f"ds_write_b128 v10, {v(128+4*i,4)} offset:{4*HSTR + 1024*i}")
        stamp(a, 6)
        return
    if SKV:
        spf(a, R_V, S_DO, [1024*i for i in range(14)])
        q.wait("st")
        hflag(a, WS_F1); q.add("f", 1)
        stamp(a, 3)
        spf(a, R_V, S_DO, [1024*i for i in range(14, 32)])
        a(f"s_and_b32 {s(S_T1)}, {s(S_TI)}, 7\ns_lshl_b32 {s(S_T1)}, {s(S_T1)}, 9")
        spf(a, R_SK, S_T1, [128*i for i in range(4)])
        if SKV == 2:
            spf(a, R_H, S_HO, [128*i for i in range(32)])
        a("s_waitcnt lgkmcnt(0)")
        cold()
    elif KVAT:
        a(f"s_lshr_b32 {s(S_T3)}, s2, 3\ns_and_b32 {s(S_T3)}, {s(S_T3)}, {opt('KVM', 0)}\ns_add_u32 {s(S_T3)}, {s(S_T3)}, {KVAT}")
        if PT:
            q.wait("st")
            hflag(a, WS_F1); q.add("f", 1)
            stamp(a, 3)
            a(f"s_and_b32 {s(S_T0)}, {s(S_NI)}, 3\ns_cmp_eq_u32 {s(S_T0)}, 3\ns_cselect_b32 {s(S_T3)}, 0, {s(S_T3)}")
        lds_min_wait(a, C_CNT, W_ISS, 1, s(S_T3), 20)
        cold()
        if not PT:
            q.wait("st")
            hflag(a, WS_F1); q.add("f", 1)
            stamp(a, 3)
    q.wait("kv")
    kv_reads(a)
    kv_taps(a)
    a("s_waitcnt lgkmcnt(0)")
    for l in kv_compute(0):
        a(l)
    if not KVAT:
        q.wait("st")
        hflag(a, WS_F1); q.add("f", 1)
        stamp(a, 3)
    for l in kv_compute(1):
        a(l)
    kv_store(a); q.add("kvst", 4)
    lds_inc(a, C_CNT, C_ONE, W_HP)
    q.wait("kvst")
    hflag(a, WS_F2); q.add("f", 1)
    stamp(a, 4)
    if opt("HW7", 0):
        lds_min_wait(a, C_CNT, W_ISS, 1, opt("HW7", 0), 20)
        wdt()
        conv_h_loads(a)
    else:
        conv_h_shift(a)
    if SKV == 1:
        spf(a, R_H, S_HO, [128*i for i in range(32)])
    if WDE:
        wd_setup(a, 0, S_SH)
        a(f"s_lshl_b32 {s(S_T0)}, {s(S_SH)}, 2\nv_add_u32 v11, {s(S_T0)}, {v(C_CNT)}")
        lds_min_wait(a, C_CNT, W_HP, 1, 2, 20)
        lds_min_wait(a, C_CNT, W_ISS, 1, WDE, 20)
        for op in wd_dma(0, 2) + wd_dma(1, 2):
            a(op)
    lds_min_wait(a, C_CNT, W_ISS, 1, opt("GATP", 7), 20)
    poll2_issue(a, 8, 198)
    a.c("F2 pairs of tiles 8*(l&31) + (ti>>5)")
    a(f"s_lshr_b32 {s(S_T0)}, {s(S_TI)}, 5\ns_lshl_b32 {s(S_T0)}, {s(S_T0)}, 7\ns_add_u32 {s(S_T0)}, {s(S_T0)}, {WS_F2:#x}")
    a(f"v_and_b32 v16, 31, v0\nv_lshlrev_b32 v16, 10, v16\nv_add_u32 v16, {s(S_T0)}, v16")
    a("s_waitcnt vmcnt(0)")
    if WDE:
        a(f"ds_write_b32 v11, {v(C_ONE)} offset:{W_WE}")
    poll2_check(a, 8, 198)
    lds_min_wait(a, C_CNT, W_ISS, 1, opt("GAT", 7), 20)
    F2L = opt("F2L", 0)
    if not F2L:
        poll2_issue(a, 16, 18)
    a(f"s_lshl_b32 {s(S_T0)}, {s(S_MI)}, 1\ns_add_u32 {s(S_T0)}, {s(S_T0)}, {s(S_SH)}\ns_lshl_b32 {s(S_T0)}, {s(S_T0)}, 10\ns_add_u32 {s(S_T0)}, {s(S_T0)}, {WS_ST:#x}")
    a(f"buffer_load_dwordx4 {v(GG,4)}, v4, {s(R_WS,4)}, {s(S_T0)} offen sc1")
    cs_gather_issue(a)
    a(f"s_lshl_b32 {s(S_T0)}, {s(S_SH)}, 10\ns_add_u32 {s(S_T0)}, {s(S_T0)}, {L_ST}\nv_add_u32 v9, {s(S_T0)}, v4")
    late, join = a.label("u_late"), a.label("u_join")
    def u_loads():
        a(f"s_add_u32 {s(S_T2)}, {s(S_HO)}, {WS_KVR:#x}")
        for i in range(4):
            a(f"buffer_load_dwordx4 {v(128+4*i,4)}, v4, {s(R_WS,4)}, {s(S_T2)} offen offset:{1024*i} sc1")
    def gather_done():
        a(f"ds_write_b128 v9, {v(GG,4)}")
        cs_gather_finish(a)
        lds_inc(a, C_CNT, C_ONE, W_GATH)
        stamp(a, 5)
    if F2L:
        a("s_waitcnt vmcnt(0)")
        poll2_issue(a, 16, 18)
        gather_done()
        lds_min_wait(a, C_CNT, W_FREE, 4, 6, 20)
        lds_min_wait(a, C_CNT, W_HP, 1, 2, 20)
        if F2L == 2:
            conv_h_stage(a)
        a("s_waitcnt vmcnt(0)")
        poll2_check(a, 16, 18)
        u_loads()
        final_loads(a)
        if F2L == 1:
            conv_h_stage(a)
        a("s_waitcnt vmcnt(2)")
        for i in range(4):
            a(f"ds_write_b128 v10, {v(128+4*i,4)} offset:{4*HSTR + 1024*i}")
        stamp(a, 6)
        return
    a("s_waitcnt vmcnt(9)")
    a(f"v_cmp_ne_u32 vcc, {s(S_NON)}, v18\nv_cmp_ne_u32 {s(S_EX,2)}, {s(S_NON)}, v19\ns_nop 0\ns_or_b64 vcc, vcc, {s(S_EX,2)}\ns_cbranch_scc1 {late}")
    u_loads()
    a("s_waitcnt vmcnt(4)")
    gather_done()
    a(f"{join}:")
    keep = a.L
    a.L = COLD.L
    a(f"{late}:")
    a("s_waitcnt vmcnt(0)")
    gather_done()
    poll2_check(a, 16, 18)
    u_loads()
    a(f"s_branch {join}")
    a.L = keep
    final_loads(a)
    lds_min_wait(a, C_CNT, W_FREE, 4, 6, 20)
    a.c("the other helper must be done with its transpose scratch before the conv region is written")
    lds_min_wait(a, C_CNT, W_HP, 1, 2, 20)
    if opt("HW7", 0):
        conv_h_shift(a)
    conv_h_stage(a)
    a("s_waitcnt vmcnt(2)")
    for i in range(4):
        a(f"ds_write_b128 v10, {v(128+4*i,4)} offset:{4*HSTR + 1024*i}")
    stamp(a, 6)


C_ACC, C_F0, C_F1 = 16, 48, 112
C_AA, C_BA = 2, 3


def bsync_post(a, n=4):
    a(f"s_add_u32 {s(S_CNT)}, {s(S_CNT)}, {n}")
    a("s_mov_b64 exec, 1")
    a(f"ds_add_u32 {v(C_CNT)}, {v(C_ONE)}")
    a("s_mov_b64 exec, -1")


def bsync_wait(a, nap=None):
    lds_min_wait(a, C_CNT, W_CNT, 1, s(S_CNT), 6, nap=opt("BNAP", 0) if nap is None else nap)


def bsync(a, n=4):
    bsync_post(a, n)
    bsync_wait(a)


def conv_reads(fr, roff):
    out = []
    for p in range(8):
        out.append(f"ds_read_b128 {v(fr+4*p,4)}, {v(C_AA)} offset:{512*p + roff}")
        out.append(f"ds_read_b64 {v(fr+32+4*p,2)}, {v(C_BA)} offset:{512*(7-p) + roff}")
        out.append(f"ds_read_b64 {v(fr+32+4*p+2,2)}, {v(C_BA)} offset:{512*(7-p) + roff + 8}")
    return out


def conv_mfmas(fr, first):
    out = []
    for tot in range(8):
        for p in range(tot + 1):
            q = tot - p
            out.append((max(p, q), f"v_mfma_f32_16x16x32_bf16 {v(C_ACC+4*tot,4)}, {v(fr+4*p,4)}, {v(fr+32+4*q,4)}, ", C_ACC + 4*tot))
    out.sort(key=lambda t: t[0])
    res, seen = [], set()
    for _, txt, c in out:
        res.append(txt + ("0" if first and c not in seen else v(c, 4)))
        seen.add(c)
    return res


HR = 200


def conv_h_loads(a):
    a(f"s_mul_i32 {s(S_RING)}, {s(S_SH)}, {CH_STR}\ns_add_u32 {s(S_RING)}, {s(S_RING)}, {L_CONV}")
    for h in range(4):
        a(f"buffer_load_dwordx4 {v(HR+6*h+2,4)}, v4, {s(R_H,4)}, {s(S_HO)} offen offset:{1024*h} {NT}")


def conv_h_shift(a, z=24):
    for i in range(4):
        a(f"v_mov_b32 {v(z+i)}, 0")
    a(f"v_add_u32 v10, {s(S_RING)}, v4")
    T = 72
    a.c("the two dwords in front of each lane's piece come from the lane below")
    for h in range(4):
        r = HR + 6 * h
        for i in range(2):
            a(f"v_mov_b32_dpp {v(r+i)}, {v(r-2+i)} wave_ror:1 row_mask:0xf bank_mask:0xf" if h else f"v_mov_b32 {v(r+i)}, 0")
    for h in range(4):
        r = HR + 6 * h
        for i in range(2):
            a(f"v_mov_b32_dpp {v(r+i)}, {v(r+4+i)} wave_shr:1 row_mask:0xf bank_mask:0xf")
    for h in range(4):
        r = HR + 6 * h
        for i in range(4):
            a(f"v_alignbit_b32 {v(T+i)}, {v(r+2+i)}, {v(r+1+i)}, 16")
        for i in range(4):
            a(f"v_mov_b32 {v(T+4+i)}, {v(r+1+i)}")
        for i in range(4):
            a(f"v_alignbit_b32 {v(T+8+i)}, {v(r+1+i)}, {v(r+i)}, 16")
        T += 12


def conv_h_stage(a, z=24):
    a.c("zero pads: 384 B in front of each h copy, 128 B behind u")
    a("s_mov_b64 exec, 0xffffff")
    for p in range(4):
        a(f"ds_write_b128 v10, {v(z,4)} offset:{p*HSTR}")
    a("s_mov_b64 exec, 0xff")
    a(f"ds_write_b128 v10, {v(z,4)} offset:{4*HSTR + 4096}")
    a("s_mov_b64 exec, -1")
    for h in range(4):
        a(f"ds_write_b128 v10, {v(HR+6*h+2,4)} offset:{384 + 1024*h}")
        for p in range(1, 4):
            a(f"ds_write_b128 v10, {v(72+12*h+4*(p-1),4)} offset:{p*HSTR + 384 + 1024*h}")


def conv_mid(a):
    a("s_waitcnt vmcnt(0)")
    a(f"ds_write_b32 v11, v251 offset:{W_WD}")
    poll2_check(a, 5, 198)
    a(f"s_lshl_b32 {s(S_T0)}, {s(S_MT)}, 2\ns_add_u32 {s(S_T0)}, {s(S_T0)}, {s(S_WB)}\ns_lshl_b32 {s(S_T0)}, {s(S_T0)}, 8\ns_add_u32 {s(S_T0)}, {s(S_T0)}, {WS_ST:#x}")
    a(f"buffer_load_dwordx4 {v(184,4)}, v15, {s(R_WS,4)}, {s(S_T0)} offen sc1")
    a(f"buffer_load_dwordx4 {v(188,4)}, v15, {s(R_WS,4)}, {s(S_T0)} offen offset:128 sc1")


def conv_main(a):
    U, UU, X, O = 48, 56, 112, 144
    for l in conv_reads(C_F0, 0):
        a(l)
    for r in range(4):
        cur, nxt = (C_F0, C_F1) if r % 2 == 0 else (C_F1, C_F0)
        a("s_waitcnt lgkmcnt(0)")
        if r < 3:
            rd = conv_reads(nxt, 64 * (r + 1))
        else:
            rd = [f"ds_read_b32 {v(U+2*b+c)}, v10 offset:{c*CH_STR + 256*(3-b)}" for b in range(4) for c in range(2)]
        for l in interleave(conv_mfmas(cur, r == 0), rd, 0, 1):
            a(l)
        if r == opt("WDR", 0):
            conv_mid(a)
    lstamp(a, 5)
    a(f"s_setprio {opt('PRX', opt('PRC', 3))}")
    bsync(a)
    if opt("XST", 0): lstamp(a, 1)
    for t in range(8):
        a(f"ds_write_b128 v8, {v(C_ACC+4*t,4)} offset:{t*1024}")
    bsync_post(a)
    a.c("skip term D*u at rows 512wb + 128b + 2l, +1")
    a(f"s_lshl_b32 s100, {s(S_C+1)}, 16\ns_and_b32 {s(S_C+1)}, {s(S_C+1)}, 0xffff0000")
    for b in range(4):
        for c in range(2):
            u, o = U + 2*b + c, UU + 4*b + 2*c
            a(f"v_and_b32 {v(o)}, {s(S_C)}, {v(u)}\nv_lshlrev_b32 {v(o+1)}, 16, {v(u)}")
    for b in range(4):
        for c in range(2):
            for j in range(2):
                a(f"v_mul_f32 {v(UU+4*b+2*c+j)}, {s(S_C+1) if c else 's100'}, {v(UU+4*b+2*c+j)}")
        a(f"v_mov_b32 {v(O+4*b+1)}, {s(S_NON)}\nv_mov_b32 {v(O+4*b+3)}, {s(S_NON)}")
    bsync_wait(a)
    if opt("XST", 0): lstamp(a, 2)
    for b in range(4):
        for w in range(4):
            a(f"ds_read_b64 {v(X+8*b+2*w,2)}, v9 offset:{w*8192 + b*512}")
    a("s_waitcnt vmcnt(0)")
    for b in range(4):
        a(f"s_waitcnt lgkmcnt({4*(3-b)})")
        for c in range(2):
            for j in range(2):
                o, x0 = UU + 4*b + 2*c + j, X + 8*b + 4*c + j
                a(f"v_add_f32 {v(o)}, {v(o)}, {v(x0)}")
        for c in range(2):
            for j in range(2):
                o, x0 = UU + 4*b + 2*c + j, X + 8*b + 4*c + j
                a(f"v_add_f32 {v(o)}, {v(o)}, {v(x0+2)}")
        for j in range(2):
            a(f"v_cvt_pk_bf16_f32 {v(O+4*b+2*j)}, {v(UU+4*b+j)}, {v(UU+4*b+2+j)}")
        if opt("XST", 0) and b == 0: lstamp(a, 3)
        a(f"buffer_store_dwordx4 {v(O+4*b,4)}, v4, {s(R_WS,4)}, {s(S_HO)} offen offset:{1024*b} sc1")
    a.c("the flag only says where to look: the granules carry their own tags")
    if opt("YACK", 0):
        a("s_waitcnt vmcnt(0)")
    flag_store(a, S_DO, 8, 9)


def conv_addr(a):
    a(f"s_lshr_b32 {s(S_T0)}, {s(S_WB)}, 1\ns_mul_i32 {s(S_RING)}, {s(S_T0)}, {CH_STR}\ns_add_u32 {s(S_RING)}, {s(S_RING)}, {L_CONV}")
    a(f"s_lshl_b32 {s(S_T3)}, {s(S_TI)}, 2\ns_load_dword {s(S_C+1)}, {s(S_DP,2)}, {s(S_T3)}")
    a.c("A address: base + (3-(m&3))*HSTR + 128*(m>>2) + 16*kg + 256*rh ; B address: ubase + 120 - 8n + 16kg + 256*rh")
    a(f"s_and_b32 {s(S_T0)}, {s(S_WB)}, 1\ns_lshl_b32 {s(S_T0)}, {s(S_T0)}, 8\ns_add_u32 {s(S_T0)}, {s(S_T0)}, {s(S_RING)}")
    a(f"v_and_b32 v6, 3, v0\nv_sub_u32 v6, 3, v6\nv_mul_u32_u24 v6, {HSTR}, v6\nv_bfe_u32 v7, v0, 2, 2\nv_lshl_add_u32 v6, v7, 7, v6")
    a(f"v_and_b32 v7, 48, v0\nv_add3_u32 {v(C_AA)}, v6, v7, {s(S_T0)}")
    a(f"v_and_b32 v6, 15, v0\nv_lshlrev_b32 v6, 3, v6\nv_sub_u32 v6, v7, v6\ns_add_u32 {s(S_T0)}, {s(S_T0)}, {4*HSTR + 120}\nv_add_u32 {v(C_BA)}, {s(S_T0)}, v6")
    a(f"s_lshl_b32 {s(S_T0)}, {s(S_WB)}, 13\ns_add_u32 {s(S_T0)}, {s(S_T0)}, {L_XCH}\nv_add_u32 v8, {s(S_T0)}, v4")
    a(f"s_lshl_b32 {s(S_T0)}, {s(S_WB)}, 11\ns_add_u32 {s(S_T0)}, {s(S_T0)}, {L_XCH}\nv_lshlrev_b32 v9, 3, v0\nv_add_u32 v9, {s(S_T0)}, v9")
    a.c("u for the skip term: ubase_c + 2*(2046 - 512wb - 128b - 2l)")
    a(f"s_lshl_b32 {s(S_T0)}, {s(S_WB)}, 10\ns_sub_u32 {s(S_T0)}, {L_CONV + 4*HSTR + 4092 - 768}, {s(S_T0)}\nv_lshlrev_b32 v10, 2, v0\nv_sub_u32 v10, {s(S_T0)}, v10")
    a.c("y granules: YG[ti][row*8]; flag F4[wb*256 + ti]")
    a(f"s_mul_i32 {s(S_T0)}, {s(S_TI)}, {YSTR}\ns_lshl_b32 {s(S_T1)}, {s(S_WB)}, 12\ns_add_u32 {s(S_T0)}, {s(S_T0)}, {s(S_T1)}\ns_add_u32 {s(S_HO)}, {s(S_T0)}, {WS_YG:#x}")
    a(f"s_lshl_b32 {s(S_T0)}, {s(S_WB)}, 8\ns_add_u32 {s(S_T0)}, {s(S_T0)}, {s(S_TI)}\ns_lshl_b32 {s(S_T0)}, {s(S_T0)}, 7\ns_add_u32 {s(S_DO)}, {s(S_T0)}, {WS_F4:#x}")
    a(f"s_mov_b32 {s(S_CNT)}, 0\ns_lshl_b32 {s(S_T0)}, {s(S_WB)}, 2\nv_add_u32 v11, {s(S_T0)}, {v(C_CNT)}\nv_mov_b32 v251, 3")
    a.c("F1 pairs of the two tiles that hold this wave's output rows")
    a(f"s_lshl_b32 {s(S_T1)}, {s(S_MT)}, 2\ns_add_u32 {s(S_T1)}, {s(S_T1)}, {s(S_WB)}\ns_lshl_b32 {s(S_T1)}, {s(S_T1)}, 8\ns_add_u32 {s(S_T1)}, {s(S_T1)}, {WS_F1:#x}")
    a(f"v_and_b32 v5, 1, v0\nv_lshlrev_b32 v5, 7, v5\nv_add_u32 v5, {s(S_T1)}, v5")
    poll2_issue(a, 5, 198)


def final_loads(a):
    a(f"s_lshl_b32 {s(S_T0)}, {s(S_MT)}, 2\ns_add_u32 {s(S_T0)}, {s(S_T0)}, {s(S_WB)}\ns_lshl_b32 {s(S_T1)}, {s(S_T0)}, 14\ns_lshl_b32 {s(S_T2)}, {s(S_NT)}, 7\ns_add_u32 {s(S_XO)}, {s(S_T1)}, {s(S_T2)}")
    a(f"s_add_u32 {s(S_WO)}, {s(S_XO)}, 8192")
    a("v_lshrrev_b32 v12, 3, v0\nv_and_b32 v13, 7, v0\nv_lshlrev_b32 v14, 4, v13\nv_lshl_add_u32 v14, v12, 10, v14\nv_lshlrev_b32 v15, 4, v12")
    a(f"buffer_load_dwordx4 {v(176,4)}, v14, {s(R_X,4)}, {s(S_XO)} offen")
    a(f"buffer_load_dwordx4 {v(180,4)}, v14, {s(R_X,4)}, {s(S_WO)} offen")


def final(a):
    XU, XN, YU, YL = 16, 72, 96, 160
    a.c("flags F4[(mt>>3)*256 + 32nt + 8wb + (l&7)]; granules of pairs 32nt + 8wb + 2i + (l>>5), rows 64mt + 2*(l&31) ..")
    a(f"s_lshl_b32 {s(S_T0)}, {s(S_NT)}, 2\ns_add_u32 {s(S_T0)}, {s(S_T0)}, {s(S_WB)}\ns_lshr_b32 {s(S_T1)}, {s(S_MT)}, 3\ns_lshl_b32 {s(S_T1)}, {s(S_T1)}, 5\ns_add_u32 {s(S_T1)}, {s(S_T1)}, {s(S_T0)}")
    a(f"s_lshl_b32 {s(S_T1)}, {s(S_T1)}, 10\ns_add_u32 {s(S_T1)}, {s(S_T1)}, {WS_F4:#x}\nv_lshlrev_b32 v5, 7, v13\nv_add_u32 v5, {s(S_T1)}, v5")
    a(f"s_mul_i32 {s(S_T0)}, {s(S_T0)}, {8*YSTR}\ns_lshl_b32 {s(S_T1)}, {s(S_MT)}, 9\ns_add_u32 {s(S_T0)}, {s(S_T0)}, {s(S_T1)}\ns_add_u32 {s(S_HO)}, {s(S_T0)}, {WS_YG:#x}")
    a(f"v_lshrrev_b32 v10, 5, v0\nv_mul_u32_u24 v8, {YSTR - 512}, v10\nv_add_u32 v8, v8, v4")

    def y_loads():
        a(f"s_mov_b32 {s(S_T1)}, {s(S_HO)}")
        for i in range(4):
            a(f"buffer_load_dwordx4 {v(YL+4*i,4)}, v8, {s(R_WS,4)}, {s(S_T1)} offen sc1")
            if i < 3:
                a(f"s_add_u32 {s(S_T1)}, {s(S_T1)}, {2*YSTR}")
    for t in range(2):
        for i in range(4):
            a(f"v_lshlrev_b32 {v(XU+8*t+2*i)}, 16, {v(176+4*t+i)}\nv_and_b32 {v(XU+8*t+2*i+1)}, {s(S_C)}, {v(176+4*t+i)}")
    for i in range(16):
        a(f"v_mov_b32 {v(YU+i)}, 0")
    a.c("transpose scratch [wb'][c*272 + e*64 + row*4]")
    a(f"s_mul_i32 {s(S_T0)}, {s(S_WB)}, 544\ns_add_u32 {s(S_T0)}, {s(S_T0)}, {L_YL}")
    a(f"v_and_b32 v9, 3, v12\nv_mul_u32_u24 v9, 2176, v9\nv_lshl_add_u32 v9, v10, 6, v9\nv_lshl_add_u32 v9, v13, 3, v9\nv_add_u32 v9, {s(S_T0)}, v9")
    a(f"s_mul_i32 {s(S_T0)}, {s(S_WB)}, 2176\ns_add_u32 {s(S_T0)}, {s(S_T0)}, {L_YL}")
    a(f"v_mul_u32_u24 v7, 272, v13\nv_lshl_add_u32 v7, v12, 2, v7\nv_add_u32 v7, {s(S_T0)}, v7")
    a.c("partials: wb*16384 + w*4096 + (8t + row)*256 + ((2c + h) ^ row)*16")
    a(f"s_lshl_b32 {s(S_T0)}, {s(S_WB)}, 14\nv_lshlrev_b32 v2, 1, v13\nv_xor_b32 v2, v2, v12\nv_lshlrev_b32 v2, 4, v2\nv_lshl_add_u32 v2, v12, 8, v2\nv_add_u32 v2, {s(S_T0)}, v2")
    a("v_xor_b32 v3, 16, v2")
    for t in range(2):
        a(f"v_mul_f32 {v(185+4*t)}, {f32bits(1.0/C1):#x}, {v(185+4*t)}")
        for i in range(8):
            a(f"v_sub_f32 {v(XN+8*t+i)}, {v(XU+8*t+i)}, {v(184+4*t)}")
        for i in range(8):
            a(f"v_mul_f32 {v(XN+8*t+i)}, {v(XN+8*t+i)}, {v(185+4*t)}")
    if not opt('LDST', 0): stamp(a, 7)
    a(f"s_setprio {opt('PRP', 0)}")
    a.c("stay off the memory path until the GEMM2 waves have issued their loads")
    lds_min_wait(a, C_CNT, W_HI, 1, 4, 6, nap=2)
    a(f"s_setprio {opt('PRF', 3)}")
    if not opt('LDST', 0): stamp(a, 8)
    top, done = a.label("yp"), a.label("yp_ok")
    a(f"s_mov_b32 {s(S_IT)}, 0")
    if opt("YFLAG", 0):
        poll(a, 5, 6)
    a(f"{top}:")
    y_loads()
    a("s_waitcnt vmcnt(0)")
    for i in range(4):
        a(f"v_xor_b32 {v(48+i)}, {s(S_NON)}, {v(YL+4*i+1)}\nv_xor_b32 {v(52+i)}, {s(S_NON)}, {v(YL+4*i+3)}\nv_mov_b32 {v(YL+4*i+1)}, {v(YL+4*i+2)}")
    a("v_or3_b32 v48, v48, v49, v50\nv_or3_b32 v51, v51, v52, v53\nv_or3_b32 v48, v48, v54, v55\nv_or_b32 v48, v48, v51\nv_cmp_ne_u32 vcc, 0, v48")
    a(f"s_cbranch_vccz {done}")
    poll(a, 5, 6)
    a(f"s_add_u32 {s(S_IT)}, {s(S_IT)}, {s(S_SPIN)}\ns_add_u32 {s(S_IT)}, {s(S_IT)}, 1\ns_cmp_lt_u32 {s(S_IT)}, {SPIN_MAX}\ns_cbranch_scc1 {top}")
    a(f"{done}:")
    for i in range(4):
        a(f"ds_write_b64 v9, {v(YL+4*i,2)} offset:{272*(i>>1) + 128*(i&1)}")
    bsync(a)
    for t in range(2):
        for e in range(8):
            a(f"ds_read_u16_d16_hi {v(YU+8*t+e)}, v7 offset:{64*(e>>1) + 32*t + 2*(e&1)}")
    for t in range(2):
        a(f"s_waitcnt lgkmcnt({8*(1-t)})")
        for i in range(8):
            a(f"v_fmac_f32 {v(XU+8*t+i)}, {v(XN+8*t+i)}, {v(YU+8*t+i)}")
    if not opt('LDST', 0): stamp(a, 9)
    if STAMPS:
        a("s_waitcnt lgkmcnt(0)")
    a("s_barrier")
    P = 112
    for t in range(2):
        for w in range(4):
            for h in range(2):
                a(f"ds_read_b128 {v(P+32*t+8*w+4*h,4)}, {'v3' if h else 'v2'} offset:{w*4096 + t*2048}")
    for t in range(2):
        a(f"s_waitcnt lgkmcnt({8*(1-t)})")
        p = P + 32 * t
        for i in range(4):
            a(f"v_pk_add_f32 {v(p+2*i,2)}, {v(p+2*i,2)}, {v(p+8+2*i,2)}")
        for i in range(4):
            a(f"v_pk_add_f32 {v(p+16+2*i,2)}, {v(p+16+2*i,2)}, {v(p+24+2*i,2)}")
        for i in range(4):
            a(f"v_pk_add_f32 {v(p+2*i,2)}, {v(p+2*i,2)}, {v(XU+8*t+2*i,2)}")
        for i in range(4):
            a(f"v_pk_add_f32 {v(p+2*i,2)}, {v(p+2*i,2)}, {v(p+16+2*i,2)}")
        for i in range(4):
            a(f"v_cvt_pk_bf16_f32 {v(48+4*t+i)}, {v(p+2*i)}, {v(p+2*i+1)}")
        a(f"buffer_store_dwordx4 {v(48+4*t,4)}, v14, {s(R_OUT,4)}, {s(S_WO if t else S_XO)} offen")


def epoch_flags_issue(a):
    a(f"v_lshlrev_b32 v6, 7, v0\ns_mov_b32 {s(S_T0)}, {WS_F1:#x}")
    for i in range(4):
        a(f"buffer_load_dword {v(2+i)}, v6, {s(R_WS,4)}, {s(S_T0)} offen sc1")
        a(f"s_add_u32 {s(S_T0)}, {s(S_T0)}, 8192")


def epoch_pre(a):
    done = a.label("ep_skip")
    a(f"s_lshl_b32 {s(S_T0)}, s2, 3\ns_add_u32 {s(S_T0)}, {s(S_T0)}, {s(S_WAVE)}\ns_cmp_lg_u32 {s(S_T0)}, 0\ns_cbranch_scc1 {done}")
    epoch_flags_issue(a)
    a(f"{done}:")


def epoch_advance(a):
    done, top, ok = a.label("ep_skip"), a.label("ep_top"), a.label("ep_ok")
    a(f"s_lshl_b32 {s(S_T0)}, s2, 3\ns_add_u32 {s(S_T0)}, {s(S_T0)}, {s(S_WAVE)}\ns_cmp_lg_u32 {s(S_T0)}, 0\ns_cbranch_scc1 {done}")
    a(f"s_mov_b32 {s(S_SPIN)}, 0")
    a(f"{top}:")
    for i in range(4):
        a(f"v_xor_b32 {v(2+i)}, {s(S_NON)}, {v(2+i)}")
    a("v_or_b32 v2, v2, v3\nv_or_b32 v4, v4, v5\nv_or_b32 v2, v2, v4\nv_cmp_ne_u32 vcc, 0, v2")
    a(f"s_cbranch_vccz {ok}")
    a(f"s_add_u32 {s(S_SPIN)}, {s(S_SPIN)}, 1\ns_cmp_ge_u32 {s(S_SPIN)}, {SPIN_MAX}\ns_cbranch_scc1 {ok}")
    epoch_flags_issue(a)
    a(f"s_waitcnt vmcnt(0)\ns_branch {top}")
    a(f"{ok}:")
    a(f"s_mov_b32 {s(S_T0)}, {WS_EP:#x}")
    flag_store(a, S_T0, 8, 9)
    a(f"{done}:")


def kernel(a):
    entry(a)
    prologue(a, False, 1)
    g1_compute(a)
    g1_epilogue(a)
    epoch_pre(a)
    g2_main(a)
    epoch_advance(a)
    stamp_flush(a)
    a("s_endpgm")
    a(f".p2align {opt('AL', 6)}\n" + ".fill 16, 4, 0xbf800000\n" * opt("PAD", 0) + "L_load:")
    prologue(a)
    loader(a)
    a("s_branch L_bj")
    a(f".p2align {opt('AL', 6)}\nL_help:")
    prologue(a, 2 if opt("KV1", 0) else True)
    helper(a)
    a("L_bj:")
    if opt("BST", 0): lstamp(a, 1)
    conv_addr(a)
    if opt("BST", 0): lstamp(a, 2)
    bsync(a, 4 if opt("CEARLY", 0) else 8)
    a(f"s_setprio {opt('PRC', 3)}")
    lstamp(a, 4)
    conv_main(a)
    lstamp(a, 6)
    final(a)
    stamp_flush(a)
    a("s_endpgm")
    a.L += COLD.L
    a("L_end:\ns_endpgm")


HEADER = open(f"cdna_kernels/{NAME}.s.ref").read().split("; Override launch")[0]


def build():
    a = Asm()
    kernel(a)
    out = HEADER + "; @launch grid=(256,1,1) block=(512,1,1) lds=163840\n"
    out += '.amdgcn_target "amdgcn-amd-amdhsa--gfx950"\n.text\n' + a.text()
    out += '.section .rodata,"a"\n.p2align 6\n' + kernel_desc(KNAME)
    return out


if __name__ == "__main__":
    open(sys.argv[1] if len(sys.argv) > 1 else "t_m.s", "w").write(build())
```

```python
import math, os, sys
from asmlib import *

NAME = "parallel_sum__ssm_conv_h3__geglu_ffn__prompt"
KNAME = NAME + "_kernel"
S, D, F = 2048, 512, 1376
NU = F // 16
STAMPS = os.environ.get("STAMPS") == "1"
def opt(name, default):
    return int(os.environ.get(name, default))

WS_HF, WS_KVR, WS_Y2, WS_ST, WS_CSP = 0, 0x600000, 0x800000, 0xA00000, 0xA10000
WS_F1, WS_F2, WS_F3, WS_F4, WS_EP = 0xA80000, 0xA88000, 0xAA0000, 0xAC0000, 0xAE0000
WS_STAMP = 0xC00000
WS_YG = 0x1000000
YSTR = 16384 + 256
WS_SIZE = 0x1500000
NONCE_INC = 0x9E3779B1
OOB = 0x7f000000
R_X, R_WG, R_WU, R_WS, R_K, R_V, R_SK, R_WD, R_OUT, R_H = 4, 8, 12, 16, 20, 24, 28, 32, 36, 40
S_DP = 44
S_EX = 46
(S_WAVE, S_MI, S_NI, S_FB0, S_NBLK, S_T0, S_T1, S_T2, S_T3, S_IT, S_SLOT, S_KC, S_XO, S_WO, S_WO2, S_M0,
 S_WB, S_SH, S_UH, S_TI, S_MT, S_NT, S_NON, S_RING, S_CNT, S_HO, S_DO, S_SPIN) = range(48, 76)
S_C = 76
S_DK, S_HK, S_KEND = 3, S_RING, S_CNT
SLOT, NSLOT = 40960, 3
L_KVT, KVT_STR = 122880, 80
L_CS, L_ST, L_CNT = 135680, 136704, 138752
HSTR = 4640
CH_STR = 4 * HSTR + 4224
L_CONV = 81920
L_XCH = 81920
L_YL = 114688
NRW = 7
KVL = opt("KVL", 0)
CFX, CFW, CFS, CFD = (os.environ.get(k, "") for k in ("CFX", "CFW", "CFS", "CFD"))
SLOTMAP = [2, 3, 4, 5, 6, 0, 1] if KVL else list(range(7))
L_RA0 = 127488
S_RA, S_RB = 101, S_M0
L_CSS = 139264
assert L_KVT + 2 * 64 * KVT_STR <= L_CS and L_CONV + 2 * CH_STR <= L_RA0 and L_RA0 + 8192 <= L_CS and L_CNT + 256 <= L_CSS
W_CNT, W_GATH, W_HP, W_FREE, W_FULL, W_NON, W_C0, W_ISS, W_WD, W_HI, W_WE = 0, 8, 12, 16, 32, 40, 48, 64, 80, 96, 112
S_DUM = 100
C1 = -2.0 * math.log2(math.e) * math.sqrt(2.0 / math.pi)
C2 = C1 * 0.044715
SPIN_MAX = 1 << 16
LSPIN_MAX = 1 << 22


def stamp(a, i):
    if STAMPS:
        a(f"{'s_memtime' if opt('CLK', 0) else 's_memrealtime'} {s(78+2*i,2)}")


def lstamp(a, i):
    if STAMPS and not opt("LDST", 0):
        lab = a.label("ls")
        a(f"s_cmp_ge_u32 {s(S_WB)}, 2\ns_cbranch_scc1 {lab}")
        stamp(a, i)
        a(f"{lab}:")


ITST = STAMPS and opt("ITST", 0)


def it_issue(a):
    if ITST:
        a("s_memrealtime s[96:97]")


def it_take(a, add):
    if ITST:
        a(f"s_add_u32 m0, {s(S_IT)}, {add}\ns_nop 0\nv_writelane_b32 v255, s96, m0")


def stamp_flush(a):
    if not STAMPS:
        return
    if ITST:
        a(f"s_lshl_b32 s96, s2, 3\ns_add_u32 s96, s96, {s(S_WAVE)}\ns_lshl_b32 s96, s96, 8\ns_add_u32 s96, s96, {WS_STAMP + 0x100000:#x}")
        a(f"v_lshlrev_b32 v2, 2, v0\nbuffer_store_dword v255, v2, {s(R_WS,4)}, s96 offen\ns_mov_b32 s96, 0")
    a("s_waitcnt vmcnt(0) lgkmcnt(0)")
    stamp(a, 10)
    a("s_waitcnt lgkmcnt(0)")
    for i in range(11):
        a(f"v_writelane_b32 v1, {s(78+2*i)}, {i}")
    a(f"s_lshl_b32 s78, s2, 3\ns_add_u32 s78, s78, {s(S_WAVE)}\ns_lshl_b32 s78, s78, 6\ns_add_u32 s78, s78, {WS_STAMP:#x}")
    a("v_lshlrev_b32 v2, 2, v0\ns_mov_b64 exec, 0x7ff")
    a(f"buffer_store_dword v1, v2, {s(R_WS,4)}, s78 offen")
    if opt("DBGST", 0):
        lab = a.label("dbg")
        a(f"s_cmp_lg_u32 s78, {WS_STAMP + opt('DBGW', 0)*64 + 100*512:#x}\ns_cbranch_scc1 {lab}")
        a("s_load_dwordx2 s[84:85], s[0:1], 88\ns_mov_b32 s86, 256\ns_mov_b32 s87, 0x20000\nv_readlane_b32 s82, v1, 0\ns_waitcnt lgkmcnt(0)")
        a("v_subrev_u32 v1, s82, v1")
        a("buffer_store_dword v1, v2, s[84:87], 0 offen")
        a(f"{lab}:")


TABLE = [(R_X, 0, S*D*2), (R_WG, 56, D*F*2), (R_WU, 64, D*F*2), (R_WS, 96, WS_SIZE), (R_K, 8, S*D*2), (R_V, 16, S*D*2),
         (R_SK, 24, D*8), (R_WD, 72, D*F*2), (R_OUT, 80, S*D*2), (R_H, 32, S*D*2)]


def entry(a):
    a(f".globl {KNAME}\n.p2align 8\n.type {KNAME},@function\n{KNAME}:")
    a("s_cmp_ge_u32 s2, 256\ns_cbranch_scc1 L_end")
    if opt("CPF", 0):
        n = opt("CPF", 0)
        a.c("pull this workgroup's share of the code into L2 ahead of the instruction fetch")
        a(f"s_getpc_b64 {s(S_EX,2)}\nL_pc:")
        a(f"s_lshr_b32 s3, s2, 3\nv_lshlrev_b32 v2, 5, v0\nv_add_u32 v2, s3, v2\nv_lshlrev_b32 v2, 7, v2\nv_mov_b32 v3, {s(S_EX+1)}")
        a(f"v_cmp_gt_u32 vcc, L_end-L_pc, v2\ns_and_saveexec_b64 {s(S_DP,2)}, vcc\ns_cbranch_execz L_nopf")
        a(f"v_add_co_u32 v2, vcc, {s(S_EX)}, v2\nv_addc_co_u32 v3, vcc, 0, v3, vcc")
        a("global_load_dword v212, v[2:3], off")
        a("L_nopf:\ns_mov_b64 exec, -1")
    a("v_lshrrev_b32 v1, 6, v0")
    a(f"s_load_dwordx2 {s(R_X,2)}, s[0:1], 0\ns_load_dwordx2 {s(R_WS,2)}, s[0:1], 96")
    stamp(a, 0)
    a(f"v_readfirstlane_b32 {s(S_WAVE)}, v1")
    a("v_and_b32 v0, 63, v0")
    a(f"s_cmp_ge_u32 {s(S_WAVE)}, 6\ns_cbranch_scc1 L_help")
    a(f"s_cmp_ge_u32 {s(S_WAVE)}, 4\ns_cbranch_scc1 L_load")


def prologue(a, bar=True, part=3):
    first = (R_X, R_WG, R_WU)
    if part & 1:
        for r, off, size in TABLE:
            if r in first[1:]:
                a(f"s_load_dwordx2 {s(r,2)}, s[0:1], {off}")
    if part & 2:
        for r, off, size in TABLE:
            if r not in first + (R_WS,):
                a(f"s_load_dwordx2 {s(r,2)}, s[0:1], {off}")
        a(f"s_load_dwordx2 {s(S_DP,2)}, s[0:1], 40")
        if STAMPS:
            for i in range(1, 11):
                a(f"s_mov_b32 {s(78+2*i)}, 0")
        if ITST:
            a("v_mov_b32 v255, 0")
    if part & 1 and not bar:
        a.c("LDS hand-off words start at zero")
        a(f"v_mov_b32 v20, 0\nv_lshlrev_b32 v5, 2, v0\nv_add_u32 v5, {L_CNT}, v5\nds_write_b32 v5, v20")
    for r, off, size in TABLE:
        if part & (1 if r in first else 2):
            a(f"s_mov_b32 {s(r+2)}, {size:#x}\ns_mov_b32 {s(r+3)}, 0x20000")
    if part & 1:
        a.c("x = wg&7, j = wg>>3; GEMM1 tile mi = 8*(x&1) + (j&7), ni = 4*(x>>1) + (j>>3); ti = 16*mi + ni")
        a(f"s_and_b32 {s(S_T0)}, s2, 1\ns_lshl_b32 {s(S_T0)}, {s(S_T0)}, 3")
        a(f"s_bfe_u32 {s(S_T1)}, s2, 0x30003\ns_add_u32 {s(S_MI)}, {s(S_T0)}, {s(S_T1)}")
        a(f"s_bfe_u32 {s(S_T0)}, s2, 0x20001\ns_lshl_b32 {s(S_T0)}, {s(S_T0)}, 2")
        a(f"s_lshr_b32 {s(S_T2)}, s2, 6\ns_add_u32 {s(S_NI)}, {s(S_T0)}, {s(S_T2)}")
        NIM = {1: [0,1,2,4, 5,6,7,8, 9,10,11,3, 12,13,14,15], 2: [0,1,2,4, 5,6,8,9, 10,11,3,7, 12,13,14,15],
               3: [0,1,2,3, 4,5,6,7, 12,13,14,15, 8,9,10,11], 4: [0,1,2,4, 5,6,7,8, 13,14,15,3, 9,10,11,12],
               5: [0,4,8,12, 1,5,9,13, 3,7,11,15, 2,6,10,14]}.get(opt("NIM", 5))
        if NIM:
            assert sorted(NIM) == list(range(16))
            tab = sum(x << (4*i) for i, x in enumerate(NIM))
            a.c("column tiles are dealt so that the two-block ones sit on the later-starting slots")
            a(f"s_mov_b32 {s(S_EX)}, {tab & 0xffffffff:#x}\ns_mov_b32 {s(S_EX+1)}, {tab >> 32:#x}\ns_lshl_b32 {s(S_NI)}, {s(S_NI)}, 2")
            a(f"s_lshr_b64 {s(S_EX,2)}, {s(S_EX,2)}, {s(S_NI)}\ns_and_b32 {s(S_NI)}, {s(S_EX)}, 15")
        a.c("first 32-col block fb0 = 3*ni - (ni>>2) - (ni==15); nblk = 2 for ni in {3,7,11,14,15}")
        a(f"s_mul_i32 {s(S_FB0)}, {s(S_NI)}, 3\ns_lshr_b32 {s(S_T0)}, {s(S_NI)}, 2\ns_sub_u32 {s(S_FB0)}, {s(S_FB0)}, {s(S_T0)}")
        a(f"s_cmp_eq_u32 {s(S_NI)}, 15\ns_subb_u32 {s(S_FB0)}, {s(S_FB0)}, 0")
        a(f"s_bitcmp1_b32 0xc888, {s(S_NI)}\ns_cselect_b32 {s(S_NBLK)}, 2, 3")
        a(f"s_and_b32 {s(S_WB)}, {s(S_WAVE)}, 3")
        a.c("GEMM1 DMA lane offsets. x: (l>>3)*1024 + ((l&7) ^ ((4*(w&1) + l>>4)&7))*16 ; W: (l>>2)*2752 + ((l&3) ^ (2*(l>>5)))*16")
        a(f"s_and_b32 {s(S_T0)}, {s(S_WAVE)}, 1\ns_lshl_b32 {s(S_T0)}, {s(S_T0)}, 2")
        a(f"v_lshrrev_b32 v5, 4, v0\nv_add_u32 v5, {s(S_T0)}, v5\nv_and_b32 v6, 7, v0\nv_xor_b32 v5, v5, v6\nv_lshlrev_b32 v5, 4, v5")
        a(f"v_lshrrev_b32 v6, 3, v0\nv_lshl_add_u32 {v(VB_X)}, v6, 10, v5")
        a(f"v_lshrrev_b32 v5, 5, v0\nv_lshlrev_b32 v5, 1, v5\nv_and_b32 v6, 3, v0\nv_xor_b32 v5, v5, v6\nv_lshlrev_b32 v5, 4, v5")
        a(f"v_lshrrev_b32 v6, 2, v0\nv_mul_u32_u24 v6, {F*2}, v6\nv_add_u32 {v(VB_W)}, v6, v5")
        if not bar:
            a(f"s_lshl_b32 {s(S_XO)}, {s(S_MI)}, 17\ns_lshl_b32 {s(S_T0)}, {s(S_WB)}, 13\ns_add_u32 {s(S_XO)}, {s(S_XO)}, {s(S_T0)}")
            a(f"s_mul_i32 {s(S_WO)}, {s(S_WB)}, {16*F*2}\ns_lshl_b32 {s(S_T0)}, {s(S_FB0)}, 6\ns_add_u32 {s(S_WO)}, {s(S_WO)}, {s(S_T0)}")
            a(f"s_cmp_eq_u32 {s(S_NBLK)}, 3\ns_cselect_b32 {s(S_WO2)}, {s(S_WO)}, {OOB:#x}")
            a(f"s_lshl_b32 {s(S_M0)}, {s(S_WB)}, 10")
    if part & 2:
        a(f"s_lshl_b32 {s(S_TI)}, {s(S_MI)}, 4\ns_add_u32 {s(S_TI)}, {s(S_TI)}, {s(S_NI)}")
        if opt("MTL", 1):
            a.c("GEMM2 tile mt = 16*(x&1) + 4*(x>>1) + (j&3), nt = j>>2")
            a(f"s_and_b32 {s(S_T0)}, s2, 1\ns_lshl_b32 {s(S_T0)}, {s(S_T0)}, 4\ns_and_b32 {s(S_T1)}, s2, 6\ns_lshl_b32 {s(S_T1)}, {s(S_T1)}, 1\ns_add_u32 {s(S_T0)}, {s(S_T0)}, {s(S_T1)}")
            a(f"s_bfe_u32 {s(S_T1)}, s2, 0x20003\ns_add_u32 {s(S_MT)}, {s(S_T0)}, {s(S_T1)}")
        else:
            a.c("GEMM2 tile mt = 4*x + (j&3), nt = j>>2")
            a(f"s_and_b32 {s(S_T0)}, s2, 7\ns_lshl_b32 {s(S_T0)}, {s(S_T0)}, 2\ns_bfe_u32 {s(S_T1)}, s2, 0x20003\ns_add_u32 {s(S_MT)}, {s(S_T0)}, {s(S_T1)}")
        a(f"s_lshr_b32 {s(S_NT)}, s2, 5\ns_mov_b32 {s(S_SPIN)}, 0")
    if bar:
        a(f"s_mov_b32 {s(S_UH)}, 0\nv_lshlrev_b32 v4, 4, v0\nv_mov_b32 {v(C_CNT)}, {L_CNT}\nv_mov_b32 {v(C_ONE)}, 1\ns_mov_b32 {s(S_C)}, 0xffff0000")
    if part & 1:
        a("s_waitcnt lgkmcnt(0)")
    if bar is True:
        a("s_barrier")


VB_X, VB_W = 14, 15
C_CNT, C_ONE = 252, 253


def poll(a, vaddr, vtmp):
    top, done = a.label("poll"), a.label("poll_ok")
    a(f"s_mov_b32 {s(S_SPIN)}, 0")
    a(f"{top}:")
    a(f"buffer_load_dword {v(vtmp)}, {v(vaddr)}, {s(R_WS,4)}, 0 offen sc1")
    a("s_waitcnt vmcnt(0)")
    a(f"v_cmp_ne_u32 vcc, {s(S_NON)}, {v(vtmp)}")
    a(f"s_cbranch_vccz {done}")
    a(f"s_sleep {opt('PSG' if vaddr == G_FL else 'PSY', 4)}")
    a(f"s_add_u32 {s(S_SPIN)}, {s(S_SPIN)}, 1\ns_cmp_lt_u32 {s(S_SPIN)}, {SPIN_MAX}\ns_cbranch_scc1 {top}")
    a(f"{done}:")


def poll2_issue(a, vaddr, vt):
    a(f"buffer_load_dwordx2 {v(vt,2)}, {v(vaddr)}, {s(R_WS,4)}, 0 offen sc1")


def poll2_check(a, vaddr, vt):
    top, done = a.label("poll"), a.label("poll_ok")
    a(f"s_mov_b32 {s(S_SPIN)}, 0")
    a(f"{top}:")
    a(f"v_cmp_ne_u32 vcc, {s(S_NON)}, {v(vt)}\nv_cmp_ne_u32 {s(S_EX,2)}, {s(S_NON)}, {v(vt+1)}")
    a(f"s_nop 0\ns_or_b64 vcc, vcc, {s(S_EX,2)}")
    a(f"s_cbranch_scc0 {done}")
    a(f"s_add_u32 {s(S_SPIN)}, {s(S_SPIN)}, 1\ns_cmp_ge_u32 {s(S_SPIN)}, {SPIN_MAX}\ns_cbranch_scc1 {done}")
    a(f"s_sleep {opt('PS2', 1)}")
    poll2_issue(a, vaddr, vt)
    a(f"s_waitcnt vmcnt(0)\ns_branch {top}")
    a(f"{done}:")


class VQ:
    def __init__(self, a):
        self.a, self.q = a, []
    def add(self, tag, n):
        self.q += [tag] * n
    def count(self, *tags):
        last = max((i for i, x in enumerate(self.q) if x in tags), default=-1)
        n = len(self.q) - 1 - last
        assert n <= 63
        return n
    def wait(self, *tags):
        self.a(f"s_waitcnt vmcnt({self.count(*tags)})")


def flag_store(a, soff, vt0, vt1):
    a(f"v_mov_b32 {v(vt0)}, {s(S_NON)}\nv_mov_b32 {v(vt1)}, 0")
    a("s_mov_b64 exec, 1")
    a(f"buffer_store_dword {v(vt0)}, {v(vt1)}, {s(R_WS,4)}, {s(soff)} offen sc1")
    a("s_mov_b64 exec, -1")


def epoch_load(a, vt):
    a(f"v_mov_b32 {v(vt)}, {WS_EP:#x}")
    a(f"buffer_load_dword {v(vt)}, {v(vt)}, {s(R_WS,4)}, 0 offen sc1")


def epoch_take(a, vt):
    a(f"v_readfirstlane_b32 {s(S_NON)}, {v(vt)}")
    a("s_nop 0")
    a(f"s_add_u32 {s(S_NON)}, {s(S_NON)}, {NONCE_INC:#x}")


V_XA0, V_XA1, V_W = 2, 3, 4
V_XC0, V_XC1, V_WC = 7, 8, 9
ACC, F0, F1 = 16, 112, 152
G_ACC, G_WF, G_H = 176, 16, 80
G_L16, G_WD, G_TR, G_TR0, G_TR5, G_FL = 240, 241, 242, 246, 250, 254
NHB, NWF, NSTEP = 6, 4, 11
G_HT = 255


def acc(u, mat, sb):
    return ACC + ((u * 2 + mat) * 4 + sb) * 4


def g1_reads(fr, step, units):
    out = []
    for u in units:
        if u == 'x':
            for sb in range(4):
                out.append(f"ds_read_b128 {v(fr+4*sb,4)}, {v(V_XC1 if step else V_XC0)} offset:{sb*2048}")
            continue
        for mat in range(2):
            r = fr + 16 + (u * 2 + mat) * 4
            for t in range(2):
                out.append(f"ds_read_b64_tr_b16 {v(r+2*t,2)}, {v(V_WC+u)} offset:{mat*12288+step*2048+t*256}")
    return out


def g1_mfmas(fr, units):
    out = []
    for u in units:
        for mat in range(2):
            for sb in range(4):
                c = acc(u, mat, sb)
                out.append(f"v_mfma_f32_16x16x32_bf16 {v(c,4)}, {v(fr+16+(u*2+mat)*4,4)}, {v(fr+4*sb,4)}, {v(c,4)}")
    return out


V_LW, V_FC, V_FL = 12, 13, 192


COLD = Asm()


def g1_step_a(a):
    rd = g1_reads(F1, 1, ['x', 0, 1, 2])
    for i, m in enumerate(g1_mfmas(F0, [0, 1])):
        if i == 0:
            a("s_waitcnt lgkmcnt(8)")
        if i == 8:
            a("s_waitcnt lgkmcnt(12)")
            a(f"ds_read_b32 {v(V_FL)}, {v(V_FL+1)} offset:{W_FULL}")
        a(rd[i])
        a(m)
    a(f"ds_write_b32 {v(V_FL+2)}, {v(V_FC)}")
    lab = a.label("g1_skip")
    a(f"s_cbranch_vccnz {lab}")
    a("s_waitcnt lgkmcnt(15)")
    for l in g1_mfmas(F0, [2]):
        a(l)
    a(f"{lab}:")


def g1_step_b(a):
    mf = g1_mfmas(F1, [0, 1])
    rd = g1_reads(F0, 0, ['x', 0, 1, 2])
    slow, lab, lab2 = a.label("g1_slow"), a.label("g1_skip"), a.label("g1_skip")
    a("s_waitcnt lgkmcnt(9)")
    a(mf[0])
    a(f"v_add_u32 {v(V_XC0)}, {s(S_SLOT)}, {v(V_XA0)}")
    a(mf[1])
    a(f"v_readfirstlane_b32 {s(S_T0)}, {v(V_FL)}")
    a(f"v_add_u32 {v(V_WC)}, {s(S_SLOT)}, {v(V_W)}")
    a(mf[2])
    extra = [f"v_add_u32 {v(V_WC+1)}, {s(S_SLOT)}, {v(V_W+1)}", f"v_add_u32 {v(V_WC+2)}, {s(S_SLOT)}, {v(V_W+2)}",
             f"v_add_u32 {v(V_XC1)}, {s(S_SLOT)}, {v(V_XA1)}", f"v_add_u32 {v(V_FC)}, 1, {v(V_FC)}"]
    flip = f"v_xor_b32 {v(V_FL+1)}, 4, {v(V_FL+1)}"
    a(f"s_cmp_lt_u32 {s(S_T0)}, {s(S_T2)}\ns_cbranch_scc1 {slow}")
    r, e = list(rd), extra + [flip]
    for i, m in enumerate(mf[3:]):
        if i == 5:
            a("s_waitcnt lgkmcnt(13)")
        a(r.pop(0))
        if i < 3:
            a(r.pop(0))
        if e:
            a(e.pop(0))
        a(m)
    assert not r
    a(f"s_cbranch_vccnz {lab}")
    a("s_waitcnt lgkmcnt(15)")
    for l in g1_mfmas(F1, [2]):
        a(l)
    a(f"{lab}:")
    if ITST:
        it_issue(a)
        a("s_waitcnt lgkmcnt(0)")
        it_take(a, 16)
    a(f"s_cmp_lt_u32 {s(S_IT)}, 8")
    a("s_cbranch_scc1 g1_loop")
    main, a = a, COLD
    a.nlabel = main.nlabel + 5000
    a.c("next chunk not in yet: finish this one first")
    a(f"{slow}:")
    a("s_waitcnt lgkmcnt(0)")
    for l in interleave(mf[3:], extra, 0, 1):
        a(l)
    a(f"s_cbranch_vccnz {lab2}")
    for l in g1_mfmas(F1, [2]):
        a(l)
    a(f"{lab2}:")
    lds_min_wait(a, V_FL+1, W_FULL, 1, s(S_T2), V_FL)
    if ITST:
        it_issue(a)
        a("s_waitcnt lgkmcnt(0)")
        it_take(a, 32)
    for l in rd:
        a(l)
    a(flip)
    a("s_branch g1_loop")


def dma_chunk0(a):
    for i in range(4):
        a(f"s_add_u32 m0, {s(S_M0)}, {i*4096}")
        a(f"s_add_u32 {s(S_XO)}, {s(S_XO)}, 32768" if i else "s_nop 0")
        a(f"buffer_load_dwordx4 {v(VB_X)}, {s(R_X,4)}, {s(S_XO)} offen {CFX} lds")
    for blk in range(3):
        for mat in range(2):
            a(f"s_add_u32 m0, {s(S_M0)}, {16384 + (mat*3+blk)*4096 - 64*blk}")
            a("s_nop 0")
            a(f"buffer_load_dwordx4 {v(VB_W)}, {s(R_WU if mat else R_WG,4)}, {s(S_WO2 if blk == 2 else S_WO)} offen offset:{64*blk} {CFW} lds")


def spf(a, srd, sbase, offs):
    for o in offs:
        a(f"s_buffer_load_dword {s(S_DUM)}, {s(srd,4)}, {s(sbase)} offset:{o:#x}")


def lds_min_wait(a, vaddr, off, n, target, vt, nap=None):
    lab = a.label("lw")
    a(f"{lab}:")
    a(f"ds_read_b{32*n} {v(vt,n)}, {v(vaddr)} offset:{off}")
    a("s_waitcnt lgkmcnt(0)")
    if n == 4:
        a(f"v_min3_u32 {v(vt)}, {v(vt)}, {v(vt+1)}, {v(vt+2)}\nv_min_u32 {v(vt)}, {v(vt)}, {v(vt+3)}")
    elif n == 2:
        a(f"v_min_u32 {v(vt)}, {v(vt)}, {v(vt+1)}")
    a("s_nop 0")
    a(f"v_readfirstlane_b32 {s(S_T0)}, {v(vt)}")
    a("s_nop 0")
    done = a.label("lw_ok")
    a(f"s_cmp_ge_u32 {s(S_T0)}, {target}\ns_cbranch_scc1 {done}")
    if nap is None:
        nap = opt("NAP", 1) if vaddr == C_CNT else 0
    if nap:
        a(f"s_sleep {nap}")
    a(f"s_add_u32 {s(S_SPIN)}, {s(S_SPIN)}, 1\ns_cmp_lt_u32 {s(S_SPIN)}, {LSPIN_MAX}\ns_cbranch_scc1 {lab}")
    a(f"{done}:")


def lds_inc(a, vaddr, vone, off):
    a(f"s_mov_b64 exec, 1\nds_add_u32 {v(vaddr)}, {v(vone)} offset:{off}\ns_mov_b64 exec, -1")


WDE = opt("WDE", 0)


def wd_setup(a, first, S_WB=S_WB):
    a.c("Wd DMA lane offset: (l>>3)*1024 + ((l&7) ^ (((l>>4)&3)<<1))*16")
    a(f"v_lshrrev_b32 v12, 4, v0\nv_lshlrev_b32 v13, 1, v12\nv_and_b32 v14, 7, v0\nv_xor_b32 v13, v13, v14\nv_lshlrev_b32 v13, 4, v13\nv_lshrrev_b32 v14, 3, v0\nv_lshl_add_u32 {v(G_WD)}, v14, 10, v13")
    a(f"s_lshl_b32 {s(S_KC)}, {s(S_WB)}, 12")
    a(f"s_lshl_b32 {s(S_RA)}, {s(S_WB)}, 13\ns_add_u32 {s(S_RB)}, {s(S_RA)}, {131072 + 16384}\ns_add_u32 {s(S_RA)}, {s(S_RA)}, 131072\ns_cmp_eq_u32 {s(S_WB)}, 0\ns_cselect_b32 {s(S_RA)}, {L_RA0}, {s(S_RA)}")
    if opt("ROT", 0):
        a(f"s_and_b32 {s(S_T0)}, {s(S_MT)}, 3\ns_mul_i32 {s(S_T0)}, {s(S_T0)}, 3\ns_mul_i32 {s(S_T1)}, {s(S_NT)}, 7\ns_add_u32 {s(S_T0)}, {s(S_T0)}, {s(S_T1)}")
        a(f"s_mul_i32 {s(S_T1)}, {s(S_T0)}, 187\ns_lshr_b32 {s(S_T1)}, {s(S_T1)}, 11\ns_mul_i32 {s(S_T1)}, {s(S_T1)}, 11\ns_sub_u32 {s(S_T0)}, {s(S_T0)}, {s(S_T1)}")
    elif opt("ROT2", 0):
        tab = {1: 0x1a90, 2: 0x3090, 3: 0x2190}[opt("ROT2", 0)]
        a(f"s_and_b32 {s(S_T0)}, {s(S_MT)}, 3\ns_lshl_b32 {s(S_T0)}, {s(S_T0)}, 2\ns_lshr_b32 {s(S_T0)}, {tab:#x}, {s(S_T0)}\ns_and_b32 {s(S_T0)}, {s(S_T0)}, 15")
    else:
        a(f"s_mov_b32 {s(S_T0)}, {opt('ROTC', 0)}")
    a(f"s_add_u32 {s(S_DK)}, {s(S_T0)}, {first}\ns_sub_u32 {s(S_T1)}, {s(S_DK)}, 11\ns_cmp_ge_u32 {s(S_DK)}, 11\ns_cselect_b32 {s(S_DK)}, {s(S_T1)}, {s(S_DK)}")
    a(f"s_mul_i32 {s(S_DO)}, {s(S_WB)}, {NSTEP*32768}\ns_lshl_b32 {s(S_T1)}, {s(S_NT)}, 7\ns_add_u32 {s(S_DO)}, {s(S_DO)}, {s(S_T1)}")


def g2_setup(a):
    a(f"v_lshlrev_b32 {v(G_L16)}, 4, v0")
    wd_setup(a, NRW)
    a(f"s_mov_b32 {s(S_HK)}, {s(S_T0)}")
    a(f"s_cmp_eq_u32 {s(S_WAVE)}, 3\ns_cselect_b32 {s(S_KEND)}, 10, 99")
    a.c("tr address: w*4096 + (l>>2)*128 + ((db ^ ((l>>3)&3))*32) + (l&3)*8")
    a(f"v_lshrrev_b32 v13, 2, v0\nv_lshlrev_b32 v13, 7, v13\nv_and_b32 v15, 3, v0\nv_lshl_add_u32 v13, v15, 3, v13\nv_add_u32 v13, {s(S_KC)}, v13\nv_and_b32 v14, 3, v14")
    a(f"s_sub_u32 {s(S_T1)}, {s(S_RA)}, {s(S_KC)}")
    for db in range(4):
        a(f"v_xor_b32 v15, {db}, v14\nv_lshl_add_u32 {v(G_TR+db)}, v15, 5, v13\nv_add_u32 {v(G_TR0+db)}, {s(S_T1)}, {v(G_TR+db)}\nv_add_u32 {v(G_TR5+db)}, 0x10000, {v(G_TR+db)}")
    a(f"s_mul_i32 {s(S_HO)}, {s(S_MT)}, {2*NU*1024}\ns_mul_i32 {s(S_T0)}, {s(S_WAVE)}, {NSTEP*2048}\ns_add_u32 {s(S_HO)}, {s(S_HO)}, {s(S_T0)}")
    a.c("H flags this wave needs: F3[mt*32 + 8w + (l&7)]")
    a(f"s_lshl_b32 {s(S_T0)}, {s(S_MT)}, 2\ns_add_u32 {s(S_T0)}, {s(S_T0)}, {s(S_WAVE)}\ns_lshl_b32 {s(S_T0)}, {s(S_T0)}, 10\ns_add_u32 {s(S_T0)}, {s(S_T0)}, {WS_F3:#x}")
    if opt("PROG", 1):
        a.c("lane (p = l&15, h = (l>>4)&1) watches the producer of unit U = 2*((rot + p) mod 11) + h")
        a(f"v_and_b32 v12, 15, v0\nv_min_u32 v12, 10, v12\nv_add_u32 v12, {s(S_HK)}, v12\nv_subrev_u32 v13, 11, v12\nv_min_u32 v12, v12, v13")
        a("v_bfe_u32 v13, v0, 4, 1\nv_lshl_add_u32 v12, v12, 1, v13\nv_mul_u32_u24 v13, 0x56, v12\nv_lshrrev_b32 v13, 8, v13")
        a(f"s_cmp_eq_u32 {s(S_WAVE)}, 3\ns_cselect_b32 {s(S_T1)}, 2, 3\nv_lshrrev_b32 v12, 1, v12\nv_subrev_u32 v12, {s(S_T1)}, v12")
        a(f"v_max_i32 v12, v12, v13\nv_min_u32 v12, 7, v12\nv_lshlrev_b32 v12, 7, v12\nv_add_u32 {v(G_FL)}, {s(S_T0)}, v12")
        return
    if not opt("HT", 0):
        a(f"v_and_b32 v12, 7, v0\nv_lshlrev_b32 v12, 7, v12\nv_add_u32 {v(G_FL)}, {s(S_T0)}, v12")
        return
    a.c("lane (U = l>>1, p = l&1) watches the producer of unit U and pulls line nt of that unit into L2")
    a(f"s_cmp_eq_u32 {s(S_WAVE)}, 3\ns_cselect_b32 {s(S_T1)}, 2, 3\ns_cselect_b32 {s(S_T2)}, 19, 21")
    a(f"v_lshrrev_b32 v12, 1, v0\nv_min_u32 v12, {s(S_T2)}, v12\nv_mul_u32_u24 v13, 0x56, v12\nv_lshrrev_b32 v13, 8, v13")
    a(f"v_and_b32 v15, 1, v0\nv_mul_u32_u24 v15, {NU}, v15\nv_add_u32 v15, v15, v12\nv_lshlrev_b32 v15, 10, v15\ns_lshl_b32 {s(S_T2)}, {s(S_NT)}, 7\nv_add_u32 {v(G_HT)}, {s(S_T2)}, v15")
    a(f"v_lshrrev_b32 v12, 1, v12\nv_subrev_u32 v12, {s(S_T1)}, v12")
    a(f"v_max_i32 v12, v12, v13\nv_lshlrev_b32 v12, 7, v12\nv_add_u32 {v(G_FL)}, {s(S_T0)}, v12")


def g1_compute(a):
    a(f"s_setprio {opt('PRA', 3)}")
    if opt("TOUCH", 0):
        l1, l2 = a.label("tc"), a.label("tc")
        a(f"s_mov_b32 {s(R_K+3)}, 0x20000")
        a(f"s_cmp_ge_u32 {s(S_WAVE)}, 2\ns_cbranch_scc1 {l1}")
        a(f"s_lshl_b32 {s(S_T2)}, {s(S_WAVE)}, 8\ns_add_u32 {s(R_K)}, {s(R_X)}, {s(S_T2)}\ns_addc_u32 {s(R_K+1)}, {s(R_X+1)}, 0\ns_mov_b32 {s(R_K+2)}, {S*D*2 - 256:#x}")
        RX0 = R_X
        globals()["R_X"] = R_K
        touch_x(a, (0, 4) if opt("TOUCH", 0) == 2 else (0,), 1)
        globals()["R_X"] = RX0
        a(f"s_branch {l2}\n{l1}:")
        a(f"s_cmp_eq_u32 {s(S_WAVE)}, 2\ns_cselect_b64 {s(R_K,2)}, {s(R_WG,2)}, {s(R_WU,2)}\ns_mov_b32 {s(R_K+2)}, {D*F*2:#x}")
        touch_w(a, 0, (R_K,), 1)
        a(f"{l2}:")
    dma_chunk0(a)
    a("s_barrier")
    prologue(a, False, 2)
    if opt("SPF", 0):
        a.c("warm the lines the column sums need: rows 32mi + 16*(w&1).. of gate (w<2) or up")
        a(f"s_cmp_lt_u32 {s(S_WAVE)}, 2\ns_cselect_b64 {s(R_K,2)}, {s(R_WG,2)}, {s(R_WU,2)}\ns_mov_b32 {s(R_K+2)}, {D*F*2:#x}")
        a(f"s_lshl_b32 {s(S_T0)}, {s(S_MI)}, 1\ns_and_b32 {s(S_T1)}, {s(S_WAVE)}, 1\ns_add_u32 {s(S_T0)}, {s(S_T0)}, {s(S_T1)}\ns_mul_i32 {s(S_XO)}, {s(S_T0)}, {16*F*2}")
        a(f"s_lshl_b32 {s(S_T1)}, {s(S_FB0)}, 6\ns_add_u32 {s(S_XO)}, {s(S_XO)}, {s(S_T1)}")
        spf(a, R_K, S_XO, [r*F*2 + h*128 for r in range(7) for h in range(2)])
    a(f"s_and_b32 {s(S_SH)}, {s(S_WAVE)}, 1\ns_lshr_b32 {s(S_UH)}, {s(S_WAVE)}, 1")
    a.c("x fragment address: (64*sh + s16)*128 + ((kg ^ ((s16>>1)&7))*16)")
    a("v_and_b32 v10, 15, v0\nv_lshrrev_b32 v11, 4, v0\nv_lshrrev_b32 v12, 1, v10\nv_xor_b32 v12, v12, v11\nv_lshlrev_b32 v12, 4, v12")
    a(f"v_lshl_add_u32 {v(V_XA0)}, v10, 7, v12\ns_lshl_b32 {s(S_T0)}, {s(S_SH)}, 13\nv_add_u32 {v(V_XA0)}, {s(S_T0)}, {v(V_XA0)}")
    a(f"v_xor_b32 {v(V_XA1)}, 64, {v(V_XA0)}")
    a.c("W fragment address: 16384 + blk*4096 + kg*512 + r*64 + ((h^(kg&1))*32) + c*8")
    a("v_lshlrev_b32 v12, 9, v11\nv_bfe_u32 v13, v0, 2, 2\nv_lshl_add_u32 v12, v13, 6, v12\nv_and_b32 v13, 3, v0\nv_lshl_add_u32 v12, v13, 3, v12")
    a("v_and_b32 v13, 1, v11\nv_lshl_add_u32 v12, v13, 5, v12")
    a(f"s_mul_i32 {s(S_T0)}, {s(S_UH)}, {s(S_NBLK)}")
    for u in range(3):
        a(f"s_add_u32 {s(S_T1)}, {s(S_T0)}, {u}\ns_and_b32 {s(S_T2)}, {s(S_T1)}, 1\ns_lshl_b32 {s(S_T2)}, {s(S_T2)}, 5")
        a(f"s_lshr_b32 {s(S_T1)}, {s(S_T1)}, 1\ns_lshl_b32 {s(S_T1)}, {s(S_T1)}, 12\ns_add_u32 {s(S_T1)}, {s(S_T1)}, 16384")
        a(f"v_xor_b32 {v(V_W+u)}, {s(S_T2)}, v12\nv_add_u32 {v(V_W+u)}, {s(S_T1)}, {v(V_W+u)}")
    g2_setup(a)
    ep_setup(a)
    for i in range(48):
        a(f"v_pk_mov_b32 {v(ACC+2*i,2)}, 0, 0")
    for i in range(5):
        a(f"v_mov_b32 {v(V_XC0+i)}, {v(V_XA0+i)}")
    a(f"s_mov_b32 {s(S_IT)}, 0\ns_mov_b32 {s(S_SLOT)}, 0")
    a(f"v_mov_b32 {v(V_LW)}, {L_CNT}\nv_mov_b32 {v(V_FL+1)}, {L_CNT}\nv_mov_b32 {v(V_FC)}, 1\ns_lshl_b32 {s(S_T0)}, {s(S_WAVE)}, 2\ns_add_u32 {s(S_T0)}, {s(S_T0)}, {L_CNT + W_FREE}\nv_mov_b32 {v(V_FL+2)}, {s(S_T0)}")
    a.c("vcc != 0 marks a two-block tile")
    a(f"s_cmp_eq_u32 {s(S_NBLK)}, 2\ns_cselect_b64 vcc, -1, 0")
    if opt("SPF", 0):
        spf(a, R_K, S_XO, [r*F*2 + h*128 for r in range(7, 16) for h in range(2)])
    stamp(a, 1)
    a("s_waitcnt vmcnt(0)")
    a(f"ds_write_b32 {v(V_FL+2)}, {v(V_FC)} offset:{W_C0 - W_FREE}")
    lds_min_wait(a, V_LW, W_C0, 4, 1, 196)
    stamp(a, 2)
    for l in g1_reads(F0, 0, ['x', 0, 1, 2]):
        a(l)
    a("s_waitcnt lgkmcnt(0)")
    if opt("LAL", 0):
        a(f".p2alignl {opt('LAL', 0)}, 0xbf800000")
    a("g1_loop:")
    a(f"s_add_u32 {s(S_SLOT)}, {s(S_SLOT)}, {SLOT}\ns_cmp_eq_u32 {s(S_SLOT)}, {NSLOT*SLOT}\ns_cselect_b32 {s(S_SLOT)}, 0, {s(S_SLOT)}")
    a(f"s_add_u32 {s(S_IT)}, {s(S_IT)}, 1\ns_and_b32 {s(S_T2)}, {s(S_IT)}, 7")
    g1_step_a(a)
    if ITST:
        it_issue(a)
        a("s_waitcnt lgkmcnt(0)")
        it_take(a, 0)
    g1_step_b(a)
    stamp(a, 3)


def wd_dma(i, rings=1):
    sl = SLOTMAP[i % NRW]
    ops = []
    n = 4 * rings
    for q in range(n):
        pre = f"s_lshl_b32 {s(S_T3)}, {s(S_DK)}, 15\ns_add_u32 {s(S_T3)}, {s(S_T3)}, {s(S_DO)}\n" if q == 0 else ""
        inc = 8192 if q != 4 else 2*NSTEP*32768 - 3*8192
        mid = "s_nop 0" if q == 0 else f"s_add_u32 {s(S_T3)}, {s(S_T3)}, {inc}"
        post = f"\ns_add_u32 {s(S_DK)}, {s(S_DK)}, 1\ns_cmp_eq_u32 {s(S_DK)}, 11\ns_cselect_b32 {s(S_DK)}, 0, {s(S_DK)}" if q == n - 1 else ""
        m0 = f"{s(S_RB if q >> 2 else S_RA)}, {sl*4096 + (q&3)*1024}" if sl < 2 else f"{s(S_KC)}, {(sl-2)*16384 + (q&3)*1024 + (q>>2)*8192}"
        ops.append(pre + f"s_add_u32 m0, {m0}\n{mid}\n"
                   f"buffer_load_dwordx4 {v(G_WD)}, {s(R_WD,4)}, {s(S_T3)} offen {CFD} lds" + post)
    return ops


def h_loads(i):
    hb = G_H + (i % NHB) * 16
    pre = (f"s_lshl_b32 {s(S_T1)}, {s(S_HK)}, 11\ns_add_u32 {s(S_T1)}, {s(S_T1)}, {s(S_HO)}\n"
           f"s_cmp_eq_u32 {s(S_HK)}, {s(S_KEND)}\ns_cselect_b32 {s(S_T1)}, {OOB:#x}, {s(S_T1)}\n")
    post = f"\ns_add_u32 {s(S_HK)}, {s(S_HK)}, 1\ns_cmp_eq_u32 {s(S_HK)}, 11\ns_cselect_b32 {s(S_HK)}, 0, {s(S_HK)}"
    ld = lambda r, off: f"buffer_load_dwordx4 {v(r,4)}, {v(G_L16)}, {s(R_WS,4)}, {s(S_T1)} offen offset:{off} sc1"
    return [pre + ld(hb, 0), ld(hb+4, 1024), f"s_add_u32 {s(S_T1)}, {s(S_T1)}, {NU*1024}\n" + ld(hb+8, 0), ld(hb+12, 1024) + post]


S_H0, S_H1 = S_XO, S_WO
E_A, E_ST = 208, 144


def ep_setup(a):
    a.c("epilogue addresses: row constants, column sums; HF offset = ((4*mi + 2*sh + pp)*86 + 2*fb0 + uu)*1024 + lane*16")
    a(f"v_and_b32 v10, 15, v0\nv_lshlrev_b32 v10, 4, v10\ns_lshl_b32 {s(S_T0)}, {s(S_SH)}, 10\ns_add_u32 {s(S_T0)}, {s(S_T0)}, {L_ST}\nv_add_u32 {v(E_A)}, {s(S_T0)}, v10")
    a(f"s_mul_i32 {s(S_T1)}, {s(S_UH)}, {s(S_NBLK)}\ns_lshl_b32 {s(S_T0)}, {s(S_T1)}, 6\ns_add_u32 {s(S_T0)}, {s(S_T0)}, {L_CS}")
    a(f"v_and_b32 v11, 48, v0\nv_add_u32 {v(E_A+1)}, {s(S_T0)}, v11")
    a(f"s_lshl_b32 {s(S_T0)}, {s(S_MI)}, 1\ns_add_u32 {s(S_T0)}, {s(S_T0)}, {s(S_SH)}\ns_mul_i32 {s(S_T0)}, {s(S_T0)}, {2*NU}")
    a(f"s_lshl_b32 {s(S_T2)}, {s(S_FB0)}, 1\ns_add_u32 {s(S_T0)}, {s(S_T0)}, {s(S_T2)}\ns_add_u32 {s(S_T0)}, {s(S_T0)}, {s(S_T1)}\ns_lshl_b32 {s(S_H0)}, {s(S_T0)}, 10")
    a(f"s_add_u32 {s(S_H1)}, {s(S_H0)}, {NU*1024}")
    a(f"s_lshl_b32 {s(S_T0)}, {s(S_SH)}, 2\ns_add_u32 {s(S_T0)}, {s(S_T0)}, {L_CNT}\nv_mov_b32 v15, {s(S_T0)}")


def g1_epilogue(a):
    VST, VCS, T = 112, 216, 168
    top, ok = a.label("ga"), a.label("ga_ok")
    a(f"{top}:")
    a(f"ds_read_b32 v14, {v(V_LW)} offset:{W_GATH}")
    for sb in range(4):
        a(f"ds_read_b128 {v(E_ST+4*sb,4)}, {v(E_A)} offset:{sb*256}")
    for u in range(3):
        for mat in range(2):
            a(f"ds_read_b128 {v(VCS+4*(u*2+mat),4)}, {v(E_A+1)} offset:{mat*512+u*64}")
    a(f"ds_read_b32 v1, {v(V_LW)} offset:{W_NON}")
    a(f"v_mov_b32 v13, 1\ns_waitcnt lgkmcnt(7)\nv_readfirstlane_b32 {s(S_T0)}, v14")
    for i in range(4):
        a(f"v_mov_b32 {v(VST+2*i)}, {v(E_ST+i)}\nv_mov_b32 {v(VST+2*i+1)}, {v(E_ST+i)}")
    a(f"s_cmp_ge_u32 {s(S_T0)}, 2\ns_cbranch_scc1 {ok}")
    a(f"s_add_u32 {s(S_SPIN)}, {s(S_SPIN)}, 1\ns_cmp_lt_u32 {s(S_SPIN)}, {LSPIN_MAX}\ns_cbranch_scc1 {top}")
    a(f"{ok}:")
    stamp(a, 4)
    for i in range(4, 16):
        a(f"v_mov_b32 {v(VST+2*i)}, {v(E_ST+i)}\nv_mov_b32 {v(VST+2*i+1)}, {v(E_ST+i)}")
    a("s_waitcnt lgkmcnt(0)")
    a(f"v_readfirstlane_b32 {s(S_NON)}, v1")
    lab, lab2 = a.label("ep_two"), a.label("ep_done")
    if opt("EPST", 0): stamp(a, 3)

    def group(u, pp):
        out = []
        o = T + 32 + 4 * pp
        pairs = [(2*pp + (q >> 1), q & 1, T + 8*q) for q in range(4)]
        def each(f):
            for sb, h, t in pairs:
                g, up, st = acc(u, 0, sb) + 2*h, acc(u, 1, sb) + 2*h, VST + 8*sb
                cg, cu = VCS + 4*(u*2) + 2*h, VCS + 4*(u*2+1) + 2*h
                out.append(f(g, up, st, cg, cu, t))
        each(lambda g, up, st, cg, cu, t: f"v_pk_fma_f32 {v(g,2)}, {v(cg,2)}, {v(st,2)}, {v(g,2)} neg_lo:[0,1,0] neg_hi:[0,1,0]")
        each(lambda g, up, st, cg, cu, t: f"v_pk_mul_f32 {v(t,2)}, {v(g,2)}, {v(g,2)}")
        each(lambda g, up, st, cg, cu, t: f"v_pk_fma_f32 {v(t,2)}, {v(t,2)}, {v(st+4,2)}, {v(st+2,2)}")
        each(lambda g, up, st, cg, cu, t: f"v_pk_mul_f32 {v(t,2)}, {v(t,2)}, {v(g,2)}")
        each(lambda g, up, st, cg, cu, t: f"v_exp_f32 {v(t)}, {v(t)}\nv_exp_f32 {v(t+1)}, {v(t+1)}")
        each(lambda g, up, st, cg, cu, t: f"v_pk_fma_f32 {v(up,2)}, {v(cu,2)}, {v(st,2)}, {v(up,2)} neg_lo:[0,1,0] neg_hi:[0,1,0]")
        each(lambda g, up, st, cg, cu, t: f"v_pk_fma_f32 {v(t,2)}, {v(t,2)}, {v(st+6,2)}, {v(st+6,2)}")
        each(lambda g, up, st, cg, cu, t: f"v_rcp_f32 {v(t)}, {v(t)}\nv_rcp_f32 {v(t+1)}, {v(t+1)}")
        each(lambda g, up, st, cg, cu, t: f"v_pk_mul_f32 {v(g,2)}, {v(g,2)}, {v(up,2)}")
        each(lambda g, up, st, cg, cu, t: f"v_pk_mul_f32 {v(t,2)}, {v(t,2)}, {v(g,2)}")
        for q, (sb, h, t) in enumerate(pairs):
            out.append(f"v_cvt_pk_bf16_f32 {v(o+q)}, {v(t)}, {v(t+1)}")
        if not opt("NOST", 0):
            out.append(f"buffer_store_dwordx4 {v(o,4)}, {v(G_L16)}, {s(R_WS,4)}, {s(S_H1 if pp else S_H0)} offen offset:{u*1024} {'sc1' if not opt('PLST', 0) else ''}")
        return out

    def stage_flag(n, W_WD=W_WD):
        ok = a.label("wd_ok")
        a(f"s_waitcnt lgkmcnt(0)\nv_readfirstlane_b32 {s(S_T0)}, v14\ns_nop 0\ns_cmp_ge_u32 {s(S_T0)}, {n}\ns_cbranch_scc1 {ok}")
        lds_min_wait(a, 15, W_WD, 1, n, 14)
        a(f"{ok}:")

    rd_flag = f"ds_read_b32 v14, v15 offset:{W_WD}"
    a.c("as a unit's accumulators retire they take two Wd steps; the freed ring slots are refilled")
    for l in group(0, 0) + [f"ds_read_b32 v14, v15 offset:{W_WE if WDE else W_WD}"] + group(0, 1):
        a(l)
    if opt("EPST", 0): stamp(a, 1)
    if not opt("NOTR", 0):
        stage_flag(1, W_WE if WDE else W_WD)
    if opt("EPST", 0): stamp(a, 2)
    for l in interleave(group(1, 0), [] if opt("NOTR", 0) else g2_tr(0) + g2_tr(1), 0, 2):
        a(l)
    a(rd_flag)
    for l in group(1, 1):
        a(l)
    a(f"s_cbranch_vccnz {lab}")
    for l in group(2, 0) + [rd_flag] + group(2, 1):
        a(l)
    a(f"{lab}:")
    a.c("release the conv waves")
    if not opt("CEARLY", 0):
        a("s_mov_b64 exec, 1\nds_add_u32 v12, v13\ns_mov_b64 exec, -1")
    stamp(a, 5)
    a.c("publish: F3[(2mi + sh)*32 + ni*2 + uh]")
    a(f"s_lshl_b32 {s(S_T0)}, {s(S_MI)}, 1\ns_add_u32 {s(S_T0)}, {s(S_T0)}, {s(S_SH)}\ns_lshl_b32 {s(S_T0)}, {s(S_T0)}, 4\ns_add_u32 {s(S_T0)}, {s(S_T0)}, {s(S_NI)}")
    a(f"s_lshl_b32 {s(S_T0)}, {s(S_T0)}, 1\ns_add_u32 {s(S_T0)}, {s(S_T0)}, {s(S_UH)}\ns_lshl_b32 {s(S_T0)}, {s(S_T0)}, 7\ns_add_u32 {s(S_T2)}, {s(S_T0)}, {WS_F3:#x}")
    a("s_waitcnt lgkmcnt(0)")
    for l in wd_dma(7) + wd_dma(8):
        a(l)
    a("s_waitcnt vmcnt(8)")
    flag_store(a, S_T2, 10, 11)
    stamp(a, 6)
    stage_flag(2)
    for l in g2_tr(2) + g2_tr(3):
        a(l)
    a("s_waitcnt lgkmcnt(0)")
    if not opt("W9L", 0):
        for l in wd_dma(9) + wd_dma(10):
            a(l)


def g2_tr(i):
    wf = G_WF + (i % NWF) * 16
    sl = SLOTMAP[i % NRW]
    base, off = (G_TR0, sl*4096) if sl < 2 else (G_TR5, 0) if sl == 6 else (G_TR, (sl-2)*16384)
    return [f"ds_read_b64_tr_b16 {v(wf+4*db+2*t,2)}, {v(base+db)} offset:{off + t*2048}" for db in range(4) for t in range(2)]


def g2_swaps(i, p):
    hb = G_H + (i % NHB) * 16
    return [f"v_swap_b32 {v(hb+8*p+2+k)}, {v(hb+8*p+4+k)}" for k in range(2)]


def g2_need(n):
    g2_need.k += 1
    top, ok = f"g2p_{g2_need.k}", f"g2ok_{g2_need.k}"
    return (f"s_cmp_ge_u32 {s(S_IT)}, {n}\ns_cbranch_scc1 {ok}\n{top}:\n"
            f"buffer_load_dword v10, {v(G_FL)}, {s(R_WS,4)}, 0 offen sc1\ns_add_u32 {s(S_SPIN)}, {s(S_SPIN)}, 1\ns_waitcnt vmcnt(0)\n"
            f"v_cmp_ne_u32 vcc, {s(S_NON)}, v10\ns_cmp_ge_u32 {s(S_SPIN)}, {SPIN_MAX}\ns_cbranch_scc1 {ok}\n"
            f"s_lshr_b32 {s(S_T0)}, vcc_lo, 16\ns_or_b32 {s(S_T0)}, {s(S_T0)}, vcc_lo\ns_bitset1_b32 {s(S_T0)}, 11\ns_ff1_i32_b32 {s(S_IT)}, {s(S_T0)}\n"
            f"s_cmp_ge_u32 {s(S_IT)}, {n}\ns_cbranch_scc1 {ok}\ns_sleep {opt('GSL', 2)}\ns_branch {top}\n{ok}:")
g2_need.k = 0


def g2_main(a):
    PROG = opt("PROG", 1)
    a(f"s_setprio {opt('PRG', 2)}")
    if PROG:
        a(f"s_mov_b32 {s(S_IT)}, 0\ns_mov_b32 {s(S_SPIN)}, 0")
        a(g2_need(PROG))
    elif opt("HT", 0):
        top, done = a.label("hp"), a.label("hp_ok")
        a(f"s_mov_b32 {s(S_SPIN)}, 0\ns_mov_b32 {s(S_EX)}, -1\ns_mov_b32 {s(S_EX+1)}, 0xfff")
        a(f"{top}:")
        a(f"buffer_load_dword v10, {v(G_FL)}, {s(R_WS,4)}, 0 offen sc1")
        a("s_waitcnt vmcnt(0)")
        a(f"v_cmp_ne_u32 vcc, {s(S_NON)}, v10")
        a(f"s_cbranch_vccz {done}")
        a(f"s_andn2_b64 exec, {s(S_EX,2)}, vcc\ns_and_b64 {s(S_EX,2)}, {s(S_EX,2)}, vcc")
        skip = a.label("hp_s")
        a(f"s_cbranch_execz {skip}")
        a(f"buffer_load_dword v11, {v(G_HT)}, {s(R_WS,4)}, {s(S_HO)} offen sc1")
        a(f"{skip}:")
        a("s_mov_b64 exec, -1\ns_sleep 1")
        a(f"s_add_u32 {s(S_SPIN)}, {s(S_SPIN)}, 1\ns_cmp_lt_u32 {s(S_SPIN)}, {SPIN_MAX}\ns_cbranch_scc1 {top}")
        a(f"{done}:")
    else:
        poll(a, G_FL, 10)
    stamp(a, 7)
    q = VQ(a)
    def hq(i):
        q.add(("h", i, 0), 2); q.add(("h", i, 1), 2)
    for i in range(NHB - 1):
        if PROG and i >= PROG:
            a(g2_need(i + 1))
        for op in h_loads(i):
            a(op)
        hq(i)
    if opt("W9L", 0):
        for l in wd_dma(9) + wd_dma(10):
            a(l)
        q.add("wd", 8)
    a.c("partial tile -> own ring slots 1..4: sb*16384 + w*4096 + s16*256 + ((4db + g) ^ (s16&7))*16")
    a(f"v_and_b32 v8, 15, v0\nv_lshrrev_b32 v9, 4, v0\nv_and_b32 v11, 7, v0\nv_xor_b32 v9, v9, v11\nv_lshlrev_b32 v9, 4, v9\nv_lshl_add_u32 v8, v8, 8, v9\nv_add_u32 v8, {s(S_KC)}, v8\nv_xor_b32 v9, 64, v8")
    pw = [f"ds_write_b128 {'v9' if db & 1 else 'v8'}, {v(G_ACC+(db*4+sb)*4,4)} offset:{sb*16384 + (db>>1)*128}"
          for p in range(2) for db in range(4) for sb in (2*p, 2*p + 1)]
    lds_min_wait(a, 15, W_WD, 1, 3, 14)
    if opt("G2ST", 0): stamp(a, 1)
    q.wait(("h", 0, 0))
    if opt("G2ST", 0): stamp(a, 2)
    for l in g2_swaps(0, 0):
        a(l)
    a("s_nop 1")
    for i in range(NSTEP):
        if opt("G2ST", 0) and i in (2, 4, 6, 8):
            stamp(a, 2 + i // 2)
        if i == opt("HIS", 6):
            lds_inc(a, V_LW, 13, W_HI)
        wf, hb = G_WF + (i % NWF) * 16, G_H + (i % NHB) * 16
        ld = h_loads(i + NHB - 1) if i + NHB - 1 < NSTEP else []
        if ld and PROG and i + NHB > PROG:
            ld[0] = g2_need(i + NHB) + "\n" + ld[0]
        tr = g2_tr(i + 2) if NWF <= i + 2 < NSTEP else []
        n = 0
        for p in range(2):
            for db in range(4):
                for sb in (2*p, 2*p + 1):
                    c = G_ACC + (db * 4 + sb) * 4
                    a(f"v_mfma_f32_16x16x32_bf16 {v(c,4)}, {v(wf+4*db,4)}, {v(hb+4*sb,4)}, {v(c,4) if i else 0}")
                    n += 1
                    if i == NSTEP - 1 and n >= opt("PWL", 6):
                        a(pw.pop(0))
                    if n == 4:
                        q.wait(("h", i, 1))
                        for l in g2_swaps(i, 1):
                            a(l)
                    if n in (1, 5, 8, 11) and ld:
                        a(ld.pop(0))
                        q.add(("h", i + NHB - 1, 0 if len(ld) >= 2 else 1), 1)
                    if 5 <= n <= 12 and tr:
                        a(tr.pop(0))
                    if n == 13 and i + 1 < NSTEP:
                        q.wait(("h", i + 1, 0))
                        for l in g2_swaps(i + 1, 0):
                            a(l)
                        if i + 1 >= NWF:
                            a(f"s_waitcnt lgkmcnt({8 if i + 2 < NSTEP else 0})")
    stamp(a, 8)
    a("s_nop 3")
    for l in pw:
        a(l)
    a("s_waitcnt lgkmcnt(0)")
    stamp(a, 9)
    a("s_barrier")


VB_X2 = 18


def dma_chunk(a):
    a(f"s_add_u32 {s(S_T1)}, {s(S_UH)}, {s(S_IT)}\ns_and_b32 {s(S_T1)}, {s(S_T1)}, 7")
    a(f"s_lshl_b32 {s(S_T0)}, {s(S_T1)}, 7\ns_add_u32 {s(S_T0)}, {s(S_T0)}, {s(S_XO)}")
    a(f"s_mul_i32 {s(S_T1)}, {s(S_T1)}, {64*F*2}\ns_add_u32 {s(S_HO)}, {s(S_WO)}, {s(S_T1)}\ns_add_u32 {s(S_DO)}, {s(S_WO2)}, {s(S_T1)}")
    for i in range(16):
        a(f"s_add_u32 m0, {s(S_SLOT)}, {i*1024}")
        a(f"s_add_u32 {s(S_T0)}, {s(S_T0)}, 8192" if i else "s_nop 0")
        a(f"buffer_load_dwordx4 {v(VB_X2 if i & 1 else VB_X)}, {s(R_X,4)}, {s(S_T0)} offen {CFX} lds")
    for k4 in range(4):
        if ITST and k4 == 0:
            it_issue(a)
            a("s_waitcnt lgkmcnt(0)")
            it_take(a, 40)
        if k4:
            a(f"s_add_u32 {s(S_HO)}, {s(S_HO)}, {16*F*2}\ns_add_u32 {s(S_DO)}, {s(S_DO)}, {16*F*2}")
        for blk in range(3):
            for mat in range(2):
                a(f"s_add_u32 m0, {s(S_SLOT)}, {16384 + (mat*3+blk)*4096 + k4*1024 - 64*blk}")
                a("s_nop 0")
                a(f"buffer_load_dwordx4 {v(VB_W)}, {s(R_WU if mat else R_WG,4)}, {s(S_DO if blk == 2 else S_HO)} offen offset:{64*blk} {CFW} lds")


GG = 224


def loader(a):
    a(f"s_setprio {opt('PRL', 2)}")
    a.c("loader w streams chunks 1+w, 3+w, ..")
    a(f"s_lshl_b32 {s(S_XO)}, {s(S_MI)}, 17\ns_lshl_b32 {s(S_WO)}, {s(S_FB0)}, 6")
    a(f"s_cmp_eq_u32 {s(S_NBLK)}, 3\ns_cselect_b32 {s(S_WO2)}, {s(S_WO)}, {OOB:#x}")
    a(f"s_lshl_b32 {s(S_T0)}, {s(S_WB)}, 6\nv_xor_b32 {v(VB_X)}, {s(S_T0)}, {v(VB_X)}\nv_xor_b32 {v(VB_X2)}, 64, {v(VB_X)}")
    a(f"s_add_u32 {s(S_IT)}, {s(S_WB)}, 1\ns_mul_i32 {s(S_SLOT)}, {s(S_IT)}, {SLOT}\ns_mov_b32 {s(S_SH)}, {s(S_WB)}")
    a(f"s_lshl_b32 {s(S_T0)}, {s(S_WB)}, 2\ns_add_u32 {s(S_T0)}, {s(S_T0)}, {L_CNT + W_FULL}\nv_mov_b32 v10, {s(S_T0)}")
    lds_min_wait(a, C_CNT, W_ISS, 1, s(S_WB), 20)
    a("ld_loop:")
    if ITST:
        it_issue(a)
        a("s_waitcnt lgkmcnt(0)")
        it_take(a, 32)
    dma_chunk(a)
    a(f"v_mov_b32 v16, {s(S_IT)}")
    a(f"s_mov_b64 exec, 1\nds_max_u32 {v(C_CNT)}, v16 offset:{W_ISS}\ns_mov_b64 exec, -1")
    if ITST:
        it_issue(a)
        a("s_waitcnt lgkmcnt(0)")
        it_take(a, 0)
    a(f"s_sub_u32 {s(S_SLOT)}, {s(S_SLOT)}, {SLOT}\ns_cselect_b32 {s(S_SLOT)}, {2*SLOT}, {s(S_SLOT)}")
    a(f"s_cmp_ge_u32 {s(S_IT)}, 6\ns_cbranch_scc1 ld_done")
    a("s_waitcnt vmcnt(0)")
    a("ds_write_b32 v10, v16")
    if ITST:
        it_issue(a)
        a("s_waitcnt lgkmcnt(0)")
        it_take(a, 16)
    lds_min_wait(a, C_CNT, W_FREE, 4, s(S_IT), 20)
    if ITST:
        it_issue(a)
        a("s_waitcnt lgkmcnt(0)")
        it_take(a, 48)
    a(f"s_add_u32 {s(S_IT)}, {s(S_IT)}, 2")
    a("s_branch ld_loop")
    a("ld_done:")
    lstamp(a, 1)
    wd_setup(a, 2 if WDE else 0)
    a(f"s_lshl_b32 {s(S_T0)}, {s(S_WB)}, 2\nv_add_u32 v11, {s(S_T0)}, {v(C_CNT)}\nv_mov_b32 v17, 2")
    a("s_waitcnt vmcnt(0)")
    a("ds_write_b32 v10, v16")
    if KVL:
        return loader_late(a)
    lds_min_wait(a, C_CNT, W_ISS, 1, 7, 20)
    lds_min_wait(a, C_CNT, W_HP, 1, 2, 20)
    if not WDE:
        for op in wd_dma(0, 2) + wd_dma(1, 2):
            a(op)
    lstamp(a, 2)
    lds_min_wait(a, C_CNT, W_FREE, 4, 7, 20)
    for i in (2, 3):
        for op in wd_dma(i, 2):
            a(op)
    a("s_waitcnt vmcnt(16)")
    a(f"ds_write_b32 v11, {v(C_ONE)} offset:{W_WD}")
    lstamp(a, 3)
    lds_min_wait(a, C_CNT, W_FREE, 4, 8, 20)
    TH = opt("WDTH", 8)
    n = 0
    for i in (4, 5, 6):
        for op in wd_dma(i, 2):
            if not opt("NOWD", 0):
                a(op)
            n += 1
            if n % 4 == 0 and (TH or n == 8):
                a(f"s_waitcnt vmcnt({min(TH, n) if TH else 8})")
            if n == 8:
                a(f"ds_write_b32 v11, v17 offset:{W_WD}")
    a(f"ds_read_b32 v1, {v(C_CNT)} offset:{W_NON}")
    final_loads(a)
    a("s_waitcnt lgkmcnt(0)")
    a(f"v_readfirstlane_b32 {s(S_NON)}, v1")


def loader_late(a):
    lds_min_wait(a, C_CNT, W_FREE, 4, 7, 20)
    for op in wd_dma(0, 2) + wd_dma(1, 2):
        a(op)
    lstamp(a, 2)
    lds_min_wait(a, C_CNT, W_FREE, 4, 8, 20)
    for op in wd_dma(2, 2):
        a(op)
    a("s_waitcnt vmcnt(8)")
    a(f"ds_write_b32 v11, {v(C_ONE)} offset:{W_WD}")
    for op in wd_dma(3, 2) + wd_dma(4, 2):
        a(op)
    a("s_waitcnt vmcnt(8)")
    a(f"ds_write_b32 v11, v17 offset:{W_WD}")
    lstamp(a, 3)
    lds_min_wait(a, C_CNT, W_HP, 1, 2, 20)
    for op in wd_dma(5, 2) + wd_dma(6, 2):
        a(op)
    a(f"ds_read_b32 v1, {v(C_CNT)} offset:{W_NON}")
    final_loads(a)
    a("v_mov_b32 v17, 3\ns_waitcnt vmcnt(2) lgkmcnt(0)")
    a(f"ds_write_b32 v11, v17 offset:{W_WD}")
    a(f"v_readfirstlane_b32 {s(S_NON)}, v1")


VS, VKV, VSK = 144, 24, 64
ONE = 192


def round_bf16(a, r):
    a(f"v_cvt_pk_bf16_f32 {v(r)}, {v(r)}, {v(r)}\nv_lshlrev_b32 {v(r)}, 16, {v(r)}")


def stats_loads(a):
    a(f"s_lshl_b32 {s(S_T0)}, {s(S_TI)}, 1\ns_add_u32 {s(S_T0)}, {s(S_T0)}, {s(S_SH)}\ns_lshl_b32 {s(S_T0)}, {s(S_T0)}, 12")
    a("v_bfe_u32 v5, v0, 2, 2\nv_lshlrev_b32 v5, 10, v5\nv_and_b32 v6, 3, v0\nv_lshl_add_u32 v5, v6, 4, v5\nv_lshrrev_b32 v6, 4, v0\nv_lshl_add_u32 v5, v6, 6, v5")
    for r in range(4):
        a(f"buffer_load_dwordx4 {v(VS+4*r,4)}, v5, {s(R_X,4)}, {s(S_T0)} offen offset:{r*256} {CFS}")


def stats(a):
    G, O, R = 72, 76, 80
    for r in range(4):
        a(f"v_mfma_f32_16x16x32_bf16 {v(G,4)}, {v(VS+4*r,4)}, {v(VS+4*r,4)}, {v(G,4) if r else 0}")
        a(f"v_mfma_f32_16x16x32_bf16 {v(O,4)}, {v(ONE,4)}, {v(VS+4*r,4)}, {v(O,4) if r else 0}")
    a.c("diagonal element of lane (n, g = n>>2) is register n&3")
    a(f"v_and_b32 v6, 3, v0\nv_cmp_eq_u32 vcc, 1, v6\nv_cmp_eq_u32 {s(S_EX,2)}, 2, v6\nv_cmp_eq_u32 {s(S_XO,2)}, 3, v6")
    a(f"s_lshl_b32 {s(S_T0)}, {s(S_TI)}, 1\ns_add_u32 {s(S_T0)}, {s(S_T0)}, {s(S_SH)}\ns_lshl_b32 {s(S_T0)}, {s(S_T0)}, 6\ns_add_u32 {s(S_T0)}, {s(S_T0)}, {WS_ST:#x}")
    a("v_and_b32 v5, 48, v0\ns_nop 0")
    a(f"v_cndmask_b32 {v(G)}, {v(G)}, {v(G+1)}, vcc\nv_cndmask_b32 {v(G)}, {v(G)}, {v(G+2)}, {s(S_EX,2)}\nv_cndmask_b32 {v(G)}, {v(G)}, {v(G+3)}, {s(S_XO,2)}")
    for qp in ("[1,0,3,2]", "[2,3,0,1]"):
        a("s_nop 0")
        a(f"v_add_f32_dpp {v(O)}, {v(O)}, {v(O)} quad_perm:{qp} row_mask:0xf bank_mask:0xf")
        a(f"v_add_f32_dpp {v(G)}, {v(G)}, {v(G)} quad_perm:{qp} row_mask:0xf bank_mask:0xf")
    M, K1, K2, I2 = R, R + 1, R + 2, R + 3
    a(f"v_mul_f32 {v(M)}, {f32bits(1/512):#x}, {v(O)}\nv_mul_f32 {v(K2)}, {f32bits(1/512):#x}, {v(G)}")
    a(f"v_fma_f32 {v(K2)}, -{v(M)}, {v(M)}, {v(K2)}\nv_max_f32 {v(K2)}, 0, {v(K2)}")
    round_bf16(a, M)
    round_bf16(a, K2)
    a(f"v_add_f32 {v(K2)}, {f32bits(1e-5):#x}, {v(K2)}")
    round_bf16(a, K2)
    a(f"v_sqrt_f32 {v(K2)}, {v(K2)}\ns_nop 0")
    round_bf16(a, K2)
    a(f"v_rcp_f32 {v(K1)}, {v(K2)}\nv_mul_f32 {v(I2)}, {v(K2)}, {v(K2)}")
    a(f"v_mul_f32 {v(K2)}, {v(K1)}, {v(K1)}\nv_mul_f32 {v(K2)}, {v(K2)}, {v(K1)}")
    a(f"v_mul_f32 {v(K2)}, {f32bits(C2):#x}, {v(K2)}\nv_mul_f32 {v(K1)}, {f32bits(C1):#x}, {v(K1)}")
    a.c("row g is complete in lane 20g")
    a(f"s_mov_b32 {s(S_EX)}, 0x00100001\ns_mov_b32 {s(S_EX+1)}, 0x10000100\ns_mov_b64 exec, {s(S_EX,2)}")
    a(f"buffer_store_dwordx4 {v(R,4)}, v5, {s(R_WS,4)}, {s(S_T0)} offen sc1")
    a("s_mov_b64 exec, -1")


L_VST = 155648
NT = os.environ.get("CFK", "nt") + " " if opt("NT", 1) else ""
NTT = " nt" if opt("NTT", 0) else ""


def kv_dma(a):
    a("v_lshrrev_b32 v5, 3, v0\nv_lshlrev_b32 v5, 10, v5\nv_and_b32 v6, 7, v0\nv_lshl_add_u32 v5, v6, 4, v5")
    a(f"v_add_u32 v69, {s(S_DO)}, v5")
    a.c("rows above the start of the sequence are out of range and read as zero")
    a("v_subrev_u32 v7, 0xc00, v69\nv_cmp_gt_u32 vcc, 0xc00, v69\nv_mov_b32 v68, 0x7ff00000\ns_nop 1\nv_cndmask_b32 v7, v7, v68, vcc")
    a(f"s_mul_i32 {s(S_T0)}, {s(S_SH)}, {64*KVT_STR}\ns_add_u32 {s(S_T0)}, {s(S_T0)}, {L_KVT}")
    a(f"s_lshl_b32 {s(S_T2)}, {s(S_SH)}, 12\ns_add_u32 {s(S_T2)}, {s(S_T2)}, {L_VST}")
    for i in range(5):
        a(f"s_add_u32 m0, {s(S_T0)}, {1024*i}\ns_mov_b32 {s(S_T1)}, {max(8192*i - 3072, 0)}")
        a(f"buffer_load_dwordx4 {'v69' if i else 'v7'}, {s(R_K,4)}, {s(S_T1)} offen {NT}lds")
    for i in range(4):
        a(f"s_add_u32 m0, {s(S_T2)}, {1024*i}\ns_mov_b32 {s(S_T1)}, {8192*i}")
        a(f"buffer_load_dwordx4 v69, {s(R_V,4)}, {s(S_T1)} offen {NT}lds")
    a("v_and_b32 v6, 31, v0\nv_lshrrev_b32 v5, 5, v0\nv_lshlrev_b32 v5, 10, v5\nv_lshl_add_u32 v5, v6, 2, v5")
    a(f"v_add_u32 v68, {s(S_T0)}, v5\nv_add_u32 v69, {s(S_T2)}, v5")
    a(f"s_and_b32 {s(S_T1)}, {s(S_TI)}, 7\ns_lshl_b32 {s(S_T1)}, {s(S_T1)}, 9\nv_lshlrev_b32 v6, 4, v6")
    a(f"buffer_load_dwordx4 {v(VSK,4)}, v6, {s(R_SK,4)}, {s(S_T1)} offen")


def kv_reads(a):
    for ps in range(2):
        b = VKV + 19 * ps
        for i in range(11):
            a(f"ds_read_b32 {v(b+i)}, v68 offset:{ps*2048 + i*128}")
        for i in range(8):
            a(f"ds_read_b32 {v(b+11+i)}, v69 offset:{ps*2048 + i*128}")


def touch_x(a, p, vd):
    a(f"s_lshl_b32 {s(S_T0)}, {s(S_MI)}, 2\ns_and_b32 {s(S_T1)}, {s(S_NI)}, 3\ns_add_u32 {s(S_T0)}, {s(S_T0)}, {s(S_T1)}\ns_lshl_b32 {s(S_T0)}, {s(S_T0)}, 15")
    a("v_and_b32 v5, 31, v0\nv_lshrrev_b32 v6, 5, v0\nv_lshlrev_b32 v6, 7, v6\nv_lshl_add_u32 v5, v5, 10, v6")
    for q in p:
        a(f"buffer_load_dword {v(vd)}, v5, {s(R_X,4)}, {s(S_T0)} offen offset:{128*q}{NTT}")


def touch_w(a, p, srds, vd):
    a(f"s_and_b32 {s(S_T0)}, {s(S_MI)}, 7\ns_add_u32 {s(S_T0)}, {s(S_T0)}, {8*p}\ns_mul_i32 {s(S_T0)}, {s(S_T0)}, {8*F*2}\ns_lshl_b32 {s(S_T1)}, {s(S_FB0)}, 6\ns_add_u32 {s(S_T0)}, {s(S_T0)}, {s(S_T1)}")
    a(f"s_add_u32 {s(S_T1)}, {s(S_NBLK)}, 4")
    a(f"v_lshrrev_b32 v5, 4, v0\nv_bfe_u32 v6, v0, 1, 3\nv_lshl_add_u32 v5, v5, 6, v6\nv_mul_u32_u24 v5, {F*2}, v5\nv_and_b32 v6, 1, v0\nv_lshl_add_u32 v5, v6, {s(S_T1)}, v5")
    for r in srds:
        a(f"buffer_load_dword {v(vd)}, v5, {s(r,4)}, {s(S_T0)} offen{NTT}")
        if opt("TOUCH", 0) == 2:
            a(f"s_add_u32 {s(S_T0)}, {s(S_T0)}, {256*F*2}")
            a(f"buffer_load_dword {v(vd)}, v5, {s(r,4)}, {s(S_T0)} offen{NTT}")


KU, VU, KW, KO, KT = 72, 94, 110, 120, 128


def kv_taps(a):
    for j in range(4):
        for ch in range(2):
            src = VSK + 2*ch + (j >> 1)
            a(f"v_and_b32 {v(KW+2*j+ch)}, {s(S_C)}, {v(src)}" if j & 1 else f"v_lshlrev_b32 {v(KW+2*j+ch)}, 16, {v(src)}")
    a.c("KVT row = 2*(l&31) + ch, 16-B piece = 3 - (2*pass + l>>5)")
    a(f"v_and_b32 v70, 31, v0\nv_mul_u32_u24 v70, {2*KVT_STR}, v70\nv_lshrrev_b32 v5, 5, v0\nv_lshlrev_b32 v5, 4, v5\nv_sub_u32 v70, v70, v5")
    a(f"s_mul_i32 {s(S_T0)}, {s(S_SH)}, {64*KVT_STR}\ns_add_u32 {s(S_T0)}, {s(S_T0)}, {L_KVT + 16}\nv_add_u32 v70, {s(S_T0)}, v70")


def kv_compute(ps):
    b = VKV + 19 * ps
    o = []
    for i in range(11):
        o += [f"v_lshlrev_b32 {v(KU+2*i)}, 16, {v(b+i)}", f"v_and_b32 {v(KU+2*i+1)}, {s(S_C)}, {v(b+i)}"]
    for e in range(16):
        o.append(f"v_mul_f32 {v(KT+e)}, {v(KU+e)}, {v(KW+6+(e&1))}")
    for j in (2, 1, 0):
        for e in range(16):
            o.append(f"v_fmac_f32 {v(KT+e)}, {v(KU+e+2*(3-j))}, {v(KW+2*j+(e&1))}")
    for i in range(8):
        o += [f"v_lshlrev_b32 {v(VU+2*i)}, 16, {v(b+11+i)}", f"v_and_b32 {v(VU+2*i+1)}, {s(S_C)}, {v(b+11+i)}"]
    for e in range(16):
        o.append(f"v_mul_f32 {v(KT+e)}, {v(KT+e)}, {v(VU+e)}")
    for ch in range(2):
        for i in range(4):
            o.append(f"v_cvt_pk_bf16_f32 {v(KO+4*ch+i)}, {v(KT+2*(7-2*i)+ch)}, {v(KT+2*(6-2*i)+ch)}")
    o += [f"ds_write_b128 v70, {v(KO,4)} offset:{32*(1-ps)}", f"ds_write_b128 v70, {v(KO+4,4)} offset:{32*(1-ps) + KVT_STR}"]
    return o


def kv_store(a):
    a(f"v_lshrrev_b32 v5, 2, v0\nv_and_b32 v6, 3, v0\nv_lshlrev_b32 v6, 4, v6\nv_mul_u32_u24 v7, {KVT_STR}, v5\nv_add_u32 v7, v7, v6")
    a(f"s_mul_i32 {s(S_T0)}, {s(S_SH)}, {64*KVT_STR}\ns_add_u32 {s(S_T0)}, {s(S_T0)}, {L_KVT}\nv_add_u32 v7, {s(S_T0)}, v7")
    a("s_waitcnt lgkmcnt(0)")
    for i in range(4):
        a(f"ds_read_b128 {v(24+4*i,4)}, v7 offset:{16*i*KVT_STR}")
    a("v_lshl_add_u32 v5, v5, 12, v6")
    a(f"s_and_b32 {s(S_T0)}, {s(S_TI)}, 7\ns_lshl_b32 {s(S_T0)}, {s(S_T0)}, 18")
    a(f"s_lshr_b32 {s(S_T1)}, {s(S_TI)}, 3\ns_lshl_b32 {s(S_T1)}, {s(S_T1)}, 1\ns_add_u32 {s(S_T1)}, {s(S_T1)}, {s(S_SH)}\ns_lshl_b32 {s(S_T1)}, {s(S_T1)}, 6")
    a(f"s_sub_u32 {s(S_T0)}, {s(S_T0)}, {s(S_T1)}\ns_add_u32 {s(S_T0)}, {s(S_T0)}, {WS_KVR + 4096 - 64:#x}")
    for i in range(4):
        a(f"s_waitcnt lgkmcnt({3-i})")
        a(f"buffer_store_dwordx4 {v(24+4*i,4)}, v5, {s(R_WS,4)}, {s(S_T0)} offen sc1")
        a(f"s_add_u32 {s(S_T0)}, {s(S_T0)}, 65536")


def cs_loads(a):
    a(f"s_mul_i32 {s(S_T0)}, {s(S_MI)}, {32*F*2}\ns_lshl_b32 {s(S_T1)}, {s(S_FB0)}, 6\ns_add_u32 {s(S_T0)}, {s(S_T0)}, {s(S_T1)}\ns_add_u32 {s(S_T1)}, {s(S_T0)}, {16*F*2}")
    a(f"s_mul_i32 {s(S_M0)}, {s(S_SH)}, 6144\ns_add_u32 {s(S_M0)}, {s(S_M0)}, {L_CSS}")
    l1, l2 = a.label("cs"), a.label("cs")
    a(f"s_cmp_lg_u32 {s(S_SH)}, 0\ns_cbranch_scc1 {l1}")
    for r in (R_WG, R_WU):
        for blk in range(3):
            for k2 in range(2):
                a(f"s_add_u32 m0, {s(S_M0)}, {blk*2048 + k2*1024 - 64*blk}\ns_nop 0")
                a(f"buffer_load_dwordx4 {v(VB_W)}, {s(r,4)}, {s(S_T1 if k2 else S_T0)} offen offset:{64*blk} {CFS} lds")
        a(f"s_branch {l2}\n{l1}:" if r == R_WG else f"{l2}:")


def colsum(a):
    W, O = 144, 168
    a("v_lshrrev_b32 v5, 4, v0\nv_lshlrev_b32 v6, 9, v5\nv_bfe_u32 v7, v0, 2, 2\nv_lshl_add_u32 v6, v7, 6, v6\nv_and_b32 v7, 3, v0\nv_lshl_add_u32 v6, v7, 3, v6")
    a(f"v_and_b32 v7, 1, v5\nv_lshl_add_u32 v6, v7, 5, v6\nv_add_u32 v6, {s(S_M0)}, v6\nv_xor_b32 v7, 32, v6")
    for u in range(6):
        for tt in range(2):
            a(f"ds_read_b64_tr_b16 {v(W+4*u+2*tt,2)}, {'v7' if u & 1 else 'v6'} offset:{(u>>1)*2048 + tt*256}")
    a.c("CSP offset = ((ni*2 + hw)*16 + mi)*384 + u*64 + g*16")
    a(f"s_lshl_b32 {s(S_T0)}, {s(S_NI)}, 1\ns_add_u32 {s(S_T0)}, {s(S_T0)}, {s(S_SH)}\ns_lshl_b32 {s(S_T0)}, {s(S_T0)}, 4\ns_add_u32 {s(S_T0)}, {s(S_T0)}, {s(S_MI)}")
    a(f"s_mul_i32 {s(S_T0)}, {s(S_T0)}, 384\ns_add_u32 {s(S_T0)}, {s(S_T0)}, {WS_CSP:#x}")
    a("v_and_b32 v5, 48, v0")
    a("s_waitcnt lgkmcnt(0)")
    for u in range(6):
        a(f"v_mfma_f32_16x16x32_bf16 {v(O+4*u,4)}, {v(W+4*u,4)}, {v(ONE,4)}, 0")
    a(f"s_mov_b32 {s(S_EX)}, 0x00010001\ns_mov_b32 {s(S_EX+1)}, 0x00010001\ns_nop 5\ns_mov_b64 exec, {s(S_EX,2)}")
    for u in range(6):
        a(f"buffer_store_dwordx4 {v(O+4*u,4)}, v5, {s(R_WS,4)}, {s(S_T0)} offen offset:{u*64} sc1")
    a("s_mov_b64 exec, -1")


def hflag(a, base):
    a(f"s_lshl_b32 {s(S_T0)}, {s(S_TI)}, 7\ns_lshl_b32 {s(S_T1)}, {s(S_SH)}, 2\ns_add_u32 {s(S_T0)}, {s(S_T0)}, {s(S_T1)}\ns_add_u32 {s(S_T0)}, {s(S_T0)}, {base:#x}")
    flag_store(a, S_T0, 196, 197)


CG = 144


def cs_gather_issue(a):
    a(f"s_lshl_b32 {s(S_T0)}, {s(S_NI)}, 1\ns_add_u32 {s(S_T0)}, {s(S_T0)}, {s(S_SH)}\ns_mul_i32 {s(S_T0)}, {s(S_T0)}, 6144\ns_add_u32 {s(S_T0)}, {s(S_T0)}, {WS_CSP:#x}")
    a("v_and_b32 v5, 31, v0\nv_lshlrev_b32 v5, 4, v5\nv_lshrrev_b32 v6, 5, v0\nv_mul_u32_u24 v6, 3072, v6\nv_add_u32 v6, v5, v6")
    for i in range(8):
        a(f"buffer_load_dwordx4 {v(CG+4*i,4)}, v6, {s(R_WS,4)}, {s(S_T0)} offen offset:{i*384} sc1")


def cs_gather_finish(a):
    n = 8
    while n > 1:
        n //= 2
        for i in range(4 * n):
            a(f"v_add_f32 {v(CG+i)}, {v(CG+i)}, {v(CG+4*n+i)}")
    for i in range(4):
        a(f"v_mov_b32 {v(CG+4+i)}, {v(CG+i)}")
    a(f"s_lshl_b32 {s(S_T0)}, {s(S_SH)}, 9\ns_add_u32 {s(S_T0)}, {s(S_T0)}, {L_CS}\nv_and_b32 v8, 31, v0\nv_lshlrev_b32 v8, 4, v8\nv_add_u32 v8, {s(S_T0)}, v8")
    for i in range(4):
        a(f"v_permlane32_swap_b32 {v(CG+i)}, {v(CG+4+i)}")
    a("s_nop 0")
    for i in range(4):
        a(f"v_add_f32 {v(CG+i)}, {v(CG+i)}, {v(CG+4+i)}")
    a(f"ds_write_b128 v8, {v(CG,4)}")


def helper(a):
    q = VQ(a)
    a(f"s_sub_u32 {s(S_SH)}, {s(S_WB)}, 2")
    a(f"s_lshl_b32 {s(S_HO)}, {s(S_TI)}, 1\ns_add_u32 {s(S_HO)}, {s(S_HO)}, {s(S_SH)}\ns_lshl_b32 {s(S_HO)}, {s(S_HO)}, 12")
    a.c("k/v tile base: rows 32*(2*(ti>>3) + hw).., channels 64*(ti&7)")
    a(f"s_lshr_b32 {s(S_T0)}, {s(S_TI)}, 3\ns_lshl_b32 {s(S_T0)}, {s(S_T0)}, 1\ns_add_u32 {s(S_T0)}, {s(S_T0)}, {s(S_SH)}\ns_lshl_b32 {s(S_T0)}, {s(S_T0)}, 15")
    a(f"s_and_b32 {s(S_T1)}, {s(S_TI)}, 7\ns_lshl_b32 {s(S_T2)}, {s(S_T1)}, 7\ns_add_u32 {s(S_DO)}, {s(S_T0)}, {s(S_T2)}")
    a(f"s_mul_i32 {s(S_KC)}, {s(S_TI)}, {43*128}\ns_mul_i32 {s(S_T1)}, {s(S_SH)}, {22*128}\ns_add_u32 {s(S_KC)}, {s(S_KC)}, {s(S_T1)}")
    def sc():
        stats_loads(a); q.add("s", 4)
        cs_loads(a); q.add("csd", 6)
    SKV = opt("SKV", 0)
    KVAT = opt("KVAT", 0) or SKV or KVL
    def wdt():
        if not opt("WDT", 1):
            return
        a.c("first touch of Wd lines 43*ti + 22*hw + lane")
        a("v_lshlrev_b32 v11, 7, v0\ns_mov_b64 exec, 0x3fffff")
        a(f"buffer_load_dword v71, v11, {s(R_WD,4)}, {s(S_KC)} offen"); q.add("wd", 1)
        a("s_mov_b64 exec, -1")
    def cold():
        kv_dma(a); q.add("kv", 10)
        if not SKV and not PT and not opt("HW7", 0) and not KVL:
            wdt()
        if SKV != 1 and not opt("HW7", 0):
            conv_h_loads(a); q.add("h", 4)
    PT = opt("PT", 0)
    def ptouch():
        l1, l2 = a.label("pt"), a.label("pt")
        a(f"s_and_b32 {s(S_T0)}, {s(S_NI)}, 3\ns_cmp_lg_u32 {s(S_T0)}, 3\ns_cbranch_scc1 {l2}")
        a("v_lshrrev_b32 v5, 2, v0\nv_and_b32 v6, 3, v0\nv_lshlrev_b32 v6, 7, v6\nv_lshl_add_u32 v5, v5, 10, v6\nv_lshlrev_b32 v6, 7, v0")
        a(f"s_lshr_b32 {s(S_T0)}, {s(S_TI)}, 3\ns_lshl_b32 {s(S_T0)}, {s(S_T0)}, 16\ns_and_b32 {s(S_T1)}, {s(S_TI)}, 4\ns_lshl_b32 {s(S_T1)}, {s(S_T1)}, 7\ns_add_u32 {s(S_T0)}, {s(S_T0)}, {s(S_T1)}")
        a(f"s_cmp_lg_u32 {s(S_SH)}, 0\ns_cbranch_scc1 {l1}")
        for i in range(4):
            a(f"buffer_load_dword v71, v5, {s(R_K,4)}, {s(S_T0)} offen\ns_add_u32 {s(S_T0)}, {s(S_T0)}, 16384")
        a(f"s_sub_i32 {s(S_T0)}, {s(S_T0)}, {65536 + 3072}\ns_max_i32 {s(S_T0)}, {s(S_T0)}, 0\ns_mov_b64 exec, 0xfff")
        a(f"buffer_load_dword v71, v5, {s(R_K,4)}, {s(S_T0)} offen\ns_mov_b64 exec, -1")
        a(f"s_lshr_b32 {s(S_T0)}, {s(S_TI)}, 2\ns_mul_i32 {s(S_T0)}, {s(S_T0)}, {172*128}")
        for i in range(3):
            a(f"buffer_load_dword v71, v6, {s(R_WD,4)}, {s(S_T0)} offen\ns_add_u32 {s(S_T0)}, {s(S_T0)}, {8192 if i == 0 else 44*128}")
        a(f"s_branch {l2}\n{l1}:")
        for i in range(4):
            a(f"buffer_load_dword v71, v5, {s(R_V,4)}, {s(S_T0)} offen\ns_add_u32 {s(S_T0)}, {s(S_T0)}, 16384")
        a(f"s_lshr_b32 {s(S_T0)}, {s(S_TI)}, 2\ns_lshl_b32 {s(S_T0)}, {s(S_T0)}, 15")
        for i in range(4):
            a(f"buffer_load_dword v71, v6, {s(R_H,4)}, {s(S_T0)} offen\ns_add_u32 {s(S_T0)}, {s(S_T0)}, 8192")
        a(f"{l2}:")
    if PT == 1:
        ptouch()
    LATE = opt("LATE", 0)
    if LATE:
        lds_min_wait(a, C_CNT, W_ISS, 1, LATE, 20)
        l1, l2 = a.label("tc"), a.label("tc")
        a(f"s_cmp_lg_u32 {s(S_SH)}, 0\ns_cbranch_scc1 {l1}")
        touch_x(a, (4, 6), 71)
        a(f"s_branch {l2}\n{l1}:")
        touch_w(a, 4, (R_WG, R_WU), 71)
        a(f"{l2}:")
    def hs(n):
        if ITST:
            a(f"s_mov_b32 {s(S_IT)}, 0")
            it_issue(a)
            a("s_waitcnt lgkmcnt(0)")
            it_take(a, n)
    hs(1)
    KV1 = opt("KV1", 0)
    if KV1:
        if KV1 == 2:
            kv_dma(a); q.add("kv", 10)
        else:
            cold()
        a("s_barrier")
    if not opt("ELAST", 0):
        epoch_load(a, 1); q.add("e", 1)
    sc()
    if opt("ELAST", 0):
        epoch_load(a, 1); q.add("e", 1)
    hs(2)
    if KVL:
        wdt()
    if SKV:
        wdt()
        a(f"s_sub_i32 {s(S_KC)}, {s(S_DO)}, 3072\ns_max_i32 {s(S_KC)}, {s(S_KC)}, 0")
        spf(a, R_K, S_KC, [1024*i for i in range(35)])
    if KV1 == 2:
        wdt()
        conv_h_loads(a); q.add("h", 4)
    if not KVAT and not KV1:
        cold()
    hs(3)
    for i in range(4):
        a(f"v_mov_b32 {v(ONE+i)}, 0x3f803f80")
    a.c("F1 pairs: lanes 0-31 tiles 16mi + (l&15) (row records), lanes 32-63 tiles 16*(l&15) + ni (column sums)")
    a(f"s_lshl_b32 {s(S_T0)}, {s(S_MI)}, 11\nv_and_b32 v9, 15, v0\nv_lshlrev_b32 v8, 7, v9\nv_add_u32 v8, {s(S_T0)}, v8")
    a(f"s_lshl_b32 {s(S_T0)}, {s(S_NI)}, 7\nv_lshlrev_b32 v9, 11, v9\nv_add_u32 v9, {s(S_T0)}, v9\nv_cmp_lt_u32 vcc, 31, v0")
    a(f"s_nop 1\nv_cndmask_b32 v8, v8, v9, vcc\nv_add_u32 v8, {WS_F1:#x}, v8")
    q.wait("e", "s")
    stamp(a, 1)
    epoch_take(a, 1)
    a(f"v_mov_b32 v20, {s(S_NON)}\nds_write_b32 {v(C_CNT)}, v20 offset:{W_NON}")
    stats(a); q.add("st", 1)
    q.wait("csd")
    if PT == 2:
        ptouch()
    colsum(a); q.add("st", 6)
    stamp(a, 2)
    if KVL:
        q.wait("st")
        hflag(a, WS_F1)
        stamp(a, 3)
        lds_min_wait(a, C_CNT, W_ISS, 1, KVL - 1, 20)
        poll2_issue(a, 8, 198)
        a(f"s_lshr_b32 {s(S_T0)}, {s(S_TI)}, 5\ns_lshl_b32 {s(S_T0)}, {s(S_T0)}, 7\ns_add_u32 {s(S_T0)}, {s(S_T0)}, {WS_F2:#x}")
        a(f"v_and_b32 v16, 31, v0\nv_lshlrev_b32 v16, 10, v16\nv_add_u32 v16, {s(S_T0)}, v16")
        a("s_waitcnt vmcnt(0)")
        poll2_check(a, 8, 198)
        lds_min_wait(a, C_CNT, W_ISS, 1, KVL, 20)
        a(f"s_lshl_b32 {s(S_T0)}, {s(S_MI)}, 1\ns_add_u32 {s(S_T0)}, {s(S_T0)}, {s(S_SH)}\ns_lshl_b32 {s(S_T0)}, {s(S_T0)}, 10\ns_add_u32 {s(S_T0)}, {s(S_T0)}, {WS_ST:#x}")
        a(f"buffer_load_dwordx4 {v(GG,4)}, v4, {s(R_WS,4)}, {s(S_T0)} offen sc1")
        cs_gather_issue(a)
        a(f"s_lshl_b32 {s(S_T0)}, {s(S_SH)}, 10\ns_add_u32 {s(S_T0)}, {s(S_T0)}, {L_ST}\nv_add_u32 v9, {s(S_T0)}, v4")
        cold()
        a("s_waitcnt vmcnt(14)")
        a(f"ds_write_b128 v9, {v(GG,4)}")
        cs_gather_finish(a)
        lds_inc(a, C_CNT, C_ONE, W_GATH)
        stamp(a, 5)
        a(f"s_setprio {opt('PRK', 0)}")
        a("s_waitcnt vmcnt(4)")
        kv_reads(a)
        kv_taps(a)
        a("s_waitcnt lgkmcnt(0)")
        for l in kv_compute(0) + kv_compute(1):
            a(l)
        kv_store(a)
        lds_inc(a, C_CNT, C_ONE, W_HP)
        a("s_waitcnt vmcnt(4)")
        conv_h_shift(a, 40)
        a("s_waitcnt vmcnt(0)")
        hflag(a, WS_F2)
        stamp(a, 4)
        final_loads(a)
        lds_min_wait(a, C_CNT, W_FREE, 4, 6, 20)
        lds_min_wait(a, C_CNT, W_HP, 1, 2, 20)
        conv_h_stage(a, 40)
        poll2_issue(a, 16, 18)
        a("s_waitcnt vmcnt(0)")
        poll2_check(a, 16, 18)
        a(f"s_add_u32 {s(S_T2)}, {s(S_HO)}, {WS_KVR:#x}")
        for i in range(4):
            a(f"buffer_load_dwordx4 {v(128+4*i,4)}, v4, {s(R_WS,4)}, {s(S_T2)} offen offset:{1024*i} sc1")
        for i in range(4):
            a(f"s_waitcnt vmcnt({3-i})")
            a(f"ds_write_b128 v10, {v(128+4*i,4)} offset:{4*HSTR + 1024*i}")
        stamp(a, 6)
        return
    if SKV:
        spf(a, R_V, S_DO, [1024*i for i in range(14)])
        q.wait("st")
        hflag(a, WS_F1); q.add("f", 1)
        stamp(a, 3)
        spf(a, R_V, S_DO, [1024*i for i in range(14, 32)])
        a(f"s_and_b32 {s(S_T1)}, {s(S_TI)}, 7\ns_lshl_b32 {s(S_T1)}, {s(S_T1)}, 9")
        spf(a, R_SK, S_T1, [128*i for i in range(4)])
        if SKV == 2:
            spf(a, R_H, S_HO, [128*i for i in range(32)])
        a("s_waitcnt lgkmcnt(0)")
        cold()
    elif KVAT:
        a(f"s_lshr_b32 {s(S_T3)}, s2, 3\ns_and_b32 {s(S_T3)}, {s(S_T3)}, {opt('KVM', 0)}\ns_add_u32 {s(S_T3)}, {s(S_T3)}, {KVAT}")
        if PT:
            q.wait("st")
            hflag(a, WS_F1); q.add("f", 1)
            stamp(a, 3)
            a(f"s_and_b32 {s(S_T0)}, {s(S_NI)}, 3\ns_cmp_eq_u32 {s(S_T0)}, 3\ns_cselect_b32 {s(S_T3)}, 0, {s(S_T3)}")
        lds_min_wait(a, C_CNT, W_ISS, 1, s(S_T3), 20)
        cold()
        if not PT:
            q.wait("st")
            hflag(a, WS_F1); q.add("f", 1)
            stamp(a, 3)
    q.wait("kv")
    kv_reads(a)
    kv_taps(a)
    a("s_waitcnt lgkmcnt(0)")
    for l in kv_compute(0):
        a(l)
    if not KVAT:
        q.wait("st")
        hflag(a, WS_F1); q.add("f", 1)
        stamp(a, 3)
    for l in kv_compute(1):
        a(l)
    kv_store(a); q.add("kvst", 4)
    lds_inc(a, C_CNT, C_ONE, W_HP)
    q.wait("kvst")
    hflag(a, WS_F2); q.add("f", 1)
    stamp(a, 4)
    if opt("HW7", 0):
        lds_min_wait(a, C_CNT, W_ISS, 1, opt("HW7", 0), 20)
        wdt()
        conv_h_loads(a)
    else:
        conv_h_shift(a)
    if SKV == 1:
        spf(a, R_H, S_HO, [128*i for i in range(32)])
    if WDE:
        wd_setup(a, 0, S_SH)
        a(f"s_lshl_b32 {s(S_T0)}, {s(S_SH)}, 2\nv_add_u32 v11, {s(S_T0)}, {v(C_CNT)}")
        lds_min_wait(a, C_CNT, W_HP, 1, 2, 20)
        lds_min_wait(a, C_CNT, W_ISS, 1, WDE, 20)
        for op in wd_dma(0, 2) + wd_dma(1, 2):
            a(op)
    lds_min_wait(a, C_CNT, W_ISS, 1, opt("GATP", 7), 20)
    poll2_issue(a, 8, 198)
    a.c("F2 pairs of tiles 8*(l&31) + (ti>>5)")
    a(f"s_lshr_b32 {s(S_T0)}, {s(S_TI)}, 5\ns_lshl_b32 {s(S_T0)}, {s(S_T0)}, 7\ns_add_u32 {s(S_T0)}, {s(S_T0)}, {WS_F2:#x}")
    a(f"v_and_b32 v16, 31, v0\nv_lshlrev_b32 v16, 10, v16\nv_add_u32 v16, {s(S_T0)}, v16")
    a("s_waitcnt vmcnt(0)")
    if WDE:
        a(f"ds_write_b32 v11, {v(C_ONE)} offset:{W_WE}")
    poll2_check(a, 8, 198)
    lds_min_wait(a, C_CNT, W_ISS, 1, opt("GAT", 7), 20)
    F2L = opt("F2L", 0)
    if not F2L:
        poll2_issue(a, 16, 18)
    a(f"s_lshl_b32 {s(S_T0)}, {s(S_MI)}, 1\ns_add_u32 {s(S_T0)}, {s(S_T0)}, {s(S_SH)}\ns_lshl_b32 {s(S_T0)}, {s(S_T0)}, 10\ns_add_u32 {s(S_T0)}, {s(S_T0)}, {WS_ST:#x}")
    a(f"buffer_load_dwordx4 {v(GG,4)}, v4, {s(R_WS,4)}, {s(S_T0)} offen sc1")
    cs_gather_issue(a)
    a(f"s_lshl_b32 {s(S_T0)}, {s(S_SH)}, 10\ns_add_u32 {s(S_T0)}, {s(S_T0)}, {L_ST}\nv_add_u32 v9, {s(S_T0)}, v4")
    late, join = a.label("u_late"), a.label("u_join")
    def u_loads():
        a(f"s_add_u32 {s(S_T2)}, {s(S_HO)}, {WS_KVR:#x}")
        for i in range(4):
            a(f"buffer_load_dwordx4 {v(128+4*i,4)}, v4, {s(R_WS,4)}, {s(S_T2)} offen offset:{1024*i} sc1")
    def gather_done():
        a(f"ds_write_b128 v9, {v(GG,4)}")
        cs_gather_finish(a)
        lds_inc(a, C_CNT, C_ONE, W_GATH)
        stamp(a, 5)
    if F2L:
        a("s_waitcnt vmcnt(0)")
        poll2_issue(a, 16, 18)
        gather_done()
        lds_min_wait(a, C_CNT, W_FREE, 4, 6, 20)
        lds_min_wait(a, C_CNT, W_HP, 1, 2, 20)
        if F2L == 2:
            conv_h_stage(a)
        a("s_waitcnt vmcnt(0)")
        poll2_check(a, 16, 18)
        u_loads()
        final_loads(a)
        if F2L == 1:
            conv_h_stage(a)
        a("s_waitcnt vmcnt(2)")
        for i in range(4):
            a(f"ds_write_b128 v10, {v(128+4*i,4)} offset:{4*HSTR + 1024*i}")
        stamp(a, 6)
        return
    a("s_waitcnt vmcnt(9)")
    a(f"v_cmp_ne_u32 vcc, {s(S_NON)}, v18\nv_cmp_ne_u32 {s(S_EX,2)}, {s(S_NON)}, v19\ns_nop 0\ns_or_b64 vcc, vcc, {s(S_EX,2)}\ns_cbranch_scc1 {late}")
    u_loads()
    a("s_waitcnt vmcnt(4)")
    gather_done()
    a(f"{join}:")
    keep = a.L
    a.L = COLD.L
    a(f"{late}:")
    a("s_waitcnt vmcnt(0)")
    gather_done()
    poll2_check(a, 16, 18)
    u_loads()
    a(f"s_branch {join}")
    a.L = keep
    final_loads(a)
    lds_min_wait(a, C_CNT, W_FREE, 4, 6, 20)
    a.c("the other helper must be done with its transpose scratch before the conv region is written")
    lds_min_wait(a, C_CNT, W_HP, 1, 2, 20)
    if opt("HW7", 0):
        conv_h_shift(a)
    conv_h_stage(a)
    a("s_waitcnt vmcnt(2)")
    for i in range(4):
        a(f"ds_write_b128 v10, {v(128+4*i,4)} offset:{4*HSTR + 1024*i}")
    stamp(a, 6)


C_ACC, C_F0, C_F1 = 16, 48, 112
C_AA, C_BA = 2, 3


def bsync_post(a, n=4):
    a(f"s_add_u32 {s(S_CNT)}, {s(S_CNT)}, {n}")
    a("s_mov_b64 exec, 1")
    a(f"ds_add_u32 {v(C_CNT)}, {v(C_ONE)}")
    a("s_mov_b64 exec, -1")


def bsync_wait(a, nap=None):
    lds_min_wait(a, C_CNT, W_CNT, 1, s(S_CNT), 6, nap=opt("BNAP", 0) if nap is None else nap)


def bsync(a, n=4):
    bsync_post(a, n)
    bsync_wait(a)


def conv_reads(fr, roff):
    out = []
    for p in range(8):
        out.append(f"ds_read_b128 {v(fr+4*p,4)}, {v(C_AA)} offset:{512*p + roff}")
        out.append(f"ds_read_b64 {v(fr+32+4*p,2)}, {v(C_BA)} offset:{512*(7-p) + roff}")
        out.append(f"ds_read_b64 {v(fr+32+4*p+2,2)}, {v(C_BA)} offset:{512*(7-p) + roff + 8}")
    return out


def conv_mfmas(fr, first):
    out = []
    for tot in range(8):
        for p in range(tot + 1):
            q = tot - p
            out.append((max(p, q), f"v_mfma_f32_16x16x32_bf16 {v(C_ACC+4*tot,4)}, {v(fr+4*p,4)}, {v(fr+32+4*q,4)}, ", C_ACC + 4*tot))
    out.sort(key=lambda t: t[0])
    res, seen = [], set()
    for _, txt, c in out:
        res.append(txt + ("0" if first and c not in seen else v(c, 4)))
        seen.add(c)
    return res


HR = 200


def conv_h_loads(a):
    a(f"s_mul_i32 {s(S_RING)}, {s(S_SH)}, {CH_STR}\ns_add_u32 {s(S_RING)}, {s(S_RING)}, {L_CONV}")
    for h in range(4):
        a(f"buffer_load_dwordx4 {v(HR+6*h+2,4)}, v4, {s(R_H,4)}, {s(S_HO)} offen offset:{1024*h} {NT}")


def conv_h_shift(a, z=24):
    for i in range(4):
        a(f"v_mov_b32 {v(z+i)}, 0")
    a(f"v_add_u32 v10, {s(S_RING)}, v4")
    T = 72
    a.c("the two dwords in front of each lane's piece come from the lane below")
    for h in range(4):
        r = HR + 6 * h
        for i in range(2):
            a(f"v_mov_b32_dpp {v(r+i)}, {v(r-2+i)} wave_ror:1 row_mask:0xf bank_mask:0xf" if h else f"v_mov_b32 {v(r+i)}, 0")
    for h in range(4):
        r = HR + 6 * h
        for i in range(2):
            a(f"v_mov_b32_dpp {v(r+i)}, {v(r+4+i)} wave_shr:1 row_mask:0xf bank_mask:0xf")
    for h in range(4):
        r = HR + 6 * h
        for i in range(4):
            a(f"v_alignbit_b32 {v(T+i)}, {v(r+2+i)}, {v(r+1+i)}, 16")
        for i in range(4):
            a(f"v_mov_b32 {v(T+4+i)}, {v(r+1+i)}")
        for i in range(4):
            a(f"v_alignbit_b32 {v(T+8+i)}, {v(r+1+i)}, {v(r+i)}, 16")
        T += 12


def conv_h_stage(a, z=24):
    a.c("zero pads: 384 B in front of each h copy, 128 B behind u")
    a("s_mov_b64 exec, 0xffffff")
    for p in range(4):
        a(f"ds_write_b128 v10, {v(z,4)} offset:{p*HSTR}")
    a("s_mov_b64 exec, 0xff")
    a(f"ds_write_b128 v10, {v(z,4)} offset:{4*HSTR + 4096}")
    a("s_mov_b64 exec, -1")
    for h in range(4):
        a(f"ds_write_b128 v10, {v(HR+6*h+2,4)} offset:{384 + 1024*h}")
        for p in range(1, 4):
            a(f"ds_write_b128 v10, {v(72+12*h+4*(p-1),4)} offset:{p*HSTR + 384 + 1024*h}")


def conv_mid(a):
    a("s_waitcnt vmcnt(0)")
    a(f"ds_write_b32 v11, v251 offset:{W_WD}")
    poll2_check(a, 5, 198)
    a(f"s_lshl_b32 {s(S_T0)}, {s(S_MT)}, 2\ns_add_u32 {s(S_T0)}, {s(S_T0)}, {s(S_WB)}\ns_lshl_b32 {s(S_T0)}, {s(S_T0)}, 8\ns_add_u32 {s(S_T0)}, {s(S_T0)}, {WS_ST:#x}")
    a(f"buffer_load_dwordx4 {v(184,4)}, v15, {s(R_WS,4)}, {s(S_T0)} offen sc1")
    a(f"buffer_load_dwordx4 {v(188,4)}, v15, {s(R_WS,4)}, {s(S_T0)} offen offset:128 sc1")


def conv_main(a):
    U, UU, X, O = 48, 56, 112, 144
    for l in conv_reads(C_F0, 0):
        a(l)
    for r in range(4):
        cur, nxt = (C_F0, C_F1) if r % 2 == 0 else (C_F1, C_F0)
        a("s_waitcnt lgkmcnt(0)")
        if r < 3:
            rd = conv_reads(nxt, 64 * (r + 1))
        else:
            rd = [f"ds_read_b32 {v(U+2*b+c)}, v10 offset:{c*CH_STR + 256*(3-b)}" for b in range(4) for c in range(2)]
        for l in interleave(conv_mfmas(cur, r == 0), rd, 0, 1):
            a(l)
        if r == opt("WDR", 0):
            conv_mid(a)
    lstamp(a, 5)
    a(f"s_setprio {opt('PRX', opt('PRC', 3))}")
    bsync(a)
    if opt("XST", 0): lstamp(a, 1)
    for t in range(8):
        a(f"ds_write_b128 v8, {v(C_ACC+4*t,4)} offset:{t*1024}")
    bsync_post(a)
    a.c("skip term D*u at rows 512wb + 128b + 2l, +1")
    a(f"s_lshl_b32 s100, {s(S_C+1)}, 16\ns_and_b32 {s(S_C+1)}, {s(S_C+1)}, 0xffff0000")
    for b in range(4):
        for c in range(2):
            u, o = U + 2*b + c, UU + 4*b + 2*c
            a(f"v_and_b32 {v(o)}, {s(S_C)}, {v(u)}\nv_lshlrev_b32 {v(o+1)}, 16, {v(u)}")
    for b in range(4):
        for c in range(2):
            for j in range(2):
                a(f"v_mul_f32 {v(UU+4*b+2*c+j)}, {s(S_C+1) if c else 's100'}, {v(UU+4*b+2*c+j)}")
        a(f"v_mov_b32 {v(O+4*b+1)}, {s(S_NON)}\nv_mov_b32 {v(O+4*b+3)}, {s(S_NON)}")
    bsync_wait(a)
    if opt("XST", 0): lstamp(a, 2)
    for b in range(4):
        for w in range(4):
            a(f"ds_read_b64 {v(X+8*b+2*w,2)}, v9 offset:{w*8192 + b*512}")
    a("s_waitcnt vmcnt(0)")
    for b in range(4):
        a(f"s_waitcnt lgkmcnt({4*(3-b)})")
        for c in range(2):
            for j in range(2):
                o, x0 = UU + 4*b + 2*c + j, X + 8*b + 4*c + j
                a(f"v_add_f32 {v(o)}, {v(o)}, {v(x0)}")
        for c in range(2):
            for j in range(2):
                o, x0 = UU + 4*b + 2*c + j, X + 8*b + 4*c + j
                a(f"v_add_f32 {v(o)}, {v(o)}, {v(x0+2)}")
        for j in range(2):
            a(f"v_cvt_pk_bf16_f32 {v(O+4*b+2*j)}, {v(UU+4*b+j)}, {v(UU+4*b+2+j)}")
        if opt("XST", 0) and b == 0: lstamp(a, 3)
        a(f"buffer_store_dwordx4 {v(O+4*b,4)}, v4, {s(R_WS,4)}, {s(S_HO)} offen offset:{1024*b} sc1")
    a.c("the flag only says where to look: the granules carry their own tags")
    if opt("YACK", 0):
        a("s_waitcnt vmcnt(0)")
    flag_store(a, S_DO, 8, 9)


def conv_addr(a):
    a(f"s_lshr_b32 {s(S_T0)}, {s(S_WB)}, 1\ns_mul_i32 {s(S_RING)}, {s(S_T0)}, {CH_STR}\ns_add_u32 {s(S_RING)}, {s(S_RING)}, {L_CONV}")
    a(f"s_lshl_b32 {s(S_T3)}, {s(S_TI)}, 2\ns_load_dword {s(S_C+1)}, {s(S_DP,2)}, {s(S_T3)}")
    a.c("A address: base + (3-(m&3))*HSTR + 128*(m>>2) + 16*kg + 256*rh ; B address: ubase + 120 - 8n + 16kg + 256*rh")
    a(f"s_and_b32 {s(S_T0)}, {s(S_WB)}, 1\ns_lshl_b32 {s(S_T0)}, {s(S_T0)}, 8\ns_add_u32 {s(S_T0)}, {s(S_T0)}, {s(S_RING)}")
    a(f"v_and_b32 v6, 3, v0\nv_sub_u32 v6, 3, v6\nv_mul_u32_u24 v6, {HSTR}, v6\nv_bfe_u32 v7, v0, 2, 2\nv_lshl_add_u32 v6, v7, 7, v6")
    a(f"v_and_b32 v7, 48, v0\nv_add3_u32 {v(C_AA)}, v6, v7, {s(S_T0)}")
    a(f"v_and_b32 v6, 15, v0\nv_lshlrev_b32 v6, 3, v6\nv_sub_u32 v6, v7, v6\ns_add_u32 {s(S_T0)}, {s(S_T0)}, {4*HSTR + 120}\nv_add_u32 {v(C_BA)}, {s(S_T0)}, v6")
    a(f"s_lshl_b32 {s(S_T0)}, {s(S_WB)}, 13\ns_add_u32 {s(S_T0)}, {s(S_T0)}, {L_XCH}\nv_add_u32 v8, {s(S_T0)}, v4")
    a(f"s_lshl_b32 {s(S_T0)}, {s(S_WB)}, 11\ns_add_u32 {s(S_T0)}, {s(S_T0)}, {L_XCH}\nv_lshlrev_b32 v9, 3, v0\nv_add_u32 v9, {s(S_T0)}, v9")
    a.c("u for the skip term: ubase_c + 2*(2046 - 512wb - 128b - 2l)")
    a(f"s_lshl_b32 {s(S_T0)}, {s(S_WB)}, 10\ns_sub_u32 {s(S_T0)}, {L_CONV + 4*HSTR + 4092 - 768}, {s(S_T0)}\nv_lshlrev_b32 v10, 2, v0\nv_sub_u32 v10, {s(S_T0)}, v10")
    a.c("y granules: YG[ti][row*8]; flag F4[wb*256 + ti]")
    a(f"s_mul_i32 {s(S_T0)}, {s(S_TI)}, {YSTR}\ns_lshl_b32 {s(S_T1)}, {s(S_WB)}, 12\ns_add_u32 {s(S_T0)}, {s(S_T0)}, {s(S_T1)}\ns_add_u32 {s(S_HO)}, {s(S_T0)}, {WS_YG:#x}")
    a(f"s_lshl_b32 {s(S_T0)}, {s(S_WB)}, 8\ns_add_u32 {s(S_T0)}, {s(S_T0)}, {s(S_TI)}\ns_lshl_b32 {s(S_T0)}, {s(S_T0)}, 7\ns_add_u32 {s(S_DO)}, {s(S_T0)}, {WS_F4:#x}")
    a(f"s_mov_b32 {s(S_CNT)}, 0\ns_lshl_b32 {s(S_T0)}, {s(S_WB)}, 2\nv_add_u32 v11, {s(S_T0)}, {v(C_CNT)}\nv_mov_b32 v251, 3")
    a.c("F1 pairs of the two tiles that hold this wave's output rows")
    a(f"s_lshl_b32 {s(S_T1)}, {s(S_MT)}, 2\ns_add_u32 {s(S_T1)}, {s(S_T1)}, {s(S_WB)}\ns_lshl_b32 {s(S_T1)}, {s(S_T1)}, 8\ns_add_u32 {s(S_T1)}, {s(S_T1)}, {WS_F1:#x}")
    a(f"v_and_b32 v5, 1, v0\nv_lshlrev_b32 v5, 7, v5\nv_add_u32 v5, {s(S_T1)}, v5")
    poll2_issue(a, 5, 198)


def final_loads(a):
    a(f"s_lshl_b32 {s(S_T0)}, {s(S_MT)}, 2\ns_add_u32 {s(S_T0)}, {s(S_T0)}, {s(S_WB)}\ns_lshl_b32 {s(S_T1)}, {s(S_T0)}, 14\ns_lshl_b32 {s(S_T2)}, {s(S_NT)}, 7\ns_add_u32 {s(S_XO)}, {s(S_T1)}, {s(S_T2)}")
    a(f"s_add_u32 {s(S_WO)}, {s(S_XO)}, 8192")
    a("v_lshrrev_b32 v12, 3, v0\nv_and_b32 v13, 7, v0\nv_lshlrev_b32 v14, 4, v13\nv_lshl_add_u32 v14, v12, 10, v14\nv_lshlrev_b32 v15, 4, v12")
    a(f"buffer_load_dwordx4 {v(176,4)}, v14, {s(R_X,4)}, {s(S_XO)} offen")
    a(f"buffer_load_dwordx4 {v(180,4)}, v14, {s(R_X,4)}, {s(S_WO)} offen")


def final(a):
    XU, XN, YU, YL = 16, 72, 96, 160
    a.c("flags F4[(mt>>3)*256 + 32nt + 8wb + (l&7)]; granules of pairs 32nt + 8wb + 2i + (l>>5), rows 64mt + 2*(l&31) ..")
    a(f"s_lshl_b32 {s(S_T0)}, {s(S_NT)}, 2\ns_add_u32 {s(S_T0)}, {s(S_T0)}, {s(S_WB)}\ns_lshr_b32 {s(S_T1)}, {s(S_MT)}, 3\ns_lshl_b32 {s(S_T1)}, {s(S_T1)}, 5\ns_add_u32 {s(S_T1)}, {s(S_T1)}, {s(S_T0)}")
    a(f"s_lshl_b32 {s(S_T1)}, {s(S_T1)}, 10\ns_add_u32 {s(S_T1)}, {s(S_T1)}, {WS_F4:#x}\nv_lshlrev_b32 v5, 7, v13\nv_add_u32 v5, {s(S_T1)}, v5")
    a(f"s_mul_i32 {s(S_T0)}, {s(S_T0)}, {8*YSTR}\ns_lshl_b32 {s(S_T1)}, {s(S_MT)}, 9\ns_add_u32 {s(S_T0)}, {s(S_T0)}, {s(S_T1)}\ns_add_u32 {s(S_HO)}, {s(S_T0)}, {WS_YG:#x}")
    a(f"v_lshrrev_b32 v10, 5, v0\nv_mul_u32_u24 v8, {YSTR - 512}, v10\nv_add_u32 v8, v8, v4")

    def y_loads():
        a(f"s_mov_b32 {s(S_T1)}, {s(S_HO)}")
        for i in range(4):
            a(f"buffer_load_dwordx4 {v(YL+4*i,4)}, v8, {s(R_WS,4)}, {s(S_T1)} offen sc1")
            if i < 3:
                a(f"s_add_u32 {s(S_T1)}, {s(S_T1)}, {2*YSTR}")
    for t in range(2):
        for i in range(4):
            a(f"v_lshlrev_b32 {v(XU+8*t+2*i)}, 16, {v(176+4*t+i)}\nv_and_b32 {v(XU+8*t+2*i+1)}, {s(S_C)}, {v(176+4*t+i)}")
    for i in range(16):
        a(f"v_mov_b32 {v(YU+i)}, 0")
    a.c("transpose scratch [wb'][c*272 + e*64 + row*4]")
    a(f"s_mul_i32 {s(S_T0)}, {s(S_WB)}, 544\ns_add_u32 {s(S_T0)}, {s(S_T0)}, {L_YL}")
    a(f"v_and_b32 v9, 3, v12\nv_mul_u32_u24 v9, 2176, v9\nv_lshl_add_u32 v9, v10, 6, v9\nv_lshl_add_u32 v9, v13, 3, v9\nv_add_u32 v9, {s(S_T0)}, v9")
    a(f"s_mul_i32 {s(S_T0)}, {s(S_WB)}, 2176\ns_add_u32 {s(S_T0)}, {s(S_T0)}, {L_YL}")
    a(f"v_mul_u32_u24 v7, 272, v13\nv_lshl_add_u32 v7, v12, 2, v7\nv_add_u32 v7, {s(S_T0)}, v7")
    a.c("partials: wb*16384 + w*4096 + (8t + row)*256 + ((2c + h) ^ row)*16")
    a(f"s_lshl_b32 {s(S_T0)}, {s(S_WB)}, 14\nv_lshlrev_b32 v2, 1, v13\nv_xor_b32 v2, v2, v12\nv_lshlrev_b32 v2, 4, v2\nv_lshl_add_u32 v2, v12, 8, v2\nv_add_u32 v2, {s(S_T0)}, v2")
    a("v_xor_b32 v3, 16, v2")
    for t in range(2):
        a(f"v_mul_f32 {v(185+4*t)}, {f32bits(1.0/C1):#x}, {v(185+4*t)}")
        for i in range(8):
            a(f"v_sub_f32 {v(XN+8*t+i)}, {v(XU+8*t+i)}, {v(184+4*t)}")
        for i in range(8):
            a(f"v_mul_f32 {v(XN+8*t+i)}, {v(XN+8*t+i)}, {v(185+4*t)}")
    if not opt('LDST', 0): stamp(a, 7)
    a(f"s_setprio {opt('PRP', 0)}")
    a.c("stay off the memory path until the GEMM2 waves have issued their loads")
    lds_min_wait(a, C_CNT, W_HI, 1, 4, 6, nap=2)
    a(f"s_setprio {opt('PRF', 3)}")
    if not opt('LDST', 0): stamp(a, 8)
    top, done = a.label("yp"), a.label("yp_ok")
    a(f"s_mov_b32 {s(S_IT)}, 0")
    if opt("YFLAG", 0):
        poll(a, 5, 6)
    a(f"{top}:")
    y_loads()
    a("s_waitcnt vmcnt(0)")
    for i in range(4):
        a(f"v_xor_b32 {v(48+i)}, {s(S_NON)}, {v(YL+4*i+1)}\nv_xor_b32 {v(52+i)}, {s(S_NON)}, {v(YL+4*i+3)}\nv_mov_b32 {v(YL+4*i+1)}, {v(YL+4*i+2)}")
    a("v_or3_b32 v48, v48, v49, v50\nv_or3_b32 v51, v51, v52, v53\nv_or3_b32 v48, v48, v54, v55\nv_or_b32 v48, v48, v51\nv_cmp_ne_u32 vcc, 0, v48")
    a(f"s_cbranch_vccz {done}")
    poll(a, 5, 6)
    a(f"s_add_u32 {s(S_IT)}, {s(S_IT)}, {s(S_SPIN)}\ns_add_u32 {s(S_IT)}, {s(S_IT)}, 1\ns_cmp_lt_u32 {s(S_IT)}, {SPIN_MAX}\ns_cbranch_scc1 {top}")
    a(f"{done}:")
    for i in range(4):
        a(f"ds_write_b64 v9, {v(YL+4*i,2)} offset:{272*(i>>1) + 128*(i&1)}")
    bsync(a)
    for t in range(2):
        for e in range(8):
            a(f"ds_read_u16_d16_hi {v(YU+8*t+e)}, v7 offset:{64*(e>>1) + 32*t + 2*(e&1)}")
    for t in range(2):
        a(f"s_waitcnt lgkmcnt({8*(1-t)})")
        for i in range(8):
            a(f"v_fmac_f32 {v(XU+8*t+i)}, {v(XN+8*t+i)}, {v(YU+8*t+i)}")
    if not opt('LDST', 0): stamp(a, 9)
    if STAMPS:
        a("s_waitcnt lgkmcnt(0)")
    a("s_barrier")
    P = 112
    for t in range(2):
        for w in range(4):
            for h in range(2):
                a(f"ds_read_b128 {v(P+32*t+8*w+4*h,4)}, {'v3' if h else 'v2'} offset:{w*4096 + t*2048}")
    for t in range(2):
        a(f"s_waitcnt lgkmcnt({8*(1-t)})")
        p = P + 32 * t
        for i in range(4):
            a(f"v_pk_add_f32 {v(p+2*i,2)}, {v(p+2*i,2)}, {v(p+8+2*i,2)}")
        for i in range(4):
            a(f"v_pk_add_f32 {v(p+16+2*i,2)}, {v(p+16+2*i,2)}, {v(p+24+2*i,2)}")
        for i in range(4):
            a(f"v_pk_add_f32 {v(p+2*i,2)}, {v(p+2*i,2)}, {v(XU+8*t+2*i,2)}")
        for i in range(4):
            a(f"v_pk_add_f32 {v(p+2*i,2)}, {v(p+2*i,2)}, {v(p+16+2*i,2)}")
        for i in range(4):
            a(f"v_cvt_pk_bf16_f32 {v(48+4*t+i)}, {v(p+2*i)}, {v(p+2*i+1)}")
        a(f"buffer_store_dwordx4 {v(48+4*t,4)}, v14, {s(R_OUT,4)}, {s(S_WO if t else S_XO)} offen")


def epoch_flags_issue(a):
    a(f"v_lshlrev_b32 v6, 7, v0\ns_mov_b32 {s(S_T0)}, {WS_F1:#x}")
    for i in range(4):
        a(f"buffer_load_dword {v(2+i)}, v6, {s(R_WS,4)}, {s(S_T0)} offen sc1")
        a(f"s_add_u32 {s(S_T0)}, {s(S_T0)}, 8192")


def epoch_pre(a):
    done = a.label("ep_skip")
    a(f"s_lshl_b32 {s(S_T0)}, s2, 3\ns_add_u32 {s(S_T0)}, {s(S_T0)}, {s(S_WAVE)}\ns_cmp_lg_u32 {s(S_T0)}, 0\ns_cbranch_scc1 {done}")
    epoch_flags_issue(a)
    a(f"{done}:")


def epoch_advance(a):
    done, top, ok = a.label("ep_skip"), a.label("ep_top"), a.label("ep_ok")
    a(f"s_lshl_b32 {s(S_T0)}, s2, 3\ns_add_u32 {s(S_T0)}, {s(S_T0)}, {s(S_WAVE)}\ns_cmp_lg_u32 {s(S_T0)}, 0\ns_cbranch_scc1 {done}")
    a(f"s_mov_b32 {s(S_SPIN)}, 0")
    a(f"{top}:")
    for i in range(4):
        a(f"v_xor_b32 {v(2+i)}, {s(S_NON)}, {v(2+i)}")
    a("v_or_b32 v2, v2, v3\nv_or_b32 v4, v4, v5\nv_or_b32 v2, v2, v4\nv_cmp_ne_u32 vcc, 0, v2")
    a(f"s_cbranch_vccz {ok}")
    a(f"s_add_u32 {s(S_SPIN)}, {s(S_SPIN)}, 1\ns_cmp_ge_u32 {s(S_SPIN)}, {SPIN_MAX}\ns_cbranch_scc1 {ok}")
    epoch_flags_issue(a)
    a(f"s_waitcnt vmcnt(0)\ns_branch {top}")
    a(f"{ok}:")
    a(f"s_mov_b32 {s(S_T0)}, {WS_EP:#x}")
    flag_store(a, S_T0, 8, 9)
    a(f"{done}:")


def kernel(a):
    entry(a)
    prologue(a, False, 1)
    g1_compute(a)
    g1_epilogue(a)
    epoch_pre(a)
    g2_main(a)
    epoch_advance(a)
    stamp_flush(a)
    a("s_endpgm")
    a(f".p2align {opt('AL', 6)}\n" + ".fill 16, 4, 0xbf800000\n" * opt("PAD", 0) + "L_load:")
    prologue(a)
    loader(a)
    a("s_branch L_bj")
    a(f".p2align {opt('AL', 6)}\nL_help:")
    prologue(a, 2 if opt("KV1", 0) else True)
    helper(a)
    a("L_bj:")
    if opt("BST", 0): lstamp(a, 1)
    conv_addr(a)
    if opt("BST", 0): lstamp(a, 2)
    bsync(a, 4 if opt("CEARLY", 0) else 8)
    a(f"s_setprio {opt('PRC', 3)}")
    lstamp(a, 4)
    conv_main(a)
    lstamp(a, 6)
    final(a)
    stamp_flush(a)
    a("s_endpgm")
    a.L += COLD.L
    a("L_end:\ns_endpgm")


HEADER = open(f"cdna_kernels/{NAME}.s.ref").read().split("; Override launch")[0]


def build():
    a = Asm()
    kernel(a)
    out = HEADER + "; @launch grid=(256,1,1) block=(512,1,1) lds=163840\n"
    out += '.amdgcn_target "amdgcn-amd-amdhsa--gfx950"\n.text\n' + a.text()
    out += '.section .rodata,"a"\n.p2align 6\n' + kernel_desc(KNAME)
    return out


if __name__ == "__main__":
    open(sys.argv[1] if len(sys.argv) > 1 else "t_m.s", "w").write(build())
```
